```python
import torch

def _softmax(x, axis=-1):
    return torch.softmax(x, dim=axis)
def _gelu(x):
    return torch.nn.functional.gelu(x, approximate="tanh")
def _silu(x):
    return torch.nn.functional.silu(x)
def _sigmoid(x):
    return torch.sigmoid(x)
def _layernorm(x, axis=-1, eps=1e-5):
    m = x.mean(dim=axis, keepdim=True)
    v = x.var(dim=axis, keepdim=True, unbiased=False)
    return (x - m) / torch.sqrt(v + eps)
def _scatter_add(tgt, idx, src, axis=0):
    return tgt.clone().index_add_(axis, idx, src)
def _segment_sum(src, seg, n):
    out = torch.zeros((n,) + src.shape[1:], dtype=src.dtype)
    return out.index_add_(0, seg, src)
def _pad(x, pw):
    flat = tuple(v for pair in reversed(pw) for v in pair)
    return torch.nn.functional.pad(x, flat)

kernel_name = 'parallel_sum__gqa_block_cached__dense_activation_gelu__decode'

def setup_inputs():

    _w = (lambda a: (lambda t: t.to(torch.bfloat16) if t.is_floating_point() else t)(torch.as_tensor(a)))
    def _A_setup():
        B, Sq, D = 1, 1, 448
        Hq, Hkv, Sk, Dh = 16, 8, 65536, 256
        assert Hq % Hkv == 0, (Hq, Hkv)
        return {
            "x": _w((lambda *s: torch.randn(*s, dtype=torch.bfloat16) * 0.05)(B, Sq, D)),
            "k_cache": _w((lambda *s: torch.randn(*s, dtype=torch.bfloat16) * 3.2)(B, Hkv, Sk, Dh)),
            "v_cache": _w((lambda *s: torch.randn(*s, dtype=torch.bfloat16) * 1.6)(B, Hkv, Sk, Dh)),
            "wq": _w((lambda *s: torch.randn(*s, dtype=torch.bfloat16) * 3.2)(D, Hq * Dh) * (D ** -0.5)),
            "wo": _w((lambda *s: torch.randn(*s, dtype=torch.bfloat16) * 1.6)(Hq * Dh, D) * ((Hq * Dh) ** -0.5)),
        }
    _A_in = _A_setup()

    def _B_setup():
        B, S, D, F = 1, 1, 448, 1792
        return {
            "x": _w((lambda *s: torch.randn(*s, dtype=torch.bfloat16) * 0.05)(B, S, D)),
            "w1": _w((lambda *s: torch.randn(*s, dtype=torch.bfloat16) * 1.6)(D, F) * (D ** -0.5)),
            "b1": _w((lambda *s: torch.randn(*s, dtype=torch.bfloat16) * 1.6)(F) * 0.01),
            "w2": _w((lambda *s: torch.randn(*s, dtype=torch.bfloat16) * 1.6)(F, D) * (F ** -0.5)),
            "b2": _w((lambda *s: torch.randn(*s, dtype=torch.bfloat16) * 1.6)(D) * 0.01),
        }
    _B_in = _B_setup()

    return {
        "A_x": _A_in["x"],
        "A_k_cache": _A_in["k_cache"],
        "A_v_cache": _A_in["v_cache"],
        "A_wq": _A_in["wq"],
        "A_wo": _A_in["wo"],
        "B_x": _B_in["x"],
        "B_w1": _B_in["w1"],
        "B_b1": _B_in["b1"],
        "B_w2": _B_in["w2"],
        "B_b2": _B_in["b2"],
    }

def reference(A_x, A_k_cache, A_v_cache, A_wq, A_wo, B_x, B_w1, B_b1, B_w2, B_b2):
    def _A_ref(x, k_cache, v_cache, wq, wo):
        B, Sq, D = x.shape
        Hq, Dh = 16, 256
        Hkv = k_cache.shape[1]
        rep = Hq // Hkv
        q = (lambda x, *d: x.permute(*d))((x @ wq).reshape(B, Sq, Hq, Dh), 0, 2, 1, 3)
        k = (lambda x, n, axis: torch.repeat_interleave(x, n, dim=axis))(k_cache, rep, axis=1)
        v = (lambda x, n, axis: torch.repeat_interleave(x, n, dim=axis))(v_cache, rep, axis=1)
        scores = torch.einsum("bhqd,bhkd->bhqk", q, k) * (Dh ** -0.5)
        p = _softmax(scores, axis=-1)
        o = torch.einsum("bhqk,bhkd->bhqd", p, v)
        return (lambda x, *d: x.permute(*d))(o, 0, 2, 1, 3).reshape(B, Sq, Hq * Dh) @ wo

    def _B_ref(x, w1, b1, w2, b2):
        h = torch.einsum("bsd,df->bsf", x, w1) + b1
        h = _gelu(h)
        return torch.einsum("bsf,fd->bsd", h, w2) + b2

    x = A_x
    xn = _layernorm(x, axis=-1)
    return x + _A_ref(xn, A_k_cache, A_v_cache, A_wq, A_wo) + _B_ref(xn, B_w1, B_b1, B_w2, B_b2)
```

```python
import sys
sys.path.insert(0,'cdna_kernels')

HEAD = """.amdgcn_target "amdgcn-amd-amdhsa--gfx950"
.text
"""
def kd(name, vgpr, sgpr=96, accum=None):
    if accum is None: accum = (vgpr+3)//4*4
    if accum > 256: accum = 256
    return f"""
.section .rodata,"a"
.p2align 6
.amdhsa_kernel {name}
  .amdhsa_next_free_vgpr {vgpr}
  .amdhsa_next_free_sgpr {sgpr}
  .amdhsa_accum_offset {accum}
  .amdhsa_group_segment_fixed_size 0
  .amdhsa_kernarg_size 112
  .amdhsa_user_sgpr_count 2
  .amdhsa_user_sgpr_kernarg_segment_ptr 1
  .amdhsa_system_sgpr_workgroup_id_x 1
.end_amdhsa_kernel
.text
"""
def meta(kernels):
    s = "\n.amdgpu_metadata\n---\namdhsa.version: [1, 2]\namdhsa.kernels:\n"
    for name, vgpr, wg in kernels:
        s += f"""  - .name: {name}
    .symbol: {name}.kd
    .kernarg_segment_size: 112
    .kernarg_segment_align: 8
    .group_segment_fixed_size: 0
    .private_segment_fixed_size: 0
    .wavefront_size: 64
    .sgpr_count: 102
    .vgpr_count: {vgpr}
    .max_flat_workgroup_size: {wg}
    .args:
      - {{.name: kernargs, .size: 112, .offset: 0, .value_kind: by_value}}
"""
    s += "...\n.end_amdgpu_metadata\n"
    return s

def stream_kernel(name, G, NW, DEPTH, pattern, flags, mapping='wg', lds=False, inter=False, jit=0, GRP=8):
    L=[]
    A=L.append
    per_wg = (256<<20)//G
    tiles_per_wave = per_wg//8192//NW
    ngrp = DEPTH//GRP
    A(f".globl {name}\n.p2align 8\n.type {name},@function\n{name}:")
    A(f"s_cmp_ge_u32 s2, {G}\ns_cbranch_scc1 {name}_done")
    A("s_memrealtime s[20:21]")
    A("s_load_dwordx4 s[4:7], s[0:1], 8")
    A("s_load_dwordx2 s[24:25], s[0:1], 96")
    A("v_lshrrev_b32 v1, 6, v0")
    A("v_and_b32 v2, 63, v0")
    A("s_nop 0")
    A("v_readfirstlane_b32 s3, v1")
    if pattern=='lin':
        A("v_lshlrev_b32 v3, 4, v2")
        offs=[j*1024 for j in range(8)]
    elif pattern=='k16':
        A("v_and_b32 v3, 15, v2\nv_lshlrev_b32 v3, 9, v3\nv_lshrrev_b32 v4, 4, v2\nv_lshlrev_b32 v4, 4, v4\nv_add_u32 v3, v3, v4")
        offs=[j*64 for j in range(8)]
    elif pattern=='v4':
        A("v_and_b32 v3, 15, v2\nv_lshlrev_b32 v3, 4, v3\nv_lshrrev_b32 v4, 4, v2\nv_lshlrev_b32 v4, 9, v4\nv_add_u32 v3, v3, v4")
        offs=[(j//2)*2048+(j%2)*256 for j in range(8)]
    elif pattern=='k8':
        A("v_and_b32 v3, 7, v2\nv_lshlrev_b32 v3, 4, v3\nv_lshrrev_b32 v4, 3, v2\nv_lshlrev_b32 v4, 9, v4\nv_add_u32 v3, v3, v4")
        offs=[(j//4)*4096+(j%4)*128 for j in range(8)]
    A("v_add_u32 v5, 0x1000, v3")
    A("s_waitcnt lgkmcnt(0)")
    A("s_mov_b32 s8, s4\ns_mov_b32 s9, s5\ns_mov_b32 s10, 0x10000000\ns_mov_b32 s11, 0x20000")
    A("s_mov_b32 s12, s6\ns_mov_b32 s13, s7\ns_mov_b32 s14, 0x10000000\ns_mov_b32 s15, 0x20000")
    if mapping=='wg':
        A(f"s_mul_i32 s16, s2, {per_wg}\ns_lshl_b32 s17, s3, 13\ns_add_u32 s16, s16, s17")
        step=NW*8192
    elif mapping=='wave':
        A(f"s_mul_i32 s16, s2, {per_wg}\ns_mul_i32 s17, s3, {per_wg//NW}\ns_add_u32 s16, s16, s17")
        step=8192
    elif mapping=='glob':
        A(f"s_mul_i32 s16, s2, {NW*8192}\ns_lshl_b32 s17, s3, 13\ns_add_u32 s16, s16, s17")
        step=G*NW*8192
    elif mapping=='head':
        A("s_lshr_b32 s32, s2, 3\ns_and_b32 s32, s32, 7")
        A("s_and_b32 s33, s2, 7\ns_lshr_b32 s34, s2, 6\ns_lshl_b32 s34, s34, 3\ns_or_b32 s33, s33, s34")
        A(f"s_lshl_b32 s16, s32, 25\ns_mul_i32 s17, s33, {NW*8192}\ns_add_u32 s16, s16, s17\ns_lshl_b32 s17, s3, 13\ns_add_u32 s16, s16, s17")
        step=32*NW*8192
    elif mapping=='hq':
        A("s_lshr_b32 s32, s2, 3\ns_and_b32 s32, s32, 7")
        A("s_and_b32 s33, s2, 7\ns_lshr_b32 s34, s2, 6\ns_lshl_b32 s34, s34, 3\ns_or_b32 s33, s33, s34")
        A(f"s_lshl_b32 s16, s32, 25\ns_lshl_b32 s17, s33, 13\ns_add_u32 s16, s16, s17\ns_mul_i32 s17, s3, {(32<<20)//NW}\ns_add_u32 s16, s16, s17")
        step=32*8192
    elif mapping=='xcd':
        A("s_and_b32 s32, s2, 7\ns_lshr_b32 s33, s2, 3")
        A(f"s_lshl_b32 s16, s32, 25\ns_lshl_b32 s17, s33, 20\ns_add_u32 s16, s16, s17\ns_lshl_b32 s17, s3, 13\ns_add_u32 s16, s16, s17")
        step=NW*8192
    elif mapping=='xcdrr':
        A("s_and_b32 s32, s2, 7\ns_lshr_b32 s33, s2, 3")
        A(f"s_lshl_b32 s16, s32, 25\ns_mul_i32 s17, s33, {NW*8192}\ns_add_u32 s16, s16, s17\ns_lshl_b32 s17, s3, 13\ns_add_u32 s16, s16, s17")
        step=32*NW*8192
    if mapping.startswith('rot'):
        mul=int(mapping[3:])
        A(f"s_mul_i32 s35, s2, {mul}\ns_mul_i32 s35, s35, {NW*8192}\ns_lshl_b32 s17, s3, 13\ns_add_u32 s35, s35, s17\ns_and_b32 s35, s35, 0xfffff")
        A(f"s_lshl_b32 s36, s2, 20\ns_add_u32 s16, s36, s35")
        step=NW*8192
    if lds:
        A(f"s_mul_i32 s30, s3, {DEPTH*1024}")
    A("s_mov_b32 s18, s16")
    def issue(grp, srd):
        for j in range(8):
            o=offs[j]; vo='v3'
            if o>=4096: o-=4096; vo='v5'
            if lds:
                A(f"s_add_u32 m0, s30, {(grp*8+j)*1024 - o + 4096}")
                A("s_nop 0")
                A(f"buffer_load_dwordx4 {vo}, s[{srd}:{srd+3}], s18 offen offset:{o} {flags} lds")
            else:
                r=8+(grp*8+j)*4
                A(f"buffer_load_dwordx4 v[{r}:{r+3}], {vo}, s[{srd}:{srd+3}], s18 offen offset:{o} {flags}")
        A("s_add_u32 s19, s19, 1")
        if inter:
            A("s_mov_b32 s32, s8\ns_mov_b32 s33, s9\ns_mov_b32 s8, s12\ns_mov_b32 s9, s13\ns_mov_b32 s12, s32\ns_mov_b32 s13, s33")
            A(f"s_and_b32 s32, s19, 1\ns_cselect_b32 s32, 0, {step}\ns_add_u32 s18, s18, s32")
        else:
            A(f"s_add_u32 s18, s18, {step}")
            A(f"s_cmp_eq_u32 s19, {tiles_per_wave}")
            A("s_cselect_b32 s8, s12, s8\ns_cselect_b32 s9, s13, s9\ns_cselect_b32 s18, s16, s18")
        if mapping.startswith('rot'):
            A("s_and_b32 s18, s18, 0xfffff\ns_or_b32 s18, s18, s36")
        A(f"s_cmp_ge_u32 s19, {2*tiles_per_wave}")
        A("s_cselect_b32 s18, s31, s18")
    total=2*tiles_per_wave
    A("s_mov_b32 s19, 0\ns_mov_b32 s31, 0x40000000")
    for g in range(ngrp): issue(g,8)
    if jit:
        A(f"s_mul_i32 s40, s2, 0x9E3779B1\ns_lshr_b32 s40, s40, 16\ns_mul_i32 s40, s40, {abs(jit)}\ns_lshr_b32 s40, s40, 16\ns_add_u32 s40, s40, {500 if jit>0 else 0}")
        A(f"{name}_spin:\ns_sleep 1\ns_memrealtime s[22:23]\ns_waitcnt lgkmcnt(0)\ns_sub_u32 s41, s22, s20\ns_cmp_lt_u32 s41, s40\ns_cbranch_scc1 {name}_spin\ns_barrier")
    A(f"{name}_loop:")
    for g in range(ngrp):
        A(f"s_waitcnt vmcnt({DEPTH-8})")
        if not lds:
            r=8+g*32
            A(f"v_xor_b32 v6, v{r}, v6\nv_xor_b32 v6, v{r+31}, v6")
        issue(g,8)
    A(f"s_cmp_lt_u32 s19, {total}")
    A(f"s_cbranch_scc1 {name}_loop")
    A("s_waitcnt vmcnt(0)")
    A("s_barrier")
    A("s_memrealtime s[22:23]")
    A("s_waitcnt lgkmcnt(0)")
    A("v_cmp_eq_u32 vcc, 0, v0\ns_and_saveexec_b64 s[26:27], vcc")
    A(f"s_cbranch_execz {name}_done")
    A("s_lshl_b32 s28, s2, 6\ns_add_u32 s28, s28, 0x20000000")
    A("v_mov_b32 v1, s28\nv_mov_b32 v8, s20\nv_mov_b32 v9, s21\nv_mov_b32 v10, s22\nv_mov_b32 v11, s23")
    A("global_store_dwordx4 v1, v[8:11], s[24:25]")
    A("s_getreg_b32 s29, hwreg(HW_REG_XCC_ID)")
    A("s_getreg_b32 s30, hwreg(HW_REG_HW_ID)")
    A("v_mov_b32 v12, s29\nv_mov_b32 v13, s30")
    A("global_store_dwordx2 v1, v[12:13], s[24:25] offset:56")
    A(f"{name}_done:\ns_endpgm")
    vg = 16 if lds else 8+DEPTH*4
    return "\n".join(L)+"\n"+kd(name,vg), vg

if __name__=="__main__":
    import itertools
    out=HEAD; ks=[]; cmd=[]
    specs=eval(sys.argv[2])
    for sp in specs:
        G,NW,DEPTH,pat,fl,mp,lds,inter,jit=sp
        name=f"s_{G}_{NW}_{DEPTH}_{pat}_{fl.replace(' ','') or 'def'}_{mp}_{'lds' if lds else 'reg'}_{'I' if inter else 'P'}_j{jit}".replace('-','m')
        s,vg=stream_kernel(name,G,NW,DEPTH,pat,fl,mp,lds,inter,jit)
        out+=s; ks.append((name,vg,NW*64))
        cmd.append(f"{name} {G} {NW*64} {max(86016,NW*DEPTH*1024+4096) if lds else (86016 if G==256 else (57344 if G==512 else 0))}")
    out+=meta(ks)
    open(sys.argv[1]+".s","w").write(out)
    open(sys.argv[1]+".args","w").write(" @ ".join(cmd))
```

```python
import sys, struct, math

KNAME = "parallel_sum__gqa_block_cached__dense_activation_gelu__decode_kernel"

def f2u(f): return struct.unpack('<I', struct.pack('<f', f))[0]

class Cfg:
    rot = 5
    pace = 4
    stamps = False
    wnt = "nt"
    name = KNAME
    warm = True
    swz = 15
    nomlp = False
    noaux = False
    nowc = False
    notail = False
    noq = False
    nocomp = False
    noclear = False
    nowo = False
    nowq = False
    auxnull = False
    now1 = False
    now2 = False
    nomp = False
    rgap = True
    kpol = 'nt'
    vpol = 'nt'
    mpc = False
    noml = False
    qsleep = 0
    sleep1 = 2
    sleep2 = 1
    m0each = True
    smap = {}
    infl = 16

RING=0; SC=131072; WBUF=SC+8192; XN=WBUF+14336; QB=XN+1024; MX=QB+1024; LB=MX+64; LDS_END=LB+64
QBOX=0x1000; INBOX1=0x10000; INBOX2=0x200000; STAMP=0x20000000
SPIN_LIMIT = 1<<16

def gen(cfg):
    L=[]
    def A(s):
        for line in s.split("\n"):
            L.append("    "+line.strip() if not line.strip().endswith(":") else line.strip())
    N=cfg.name
    uid=[0]
    def lab(p):
        uid[0]+=1; return f".L{p}_{uid[0]}_{abs(hash(N))%9973}" if False else f"L_{N[:6]}{len(N)}_{p}_{uid[0]}"
    def nop(n):
        if n>0: A(f"s_nop {n-1}")
    sX,sK,sV,sWQ,sWO,sW1,sB1=16,18,20,22,24,28,30
    sW2,sB2,sOUT,sDBG,sWS=32,34,36,38,40
    SRDK,SRDV,SRDA,SRDW=44,48,52,56
    sWAVE=3
    def srd(d, p, size):
        A(f"s_mov_b32 s{d}, s{p}\ns_mov_b32 s{d+1}, s{p+1}\ns_mov_b32 s{d+2}, {size:#x}\ns_mov_b32 s{d+3}, 0x20000")
    def stamp(k):
        if cfg.stamps:
            if isinstance(k,str):
                if k not in cfg.smap: return
                k=cfg.smap[k]
            elif k in cfg.smap.values(): return
            A(f"s_memrealtime s[{80+2*k}:{81+2*k}]")
    DPP="row_mask:0xf bank_mask:0xf"
    def rowred(op, v, rors):
        for r in rors:
            nop(2); A(f"{op}_dpp v{v}, v{v}, v{v} row_ror:{r} {DPP}")
    def xrowred(op, v, t):
        A(f"v_mov_b32 v{t}, v{v}"); nop(2); A(f"v_permlane16_swap_b32 v{v}, v{t}"); A(f"{op} v{v}, v{v}, v{t}")
        A(f"v_mov_b32 v{t}, v{v}"); nop(2); A(f"v_permlane32_swap_b32 v{v}, v{t}"); A(f"{op} v{v}, v{v}, v{t}")
    def tred4(a):
        nop(2)
        A(f"v_permlane32_swap_b32 v{a}, v{a+2}\nv_permlane32_swap_b32 v{a+1}, v{a+3}")
        A(f"v_add_f32 v{a}, v{a}, v{a+2}\nv_add_f32 v{a+1}, v{a+1}, v{a+3}")
        nop(2)
        A(f"v_permlane16_swap_b32 v{a}, v{a+1}")
        A(f"v_add_f32 v{a}, v{a}, v{a+1}")
    def rbf(d, s):
        A(f"v_cvt_pk_bf16_f32 v{d}, v{s}, v{s}\nv_and_b32 v{d}, 0xffff0000, v{d}")

    Ldone=f"L_done_{len(N)}{N[:4]}"; Laux=f"L_aux_{len(N)}{N[:4]}"
    if N!=KNAME:
        Ldone=f"L_done_{N}"; Laux=f"L_aux_{N}"
        def lab(p):
            uid[0]+=1; return f"L_{N}_{p}_{uid[0]}"
    A(f".globl {N}\n.p2align 8\n.type {N},@function\n{N}:")
    A(f"s_cmp_ge_u32 s2, 256\ns_cbranch_scc1 {Ldone}")
    A("s_load_dwordx16 s[16:31], s[0:1], 0\ns_load_dwordx8 s[32:39], s[0:1], 64\ns_load_dwordx2 s[40:41], s[0:1], 96")
    stamp(0)
    A("v_lshrrev_b32 v1, 6, v0\nv_and_b32 v2, 63, v0")
    nop(1)
    A(f"v_readfirstlane_b32 s{sWAVE}, v1")
    A(f"s_cmp_eq_u32 s{sWAVE}, 4\ns_cbranch_scc1 {Laux}")

    vKO=8; vVO=16; vKA=18; vVA=22; vSA=23; vMASK=24; vMAX=28; vL=29; vNM=30; vT=31
    QF=40; TF=72; D=104; S2=108; P=110; AR=116; ACC=132
    sRING,sREG,sNEXT,sOFF,sCNT=60,61,62,63,64
    A(f"v_lshrrev_b32 v3, 5, v2\nv_and_b32 v4, 31, v2\nv_lshlrev_b32 v5, 2, v3\nv_and_b32 v5, {cfg.swz}, v5\nv_xor_b32 v4, v4, v5\nv_lshlrev_b32 v4, 4, v4\nv_lshl_add_u32 v4, v3, 9, v4")
    for j in range(8):
        c=((8*(j&1)+(j>>1))&cfg.swz)*16 | (4096 if j>=4 else 0)
        A(f"v_xor_b32 v{vKO+j}, {c:#x}, v4")
    A(f"s_lshl_b32 s{sRING}, s{sWAVE}, 15\ns_lshl_b32 s{sREG}, s2, 20")
    A(f"s_mul_i32 s{sNEXT}, s2, {cfg.rot*32768}\ns_lshl_b32 s{sOFF}, s{sWAVE}, 13\ns_add_u32 s{sNEXT}, s{sNEXT}, s{sOFF}\ns_and_b32 s{sNEXT}, s{sNEXT}, 0xfffff")
    A("s_waitcnt lgkmcnt(0)")
    srd(SRDK,sK,1<<28)
    sT8=66; sFF=67
    def issue_half(slot, isK, half):
        if half==0:
            A(f"s_or_b32 s{sOFF}, s{sREG}, s{sNEXT}")
        A(f"s_add_u32 m0, s{sRING}, {slot*8192+half*4096}")
        if half==0:
            A(f"s_add_u32 s{sNEXT}, s{sNEXT}, 32768")
        else:
            A(f"s_and_b32 s{sNEXT}, s{sNEXT}, 0xfffff")
        for jj in range(4):
            j=half*4+jj
            vo = vKO+j if isK else vVO+half
            sr = SRDK if isK else SRDV
            if cfg.m0each and jj: A(f"s_add_u32 m0, s{sRING}, {slot*8192+half*4096}\ns_nop 0")
            A(f"buffer_load_dwordx4 v{vo}, s[{sr}:{sr+3}], s{sOFF} offen offset:{jj*1024} {cfg.kpol if isK else cfg.vpol} lds")
    def issue(slot,isK):
        issue_half(slot,isK,0); issue_half(slot,isK,1)
    def gissue(slot,isK):
        for half in range(2):
            if cfg.infl<32: A(f"s_waitcnt vmcnt({cfg.infl-4})")
            issue_half(slot,isK,half)
    issue(0,True)
    srd(SRDV,sV,1<<28)
    A(f"s_load_dword s{sT8}, s[{sWS}:{sWS+1}], 0")
    A(f"v_lshlrev_b32 v{vVO}, 4, v2\nv_add_u32 v{vVO+1}, 0x1000, v{vVO}")
    A("v_lshrrev_b32 v3, 4, v2\nv_and_b32 v4, 15, v2")
    A("v_and_b32 v5, 3, v4\nv_lshlrev_b32 v5, 2, v5\nv_lshrrev_b32 v6, 2, v4\nv_add_u32 v5, v5, v6")
    A(f"v_and_b32 v6, {cfg.swz}, v4\nv_xor_b32 v6, v3, v6\nv_lshlrev_b32 v6, 4, v6\nv_lshl_add_u32 v6, v5, 9, v6\nv_add_u32 v6, s{sRING}, v6")
    for q in range(4):
        A(f"v_xor_b32 v{vKA+q}, {q*64}, v6")
    A(f"v_lshlrev_b32 v6, 4, v4\nv_lshl_add_u32 v6, v3, 9, v6\nv_add_u32 v{vVA}, s{sRING}, v6")
    A(f"s_lshl_b32 s{sCNT}, s{sWAVE}, 11\ns_add_u32 s{sCNT}, s{sCNT}, {SC}")
    A(f"v_lshrrev_b32 v5, 3, v4\nv_lshlrev_b32 v6, 5, v5\nv_lshl_add_u32 v6, v3, 3, v6\nv_add_u32 v{vSA}, s{sCNT}, v6")
    A(f"v_lshlrev_b32 v7, 9, v5\nv_lshl_add_u32 v7, v3, 4, v7\nv_add_u32 v7, {QB}, v7")
    A("v_and_b32 v5, 1, v4\nv_lshlrev_b32 v5, 4, v5\nv_mov_b32 v6, 0xffff\nv_lshlrev_b32 v6, v5, v6\nv_bfe_u32 v5, v4, 1, 2")
    for r in range(4):
        A(f"v_cmp_eq_u32 vcc, {r}, v5"); nop(2); A(f"v_cndmask_b32 v{vMASK+r}, 0, v6, vcc")
    A(f"v_mov_b32 v{vMAX}, 0xff800000\nv_mov_b32 v{vL}, 0")
    for r in range(8): A(f"v_mov_b32 v{ACC+r}, 0")
    for slot in range(1,4):
        for half in range(2):
            if cfg.pace is not None: A(f"s_waitcnt vmcnt({cfg.pace})")
            issue_half(slot,True,half)
    A(f"s_waitcnt lgkmcnt(0)\ns_add_u32 s{sT8}, s{sT8}, 1\ns_and_b32 s{sT8}, s{sT8}, 0xff\ns_mov_b32 s{sFF}, 0xff\nv_mov_b32 v{vT+4}, s{sT8}")
    A("s_barrier")
    for jj in range(8): A(f"ds_read_b128 v[{QF+4*jj}:{QF+4*jj+3}], v7 offset:{jj*64}")

    def ktile(slot, nextK):
        A("s_waitcnt vmcnt(24)")
        if cfg.nocomp:
            gissue(slot,nextK); return
        for jj in range(8):
            A(f"ds_read_b128 v[{TF+4*jj}:{TF+4*jj+3}], v{vKA+(jj&3)} offset:{slot*8192+(jj>>2)*256}")
        A("s_waitcnt lgkmcnt(0)")
        for jj in range(8):
            c = "0" if jj==0 else f"v[{D}:{D+3}]"
            A(f"v_mfma_f32_16x16x32_bf16 v[{D}:{D+3}], v[{TF+4*jj}:{TF+4*jj+3}], v[{QF+4*jj}:{QF+4*jj+3}], {c}")
        nop(8)
        A(f"v_cvt_pk_bf16_f32 v{S2}, v{D}, v{D+1}\nv_cvt_pk_bf16_f32 v{S2+1}, v{D+2}, v{D+3}")
        A(f"v_max3_f32 v{vMAX}, v{vMAX}, v{D}, v{D+1}\nv_max3_f32 v{vMAX}, v{vMAX}, v{D+2}, v{D+3}")
        A(f"ds_write_b64 v{vSA}, v[{S2}:{S2+1}] offset:{slot*64}")
        gissue(slot,nextK)
    sC=65
    def vtile(slot, issue_next, waitn):
        A(f"s_waitcnt vmcnt({waitn})")
        if cfg.nocomp:
            if issue_next: gissue(slot,False)
            return
        A(f"ds_read_b64 v[{S2}:{S2+1}], v{vSA} offset:{slot*64}")
        for u in range(8):
            A(f"ds_read_b128 v[{TF+4*u}:{TF+4*u+3}], v{vVA} offset:{slot*8192+(u>>1)*2048+(u&1)*256}")
        A("s_waitcnt lgkmcnt(8)")
        A(f"v_lshlrev_b32 v{P}, 16, v{S2}\nv_and_b32 v{P+1}, 0xffff0000, v{S2}\nv_lshlrev_b32 v{P+2}, 16, v{S2+1}\nv_and_b32 v{P+3}, 0xffff0000, v{S2+1}")
        for t in range(4): A(f"v_fma_f32 v{P+t}, v{P+t}, s{sC}, v{vNM}")
        for t in range(4): A(f"v_exp_f32 v{P+t}, v{P+t}")
        nop(1)
        for t in range(4): A(f"v_cvt_pk_bf16_f32 v{P+t}, v{P+t}, v{P+t}")
        for t in range(4):
            for r in range(4): A(f"v_and_b32 v{AR+4*t+r}, v{P+t}, v{vMASK+r}")
        A("s_waitcnt lgkmcnt(0)")
        nop(1)
        for u in range(8):
            t=u>>1; h=u&1
            A(f"v_mfma_f32_16x16x32_bf16 v[{ACC+4*h}:{ACC+4*h+3}], v[{AR+4*t}:{AR+4*t+3}], v[{TF+4*u}:{TF+4*u+3}], v[{ACC+4*h}:{ACC+4*h+3}]")
        if issue_next: gissue(slot,False)

    lk=lab("kloop")
    A(f"s_mov_b32 s{sCNT}, 7")
    A(f"{lk}:")
    for s in range(4): ktile(s,True)
    A(f"v_add_u32 v{vSA}, 256, v{vSA}")
    A(f"s_sub_u32 s{sCNT}, s{sCNT}, 1\ns_cmp_lg_u32 s{sCNT}, 0\ns_cbranch_scc1 {lk}")
    for s in range(4): ktile(s,False)
    A(f"v_subrev_u32 v{vSA}, {7*256}, v{vSA}")
    xrowred("v_max_f32", vMAX, vT)
    rbf(vMAX,vMAX)
    A(f"v_bfe_u32 v3, v2, 3, 1\nv_lshlrev_b32 v3, 4, v3\nv_add_u32 v3, {MX}, v3")
    A(f"s_lshl_b32 s{sCNT}, s{sWAVE}, 2\nv_add_u32 v4, s{sCNT}, v3")
    A(f"ds_write_b32 v4, v{vMAX}\ns_waitcnt lgkmcnt(0)\ns_barrier")
    A(f"ds_read_b128 v[{D}:{D+3}], v3\ns_mov_b32 s{sC}, {f2u(0.0625*math.log2(math.e)):#x}\ns_waitcnt lgkmcnt(0)")
    A(f"v_max_f32 v{vMAX}, v{D}, v{D+1}\nv_max3_f32 v{vMAX}, v{vMAX}, v{D+2}, v{D+3}")
    A(f"v_mul_f32 v{vNM}, s{sC}, v{vMAX}\nv_sub_f32 v{vNM}, 0, v{vNM}")
    lv=lab("vloop")
    A(f"s_mov_b32 s{sCNT}, 7")
    A(f"{lv}:")
    for s in range(4): vtile(s,True,24)
    A(f"v_add_u32 v{vSA}, 256, v{vSA}")
    A(f"s_sub_u32 s{sCNT}, s{sCNT}, 1\ns_cmp_lg_u32 s{sCNT}, 0\ns_cbranch_scc1 {lv}")
    for s in range(4): vtile(s,False,24-8*s)
    A(f"v_lshlrev_b32 v5, 4, v2\nv_add_u32 v6, s{sRING}, v5")
    nop(6)
    A(f"ds_write_b128 v6, v[{ACC}:{ACC+3}]\nds_write_b128 v6, v[{ACC+4}:{ACC+7}] offset:1024")
    srd(SRDW,sWS,1<<30)
    A("s_waitcnt lgkmcnt(0)\ns_barrier")
    A(f"s_cmp_ge_u32 s{sWAVE}, 2\ns_cbranch_scc1 {Ldone}")
    A(f"s_lshl_b32 s{sCNT}, s{sWAVE}, 10\nv_add_u32 v5, s{sCNT}, v5\nv_add_u32 v6, 0x10000, v5")
    A(f"ds_read_b128 v[{TF}:{TF+3}], v5\nds_read_b128 v[{TF+4}:{TF+7}], v5 offset:32768\nds_read_b128 v[{TF+8}:{TF+11}], v6\nds_read_b128 v[{TF+12}:{TF+15}], v6 offset:32768")
    A("v_lshrrev_b32 v3, 5, v2\nv_lshlrev_b32 v3, 4, v3\nv_bfe_u32 v4, v2, 1, 3\nv_add_u32 v3, v3, v4\nv_lshlrev_b32 v3, 12, v3")
    A("v_and_b32 v4, 1, v2\nv_lshl_add_u32 v3, v4, 5, v3\nv_bfe_u32 v4, v2, 4, 1\nv_lshl_add_u32 v3, v4, 4, v3")
    A(f"s_lshr_b32 s{sOFF}, s2, 5\ns_lshl_b32 s{sOFF}, s{sOFF}, 17\ns_lshl_b32 s{sCNT}, s{sWAVE}, 15\ns_add_u32 s{sOFF}, s{sOFF}, s{sCNT}")
    A(f"s_and_b32 s{sCNT}, s2, 31\ns_lshl_b32 s{sCNT}, s{sCNT}, 6\ns_add_u32 s{sOFF}, s{sOFF}, s{sCNT}\ns_add_u32 s{sOFF}, s{sOFF}, {INBOX1}")
    A("s_waitcnt lgkmcnt(0)")
    for r in range(4):
        A(f"v_add_f32 v{TF+r}, v{TF+r}, v{TF+4+r}\nv_add_f32 v{TF+8+r}, v{TF+8+r}, v{TF+12+r}")
    for r in range(4):
        A(f"v_add_f32 v{TF+r}, v{TF+r}, v{TF+8+r}")
    for r in range(4):
        A(f"v_bfi_b32 v{TF+r}, s{sFF}, v{vT+4}, v{TF+r}")
    A(f"buffer_store_dwordx4 v[{TF}:{TF+3}], v3, s[{SRDW}:{SRDW+3}], s{sOFF} offen sc1")
    A("s_endpgm")

    vL16=3; vWO_=4; vTR=5; vXA=6
    X=8; F=12; T=20
    XF=32; WF=88; PW=144
    RAW=88; PW=152; PO=216
    vT8=226; sFF=78
    vFX=224; vFM=225
    sE,sTAG,sCQ,sO2,sSPIN,sCM=60,61,62,63,64,65
    sPAIR=66
    A(f"{Laux}:")
    lend=lab("end")
    if cfg.auxnull:
        A("s_waitcnt lgkmcnt(0)"); srd(SRDW,sWS,1<<30)
        A("s_barrier"); stamp(3); A("s_barrier"); stamp(4); A("s_barrier"); stamp(5); A(f"s_branch {lend}")
    A("s_setprio 3")
    A(f"v_lshrrev_b32 v7, 1, v2\nv_and_b32 v{T}, 1, v2\nv_lshlrev_b32 v{T}, 4, v{T}")
    A(f"v_lshl_add_u32 v{vWO_}, v7, 13, v{T}\nv_lshlrev_b32 v{vL16}, 4, v2")
    A(f"s_and_b32 s{sCQ}, s2, 7\ns_lshl_b32 s{sCQ}, s{sCQ}, 5\ns_lshr_b32 s{sO2}, s2, 3\ns_add_u32 s{sCQ}, s{sCQ}, s{sO2}\ns_lshl_b32 s{sO2}, s{sCQ}, 5")
    A("s_waitcnt lgkmcnt(0)")
    A(f"s_load_dword s{sE}, s[{sWS}:{sWS+1}], 0")
    srd(SRDA,sX,896)
    A(f"buffer_load_dwordx4 v[{X}:{X+3}], v{vL16}, s[{SRDA}:{SRDA+3}], 0 offen")
    srd(SRDK,sWQ,448*4096*2)
    def wdma(sr, rowstride):
        for i in range(14):
            A(f"s_mov_b32 m0, {WBUF+i*1024}")
            if i: A(f"s_add_u32 s{sO2}, s{sO2}, {32*rowstride}")
            else: nop(1)
            A(f"buffer_load_dwordx4 v{vWO_}, s[{sr}:{sr+3}], s{sO2} offen {cfg.wnt} lds")
    if not cfg.nowq: wdma(SRDK,8192)
    srd(SRDW,sWS,1<<30)
    A(f"v_lshrrev_b32 v{T}, 4, v2\nv_bfe_u32 v{T+1}, v2, 2, 2\nv_lshl_add_u32 v{T+1}, v{T}, 3, v{T+1}\nv_lshlrev_b32 v{T+1}, 5, v{T+1}\nv_and_b32 v{T+2}, 3, v2\nv_lshl_add_u32 v{T+1}, v{T+2}, 3, v{T+1}\nv_add_u32 v{vTR}, {WBUF}, v{T+1}")
    A(f"v_lshlrev_b32 v{T}, 4, v{T}\nv_add_u32 v{vXA}, {XN}, v{T}")
    A("v_cmp_gt_u32 s[74:75], 56, v2")
    A("s_waitcnt vmcnt(14)")
    for r in range(4):
        A(f"v_lshlrev_b32 v{F+2*r}, 16, v{X+r}\nv_and_b32 v{F+2*r+1}, 0xffff0000, v{X+r}")
    A(f"v_add_f32 v{T}, v{F}, v{F+1}\nv_add_f32 v{T+1}, v{F+2}, v{F+3}\nv_add_f32 v{T+2}, v{F+4}, v{F+5}\nv_add_f32 v{T+3}, v{F+6}, v{F+7}")
    A(f"v_add_f32 v{T}, v{T}, v{T+1}\nv_add_f32 v{T+2}, v{T+2}, v{T+3}\nv_add_f32 v{T}, v{T}, v{T+2}")
    rowred("v_add_f32",T,[1,2,4,8]); xrowred("v_add_f32",T,T+1)
    A(f"v_mul_f32 v{T}, {f2u(1.0/448):#x}, v{T}")
    A(f"v_sub_f32 v{T+2}, v{F}, v{T}\nv_mul_f32 v{T+1}, v{T+2}, v{T+2}")
    for r in range(1,8):
        A(f"v_sub_f32 v{T+2}, v{F+r}, v{T}\nv_fmac_f32 v{T+1}, v{T+2}, v{T+2}")
    A(f"v_cndmask_b32 v{T+1}, 0, v{T+1}, s[74:75]")
    rowred("v_add_f32",T+1,[1,2,4,8]); xrowred("v_add_f32",T+1,T+2)
    A(f"v_mul_f32 v{T+1}, {f2u(1.0/448):#x}, v{T+1}")
    rbf(T,T); rbf(T+1,T+1)
    A(f"v_add_f32 v{T+1}, {f2u(1e-5):#x}, v{T+1}"); rbf(T+1,T+1)
    A(f"v_sqrt_f32 v{T+1}, v{T+1}"); nop(1); rbf(T+1,T+1)
    A(f"v_rcp_f32 v{T+2}, v{T+1}")
    for r in range(8): A(f"v_sub_f32 v{F+r}, v{F+r}, v{T}")
    for r in range(4):
        A(f"v_cvt_pk_bf16_f32 v{X+r}, v{F+2*r}, v{F+2*r+1}")
    for r in range(4):
        A(f"v_lshlrev_b32 v{F+2*r}, 16, v{X+r}\nv_and_b32 v{F+2*r+1}, 0xffff0000, v{X+r}")
    for r in range(8):
        A(f"v_mul_f32 v{T+3}, v{F+r}, v{T+2}\nv_fma_f32 v{T+4}, -v{T+3}, v{T+1}, v{F+r}\nv_fma_f32 v{F+r}, v{T+4}, v{T+2}, v{T+3}")
    for r in range(4):
        A(f"v_cvt_pk_bf16_f32 v{X+r}, v{F+2*r}, v{F+2*r+1}")
    A(f"v_add_u32 v{T}, {XN}, v{vL16}\nds_write_b128 v{T}, v[{X}:{X+3}]\ns_waitcnt lgkmcnt(0)")
    for jj in range(14): A(f"ds_read_b128 v[{XF+4*jj}:{XF+4*jj+3}], v{vXA} offset:{jj*64}")
    def gemv16(dst):
        for jj in range(14):
            A(f"ds_read_b64_tr_b16 v[{WF+4*jj}:{WF+4*jj+1}], v{vTR} offset:{jj*1024}\nds_read_b64_tr_b16 v[{WF+4*jj+2}:{WF+4*jj+3}], v{vTR} offset:{jj*1024+128}")
        A("s_waitcnt lgkmcnt(0)")
        for jj in range(14):
            c="0" if jj==0 else f"v[{dst}:{dst+3}]"
            A(f"v_mfma_f32_16x16x32_bf16 v[{dst}:{dst+3}], v[{XF+4*jj}:{XF+4*jj+3}], v[{WF+4*jj}:{WF+4*jj+3}], {c}")
        nop(8)
    A("s_waitcnt vmcnt(0)")
    gemv16(T)
    A(f"s_mul_i32 s{sTAG}, s{sE}, 0x9E3779B1\ns_add_u32 s{sTAG}, s{sTAG}, 0x7F4A7C15")
    A(f"s_add_u32 s{sFF}, s{sE}, 1\ns_and_b32 s{sFF}, s{sFF}, 0xff\nv_mov_b32 v{vT8}, s{sFF}\ns_mov_b32 s{sFF}, 0xff")
    A(f"v_mov_b32_dpp v{T+1}, v{T} quad_perm:[1,1,3,3] {DPP}")
    A(f"v_lshlrev_b32 v{T+2}, 3, v7\nv_cvt_pk_bf16_f32 v{T+4}, v{T}, v{T+1}\nv_mov_b32 v{T+5}, s{sTAG}")
    A(f"s_lshl_b32 s{sO2}, s{sCQ}, 6\ns_add_u32 s{sO2}, s{sO2}, {QBOX}")
    A("s_mov_b64 exec, 0x5555")
    A(f"buffer_store_dwordx2 v[{T+4}:{T+5}], v{T+2}, s[{SRDW}:{SRDW+3}], s{sO2} offen sc1")
    A("s_mov_b64 exec, -1")
    stamp(2)
    def poll(loads, soff, mode, sleep):
        PM=84 if not cfg.stamps else 4
        PM=4
        lp=lab("poll"); ld=lab("polld")
        for i,(d,vo,imm,lm) in enumerate(loads):
            if lm is None: A(f"s_mov_b64 s[{PM+2*i}:{PM+2*i+1}], -1")
            else: A(f"s_mov_b32 s{PM+2*i}, {lm&0xffffffff:#x}\ns_mov_b32 s{PM+2*i+1}, {lm>>32:#x}")
        A(f"s_mov_b32 s{sSPIN}, 0")
        A(f"{lp}:")
        for i,(d,vo,imm,lm) in enumerate(loads):
            sk=lab("sk")
            A(f"s_mov_b64 exec, s[{PM+2*i}:{PM+2*i+1}]\ns_cbranch_execz {sk}")
            A(f"buffer_load_dwordx4 v[{d}:{d+3}], v{vo}, s[{SRDW}:{SRDW+3}], s{soff} offen offset:{imm} sc1")
            A(f"{sk}:")
        A(f"s_mov_b64 exec, -1\ns_add_u32 s{sSPIN}, s{sSPIN}, 1\ns_waitcnt vmcnt(0)")
        for i,(d,vo,imm,lm) in enumerate(loads):
            if mode=='q':
                A(f"v_xor_b32 v{T+i}, s{sTAG}, v{d+1}\nv_xor_b32 v{T+4+i}, s{sTAG}, v{d+3}\nv_or_b32 v{T+i}, v{T+i}, v{T+4+i}")
            else:
                tt=0
                for idx in range(8):
                    a_=(idx>>2)&1; b_=(idx>>1)&1; t_=idx&1
                    if (a_^t_)|(b_^t_): tt|=1<<idx
                A(f"v_bitop3_b32 v{T+i}, v{d}, v{d+1}, v{vT8} bitop3:{tt:#x}\nv_bitop3_b32 v{T+4+i}, v{d+2}, v{d+3}, v{vT8} bitop3:{tt:#x}")
                tt2=0
                for idx in range(8):
                    a_=(idx>>2)&1; b_=(idx>>1)&1; c_=idx&1
                    if (a_|b_)&c_: tt2|=1<<idx
                A(f"v_bitop3_b32 v{T+i}, v{T+i}, v{T+4+i}, s{sFF} bitop3:{tt2:#x}")
        for i,(d,vo,imm,lm) in enumerate(loads):
            A(f"v_cmp_ne_u32 vcc, 0, v{T+i}\ns_and_b64 s[{PM+2*i}:{PM+2*i+1}], s[{PM+2*i}:{PM+2*i+1}], vcc")
        A(f"s_or_b64 s[12:13], s[{PM}:{PM+1}], s[{PM+2}:{PM+3}]")
        for i in range(2,len(loads)): A(f"s_or_b64 s[12:13], s[12:13], s[{PM+2*i}:{PM+2*i+1}]")
        A(f"s_cbranch_scc0 {ld}")
        if sleep: A(f"s_sleep {sleep}")
        A(f"s_cmp_lt_u32 s{sSPIN}, {SPIN_LIMIT}\ns_cbranch_scc1 {lp}")
        A(f"{ld}:")
    A(f"s_lshr_b32 s{sO2}, s2, 5\ns_lshl_b32 s{sO2}, s{sO2}, 11\ns_add_u32 s{sO2}, s{sO2}, {QBOX}")
    poll([(F,vL16,0,None),(F+4,vL16,1024,None)], sO2, 'q', cfg.qsleep)
    A(f"v_lshlrev_b32 v{T}, 3, v2\nv_add_u32 v{T}, {QB}, v{T}")
    A(f"ds_write2_b32 v{T}, v{F}, v{F+2} offset0:0 offset1:1\nds_write2_b32 v{T}, v{F+4}, v{F+6} offset0:128 offset1:129")
    A("s_waitcnt lgkmcnt(0)\ns_barrier")
    stamp(3)
    def rows16_load(sr, soff):
        for r in range(16):
            if r and r%4==0: A(f"s_add_u32 s{soff}, s{soff}, {4*896}")
            elif cfg.rgap: nop(1)
            A(f"buffer_load_dwordx4 v[{RAW+4*r}:{RAW+4*r+3}], v{vL16}, s[{sr}:{sr+3}], s{soff} offen offset:{(r%4)*896} {cfg.wnt}")
    def rows16_perm(pairs):
        A("s_mov_b32 s76, 0x05040100\ns_mov_b32 s77, 0x07060302")
        for p,(a,b) in enumerate(pairs):
            for c in range(8):
                sel = 76 if c%2==0 else 77
                A(f"v_perm_b32 v{PW+p*8+c}, v{RAW+4*b+c//2}, v{RAW+4*a+c//2}, s{sel}")
    def proj16():
        for p in range(8):
            for c in range(8):
                cc = "0" if p==0 else f"v{PO+c}"
                A(f"v_dot2_f32_bf16 v{PO+c}, v{PW+p*8+c}, s{sPAIR+p}, {cc}")
        nop(3)
        for c in range(8): A(f"v_bfi_b32 v{PO+c}, s{sFF}, v{vT8}, v{PO+c}")
    def proj_store(soff):
        A(f"v_lshlrev_b32 v{T}, 14, v2\nv_add_u32 v{T+1}, 0x2000, v{T}")
        A("s_mov_b64 exec, s[74:75]")
        A(f"buffer_store_dwordx4 v[{PO}:{PO+3}], v{T}, s[{SRDW}:{SRDW+3}], s{soff} offen sc1\nbuffer_store_dwordx4 v[{PO+4}:{PO+7}], v{T+1}, s[{SRDW}:{SRDW+3}], s{soff} offen sc1")
        A("s_mov_b64 exec, -1")
    lnm=lab("nomlp")
    A(f"s_cmp_ge_u32 s2, {0 if cfg.nomlp else 112}\ns_cbranch_scc1 {lnm}")
    A(f"s_and_b32 s{sCM}, s2, 7\ns_mul_i32 s{sCM}, s{sCM}, 14\ns_lshr_b32 s{sO2}, s2, 3\ns_add_u32 s{sCM}, s{sCM}, s{sO2}")
    A(f"v_mul_u32_u24 v{vWO_}, 3584, v7\nv_and_b32 v{T}, 1, v2\nv_lshl_add_u32 v{vWO_}, v{T}, 4, v{vWO_}")
    srd(SRDK,sW1,448*1792*2)
    A(f"s_lshl_b32 s{sO2}, s{sCM}, 5")
    if not cfg.now1: wdma(SRDK,3584)
    srd(SRDA,sB1,3584)
    A(f"v_and_b32 v{T}, 15, v2\nv_lshlrev_b32 v{T}, 1, v{T}\ns_lshl_b32 s{sO2}, s{sCM}, 5")
    A(f"buffer_load_ushort v{T+8}, v{T}, s[{SRDA}:{SRDA+3}], s{sO2} offen")
    A("s_waitcnt vmcnt(0)")
    gemv16(T)
    srd(SRDK,sW2,1792*448*2)
    A(f"s_mul_i32 s{sO2}, s{sCM}, {16*896}")
    if not cfg.now2: rows16_load(SRDK,sO2)
    rbf(T,T)
    A(f"v_lshlrev_b32 v{T+8}, 16, v{T+8}\nv_add_f32 v{T}, v{T}, v{T+8}"); rbf(T,T)
    k0=math.sqrt(2/math.pi)
    A(f"v_mul_f32 v{T+1}, v{T}, v{T}\nv_mul_f32 v{T+1}, v{T+1}, v{T}\nv_mov_b32 v{T+2}, {f2u(0.044715):#x}\nv_fma_f32 v{T+1}, v{T+1}, v{T+2}, v{T}")
    A(f"v_mul_f32 v{T+1}, {f2u(-2*k0*math.log2(math.e)):#x}, v{T+1}\nv_exp_f32 v{T+1}, v{T+1}"); nop(1)
    A(f"v_add_f32 v{T+1}, 1.0, v{T+1}\nv_rcp_f32 v{T+1}, v{T+1}"); nop(1)
    A(f"v_mul_f32 v{T}, v{T}, v{T+1}"); nop(2)
    A(f"v_mov_b32_dpp v{T+1}, v{T} quad_perm:[1,1,3,3] {DPP}\nv_cvt_pk_bf16_f32 v{T}, v{T}, v{T+1}"); nop(1)
    for p in range(8): A(f"v_readlane_b32 s{sPAIR+p}, v{T}, {2*p}")
    A("s_waitcnt vmcnt(0)")
    rows16_perm([(2*p,2*p+1) for p in range(8)])
    proj16()
    stamp('mlpdone')
    A(f"s_lshl_b32 s{sO2}, s{sCM}, 4\ns_add_u32 s{sO2}, s{sO2}, {INBOX2+4096}")
    if cfg.mpc:
        A(f"s_lshl_b32 s{sO2}, s{sCM}, 11\ns_add_u32 s{sO2}, s{sO2}, {INBOX2}\nv_lshlrev_b32 v{T}, 4, v2")
        A(f"buffer_store_dwordx4 v[{PO}:{PO+3}], v{T}, s[{SRDW}:{SRDW+3}], s{sO2} offen sc1\ns_nop 0\nbuffer_store_dwordx4 v[{PO+4}:{PO+7}], v{T}, s[{SRDW}:{SRDW+3}], s{sO2} offen offset:1024 sc1")
    elif not cfg.nomp: proj_store(sO2)
    A(f"{lnm}:")
    srd(SRDK,sWO,4096*448*2)
    A(f"s_mul_i32 s{sO2}, s2, {16*896}")
    if not cfg.nowo: rows16_load(SRDK,sO2)
    A("s_waitcnt vmcnt(0)")
    pairs=[(rho,4+rho) for rho in range(4)]+[(8+rho,12+rho) for rho in range(4)]
    rows16_perm(pairs)
    stamp('wodone')
    A("s_barrier")
    stamp(4)
    A(f"s_mov_b32 s{sCM}, {f2u(0.0625*math.log2(math.e)):#x}")
    A(f"v_and_b32 v{T}, 1, v2\nv_lshlrev_b32 v{T+1}, 4, v{T}\nv_add_u32 v{T+1}, {MX}, v{T+1}\nv_lshlrev_b32 v{T+2}, 5, v2\nv_add_u32 v{T+2}, {SC}, v{T+2}")
    A(f"ds_read_b128 v[{F}:{F+3}], v{T+1}")
    for w in range(4):
        A(f"ds_read_b128 v[{XF+8*w}:{XF+8*w+3}], v{T+2} offset:{w*2048}\nds_read_b128 v[{XF+8*w+4}:{XF+8*w+7}], v{T+2} offset:{w*2048+16}")
    A("s_waitcnt lgkmcnt(0)")
    A(f"v_max_f32 v{F}, v{F}, v{F+1}\nv_max3_f32 v{F}, v{F}, v{F+2}, v{F+3}\nv_mul_f32 v{F+4}, s{sCM}, v{F}\nv_sub_f32 v{F+4}, 0, v{F+4}")
    A(f"v_mov_b32 v{F+1}, 0\nv_mov_b32 v{F+5}, 0")
    for r in range(32):
        A(f"v_lshlrev_b32 v{T+3}, 16, v{XF+r}\nv_and_b32 v{T+4}, 0xffff0000, v{XF+r}")
        A(f"v_fma_f32 v{T+3}, v{T+3}, s{sCM}, v{F+4}\nv_fma_f32 v{T+4}, v{T+4}, s{sCM}, v{F+4}")
        A(f"v_exp_f32 v{T+3}, v{T+3}\nv_exp_f32 v{T+4}, v{T+4}"); nop(1)
        A(f"v_add_f32 v{F+1}, v{F+1}, v{T+3}\nv_add_f32 v{F+5}, v{F+5}, v{T+4}")
    A(f"v_add_f32 v{F+1}, v{F+1}, v{F+5}")
    rowred("v_add_f32",F+1,[2,4,8]); xrowred("v_add_f32",F+1,T+3)
    A(f"v_bfi_b32 v{F}, s{sFF}, v{vT8}, v{F}\nv_bfi_b32 v{F+1}, s{sFF}, v{vT8}, v{F+1}\nv_mov_b32 v{F+2}, v{F}\nv_mov_b32 v{F+3}, v{F+1}")
    A(f"v_lshl_add_u32 v{T}, v{T}, 4, v7\nv_lshlrev_b32 v{T}, 12, v{T}")
    A(f"s_lshr_b32 s{sO2}, s2, 5\ns_lshl_b32 s{sO2}, s{sO2}, 17\ns_and_b32 s{sSPIN}, s2, 31\ns_lshl_b32 s{sSPIN}, s{sSPIN}, 4\ns_add_u32 s{sO2}, s{sO2}, s{sSPIN}\ns_add_u32 s{sO2}, s{sO2}, {INBOX1+2048}")
    A("s_mov_b32 exec_hi, 0")
    if not cfg.noml: A(f"buffer_store_dwordx4 v[{F}:{F+3}], v{T}, s[{SRDW}:{SRDW+3}], s{sO2} offen sc1")
    A("s_mov_b32 exec_hi, -1"); nop(2)
    lnf=lab("nofin")
    A(f"s_cmp_ge_u32 s2, {0 if (cfg.nomlp or cfg.nomp) else 112}\ns_cbranch_scc1 {lnf}")
    A(f"v_lshrrev_b32 v{T}, 4, v2\nv_lshlrev_b32 v{T}, 1, v{T}\ns_lshl_b32 s{sO2}, s2, 3")
    srd(SRDA,sX,896)
    A(f"buffer_load_ushort v{vFX}, v{T}, s[{SRDA}:{SRDA+3}], s{sO2} offen")
    srd(SRDK,sB2,896)
    A(f"buffer_load_ushort v{vFM}, v{T}, s[{SRDK}:{SRDK+3}], s{sO2} offen")
    A(f"s_lshl_b32 s{sO2}, s2, 13\ns_add_u32 s{sO2}, s{sO2}, {INBOX2+4096}\ns_mov_b32 s{sSPIN}, 0")
    for r in range(4): A(f"v_mov_b32 v{F+4+r}, 0")
    poll([(F,vL16,0,None),(F+4,vL16,1024,(1<<48)-1)], sO2, 't', 16)
    for r in range(4): A(f"v_add_f32 v{F+r}, v{F+r}, v{F+4+r}")
    tred4(F); rowred("v_add_f32",F,[1,2,4,8])
    rbf(F,F)
    A(f"v_lshlrev_b32 v{vFM}, 16, v{vFM}\nv_lshlrev_b32 v{vFX}, 16, v{vFX}\nv_add_f32 v{vFM}, v{vFM}, v{F}"); rbf(vFM,vFM)
    A(f"{lnf}:")
    I1=XF
    vWA=228; vWB=229
    A(f"s_lshl_b32 s{sO2}, s2, 12\ns_add_u32 s{sO2}, s{sO2}, {INBOX1}")
    A(f"v_lshrrev_b32 v{vWO_}, 2, v2\nv_lshlrev_b32 v{vWO_}, 4, v{vWO_}")
    if not cfg.noml: poll([(I1,vWO_,2048,None),(I1+4,vWO_,2048+256,None)], sO2, 't', 32)
    A(f"v_and_b32 v{I1}, 0xffff0000, v{I1}\nv_and_b32 v{I1+4}, 0xffff0000, v{I1+4}")
    A(f"v_max_f32 v{T}, v{I1}, v{I1+4}")
    rowred("v_max_f32",T,[4,8]); xrowred("v_max_f32",T,T+1)
    A(f"v_sub_f32 v{T+1}, v{I1}, v{T}\nv_sub_f32 v{T+2}, v{I1+4}, v{T}\nv_mul_f32 v{T+1}, s{sCM}, v{T+1}\nv_mul_f32 v{T+2}, s{sCM}, v{T+2}")
    A(f"v_exp_f32 v{T+1}, v{T+1}\nv_exp_f32 v{T+2}, v{T+2}"); nop(1)
    A(f"v_mul_f32 v{T}, v{T+1}, v{I1+1}\nv_fmac_f32 v{T}, v{T+2}, v{I1+5}")
    rowred("v_add_f32",T,[4,8]); xrowred("v_add_f32",T,T+3)
    A(f"v_rcp_f32 v{T+3}, v{T}"); nop(1)
    A(f"v_fma_f32 v{T+4}, -v{T}, v{T+3}, 1.0\nv_fma_f32 v{T+3}, v{T+4}, v{T+3}, v{T+3}")
    A(f"v_mul_f32 v{vWA}, v{T+1}, v{T+3}\nv_mul_f32 v{vWB}, v{T+2}, v{T+3}")
    A("s_barrier")
    stamp(5)
    if cfg.notail: A(f"s_branch {lend}")
    poll([(I1,vL16,0,None),(I1+4,vL16,1024,None)], sO2, 't', cfg.sleep1)
    stamp(6)
    for r in range(4): A(f"v_mul_f32 v{I1+r}, v{I1+r}, v{vWA}")
    for r in range(4): A(f"v_fmac_f32 v{I1+r}, v{I1+4+r}, v{vWB}")
    tred4(I1); rowred("v_add_f32",I1,[4,8])
    A(f"v_mov_b32 v{T+2}, v{I1}"); nop(2)
    A(f"v_mov_b32_dpp v{T+3}, v{T+2} quad_perm:[1,1,3,3] {DPP}\nv_cvt_pk_bf16_f32 v{T+2}, v{T+2}, v{T+3}"); nop(1)
    for p in range(8): A(f"v_readlane_b32 s{sPAIR+p}, v{T+2}, {(p&3)*16+(p>>2)*2}")
    A(f"s_lshl_b32 s{sO2}, s2, 4\ns_add_u32 s{sO2}, s{sO2}, {INBOX2}")
    proj16()
    proj_store(sO2)
    A(f"s_cmp_ge_u32 s2, 112\ns_cbranch_scc1 {lend}")
    A(f"s_lshl_b32 s{sO2}, s2, 13\ns_add_u32 s{sO2}, s{sO2}, {INBOX2}\ns_mov_b32 s{sSPIN}, 0")
    srd(SRDA,sOUT,896)
    poll([(I1+4*k,vL16,k*1024,None) for k in range(4)], sO2, 't', cfg.sleep2)
    for r in range(4):
        A(f"v_add_f32 v{I1+r}, v{I1+r}, v{I1+4+r}\nv_add_f32 v{I1+8+r}, v{I1+8+r}, v{I1+12+r}")
    for r in range(4): A(f"v_add_f32 v{I1+r}, v{I1+r}, v{I1+8+r}")
    tred4(I1); rowred("v_add_f32",I1,[1,2,4,8])
    rbf(I1,I1)
    A(f"v_add_f32 v{I1}, v{vFX}, v{I1}"); rbf(I1,I1)
    A(f"v_add_f32 v{I1}, v{I1}, v{vFM}\nv_cvt_pk_bf16_f32 v{I1}, v{I1}, v{I1}")
    A(f"v_lshrrev_b32 v{T}, 4, v2\nv_lshlrev_b32 v{T}, 1, v{T}\ns_lshl_b32 s{sO2}, s2, 3")
    A("s_mov_b32 exec_lo, 0x00010001\ns_mov_b32 exec_hi, 0x00010001")
    A(f"buffer_store_short v{I1}, v{T}, s[{SRDA}:{SRDA+3}], s{sO2} offen")
    A(f"s_cmp_lg_u32 s2, 0\ns_cbranch_scc1 {lend}")
    A(f"s_mov_b64 exec, 1\ns_add_u32 s{sE}, s{sE}, 1\nv_mov_b32 v{T+1}, s{sE}\nv_mov_b32 v{T+2}, 0")
    A(f"buffer_store_dword v{T+1}, v{T+2}, s[{SRDW}:{SRDW+3}], 0 offen sc1")
    A(f"{lend}:")
    if cfg.stamps:
        A("s_mov_b64 exec, 1\ns_waitcnt vmcnt(0)")
        stamp(1)
        A("s_getreg_b32 s94, hwreg(HW_REG_XCC_ID)\ns_mov_b32 s95, 0\ns_waitcnt lgkmcnt(0)")
        A(f"s_lshl_b32 s{sO2}, s2, 6\ns_add_u32 s{sO2}, s{sO2}, {STAMP:#x}\nv_mov_b32 v{T}, 0")
        for k in range(8):
            A(f"v_mov_b32 v{F}, s{80+2*k}\nv_mov_b32 v{F+1}, s{81+2*k}\nbuffer_store_dwordx2 v[{F}:{F+1}], v{T}, s[{SRDW}:{SRDW+3}], s{sO2} offen offset:{8*k}\ns_nop 1")
    A(f"{Ldone}:")
    A("s_endpgm")
    body="\n".join(L)+"\n"
    kd=f""".section .rodata,"a"
.p2align 6
.amdhsa_kernel {N}
  .amdhsa_next_free_vgpr 232
  .amdhsa_next_free_sgpr 96
  .amdhsa_accum_offset 232
  .amdhsa_group_segment_fixed_size 0
  .amdhsa_kernarg_size 104
  .amdhsa_user_sgpr_count 2
  .amdhsa_user_sgpr_kernarg_segment_ptr 1
  .amdhsa_system_sgpr_workgroup_id_x 1
  .amdhsa_float_denorm_mode_32 3
.end_amdhsa_kernel
"""
    return body, kd

def header():
    ref=open('parallel_sum__gqa_block_cached__dense_activation_gelu__decode.s.ref').read().split("\n")
    out=[]
    for l in ref:
        if l.startswith("; @launch"):
            out.append(f"; @launch grid=(256,1,1) block=(320,1,1) lds={LDS_END}")
            break
        out.append(l)
    return "\n".join(out)+"\n"

def final(cfg, path):
    body,kd=gen(cfg)
    s=header()+'.amdgcn_target "amdgcn-amd-amdhsa--gfx950"\n.text\n'+body+kd
    open(path,"w").write(s)

def bench(cfgs, path):
    sys.path.insert(0,'bench')
    from genstream import meta
    s='.amdgcn_target "amdgcn-amd-amdhsa--gfx950"\n'
    ks=[]; args=[]
    for c in cfgs:
        body,kd=gen(c)
        s+=".text\n"+body+kd.replace("kernarg_size 104","kernarg_size 112")
        ks.append((c.name,232,320)); args.append(f"{c.name} 256 320 {LDS_END}")
    s+=meta(ks)
    open(path+".s","w").write(s); open(path+".args","w").write(" @ ".join(args))

def mk(name, **kw):
    c=Cfg(); c.name=name
    for k,v in kw.items(): setattr(c,k,v)
    return c

if __name__=="__main__":
    if sys.argv[1]=="final":
        kw=eval(sys.argv[3]) if len(sys.argv)>3 else {}
        final(mk(KNAME,**kw), sys.argv[2])
    else:
        specs=eval(sys.argv[3])
        bench([mk(n,**kw) for n,kw in specs], sys.argv[2])
```

```python
import sys, struct, math

KNAME = "parallel_sum__gqa_block_cached__dense_activation_gelu__decode_kernel"
def f2u(f): return struct.unpack('<I', struct.pack('<f', f))[0]

class Cfg:
    name = KNAME
    rot = 5
    pace = 4
    infl = 16
    stamps = False
    smap = {}
    wnt = "nt"
    qsleep = 0
    sleep1 = 2
    sleep2 = 1
    mlsleep = 32
    fc = 56
    nomlp = False
    notail = False
    auxnull = False
    nowo = False

RING=0; SC=131072; WBUF=SC+8192; XN=WBUF+14336; QB=XN+1024; MX=QB+1024; FB=MX+64; LDS_END=FB+64
QBOX=0x1000; MLBOX=0x8000; OBOX=0x10000; PBOX=0x100000; STAMP=0x20000000
SPIN_LIMIT = 1<<16
CEXP = 0.0625*math.log2(math.e)

def tt(f):
    r=0
    for idx in range(8):
        if f((idx>>2)&1,(idx>>1)&1,idx&1): r|=1<<idx
    return r

def gen(cfg):
    L=[]
    def A(s):
        for line in s.split("\n"):
            t=line.strip()
            L.append(t if t.endswith(":") else "    "+t)
    N=cfg.name
    pre = "L" if N==KNAME else f"L_{N}"
    uid=[0]
    def lab(p):
        uid[0]+=1; return f"{pre}_{p}{uid[0]}"
    def nop(n):
        if n>0: A(f"s_nop {n-1}")
    sX,sK,sV,sWQ,sWO,sW1,sB1=16,18,20,22,24,28,30
    sW2,sB2,sOUT,sDBG,sWS=32,34,36,38,40
    SRDK,SRDV,SRDA,SRDW=44,48,52,56
    sWAVE=3
    def srd(d, p, size):
        A(f"s_mov_b32 s{d}, s{p}\ns_mov_b32 s{d+1}, s{p+1}\ns_mov_b32 s{d+2}, {size:#x}\ns_mov_b32 s{d+3}, 0x20000")
    def stamp(k):
        if cfg.stamps:
            if isinstance(k,str):
                if k not in cfg.smap: return
                k=cfg.smap[k]
            elif k in cfg.smap.values(): return
            A(f"s_memrealtime s[{80+2*k}:{81+2*k}]")
    DPP="row_mask:0xf bank_mask:0xf"
    def rowred(op, v, rors):
        for r in rors:
            nop(2); A(f"{op}_dpp v{v}, v{v}, v{v} row_ror:{r} {DPP}")
    def xrowred(op, v, t):
        A(f"v_mov_b32 v{t}, v{v}"); nop(2); A(f"v_permlane16_swap_b32 v{v}, v{t}"); A(f"{op} v{v}, v{v}, v{t}")
        A(f"v_mov_b32 v{t}, v{v}"); nop(2); A(f"v_permlane32_swap_b32 v{v}, v{t}"); A(f"{op} v{v}, v{v}, v{t}")
    def tred4(a):
        nop(2)
        A(f"v_permlane32_swap_b32 v{a}, v{a+2}\nv_permlane32_swap_b32 v{a+1}, v{a+3}")
        A(f"v_add_f32 v{a}, v{a}, v{a+2}\nv_add_f32 v{a+1}, v{a+1}, v{a+3}")
        nop(2)
        A(f"v_permlane16_swap_b32 v{a}, v{a+1}")
        A(f"v_add_f32 v{a}, v{a}, v{a+1}")
    def rbf(d, s):
        A(f"v_cvt_pk_bf16_f32 v{d}, v{s}, v{s}\nv_and_b32 v{d}, 0xffff0000, v{d}")
    def masks(dst, n, t0, t1):
        A(f"v_and_b32 v{t0}, 1, v{n}\nv_lshlrev_b32 v{t0}, 4, v{t0}\nv_mov_b32 v{t1}, 0xffff\nv_lshlrev_b32 v{t1}, v{t0}, v{t1}\nv_bfe_u32 v{t0}, v{n}, 1, 2")
        for r in range(4):
            A(f"v_cmp_eq_u32 vcc, {r}, v{t0}"); nop(2); A(f"v_cndmask_b32 v{dst+r}, 0, v{t1}, vcc")

    Ldone=f"{pre}_done"; Laux=f"{pre}_aux"
    A(f".globl {N}\n.p2align 8\n.type {N},@function\n{N}:")
    A(f"s_cmp_ge_u32 s2, 256\ns_cbranch_scc1 {Ldone}")
    A("s_load_dwordx16 s[16:31], s[0:1], 0\ns_load_dwordx8 s[32:39], s[0:1], 64\ns_load_dwordx2 s[40:41], s[0:1], 96")
    stamp(0)
    A("v_lshrrev_b32 v1, 6, v0\nv_and_b32 v2, 63, v0")
    nop(1)
    A(f"v_readfirstlane_b32 s{sWAVE}, v1")
    A(f"s_cmp_eq_u32 s{sWAVE}, 4\ns_cbranch_scc1 {Laux}")

    vKO=8; vVO=16; vKA=18; vVA=22; vSA=23; vMASK=24; vMAX=28; vTG=29; vNM=30; vT=31
    QF=40; TF=72; D=104; S2=108; P=110; AR=116; ACC=132
    sRING,sREG,sNEXT,sOFF,sCNT,sC,sT8,sFF=60,61,62,63,64,65,66,67
    A("v_lshrrev_b32 v3, 5, v2\nv_and_b32 v4, 31, v2\nv_lshlrev_b32 v5, 2, v3\nv_xor_b32 v4, v4, v5\nv_lshlrev_b32 v4, 4, v4\nv_lshl_add_u32 v4, v3, 9, v4")
    for j in range(8):
        c=(8*(j&1)+(j>>1))*16 | (4096 if j>=4 else 0)
        A(f"v_xor_b32 v{vKO+j}, {c:#x}, v4")
    A(f"s_lshl_b32 s{sRING}, s{sWAVE}, 15\ns_lshl_b32 s{sREG}, s2, 20")
    A(f"s_mul_i32 s{sNEXT}, s2, {cfg.rot*32768}\ns_lshl_b32 s{sOFF}, s{sWAVE}, 13\ns_add_u32 s{sNEXT}, s{sNEXT}, s{sOFF}\ns_and_b32 s{sNEXT}, s{sNEXT}, 0xfffff")
    A("s_waitcnt lgkmcnt(0)")
    srd(SRDK,sK,1<<28)
    def issue_half(slot, isK, half):
        if half==0: A(f"s_or_b32 s{sOFF}, s{sREG}, s{sNEXT}")
        A(f"s_add_u32 m0, s{sRING}, {slot*8192+half*4096}")
        if half==0: A(f"s_add_u32 s{sNEXT}, s{sNEXT}, 32768")
        else: A(f"s_and_b32 s{sNEXT}, s{sNEXT}, 0xfffff")
        for jj in range(4):
            j=half*4+jj
            vo = vKO+j if isK else vVO+half
            sr = SRDK if isK else SRDV
            if jj: A(f"s_add_u32 m0, s{sRING}, {slot*8192+half*4096}\ns_nop 0")
            A(f"buffer_load_dwordx4 v{vo}, s[{sr}:{sr+3}], s{sOFF} offen offset:{jj*1024} nt lds")
    def gissue(slot,isK):
        for half in range(2):
            if cfg.infl<32: A(f"s_waitcnt vmcnt({cfg.infl-4})")
            issue_half(slot,isK,half)
    issue_half(0,True,0); issue_half(0,True,1)
    srd(SRDV,sV,1<<28)
    A(f"s_load_dword s{sT8}, s[{sWS}:{sWS+1}], 0")
    A(f"v_lshlrev_b32 v{vVO}, 4, v2\nv_add_u32 v{vVO+1}, 0x1000, v{vVO}")
    A("v_lshrrev_b32 v3, 4, v2\nv_and_b32 v4, 15, v2")
    A("v_and_b32 v5, 3, v4\nv_lshlrev_b32 v5, 2, v5\nv_lshrrev_b32 v6, 2, v4\nv_add_u32 v5, v5, v6")
    A(f"v_xor_b32 v6, v3, v4\nv_lshlrev_b32 v6, 4, v6\nv_lshl_add_u32 v6, v5, 9, v6\nv_add_u32 v6, s{sRING}, v6")
    for q in range(4): A(f"v_xor_b32 v{vKA+q}, {q*64}, v6")
    A(f"v_lshlrev_b32 v6, 4, v4\nv_lshl_add_u32 v6, v3, 9, v6\nv_add_u32 v{vVA}, s{sRING}, v6")
    A(f"s_lshl_b32 s{sCNT}, s{sWAVE}, 11\ns_add_u32 s{sCNT}, s{sCNT}, {SC}")
    A(f"v_lshrrev_b32 v5, 3, v4\nv_lshlrev_b32 v6, 5, v5\nv_lshl_add_u32 v6, v3, 3, v6\nv_add_u32 v{vSA}, s{sCNT}, v6")
    A(f"v_lshlrev_b32 v7, 9, v5\nv_lshl_add_u32 v7, v3, 4, v7\nv_add_u32 v7, {QB}, v7")
    masks(vMASK,4,5,6)
    A(f"v_mov_b32 v{vMAX}, 0xff800000")
    for r in range(8): A(f"v_mov_b32 v{ACC+r}, 0")
    for slot in range(1,4):
        for half in range(2):
            if cfg.pace is not None: A(f"s_waitcnt vmcnt({cfg.pace})")
            issue_half(slot,True,half)
    A(f"s_waitcnt lgkmcnt(0)\ns_add_u32 s{sT8}, s{sT8}, 1\ns_and_b32 s{sT8}, s{sT8}, 0xff\ns_mov_b32 s{sFF}, 0xff\nv_mov_b32 v{vTG}, s{sT8}")
    A("s_barrier")
    for jj in range(8): A(f"ds_read_b128 v[{QF+4*jj}:{QF+4*jj+3}], v7 offset:{jj*64}")

    def ktile(slot, nextK):
        A("s_waitcnt vmcnt(24)")
        for jj in range(8):
            A(f"ds_read_b128 v[{TF+4*jj}:{TF+4*jj+3}], v{vKA+(jj&3)} offset:{slot*8192+(jj>>2)*256}")
        A("s_waitcnt lgkmcnt(0)")
        for jj in range(8):
            c = "0" if jj==0 else f"v[{D}:{D+3}]"
            A(f"v_mfma_f32_16x16x32_bf16 v[{D}:{D+3}], v[{TF+4*jj}:{TF+4*jj+3}], v[{QF+4*jj}:{QF+4*jj+3}], {c}")
        nop(8)
        A(f"v_cvt_pk_bf16_f32 v{S2}, v{D}, v{D+1}\nv_cvt_pk_bf16_f32 v{S2+1}, v{D+2}, v{D+3}")
        A(f"v_max3_f32 v{vMAX}, v{vMAX}, v{D}, v{D+1}\nv_max3_f32 v{vMAX}, v{vMAX}, v{D+2}, v{D+3}")
        A(f"ds_write_b64 v{vSA}, v[{S2}:{S2+1}] offset:{slot*64}")
        gissue(slot,nextK)
    def vtile(slot, issue_next, waitn):
        A(f"ds_read_b64 v[{S2}:{S2+1}], v{vSA} offset:{slot*64}")
        A("s_waitcnt lgkmcnt(0)")
        A(f"v_lshlrev_b32 v{P}, 16, v{S2}\nv_and_b32 v{P+1}, 0xffff0000, v{S2}\nv_lshlrev_b32 v{P+2}, 16, v{S2+1}\nv_and_b32 v{P+3}, 0xffff0000, v{S2+1}")
        for t in range(4): A(f"v_fma_f32 v{P+t}, v{P+t}, s{sC}, v{vNM}")
        for t in range(4): A(f"v_exp_f32 v{P+t}, v{P+t}")
        nop(1)
        for t in range(4): A(f"v_cvt_pk_bf16_f32 v{P+t}, v{P+t}, v{P+t}")
        for t in range(4):
            for r in range(4): A(f"v_and_b32 v{AR+4*t+r}, v{P+t}, v{vMASK+r}")
        A(f"s_waitcnt vmcnt({waitn})")
        for u in range(8):
            A(f"ds_read_b128 v[{TF+4*u}:{TF+4*u+3}], v{vVA} offset:{slot*8192+(u>>1)*2048+(u&1)*256}")
        for u in range(8):
            t=u>>1; h=u&1
            A(f"s_waitcnt lgkmcnt({7-u})")
            A(f"v_mfma_f32_16x16x32_bf16 v[{ACC+4*h}:{ACC+4*h+3}], v[{AR+4*t}:{AR+4*t+3}], v[{TF+4*u}:{TF+4*u+3}], v[{ACC+4*h}:{ACC+4*h+3}]")
        if issue_next: gissue(slot,False)

    lk=lab("kloop")
    A(f"s_mov_b32 s{sCNT}, 7")
    A(f"{lk}:")
    for s in range(4): ktile(s,True)
    A(f"v_add_u32 v{vSA}, 256, v{vSA}")
    A(f"s_sub_u32 s{sCNT}, s{sCNT}, 1\ns_cmp_lg_u32 s{sCNT}, 0\ns_cbranch_scc1 {lk}")
    for s in range(4): ktile(s,False)
    A(f"v_subrev_u32 v{vSA}, {7*256}, v{vSA}")
    xrowred("v_max_f32", vMAX, vT)
    rbf(vMAX,vMAX)
    A(f"v_bfe_u32 v3, v2, 3, 1\nv_lshlrev_b32 v3, 4, v3\nv_add_u32 v3, {MX}, v3")
    A(f"s_lshl_b32 s{sCNT}, s{sWAVE}, 2\nv_add_u32 v4, s{sCNT}, v3")
    A(f"ds_write_b32 v4, v{vMAX}\ns_waitcnt lgkmcnt(0)\ns_barrier")
    A(f"ds_read_b128 v[{D}:{D+3}], v3\ns_mov_b32 s{sC}, {f2u(CEXP):#x}\ns_waitcnt lgkmcnt(0)")
    A(f"v_max_f32 v{vMAX}, v{D}, v{D+1}\nv_max3_f32 v{vMAX}, v{vMAX}, v{D+2}, v{D+3}")
    A(f"v_mul_f32 v{vNM}, s{sC}, v{vMAX}\nv_sub_f32 v{vNM}, 0, v{vNM}")
    A("v_lshrrev_b32 v6, 5, v2\nv_lshlrev_b32 v6, 10, v6\nv_and_b32 v5, 15, v2\nv_lshl_add_u32 v6, v5, 5, v6\nv_bfe_u32 v5, v2, 4, 1\nv_lshl_add_u32 v6, v5, 4, v6")
    A(f"v_add_u32 v6, s{sRING}, v6")
    A(f"s_lshl_b32 s{sCNT}, s{sWAVE}, 9\nv_lshlrev_b32 v4, 3, v2\nv_add_u32 v4, s{sCNT}, v4\nv_add_u32 v5, 0x10000, v4")
    A(f"s_lshr_b32 s{sCNT}, s{sWAVE}, 1\ns_lshl_b32 s{sCNT}, s{sCNT}, 2\ns_add_u32 s{sCNT}, s{sCNT}, {FB}\nv_mov_b32 v3, s{sCNT}")
    srd(SRDW,sWS,1<<30)
    lv=lab("vloop")
    A(f"s_mov_b32 s{sCNT}, 7")
    A(f"{lv}:")
    for s in range(4): vtile(s,True,24)
    A(f"v_add_u32 v{vSA}, 256, v{vSA}")
    A(f"s_sub_u32 s{sCNT}, s{sCNT}, 1\ns_cmp_lg_u32 s{sCNT}, 0\ns_cbranch_scc1 {lv}")
    A(f"s_lshl_b32 s{sOFF}, s2, 11\ns_add_u32 s{sOFF}, s{sOFF}, {OBOX}")
    for s in range(4): vtile(s,False,24-8*s)
    nop(7)
    A(f"ds_write_b128 v6, v[{ACC}:{ACC+3}]\nds_write_b128 v6, v[{ACC+4}:{ACC+7}] offset:512")
    A("s_waitcnt lgkmcnt(0)\ns_barrier")
    A(f"ds_read_b64 v[{TF}:{TF+1}], v4\nds_read_b64 v[{TF+2}:{TF+3}], v4 offset:32768\nds_read_b64 v[{TF+4}:{TF+5}], v5\nds_read_b64 v[{TF+6}:{TF+7}], v5 offset:32768\nds_read_b32 v{TF+8}, v3")
    A("s_waitcnt lgkmcnt(3)")
    A(f"v_add_f32 v{TF}, v{TF}, v{TF+2}\nv_add_f32 v{TF+1}, v{TF+1}, v{TF+3}")
    A("s_waitcnt lgkmcnt(1)")
    A(f"v_add_f32 v{TF+4}, v{TF+4}, v{TF+6}\nv_add_f32 v{TF+5}, v{TF+5}, v{TF+7}\nv_add_f32 v{TF}, v{TF}, v{TF+4}\nv_add_f32 v{TF+1}, v{TF+1}, v{TF+5}")
    A("s_waitcnt lgkmcnt(0)")
    A(f"v_mul_f32 v{TF}, v{TF}, v{TF+8}\nv_mul_f32 v{TF+1}, v{TF+1}, v{TF+8}")
    A(f"v_bfi_b32 v{TF}, s{sFF}, v{vTG}, v{TF}\nv_bfi_b32 v{TF+1}, s{sFF}, v{vTG}, v{TF+1}")
    A(f"buffer_store_dwordx2 v[{TF}:{TF+1}], v4, s[{SRDW}:{SRDW+3}], s{sOFF} offen sc1")
    A("s_endpgm")

    vL16=3; vWO_=4; vTR=5; vXA=6
    X=8; F=12; T=20
    XF=32; WF=88
    WT=144
    PA=208
    AM=216
    vT8=220; vFX=221; vG1=222; vG2=223; vPS=224; vTO=225
    AT=88
    sE,sTAG,sCQ,sO2,sSPIN,sCM,sFF,sA,sB=60,61,62,63,64,65,78,66,67
    A(f"{Laux}:")
    lend=lab("end")
    if cfg.auxnull:
        A("s_waitcnt lgkmcnt(0)"); srd(SRDW,sWS,1<<30)
        A("s_barrier"); stamp(3); A("s_barrier"); stamp(4); A("s_barrier"); stamp(5); A(f"s_branch {lend}")
    A("s_setprio 3")
    A(f"v_lshrrev_b32 v7, 1, v2\nv_and_b32 v{T}, 1, v2\nv_lshlrev_b32 v{T}, 4, v{T}")
    A(f"v_lshl_add_u32 v{vWO_}, v7, 13, v{T}\nv_lshlrev_b32 v{vL16}, 4, v2")
    A(f"s_and_b32 s{sCQ}, s2, 7\ns_lshl_b32 s{sCQ}, s{sCQ}, 5\ns_lshr_b32 s{sO2}, s2, 3\ns_add_u32 s{sCQ}, s{sCQ}, s{sO2}\ns_lshl_b32 s{sO2}, s{sCQ}, 5")
    A("s_waitcnt lgkmcnt(0)")
    A(f"s_load_dword s{sE}, s[{sWS}:{sWS+1}], 0")
    srd(SRDA,sX,896)
    A(f"buffer_load_dwordx4 v[{X}:{X+3}], v{vL16}, s[{SRDA}:{SRDA+3}], 0 offen")
    srd(SRDK,sWQ,448*4096*2)
    def wdma(sr, step):
        for i in range(14):
            A(f"s_mov_b32 m0, {WBUF+i*1024}")
            if i: A(f"s_add_u32 s{sO2}, s{sO2}, {step}")
            else: nop(1)
            A(f"buffer_load_dwordx4 v{vWO_}, s[{sr}:{sr+3}], s{sO2} offen {cfg.wnt} lds")
    wdma(SRDK,32*8192)
    srd(SRDW,sWS,1<<30)
    A(f"v_lshrrev_b32 v{T}, 4, v2\nv_bfe_u32 v{T+1}, v2, 2, 2\nv_lshl_add_u32 v{T+1}, v{T}, 3, v{T+1}\nv_and_b32 v{T+2}, 3, v2\nv_lshlrev_b32 v{T+2}, 3, v{T+2}\nv_add_u32 v{T+2}, {WBUF}, v{T+2}")
    A(f"v_lshl_add_u32 v{vTR}, v{T+1}, 5, v{T+2}\nv_lshl_add_u32 v{vG1}, v{T+1}, 6, v{T+2}")
    A(f"v_lshlrev_b32 v{T}, 4, v{T}\nv_add_u32 v{vXA}, {XN}, v{T}")
    A("v_cmp_gt_u32 s[74:75], 56, v2")
    A("s_waitcnt vmcnt(14)")
    for r in range(4):
        A(f"v_lshlrev_b32 v{F+2*r}, 16, v{X+r}\nv_and_b32 v{F+2*r+1}, 0xffff0000, v{X+r}")
    A(f"v_add_f32 v{T}, v{F}, v{F+1}\nv_add_f32 v{T+1}, v{F+2}, v{F+3}\nv_add_f32 v{T+2}, v{F+4}, v{F+5}\nv_add_f32 v{T+3}, v{F+6}, v{F+7}")
    A(f"v_add_f32 v{T}, v{T}, v{T+1}\nv_add_f32 v{T+2}, v{T+2}, v{T+3}\nv_add_f32 v{T}, v{T}, v{T+2}")
    rowred("v_add_f32",T,[1,2,4,8]); xrowred("v_add_f32",T,T+1)
    A(f"v_mul_f32 v{T}, {f2u(1.0/448):#x}, v{T}")
    A(f"v_sub_f32 v{T+2}, v{F}, v{T}\nv_mul_f32 v{T+1}, v{T+2}, v{T+2}")
    for r in range(1,8):
        A(f"v_sub_f32 v{T+2}, v{F+r}, v{T}\nv_fmac_f32 v{T+1}, v{T+2}, v{T+2}")
    A(f"v_cndmask_b32 v{T+1}, 0, v{T+1}, s[74:75]")
    rowred("v_add_f32",T+1,[1,2,4,8]); xrowred("v_add_f32",T+1,T+2)
    A(f"v_mul_f32 v{T+1}, {f2u(1.0/448):#x}, v{T+1}")
    rbf(T,T); rbf(T+1,T+1)
    A(f"v_add_f32 v{T+1}, {f2u(1e-5):#x}, v{T+1}"); rbf(T+1,T+1)
    A(f"v_sqrt_f32 v{T+1}, v{T+1}"); nop(1); rbf(T+1,T+1)
    A(f"v_rcp_f32 v{T+2}, v{T+1}")
    for r in range(8): A(f"v_sub_f32 v{F+r}, v{F+r}, v{T}")
    for r in range(4): A(f"v_cvt_pk_bf16_f32 v{X+r}, v{F+2*r}, v{F+2*r+1}")
    for r in range(4): A(f"v_lshlrev_b32 v{F+2*r}, 16, v{X+r}\nv_and_b32 v{F+2*r+1}, 0xffff0000, v{X+r}")
    for r in range(8):
        A(f"v_mul_f32 v{T+3}, v{F+r}, v{T+2}\nv_fma_f32 v{T+4}, -v{T+3}, v{T+1}, v{F+r}\nv_fma_f32 v{F+r}, v{T+4}, v{T+2}, v{T+3}")
    for r in range(4): A(f"v_cvt_pk_bf16_f32 v{X+r}, v{F+2*r}, v{F+2*r+1}")
    A(f"v_add_u32 v{T}, {XN}, v{vL16}\nds_write_b128 v{T}, v[{X}:{X+3}]\ns_waitcnt lgkmcnt(0)")
    for jj in range(14): A(f"ds_read_b128 v[{XF+4*jj}:{XF+4*jj+3}], v{vXA} offset:{jj*64}")
    A("s_waitcnt vmcnt(0)")
    for jj in range(14):
        A(f"ds_read_b64_tr_b16 v[{WF+4*jj}:{WF+4*jj+1}], v{vTR} offset:{jj*1024}\nds_read_b64_tr_b16 v[{WF+4*jj+2}:{WF+4*jj+3}], v{vTR} offset:{jj*1024+128}")
    A(f"s_waitcnt lgkmcnt(0)")
    for jj in range(14):
        c="0" if jj==0 else f"v[{T}:{T+3}]"
        A(f"v_mfma_f32_16x16x32_bf16 v[{T}:{T+3}], v[{XF+4*jj}:{XF+4*jj+3}], v[{WF+4*jj}:{WF+4*jj+3}], {c}")
    A(f"s_mul_i32 s{sTAG}, s{sE}, 0x9E3779B1\ns_add_u32 s{sTAG}, s{sTAG}, 0x7F4A7C15")
    A(f"s_add_u32 s{sFF}, s{sE}, 1\ns_and_b32 s{sFF}, s{sFF}, 0xff\nv_mov_b32 v{vT8}, s{sFF}\ns_mov_b32 s{sFF}, 0xff")
    A(f"s_lshl_b32 s{sO2}, s{sCQ}, 6\ns_add_u32 s{sO2}, s{sO2}, {QBOX}\nv_lshlrev_b32 v{T+6}, 3, v7\nv_mov_b32 v{T+5}, s{sTAG}")
    A(f"v_mov_b32_dpp v{T+1}, v{T} quad_perm:[1,1,3,3] {DPP}")
    A(f"v_cvt_pk_bf16_f32 v{T+4}, v{T}, v{T+1}")
    A("s_mov_b64 exec, 0x5555")
    A(f"buffer_store_dwordx2 v[{T+4}:{T+5}], v{T+6}, s[{SRDW}:{SRDW+3}], s{sO2} offen sc1")
    A("s_mov_b64 exec, -1")
    stamp(2)
    TT1=tt(lambda a,b,t:(a^t)|(b^t)); TT2=tt(lambda a,b,c:(a|b)&c)
    def poll(loads, soff, mode, sleep):
        PM=4
        lp=lab("poll"); ld=lab("polld")
        for i,(d,vo,imm,lm) in enumerate(loads):
            if lm is None: A(f"s_mov_b64 s[{PM+2*i}:{PM+2*i+1}], -1")
            else: A(f"s_mov_b32 s{PM+2*i}, {lm&0xffffffff:#x}\ns_mov_b32 s{PM+2*i+1}, {lm>>32:#x}")
        A(f"s_mov_b32 s{sSPIN}, 0")
        A(f"{lp}:")
        for i,(d,vo,imm,lm) in enumerate(loads):
            sk=lab("sk")
            A(f"s_mov_b64 exec, s[{PM+2*i}:{PM+2*i+1}]\ns_cbranch_execz {sk}")
            A(f"buffer_load_dwordx4 v[{d}:{d+3}], v{vo}, s[{SRDW}:{SRDW+3}], s{soff} offen offset:{imm} sc1")
            A(f"{sk}:")
        A(f"s_mov_b64 exec, -1\ns_add_u32 s{sSPIN}, s{sSPIN}, 1\ns_waitcnt vmcnt(0)")
        for i,(d,vo,imm,lm) in enumerate(loads):
            if mode=='q':
                A(f"v_xor_b32 v{T+i}, s{sTAG}, v{d+1}\nv_xor_b32 v{T+4+i}, s{sTAG}, v{d+3}\nv_or_b32 v{T+i}, v{T+i}, v{T+4+i}")
            else:
                A(f"v_bitop3_b32 v{T+i}, v{d}, v{d+1}, v{vT8} bitop3:{TT1:#x}\nv_bitop3_b32 v{T+4+i}, v{d+2}, v{d+3}, v{vT8} bitop3:{TT1:#x}")
                A(f"v_bitop3_b32 v{T+i}, v{T+i}, v{T+4+i}, s{sFF} bitop3:{TT2:#x}")
        for i,(d,vo,imm,lm) in enumerate(loads):
            A(f"v_cmp_ne_u32 vcc, 0, v{T+i}\ns_and_b64 s[{PM+2*i}:{PM+2*i+1}], s[{PM+2*i}:{PM+2*i+1}], vcc")
        if len(loads)>1:
            A(f"s_or_b64 s[12:13], s[{PM}:{PM+1}], s[{PM+2}:{PM+3}]")
            for i in range(2,len(loads)): A(f"s_or_b64 s[12:13], s[12:13], s[{PM+2*i}:{PM+2*i+1}]")
        A(f"s_cbranch_scc0 {ld}")
        if sleep: A(f"s_sleep {sleep}")
        A(f"s_cmp_lt_u32 s{sSPIN}, {SPIN_LIMIT}\ns_cbranch_scc1 {lp}")
        A(f"{ld}:")
    A(f"s_lshr_b32 s{sO2}, s2, 5\ns_lshl_b32 s{sO2}, s{sO2}, 11\ns_add_u32 s{sO2}, s{sO2}, {QBOX}")
    poll([(F,vL16,0,None),(F+4,vL16,1024,None)], sO2, 'q', cfg.qsleep)
    A(f"v_lshlrev_b32 v{T}, 3, v2\nv_add_u32 v{T}, {QB}, v{T}")
    A(f"ds_write2_b32 v{T}, v{F}, v{F+2} offset0:0 offset1:1\nds_write2_b32 v{T}, v{F+4}, v{F+6} offset0:128 offset1:129")
    A("s_waitcnt lgkmcnt(0)\ns_barrier")
    stamp(3)
    A(f"s_bfe_u32 s{sB}, s2, 0x10003\ns_lshr_b32 s{sA}, s2, 4\ns_lshl_b32 s{sA}, s{sA}, 3\ns_and_b32 s{sO2}, s2, 7\ns_add_u32 s{sA}, s{sA}, s{sO2}")
    A(f"v_and_b32 v{T}, 15, v2"); masks(AM,T,T+1,T+2)
    A(f"v_lshrrev_b32 v{T+1}, 4, v2\nv_mul_u32_u24 v{vTO}, 896, v{T+1}\nv_lshl_add_u32 v{vTO}, v{T}, 4, v{vTO}")
    for r in range(8): A(f"v_mov_b32 v{PA+r}, 0")
    def tile_load(sr):
        for t in range(8):
            A(f"buffer_load_dwordx4 v[{WT+8*t}:{WT+8*t+3}], v{vTO}, s[{sr}:{sr+3}], s{sO2} offen {cfg.wnt}")
            A("s_mov_b32 exec_lo, 0x0fff0fff\ns_mov_b32 exec_hi, 0x0fff0fff")
            A(f"buffer_load_dwordx4 v[{WT+8*t+4}:{WT+8*t+7}], v{vTO}, s[{sr}:{sr+3}], s{sO2} offen offset:256 {cfg.wnt}")
            A(f"s_mov_b64 exec, -1\ns_add_u32 s{sO2}, s{sO2}, 3584")
    def project(src):
        for t in range(8):
            v,ln=src(t)
            for r in range(4): A(f"v_and_b32_dpp v{AT+4*t+r}, v{v}, v{AM+r} row_newbcast:{ln} {DPP}")
            if t>=1:
                tp=t-1
                for cb in range(2):
                    A(f"v_mfma_f32_16x16x32_bf16 v[{PA+4*cb}:{PA+4*cb+3}], v[{AT+4*tp}:{AT+4*tp+3}], v[{WT+8*tp+4*cb}:{WT+8*tp+4*cb+3}], v[{PA+4*cb}:{PA+4*cb+3}]")
        for cb in range(2):
            A(f"v_mfma_f32_16x16x32_bf16 v[{PA+4*cb}:{PA+4*cb+3}], v[{AT+28}:{AT+31}], v[{WT+56+4*cb}:{WT+56+4*cb+3}], v[{PA+4*cb}:{PA+4*cb+3}]")
    lnm=lab("nomlp")
    A(f"s_cmp_ge_u32 s2, {0 if cfg.nomlp else 112}\ns_cbranch_scc1 {lnm}")
    A(f"s_and_b32 s{sCM}, s2, 7\ns_mul_i32 s{sCM}, s{sCM}, 7\ns_lshr_b32 s{sO2}, s2, 4\ns_add_u32 s{sCM}, s{sCM}, s{sO2}")
    A(f"v_lshrrev_b32 v{T}, 2, v2\nv_mul_u32_u24 v{vWO_}, 3584, v{T}\nv_and_b32 v{T}, 3, v2\nv_lshl_add_u32 v{vWO_}, v{T}, 4, v{vWO_}")
    srd(SRDK,sW1,448*1792*2)
    srd(SRDA,sB1,3584)
    A(f"v_and_b32 v{T}, 15, v2\nv_lshlrev_b32 v{T}, 1, v{T}\ns_lshl_b32 s{sO2}, s{sCM}, 6")
    A(f"buffer_load_ushort v{F}, v{T}, s[{SRDA}:{SRDA+3}], s{sO2} offen\ns_nop 0\nbuffer_load_ushort v{F+1}, v{T}, s[{SRDA}:{SRDA+3}], s{sO2} offen offset:32")
    for ps in range(2):
        wdma(SRDK,16*3584)
        A(f"s_add_u32 s{sO2}, s{sO2}, {16*3584}\ns_waitcnt vmcnt(0)")
        for kk in range(7):
            for u in range(2):
                r=WF+8*kk+4*u
                A(f"ds_read_b64_tr_b16 v[{r}:{r+1}], v{vG1} offset:{kk*2048+u*32}\nds_read_b64_tr_b16 v[{r+2}:{r+3}], v{vG1} offset:{kk*2048+u*32+256}")
        A("s_waitcnt lgkmcnt(0)")
        for kk in range(7):
            for u in range(2):
                r=WF+8*kk+4*u; x=XF+4*(7*ps+kk)
                c="0" if (ps==0 and kk==0) else f"v[{T+4*u}:{T+4*u+3}]"
                A(f"v_mfma_f32_16x16x32_bf16 v[{T+4*u}:{T+4*u+3}], v[{x}:{x+3}], v[{r}:{r+3}], {c}")
    srd(SRDK,sW2,1792*448*2)
    A(f"s_mul_i32 s{sO2}, s{sCM}, {32*896}\ns_mul_i32 s{sSPIN}, s{sB}, 448\ns_add_u32 s{sO2}, s{sO2}, s{sSPIN}")
    tile_load(SRDK)
    k0=math.sqrt(2/math.pi)
    for u in range(2):
        h=T+4*u; t1=h+1; t2=h+2
        rbf(h,h)
        A(f"v_lshlrev_b32 v{F+u}, 16, v{F+u}\nv_add_f32 v{h}, v{h}, v{F+u}"); rbf(h,h)
        A(f"v_mul_f32 v{t1}, v{h}, v{h}\nv_mul_f32 v{t1}, v{t1}, v{h}\nv_mov_b32 v{t2}, {f2u(0.044715):#x}\nv_fma_f32 v{t1}, v{t1}, v{t2}, v{h}")
        A(f"v_mul_f32 v{t1}, {f2u(-2*k0*math.log2(math.e)):#x}, v{t1}\nv_exp_f32 v{t1}, v{t1}"); nop(1)
        A(f"v_add_f32 v{t1}, 1.0, v{t1}\nv_rcp_f32 v{t1}, v{t1}"); nop(1)
        A(f"v_mul_f32 v{h}, v{h}, v{t1}\nv_cvt_pk_bf16_f32 v{h}, v{h}, v{h}\nv_mov_b32 v{t1}, v{h}"); nop(2)
        for g in range(1,4): A(f"v_mov_b32_dpp v{t1}, v{h} row_ror:{16-g} row_mask:{1<<g:#x} bank_mask:0xf")
    A("s_waitcnt vmcnt(0)"); nop(2)
    project(lambda t:(T+4*(t>>2)+1, 4*(t&3)))
    nop(4)
    stamp('mlpdone')
    A(f"{lnm}:")
    srd(SRDK,sWO,4096*448*2)
    A(f"s_mul_i32 s{sO2}, s{sA}, {32*896}\ns_mul_i32 s{sSPIN}, s{sB}, 448\ns_add_u32 s{sO2}, s{sO2}, s{sSPIN}")
    if not cfg.nowo: tile_load(SRDK)
    FC=cfg.fc
    lnf=lab("nofin")
    FC0=256-FC
    if FC==56:
        A(f"v_lshrrev_b32 v{T}, 4, v2\nv_and_b32 v{T+1}, 1, v2\nv_lshl_add_u32 v{T}, v{T+1}, 2, v{T}\nv_lshlrev_b32 v{vG2}, 1, v{T}")
        A(f"s_sub_u32 s{sO2}, s2, {FC0}\ns_lshl_b32 s{sO2}, s{sO2}, 4")
    else:
        A(f"v_lshrrev_b32 v{T}, 4, v2\nv_lshlrev_b32 v{vG2}, 1, v{T}")
        A(f"s_sub_u32 s{sO2}, s2, {FC0}\ns_lshl_b32 s{sO2}, s{sO2}, 3")
    A(f"v_add_u32 v{vG2}, s{sO2}, v{vG2}")
    A(f"s_cmp_lt_u32 s2, {FC0}\ns_cbranch_scc1 {lnf}")
    srd(SRDA,sX,896)
    A(f"buffer_load_ushort v{vFX}, v{vG2}, s[{SRDA}:{SRDA+3}], 0 offen")
    srd(SRDK,sB2,896)
    A(f"buffer_load_ushort v{T}, v{vG2}, s[{SRDK}:{SRDK+3}], 0 offen")
    A(f"s_waitcnt vmcnt(0)\nv_lshlrev_b32 v{vFX}, 16, v{vFX}\nv_lshlrev_b32 v{T}, 16, v{T}\nv_add_f32 v{vFX}, v{vFX}, v{T}")
    A(f"{lnf}:")
    stamp('wodone')
    A("s_barrier")
    stamp(4)
    A(f"s_mov_b32 s{sCM}, {f2u(CEXP):#x}")
    A(f"v_and_b32 v{T}, 1, v2\nv_lshlrev_b32 v{T+1}, 4, v{T}\nv_add_u32 v{T+1}, {MX}, v{T+1}\nv_lshlrev_b32 v{T+2}, 5, v2\nv_add_u32 v{T+2}, {SC}, v{T+2}")
    A(f"ds_read_b128 v[{F}:{F+3}], v{T+1}")
    for w in range(4):
        A(f"ds_read_b128 v[{XF+8*w}:{XF+8*w+3}], v{T+2} offset:{w*2048}\nds_read_b128 v[{XF+8*w+4}:{XF+8*w+7}], v{T+2} offset:{w*2048+16}")
    A("s_waitcnt lgkmcnt(0)")
    A(f"v_max_f32 v{F}, v{F}, v{F+1}\nv_max3_f32 v{F}, v{F}, v{F+2}, v{F+3}\nv_mul_f32 v{F+4}, s{sCM}, v{F}\nv_sub_f32 v{F+4}, 0, v{F+4}")
    A(f"v_mov_b32 v{F+1}, 0\nv_mov_b32 v{F+5}, 0")
    for r in range(32):
        A(f"v_lshlrev_b32 v{T+3}, 16, v{XF+r}\nv_and_b32 v{T+4}, 0xffff0000, v{XF+r}")
        A(f"v_fma_f32 v{T+3}, v{T+3}, s{sCM}, v{F+4}\nv_fma_f32 v{T+4}, v{T+4}, s{sCM}, v{F+4}")
        A(f"v_exp_f32 v{T+3}, v{T+3}\nv_exp_f32 v{T+4}, v{T+4}"); nop(1)
        A(f"v_add_f32 v{F+1}, v{F+1}, v{T+3}\nv_add_f32 v{F+5}, v{F+5}, v{T+4}")
    A(f"v_add_f32 v{F+1}, v{F+1}, v{F+5}")
    rowred("v_add_f32",F+1,[2,4,8]); xrowred("v_add_f32",F+1,T+3)
    nop(2)
    A(f"v_mov_b32_dpp v{F+2}, v{F} quad_perm:[1,1,3,3] {DPP}\nv_mov_b32_dpp v{F+3}, v{F+1} quad_perm:[1,1,3,3] {DPP}")
    A(f"v_mov_b32 v{F+6}, v{F}")
    for r in range(4): A(f"v_bfi_b32 v{F+r}, s{sFF}, v{vT8}, v{F+r}")
    A(f"s_lshl_b32 s{sO2}, s2, 4\ns_add_u32 s{sO2}, s{sO2}, {MLBOX}\nv_mov_b32 v{T}, 0\ns_mov_b64 exec, 1")
    A(f"buffer_store_dwordx4 v[{F}:{F+3}], v{T}, s[{SRDW}:{SRDW+3}], s{sO2} offen sc1")
    A("s_mov_b64 exec, -1")
    I1=XF
    A(f"s_lshr_b32 s{sO2}, s2, 5\ns_lshl_b32 s{sO2}, s{sO2}, 9\ns_add_u32 s{sO2}, s{sO2}, {MLBOX}\nv_lshlrev_b32 v{vWO_}, 4, v7")
    poll([(I1,vWO_,0,None)], sO2, 't', cfg.mlsleep)
    A(f"v_and_b32 v{T}, 1, v2\nv_cmp_eq_u32 vcc, 1, v{T}"); nop(2)
    A(f"v_cndmask_b32 v{I1}, v{I1}, v{I1+2}, vcc\nv_cndmask_b32 v{I1+1}, v{I1+1}, v{I1+3}, vcc\nv_and_b32 v{I1}, 0xffff0000, v{I1}\nv_mov_b32 v{T+1}, v{I1}")
    rowred("v_max_f32",T+1,[2,4,8]); xrowred("v_max_f32",T+1,T+2)
    A(f"v_sub_f32 v{T+2}, v{I1}, v{T+1}\nv_sub_f32 v{T+3}, v{F+6}, v{T+1}\nv_mul_f32 v{T+2}, s{sCM}, v{T+2}\nv_mul_f32 v{T+3}, s{sCM}, v{T+3}")
    A(f"v_exp_f32 v{T+2}, v{T+2}\nv_exp_f32 v{T+3}, v{T+3}"); nop(1)
    A(f"v_mul_f32 v{T+2}, v{T+2}, v{I1+1}")
    rowred("v_add_f32",T+2,[2,4,8]); xrowred("v_add_f32",T+2,T+4)
    A(f"v_rcp_f32 v{T+4}, v{T+2}"); nop(1)
    A(f"v_fma_f32 v{T+5}, -v{T+2}, v{T+4}, 1.0\nv_fma_f32 v{T+4}, v{T+5}, v{T+4}, v{T+4}\nv_mul_f32 v{T+3}, v{T+3}, v{T+4}")
    A(f"v_lshlrev_b32 v{T}, 2, v{T}\nv_add_u32 v{T}, {FB}, v{T}\nds_write_b32 v{T}, v{T+3}")
    A(f"v_bfe_u32 v{T}, v2, 3, 2\nv_lshlrev_b32 v{T}, 14, v{T}\nv_lshrrev_b32 v{T+1}, 5, v2\nv_lshl_add_u32 v{T}, v{T+1}, 11, v{T}\nv_and_b32 v{T+1}, 7, v2\nv_lshl_add_u32 v{vG1}, v{T+1}, 4, v{T}")
    for k in range(1,4): A(f"v_add_u32 v{X+k}, {k*4096}, v{vG1}")
    A(f"s_lshr_b32 s{sO2}, s2, 5\ns_lshl_b32 s{sO2}, s{sO2}, 16\ns_and_b32 s{sSPIN}, s{sA}, 15\ns_lshl_b32 s{sSPIN}, s{sSPIN}, 7\ns_add_u32 s{sO2}, s{sO2}, s{sSPIN}\ns_add_u32 s{sO2}, s{sO2}, {OBOX}")
    A(f"v_lshrrev_b32 v{T}, 5, v2\nv_lshlrev_b32 v{T}, 9, v{T}\nv_and_b32 v{T+1}, 15, v2\nv_lshl_add_u32 v{T}, v{T+1}, 5, v{T}\nv_bfe_u32 v{T+1}, v2, 4, 1\nv_lshl_add_u32 v{vPS}, v{T+1}, 4, v{T}")
    A(f"s_lshl_b32 s{sCQ}, s{sB}, 7\ns_add_u32 s{sCQ}, s{sCQ}, s{sA}\ns_lshl_b32 s{sCQ}, s{sCQ}, 10\ns_add_u32 s{sCQ}, s{sCQ}, {PBOX}")
    A("s_waitcnt vmcnt(0) lgkmcnt(0)\ns_barrier")
    stamp(5)
    if cfg.notail: A(f"s_branch {lend}")
    poll([(I1,vG1,0,None),(I1+4,X+1,0,None),(I1+8,X+2,0,None),(I1+12,X+3,0,None)], sO2, 't', cfg.sleep1)
    stamp(6)
    for r in range(4): A(f"v_add_f32 v{I1+r}, v{I1+r}, v{I1+4+r}\nv_add_f32 v{I1+8+r}, v{I1+8+r}, v{I1+12+r}")
    for r in range(4): A(f"v_add_f32 v{I1+r}, v{I1+r}, v{I1+8+r}")
    tred4(I1); rowred("v_add_f32",I1,[8])
    A(f"v_cvt_pk_bf16_f32 v{I1}, v{I1}, v{I1}"); nop(2)
    project(lambda t:(I1,t))
    nop(8)
    for r in range(4): A(f"v_permlane32_swap_b32 v{PA+r}, v{PA+4+r}")
    for r in range(4): A(f"v_bfi_b32 v{PA+r}, s{sFF}, v{vT8}, v{PA+r}")
    A("s_mov_b32 exec_hi, 0x0fff0fff")
    A(f"buffer_store_dwordx4 v[{PA}:{PA+3}], v{vPS}, s[{SRDW}:{SRDW+3}], s{sCQ} offen sc1")
    A("s_mov_b32 exec_hi, -1")
    A(f"s_cmp_lt_u32 s2, {FC0}\ns_cbranch_scc1 {lend}")
    srd(SRDA,sOUT,896)
    half=FC//2
    A(f"s_sub_u32 s{sSPIN}, s2, {FC0}\ns_cmp_ge_u32 s{sSPIN}, {half}\ns_cselect_b32 s{sO2}, {128*1024-896}, 0\ns_mul_i32 s{sSPIN}, s{sSPIN}, {1792//FC}\ns_add_u32 s{sO2}, s{sO2}, s{sSPIN}\ns_add_u32 s{sO2}, s{sO2}, {PBOX}")
    if FC==56:
        A(f"v_lshlrev_b32 v{X}, 10, v7\nv_and_b32 v{T}, 1, v2\nv_lshl_add_u32 v{X}, v{T}, 4, v{X}")
        for k in range(1,4): A(f"v_add_u32 v{X+k}, {k*32768}, v{X}")
        poll([(I1+4*k,X+k,0,None) for k in range(4)], sO2, 't', cfg.sleep2)
        for r in range(4): A(f"v_add_f32 v{I1+r}, v{I1+r}, v{I1+4+r}\nv_add_f32 v{I1+8+r}, v{I1+8+r}, v{I1+12+r}")
        for r in range(4): A(f"v_add_f32 v{I1+r}, v{I1+r}, v{I1+8+r}")
        tred4(I1); rowred("v_add_f32",I1,[2,4,8])
        em=0x00030003
    else:
        A(f"v_lshlrev_b32 v{X}, 10, v2\nv_add_u32 v{X+1}, 0x10000, v{X}")
        poll([(I1+4*k,X+k,0,None) for k in range(2)], sO2, 't', cfg.sleep2)
        for r in range(4): A(f"v_add_f32 v{I1+r}, v{I1+r}, v{I1+4+r}")
        tred4(I1); rowred("v_add_f32",I1,[1,2,4,8])
        em=0x00010001
    A(f"v_add_f32 v{I1}, v{vFX}, v{I1}\nv_cvt_pk_bf16_f32 v{I1}, v{I1}, v{I1}")
    A(f"s_mov_b32 exec_lo, {em:#x}\ns_mov_b32 exec_hi, {em:#x}")
    A(f"buffer_store_short v{I1}, v{vG2}, s[{SRDA}:{SRDA+3}], 0 offen")
    A(f"s_cmp_lg_u32 s2, 255\ns_cbranch_scc1 {lend}")
    A(f"s_mov_b64 exec, 1\ns_add_u32 s{sE}, s{sE}, 1\nv_mov_b32 v{T+1}, s{sE}\nv_mov_b32 v{T+2}, 0")
    A(f"buffer_store_dword v{T+1}, v{T+2}, s[{SRDW}:{SRDW+3}], 0 offen sc1")
    A(f"{lend}:")
    if cfg.stamps:
        A("s_mov_b64 exec, 1\ns_waitcnt vmcnt(0)")
        stamp(1)
        A("s_getreg_b32 s94, hwreg(HW_REG_XCC_ID)\ns_mov_b32 s95, 0\ns_waitcnt lgkmcnt(0)")
        A(f"s_lshl_b32 s{sO2}, s2, 6\ns_add_u32 s{sO2}, s{sO2}, {STAMP:#x}\nv_mov_b32 v{T}, 0")
        for k in range(8):
            A(f"v_mov_b32 v{F}, s{80+2*k}\nv_mov_b32 v{F+1}, s{81+2*k}\nbuffer_store_dwordx2 v[{F}:{F+1}], v{T}, s[{SRDW}:{SRDW+3}], s{sO2} offen offset:{8*k}\ns_nop 1")
    A(f"{Ldone}:")
    A("s_endpgm")
    body="\n".join(L)+"\n"
    kd=f""".section .rodata,"a"
.p2align 6
.amdhsa_kernel {N}
  .amdhsa_next_free_vgpr 232
  .amdhsa_next_free_sgpr 96
  .amdhsa_accum_offset 232
  .amdhsa_group_segment_fixed_size 0
  .amdhsa_kernarg_size 104
  .amdhsa_user_sgpr_count 2
  .amdhsa_user_sgpr_kernarg_segment_ptr 1
  .amdhsa_system_sgpr_workgroup_id_x 1
  .amdhsa_float_denorm_mode_32 3
.end_amdhsa_kernel
"""
    return body, kd

def header():
    ref=open('parallel_sum__gqa_block_cached__dense_activation_gelu__decode.s.ref').read().split("\n")
    out=[]
    for l in ref:
        if l.startswith("; @launch"):
            out.append(f"; @launch grid=(256,1,1) block=(320,1,1) lds={LDS_END}")
            break
        out.append(l)
    return "\n".join(out)+"\n"

def final(cfg, path):
    body,kd=gen(cfg)
    open(path,"w").write(header()+'.amdgcn_target "amdgcn-amd-amdhsa--gfx950"\n.text\n'+body+kd)

def bench(cfgs, path):
    sys.path.insert(0,'bench')
    from genstream import meta
    s='.amdgcn_target "amdgcn-amd-amdhsa--gfx950"\n'
    ks=[]; args=[]
    for c in cfgs:
        body,kd=gen(c)
        s+=".text\n"+body+kd.replace("kernarg_size 104","kernarg_size 112")
        ks.append((c.name,232,320)); args.append(f"{c.name} 256 320 {LDS_END}")
    s+=meta(ks)
    open(path+".s","w").write(s); open(path+".args","w").write(" @ ".join(args))

def mk(name, **kw):
    c=Cfg(); c.name=name
    for k,v in kw.items():
        assert hasattr(c,k), k
        setattr(c,k,v)
    return c

if __name__=="__main__":
    if sys.argv[1]=="final":
        kw=eval(sys.argv[3]) if len(sys.argv)>3 else {}
        final(mk(KNAME,**kw), sys.argv[2])
    else:
        bench([mk(n,**kw) for n,kw in eval(sys.argv[3])], sys.argv[2])
```

```python
import sys, struct, math

KNAME = "parallel_sum__gqa_block_cached__dense_activation_gelu__decode_kernel"
def f2u(f): return struct.unpack('<I', struct.pack('<f', f))[0]

class Cfg:
    name = KNAME
    rot = 5
    pace = 4
    infl = 16
    stamps = False
    smap = {}
    wnt = "nt"
    qsleep = 0
    sleep1 = 2
    sleep2 = 1
    mlsleep = 32
    fc = 56
    nomlp = False
    notail = False
    auxnull = False
    nowo = False
    dbgout = False

RING=0; SC=131072; WBUF=SC+8192; XN=WBUF+14336; QB=XN+1024; MX=QB+1024; FB=MX+64; LDS_END=FB+64
QBOX=0x1000; MLBOX=0x8000; OBOX=0x10000; PBOX=0x100000; STAMP=0x20000000
SPIN_LIMIT = 1<<16
CEXP = 0.0625*math.log2(math.e)

def tt(f):
    r=0
    for idx in range(8):
        if f((idx>>2)&1,(idx>>1)&1,idx&1): r|=1<<idx
    return r

def gen(cfg):
    L=[]
    def A(s):
        for line in s.split("\n"):
            t=line.strip()
            L.append(t if t.endswith(":") else "    "+t)
    N=cfg.name
    pre = "L" if N==KNAME else f"L_{N}"
    uid=[0]
    def lab(p):
        uid[0]+=1; return f"{pre}_{p}{uid[0]}"
    def nop(n):
        if n>0: A(f"s_nop {n-1}")
    sX,sK,sV,sWQ,sWO,sW1,sB1=16,18,20,22,24,28,30
    sW2,sB2,sOUT,sDBG,sWS=32,34,36,38,40
    SRDK,SRDV,SRDA,SRDW=44,48,52,56
    sWAVE=3
    def srd(d, p, size):
        A(f"s_mov_b32 s{d}, s{p}\ns_mov_b32 s{d+1}, s{p+1}\ns_mov_b32 s{d+2}, {size:#x}\ns_mov_b32 s{d+3}, 0x20000")
    def stamp(k):
        if cfg.stamps:
            if isinstance(k,str):
                if k not in cfg.smap: return
                k=cfg.smap[k]
            elif k in cfg.smap.values(): return
            A(f"s_memrealtime s[{80+2*k}:{81+2*k}]")
    DPP="row_mask:0xf bank_mask:0xf"
    def rowred(op, v, rors):
        for r in rors:
            nop(2); A(f"{op}_dpp v{v}, v{v}, v{v} row_ror:{r} {DPP}")
    def xrowred(op, v, t):
        A(f"v_mov_b32 v{t}, v{v}"); nop(2); A(f"v_permlane16_swap_b32 v{v}, v{t}"); A(f"{op} v{v}, v{v}, v{t}")
        A(f"v_mov_b32 v{t}, v{v}"); nop(2); A(f"v_permlane32_swap_b32 v{v}, v{t}"); A(f"{op} v{v}, v{v}, v{t}")
    def tred4(a):
        nop(2)
        A(f"v_permlane32_swap_b32 v{a}, v{a+2}\nv_permlane32_swap_b32 v{a+1}, v{a+3}")
        A(f"v_add_f32 v{a}, v{a}, v{a+2}\nv_add_f32 v{a+1}, v{a+1}, v{a+3}")
        nop(2)
        A(f"v_permlane16_swap_b32 v{a}, v{a+1}")
        A(f"v_add_f32 v{a}, v{a}, v{a+1}")
    def rbf(d, s):
        A(f"v_cvt_pk_bf16_f32 v{d}, v{s}, v{s}\nv_and_b32 v{d}, 0xffff0000, v{d}")
    def masks(dst, n, t0, t1):
        A(f"v_and_b32 v{t0}, 1, v{n}\nv_lshlrev_b32 v{t0}, 4, v{t0}\nv_mov_b32 v{t1}, 0xffff\nv_lshlrev_b32 v{t1}, v{t0}, v{t1}\nv_bfe_u32 v{t0}, v{n}, 1, 2")
        for r in range(4):
            A(f"v_cmp_eq_u32 vcc, {r}, v{t0}"); nop(2); A(f"v_cndmask_b32 v{dst+r}, 0, v{t1}, vcc")

    Ldone=f"{pre}_done"; Laux=f"{pre}_aux"
    A(f".globl {N}\n.p2align 8\n.type {N},@function\n{N}:")
    A(f"s_cmp_ge_u32 s2, 256\ns_cbranch_scc1 {Ldone}")
    A("s_load_dwordx16 s[16:31], s[0:1], 0\ns_load_dwordx8 s[32:39], s[0:1], 64\ns_load_dwordx2 s[40:41], s[0:1], 96")
    stamp(0)
    A("v_lshrrev_b32 v1, 6, v0\nv_and_b32 v2, 63, v0")
    nop(1)
    A(f"v_readfirstlane_b32 s{sWAVE}, v1")
    A(f"s_cmp_eq_u32 s{sWAVE}, 4\ns_cbranch_scc1 {Laux}")

    vKO=8; vVO=16; vKA=18; vVA=22; vSA=23; vMASK=24; vMAX=28; vTG=29; vNM=30; vT=31
    QF=40; TF=72; D=104; S2=108; P=110; AR=116; ACC=132
    sRING,sREG,sNEXT,sOFF,sCNT,sC,sT8,sFF=60,61,62,63,64,65,66,67
    A("v_lshrrev_b32 v3, 5, v2\nv_and_b32 v4, 31, v2\nv_lshlrev_b32 v5, 2, v3\nv_xor_b32 v4, v4, v5\nv_lshlrev_b32 v4, 4, v4\nv_lshl_add_u32 v4, v3, 9, v4")
    for j in range(8):
        c=(8*(j&1)+(j>>1))*16 | (4096 if j>=4 else 0)
        A(f"v_xor_b32 v{vKO+j}, {c:#x}, v4")
    A(f"s_lshl_b32 s{sRING}, s{sWAVE}, 15\ns_lshl_b32 s{sREG}, s2, 20")
    A(f"s_mul_i32 s{sNEXT}, s2, {cfg.rot*32768}\ns_lshl_b32 s{sOFF}, s{sWAVE}, 13\ns_add_u32 s{sNEXT}, s{sNEXT}, s{sOFF}\ns_and_b32 s{sNEXT}, s{sNEXT}, 0xfffff")
    A("s_waitcnt lgkmcnt(0)")
    srd(SRDK,sK,1<<28)
    def issue_half(slot, isK, half):
        if half==0: A(f"s_or_b32 s{sOFF}, s{sREG}, s{sNEXT}")
        A(f"s_add_u32 m0, s{sRING}, {slot*8192+half*4096}")
        if half==0: A(f"s_add_u32 s{sNEXT}, s{sNEXT}, 32768")
        else: A(f"s_and_b32 s{sNEXT}, s{sNEXT}, 0xfffff")
        for jj in range(4):
            j=half*4+jj
            vo = vKO+j if isK else vVO+half
            sr = SRDK if isK else SRDV
            if jj: A(f"s_add_u32 m0, s{sRING}, {slot*8192+half*4096}\ns_nop 0")
            A(f"buffer_load_dwordx4 v{vo}, s[{sr}:{sr+3}], s{sOFF} offen offset:{jj*1024} nt lds")
    def gissue(slot,isK):
        for half in range(2):
            if cfg.infl<32: A(f"s_waitcnt vmcnt({cfg.infl-4})")
            issue_half(slot,isK,half)
    issue_half(0,True,0); issue_half(0,True,1)
    srd(SRDV,sV,1<<28)
    A(f"s_load_dword s{sT8}, s[{sWS}:{sWS+1}], 0")
    A(f"v_lshlrev_b32 v{vVO}, 4, v2\nv_add_u32 v{vVO+1}, 0x1000, v{vVO}")
    A("v_lshrrev_b32 v3, 4, v2\nv_and_b32 v4, 15, v2")
    A("v_and_b32 v5, 3, v4\nv_lshlrev_b32 v5, 2, v5\nv_lshrrev_b32 v6, 2, v4\nv_add_u32 v5, v5, v6")
    A(f"v_xor_b32 v6, v3, v4\nv_lshlrev_b32 v6, 4, v6\nv_lshl_add_u32 v6, v5, 9, v6\nv_add_u32 v6, s{sRING}, v6")
    for q in range(4): A(f"v_xor_b32 v{vKA+q}, {q*64}, v6")
    A(f"v_lshlrev_b32 v6, 4, v4\nv_lshl_add_u32 v6, v3, 9, v6\nv_add_u32 v{vVA}, s{sRING}, v6")
    A(f"s_lshl_b32 s{sCNT}, s{sWAVE}, 11\ns_add_u32 s{sCNT}, s{sCNT}, {SC}")
    A(f"v_lshrrev_b32 v5, 3, v4\nv_lshlrev_b32 v6, 5, v5\nv_lshl_add_u32 v6, v3, 3, v6\nv_add_u32 v{vSA}, s{sCNT}, v6")
    A(f"v_lshlrev_b32 v7, 9, v5\nv_lshl_add_u32 v7, v3, 4, v7\nv_add_u32 v7, {QB}, v7")
    masks(vMASK,4,5,6)
    A(f"v_mov_b32 v{vMAX}, 0xff800000")
    for r in range(8): A(f"v_mov_b32 v{ACC+r}, 0")
    for slot in range(1,4):
        for half in range(2):
            if cfg.pace is not None: A(f"s_waitcnt vmcnt({cfg.pace})")
            issue_half(slot,True,half)
    A(f"s_waitcnt lgkmcnt(0)\ns_add_u32 s{sT8}, s{sT8}, 1\ns_and_b32 s{sT8}, s{sT8}, 0xff\ns_mov_b32 s{sFF}, 0xff\nv_mov_b32 v{vTG}, s{sT8}")
    A("s_barrier")
    for jj in range(8): A(f"ds_read_b128 v[{QF+4*jj}:{QF+4*jj+3}], v7 offset:{jj*64}")

    def ktile(slot, nextK):
        A("s_waitcnt vmcnt(24)")
        for jj in range(8):
            A(f"ds_read_b128 v[{TF+4*jj}:{TF+4*jj+3}], v{vKA+(jj&3)} offset:{slot*8192+(jj>>2)*256}")
        A("s_waitcnt lgkmcnt(0)")
        for jj in range(8):
            c = "0" if jj==0 else f"v[{D}:{D+3}]"
            A(f"v_mfma_f32_16x16x32_bf16 v[{D}:{D+3}], v[{TF+4*jj}:{TF+4*jj+3}], v[{QF+4*jj}:{QF+4*jj+3}], {c}")
        nop(8)
        A(f"v_cvt_pk_bf16_f32 v{S2}, v{D}, v{D+1}\nv_cvt_pk_bf16_f32 v{S2+1}, v{D+2}, v{D+3}")
        A(f"v_max3_f32 v{vMAX}, v{vMAX}, v{D}, v{D+1}\nv_max3_f32 v{vMAX}, v{vMAX}, v{D+2}, v{D+3}")
        A(f"ds_write_b64 v{vSA}, v[{S2}:{S2+1}] offset:{slot*64}")
        gissue(slot,nextK)
    def vtile(slot, issue_next, waitn):
        A(f"ds_read_b64 v[{S2}:{S2+1}], v{vSA} offset:{slot*64}")
        A("s_waitcnt lgkmcnt(0)")
        A(f"v_lshlrev_b32 v{P}, 16, v{S2}\nv_and_b32 v{P+1}, 0xffff0000, v{S2}\nv_lshlrev_b32 v{P+2}, 16, v{S2+1}\nv_and_b32 v{P+3}, 0xffff0000, v{S2+1}")
        for t in range(4): A(f"v_fma_f32 v{P+t}, v{P+t}, s{sC}, v{vNM}")
        for t in range(4): A(f"v_exp_f32 v{P+t}, v{P+t}")
        nop(1)
        for t in range(4): A(f"v_cvt_pk_bf16_f32 v{P+t}, v{P+t}, v{P+t}")
        for t in range(4):
            for r in range(4): A(f"v_and_b32 v{AR+4*t+r}, v{P+t}, v{vMASK+r}")
        A(f"s_waitcnt vmcnt({waitn})")
        for u in range(8):
            A(f"ds_read_b128 v[{TF+4*u}:{TF+4*u+3}], v{vVA} offset:{slot*8192+(u>>1)*2048+(u&1)*256}")
        for u in range(8):
            t=u>>1; h=u&1
            A(f"s_waitcnt lgkmcnt({7-u})")
            A(f"v_mfma_f32_16x16x32_bf16 v[{ACC+4*h}:{ACC+4*h+3}], v[{AR+4*t}:{AR+4*t+3}], v[{TF+4*u}:{TF+4*u+3}], v[{ACC+4*h}:{ACC+4*h+3}]")
        if issue_next: gissue(slot,False)

    lk=lab("kloop")
    A(f"s_mov_b32 s{sCNT}, 7")
    A(f"{lk}:")
    for s in range(4): ktile(s,True)
    A(f"v_add_u32 v{vSA}, 256, v{vSA}")
    A(f"s_sub_u32 s{sCNT}, s{sCNT}, 1\ns_cmp_lg_u32 s{sCNT}, 0\ns_cbranch_scc1 {lk}")
    for s in range(4): ktile(s,False)
    A(f"v_subrev_u32 v{vSA}, {7*256}, v{vSA}")
    xrowred("v_max_f32", vMAX, vT)
    rbf(vMAX,vMAX)
    A(f"v_bfe_u32 v3, v2, 3, 1\nv_lshlrev_b32 v3, 4, v3\nv_add_u32 v3, {MX}, v3")
    A(f"s_lshl_b32 s{sCNT}, s{sWAVE}, 2\nv_add_u32 v4, s{sCNT}, v3")
    A(f"ds_write_b32 v4, v{vMAX}\ns_waitcnt lgkmcnt(0)\ns_barrier")
    A(f"ds_read_b128 v[{D}:{D+3}], v3\ns_mov_b32 s{sC}, {f2u(CEXP):#x}\ns_waitcnt lgkmcnt(0)")
    A(f"v_max_f32 v{vMAX}, v{D}, v{D+1}\nv_max3_f32 v{vMAX}, v{vMAX}, v{D+2}, v{D+3}")
    A(f"v_mul_f32 v{vNM}, s{sC}, v{vMAX}\nv_sub_f32 v{vNM}, 0, v{vNM}")
    A("v_lshrrev_b32 v6, 5, v2\nv_lshlrev_b32 v6, 10, v6\nv_and_b32 v5, 15, v2\nv_lshl_add_u32 v6, v5, 5, v6\nv_bfe_u32 v5, v2, 4, 1\nv_lshl_add_u32 v6, v5, 4, v6")
    A(f"v_add_u32 v6, s{sRING}, v6")
    A(f"s_lshl_b32 s{sCNT}, s{sWAVE}, 9\nv_lshlrev_b32 v4, 3, v2\nv_add_u32 v4, s{sCNT}, v4\nv_add_u32 v5, 0x10000, v4")
    A(f"s_lshr_b32 s{sCNT}, s{sWAVE}, 1\ns_lshl_b32 s{sCNT}, s{sCNT}, 2\ns_add_u32 s{sCNT}, s{sCNT}, {FB}\nv_mov_b32 v3, s{sCNT}")
    srd(SRDW,sWS,1<<30)
    lv=lab("vloop")
    A(f"s_mov_b32 s{sCNT}, 7")
    A(f"{lv}:")
    for s in range(4): vtile(s,True,24)
    A(f"v_add_u32 v{vSA}, 256, v{vSA}")
    A(f"s_sub_u32 s{sCNT}, s{sCNT}, 1\ns_cmp_lg_u32 s{sCNT}, 0\ns_cbranch_scc1 {lv}")
    A(f"s_lshl_b32 s{sOFF}, s2, 11\ns_add_u32 s{sOFF}, s{sOFF}, {OBOX}")
    for s in range(4): vtile(s,False,24-8*s)
    nop(7)
    A(f"ds_write_b128 v6, v[{ACC}:{ACC+3}]\nds_write_b128 v6, v[{ACC+4}:{ACC+7}] offset:512")
    A("s_waitcnt lgkmcnt(0)\ns_barrier")
    A(f"ds_read_b64 v[{TF}:{TF+1}], v4\nds_read_b64 v[{TF+2}:{TF+3}], v4 offset:32768\nds_read_b64 v[{TF+4}:{TF+5}], v5\nds_read_b64 v[{TF+6}:{TF+7}], v5 offset:32768\nds_read_b32 v{TF+8}, v3")
    A("s_waitcnt lgkmcnt(3)")
    A(f"v_add_f32 v{TF}, v{TF}, v{TF+2}\nv_add_f32 v{TF+1}, v{TF+1}, v{TF+3}")
    A("s_waitcnt lgkmcnt(1)")
    A(f"v_add_f32 v{TF+4}, v{TF+4}, v{TF+6}\nv_add_f32 v{TF+5}, v{TF+5}, v{TF+7}\nv_add_f32 v{TF}, v{TF}, v{TF+4}\nv_add_f32 v{TF+1}, v{TF+1}, v{TF+5}")
    A("s_waitcnt lgkmcnt(0)")
    A(f"v_mul_f32 v{TF}, v{TF}, v{TF+8}\nv_mul_f32 v{TF+1}, v{TF+1}, v{TF+8}")
    A(f"v_bfi_b32 v{TF}, s{sFF}, v{vTG}, v{TF}\nv_bfi_b32 v{TF+1}, s{sFF}, v{vTG}, v{TF+1}")
    A(f"buffer_store_dwordx2 v[{TF}:{TF+1}], v4, s[{SRDW}:{SRDW+3}], s{sOFF} offen sc1")
    A("s_endpgm")

    vL16=3; vWO_=4; vTR=5; vXA=6
    X=8; F=12; T=20
    XF=32; WF=88
    WT=144
    PA=208
    AM=216
    vT8=220; vFX=221; vG1=222; vG2=223; vPS=224; vTO=225
    AT=88
    sE,sTAG,sCQ,sO2,sSPIN,sCM,sFF,sA,sB=60,61,62,63,64,65,78,66,67
    A(f"{Laux}:")
    lend=lab("end")
    if cfg.auxnull:
        A("s_waitcnt lgkmcnt(0)"); srd(SRDW,sWS,1<<30)
        A("s_barrier"); stamp(3); A("s_barrier"); stamp(4); A("s_barrier"); stamp(5); A(f"s_branch {lend}")
    A("s_setprio 3")
    A(f"v_lshrrev_b32 v7, 1, v2\nv_and_b32 v{T}, 1, v2\nv_lshlrev_b32 v{T}, 4, v{T}")
    A(f"v_lshl_add_u32 v{vWO_}, v7, 13, v{T}\nv_lshlrev_b32 v{vL16}, 4, v2")
    A(f"s_and_b32 s{sCQ}, s2, 7\ns_lshl_b32 s{sCQ}, s{sCQ}, 5\ns_lshr_b32 s{sO2}, s2, 3\ns_add_u32 s{sCQ}, s{sCQ}, s{sO2}\ns_lshl_b32 s{sO2}, s{sCQ}, 5")
    A("s_waitcnt lgkmcnt(0)")
    A(f"s_load_dword s{sE}, s[{sWS}:{sWS+1}], 0")
    srd(SRDA,sX,896)
    A(f"buffer_load_dwordx4 v[{X}:{X+3}], v{vL16}, s[{SRDA}:{SRDA+3}], 0 offen")
    srd(SRDK,sWQ,448*4096*2)
    def wdma(sr, step):
        for i in range(14):
            A(f"s_mov_b32 m0, {WBUF+i*1024}")
            if i: A(f"s_add_u32 s{sO2}, s{sO2}, {step}")
            else: nop(1)
            A(f"buffer_load_dwordx4 v{vWO_}, s[{sr}:{sr+3}], s{sO2} offen {cfg.wnt} lds")
    wdma(SRDK,32*8192)
    srd(SRDW,sWS,1<<30)
    A(f"v_lshrrev_b32 v{T}, 4, v2\nv_bfe_u32 v{T+1}, v2, 2, 2\nv_lshl_add_u32 v{T+1}, v{T}, 3, v{T+1}\nv_and_b32 v{T+2}, 3, v2\nv_lshlrev_b32 v{T+2}, 3, v{T+2}\nv_add_u32 v{T+2}, {WBUF}, v{T+2}")
    A(f"v_lshl_add_u32 v{vTR}, v{T+1}, 5, v{T+2}\nv_lshl_add_u32 v{vG1}, v{T+1}, 6, v{T+2}")
    A(f"v_lshlrev_b32 v{T}, 4, v{T}\nv_add_u32 v{vXA}, {XN}, v{T}")
    A("v_cmp_gt_u32 s[74:75], 56, v2")
    A("s_waitcnt vmcnt(14)")
    for r in range(4):
        A(f"v_lshlrev_b32 v{F+2*r}, 16, v{X+r}\nv_and_b32 v{F+2*r+1}, 0xffff0000, v{X+r}")
    A(f"v_add_f32 v{T}, v{F}, v{F+1}\nv_add_f32 v{T+1}, v{F+2}, v{F+3}\nv_add_f32 v{T+2}, v{F+4}, v{F+5}\nv_add_f32 v{T+3}, v{F+6}, v{F+7}")
    A(f"v_add_f32 v{T}, v{T}, v{T+1}\nv_add_f32 v{T+2}, v{T+2}, v{T+3}\nv_add_f32 v{T}, v{T}, v{T+2}")
    rowred("v_add_f32",T,[1,2,4,8]); xrowred("v_add_f32",T,T+1)
    A(f"v_mul_f32 v{T}, {f2u(1.0/448):#x}, v{T}")
    A(f"v_sub_f32 v{T+2}, v{F}, v{T}\nv_mul_f32 v{T+1}, v{T+2}, v{T+2}")
    for r in range(1,8):
        A(f"v_sub_f32 v{T+2}, v{F+r}, v{T}\nv_fmac_f32 v{T+1}, v{T+2}, v{T+2}")
    A(f"v_cndmask_b32 v{T+1}, 0, v{T+1}, s[74:75]")
    rowred("v_add_f32",T+1,[1,2,4,8]); xrowred("v_add_f32",T+1,T+2)
    A(f"v_mul_f32 v{T+1}, {f2u(1.0/448):#x}, v{T+1}")
    rbf(T,T); rbf(T+1,T+1)
    A(f"v_add_f32 v{T+1}, {f2u(1e-5):#x}, v{T+1}"); rbf(T+1,T+1)
    A(f"v_sqrt_f32 v{T+1}, v{T+1}"); nop(1); rbf(T+1,T+1)
    A(f"v_rcp_f32 v{T+2}, v{T+1}")
    for r in range(8): A(f"v_sub_f32 v{F+r}, v{F+r}, v{T}")
    for r in range(4): A(f"v_cvt_pk_bf16_f32 v{X+r}, v{F+2*r}, v{F+2*r+1}")
    for r in range(4): A(f"v_lshlrev_b32 v{F+2*r}, 16, v{X+r}\nv_and_b32 v{F+2*r+1}, 0xffff0000, v{X+r}")
    for r in range(8):
        A(f"v_mul_f32 v{T+3}, v{F+r}, v{T+2}\nv_fma_f32 v{T+4}, -v{T+3}, v{T+1}, v{F+r}\nv_fma_f32 v{F+r}, v{T+4}, v{T+2}, v{T+3}")
    for r in range(4): A(f"v_cvt_pk_bf16_f32 v{X+r}, v{F+2*r}, v{F+2*r+1}")
    A(f"v_add_u32 v{T}, {XN}, v{vL16}\nds_write_b128 v{T}, v[{X}:{X+3}]\ns_waitcnt lgkmcnt(0)")
    for jj in range(14): A(f"ds_read_b128 v[{XF+4*jj}:{XF+4*jj+3}], v{vXA} offset:{jj*64}")
    A("s_waitcnt vmcnt(0)")
    for jj in range(14):
        A(f"ds_read_b64_tr_b16 v[{WF+4*jj}:{WF+4*jj+1}], v{vTR} offset:{jj*1024}\nds_read_b64_tr_b16 v[{WF+4*jj+2}:{WF+4*jj+3}], v{vTR} offset:{jj*1024+128}")
    A(f"s_waitcnt lgkmcnt(0)")
    for jj in range(14):
        c="0" if jj==0 else f"v[{T}:{T+3}]"
        A(f"v_mfma_f32_16x16x32_bf16 v[{T}:{T+3}], v[{XF+4*jj}:{XF+4*jj+3}], v[{WF+4*jj}:{WF+4*jj+3}], {c}")
    A(f"s_mul_i32 s{sTAG}, s{sE}, 0x9E3779B1\ns_add_u32 s{sTAG}, s{sTAG}, 0x7F4A7C15")
    A(f"s_add_u32 s{sFF}, s{sE}, 1\ns_and_b32 s{sFF}, s{sFF}, 0xff\nv_mov_b32 v{vT8}, s{sFF}\ns_mov_b32 s{sFF}, 0xff")
    A(f"s_lshl_b32 s{sO2}, s{sCQ}, 6\ns_add_u32 s{sO2}, s{sO2}, {QBOX}\nv_lshlrev_b32 v{T+6}, 3, v7\nv_mov_b32 v{T+5}, s{sTAG}")
    A(f"v_mov_b32_dpp v{T+1}, v{T} quad_perm:[1,1,3,3] {DPP}")
    A(f"v_cvt_pk_bf16_f32 v{T+4}, v{T}, v{T+1}")
    A("s_mov_b64 exec, 0x5555")
    A(f"buffer_store_dwordx2 v[{T+4}:{T+5}], v{T+6}, s[{SRDW}:{SRDW+3}], s{sO2} offen sc1")
    A("s_mov_b64 exec, -1")
    stamp(2)
    TT1=tt(lambda a,b,t:(a^t)|(b^t)); TT2=tt(lambda a,b,c:(a|b)&c)
    def poll(loads, soff, mode, sleep):
        PM=4
        lp=lab("poll"); ld=lab("polld")
        for i,(d,vo,imm,lm) in enumerate(loads):
            if lm is None: A(f"s_mov_b64 s[{PM+2*i}:{PM+2*i+1}], -1")
            else: A(f"s_mov_b32 s{PM+2*i}, {lm&0xffffffff:#x}\ns_mov_b32 s{PM+2*i+1}, {lm>>32:#x}")
        A(f"s_mov_b32 s{sSPIN}, 0")
        A(f"{lp}:")
        for i,(d,vo,imm,lm) in enumerate(loads):
            sk=lab("sk")
            A(f"s_mov_b64 exec, s[{PM+2*i}:{PM+2*i+1}]\ns_cbranch_execz {sk}")
            A(f"buffer_load_dwordx4 v[{d}:{d+3}], v{vo}, s[{SRDW}:{SRDW+3}], s{soff} offen offset:{imm} sc1")
            A(f"{sk}:")
        A(f"s_mov_b64 exec, -1\ns_add_u32 s{sSPIN}, s{sSPIN}, 1\ns_waitcnt vmcnt(0)")
        for i,(d,vo,imm,lm) in enumerate(loads):
            if mode=='q':
                A(f"v_xor_b32 v{T+i}, s{sTAG}, v{d+1}\nv_xor_b32 v{T+4+i}, s{sTAG}, v{d+3}\nv_or_b32 v{T+i}, v{T+i}, v{T+4+i}")
            else:
                A(f"v_bitop3_b32 v{T+i}, v{d}, v{d+1}, v{vT8} bitop3:{TT1:#x}\nv_bitop3_b32 v{T+4+i}, v{d+2}, v{d+3}, v{vT8} bitop3:{TT1:#x}")
                A(f"v_bitop3_b32 v{T+i}, v{T+i}, v{T+4+i}, s{sFF} bitop3:{TT2:#x}")
        for i,(d,vo,imm,lm) in enumerate(loads):
            A(f"v_cmp_ne_u32 vcc, 0, v{T+i}\ns_and_b64 s[{PM+2*i}:{PM+2*i+1}], s[{PM+2*i}:{PM+2*i+1}], vcc")
        if len(loads)>1:
            A(f"s_or_b64 s[12:13], s[{PM}:{PM+1}], s[{PM+2}:{PM+3}]")
            for i in range(2,len(loads)): A(f"s_or_b64 s[12:13], s[12:13], s[{PM+2*i}:{PM+2*i+1}]")
        A(f"s_cbranch_scc0 {ld}")
        if sleep: A(f"s_sleep {sleep}")
        A(f"s_cmp_lt_u32 s{sSPIN}, {SPIN_LIMIT}\ns_cbranch_scc1 {lp}")
        A(f"{ld}:")
    A(f"s_lshr_b32 s{sO2}, s2, 5\ns_lshl_b32 s{sO2}, s{sO2}, 11\ns_add_u32 s{sO2}, s{sO2}, {QBOX}")
    poll([(F,vL16,0,None),(F+4,vL16,1024,None)], sO2, 'q', cfg.qsleep)
    A(f"v_lshlrev_b32 v{T}, 3, v2\nv_add_u32 v{T}, {QB}, v{T}")
    A(f"ds_write2_b32 v{T}, v{F}, v{F+2} offset0:0 offset1:1\nds_write2_b32 v{T}, v{F+4}, v{F+6} offset0:128 offset1:129")
    A("s_waitcnt lgkmcnt(0)\ns_barrier")
    stamp(3)
    A(f"s_bfe_u32 s{sB}, s2, 0x10003\ns_lshr_b32 s{sA}, s2, 4\ns_lshl_b32 s{sA}, s{sA}, 3\ns_and_b32 s{sO2}, s2, 7\ns_add_u32 s{sA}, s{sA}, s{sO2}")
    A(f"v_and_b32 v{T}, 15, v2"); masks(AM,T,T+1,T+2)
    A(f"v_lshrrev_b32 v{T+1}, 4, v2\nv_mul_u32_u24 v{vTO}, 896, v{T+1}\nv_lshl_add_u32 v{vTO}, v{T}, 4, v{vTO}")
    for r in range(8): A(f"v_mov_b32 v{PA+r}, 0")
    def tile_load(sr):
        for t in range(8):
            A(f"buffer_load_dwordx4 v[{WT+8*t}:{WT+8*t+3}], v{vTO}, s[{sr}:{sr+3}], s{sO2} offen {cfg.wnt}")
            A("s_mov_b32 exec_lo, 0x0fff0fff\ns_mov_b32 exec_hi, 0x0fff0fff")
            A(f"buffer_load_dwordx4 v[{WT+8*t+4}:{WT+8*t+7}], v{vTO}, s[{sr}:{sr+3}], s{sO2} offen offset:256 {cfg.wnt}")
            A(f"s_mov_b64 exec, -1\ns_add_u32 s{sO2}, s{sO2}, 3584")
    def project(src):
        for t in range(8):
            v,ln=src(t)
            for r in range(4): A(f"v_and_b32_dpp v{AT+4*t+r}, v{v}, v{AM+r} row_newbcast:{ln} {DPP}")
            if t>=1:
                tp=t-1
                for cb in range(2):
                    A(f"v_mfma_f32_16x16x32_bf16 v[{PA+4*cb}:{PA+4*cb+3}], v[{AT+4*tp}:{AT+4*tp+3}], v[{WT+8*tp+4*cb}:{WT+8*tp+4*cb+3}], v[{PA+4*cb}:{PA+4*cb+3}]")
        for cb in range(2):
            A(f"v_mfma_f32_16x16x32_bf16 v[{PA+4*cb}:{PA+4*cb+3}], v[{AT+28}:{AT+31}], v[{WT+56+4*cb}:{WT+56+4*cb+3}], v[{PA+4*cb}:{PA+4*cb+3}]")
    lnm=lab("nomlp")
    A(f"s_cmp_ge_u32 s2, {0 if cfg.nomlp else 112}\ns_cbranch_scc1 {lnm}")
    A(f"s_and_b32 s{sCM}, s2, 7\ns_mul_i32 s{sCM}, s{sCM}, 7\ns_lshr_b32 s{sO2}, s2, 4\ns_add_u32 s{sCM}, s{sCM}, s{sO2}")
    A(f"v_lshrrev_b32 v{T}, 2, v2\nv_mul_u32_u24 v{vWO_}, 3584, v{T}\nv_and_b32 v{T}, 3, v2\nv_lshl_add_u32 v{vWO_}, v{T}, 4, v{vWO_}")
    srd(SRDK,sW1,448*1792*2)
    srd(SRDA,sB1,3584)
    A(f"v_and_b32 v{T}, 15, v2\nv_lshlrev_b32 v{T}, 1, v{T}\ns_lshl_b32 s{sO2}, s{sCM}, 6")
    A(f"buffer_load_ushort v{F}, v{T}, s[{SRDA}:{SRDA+3}], s{sO2} offen\ns_nop 0\nbuffer_load_ushort v{F+1}, v{T}, s[{SRDA}:{SRDA+3}], s{sO2} offen offset:32")
    for ps in range(2):
        wdma(SRDK,16*3584)
        A(f"s_add_u32 s{sO2}, s{sO2}, {16*3584}\ns_waitcnt vmcnt(0)")
        for kk in range(7):
            for u in range(2):
                r=WF+8*kk+4*u
                A(f"ds_read_b64_tr_b16 v[{r}:{r+1}], v{vG1} offset:{kk*2048+u*32}\nds_read_b64_tr_b16 v[{r+2}:{r+3}], v{vG1} offset:{kk*2048+u*32+256}")
        A("s_waitcnt lgkmcnt(0)")
        for kk in range(7):
            for u in range(2):
                r=WF+8*kk+4*u; x=XF+4*(7*ps+kk)
                c="0" if (ps==0 and kk==0) else f"v[{T+4*u}:{T+4*u+3}]"
                A(f"v_mfma_f32_16x16x32_bf16 v[{T+4*u}:{T+4*u+3}], v[{x}:{x+3}], v[{r}:{r+3}], {c}")
    srd(SRDK,sW2,1792*448*2)
    A(f"s_mul_i32 s{sO2}, s{sCM}, {32*896}\ns_mul_i32 s{sSPIN}, s{sB}, 448\ns_add_u32 s{sO2}, s{sO2}, s{sSPIN}")
    tile_load(SRDK)
    k0=math.sqrt(2/math.pi)
    for u in range(2):
        h=T+4*u; t1=h+1; t2=h+2
        rbf(h,h)
        A(f"v_lshlrev_b32 v{F+u}, 16, v{F+u}\nv_add_f32 v{h}, v{h}, v{F+u}"); rbf(h,h)
        A(f"v_mul_f32 v{t1}, v{h}, v{h}\nv_mul_f32 v{t1}, v{t1}, v{h}\nv_mov_b32 v{t2}, {f2u(0.044715):#x}\nv_fma_f32 v{t1}, v{t1}, v{t2}, v{h}")
        A(f"v_mul_f32 v{t1}, {f2u(-2*k0*math.log2(math.e)):#x}, v{t1}\nv_exp_f32 v{t1}, v{t1}"); nop(1)
        A(f"v_add_f32 v{t1}, 1.0, v{t1}\nv_rcp_f32 v{t1}, v{t1}"); nop(1)
        A(f"v_mul_f32 v{h}, v{h}, v{t1}\nv_cvt_pk_bf16_f32 v{h}, v{h}, v{h}\nv_mov_b32 v{t1}, v{h}"); nop(2)
        for g in range(1,4): A(f"v_mov_b32_dpp v{t1}, v{h} row_ror:{16-g} row_mask:{1<<g:#x} bank_mask:0xf")
    A("s_waitcnt vmcnt(0)"); nop(2)
    project(lambda t:(T+4*(t>>2)+1, 4*(t&3)))
    nop(4)
    stamp('mlpdone')
    A(f"{lnm}:")
    srd(SRDK,sWO,4096*448*2)
    A(f"s_mul_i32 s{sO2}, s{sA}, {32*896}\ns_mul_i32 s{sSPIN}, s{sB}, 448\ns_add_u32 s{sO2}, s{sO2}, s{sSPIN}")
    if not cfg.nowo: tile_load(SRDK)
    FC=cfg.fc
    lnf=lab("nofin")
    FC0=256-FC
    if FC==56:
        A(f"v_lshrrev_b32 v{T}, 4, v2\nv_and_b32 v{T+1}, 1, v2\nv_lshl_add_u32 v{T}, v{T+1}, 2, v{T}\nv_lshlrev_b32 v{vG2}, 1, v{T}")
        A(f"s_sub_u32 s{sO2}, s2, {FC0}\ns_lshl_b32 s{sO2}, s{sO2}, 4")
    else:
        A(f"v_lshrrev_b32 v{T}, 4, v2\nv_lshlrev_b32 v{vG2}, 1, v{T}")
        A(f"s_sub_u32 s{sO2}, s2, {FC0}\ns_lshl_b32 s{sO2}, s{sO2}, 3")
    A(f"v_add_u32 v{vG2}, s{sO2}, v{vG2}")
    A(f"s_cmp_lt_u32 s2, {FC0}\ns_cbranch_scc1 {lnf}")
    srd(SRDA,sX,896)
    A(f"buffer_load_ushort v{vFX}, v{vG2}, s[{SRDA}:{SRDA+3}], 0 offen")
    srd(SRDK,sB2,896)
    A(f"buffer_load_ushort v{T}, v{vG2}, s[{SRDK}:{SRDK+3}], 0 offen")
    A(f"s_waitcnt vmcnt(0)\nv_lshlrev_b32 v{vFX}, 16, v{vFX}\nv_lshlrev_b32 v{T}, 16, v{T}\nv_add_f32 v{vFX}, v{vFX}, v{T}")
    A(f"{lnf}:")
    stamp('wodone')
    A("s_barrier")
    stamp(4)
    A(f"s_mov_b32 s{sCM}, {f2u(CEXP):#x}")
    A(f"v_and_b32 v{T}, 1, v2\nv_lshlrev_b32 v{T+1}, 4, v{T}\nv_add_u32 v{T+1}, {MX}, v{T+1}\nv_lshlrev_b32 v{T+2}, 5, v2\nv_add_u32 v{T+2}, {SC}, v{T+2}")
    A(f"ds_read_b128 v[{F}:{F+3}], v{T+1}")
    for w in range(4):
        A(f"ds_read_b128 v[{XF+8*w}:{XF+8*w+3}], v{T+2} offset:{w*2048}\nds_read_b128 v[{XF+8*w+4}:{XF+8*w+7}], v{T+2} offset:{w*2048+16}")
    A("s_waitcnt lgkmcnt(0)")
    A(f"v_max_f32 v{F}, v{F}, v{F+1}\nv_max3_f32 v{F}, v{F}, v{F+2}, v{F+3}\nv_mul_f32 v{F+4}, s{sCM}, v{F}\nv_sub_f32 v{F+4}, 0, v{F+4}")
    A(f"v_mov_b32 v{F+1}, 0\nv_mov_b32 v{F+5}, 0")
    for r in range(32):
        A(f"v_lshlrev_b32 v{T+3}, 16, v{XF+r}\nv_and_b32 v{T+4}, 0xffff0000, v{XF+r}")
        A(f"v_fma_f32 v{T+3}, v{T+3}, s{sCM}, v{F+4}\nv_fma_f32 v{T+4}, v{T+4}, s{sCM}, v{F+4}")
        A(f"v_exp_f32 v{T+3}, v{T+3}\nv_exp_f32 v{T+4}, v{T+4}"); nop(1)
        A(f"v_add_f32 v{F+1}, v{F+1}, v{T+3}\nv_add_f32 v{F+5}, v{F+5}, v{T+4}")
    A(f"v_add_f32 v{F+1}, v{F+1}, v{F+5}")
    rowred("v_add_f32",F+1,[2,4,8]); xrowred("v_add_f32",F+1,T+3)
    nop(2)
    A(f"v_mov_b32_dpp v{F+2}, v{F} quad_perm:[1,1,3,3] {DPP}\nv_mov_b32_dpp v{F+3}, v{F+1} quad_perm:[1,1,3,3] {DPP}")
    A(f"v_mov_b32 v{F+6}, v{F}")
    for r in range(4): A(f"v_bfi_b32 v{F+r}, s{sFF}, v{vT8}, v{F+r}")
    A(f"s_lshl_b32 s{sO2}, s2, 4\ns_add_u32 s{sO2}, s{sO2}, {MLBOX}\nv_mov_b32 v{T}, 0\ns_mov_b64 exec, 1")
    A(f"buffer_store_dwordx4 v[{F}:{F+3}], v{T}, s[{SRDW}:{SRDW+3}], s{sO2} offen sc1")
    A("s_mov_b64 exec, -1")
    I1=XF
    A(f"s_lshr_b32 s{sO2}, s2, 5\ns_lshl_b32 s{sO2}, s{sO2}, 9\ns_add_u32 s{sO2}, s{sO2}, {MLBOX}\nv_lshlrev_b32 v{vWO_}, 4, v7")
    poll([(I1,vWO_,0,None)], sO2, 't', cfg.mlsleep)
    A(f"v_and_b32 v{T}, 1, v2\nv_cmp_eq_u32 vcc, 1, v{T}"); nop(2)
    A(f"v_cndmask_b32 v{I1}, v{I1}, v{I1+2}, vcc\nv_cndmask_b32 v{I1+1}, v{I1+1}, v{I1+3}, vcc\nv_and_b32 v{I1}, 0xffff0000, v{I1}\nv_mov_b32 v{T+1}, v{I1}")
    rowred("v_max_f32",T+1,[2,4,8]); xrowred("v_max_f32",T+1,T+2)
    A(f"v_sub_f32 v{T+2}, v{I1}, v{T+1}\nv_sub_f32 v{T+3}, v{F+6}, v{T+1}\nv_mul_f32 v{T+2}, s{sCM}, v{T+2}\nv_mul_f32 v{T+3}, s{sCM}, v{T+3}")
    A(f"v_exp_f32 v{T+2}, v{T+2}\nv_exp_f32 v{T+3}, v{T+3}"); nop(1)
    A(f"v_mul_f32 v{T+2}, v{T+2}, v{I1+1}")
    rowred("v_add_f32",T+2,[2,4,8]); xrowred("v_add_f32",T+2,T+4)
    A(f"v_rcp_f32 v{T+4}, v{T+2}"); nop(1)
    A(f"v_fma_f32 v{T+5}, -v{T+2}, v{T+4}, 1.0\nv_fma_f32 v{T+4}, v{T+5}, v{T+4}, v{T+4}\nv_mul_f32 v{T+3}, v{T+3}, v{T+4}")
    A(f"v_lshlrev_b32 v{T}, 2, v{T}\nv_add_u32 v{T}, {FB}, v{T}\nds_write_b32 v{T}, v{T+3}")
    A(f"v_bfe_u32 v{T}, v2, 3, 2\nv_lshlrev_b32 v{T}, 14, v{T}\nv_lshrrev_b32 v{T+1}, 5, v2\nv_lshl_add_u32 v{T}, v{T+1}, 11, v{T}\nv_and_b32 v{T+1}, 7, v2\nv_lshl_add_u32 v{vG1}, v{T+1}, 4, v{T}")
    for k in range(1,4): A(f"v_add_u32 v{X+k}, {k*4096}, v{vG1}")
    A(f"s_lshr_b32 s{sO2}, s2, 5\ns_lshl_b32 s{sO2}, s{sO2}, 16\ns_and_b32 s{sSPIN}, s{sA}, 15\ns_lshl_b32 s{sSPIN}, s{sSPIN}, 7\ns_add_u32 s{sO2}, s{sO2}, s{sSPIN}\ns_add_u32 s{sO2}, s{sO2}, {OBOX}")
    A(f"v_lshrrev_b32 v{T}, 5, v2\nv_lshlrev_b32 v{T}, 9, v{T}\nv_and_b32 v{T+1}, 15, v2\nv_lshl_add_u32 v{T}, v{T+1}, 5, v{T}\nv_bfe_u32 v{T+1}, v2, 4, 1\nv_lshl_add_u32 v{vPS}, v{T+1}, 4, v{T}")
    A(f"s_lshl_b32 s{sCQ}, s{sB}, 7\ns_add_u32 s{sCQ}, s{sCQ}, s{sA}\ns_lshl_b32 s{sCQ}, s{sCQ}, 10\ns_add_u32 s{sCQ}, s{sCQ}, {PBOX}")
    A("s_waitcnt vmcnt(0) lgkmcnt(0)\ns_barrier")
    stamp(5)
    if cfg.notail: A(f"s_branch {lend}")
    poll([(I1,vG1,0,None),(I1+4,X+1,0,None),(I1+8,X+2,0,None),(I1+12,X+3,0,None)], sO2, 't', cfg.sleep1)
    stamp(6)
    for r in range(4): A(f"v_add_f32 v{I1+r}, v{I1+r}, v{I1+4+r}\nv_add_f32 v{I1+8+r}, v{I1+8+r}, v{I1+12+r}")
    for r in range(4): A(f"v_add_f32 v{I1+r}, v{I1+r}, v{I1+8+r}")
    tred4(I1); rowred("v_add_f32",I1,[8])
    A(f"v_cvt_pk_bf16_f32 v{I1}, v{I1}, v{I1}"); nop(2)
    project(lambda t:(I1,t))
    nop(8)
    for r in range(4): A(f"v_permlane32_swap_b32 v{PA+r}, v{PA+4+r}")
    for r in range(4): A(f"v_bfi_b32 v{PA+r}, s{sFF}, v{vT8}, v{PA+r}")
    A("s_mov_b32 exec_hi, 0x0fff0fff")
    A(f"buffer_store_dwordx4 v[{PA}:{PA+3}], v{vPS}, s[{SRDW}:{SRDW+3}], s{sCQ} offen sc1")
    A("s_mov_b32 exec_hi, -1")
    A(f"s_cmp_lt_u32 s2, {FC0}\ns_cbranch_scc1 {lend}")
    srd(SRDA,sOUT,896)
    half=FC//2
    A(f"s_sub_u32 s{sSPIN}, s2, {FC0}\ns_cmp_ge_u32 s{sSPIN}, {half}\ns_cselect_b32 s{sO2}, {128*1024-896}, 0\ns_mul_i32 s{sSPIN}, s{sSPIN}, {1792//FC}\ns_add_u32 s{sO2}, s{sO2}, s{sSPIN}\ns_add_u32 s{sO2}, s{sO2}, {PBOX}")
    if FC==56:
        A(f"v_lshlrev_b32 v{X}, 10, v7\nv_and_b32 v{T}, 1, v2\nv_lshl_add_u32 v{X}, v{T}, 4, v{X}")
        for k in range(1,4): A(f"v_add_u32 v{X+k}, {k*32768}, v{X}")
        poll([(I1+4*k,X+k,0,None) for k in range(4)], sO2, 't', cfg.sleep2)
        for r in range(4): A(f"v_add_f32 v{I1+r}, v{I1+r}, v{I1+4+r}\nv_add_f32 v{I1+8+r}, v{I1+8+r}, v{I1+12+r}")
        for r in range(4): A(f"v_add_f32 v{I1+r}, v{I1+r}, v{I1+8+r}")
        tred4(I1); rowred("v_add_f32",I1,[2,4,8])
        em=0x00030003
    else:
        A(f"v_lshlrev_b32 v{X}, 10, v2\nv_add_u32 v{X+1}, 0x10000, v{X}")
        poll([(I1+4*k,X+k,0,None) for k in range(2)], sO2, 't', cfg.sleep2)
        for r in range(4): A(f"v_add_f32 v{I1+r}, v{I1+r}, v{I1+4+r}")
        tred4(I1); rowred("v_add_f32",I1,[1,2,4,8])
        em=0x00010001
    A(f"v_add_f32 v{I1}, v{vFX}, v{I1}\nv_cvt_pk_bf16_f32 v{I1}, v{I1}, v{I1}")
    A(f"s_mov_b32 exec_lo, {em:#x}\ns_mov_b32 exec_hi, {em:#x}")
    A(f"buffer_store_short v{I1}, v{vG2}, s[{SRDA}:{SRDA+3}], 0 offen")
    A(f"s_cmp_lg_u32 s2, 255\ns_cbranch_scc1 {lend}")
    A(f"s_mov_b64 exec, 1\ns_add_u32 s{sE}, s{sE}, 1\nv_mov_b32 v{T+1}, s{sE}\nv_mov_b32 v{T+2}, 0")
    A(f"buffer_store_dword v{T+1}, v{T+2}, s[{SRDW}:{SRDW+3}], 0 offen sc1")
    A(f"{lend}:")
    if cfg.stamps and cfg.dbgout:
        A(f"s_cmp_lt_u32 s2, 252\ns_cbranch_scc1 {Ldone}")
        A("s_mov_b64 exec, 1\ns_waitcnt vmcnt(0)")
        stamp(1)
        srd(SRDA,sDBG,256)
        A(f"s_waitcnt lgkmcnt(0)\ns_sub_u32 s{sO2}, s2, 252\ns_lshl_b32 s{sO2}, s{sO2}, 4\nv_mov_b32 v{T}, 0")
        for i,k in enumerate((3,4,5,1)):
            A(f"s_sub_u32 s4, s{80+2*k}, s80\nv_mov_b32 v{F+i}, s4")
        A(f"buffer_store_dwordx4 v[{F}:{F+3}], v{T}, s[{SRDA}:{SRDA+3}], s{sO2} offen")
    elif cfg.stamps:
        A("s_mov_b64 exec, 1\ns_waitcnt vmcnt(0)")
        stamp(1)
        A("s_getreg_b32 s94, hwreg(HW_REG_XCC_ID)\ns_mov_b32 s95, 0\ns_waitcnt lgkmcnt(0)")
        A(f"s_lshl_b32 s{sO2}, s2, 6\ns_add_u32 s{sO2}, s{sO2}, {STAMP:#x}\nv_mov_b32 v{T}, 0")
        for k in range(8):
            A(f"v_mov_b32 v{F}, s{80+2*k}\nv_mov_b32 v{F+1}, s{81+2*k}\nbuffer_store_dwordx2 v[{F}:{F+1}], v{T}, s[{SRDW}:{SRDW+3}], s{sO2} offen offset:{8*k}\ns_nop 1")
    A(f"{Ldone}:")
    A("s_endpgm")
    body="\n".join(L)+"\n"
    kd=f""".section .rodata,"a"
.p2align 6
.amdhsa_kernel {N}
  .amdhsa_next_free_vgpr 232
  .amdhsa_next_free_sgpr 96
  .amdhsa_accum_offset 232
  .amdhsa_group_segment_fixed_size 0
  .amdhsa_kernarg_size 104
  .amdhsa_user_sgpr_count 2
  .amdhsa_user_sgpr_kernarg_segment_ptr 1
  .amdhsa_system_sgpr_workgroup_id_x 1
  .amdhsa_float_denorm_mode_32 3
.end_amdhsa_kernel
"""
    return body, kd

def header():
    ref=open('parallel_sum__gqa_block_cached__dense_activation_gelu__decode.s.ref').read().split("\n")
    out=[]
    for l in ref:
        if l.startswith("; @launch"):
            out.append(f"; @launch grid=(256,1,1) block=(320,1,1) lds={LDS_END}")
            break
        out.append(l)
    return "\n".join(out)+"\n"

def final(cfg, path):
    body,kd=gen(cfg)
    open(path,"w").write(header()+'.amdgcn_target "amdgcn-amd-amdhsa--gfx950"\n.text\n'+body+kd)

def bench(cfgs, path):
    sys.path.insert(0,'bench')
    from genstream import meta
    s='.amdgcn_target "amdgcn-amd-amdhsa--gfx950"\n'
    ks=[]; args=[]
    for c in cfgs:
        body,kd=gen(c)
        s+=".text\n"+body+kd.replace("kernarg_size 104","kernarg_size 112")
        ks.append((c.name,232,320)); args.append(f"{c.name} 256 320 {LDS_END}")
    s+=meta(ks)
    open(path+".s","w").write(s); open(path+".args","w").write(" @ ".join(args))

def mk(name, **kw):
    c=Cfg(); c.name=name
    for k,v in kw.items():
        assert hasattr(c,k), k
        setattr(c,k,v)
    return c

if __name__=="__main__":
    if sys.argv[1]=="final":
        kw=eval(sys.argv[3]) if len(sys.argv)>3 else {}
        final(mk(KNAME,**kw), sys.argv[2])
    else:
        bench([mk(n,**kw) for n,kw in eval(sys.argv[3])], sys.argv[2])
```

```python
import sys, struct, math

KNAME = "parallel_sum__gqa_block_cached__dense_activation_gelu__decode_kernel"
def f2u(f): return struct.unpack('<I', struct.pack('<f', f))[0]

class Cfg:
    name = KNAME
    rot = 0
    pace = 6
    infl = 6
    stamps = False
    smap = {}
    wnt = "nt"
    qsleep = 0
    sleep1 = 2
    sleep2 = 0
    mlsleep = 32
    fc = 56
    nomlp = False
    notail = False
    auxnull = False
    nowo = False
    pool = True
    pinfl = 8
    pclaim = 4
    fb = None
    qgate = None
    cnt = 'nt'
    noml = False
    noopub = False
    mimic = True
    fast1 = 0
    fast2 = 0
    fthr = 64
    vpre = True
    agate = 1
    gran = 1
    thr = None
    dbgout = False

RING=0; SC=131072; WBUF=SC+8192; XN=WBUF+14336; QB=XN+1024; MX=QB+1024; FB=MX+64; LV=FB+32; RDY=FB+36; LDS_END=FB+64
QBOX=0x1000; MLBOX=0x8000; OBOX=0x10000; PBOX=0x100000; MBOX=0x180000; SBOX=0x200000; CNT=0x280000; CSTR=4352; STAMP=0x20000000
SPIN_LIMIT = 1<<16
CEXP = 0.0625*math.log2(math.e)

def tt(f):
    r=0
    for idx in range(8):
        if f((idx>>2)&1,(idx>>1)&1,idx&1): r|=1<<idx
    return r

def gen(cfg):
    L=[]
    def A(s):
        for line in s.split("\n"):
            t=line.strip()
            L.append(t if t.endswith(":") else "    "+t)
    N=cfg.name
    pre = "L" if N==KNAME else f"L_{N}"
    uid=[0]
    def lab(p):
        uid[0]+=1; return f"{pre}_{p}{uid[0]}"
    def nop(n):
        if n>0: A(f"s_nop {n-1}")
    sX,sK,sV,sWQ,sWO,sW1,sB1=16,18,20,22,24,28,30
    sW2,sB2,sOUT,sDBG,sWS=32,34,36,38,40
    SRDK,SRDV,SRDA,SRDW=44,48,52,56
    sWAVE=3
    def srd(d, p, size):
        A(f"s_mov_b32 s{d}, s{p}\ns_mov_b32 s{d+1}, s{p+1}\ns_mov_b32 s{d+2}, {size:#x}\ns_mov_b32 s{d+3}, 0x20000")
    def stamp(k):
        if cfg.stamps:
            if isinstance(k,str):
                if k not in cfg.smap: return
                k=cfg.smap[k]
            elif k in cfg.smap.values(): return
            A(f"s_memrealtime s[{80+2*k}:{81+2*k}]")
    DPP="row_mask:0xf bank_mask:0xf"
    def rowred(op, v, rors):
        for r in rors:
            nop(2); A(f"{op}_dpp v{v}, v{v}, v{v} row_ror:{r} {DPP}")
    def xrowred(op, v, t):
        A(f"v_mov_b32 v{t}, v{v}"); nop(2); A(f"v_permlane16_swap_b32 v{v}, v{t}"); A(f"{op} v{v}, v{v}, v{t}")
        A(f"v_mov_b32 v{t}, v{v}"); nop(2); A(f"v_permlane32_swap_b32 v{v}, v{t}"); A(f"{op} v{v}, v{v}, v{t}")
    def tred4(a):
        nop(2)
        A(f"v_permlane32_swap_b32 v{a}, v{a+2}\nv_permlane32_swap_b32 v{a+1}, v{a+3}")
        A(f"v_add_f32 v{a}, v{a}, v{a+2}\nv_add_f32 v{a+1}, v{a+1}, v{a+3}")
        nop(2)
        A(f"v_permlane16_swap_b32 v{a}, v{a+1}")
        A(f"v_add_f32 v{a}, v{a}, v{a+1}")
    def rbf(d, s):
        A(f"v_cvt_pk_bf16_f32 v{d}, v{s}, v{s}\nv_and_b32 v{d}, 0xffff0000, v{d}")
    def masks(dst, n, t0, t1):
        A(f"v_and_b32 v{t0}, 1, v{n}\nv_lshlrev_b32 v{t0}, 4, v{t0}\nv_mov_b32 v{t1}, 0xffff\nv_lshlrev_b32 v{t1}, v{t0}, v{t1}\nv_bfe_u32 v{t0}, v{n}, 1, 2")
        for r in range(4):
            A(f"v_cmp_eq_u32 vcc, {r}, v{t0}"); nop(2); A(f"v_cndmask_b32 v{dst+r}, 0, v{t1}, vcc")

    Ldone=f"{pre}_done"; Laux=f"{pre}_aux"
    A(f".globl {N}\n.p2align 8\n.type {N},@function\n{N}:")
    A(f"s_cmp_ge_u32 s2, 256\ns_cbranch_scc1 {Ldone}")
    A("s_load_dwordx16 s[16:31], s[0:1], 0\ns_load_dwordx8 s[32:39], s[0:1], 64\ns_load_dwordx2 s[40:41], s[0:1], 96")
    stamp(0)
    A("v_lshrrev_b32 v1, 6, v0\nv_and_b32 v2, 63, v0")
    nop(1)
    A(f"v_readfirstlane_b32 s{sWAVE}, v1")
    A(f"s_cmp_eq_u32 s{sWAVE}, 4\ns_cbranch_scc1 {Laux}")

    vKO=8; vVO=16; vKA=18; vVA=22; vSA=23; vMASK=24; vMAX=28; vTG=29; vNM=30; vT=31
    QF=32; TF=64; D=96; S2=100; VP=104
    AR=32; ACC=48; P=56; vVP=7
    sRING,sREG,sNEXT,sOFF,sCNT,sC,sT8,sFF,sV0,sLV,sCL,sY,sSCO=60,61,62,63,64,65,66,67,68,69,70,71,72
    sPC=76
    A("v_lshrrev_b32 v3, 5, v2\nv_and_b32 v4, 31, v2\nv_lshlrev_b32 v5, 2, v3\nv_xor_b32 v4, v4, v5\nv_lshlrev_b32 v4, 4, v4\nv_lshl_add_u32 v4, v3, 9, v4")
    for j in range(8):
        c=(8*(j&1)+(j>>1))*16 | (4096 if j>=4 else 0)
        A(f"v_xor_b32 v{vKO+j}, {c:#x}, v4")
    A(f"s_lshl_b32 s{sRING}, s{sWAVE}, 15\ns_lshl_b32 s{sREG}, s2, 20")
    A(f"s_mul_i32 s{sNEXT}, s2, {cfg.rot*32768}\ns_lshl_b32 s{sOFF}, s{sWAVE}, 13\ns_add_u32 s{sNEXT}, s{sNEXT}, s{sOFF}\ns_and_b32 s{sNEXT}, s{sNEXT}, 0xfffff")
    A("s_waitcnt lgkmcnt(0)")
    srd(SRDK,sK,1<<28)
    def issue_half(slot, isK, half, gate=None):
        if half==0: A(f"s_or_b32 s{sOFF}, s{sREG}, s{sNEXT}")
        A(f"s_add_u32 m0, s{sRING}, {slot*8192+half*4096}")
        if half==0: A(f"s_add_u32 s{sNEXT}, s{sNEXT}, 32768")
        else: A(f"s_and_b32 s{sNEXT}, s{sNEXT}, 0xfffff")
        for jj in range(4):
            j=half*4+jj
            vo = vKO+j if isK else vVO+half
            sr = SRDK if isK else SRDV
            if gate is not None and cfg.fb is not None and gate=='fb':
                th,lv,df=cfg.fb
                go=lab("go")
                w=[l[jj&1] for l in lv]
                A(f"s_waitcnt vmcnt({w[-1]-1})")
                cur=w[-1]
                for k in range(len(w)-2,-1,-1):
                    if w[k]<cur:
                        A(f"s_cmp_gt_u32 s{sLV}, {k}\ns_cbranch_scc1 {go}\ns_waitcnt vmcnt({w[k]-1})"); cur=w[k]
                A(f"{go}:")
            elif gate is not None and jj%cfg.gran==0:
                A(f"s_waitcnt vmcnt({gate-cfg.gran})")
            elif jj: A(f"s_add_u32 m0, s{sRING}, {slot*8192+half*4096}\ns_nop 0")
            A(f"buffer_load_dwordx4 v{vo}, s[{sr}:{sr+3}], s{sOFF} offen offset:{jj*1024} nt lds")
    def gissue(slot,isK):
        for half in range(2): issue_half(slot,isK,half,'fb' if (cfg.fb and not isK) else (cfg.infl if cfg.infl<32 else None))
    vFL=102; vFA=103
    def fb_pre(slot):
        if cfg.fb and slot in (1,3): A(f"ds_read_b32 v{vFL}, v{vFA}")
    def fb_post(slot):
        if cfg.fb and slot in (1,3): A(f"v_readfirstlane_b32 s{sLV}, v{vFL}")
    issue_half(0,True,0); issue_half(0,True,1)
    srd(SRDV,sV,1<<28)
    A(f"s_load_dword s{sT8}, s[{sWS}:{sWS+1}], 0")
    A(f"v_lshlrev_b32 v{vVO}, 4, v2\nv_add_u32 v{vVO+1}, 0x1000, v{vVO}")
    A("v_lshrrev_b32 v3, 4, v2\nv_and_b32 v4, 15, v2")
    A("v_and_b32 v5, 3, v4\nv_lshlrev_b32 v5, 2, v5\nv_lshrrev_b32 v6, 2, v4\nv_add_u32 v5, v5, v6")
    A(f"v_xor_b32 v6, v3, v4\nv_lshlrev_b32 v6, 4, v6\nv_lshl_add_u32 v6, v5, 9, v6\nv_add_u32 v6, s{sRING}, v6")
    for q in range(4): A(f"v_xor_b32 v{vKA+q}, {q*64}, v6")
    A(f"v_lshlrev_b32 v6, 4, v4\nv_lshl_add_u32 v6, v3, 9, v6\nv_add_u32 v{vVA}, s{sRING}, v6")
    A(f"s_lshl_b32 s{sCNT}, s{sWAVE}, 11\ns_add_u32 s{sCNT}, s{sCNT}, {SC}")
    A(f"v_lshrrev_b32 v5, 3, v4\nv_lshlrev_b32 v6, 5, v5\nv_lshl_add_u32 v6, v3, 3, v6\nv_add_u32 v{vSA}, s{sCNT}, v6")
    A(f"v_lshlrev_b32 v7, 9, v5\nv_lshl_add_u32 v7, v3, 4, v7\nv_add_u32 v7, {QB}, v7")
    masks(vMASK,4,5,6)
    A(f"v_mov_b32 v{vMAX}, 0xff800000")
    A(f"v_subrev_u32 v{vT}, s{sRING}, v{vVA}\nv_add_u32 v1, 0x1000, v{vT}")
    A(f"s_mov_b32 s{sV0}, s{sOFF}")
    for slot in range(1,4):
        for half in range(2):
            issue_half(slot,True,half,cfg.pace)
    if cfg.vpre:
        for i in range(4):
            for u in range(8):
                o=(u>>1)*2048+(u&1)*256
                vo = vT if o<4096 else 1
                A(f"s_waitcnt vmcnt({cfg.pace-1})")
                A(f"buffer_load_dwordx4 v[{VP+32*i+4*u}:{VP+32*i+4*u+3}], v{vo}, s[{SRDV}:{SRDV+3}], s{sV0} offen offset:{o&4095} nt")
            A(f"s_add_u32 s{sV0}, s{sV0}, 32768\ns_and_b32 s{sV0}, s{sV0}, 0xfffff\ns_or_b32 s{sV0}, s{sV0}, s{sREG}")
    A(f"s_waitcnt lgkmcnt(0)\ns_add_u32 s{sT8}, s{sT8}, 1\ns_and_b32 s{sT8}, s{sT8}, 0xff\ns_mov_b32 s{sFF}, 0xff\nv_mov_b32 v{vTG}, s{sT8}")
    srd(SRDW,sWS,1<<30)
    if cfg.fb:
        A(f"s_mov_b32 s{sLV}, {cfg.fb[2]}\nv_mov_b32 v{vFA}, {LV}\nv_mov_b32 v{vFL}, {cfg.fb[2]}\nds_write_b32 v{vFA}, v{vFL}\ns_waitcnt lgkmcnt(0)")
    A("s_barrier")
    for jj in range(8): A(f"ds_read_b128 v[{QF+4*jj}:{QF+4*jj+3}], v7 offset:{jj*64}")

    def ktile(slot, nextK):
        A("s_waitcnt vmcnt(24)")
        for jj in range(8):
            A(f"ds_read_b128 v[{TF+4*jj}:{TF+4*jj+3}], v{vKA+(jj&3)} offset:{slot*8192+(jj>>2)*256}")
        A("s_waitcnt lgkmcnt(0)")
        for jj in range(8):
            c = "0" if jj==0 else f"v[{D}:{D+3}]"
            A(f"v_mfma_f32_16x16x32_bf16 v[{D}:{D+3}], v[{TF+4*jj}:{TF+4*jj+3}], v[{QF+4*jj}:{QF+4*jj+3}], {c}")
        nop(8)
        A(f"v_cvt_pk_bf16_f32 v{S2}, v{D}, v{D+1}\nv_cvt_pk_bf16_f32 v{S2+1}, v{D+2}, v{D+3}")
        A(f"v_max3_f32 v{vMAX}, v{vMAX}, v{D}, v{D+1}\nv_max3_f32 v{vMAX}, v{vMAX}, v{D+2}, v{D+3}")
        A(f"ds_write_b64 v{vSA}, v[{S2}:{S2+1}] offset:{slot*64}")
        gissue(slot,nextK)
    def vtile(slot, issue_next, waitn, scoff=None, regs=None, pooled=False, smem=False):
        if issue_next==True: fb_pre(slot)
        if pooled: A(f"v_add_u32 v{vT}, s{sSCO+slot}, v{vSA}\nds_read_b64 v[{S2}:{S2+1}], v{vT}")
        else: A(f"ds_read_b64 v[{S2}:{S2+1}], v{vSA} offset:{slot*64 if scoff is None else scoff}")
        A("s_waitcnt lgkmcnt(0)")
        if issue_next==True: fb_post(slot)
        A(f"v_lshlrev_b32 v{P}, 16, v{S2}\nv_and_b32 v{P+1}, 0xffff0000, v{S2}\nv_lshlrev_b32 v{P+2}, 16, v{S2+1}\nv_and_b32 v{P+3}, 0xffff0000, v{S2+1}")
        for t in range(4): A(f"v_fma_f32 v{P+t}, v{P+t}, s{sC}, v{vNM}")
        for t in range(4): A(f"v_exp_f32 v{P+t}, v{P+t}")
        nop(1)
        for t in range(4): A(f"v_cvt_pk_bf16_f32 v{P+t}, v{P+t}, v{P+t}")
        for t in range(4):
            for r in range(4): A(f"v_and_b32 v{AR+4*t+r}, v{P+t}, v{vMASK+r}")
        src=TF if regs is None else regs
        if regs is None:
            if waitn=='y':
                go=lab("wy")
                A("s_waitcnt vmcnt(24)")
                for y in (3,2,1): A(f"s_cmp_ge_i32 s{sY}, {y}\ns_cbranch_scc1 {go}\ns_waitcnt vmcnt({8*(y-1)})")
                A(f"{go}:")
            else: A(f"s_waitcnt vmcnt({waitn})")
            for u in range(8):
                A(f"ds_read_b128 v[{TF+4*u}:{TF+4*u+3}], v{vVA} offset:{slot*8192+(u>>1)*2048+(u&1)*256}")
        else: nop(2)
        for u in range(8):
            t=u>>1; h=u&1
            if regs is None: A(f"s_waitcnt lgkmcnt({7-u})")
            A(f"v_mfma_f32_16x16x32_bf16 v[{ACC+4*h}:{ACC+4*h+3}], v[{AR+4*t}:{AR+4*t+3}], v[{src+4*u}:{src+4*u+3}], v[{ACC+4*h}:{ACC+4*h+3}]")
        if issue_next=='pool': pool_issue(slot)
        elif issue_next=='claim':
            g='fb' if cfg.fb else cfg.infl
            issue_half(slot,False,0,g); claim(); issue_half(slot,False,1,g)
        elif issue_next: gissue(slot,False)
    def claim():
        A(f"s_mov_b32 s{sCL}, 1\ns_atomic_add s{sCL}, s[{sPC}:{sPC+1}], 0 glc")
    def pool_issue(slot):
        sk=lab("pn"); dn=lab("pd")
        A(f"s_waitcnt lgkmcnt(0)\ns_cmp_ge_u32 s{sCL}, 32\ns_cbranch_scc1 {sk}")
        A(f"s_and_b32 s4, s{sCL}, 7\ns_lshr_b32 s5, s{sCL}, 3\ns_lshl_b32 s{sOFF}, s4, 20\ns_lshl_b32 s6, s5, 15\ns_add_u32 s{sOFF}, s{sOFF}, s6\ns_add_u32 s{sOFF}, s{sOFF}, s{sV0}")
        A(f"s_lshl_b32 s4, s4, 10\ns_lshl_b32 s5, s5, 8\ns_add_u32 s{sSCO+slot}, s4, s5")
        for j in range(8):
            half=j>>2; jj=j&3
            if j==cfg.pclaim: claim()
            A(f"s_add_u32 m0, s{sRING}, {slot*8192+half*4096}\ns_waitcnt vmcnt({cfg.pinfl-1})")
            A(f"buffer_load_dwordx4 v{vVO+half}, s[{SRDV}:{SRDV+3}], s{sOFF} offen offset:{jj*1024} nt lds")
        A(f"s_branch {dn}\n{sk}:\ns_mov_b32 s{sSCO+slot}, -1\ns_sub_u32 s{sY}, s{sY}, 1\n{dn}:")

    lk=lab("kloop")
    A(f"s_mov_b32 s{sCNT}, 7")
    A(f"{lk}:")
    for s in range(4): ktile(s,True)
    A(f"v_add_u32 v{vSA}, 256, v{vSA}")
    A(f"s_sub_u32 s{sCNT}, s{sCNT}, 1\ns_cmp_lg_u32 s{sCNT}, 0\ns_cbranch_scc1 {lk}")
    if cfg.vpre: A(f"s_add_u32 s{sNEXT}, s{sNEXT}, {4*32768}\ns_and_b32 s{sNEXT}, s{sNEXT}, 0xfffff")
    for s in range(4): ktile(s,False)
    A(f"v_subrev_u32 v{vSA}, {7*256}, v{vSA}")
    for r in range(8): A(f"v_mov_b32 v{ACC+r}, 0")
    xrowred("v_max_f32", vMAX, vT)
    rbf(vMAX,vMAX)
    A(f"v_bfe_u32 v3, v2, 3, 1\nv_lshlrev_b32 v3, 4, v3\nv_add_u32 v3, {MX}, v3")
    A(f"s_lshl_b32 s{sCNT}, s{sWAVE}, 2\nv_add_u32 v4, s{sCNT}, v3")
    A(f"ds_write_b32 v4, v{vMAX}\ns_waitcnt lgkmcnt(0)\ns_barrier")
    A(f"ds_read_b128 v[{D}:{D+3}], v3\ns_mov_b32 s{sC}, {f2u(CEXP):#x}\ns_waitcnt lgkmcnt(0)")
    A(f"v_max_f32 v{vMAX}, v{D}, v{D+1}\nv_max3_f32 v{vMAX}, v{vMAX}, v{D+2}, v{D+3}")
    A(f"v_mul_f32 v{vNM}, s{sC}, v{vMAX}\nv_sub_f32 v{vNM}, 0, v{vNM}")
    A("v_lshrrev_b32 v6, 5, v2\nv_lshlrev_b32 v6, 10, v6\nv_and_b32 v5, 15, v2\nv_lshl_add_u32 v6, v5, 5, v6\nv_bfe_u32 v5, v2, 4, 1\nv_lshl_add_u32 v6, v5, 4, v6")
    A(f"v_add_u32 v6, s{sRING}, v6")
    A(f"s_lshl_b32 s{sCNT}, s{sWAVE}, 9\nv_lshlrev_b32 v4, 3, v2\nv_add_u32 v4, s{sCNT}, v4\nv_add_u32 v5, 0x10000, v4")
    A(f"s_lshr_b32 s{sCNT}, s{sWAVE}, 1\ns_lshl_b32 s{sCNT}, s{sCNT}, 2\ns_add_u32 s{sCNT}, s{sCNT}, {FB}\nv_mov_b32 v3, s{sCNT}")
    lv=lab("vloop")
    if cfg.vpre:
        for s in range(4):
            vtile(s,True,24,scoff=256+s*64)
            vtile(s,False,0,scoff=s*64,regs=VP+32*s)
        A(f"v_add_u32 v{vSA}, 512, v{vSA}")
    assert cfg.vpre and (cfg.rot==0 or not cfg.pool)
    A(f"s_mov_b32 s{sCNT}, {3 if cfg.pool else 5}")
    A(f"{lv}:")
    for s in range(4): vtile(s,True,24)
    A(f"v_add_u32 v{vSA}, 256, v{vSA}")
    A(f"s_sub_u32 s{sCNT}, s{sCNT}, 1\ns_cmp_lg_u32 s{sCNT}, 0\ns_cbranch_scc1 {lv}")
    if cfg.pool:
        for s in range(3): vtile(s,True,24)
        lw=lab("rw"); lwd=lab("rwd")
        A(f"v_mov_b32 v{vT}, {RDY}\ns_mov_b32 s{sCNT}, 0")
        A(f"{lw}:\nds_read_b32 v{D}, v{vT}\ns_add_u32 s{sCNT}, s{sCNT}, 1\ns_waitcnt lgkmcnt(0)\nv_readfirstlane_b32 s4, v{D}\ns_cmp_lg_u32 s4, 0\ns_cbranch_scc1 {lwd}")
        A(f"s_sleep 4\ns_cmp_lt_u32 s{sCNT}, {SPIN_LIMIT*16}\ns_cbranch_scc1 {lw}\n{lwd}:")
        A(f"s_lshr_b32 s4, s2, 3\ns_lshl_b32 s5, s4, 2\ns_add_u32 s5, s5, s{sWAVE}\ns_mul_i32 s5, s5, {CSTR}\ns_add_u32 s5, s5, {CNT}\ns_add_u32 s{sPC}, s{sWS}, s5\ns_addc_u32 s{sPC+1}, s{sWS+1}, 0")
        A(f"s_lshl_b32 s{sV0}, s4, 23\ns_lshl_b32 s5, s{sWAVE}, 13\ns_add_u32 s{sV0}, s{sV0}, s5\ns_add_u32 s{sV0}, s{sV0}, {28*32768}\ns_mov_b32 s{sY}, 3")
        vtile(3,'claim',24)
        A(f"v_add_u32 v{vSA}, 256, v{vSA}")
        for s in range(4): vtile(s,'pool','y')
        A(f"v_lshrrev_b32 v{vT}, 5, v2\nv_lshlrev_b32 v{vT}, 2, v{vT}\nv_add_u32 v{vT}, {FB+8}, v{vT}\nds_read_b32 v{D}, v{vT}")
        A(f"v_bfe_u32 v{vT}, v2, 3, 1\nv_lshlrev_b32 v{vSA}, 5, v{vT}\nv_lshlrev_b32 v{vT}, 2, v{vT}\nv_add_u32 v{vT}, {FB+16}, v{vT}\nds_read_b32 v{vNM}, v{vT}")
        A(f"v_lshrrev_b32 v{vT}, 4, v2\nv_lshl_add_u32 v{vSA}, v{vT}, 3, v{vSA}\ns_lshl_b32 s4, s{sWAVE}, 6\ns_add_u32 s4, s4, {WBUF}\nv_add_u32 v{vSA}, s4, v{vSA}")
        A("s_waitcnt lgkmcnt(0)")
        for r in range(8): A(f"v_mul_f32 v{ACC+r}, v{ACC+r}, v{D}")
        lp=lab("ploop"); le=lab("pend")
        A(f"{lp}:")
        for s in range(4):
            A(f"s_cmp_eq_u32 s{sSCO+s}, -1\ns_cbranch_scc1 {le}")
            vtile(s,'pool','y',pooled=True)
        A(f"s_branch {lp}\n{le}:")
        A(f"s_lshl_b32 s{sOFF}, s2, 11\ns_add_u32 s{sOFF}, s{sOFF}, {OBOX}")
    else:
        A(f"s_lshl_b32 s{sOFF}, s2, 11\ns_add_u32 s{sOFF}, s{sOFF}, {OBOX}")
        for s in range(4): vtile(s,False,24-8*s)
    nop(7)
    A(f"ds_write_b128 v6, v[{ACC}:{ACC+3}]\nds_write_b128 v6, v[{ACC+4}:{ACC+7}] offset:512")
    A("s_waitcnt lgkmcnt(0)\ns_barrier")
    A(f"ds_read_b64 v[{TF}:{TF+1}], v4\nds_read_b64 v[{TF+2}:{TF+3}], v4 offset:32768\nds_read_b64 v[{TF+4}:{TF+5}], v5\nds_read_b64 v[{TF+6}:{TF+7}], v5 offset:32768\nds_read_b32 v{TF+8}, v3")
    A("s_waitcnt lgkmcnt(3)")
    A(f"v_add_f32 v{TF}, v{TF}, v{TF+2}\nv_add_f32 v{TF+1}, v{TF+1}, v{TF+3}")
    A("s_waitcnt lgkmcnt(1)")
    A(f"v_add_f32 v{TF+4}, v{TF+4}, v{TF+6}\nv_add_f32 v{TF+5}, v{TF+5}, v{TF+7}\nv_add_f32 v{TF}, v{TF}, v{TF+4}\nv_add_f32 v{TF+1}, v{TF+1}, v{TF+5}")
    A("s_waitcnt lgkmcnt(0)")
    A(f"v_mul_f32 v{TF}, v{TF}, v{TF+8}\nv_mul_f32 v{TF+1}, v{TF+1}, v{TF+8}")
    A(f"v_bfi_b32 v{TF}, s{sFF}, v{vTG}, v{TF}\nv_bfi_b32 v{TF+1}, s{sFF}, v{vTG}, v{TF+1}")
    if not cfg.noopub: A(f"buffer_store_dwordx2 v[{TF}:{TF+1}], v4, s[{SRDW}:{SRDW+3}], s{sOFF} offen sc1")
    A("s_endpgm")

    vL16=3; vWO_=4; vTR=5; vXA=6
    X=8; F=12; T=20
    XF=32; WF=88
    WT=144
    PA=208
    AM=216
    vT8=220; vFX=221; vG1=222; vG2=223; vPS=224; vTO=225; vFM=226; vH=227
    AT=88
    sE,sTAG,sCQ,sO2,sSPIN,sCM,sFF,sA,sB=60,61,62,63,64,65,78,66,67
    A(f"{Laux}:")
    lend=lab("end")
    if cfg.auxnull:
        A("s_waitcnt lgkmcnt(0)"); srd(SRDW,sWS,1<<30)
        A("s_barrier"); stamp(3); A("s_barrier"); stamp(4); A("s_barrier"); stamp(5); A(f"s_branch {lend}")
    A("s_setprio 3")
    A(f"v_lshrrev_b32 v7, 1, v2\nv_and_b32 v{T}, 1, v2\nv_lshlrev_b32 v{T}, 4, v{T}")
    A(f"v_lshl_add_u32 v{vWO_}, v7, 13, v{T}\nv_lshlrev_b32 v{vL16}, 4, v2")
    A(f"s_and_b32 s{sCQ}, s2, 7\ns_lshl_b32 s{sCQ}, s{sCQ}, 5\ns_lshr_b32 s{sO2}, s2, 3\ns_add_u32 s{sCQ}, s{sCQ}, s{sO2}\ns_lshl_b32 s{sO2}, s{sCQ}, 5")
    A("s_waitcnt lgkmcnt(0)")
    A(f"s_load_dword s{sE}, s[{sWS}:{sWS+1}], 0")
    srd(SRDA,sX,896)
    A(f"buffer_load_dwordx4 v[{X}:{X+3}], v{vL16}, s[{SRDA}:{SRDA+3}], 0 offen")
    srd(SRDK,sWQ,448*4096*2)
    def wdma(sr, step, gate=None):
        for i in range(14):
            if gate is not None: A(f"s_waitcnt vmcnt({gate})")
            A(f"s_mov_b32 m0, {WBUF+i*1024}")
            if i: A(f"s_add_u32 s{sO2}, s{sO2}, {step}")
            else: nop(1)
            A(f"buffer_load_dwordx4 v{vWO_}, s[{sr}:{sr+3}], s{sO2} offen {cfg.cnt} lds")
    wdma(SRDK,32*8192,cfg.qgate)
    srd(SRDW,sWS,1<<30)
    A(f"v_lshrrev_b32 v{T}, 4, v2\nv_bfe_u32 v{T+1}, v2, 2, 2\nv_lshl_add_u32 v{T+1}, v{T}, 3, v{T+1}\nv_and_b32 v{T+2}, 3, v2\nv_lshlrev_b32 v{T+2}, 3, v{T+2}\nv_add_u32 v{T+2}, {WBUF}, v{T+2}")
    A(f"v_lshl_add_u32 v{vTR}, v{T+1}, 5, v{T+2}\nv_lshl_add_u32 v{vG1}, v{T+1}, 6, v{T+2}")
    A(f"v_lshlrev_b32 v{T}, 4, v{T}\nv_add_u32 v{vXA}, {XN}, v{T}")
    A("v_cmp_gt_u32 s[74:75], 56, v2")
    A("s_waitcnt vmcnt(14)")
    for r in range(4):
        A(f"v_lshlrev_b32 v{F+2*r}, 16, v{X+r}\nv_and_b32 v{F+2*r+1}, 0xffff0000, v{X+r}")
    A(f"v_add_f32 v{T}, v{F}, v{F+1}\nv_add_f32 v{T+1}, v{F+2}, v{F+3}\nv_add_f32 v{T+2}, v{F+4}, v{F+5}\nv_add_f32 v{T+3}, v{F+6}, v{F+7}")
    A(f"v_add_f32 v{T}, v{T}, v{T+1}\nv_add_f32 v{T+2}, v{T+2}, v{T+3}\nv_add_f32 v{T}, v{T}, v{T+2}")
    rowred("v_add_f32",T,[1,2,4,8]); xrowred("v_add_f32",T,T+1)
    A(f"v_mul_f32 v{T}, {f2u(1.0/448):#x}, v{T}")
    A(f"v_sub_f32 v{T+2}, v{F}, v{T}\nv_mul_f32 v{T+1}, v{T+2}, v{T+2}")
    for r in range(1,8):
        A(f"v_sub_f32 v{T+2}, v{F+r}, v{T}\nv_fmac_f32 v{T+1}, v{T+2}, v{T+2}")
    A(f"v_cndmask_b32 v{T+1}, 0, v{T+1}, s[74:75]")
    rowred("v_add_f32",T+1,[1,2,4,8]); xrowred("v_add_f32",T+1,T+2)
    A(f"v_mul_f32 v{T+1}, {f2u(1.0/448):#x}, v{T+1}")
    rbf(T,T); rbf(T+1,T+1)
    A(f"v_add_f32 v{T+1}, {f2u(1e-5):#x}, v{T+1}"); rbf(T+1,T+1)
    A(f"v_sqrt_f32 v{T+1}, v{T+1}"); nop(1); rbf(T+1,T+1)
    A(f"v_rcp_f32 v{T+2}, v{T+1}")
    for r in range(8): A(f"v_sub_f32 v{F+r}, v{F+r}, v{T}")
    for r in range(4): A(f"v_cvt_pk_bf16_f32 v{X+r}, v{F+2*r}, v{F+2*r+1}")
    for r in range(4): A(f"v_lshlrev_b32 v{F+2*r}, 16, v{X+r}\nv_and_b32 v{F+2*r+1}, 0xffff0000, v{X+r}")
    for r in range(8):
        A(f"v_mul_f32 v{T+3}, v{F+r}, v{T+2}\nv_fma_f32 v{T+4}, -v{T+3}, v{T+1}, v{F+r}\nv_fma_f32 v{F+r}, v{T+4}, v{T+2}, v{T+3}")
    for r in range(4): A(f"v_cvt_pk_bf16_f32 v{X+r}, v{F+2*r}, v{F+2*r+1}")
    A(f"v_add_u32 v{T}, {XN}, v{vL16}\nds_write_b128 v{T}, v[{X}:{X+3}]\ns_waitcnt lgkmcnt(0)")
    for jj in range(14): A(f"ds_read_b128 v[{XF+4*jj}:{XF+4*jj+3}], v{vXA} offset:{jj*64}")
    A("s_waitcnt vmcnt(0)")
    for jj in range(14):
        A(f"ds_read_b64_tr_b16 v[{WF+4*jj}:{WF+4*jj+1}], v{vTR} offset:{jj*1024}\nds_read_b64_tr_b16 v[{WF+4*jj+2}:{WF+4*jj+3}], v{vTR} offset:{jj*1024+128}")
    A(f"s_waitcnt lgkmcnt(0)")
    for jj in range(14):
        c="0" if jj==0 else f"v[{T}:{T+3}]"
        A(f"v_mfma_f32_16x16x32_bf16 v[{T}:{T+3}], v[{XF+4*jj}:{XF+4*jj+3}], v[{WF+4*jj}:{WF+4*jj+3}], {c}")
    A(f"s_mul_i32 s{sTAG}, s{sE}, 0x9E3779B1\ns_add_u32 s{sTAG}, s{sTAG}, 0x7F4A7C15")
    A(f"s_add_u32 s{sFF}, s{sE}, 1\ns_and_b32 s{sFF}, s{sFF}, 0xff\nv_mov_b32 v{vT8}, s{sFF}\ns_mov_b32 s{sFF}, 0xff")
    A(f"s_lshl_b32 s{sO2}, s{sCQ}, 6\ns_add_u32 s{sO2}, s{sO2}, {QBOX}\nv_lshlrev_b32 v{T+6}, 3, v7\nv_mov_b32 v{T+5}, s{sTAG}")
    A(f"v_mov_b32_dpp v{T+1}, v{T} quad_perm:[1,1,3,3] {DPP}")
    A(f"v_cvt_pk_bf16_f32 v{T+4}, v{T}, v{T+1}")
    A("s_mov_b64 exec, 0x5555")
    A(f"buffer_store_dwordx2 v[{T+4}:{T+5}], v{T+6}, s[{SRDW}:{SRDW+3}], s{sO2} offen sc1")
    A("s_mov_b64 exec, -1")
    stamp(2)
    TT1=tt(lambda a,b,t:(a^t)|(b^t)); TT2=tt(lambda a,b,c:(a|b)&c)
    def poll(loads, soff, mode, sleep, fast=0, fthr=None):
        PM=4
        lp=lab("poll"); ld=lab("polld")
        for i,(d,vo,imm,lm) in enumerate(loads):
            if lm is None: A(f"s_mov_b64 s[{PM+2*i}:{PM+2*i+1}], -1")
            else: A(f"s_mov_b32 s{PM+2*i}, {lm&0xffffffff:#x}\ns_mov_b32 s{PM+2*i+1}, {lm>>32:#x}")
        A(f"s_mov_b32 s{sSPIN}, 0\ns_mov_b32 s14, 999")
        A(f"{lp}:")
        for i,(d,vo,imm,lm) in enumerate(loads):
            sk=lab("sk")
            A(f"s_mov_b64 exec, s[{PM+2*i}:{PM+2*i+1}]\ns_cbranch_execz {sk}")
            A(f"buffer_load_dwordx4 v[{d}:{d+3}], v{vo}, s[{SRDW}:{SRDW+3}], s{soff} offen offset:{imm} sc1")
            A(f"{sk}:")
        A(f"s_mov_b64 exec, -1\ns_add_u32 s{sSPIN}, s{sSPIN}, 1")
        if fast and fthr is not None:
            sk=lab("fs")
            A(f"s_cmp_le_u32 s14, {fthr}\ns_cbranch_scc1 {sk}\ns_waitcnt vmcnt(0)\n{sk}:")
        A(f"s_waitcnt vmcnt({fast})")
        for i,(d,vo,imm,lm) in enumerate(loads):
            if mode=='q':
                A(f"v_xor_b32 v{T+i}, s{sTAG}, v{d+1}\nv_xor_b32 v{T+4+i}, s{sTAG}, v{d+3}\nv_or_b32 v{T+i}, v{T+i}, v{T+4+i}")
            else:
                A(f"v_bitop3_b32 v{T+i}, v{d}, v{d+1}, v{vT8} bitop3:{TT1:#x}\nv_bitop3_b32 v{T+4+i}, v{d+2}, v{d+3}, v{vT8} bitop3:{TT1:#x}")
                A(f"v_bitop3_b32 v{T+i}, v{T+i}, v{T+4+i}, s{sFF} bitop3:{TT2:#x}")
        for i,(d,vo,imm,lm) in enumerate(loads):
            A(f"v_cmp_ne_u32 vcc, 0, v{T+i}\ns_and_b64 s[{PM+2*i}:{PM+2*i+1}], s[{PM+2*i}:{PM+2*i+1}], vcc")
        if len(loads)>1:
            A(f"s_or_b64 s[12:13], s[{PM}:{PM+1}], s[{PM+2}:{PM+3}]")
            for i in range(2,len(loads)): A(f"s_or_b64 s[12:13], s[12:13], s[{PM+2*i}:{PM+2*i+1}]")
        A(f"s_cbranch_scc0 {ld}")
        if fast and fthr is not None:
            A(f"s_bcnt1_i32_b64 s14, s[{PM}:{PM+1}]")
            for i in range(1,len(loads)): A(f"s_bcnt1_i32_b64 s15, s[{PM+2*i}:{PM+2*i+1}]\ns_add_u32 s14, s14, s15")
            if sleep:
                sk=lab("ns")
                A(f"s_cmp_le_u32 s14, {fthr}\ns_cbranch_scc1 {sk}\ns_sleep {sleep}\n{sk}:")
        elif sleep: A(f"s_sleep {sleep}")
        A(f"s_cmp_lt_u32 s{sSPIN}, {SPIN_LIMIT*4}\ns_cbranch_scc1 {lp}")
        A(f"{ld}:")
    A(f"s_lshr_b32 s{sO2}, s2, 5\ns_lshl_b32 s{sO2}, s{sO2}, 11\ns_add_u32 s{sO2}, s{sO2}, {QBOX}")
    poll([(F,vL16,0,None),(F+4,vL16,1024,None)], sO2, 'q', cfg.qsleep)
    A(f"v_mov_b32 v{T}, {RDY}\nv_mov_b32 v{T+1}, 0\nds_write_b32 v{T}, v{T+1}")
    A(f"v_lshlrev_b32 v{T}, 3, v2\nv_add_u32 v{T}, {QB}, v{T}")
    A(f"ds_write2_b32 v{T}, v{F}, v{F+2} offset0:0 offset1:1\nds_write2_b32 v{T}, v{F+4}, v{F+6} offset0:128 offset1:129")
    A("s_waitcnt lgkmcnt(0)\ns_barrier")
    stamp(3)
    if cfg.pool:
        lz=lab("nz")
        A(f"s_and_b32 s4, s2, 7\ns_cbranch_scc1 {lz}")
        A(f"s_lshr_b32 s4, s2, 3\ns_mul_i32 s4, s4, {4*CSTR}\ns_add_u32 s4, s4, {CNT}\nv_mul_u32_u24 v{T}, {CSTR}, v2\nv_mov_b32 v{T+1}, 0\ns_mov_b64 exec, 15")
        A(f"buffer_store_dword v{T+1}, v{T}, s[{SRDW}:{SRDW+3}], s4 offen sc1\ns_mov_b64 exec, -1\n{lz}:")
    A(f"s_bfe_u32 s{sB}, s2, 0x10003\ns_lshr_b32 s{sA}, s2, 4\ns_lshl_b32 s{sA}, s{sA}, 3\ns_and_b32 s{sO2}, s2, 7\ns_add_u32 s{sA}, s{sA}, s{sO2}")
    A(f"v_and_b32 v{T}, 15, v2"); masks(AM,T,T+1,T+2)
    A(f"v_lshrrev_b32 v{T+1}, 4, v2\nv_mul_u32_u24 v{vTO}, 896, v{T+1}\nv_lshl_add_u32 v{vTO}, v{T}, 4, v{vTO}")
    for r in range(8): A(f"v_mov_b32 v{PA+r}, 0")
    def tile_load(sr):
        for t in range(8):
            if cfg.agate is not None: A(f"s_waitcnt vmcnt({cfg.agate})")
            A(f"buffer_load_dwordx4 v[{WT+8*t}:{WT+8*t+3}], v{vTO}, s[{sr}:{sr+3}], s{sO2} offen {cfg.wnt}")
            A("s_mov_b32 exec_lo, 0x0fff0fff\ns_mov_b32 exec_hi, 0x0fff0fff")
            A(f"buffer_load_dwordx4 v[{WT+8*t+4}:{WT+8*t+7}], v{vTO}, s[{sr}:{sr+3}], s{sO2} offen offset:256 {cfg.wnt}")
            A(f"s_mov_b64 exec, -1\ns_add_u32 s{sO2}, s{sO2}, 3584")
    def project(src):
        for t in range(8):
            v,ln=src(t)
            for r in range(4): A(f"v_and_b32_dpp v{AT+4*t+r}, v{v}, v{AM+r} row_newbcast:{ln} {DPP}")
            if t>=1:
                tp=t-1
                for cb in range(2):
                    A(f"v_mfma_f32_16x16x32_bf16 v[{PA+4*cb}:{PA+4*cb+3}], v[{AT+4*tp}:{AT+4*tp+3}], v[{WT+8*tp+4*cb}:{WT+8*tp+4*cb+3}], v[{PA+4*cb}:{PA+4*cb+3}]")
        for cb in range(2):
            A(f"v_mfma_f32_16x16x32_bf16 v[{PA+4*cb}:{PA+4*cb+3}], v[{AT+28}:{AT+31}], v[{WT+56+4*cb}:{WT+56+4*cb+3}], v[{PA+4*cb}:{PA+4*cb+3}]")
    A(f"v_lshrrev_b32 v{T}, 5, v2\nv_lshlrev_b32 v{T}, 9, v{T}\nv_and_b32 v{T+1}, 15, v2\nv_lshl_add_u32 v{T}, v{T+1}, 5, v{T}\nv_bfe_u32 v{T+1}, v2, 4, 1\nv_lshl_add_u32 v{vPS}, v{T+1}, 4, v{T}")
    def rec_store(soff):
        nop(8)
        for r in range(4): A(f"v_permlane32_swap_b32 v{PA+r}, v{PA+4+r}")
        for r in range(4): A(f"v_bfi_b32 v{PA+r}, s{sFF}, v{vT8}, v{PA+r}")
        A("s_mov_b32 exec_hi, 0x0fff0fff")
        A(f"buffer_store_dwordx4 v[{PA}:{PA+3}], v{vPS}, s[{SRDW}:{SRDW+3}], s{soff} offen sc1")
        A("s_mov_b32 exec_hi, -1")
    lnm=lab("nomlp")
    A(f"s_cmp_ge_u32 s2, {0 if cfg.nomlp else 112}\ns_cbranch_scc1 {lnm}")
    A(f"s_and_b32 s{sCM}, s2, 7\ns_mul_i32 s{sCM}, s{sCM}, 7\ns_lshr_b32 s{sO2}, s2, 4\ns_add_u32 s{sCM}, s{sCM}, s{sO2}")
    A(f"v_lshrrev_b32 v{T}, 2, v2\nv_mul_u32_u24 v{vWO_}, 3584, v{T}\nv_and_b32 v{T}, 3, v2\nv_lshl_add_u32 v{vWO_}, v{T}, 4, v{vWO_}")
    srd(SRDK,sW1,448*1792*2)
    srd(SRDA,sB1,3584)
    A(f"v_and_b32 v{T}, 15, v2\nv_lshlrev_b32 v{T}, 1, v{T}\ns_lshl_b32 s{sO2}, s{sCM}, 6")
    A(f"buffer_load_ushort v{F}, v{T}, s[{SRDA}:{SRDA+3}], s{sO2} offen\ns_nop 0\nbuffer_load_ushort v{F+1}, v{T}, s[{SRDA}:{SRDA+3}], s{sO2} offen offset:32")
    for ps in range(2):
        wdma(SRDK,16*3584,cfg.agate)
        A(f"s_add_u32 s{sO2}, s{sO2}, {16*3584}\ns_waitcnt vmcnt(0)")
        for kk in range(7):
            for u in range(2):
                r=WF+8*kk+4*u
                A(f"ds_read_b64_tr_b16 v[{r}:{r+1}], v{vG1} offset:{kk*2048+u*32}\nds_read_b64_tr_b16 v[{r+2}:{r+3}], v{vG1} offset:{kk*2048+u*32+256}")
        A("s_waitcnt lgkmcnt(0)")
        for kk in range(7):
            for u in range(2):
                r=WF+8*kk+4*u; x=XF+4*(7*ps+kk)
                c="0" if (ps==0 and kk==0) else f"v[{T+4*u}:{T+4*u+3}]"
                A(f"v_mfma_f32_16x16x32_bf16 v[{T+4*u}:{T+4*u+3}], v[{x}:{x+3}], v[{r}:{r+3}], {c}")
    srd(SRDK,sW2,1792*448*2)
    A(f"s_mul_i32 s{sO2}, s{sCM}, {32*896}\ns_mul_i32 s{sSPIN}, s{sB}, 448\ns_add_u32 s{sO2}, s{sO2}, s{sSPIN}")
    tile_load(SRDK)
    k0=math.sqrt(2/math.pi)
    for u in range(2):
        h=T+4*u; t1=h+1; t2=h+2
        rbf(h,h)
        A(f"v_lshlrev_b32 v{F+u}, 16, v{F+u}\nv_add_f32 v{h}, v{h}, v{F+u}"); rbf(h,h)
        A(f"v_mul_f32 v{t1}, v{h}, v{h}\nv_mul_f32 v{t1}, v{t1}, v{h}\nv_mov_b32 v{t2}, {f2u(0.044715):#x}\nv_fma_f32 v{t1}, v{t1}, v{t2}, v{h}")
        A(f"v_mul_f32 v{t1}, {f2u(-2*k0*math.log2(math.e)):#x}, v{t1}\nv_exp_f32 v{t1}, v{t1}"); nop(1)
        A(f"v_add_f32 v{t1}, 1.0, v{t1}\nv_rcp_f32 v{t1}, v{t1}"); nop(1)
        A(f"v_mul_f32 v{h}, v{h}, v{t1}\nv_cvt_pk_bf16_f32 v{h}, v{h}, v{h}\nv_mov_b32 v{t1}, v{h}"); nop(2)
        for g in range(1,4): A(f"v_mov_b32_dpp v{t1}, v{h} row_ror:{16-g} row_mask:{1<<g:#x} bank_mask:0xf")
    A("s_waitcnt vmcnt(0)"); nop(2)
    project(lambda t:(T+4*(t>>2)+1, 4*(t&3)))
    if cfg.mimic:
        A(f"s_lshl_b32 s{sO2}, s{sB}, 6\ns_add_u32 s{sO2}, s{sO2}, s{sCM}\ns_lshl_b32 s{sO2}, s{sO2}, 10\ns_add_u32 s{sO2}, s{sO2}, {MBOX}")
        rec_store(sO2)
        nop(2)
        for r in range(8): A(f"v_mov_b32 v{PA+r}, 0")
    nop(4)
    stamp('mlpdone')
    A(f"{lnm}:")
    srd(SRDK,sWO,4096*448*2)
    A(f"s_mul_i32 s{sO2}, s{sA}, {32*896}\ns_mul_i32 s{sSPIN}, s{sB}, 448\ns_add_u32 s{sO2}, s{sO2}, s{sSPIN}")
    if not cfg.nowo: tile_load(SRDK)
    FC=cfg.fc
    lnf=lab("nofin")
    FC0=256-FC
    if FC==56:
        A(f"v_lshrrev_b32 v{T}, 4, v2\nv_and_b32 v{T+1}, 1, v2\nv_lshl_add_u32 v{T}, v{T+1}, 2, v{T}\nv_lshlrev_b32 v{vG2}, 1, v{T}")
        A(f"s_sub_u32 s{sO2}, s2, {FC0}\ns_lshl_b32 s{sO2}, s{sO2}, 4")
    else:
        A(f"v_lshrrev_b32 v{T}, 4, v2\nv_lshlrev_b32 v{vG2}, 1, v{T}")
        A(f"s_sub_u32 s{sO2}, s2, {FC0}\ns_lshl_b32 s{sO2}, s{sO2}, 3")
    A(f"v_add_u32 v{vG2}, s{sO2}, v{vG2}")
    A(f"s_cmp_lt_u32 s2, {FC0}\ns_cbranch_scc1 {lnf}")
    srd(SRDA,sX,896)
    A(f"buffer_load_ushort v{vFX}, v{vG2}, s[{SRDA}:{SRDA+3}], 0 offen")
    srd(SRDK,sB2,896)
    A(f"buffer_load_ushort v{T}, v{vG2}, s[{SRDK}:{SRDK+3}], 0 offen")
    A(f"s_waitcnt vmcnt(0)\nv_lshlrev_b32 v{vFX}, 16, v{vFX}\nv_lshlrev_b32 v{vFM}, 16, v{T}")
    if not cfg.mimic: A(f"v_add_f32 v{vFX}, v{vFX}, v{vFM}")
    A(f"{lnf}:")
    stamp('wodone')
    A("s_barrier")
    stamp(4)
    A(f"s_mov_b32 s{sCM}, {f2u(CEXP):#x}")
    if cfg.pool:
        A(f"v_bfe_u32 v{T}, v2, 2, 2\nv_lshlrev_b32 v{T}, 11, v{T}\nv_lshrrev_b32 v{T+1}, 4, v2\nv_lshl_add_u32 v{T}, v{T+1}, 6, v{T}\nv_and_b32 v{T+1}, 3, v2\nv_lshl_add_u32 v{T}, v{T+1}, 4, v{T}\nv_add_u32 v{T}, {SC+28*64}, v{T}")
        A(f"ds_read_b128 v[{X}:{X+3}], v{T}\ns_lshl_b32 s4, s2, 10\ns_add_u32 s4, s4, {SBOX}\ns_waitcnt lgkmcnt(0)")
        A(f"buffer_store_dwordx4 v[{X}:{X+3}], v{vL16}, s[{SRDW}:{SRDW+3}], s4 offen sc1")
    A(f"v_and_b32 v{T}, 1, v2\nv_lshlrev_b32 v{T+1}, 4, v{T}\nv_add_u32 v{T+1}, {MX}, v{T+1}\nv_lshlrev_b32 v{T+2}, 5, v2\nv_add_u32 v{T+2}, {SC}, v{T+2}")
    A(f"ds_read_b128 v[{F}:{F+3}], v{T+1}")
    for w in range(4):
        A(f"ds_read_b128 v[{XF+8*w}:{XF+8*w+3}], v{T+2} offset:{w*2048}\nds_read_b128 v[{XF+8*w+4}:{XF+8*w+7}], v{T+2} offset:{w*2048+16}")
    A("s_waitcnt lgkmcnt(0)")
    A(f"v_max_f32 v{F}, v{F}, v{F+1}\nv_max3_f32 v{F}, v{F}, v{F+2}, v{F+3}\nv_mul_f32 v{F+4}, s{sCM}, v{F}\nv_sub_f32 v{F+4}, 0, v{F+4}")
    A(f"v_mov_b32 v{F+1}, 0\nv_mov_b32 v{F+5}, 0")
    for r in range(32):
        A(f"v_lshlrev_b32 v{T+3}, 16, v{XF+r}\nv_and_b32 v{T+4}, 0xffff0000, v{XF+r}")
        A(f"v_fma_f32 v{T+3}, v{T+3}, s{sCM}, v{F+4}\nv_fma_f32 v{T+4}, v{T+4}, s{sCM}, v{F+4}")
        A(f"v_exp_f32 v{T+3}, v{T+3}\nv_exp_f32 v{T+4}, v{T+4}"); nop(1)
        A(f"v_add_f32 v{F+1}, v{F+1}, v{T+3}\nv_add_f32 v{F+5}, v{F+5}, v{T+4}")
    A(f"v_add_f32 v{F+1}, v{F+1}, v{F+5}")
    rowred("v_add_f32",F+1,[2,4,8]); xrowred("v_add_f32",F+1,T+3)
    nop(2)
    A(f"v_mov_b32_dpp v{F+2}, v{F} quad_perm:[1,1,3,3] {DPP}\nv_mov_b32_dpp v{F+3}, v{F+1} quad_perm:[1,1,3,3] {DPP}")
    A(f"v_mov_b32 v{F+6}, v{F}")
    for r in range(4): A(f"v_bfi_b32 v{F+r}, s{sFF}, v{vT8}, v{F+r}")
    A(f"s_lshl_b32 s{sO2}, s2, 4\ns_add_u32 s{sO2}, s{sO2}, {MLBOX}\nv_mov_b32 v{T}, 0\ns_mov_b64 exec, 1\ns_waitcnt vmcnt(0)")
    if not cfg.noml: A(f"buffer_store_dwordx4 v[{F}:{F+3}], v{T}, s[{SRDW}:{SRDW+3}], s{sO2} offen sc1")
    A("s_mov_b64 exec, -1")
    I1=XF
    A(f"s_lshr_b32 s{sO2}, s2, 5\ns_lshl_b32 s{sO2}, s{sO2}, 9\ns_add_u32 s{sO2}, s{sO2}, {MLBOX}\nv_lshlrev_b32 v{vWO_}, 4, v7")
    if cfg.fb:
        th,lv,df=cfg.fb
        A(f"buffer_load_dwordx4 v[{I1}:{I1+3}], v{vWO_}, s[{SRDW}:{SRDW+3}], s{sO2} offen sc1\ns_waitcnt vmcnt(0)")
        A(f"v_bitop3_b32 v{T}, v{I1}, v{I1+1}, v{vT8} bitop3:{TT1:#x}\nv_bitop3_b32 v{T+4}, v{I1+2}, v{I1+3}, v{vT8} bitop3:{TT1:#x}\nv_bitop3_b32 v{T}, v{T}, v{T+4}, s{sFF} bitop3:{TT2:#x}")
        A(f"v_cmp_eq_u32 vcc, 0, v{T}\ns_bcnt1_i32_b64 s4, vcc\ns_mov_b32 s5, 0")
        for k,t_ in enumerate(th): A(f"s_cmp_ge_u32 s4, {2*t_}\ns_cselect_b32 s5, {k+1}, s5")
        A(f"v_mov_b32 v{T}, {LV}\nv_mov_b32 v{T+1}, s5\nds_write_b32 v{T}, v{T+1}")
    if not cfg.noml: poll([(I1,vWO_,0,None)], sO2, 't', cfg.mlsleep)
    A(f"v_and_b32 v{T}, 1, v2\nv_cmp_eq_u32 vcc, 1, v{T}"); nop(2)
    A(f"v_cndmask_b32 v{I1}, v{I1}, v{I1+2}, vcc\nv_cndmask_b32 v{I1+1}, v{I1+1}, v{I1+3}, vcc\nv_and_b32 v{I1}, 0xffff0000, v{I1}\nv_mov_b32 v{T+1}, v{I1}")
    rowred("v_max_f32",T+1,[2,4,8]); xrowred("v_max_f32",T+1,T+2)
    A(f"v_sub_f32 v{T+2}, v{I1}, v{T+1}\nv_sub_f32 v{T+3}, v{F+6}, v{T+1}\nv_mul_f32 v{T+2}, s{sCM}, v{T+2}\nv_mul_f32 v{T+3}, s{sCM}, v{T+3}")
    A(f"v_exp_f32 v{T+2}, v{T+2}\nv_exp_f32 v{T+3}, v{T+3}"); nop(1)
    A(f"v_mul_f32 v{T+2}, v{T+2}, v{I1+1}")
    rowred("v_add_f32",T+2,[2,4,8]); xrowred("v_add_f32",T+2,T+4)
    A(f"v_rcp_f32 v{T+4}, v{T+2}"); nop(1)
    A(f"v_fma_f32 v{T+5}, -v{T+2}, v{T+4}, 1.0\nv_fma_f32 v{T+4}, v{T+5}, v{T+4}, v{T+4}")
    A(f"v_lshlrev_b32 v{T}, 2, v{T}\nv_add_u32 v{T}, {FB}, v{T}")
    if cfg.pool:
        A(f"v_mul_f32 v{T+1}, s{sCM}, v{T+1}\nv_sub_f32 v{T+1}, 0, v{T+1}")
        A(f"ds_write_b32 v{T}, v{T+4}\nds_write_b32 v{T}, v{T+3} offset:8\nds_write_b32 v{T}, v{T+1} offset:16")
        A(f"s_and_b32 s4, s2, 0xf8\ns_lshl_b32 s4, s4, 10\ns_add_u32 s4, s4, {SBOX}")
        for k in range(8):
            if k==4: A("s_add_u32 s4, s4, 4096")
            A(f"s_waitcnt vmcnt(1)\nbuffer_load_dwordx4 v[{I1+4*k}:{I1+4*k+3}], v{vL16}, s[{SRDW}:{SRDW+3}], s4 offen offset:{(k&3)*1024} sc1")
        A(f"v_add_u32 v{T}, {WBUF}, v{vL16}\ns_waitcnt vmcnt(0)")
        for k in range(8): A(f"ds_write_b128 v{T}, v[{I1+4*k}:{I1+4*k+3}] offset:{k*1024}")
        A(f"v_mov_b32 v{T}, {RDY}\nv_mov_b32 v{T+1}, 1\ns_waitcnt lgkmcnt(0)\nds_write_b32 v{T}, v{T+1}")
    else:
        A(f"v_mul_f32 v{T+3}, v{T+3}, v{T+4}\nds_write_b32 v{T}, v{T+3}")
    half=FC//2
    sH2=68
    A(f"s_sub_u32 s{sSPIN}, s2, {FC0}\ns_cmp_ge_u32 s{sSPIN}, {half}\ns_cselect_b32 s{sH2}, {128*1024-896}, 0\ns_cselect_b32 s{sO2}, {64*1024-896}, 0\ns_mul_i32 s{sSPIN}, s{sSPIN}, {1792//FC}")
    A(f"s_add_u32 s{sH2}, s{sH2}, s{sSPIN}\ns_add_u32 s{sH2}, s{sH2}, {PBOX}\ns_add_u32 s{sO2}, s{sO2}, s{sSPIN}\ns_add_u32 s{sO2}, s{sO2}, {MBOX}")
    assert FC==56
    A(f"v_lshlrev_b32 v{vH}, 10, v7\nv_and_b32 v{T}, 1, v2\nv_lshl_add_u32 v{vH}, v{T}, 4, v{vH}")
    for k in range(1,4): A(f"v_add_u32 v{vH+k}, {k*32768}, v{vH}")
    if cfg.mimic and not cfg.nomlp:
        lg=lab("nomg")
        A(f"s_cmp_lt_u32 s2, {FC0}\ns_cbranch_scc1 {lg}")
        for r in range(4): A(f"v_mov_b32 v{I1+4+r}, 0")
        poll([(I1,vH,0,None),(I1+4,vH+1,0,(1<<48)-1)], sO2, 't', 32)
        for r in range(4): A(f"v_add_f32 v{I1+r}, v{I1+r}, v{I1+4+r}")
        tred4(I1); rowred("v_add_f32",I1,[2,4,8])
        rbf(I1,I1)
        A(f"v_add_f32 v{vFM}, v{vFM}, v{I1}"); rbf(vFM,vFM)
        A(f"{lg}:")
    srd(SRDA,sOUT,896)
    A(f"v_bfe_u32 v{T}, v2, 3, 2\nv_lshlrev_b32 v{T}, 14, v{T}\nv_lshrrev_b32 v{T+1}, 5, v2\nv_lshl_add_u32 v{T}, v{T+1}, 11, v{T}\nv_and_b32 v{T+1}, 7, v2\nv_lshl_add_u32 v{vG1}, v{T+1}, 4, v{T}")
    for k in range(1,4): A(f"v_add_u32 v{X+k}, {k*4096}, v{vG1}")
    A(f"s_lshr_b32 s{sO2}, s2, 5\ns_lshl_b32 s{sO2}, s{sO2}, 16\ns_and_b32 s{sSPIN}, s{sA}, 15\ns_lshl_b32 s{sSPIN}, s{sSPIN}, 7\ns_add_u32 s{sO2}, s{sO2}, s{sSPIN}\ns_add_u32 s{sO2}, s{sO2}, {OBOX}")
    A(f"s_lshl_b32 s{sCQ}, s{sB}, 7\ns_add_u32 s{sCQ}, s{sCQ}, s{sA}\ns_lshl_b32 s{sCQ}, s{sCQ}, 10\ns_add_u32 s{sCQ}, s{sCQ}, {PBOX}")
    for r in range(32): A(f"v_not_b32 v{I1+r}, v{vT8}")
    A("s_waitcnt vmcnt(0) lgkmcnt(0)\ns_barrier")
    stamp(5)
    if cfg.notail: A(f"s_branch {lend}")
    R=F
    def sum16(I):
        for r in range(4): A(f"v_add_f32 v{R+r}, v{I+r}, v{I+4+r}\nv_add_f32 v{R+4+r}, v{I+8+r}, v{I+12+r}")
        for r in range(4): A(f"v_add_f32 v{R+r}, v{R+r}, v{R+4+r}")
        tred4(R)
    poll([(I1,vG1,0,None),(I1+4,X+1,0,None),(I1+8,X+2,0,None),(I1+12,X+3,0,None)], sO2, 't', cfg.sleep1, cfg.fast1, cfg.fthr)
    stamp(6)
    sum16(I1); rowred("v_add_f32",R,[8])
    A(f"v_cvt_pk_bf16_f32 v{R}, v{R}, v{R}"); nop(2)
    project(lambda t:(R,t))
    rec_store(sCQ)
    A(f"s_cmp_lt_u32 s2, {FC0}\ns_cbranch_scc1 {lend}")
    I2=XF+16
    poll([(I2+4*k,vH+k,0,None) for k in range(4)], sH2, 't', cfg.sleep2, cfg.fast2, None)
    sum16(I2); rowred("v_add_f32",R,[2,4,8])
    if cfg.mimic:
        rbf(R,R)
        A(f"v_add_f32 v{R}, v{vFX}, v{R}"); rbf(R,R)
        A(f"v_add_f32 v{R}, v{R}, v{vFM}\nv_cvt_pk_bf16_f32 v{R}, v{R}, v{R}")
    else:
        A(f"v_add_f32 v{R}, v{vFX}, v{R}\nv_cvt_pk_bf16_f32 v{R}, v{R}, v{R}")
    A(f"s_mov_b32 exec_lo, 0x00030003\ns_mov_b32 exec_hi, 0x00030003")
    A(f"buffer_store_short v{R}, v{vG2}, s[{SRDA}:{SRDA+3}], 0 offen")
    A(f"s_cmp_lg_u32 s2, 255\ns_cbranch_scc1 {lend}")
    A(f"s_mov_b64 exec, 1\ns_add_u32 s{sE}, s{sE}, 1\nv_mov_b32 v{T+1}, s{sE}\nv_mov_b32 v{T+2}, 0")
    A(f"buffer_store_dword v{T+1}, v{T+2}, s[{SRDW}:{SRDW+3}], 0 offen sc1")
    A(f"{lend}:")
    if cfg.stamps and cfg.dbgout:
        A(f"s_cmp_lt_u32 s2, 252\ns_cbranch_scc1 {Ldone}")
        A("s_mov_b64 exec, 1\ns_waitcnt vmcnt(0)")
        stamp(1)
        srd(SRDA,sDBG,256)
        A(f"s_waitcnt lgkmcnt(0)\ns_sub_u32 s{sO2}, s2, 252\ns_lshl_b32 s{sO2}, s{sO2}, 4\nv_mov_b32 v{T}, 0")
        for i,k in enumerate((3,4,5,1)):
            A(f"s_sub_u32 s4, s{80+2*k}, s80\nv_mov_b32 v{F+i}, s4")
        A(f"buffer_store_dwordx4 v[{F}:{F+3}], v{T}, s[{SRDA}:{SRDA+3}], s{sO2} offen")
    elif cfg.stamps:
        A("s_mov_b64 exec, 1\ns_waitcnt vmcnt(0)")
        stamp(1)
        A("s_getreg_b32 s94, hwreg(HW_REG_XCC_ID)\ns_mov_b32 s95, 0\ns_waitcnt lgkmcnt(0)")
        A(f"s_lshl_b32 s{sO2}, s2, 6\ns_add_u32 s{sO2}, s{sO2}, {STAMP:#x}\nv_mov_b32 v{T}, 0")
        for k in range(8):
            A(f"v_mov_b32 v{F}, s{80+2*k}\nv_mov_b32 v{F+1}, s{81+2*k}\nbuffer_store_dwordx2 v[{F}:{F+1}], v{T}, s[{SRDW}:{SRDW+3}], s{sO2} offen offset:{8*k}\ns_nop 1")
    A(f"{Ldone}:")
    A("s_endpgm")
    body="\n".join(L)+"\n"
    kd=f""".section .rodata,"a"
.p2align 6
.amdhsa_kernel {N}
  .amdhsa_next_free_vgpr 232
  .amdhsa_next_free_sgpr 96
  .amdhsa_accum_offset 232
  .amdhsa_group_segment_fixed_size 0
  .amdhsa_kernarg_size 104
  .amdhsa_user_sgpr_count 2
  .amdhsa_user_sgpr_kernarg_segment_ptr 1
  .amdhsa_system_sgpr_workgroup_id_x 1
  .amdhsa_float_denorm_mode_32 3
.end_amdhsa_kernel
"""
    return body, kd

def header():
    ref=open('parallel_sum__gqa_block_cached__dense_activation_gelu__decode.s.ref').read().split("\n")
    out=[]
    for l in ref:
        if l.startswith("; @launch"):
            out.append(f"; @launch grid=(256,1,1) block=(320,1,1) lds={LDS_END}")
            break
        out.append(l)
    return "\n".join(out)+"\n"

def final(cfg, path):
    body,kd=gen(cfg)
    open(path,"w").write(header()+'.amdgcn_target "amdgcn-amd-amdhsa--gfx950"\n.text\n'+body+kd)

def bench(cfgs, path):
    sys.path.insert(0,'bench')
    from genstream import meta
    s='.amdgcn_target "amdgcn-amd-amdhsa--gfx950"\n'
    ks=[]; args=[]
    for c in cfgs:
        body,kd=gen(c)
        s+=".text\n"+body+kd.replace("kernarg_size 104","kernarg_size 112")
        ks.append((c.name,232,320)); args.append(f"{c.name} 256 320 {LDS_END}")
    s+=meta(ks)
    open(path+".s","w").write(s); open(path+".args","w").write(" @ ".join(args))

def mk(name, **kw):
    c=Cfg(); c.name=name
    for k,v in kw.items():
        assert hasattr(c,k), k
        setattr(c,k,v)
    return c

if __name__=="__main__":
    if sys.argv[1]=="final":
        kw=eval(sys.argv[3]) if len(sys.argv)>3 else {}
        final(mk(KNAME,**kw), sys.argv[2])
    else:
        bench([mk(n,**kw) for n,kw in eval(sys.argv[3])], sys.argv[2])
```

```python
import sys, struct, math

KNAME = "parallel_sum__gqa_block_cached__dense_activation_gelu__decode_kernel"
def f2u(f): return struct.unpack('<I', struct.pack('<f', f))[0]

class Cfg:
    name = KNAME
    rot = 0
    pace = 6
    infl = 6
    stamps = False
    smap = {}
    wnt = "nt"
    qsleep = 0
    sleep1 = 2
    sleep2 = 0
    mlsleep = 32
    fc = 56
    nomlp = False
    notail = False
    auxnull = False
    nowo = False
    probe = None
    pool = True
    pinfl = 8
    pclaim = 4
    fb = None
    qgate = None
    cnt = 'nt'
    noml = False
    noopub = False
    mimic = True
    fast1 = 0
    fast2 = 0
    fthr = 64
    vpre = True
    agate = 1
    gran = 1
    thr = None
    dbgout = False

RING=0; SC=131072; WBUF=SC+8192; XN=WBUF+14336; QB=XN+1024; MX=QB+1024; FB=MX+64; LV=FB+32; RDY=FB+36; LDS_END=FB+64
QBOX=0x1000; MLBOX=0x8000; OBOX=0x10000; PBOX=0x100000; MBOX=0x180000; SBOX=0x200000; CNT=0x280000; CSTR=4352; STAMP=0x20000000
SPIN_LIMIT = 1<<16
CEXP = 0.0625*math.log2(math.e)

def tt(f):
    r=0
    for idx in range(8):
        if f((idx>>2)&1,(idx>>1)&1,idx&1): r|=1<<idx
    return r

def gen(cfg):
    L=[]
    def A(s):
        for line in s.split("\n"):
            t=line.strip()
            L.append(t if t.endswith(":") else "    "+t)
    N=cfg.name
    pre = "L" if N==KNAME else f"L_{N}"
    uid=[0]
    def lab(p):
        uid[0]+=1; return f"{pre}_{p}{uid[0]}"
    def nop(n):
        if n>0: A(f"s_nop {n-1}")
    sX,sK,sV,sWQ,sWO,sW1,sB1=16,18,20,22,24,28,30
    sW2,sB2,sOUT,sDBG,sWS=32,34,36,38,40
    SRDK,SRDV,SRDA,SRDW=44,48,52,56
    sWAVE=3
    def srd(d, p, size):
        A(f"s_mov_b32 s{d}, s{p}\ns_mov_b32 s{d+1}, s{p+1}\ns_mov_b32 s{d+2}, {size:#x}\ns_mov_b32 s{d+3}, 0x20000")
    def stamp(k):
        if cfg.stamps:
            if isinstance(k,str):
                if k not in cfg.smap: return
                k=cfg.smap[k]
            elif k in cfg.smap.values(): return
            A(f"s_memrealtime s[{80+2*k}:{81+2*k}]")
    DPP="row_mask:0xf bank_mask:0xf"
    def rowred(op, v, rors):
        for r in rors:
            nop(2); A(f"{op}_dpp v{v}, v{v}, v{v} row_ror:{r} {DPP}")
    def xrowred(op, v, t):
        A(f"v_mov_b32 v{t}, v{v}"); nop(2); A(f"v_permlane16_swap_b32 v{v}, v{t}"); A(f"{op} v{v}, v{v}, v{t}")
        A(f"v_mov_b32 v{t}, v{v}"); nop(2); A(f"v_permlane32_swap_b32 v{v}, v{t}"); A(f"{op} v{v}, v{v}, v{t}")
    def tred4(a):
        nop(2)
        A(f"v_permlane32_swap_b32 v{a}, v{a+2}\nv_permlane32_swap_b32 v{a+1}, v{a+3}")
        A(f"v_add_f32 v{a}, v{a}, v{a+2}\nv_add_f32 v{a+1}, v{a+1}, v{a+3}")
        nop(2)
        A(f"v_permlane16_swap_b32 v{a}, v{a+1}")
        A(f"v_add_f32 v{a}, v{a}, v{a+1}")
    def rbf(d, s):
        A(f"v_cvt_pk_bf16_f32 v{d}, v{s}, v{s}\nv_and_b32 v{d}, 0xffff0000, v{d}")
    def masks(dst, n, t0, t1):
        A(f"v_and_b32 v{t0}, 1, v{n}\nv_lshlrev_b32 v{t0}, 4, v{t0}\nv_mov_b32 v{t1}, 0xffff\nv_lshlrev_b32 v{t1}, v{t0}, v{t1}\nv_bfe_u32 v{t0}, v{n}, 1, 2")
        for r in range(4):
            A(f"v_cmp_eq_u32 vcc, {r}, v{t0}"); nop(2); A(f"v_cndmask_b32 v{dst+r}, 0, v{t1}, vcc")

    Ldone=f"{pre}_done"; Laux=f"{pre}_aux"
    A(f".globl {N}\n.p2align 8\n.type {N},@function\n{N}:")
    A(f"s_cmp_ge_u32 s2, 256\ns_cbranch_scc1 {Ldone}")
    A("s_load_dwordx16 s[16:31], s[0:1], 0\ns_load_dwordx8 s[32:39], s[0:1], 64\ns_load_dwordx2 s[40:41], s[0:1], 96")
    stamp(0)
    A("v_lshrrev_b32 v1, 6, v0\nv_and_b32 v2, 63, v0")
    nop(1)
    A(f"v_readfirstlane_b32 s{sWAVE}, v1")
    A(f"s_cmp_eq_u32 s{sWAVE}, 4\ns_cbranch_scc1 {Laux}")

    vKO=8; vVO=16; vKA=18; vVA=22; vSA=23; vMASK=24; vMAX=28; vTG=29; vNM=30; vT=31
    QF=32; TF=64; D=96; S2=100; VP=104
    AR=32; ACC=48; P=56; vVP=7
    sRING,sREG,sNEXT,sOFF,sCNT,sC,sT8,sFF,sV0,sLV,sCL,sY,sSCO=60,61,62,63,64,65,66,67,68,69,70,71,72
    sPC=76
    A("v_lshrrev_b32 v3, 5, v2\nv_and_b32 v4, 31, v2\nv_lshlrev_b32 v5, 2, v3\nv_xor_b32 v4, v4, v5\nv_lshlrev_b32 v4, 4, v4\nv_lshl_add_u32 v4, v3, 9, v4")
    for j in range(8):
        c=(8*(j&1)+(j>>1))*16 | (4096 if j>=4 else 0)
        A(f"v_xor_b32 v{vKO+j}, {c:#x}, v4")
    A(f"s_lshl_b32 s{sRING}, s{sWAVE}, 15\ns_lshl_b32 s{sREG}, s2, 20")
    A(f"s_mul_i32 s{sNEXT}, s2, {cfg.rot*32768}\ns_lshl_b32 s{sOFF}, s{sWAVE}, 13\ns_add_u32 s{sNEXT}, s{sNEXT}, s{sOFF}\ns_and_b32 s{sNEXT}, s{sNEXT}, 0xfffff")
    A("s_waitcnt lgkmcnt(0)")
    srd(SRDK,sK,1<<28)
    def issue_half(slot, isK, half, gate=None):
        if half==0: A(f"s_or_b32 s{sOFF}, s{sREG}, s{sNEXT}")
        A(f"s_add_u32 m0, s{sRING}, {slot*8192+half*4096}")
        if half==0: A(f"s_add_u32 s{sNEXT}, s{sNEXT}, 32768")
        else: A(f"s_and_b32 s{sNEXT}, s{sNEXT}, 0xfffff")
        for jj in range(4):
            j=half*4+jj
            vo = vKO+j if isK else vVO+half
            sr = SRDK if isK else SRDV
            if gate is not None and cfg.fb is not None and gate=='fb':
                th,lv,df=cfg.fb
                go=lab("go")
                w=[l[jj&1] for l in lv]
                A(f"s_waitcnt vmcnt({w[-1]-1})")
                cur=w[-1]
                for k in range(len(w)-2,-1,-1):
                    if w[k]<cur:
                        A(f"s_cmp_gt_u32 s{sLV}, {k}\ns_cbranch_scc1 {go}\ns_waitcnt vmcnt({w[k]-1})"); cur=w[k]
                A(f"{go}:")
            elif gate is not None and jj%cfg.gran==0:
                A(f"s_waitcnt vmcnt({gate-cfg.gran})")
            elif jj: A(f"s_add_u32 m0, s{sRING}, {slot*8192+half*4096}\ns_nop 0")
            A(f"buffer_load_dwordx4 v{vo}, s[{sr}:{sr+3}], s{sOFF} offen offset:{jj*1024} nt lds")
    def gissue(slot,isK):
        for half in range(2): issue_half(slot,isK,half,'fb' if (cfg.fb and not isK) else (cfg.infl if cfg.infl<32 else None))
    vFL=102; vFA=103
    def fb_pre(slot):
        if cfg.fb and slot in (1,3): A(f"ds_read_b32 v{vFL}, v{vFA}")
    def fb_post(slot):
        if cfg.fb and slot in (1,3): A(f"v_readfirstlane_b32 s{sLV}, v{vFL}")
    issue_half(0,True,0); issue_half(0,True,1)
    srd(SRDV,sV,1<<28)
    A(f"s_load_dword s{sT8}, s[{sWS}:{sWS+1}], 0")
    A(f"v_lshlrev_b32 v{vVO}, 4, v2\nv_add_u32 v{vVO+1}, 0x1000, v{vVO}")
    A("v_lshrrev_b32 v3, 4, v2\nv_and_b32 v4, 15, v2")
    A("v_and_b32 v5, 3, v4\nv_lshlrev_b32 v5, 2, v5\nv_lshrrev_b32 v6, 2, v4\nv_add_u32 v5, v5, v6")
    A(f"v_xor_b32 v6, v3, v4\nv_lshlrev_b32 v6, 4, v6\nv_lshl_add_u32 v6, v5, 9, v6\nv_add_u32 v6, s{sRING}, v6")
    for q in range(4): A(f"v_xor_b32 v{vKA+q}, {q*64}, v6")
    A(f"v_lshlrev_b32 v6, 4, v4\nv_lshl_add_u32 v6, v3, 9, v6\nv_add_u32 v{vVA}, s{sRING}, v6")
    A(f"s_lshl_b32 s{sCNT}, s{sWAVE}, 11\ns_add_u32 s{sCNT}, s{sCNT}, {SC}")
    A(f"v_lshrrev_b32 v5, 3, v4\nv_lshlrev_b32 v6, 5, v5\nv_lshl_add_u32 v6, v3, 3, v6\nv_add_u32 v{vSA}, s{sCNT}, v6")
    A(f"v_lshlrev_b32 v7, 9, v5\nv_lshl_add_u32 v7, v3, 4, v7\nv_add_u32 v7, {QB}, v7")
    masks(vMASK,4,5,6)
    A(f"v_mov_b32 v{vMAX}, 0xff800000")
    A(f"v_subrev_u32 v{vT}, s{sRING}, v{vVA}\nv_add_u32 v1, 0x1000, v{vT}")
    A(f"s_mov_b32 s{sV0}, s{sOFF}")
    for slot in range(1,4):
        for half in range(2):
            issue_half(slot,True,half,cfg.pace)
    if cfg.vpre:
        for i in range(4):
            for u in range(8):
                o=(u>>1)*2048+(u&1)*256
                vo = vT if o<4096 else 1
                A(f"s_waitcnt vmcnt({cfg.pace-1})")
                A(f"buffer_load_dwordx4 v[{VP+32*i+4*u}:{VP+32*i+4*u+3}], v{vo}, s[{SRDV}:{SRDV+3}], s{sV0} offen offset:{o&4095} nt")
            A(f"s_add_u32 s{sV0}, s{sV0}, 32768\ns_and_b32 s{sV0}, s{sV0}, 0xfffff\ns_or_b32 s{sV0}, s{sV0}, s{sREG}")
    A(f"s_waitcnt lgkmcnt(0)\ns_add_u32 s{sT8}, s{sT8}, 1\ns_and_b32 s{sT8}, s{sT8}, 0xff\ns_mov_b32 s{sFF}, 0xff\nv_mov_b32 v{vTG}, s{sT8}")
    srd(SRDW,sWS,1<<30)
    if cfg.fb:
        A(f"s_mov_b32 s{sLV}, {cfg.fb[2]}\nv_mov_b32 v{vFA}, {LV}\nv_mov_b32 v{vFL}, {cfg.fb[2]}\nds_write_b32 v{vFA}, v{vFL}\ns_waitcnt lgkmcnt(0)")
    A("s_barrier")
    for jj in range(8): A(f"ds_read_b128 v[{QF+4*jj}:{QF+4*jj+3}], v7 offset:{jj*64}")

    def ktile(slot, nextK):
        A("s_waitcnt vmcnt(24)")
        for jj in range(8):
            A(f"ds_read_b128 v[{TF+4*jj}:{TF+4*jj+3}], v{vKA+(jj&3)} offset:{slot*8192+(jj>>2)*256}")
        A("s_waitcnt lgkmcnt(0)")
        for jj in range(8):
            c = "0" if jj==0 else f"v[{D}:{D+3}]"
            A(f"v_mfma_f32_16x16x32_bf16 v[{D}:{D+3}], v[{TF+4*jj}:{TF+4*jj+3}], v[{QF+4*jj}:{QF+4*jj+3}], {c}")
        nop(8)
        A(f"v_cvt_pk_bf16_f32 v{S2}, v{D}, v{D+1}\nv_cvt_pk_bf16_f32 v{S2+1}, v{D+2}, v{D+3}")
        A(f"v_max3_f32 v{vMAX}, v{vMAX}, v{D}, v{D+1}\nv_max3_f32 v{vMAX}, v{vMAX}, v{D+2}, v{D+3}")
        A(f"ds_write_b64 v{vSA}, v[{S2}:{S2+1}] offset:{slot*64}")
        gissue(slot,nextK)
    def vtile(slot, issue_next, waitn, scoff=None, regs=None, pooled=False, smem=False):
        if issue_next==True: fb_pre(slot)
        if pooled: A(f"v_add_u32 v{vT}, s{sSCO+slot}, v{vSA}\nds_read_b64 v[{S2}:{S2+1}], v{vT}")
        else: A(f"ds_read_b64 v[{S2}:{S2+1}], v{vSA} offset:{slot*64 if scoff is None else scoff}")
        A("s_waitcnt lgkmcnt(0)")
        if issue_next==True: fb_post(slot)
        A(f"v_lshlrev_b32 v{P}, 16, v{S2}\nv_and_b32 v{P+1}, 0xffff0000, v{S2}\nv_lshlrev_b32 v{P+2}, 16, v{S2+1}\nv_and_b32 v{P+3}, 0xffff0000, v{S2+1}")
        for t in range(4): A(f"v_fma_f32 v{P+t}, v{P+t}, s{sC}, v{vNM}")
        for t in range(4): A(f"v_exp_f32 v{P+t}, v{P+t}")
        nop(1)
        for t in range(4): A(f"v_cvt_pk_bf16_f32 v{P+t}, v{P+t}, v{P+t}")
        for t in range(4):
            for r in range(4): A(f"v_and_b32 v{AR+4*t+r}, v{P+t}, v{vMASK+r}")
        src=TF if regs is None else regs
        if regs is None:
            if waitn=='y':
                go=lab("wy")
                A("s_waitcnt vmcnt(24)")
                for y in (3,2,1): A(f"s_cmp_ge_i32 s{sY}, {y}\ns_cbranch_scc1 {go}\ns_waitcnt vmcnt({8*(y-1)})")
                A(f"{go}:")
            else: A(f"s_waitcnt vmcnt({waitn})")
            for u in range(8):
                A(f"ds_read_b128 v[{TF+4*u}:{TF+4*u+3}], v{vVA} offset:{slot*8192+(u>>1)*2048+(u&1)*256}")
        else: nop(2)
        for u in range(8):
            t=u>>1; h=u&1
            if regs is None: A(f"s_waitcnt lgkmcnt({7-u})")
            A(f"v_mfma_f32_16x16x32_bf16 v[{ACC+4*h}:{ACC+4*h+3}], v[{AR+4*t}:{AR+4*t+3}], v[{src+4*u}:{src+4*u+3}], v[{ACC+4*h}:{ACC+4*h+3}]")
        if issue_next=='pool': pool_issue(slot)
        elif issue_next=='claim':
            g='fb' if cfg.fb else cfg.infl
            issue_half(slot,False,0,g); claim(); issue_half(slot,False,1,g)
        elif issue_next: gissue(slot,False)
    def claim():
        A(f"s_mov_b32 s{sCL}, 1\ns_atomic_add s{sCL}, s[{sPC}:{sPC+1}], 0 glc")
    def pool_issue(slot):
        sk=lab("pn"); dn=lab("pd")
        A(f"s_waitcnt lgkmcnt(0)\ns_cmp_ge_u32 s{sCL}, 32\ns_cbranch_scc1 {sk}")
        A(f"s_and_b32 s4, s{sCL}, 7\ns_lshr_b32 s5, s{sCL}, 3\ns_lshl_b32 s{sOFF}, s4, 20\ns_lshl_b32 s6, s5, 15\ns_add_u32 s{sOFF}, s{sOFF}, s6\ns_add_u32 s{sOFF}, s{sOFF}, s{sV0}")
        A(f"s_lshl_b32 s4, s4, 10\ns_lshl_b32 s5, s5, 8\ns_add_u32 s{sSCO+slot}, s4, s5")
        for j in range(8):
            half=j>>2; jj=j&3
            if j==cfg.pclaim: claim()
            A(f"s_add_u32 m0, s{sRING}, {slot*8192+half*4096}\ns_waitcnt vmcnt({cfg.pinfl-1})")
            A(f"buffer_load_dwordx4 v{vVO+half}, s[{SRDV}:{SRDV+3}], s{sOFF} offen offset:{jj*1024} nt lds")
        A(f"s_branch {dn}\n{sk}:\ns_mov_b32 s{sSCO+slot}, -1\ns_sub_u32 s{sY}, s{sY}, 1\n{dn}:")

    lk=lab("kloop")
    A(f"s_mov_b32 s{sCNT}, 7")
    A(f"{lk}:")
    for s in range(4): ktile(s,True)
    A(f"v_add_u32 v{vSA}, 256, v{vSA}")
    A(f"s_sub_u32 s{sCNT}, s{sCNT}, 1\ns_cmp_lg_u32 s{sCNT}, 0\ns_cbranch_scc1 {lk}")
    if cfg.vpre: A(f"s_add_u32 s{sNEXT}, s{sNEXT}, {4*32768}\ns_and_b32 s{sNEXT}, s{sNEXT}, 0xfffff")
    for s in range(4): ktile(s,False)
    A(f"v_subrev_u32 v{vSA}, {7*256}, v{vSA}")
    for r in range(8): A(f"v_mov_b32 v{ACC+r}, 0")
    xrowred("v_max_f32", vMAX, vT)
    rbf(vMAX,vMAX)
    A(f"v_bfe_u32 v3, v2, 3, 1\nv_lshlrev_b32 v3, 4, v3\nv_add_u32 v3, {MX}, v3")
    A(f"s_lshl_b32 s{sCNT}, s{sWAVE}, 2\nv_add_u32 v4, s{sCNT}, v3")
    A(f"ds_write_b32 v4, v{vMAX}\ns_waitcnt lgkmcnt(0)\ns_barrier")
    A(f"ds_read_b128 v[{D}:{D+3}], v3\ns_mov_b32 s{sC}, {f2u(CEXP):#x}\ns_waitcnt lgkmcnt(0)")
    A(f"v_max_f32 v{vMAX}, v{D}, v{D+1}\nv_max3_f32 v{vMAX}, v{vMAX}, v{D+2}, v{D+3}")
    A(f"v_mul_f32 v{vNM}, s{sC}, v{vMAX}\nv_sub_f32 v{vNM}, 0, v{vNM}")
    A("v_lshrrev_b32 v6, 5, v2\nv_lshlrev_b32 v6, 10, v6\nv_and_b32 v5, 15, v2\nv_lshl_add_u32 v6, v5, 5, v6\nv_bfe_u32 v5, v2, 4, 1\nv_lshl_add_u32 v6, v5, 4, v6")
    A(f"v_add_u32 v6, s{sRING}, v6")
    A(f"s_lshl_b32 s{sCNT}, s{sWAVE}, 9\nv_lshlrev_b32 v4, 3, v2\nv_add_u32 v4, s{sCNT}, v4\nv_add_u32 v5, 0x10000, v4")
    A(f"s_lshr_b32 s{sCNT}, s{sWAVE}, 1\ns_lshl_b32 s{sCNT}, s{sCNT}, 2\ns_add_u32 s{sCNT}, s{sCNT}, {FB}\nv_mov_b32 v3, s{sCNT}")
    lv=lab("vloop")
    if cfg.vpre:
        for s in range(4):
            vtile(s,True,24,scoff=256+s*64)
            vtile(s,False,0,scoff=s*64,regs=VP+32*s)
        A(f"v_add_u32 v{vSA}, 512, v{vSA}")
    assert cfg.vpre and (cfg.rot==0 or not cfg.pool)
    A(f"s_mov_b32 s{sCNT}, {3 if cfg.pool else 5}")
    A(f"{lv}:")
    for s in range(4): vtile(s,True,24)
    A(f"v_add_u32 v{vSA}, 256, v{vSA}")
    A(f"s_sub_u32 s{sCNT}, s{sCNT}, 1\ns_cmp_lg_u32 s{sCNT}, 0\ns_cbranch_scc1 {lv}")
    if cfg.pool:
        for s in range(3): vtile(s,True,24)
        lw=lab("rw"); lwd=lab("rwd")
        A(f"v_mov_b32 v{vT}, {RDY}\ns_mov_b32 s{sCNT}, 0")
        A(f"{lw}:\nds_read_b32 v{D}, v{vT}\ns_add_u32 s{sCNT}, s{sCNT}, 1\ns_waitcnt lgkmcnt(0)\nv_readfirstlane_b32 s4, v{D}\ns_cmp_lg_u32 s4, 0\ns_cbranch_scc1 {lwd}")
        A(f"s_sleep 4\ns_cmp_lt_u32 s{sCNT}, {SPIN_LIMIT*16}\ns_cbranch_scc1 {lw}\n{lwd}:")
        A(f"s_lshr_b32 s4, s2, 3\ns_lshl_b32 s5, s4, 2\ns_add_u32 s5, s5, s{sWAVE}\ns_mul_i32 s5, s5, {CSTR}\ns_add_u32 s5, s5, {CNT}\ns_add_u32 s{sPC}, s{sWS}, s5\ns_addc_u32 s{sPC+1}, s{sWS+1}, 0")
        A(f"s_lshl_b32 s{sV0}, s4, 23\ns_lshl_b32 s5, s{sWAVE}, 13\ns_add_u32 s{sV0}, s{sV0}, s5\ns_add_u32 s{sV0}, s{sV0}, {28*32768}\ns_mov_b32 s{sY}, 3")
        vtile(3,'claim',24)
        A(f"v_add_u32 v{vSA}, 256, v{vSA}")
        for s in range(4): vtile(s,'pool','y')
        A(f"v_lshrrev_b32 v{vT}, 5, v2\nv_lshlrev_b32 v{vT}, 2, v{vT}\nv_add_u32 v{vT}, {FB+8}, v{vT}\nds_read_b32 v{D}, v{vT}")
        A(f"v_bfe_u32 v{vT}, v2, 3, 1\nv_lshlrev_b32 v{vSA}, 5, v{vT}\nv_lshlrev_b32 v{vT}, 2, v{vT}\nv_add_u32 v{vT}, {FB+16}, v{vT}\nds_read_b32 v{vNM}, v{vT}")
        A(f"v_lshrrev_b32 v{vT}, 4, v2\nv_lshl_add_u32 v{vSA}, v{vT}, 3, v{vSA}\ns_lshl_b32 s4, s{sWAVE}, 6\ns_add_u32 s4, s4, {WBUF}\nv_add_u32 v{vSA}, s4, v{vSA}")
        A("s_waitcnt lgkmcnt(0)")
        for r in range(8): A(f"v_mul_f32 v{ACC+r}, v{ACC+r}, v{D}")
        lp=lab("ploop"); le=lab("pend")
        A(f"{lp}:")
        for s in range(4):
            A(f"s_cmp_eq_u32 s{sSCO+s}, -1\ns_cbranch_scc1 {le}")
            vtile(s,'pool','y',pooled=True)
        A(f"s_branch {lp}\n{le}:")
        A(f"s_lshl_b32 s{sOFF}, s2, 11\ns_add_u32 s{sOFF}, s{sOFF}, {OBOX}")
    else:
        A(f"s_lshl_b32 s{sOFF}, s2, 11\ns_add_u32 s{sOFF}, s{sOFF}, {OBOX}")
        for s in range(4): vtile(s,False,24-8*s)
    nop(7)
    A(f"ds_write_b128 v6, v[{ACC}:{ACC+3}]\nds_write_b128 v6, v[{ACC+4}:{ACC+7}] offset:512")
    A("s_waitcnt lgkmcnt(0)\ns_barrier")
    A(f"ds_read_b64 v[{TF}:{TF+1}], v4\nds_read_b64 v[{TF+2}:{TF+3}], v4 offset:32768\nds_read_b64 v[{TF+4}:{TF+5}], v5\nds_read_b64 v[{TF+6}:{TF+7}], v5 offset:32768\nds_read_b32 v{TF+8}, v3")
    A("s_waitcnt lgkmcnt(3)")
    A(f"v_add_f32 v{TF}, v{TF}, v{TF+2}\nv_add_f32 v{TF+1}, v{TF+1}, v{TF+3}")
    A("s_waitcnt lgkmcnt(1)")
    A(f"v_add_f32 v{TF+4}, v{TF+4}, v{TF+6}\nv_add_f32 v{TF+5}, v{TF+5}, v{TF+7}\nv_add_f32 v{TF}, v{TF}, v{TF+4}\nv_add_f32 v{TF+1}, v{TF+1}, v{TF+5}")
    A("s_waitcnt lgkmcnt(0)")
    A(f"v_mul_f32 v{TF}, v{TF}, v{TF+8}\nv_mul_f32 v{TF+1}, v{TF+1}, v{TF+8}")
    A(f"v_bfi_b32 v{TF}, s{sFF}, v{vTG}, v{TF}\nv_bfi_b32 v{TF+1}, s{sFF}, v{vTG}, v{TF+1}")
    if not cfg.noopub: A(f"buffer_store_dwordx2 v[{TF}:{TF+1}], v4, s[{SRDW}:{SRDW+3}], s{sOFF} offen sc1")
    A("s_endpgm")

    vL16=3; vWO_=4; vTR=5; vXA=6
    X=8; F=12; T=20
    XF=32; WF=88
    WT=144
    PA=208
    AM=216
    vT8=220; vFX=221; vG1=222; vG2=223; vPS=224; vTO=225; vFM=226; vH=227
    AT=88
    sE,sTAG,sCQ,sO2,sSPIN,sCM,sFF,sA,sB=60,61,62,63,64,65,78,66,67
    A(f"{Laux}:")
    lend=lab("end")
    if cfg.auxnull:
        A("s_waitcnt lgkmcnt(0)"); srd(SRDW,sWS,1<<30)
        A("s_barrier"); stamp(3); A("s_barrier"); stamp(4); A("s_barrier"); stamp(5); A(f"s_branch {lend}")
    A("s_setprio 3")
    A(f"v_lshrrev_b32 v7, 1, v2\nv_and_b32 v{T}, 1, v2\nv_lshlrev_b32 v{T}, 4, v{T}")
    A(f"v_lshl_add_u32 v{vWO_}, v7, 13, v{T}\nv_lshlrev_b32 v{vL16}, 4, v2")
    A(f"s_and_b32 s{sCQ}, s2, 7\ns_lshl_b32 s{sCQ}, s{sCQ}, 5\ns_lshr_b32 s{sO2}, s2, 3\ns_add_u32 s{sCQ}, s{sCQ}, s{sO2}\ns_lshl_b32 s{sO2}, s{sCQ}, 5")
    A("s_waitcnt lgkmcnt(0)")
    A(f"s_load_dword s{sE}, s[{sWS}:{sWS+1}], 0")
    srd(SRDA,sX,896)
    A(f"buffer_load_dwordx4 v[{X}:{X+3}], v{vL16}, s[{SRDA}:{SRDA+3}], 0 offen")
    srd(SRDK,sWQ,448*4096*2)
    def wdma(sr, step, gate=None):
        for i in range(14):
            if gate is not None: A(f"s_waitcnt vmcnt({gate})")
            A(f"s_mov_b32 m0, {WBUF+i*1024}")
            if i: A(f"s_add_u32 s{sO2}, s{sO2}, {step}")
            else: nop(1)
            A(f"buffer_load_dwordx4 v{vWO_}, s[{sr}:{sr+3}], s{sO2} offen {cfg.cnt} lds")
    wdma(SRDK,32*8192,cfg.qgate)
    srd(SRDW,sWS,1<<30)
    A(f"v_lshrrev_b32 v{T}, 4, v2\nv_bfe_u32 v{T+1}, v2, 2, 2\nv_lshl_add_u32 v{T+1}, v{T}, 3, v{T+1}\nv_and_b32 v{T+2}, 3, v2\nv_lshlrev_b32 v{T+2}, 3, v{T+2}\nv_add_u32 v{T+2}, {WBUF}, v{T+2}")
    A(f"v_lshl_add_u32 v{vTR}, v{T+1}, 5, v{T+2}\nv_lshl_add_u32 v{vG1}, v{T+1}, 6, v{T+2}")
    A(f"v_lshlrev_b32 v{T}, 4, v{T}\nv_add_u32 v{vXA}, {XN}, v{T}")
    A("v_cmp_gt_u32 s[74:75], 56, v2")
    A("s_waitcnt vmcnt(14)")
    for r in range(4):
        A(f"v_lshlrev_b32 v{F+2*r}, 16, v{X+r}\nv_and_b32 v{F+2*r+1}, 0xffff0000, v{X+r}")
    A(f"v_add_f32 v{T}, v{F}, v{F+1}\nv_add_f32 v{T+1}, v{F+2}, v{F+3}\nv_add_f32 v{T+2}, v{F+4}, v{F+5}\nv_add_f32 v{T+3}, v{F+6}, v{F+7}")
    A(f"v_add_f32 v{T}, v{T}, v{T+1}\nv_add_f32 v{T+2}, v{T+2}, v{T+3}\nv_add_f32 v{T}, v{T}, v{T+2}")
    rowred("v_add_f32",T,[1,2,4,8]); xrowred("v_add_f32",T,T+1)
    A(f"v_mul_f32 v{T}, {f2u(1.0/448):#x}, v{T}")
    A(f"v_sub_f32 v{T+2}, v{F}, v{T}\nv_mul_f32 v{T+1}, v{T+2}, v{T+2}")
    for r in range(1,8):
        A(f"v_sub_f32 v{T+2}, v{F+r}, v{T}\nv_fmac_f32 v{T+1}, v{T+2}, v{T+2}")
    A(f"v_cndmask_b32 v{T+1}, 0, v{T+1}, s[74:75]")
    rowred("v_add_f32",T+1,[1,2,4,8]); xrowred("v_add_f32",T+1,T+2)
    A(f"v_mul_f32 v{T+1}, {f2u(1.0/448):#x}, v{T+1}")
    rbf(T,T); rbf(T+1,T+1)
    A(f"v_add_f32 v{T+1}, {f2u(1e-5):#x}, v{T+1}"); rbf(T+1,T+1)
    A(f"v_sqrt_f32 v{T+1}, v{T+1}"); nop(1); rbf(T+1,T+1)
    A(f"v_rcp_f32 v{T+2}, v{T+1}")
    for r in range(8): A(f"v_sub_f32 v{F+r}, v{F+r}, v{T}")
    for r in range(4): A(f"v_cvt_pk_bf16_f32 v{X+r}, v{F+2*r}, v{F+2*r+1}")
    for r in range(4): A(f"v_lshlrev_b32 v{F+2*r}, 16, v{X+r}\nv_and_b32 v{F+2*r+1}, 0xffff0000, v{X+r}")
    for r in range(8):
        A(f"v_mul_f32 v{T+3}, v{F+r}, v{T+2}\nv_fma_f32 v{T+4}, -v{T+3}, v{T+1}, v{F+r}\nv_fma_f32 v{F+r}, v{T+4}, v{T+2}, v{T+3}")
    for r in range(4): A(f"v_cvt_pk_bf16_f32 v{X+r}, v{F+2*r}, v{F+2*r+1}")
    A(f"v_add_u32 v{T}, {XN}, v{vL16}\nds_write_b128 v{T}, v[{X}:{X+3}]\ns_waitcnt lgkmcnt(0)")
    for jj in range(14): A(f"ds_read_b128 v[{XF+4*jj}:{XF+4*jj+3}], v{vXA} offset:{jj*64}")
    A("s_waitcnt vmcnt(0)")
    for jj in range(14):
        A(f"ds_read_b64_tr_b16 v[{WF+4*jj}:{WF+4*jj+1}], v{vTR} offset:{jj*1024}\nds_read_b64_tr_b16 v[{WF+4*jj+2}:{WF+4*jj+3}], v{vTR} offset:{jj*1024+128}")
    A(f"s_waitcnt lgkmcnt(0)")
    for jj in range(14):
        c="0" if jj==0 else f"v[{T}:{T+3}]"
        A(f"v_mfma_f32_16x16x32_bf16 v[{T}:{T+3}], v[{XF+4*jj}:{XF+4*jj+3}], v[{WF+4*jj}:{WF+4*jj+3}], {c}")
    A(f"s_mul_i32 s{sTAG}, s{sE}, 0x9E3779B1\ns_add_u32 s{sTAG}, s{sTAG}, 0x7F4A7C15")
    A(f"s_add_u32 s{sFF}, s{sE}, 1\ns_and_b32 s{sFF}, s{sFF}, 0xff\nv_mov_b32 v{vT8}, s{sFF}\ns_mov_b32 s{sFF}, 0xff")
    A(f"s_lshl_b32 s{sO2}, s{sCQ}, 6\ns_add_u32 s{sO2}, s{sO2}, {QBOX}\nv_lshlrev_b32 v{T+6}, 3, v7\nv_mov_b32 v{T+5}, s{sTAG}")
    A(f"v_mov_b32_dpp v{T+1}, v{T} quad_perm:[1,1,3,3] {DPP}")
    A(f"v_cvt_pk_bf16_f32 v{T+4}, v{T}, v{T+1}")
    A("s_mov_b64 exec, 0x5555")
    A(f"buffer_store_dwordx2 v[{T+4}:{T+5}], v{T+6}, s[{SRDW}:{SRDW+3}], s{sO2} offen sc1")
    A("s_mov_b64 exec, -1")
    stamp(2)
    TT1=tt(lambda a,b,t:(a^t)|(b^t)); TT2=tt(lambda a,b,c:(a|b)&c)
    def poll(loads, soff, mode, sleep, fast=0, fthr=None):
        PM=4
        lp=lab("poll"); ld=lab("polld")
        for i,(d,vo,imm,lm) in enumerate(loads):
            if lm is None: A(f"s_mov_b64 s[{PM+2*i}:{PM+2*i+1}], -1")
            else: A(f"s_mov_b32 s{PM+2*i}, {lm&0xffffffff:#x}\ns_mov_b32 s{PM+2*i+1}, {lm>>32:#x}")
        A(f"s_mov_b32 s{sSPIN}, 0\ns_mov_b32 s14, 999")
        A(f"{lp}:")
        for i,(d,vo,imm,lm) in enumerate(loads):
            sk=lab("sk")
            A(f"s_mov_b64 exec, s[{PM+2*i}:{PM+2*i+1}]\ns_cbranch_execz {sk}")
            A(f"buffer_load_dwordx4 v[{d}:{d+3}], v{vo}, s[{SRDW}:{SRDW+3}], s{soff} offen offset:{imm} sc1")
            A(f"{sk}:")
        A(f"s_mov_b64 exec, -1\ns_add_u32 s{sSPIN}, s{sSPIN}, 1")
        if fast and fthr is not None:
            sk=lab("fs")
            A(f"s_cmp_le_u32 s14, {fthr}\ns_cbranch_scc1 {sk}\ns_waitcnt vmcnt(0)\n{sk}:")
        A(f"s_waitcnt vmcnt({fast})")
        for i,(d,vo,imm,lm) in enumerate(loads):
            if mode=='q':
                A(f"v_xor_b32 v{T+i}, s{sTAG}, v{d+1}\nv_xor_b32 v{T+4+i}, s{sTAG}, v{d+3}\nv_or_b32 v{T+i}, v{T+i}, v{T+4+i}")
            else:
                A(f"v_bitop3_b32 v{T+i}, v{d}, v{d+1}, v{vT8} bitop3:{TT1:#x}\nv_bitop3_b32 v{T+4+i}, v{d+2}, v{d+3}, v{vT8} bitop3:{TT1:#x}")
                A(f"v_bitop3_b32 v{T+i}, v{T+i}, v{T+4+i}, s{sFF} bitop3:{TT2:#x}")
        for i,(d,vo,imm,lm) in enumerate(loads):
            A(f"v_cmp_ne_u32 vcc, 0, v{T+i}\ns_and_b64 s[{PM+2*i}:{PM+2*i+1}], s[{PM+2*i}:{PM+2*i+1}], vcc")
        if len(loads)>1:
            A(f"s_or_b64 s[12:13], s[{PM}:{PM+1}], s[{PM+2}:{PM+3}]")
            for i in range(2,len(loads)): A(f"s_or_b64 s[12:13], s[12:13], s[{PM+2*i}:{PM+2*i+1}]")
        A(f"s_cbranch_scc0 {ld}")
        if fast and fthr is not None:
            A(f"s_bcnt1_i32_b64 s14, s[{PM}:{PM+1}]")
            for i in range(1,len(loads)): A(f"s_bcnt1_i32_b64 s15, s[{PM+2*i}:{PM+2*i+1}]\ns_add_u32 s14, s14, s15")
            if sleep:
                sk=lab("ns")
                A(f"s_cmp_le_u32 s14, {fthr}\ns_cbranch_scc1 {sk}\ns_sleep {sleep}\n{sk}:")
        elif sleep: A(f"s_sleep {sleep}")
        A(f"s_cmp_lt_u32 s{sSPIN}, {SPIN_LIMIT*4}\ns_cbranch_scc1 {lp}")
        A(f"{ld}:")
    A(f"s_lshr_b32 s{sO2}, s2, 5\ns_lshl_b32 s{sO2}, s{sO2}, 11\ns_add_u32 s{sO2}, s{sO2}, {QBOX}")
    poll([(F,vL16,0,None),(F+4,vL16,1024,None)], sO2, 'q', cfg.qsleep)
    A(f"v_mov_b32 v{T}, {RDY}\nv_mov_b32 v{T+1}, 0\nds_write_b32 v{T}, v{T+1}")
    A(f"v_lshlrev_b32 v{T}, 3, v2\nv_add_u32 v{T}, {QB}, v{T}")
    A(f"ds_write2_b32 v{T}, v{F}, v{F+2} offset0:0 offset1:1\nds_write2_b32 v{T}, v{F+4}, v{F+6} offset0:128 offset1:129")
    A("s_waitcnt lgkmcnt(0)\ns_barrier")
    stamp(3)
    if cfg.pool:
        lz=lab("nz")
        A(f"s_and_b32 s4, s2, 7\ns_cbranch_scc1 {lz}")
        A(f"s_lshr_b32 s4, s2, 3\ns_mul_i32 s4, s4, {4*CSTR}\ns_add_u32 s4, s4, {CNT}\nv_mul_u32_u24 v{T}, {CSTR}, v2\nv_mov_b32 v{T+1}, 0\ns_mov_b64 exec, 15")
        A(f"buffer_store_dword v{T+1}, v{T}, s[{SRDW}:{SRDW+3}], s4 offen sc1\ns_mov_b64 exec, -1\n{lz}:")
    A(f"s_bfe_u32 s{sB}, s2, 0x10003\ns_lshr_b32 s{sA}, s2, 4\ns_lshl_b32 s{sA}, s{sA}, 3\ns_and_b32 s{sO2}, s2, 7\ns_add_u32 s{sA}, s{sA}, s{sO2}")
    A(f"v_and_b32 v{T}, 15, v2"); masks(AM,T,T+1,T+2)
    A(f"v_lshrrev_b32 v{T+1}, 4, v2\nv_mul_u32_u24 v{vTO}, 896, v{T+1}\nv_lshl_add_u32 v{vTO}, v{T}, 4, v{vTO}")
    for r in range(8): A(f"v_mov_b32 v{PA+r}, 0")
    def tile_load(sr):
        for t in range(8):
            if cfg.agate is not None: A(f"s_waitcnt vmcnt({cfg.agate})")
            A(f"buffer_load_dwordx4 v[{WT+8*t}:{WT+8*t+3}], v{vTO}, s[{sr}:{sr+3}], s{sO2} offen {cfg.wnt}")
            A("s_mov_b32 exec_lo, 0x0fff0fff\ns_mov_b32 exec_hi, 0x0fff0fff")
            A(f"buffer_load_dwordx4 v[{WT+8*t+4}:{WT+8*t+7}], v{vTO}, s[{sr}:{sr+3}], s{sO2} offen offset:256 {cfg.wnt}")
            A(f"s_mov_b64 exec, -1\ns_add_u32 s{sO2}, s{sO2}, 3584")
    def project(src):
        for t in range(8):
            v,ln=src(t)
            for r in range(4): A(f"v_and_b32_dpp v{AT+4*t+r}, v{v}, v{AM+r} row_newbcast:{ln} {DPP}")
            if t>=1:
                tp=t-1
                for cb in range(2):
                    A(f"v_mfma_f32_16x16x32_bf16 v[{PA+4*cb}:{PA+4*cb+3}], v[{AT+4*tp}:{AT+4*tp+3}], v[{WT+8*tp+4*cb}:{WT+8*tp+4*cb+3}], v[{PA+4*cb}:{PA+4*cb+3}]")
        for cb in range(2):
            A(f"v_mfma_f32_16x16x32_bf16 v[{PA+4*cb}:{PA+4*cb+3}], v[{AT+28}:{AT+31}], v[{WT+56+4*cb}:{WT+56+4*cb+3}], v[{PA+4*cb}:{PA+4*cb+3}]")
    A(f"v_lshrrev_b32 v{T}, 5, v2\nv_lshlrev_b32 v{T}, 9, v{T}\nv_and_b32 v{T+1}, 15, v2\nv_lshl_add_u32 v{T}, v{T+1}, 5, v{T}\nv_bfe_u32 v{T+1}, v2, 4, 1\nv_lshl_add_u32 v{vPS}, v{T+1}, 4, v{T}")
    def rec_store(soff):
        nop(8)
        for r in range(4): A(f"v_permlane32_swap_b32 v{PA+r}, v{PA+4+r}")
        for r in range(4): A(f"v_bfi_b32 v{PA+r}, s{sFF}, v{vT8}, v{PA+r}")
        A("s_mov_b32 exec_hi, 0x0fff0fff")
        A(f"buffer_store_dwordx4 v[{PA}:{PA+3}], v{vPS}, s[{SRDW}:{SRDW+3}], s{soff} offen sc1")
        A("s_mov_b32 exec_hi, -1")
    lnm=lab("nomlp")
    A(f"s_cmp_ge_u32 s2, {0 if cfg.nomlp else 112}\ns_cbranch_scc1 {lnm}")
    A(f"s_and_b32 s{sCM}, s2, 7\ns_mul_i32 s{sCM}, s{sCM}, 7\ns_lshr_b32 s{sO2}, s2, 4\ns_add_u32 s{sCM}, s{sCM}, s{sO2}")
    A(f"v_lshrrev_b32 v{T}, 2, v2\nv_mul_u32_u24 v{vWO_}, 3584, v{T}\nv_and_b32 v{T}, 3, v2\nv_lshl_add_u32 v{vWO_}, v{T}, 4, v{vWO_}")
    srd(SRDK,sW1,448*1792*2)
    srd(SRDA,sB1,3584)
    A(f"v_and_b32 v{T}, 15, v2\nv_lshlrev_b32 v{T}, 1, v{T}\ns_lshl_b32 s{sO2}, s{sCM}, 6")
    A(f"buffer_load_ushort v{F}, v{T}, s[{SRDA}:{SRDA+3}], s{sO2} offen\ns_nop 0\nbuffer_load_ushort v{F+1}, v{T}, s[{SRDA}:{SRDA+3}], s{sO2} offen offset:32")
    for ps in range(2):
        wdma(SRDK,16*3584,cfg.agate)
        A(f"s_add_u32 s{sO2}, s{sO2}, {16*3584}\ns_waitcnt vmcnt(0)")
        for kk in range(7):
            for u in range(2):
                r=WF+8*kk+4*u
                A(f"ds_read_b64_tr_b16 v[{r}:{r+1}], v{vG1} offset:{kk*2048+u*32}\nds_read_b64_tr_b16 v[{r+2}:{r+3}], v{vG1} offset:{kk*2048+u*32+256}")
        A("s_waitcnt lgkmcnt(0)")
        for kk in range(7):
            for u in range(2):
                r=WF+8*kk+4*u; x=XF+4*(7*ps+kk)
                c="0" if (ps==0 and kk==0) else f"v[{T+4*u}:{T+4*u+3}]"
                A(f"v_mfma_f32_16x16x32_bf16 v[{T+4*u}:{T+4*u+3}], v[{x}:{x+3}], v[{r}:{r+3}], {c}")
    srd(SRDK,sW2,1792*448*2)
    A(f"s_mul_i32 s{sO2}, s{sCM}, {32*896}\ns_mul_i32 s{sSPIN}, s{sB}, 448\ns_add_u32 s{sO2}, s{sO2}, s{sSPIN}")
    tile_load(SRDK)
    k0=math.sqrt(2/math.pi)
    for u in range(2):
        h=T+4*u; t1=h+1; t2=h+2
        rbf(h,h)
        A(f"v_lshlrev_b32 v{F+u}, 16, v{F+u}\nv_add_f32 v{h}, v{h}, v{F+u}"); rbf(h,h)
        A(f"v_mul_f32 v{t1}, v{h}, v{h}\nv_mul_f32 v{t1}, v{t1}, v{h}\nv_mov_b32 v{t2}, {f2u(0.044715):#x}\nv_fma_f32 v{t1}, v{t1}, v{t2}, v{h}")
        A(f"v_mul_f32 v{t1}, {f2u(-2*k0*math.log2(math.e)):#x}, v{t1}\nv_exp_f32 v{t1}, v{t1}"); nop(1)
        A(f"v_add_f32 v{t1}, 1.0, v{t1}\nv_rcp_f32 v{t1}, v{t1}"); nop(1)
        A(f"v_mul_f32 v{h}, v{h}, v{t1}\nv_cvt_pk_bf16_f32 v{h}, v{h}, v{h}\nv_mov_b32 v{t1}, v{h}"); nop(2)
        for g in range(1,4): A(f"v_mov_b32_dpp v{t1}, v{h} row_ror:{16-g} row_mask:{1<<g:#x} bank_mask:0xf")
    A("s_waitcnt vmcnt(0)"); nop(2)
    project(lambda t:(T+4*(t>>2)+1, 4*(t&3)))
    if cfg.mimic:
        A(f"s_lshl_b32 s{sO2}, s{sB}, 6\ns_add_u32 s{sO2}, s{sO2}, s{sCM}\ns_lshl_b32 s{sO2}, s{sO2}, 10\ns_add_u32 s{sO2}, s{sO2}, {MBOX}")
        rec_store(sO2)
        nop(2)
        for r in range(8): A(f"v_mov_b32 v{PA+r}, 0")
    nop(4)
    stamp('mlpdone')
    A(f"{lnm}:")
    srd(SRDK,sWO,4096*448*2)
    A(f"s_mul_i32 s{sO2}, s{sA}, {32*896}\ns_mul_i32 s{sSPIN}, s{sB}, 448\ns_add_u32 s{sO2}, s{sO2}, s{sSPIN}")
    if not cfg.nowo: tile_load(SRDK)
    FC=cfg.fc
    lnf=lab("nofin")
    FC0=256-FC
    if FC==56:
        A(f"v_lshrrev_b32 v{T}, 4, v2\nv_and_b32 v{T+1}, 1, v2\nv_lshl_add_u32 v{T}, v{T+1}, 2, v{T}\nv_lshlrev_b32 v{vG2}, 1, v{T}")
        A(f"s_sub_u32 s{sO2}, s2, {FC0}\ns_lshl_b32 s{sO2}, s{sO2}, 4")
    else:
        A(f"v_lshrrev_b32 v{T}, 4, v2\nv_lshlrev_b32 v{vG2}, 1, v{T}")
        A(f"s_sub_u32 s{sO2}, s2, {FC0}\ns_lshl_b32 s{sO2}, s{sO2}, 3")
    A(f"v_add_u32 v{vG2}, s{sO2}, v{vG2}")
    A(f"s_cmp_lt_u32 s2, {FC0}\ns_cbranch_scc1 {lnf}")
    srd(SRDA,sX,896)
    A(f"buffer_load_ushort v{vFX}, v{vG2}, s[{SRDA}:{SRDA+3}], 0 offen")
    srd(SRDK,sB2,896)
    A(f"buffer_load_ushort v{T}, v{vG2}, s[{SRDK}:{SRDK+3}], 0 offen")
    A(f"s_waitcnt vmcnt(0)\nv_lshlrev_b32 v{vFX}, 16, v{vFX}\nv_lshlrev_b32 v{vFM}, 16, v{T}")
    if not cfg.mimic: A(f"v_add_f32 v{vFX}, v{vFX}, v{vFM}")
    A(f"{lnf}:")
    stamp('wodone')
    A("s_barrier")
    stamp(4)
    A(f"s_mov_b32 s{sCM}, {f2u(CEXP):#x}")
    if cfg.pool:
        A(f"v_bfe_u32 v{T}, v2, 2, 2\nv_lshlrev_b32 v{T}, 11, v{T}\nv_lshrrev_b32 v{T+1}, 4, v2\nv_lshl_add_u32 v{T}, v{T+1}, 6, v{T}\nv_and_b32 v{T+1}, 3, v2\nv_lshl_add_u32 v{T}, v{T+1}, 4, v{T}\nv_add_u32 v{T}, {SC+28*64}, v{T}")
        A(f"ds_read_b128 v[{X}:{X+3}], v{T}\ns_lshl_b32 s4, s2, 10\ns_add_u32 s4, s4, {SBOX}\ns_waitcnt lgkmcnt(0)")
        A(f"buffer_store_dwordx4 v[{X}:{X+3}], v{vL16}, s[{SRDW}:{SRDW+3}], s4 offen sc1")
    A(f"v_and_b32 v{T}, 1, v2\nv_lshlrev_b32 v{T+1}, 4, v{T}\nv_add_u32 v{T+1}, {MX}, v{T+1}\nv_lshlrev_b32 v{T+2}, 5, v2\nv_add_u32 v{T+2}, {SC}, v{T+2}")
    A(f"ds_read_b128 v[{F}:{F+3}], v{T+1}")
    for w in range(4):
        A(f"ds_read_b128 v[{XF+8*w}:{XF+8*w+3}], v{T+2} offset:{w*2048}\nds_read_b128 v[{XF+8*w+4}:{XF+8*w+7}], v{T+2} offset:{w*2048+16}")
    A("s_waitcnt lgkmcnt(0)")
    A(f"v_max_f32 v{F}, v{F}, v{F+1}\nv_max3_f32 v{F}, v{F}, v{F+2}, v{F+3}\nv_mul_f32 v{F+4}, s{sCM}, v{F}\nv_sub_f32 v{F+4}, 0, v{F+4}")
    A(f"v_mov_b32 v{F+1}, 0\nv_mov_b32 v{F+5}, 0")
    for r in range(32):
        A(f"v_lshlrev_b32 v{T+3}, 16, v{XF+r}\nv_and_b32 v{T+4}, 0xffff0000, v{XF+r}")
        A(f"v_fma_f32 v{T+3}, v{T+3}, s{sCM}, v{F+4}\nv_fma_f32 v{T+4}, v{T+4}, s{sCM}, v{F+4}")
        A(f"v_exp_f32 v{T+3}, v{T+3}\nv_exp_f32 v{T+4}, v{T+4}"); nop(1)
        A(f"v_add_f32 v{F+1}, v{F+1}, v{T+3}\nv_add_f32 v{F+5}, v{F+5}, v{T+4}")
    A(f"v_add_f32 v{F+1}, v{F+1}, v{F+5}")
    rowred("v_add_f32",F+1,[2,4,8]); xrowred("v_add_f32",F+1,T+3)
    nop(2)
    A(f"v_mov_b32_dpp v{F+2}, v{F} quad_perm:[1,1,3,3] {DPP}\nv_mov_b32_dpp v{F+3}, v{F+1} quad_perm:[1,1,3,3] {DPP}")
    A(f"v_mov_b32 v{F+6}, v{F}")
    for r in range(4): A(f"v_bfi_b32 v{F+r}, s{sFF}, v{vT8}, v{F+r}")
    if cfg.probe is not None and cfg.probe[0]=='x':
        A(f"s_getreg_b32 s4, hwreg(HW_REG_XCC_ID)\ns_and_b32 s4, s4, 15\ns_lshl_b32 s4, s4, 8\nv_or_b32 v{F}, s4, v{F}")
    A(f"s_lshl_b32 s{sO2}, s2, 4\ns_add_u32 s{sO2}, s{sO2}, {MLBOX}\nv_mov_b32 v{T}, 0\ns_mov_b64 exec, 1\ns_waitcnt vmcnt(0)")
    if not cfg.noml: A(f"buffer_store_dwordx4 v[{F}:{F+3}], v{T}, s[{SRDW}:{SRDW+3}], s{sO2} offen sc1")
    A("s_mov_b64 exec, -1")
    I1=XF
    A(f"s_lshr_b32 s{sO2}, s2, 5\ns_lshl_b32 s{sO2}, s{sO2}, 9\ns_add_u32 s{sO2}, s{sO2}, {MLBOX}\nv_lshlrev_b32 v{vWO_}, 4, v7")
    if cfg.fb:
        th,lv,df=cfg.fb
        A(f"buffer_load_dwordx4 v[{I1}:{I1+3}], v{vWO_}, s[{SRDW}:{SRDW+3}], s{sO2} offen sc1\ns_waitcnt vmcnt(0)")
        A(f"v_bitop3_b32 v{T}, v{I1}, v{I1+1}, v{vT8} bitop3:{TT1:#x}\nv_bitop3_b32 v{T+4}, v{I1+2}, v{I1+3}, v{vT8} bitop3:{TT1:#x}\nv_bitop3_b32 v{T}, v{T}, v{T+4}, s{sFF} bitop3:{TT2:#x}")
        A(f"v_cmp_eq_u32 vcc, 0, v{T}\ns_bcnt1_i32_b64 s4, vcc\ns_mov_b32 s5, 0")
        for k,t_ in enumerate(th): A(f"s_cmp_ge_u32 s4, {2*t_}\ns_cselect_b32 s5, {k+1}, s5")
        A(f"v_mov_b32 v{T}, {LV}\nv_mov_b32 v{T+1}, s5\nds_write_b32 v{T}, v{T+1}")
    if not cfg.noml: poll([(I1,vWO_,0,None)], sO2, 't', cfg.mlsleep)
    if cfg.probe is not None and cfg.probe[0]=='x':
        A(f"v_bfe_u32 v{T}, v{I1}, 8, 4\nv_mov_b32 v{T+1}, v{T}"); nop(2)
        A(f"v_permlane16_swap_b32 v{T}, v{T+1}\nv_cmp_ne_u32 vcc, v{T}, v{T+1}\ns_bcnt1_i32_b64 s79, vcc")
    A(f"v_and_b32 v{T}, 1, v2\nv_cmp_eq_u32 vcc, 1, v{T}"); nop(2)
    A(f"v_cndmask_b32 v{I1}, v{I1}, v{I1+2}, vcc\nv_cndmask_b32 v{I1+1}, v{I1+1}, v{I1+3}, vcc\nv_and_b32 v{I1}, 0xffff0000, v{I1}\nv_mov_b32 v{T+1}, v{I1}")
    rowred("v_max_f32",T+1,[2,4,8]); xrowred("v_max_f32",T+1,T+2)
    A(f"v_sub_f32 v{T+2}, v{I1}, v{T+1}\nv_sub_f32 v{T+3}, v{F+6}, v{T+1}\nv_mul_f32 v{T+2}, s{sCM}, v{T+2}\nv_mul_f32 v{T+3}, s{sCM}, v{T+3}")
    A(f"v_exp_f32 v{T+2}, v{T+2}\nv_exp_f32 v{T+3}, v{T+3}"); nop(1)
    A(f"v_mul_f32 v{T+2}, v{T+2}, v{I1+1}")
    rowred("v_add_f32",T+2,[2,4,8]); xrowred("v_add_f32",T+2,T+4)
    A(f"v_rcp_f32 v{T+4}, v{T+2}"); nop(1)
    A(f"v_fma_f32 v{T+5}, -v{T+2}, v{T+4}, 1.0\nv_fma_f32 v{T+4}, v{T+5}, v{T+4}, v{T+4}")
    A(f"v_lshlrev_b32 v{T}, 2, v{T}\nv_add_u32 v{T}, {FB}, v{T}")
    if cfg.pool:
        A(f"v_mul_f32 v{T+1}, s{sCM}, v{T+1}\nv_sub_f32 v{T+1}, 0, v{T+1}")
        A(f"ds_write_b32 v{T}, v{T+4}\nds_write_b32 v{T}, v{T+3} offset:8\nds_write_b32 v{T}, v{T+1} offset:16")
        A(f"s_and_b32 s4, s2, 0xf8\ns_lshl_b32 s4, s4, 10\ns_add_u32 s4, s4, {SBOX}")
        for k in range(8):
            if k==4: A("s_add_u32 s4, s4, 4096")
            A(f"s_waitcnt vmcnt(1)\nbuffer_load_dwordx4 v[{I1+4*k}:{I1+4*k+3}], v{vL16}, s[{SRDW}:{SRDW+3}], s4 offen offset:{(k&3)*1024} sc1")
        A(f"v_add_u32 v{T}, {WBUF}, v{vL16}\ns_waitcnt vmcnt(0)")
        for k in range(8): A(f"ds_write_b128 v{T}, v[{I1+4*k}:{I1+4*k+3}] offset:{k*1024}")
        A(f"v_mov_b32 v{T}, {RDY}\nv_mov_b32 v{T+1}, 1\ns_waitcnt lgkmcnt(0)\nds_write_b32 v{T}, v{T+1}")
    else:
        A(f"v_mul_f32 v{T+3}, v{T+3}, v{T+4}\nds_write_b32 v{T}, v{T+3}")
    half=FC//2
    sH2=68
    A(f"s_sub_u32 s{sSPIN}, s2, {FC0}\ns_cmp_ge_u32 s{sSPIN}, {half}\ns_cselect_b32 s{sH2}, {128*1024-896}, 0\ns_cselect_b32 s{sO2}, {64*1024-896}, 0\ns_mul_i32 s{sSPIN}, s{sSPIN}, {1792//FC}")
    A(f"s_add_u32 s{sH2}, s{sH2}, s{sSPIN}\ns_add_u32 s{sH2}, s{sH2}, {PBOX}\ns_add_u32 s{sO2}, s{sO2}, s{sSPIN}\ns_add_u32 s{sO2}, s{sO2}, {MBOX}")
    assert FC==56
    A(f"v_lshlrev_b32 v{vH}, 10, v7\nv_and_b32 v{T}, 1, v2\nv_lshl_add_u32 v{vH}, v{T}, 4, v{vH}")
    for k in range(1,4): A(f"v_add_u32 v{vH+k}, {k*32768}, v{vH}")
    if cfg.mimic and not cfg.nomlp:
        lg=lab("nomg")
        A(f"s_cmp_lt_u32 s2, {FC0}\ns_cbranch_scc1 {lg}")
        for r in range(4): A(f"v_mov_b32 v{I1+4+r}, 0")
        poll([(I1,vH,0,None),(I1+4,vH+1,0,(1<<48)-1)], sO2, 't', 32)
        for r in range(4): A(f"v_add_f32 v{I1+r}, v{I1+r}, v{I1+4+r}")
        tred4(I1); rowred("v_add_f32",I1,[2,4,8])
        rbf(I1,I1)
        A(f"v_add_f32 v{vFM}, v{vFM}, v{I1}"); rbf(vFM,vFM)
        A(f"{lg}:")
    srd(SRDA,sOUT,896)
    A(f"v_bfe_u32 v{T}, v2, 3, 2\nv_lshlrev_b32 v{T}, 14, v{T}\nv_lshrrev_b32 v{T+1}, 5, v2\nv_lshl_add_u32 v{T}, v{T+1}, 11, v{T}\nv_and_b32 v{T+1}, 7, v2\nv_lshl_add_u32 v{vG1}, v{T+1}, 4, v{T}")
    for k in range(1,4): A(f"v_add_u32 v{X+k}, {k*4096}, v{vG1}")
    A(f"s_lshr_b32 s{sO2}, s2, 5\ns_lshl_b32 s{sO2}, s{sO2}, 16\ns_and_b32 s{sSPIN}, s{sA}, 15\ns_lshl_b32 s{sSPIN}, s{sSPIN}, 7\ns_add_u32 s{sO2}, s{sO2}, s{sSPIN}\ns_add_u32 s{sO2}, s{sO2}, {OBOX}")
    A(f"s_lshl_b32 s{sCQ}, s{sB}, 7\ns_add_u32 s{sCQ}, s{sCQ}, s{sA}\ns_lshl_b32 s{sCQ}, s{sCQ}, 10\ns_add_u32 s{sCQ}, s{sCQ}, {PBOX}")
    for r in range(32): A(f"v_not_b32 v{I1+r}, v{vT8}")
    A("s_waitcnt vmcnt(0) lgkmcnt(0)\ns_barrier")
    stamp(5)
    if cfg.notail: A(f"s_branch {lend}")
    R=F
    def sum16(I):
        for r in range(4): A(f"v_add_f32 v{R+r}, v{I+r}, v{I+4+r}\nv_add_f32 v{R+4+r}, v{I+8+r}, v{I+12+r}")
        for r in range(4): A(f"v_add_f32 v{R+r}, v{R+r}, v{R+4+r}")
        tred4(R)
    poll([(I1,vG1,0,None),(I1+4,X+1,0,None),(I1+8,X+2,0,None),(I1+12,X+3,0,None)], sO2, 't', cfg.sleep1, cfg.fast1, cfg.fthr)
    stamp(6)
    sum16(I1); rowred("v_add_f32",R,[8])
    A(f"v_cvt_pk_bf16_f32 v{R}, v{R}, v{R}"); nop(2)
    project(lambda t:(R,t))
    rec_store(sCQ)
    A(f"s_cmp_lt_u32 s2, {FC0}\ns_cbranch_scc1 {lend}")
    I2=XF+16
    poll([(I2+4*k,vH+k,0,None) for k in range(4)], sH2, 't', cfg.sleep2, cfg.fast2, None)
    sum16(I2); rowred("v_add_f32",R,[2,4,8])
    if cfg.mimic:
        rbf(R,R)
        A(f"v_add_f32 v{R}, v{vFX}, v{R}"); rbf(R,R)
        A(f"v_add_f32 v{R}, v{R}, v{vFM}\nv_cvt_pk_bf16_f32 v{R}, v{R}, v{R}")
    else:
        A(f"v_add_f32 v{R}, v{vFX}, v{R}\nv_cvt_pk_bf16_f32 v{R}, v{R}, v{R}")
    A(f"s_mov_b32 exec_lo, 0x00030003\ns_mov_b32 exec_hi, 0x00030003")
    A(f"buffer_store_short v{R}, v{vG2}, s[{SRDA}:{SRDA+3}], 0 offen")
    A(f"s_cmp_lg_u32 s2, 255\ns_cbranch_scc1 {lend}")
    A(f"s_mov_b64 exec, 1\ns_add_u32 s{sE}, s{sE}, 1\nv_mov_b32 v{T+1}, s{sE}\nv_mov_b32 v{T+2}, 0")
    A(f"buffer_store_dword v{T+1}, v{T+2}, s[{SRDW}:{SRDW+3}], 0 offen sc1")
    if cfg.probe is not None:
        lx=lab("px"); ly=lab("py")
        if cfg.probe[0]=='t':
            A("s_waitcnt vmcnt(0)\ns_memrealtime s[82:83]\ns_waitcnt lgkmcnt(0)")
            k={'end':82,'b1':86,'b2':88,'b3':90}[cfg.probe[2]]
            A(f"s_sub_u32 s4, s{k}, s80\ns_cmp_lt_u32 s4, {int(cfg.probe[1]*100)}\ns_cbranch_scc1 {lend}")
        else:
            A(f"s_cmp_eq_u32 s79, 0\ns_cbranch_scc1 {lend}")
        A(f"s_mov_b32 s4, 40\n{lx}:\ns_sleep 40\ns_sub_u32 s4, s4, 1\ns_cmp_lg_u32 s4, 0\ns_cbranch_scc1 {lx}")
        A("s_endpgm")
    A(f"{lend}:")
    if cfg.probe is not None: pass
    elif cfg.stamps and cfg.dbgout:
        A(f"s_cmp_lt_u32 s2, 252\ns_cbranch_scc1 {Ldone}")
        A("s_mov_b64 exec, 1\ns_waitcnt vmcnt(0)")
        stamp(1)
        srd(SRDA,sDBG,256)
        A(f"s_waitcnt lgkmcnt(0)\ns_sub_u32 s{sO2}, s2, 252\ns_lshl_b32 s{sO2}, s{sO2}, 4\nv_mov_b32 v{T}, 0")
        for i,k in enumerate((3,4,5,1)):
            A(f"s_sub_u32 s4, s{80+2*k}, s80\nv_mov_b32 v{F+i}, s4")
        A(f"buffer_store_dwordx4 v[{F}:{F+3}], v{T}, s[{SRDA}:{SRDA+3}], s{sO2} offen")
    elif cfg.stamps:
        A("s_mov_b64 exec, 1\ns_waitcnt vmcnt(0)")
        stamp(1)
        A("s_getreg_b32 s94, hwreg(HW_REG_XCC_ID)\ns_mov_b32 s95, 0\ns_waitcnt lgkmcnt(0)")
        A(f"s_lshl_b32 s{sO2}, s2, 6\ns_add_u32 s{sO2}, s{sO2}, {STAMP:#x}\nv_mov_b32 v{T}, 0")
        for k in range(8):
            A(f"v_mov_b32 v{F}, s{80+2*k}\nv_mov_b32 v{F+1}, s{81+2*k}\nbuffer_store_dwordx2 v[{F}:{F+1}], v{T}, s[{SRDW}:{SRDW+3}], s{sO2} offen offset:{8*k}\ns_nop 1")
    A(f"{Ldone}:")
    A("s_endpgm")
    body="\n".join(L)+"\n"
    kd=f""".section .rodata,"a"
.p2align 6
.amdhsa_kernel {N}
  .amdhsa_next_free_vgpr 232
  .amdhsa_next_free_sgpr 96
  .amdhsa_accum_offset 232
  .amdhsa_group_segment_fixed_size 0
  .amdhsa_kernarg_size 104
  .amdhsa_user_sgpr_count 2
  .amdhsa_user_sgpr_kernarg_segment_ptr 1
  .amdhsa_system_sgpr_workgroup_id_x 1
  .amdhsa_float_denorm_mode_32 3
.end_amdhsa_kernel
"""
    return body, kd

def header():
    ref=open('parallel_sum__gqa_block_cached__dense_activation_gelu__decode.s.ref').read().split("\n")
    out=[]
    for l in ref:
        if l.startswith("; @launch"):
            out.append(f"; @launch grid=(256,1,1) block=(320,1,1) lds={LDS_END}")
            break
        out.append(l)
    return "\n".join(out)+"\n"

def final(cfg, path):
    body,kd=gen(cfg)
    open(path,"w").write(header()+'.amdgcn_target "amdgcn-amd-amdhsa--gfx950"\n.text\n'+body+kd)

def bench(cfgs, path):
    sys.path.insert(0,'bench')
    from genstream import meta
    s='.amdgcn_target "amdgcn-amd-amdhsa--gfx950"\n'
    ks=[]; args=[]
    for c in cfgs:
        body,kd=gen(c)
        s+=".text\n"+body+kd.replace("kernarg_size 104","kernarg_size 112")
        ks.append((c.name,232,320)); args.append(f"{c.name} 256 320 {LDS_END}")
    s+=meta(ks)
    open(path+".s","w").write(s); open(path+".args","w").write(" @ ".join(args))

def mk(name, **kw):
    c=Cfg(); c.name=name
    for k,v in kw.items():
        assert hasattr(c,k), k
        setattr(c,k,v)
    return c

if __name__=="__main__":
    if sys.argv[1]=="final":
        kw=eval(sys.argv[3]) if len(sys.argv)>3 else {}
        final(mk(KNAME,**kw), sys.argv[2])
    else:
        bench([mk(n,**kw) for n,kw in eval(sys.argv[3])], sys.argv[2])
```

```python
import sys, struct, math

KNAME = "parallel_sum__gqa_block_cached__dense_activation_gelu__decode_kernel"
def f2u(f): return struct.unpack('<I', struct.pack('<f', f))[0]

class Cfg:
    name = KNAME
    rot = 0
    pace = 6
    infl = 6
    stamps = False
    smap = {}
    wnt = "nt"
    qsleep = 0
    sleep1 = 2
    sleep2 = 0
    mlsleep = 32
    fc = 56
    nomlp = False
    notail = False
    auxnull = False
    nowo = False
    probe = None
    pool = True
    pinfl = 8
    pclaim = 4
    fb = None
    qgate = None
    cnt = 'nt'
    noml = False
    noopub = False
    mimic = True
    fast1 = 0
    fast2 = 0
    fthr = 64
    vpre = True
    agate = 1
    gran = 1
    thr = None
    dbgout = False

RING=0; SC=131072; WBUF=SC+8192; XN=WBUF+14336; QB=XN+1024; MX=QB+1024; FB=MX+64; LV=FB+32; RDY=FB+36; LDS_END=FB+64
QBOX=0x1000; MLBOX=0x8000; OBOX=0x10000; PBOX=0x100000; MBOX=0x180000; SBOX=0x200000; CNT=0x280000; CSTR=4352; STAMP=0x20000000
SPIN_LIMIT = 1<<16
CEXP = 0.0625*math.log2(math.e)

def tt(f):
    r=0
    for idx in range(8):
        if f((idx>>2)&1,(idx>>1)&1,idx&1): r|=1<<idx
    return r

def gen(cfg):
    L=[]
    def A(s):
        for line in s.split("\n"):
            t=line.strip()
            L.append(t if t.endswith(":") else "    "+t)
    N=cfg.name
    pre = "L" if N==KNAME else f"L_{N}"
    uid=[0]
    def lab(p):
        uid[0]+=1; return f"{pre}_{p}{uid[0]}"
    def nop(n):
        if n>0: A(f"s_nop {n-1}")
    sX,sK,sV,sWQ,sWO,sW1,sB1=16,18,20,22,24,28,30
    sW2,sB2,sOUT,sDBG,sWS=32,34,36,38,40
    SRDK,SRDV,SRDA,SRDW=44,48,52,56
    sWAVE=3
    def srd(d, p, size):
        A(f"s_mov_b32 s{d}, s{p}\ns_mov_b32 s{d+1}, s{p+1}\ns_mov_b32 s{d+2}, {size:#x}\ns_mov_b32 s{d+3}, 0x20000")
    def stamp(k):
        if cfg.stamps:
            if isinstance(k,str):
                if k not in cfg.smap: return
                k=cfg.smap[k]
            elif k in cfg.smap.values(): return
            A(f"s_memrealtime s[{80+2*k}:{81+2*k}]")
    DPP="row_mask:0xf bank_mask:0xf"
    def rowred(op, v, rors):
        for r in rors:
            nop(2); A(f"{op}_dpp v{v}, v{v}, v{v} row_ror:{r} {DPP}")
    def xrowred(op, v, t):
        A(f"v_mov_b32 v{t}, v{v}"); nop(2); A(f"v_permlane16_swap_b32 v{v}, v{t}"); A(f"{op} v{v}, v{v}, v{t}")
        A(f"v_mov_b32 v{t}, v{v}"); nop(2); A(f"v_permlane32_swap_b32 v{v}, v{t}"); A(f"{op} v{v}, v{v}, v{t}")
    def tred4(a):
        nop(2)
        A(f"v_permlane32_swap_b32 v{a}, v{a+2}\nv_permlane32_swap_b32 v{a+1}, v{a+3}")
        A(f"v_add_f32 v{a}, v{a}, v{a+2}\nv_add_f32 v{a+1}, v{a+1}, v{a+3}")
        nop(2)
        A(f"v_permlane16_swap_b32 v{a}, v{a+1}")
        A(f"v_add_f32 v{a}, v{a}, v{a+1}")
    def rbf(d, s):
        A(f"v_cvt_pk_bf16_f32 v{d}, v{s}, v{s}\nv_and_b32 v{d}, 0xffff0000, v{d}")
    def masks(dst, n, t0, t1):
        A(f"v_and_b32 v{t0}, 1, v{n}\nv_lshlrev_b32 v{t0}, 4, v{t0}\nv_mov_b32 v{t1}, 0xffff\nv_lshlrev_b32 v{t1}, v{t0}, v{t1}\nv_bfe_u32 v{t0}, v{n}, 1, 2")
        for r in range(4):
            A(f"v_cmp_eq_u32 vcc, {r}, v{t0}"); nop(2); A(f"v_cndmask_b32 v{dst+r}, 0, v{t1}, vcc")

    Ldone=f"{pre}_done"; Laux=f"{pre}_aux"
    A(f".globl {N}\n.p2align 8\n.type {N},@function\n{N}:")
    A(f"s_cmp_ge_u32 s2, 256\ns_cbranch_scc1 {Ldone}")
    A("s_load_dwordx16 s[16:31], s[0:1], 0\ns_load_dwordx8 s[32:39], s[0:1], 64\ns_load_dwordx2 s[40:41], s[0:1], 96")
    stamp(0)
    A("v_lshrrev_b32 v1, 6, v0\nv_and_b32 v2, 63, v0")
    nop(1)
    A(f"v_readfirstlane_b32 s{sWAVE}, v1")
    A(f"s_cmp_eq_u32 s{sWAVE}, 4\ns_cbranch_scc1 {Laux}")

    vKO=8; vVO=16; vKA=18; vVA=22; vSA=23; vMASK=24; vMAX=28; vTG=29; vNM=30; vT=31
    QF=32; TF=64; D=96; S2=100; VP=104
    AR=32; ACC=48; P=56; vVP=7
    sRING,sREG,sNEXT,sOFF,sCNT,sC,sT8,sFF,sV0,sLV,sCL,sY,sSCO=60,61,62,63,64,65,66,67,68,69,70,71,72
    sPC=76
    A("v_lshrrev_b32 v3, 5, v2\nv_and_b32 v4, 31, v2\nv_lshlrev_b32 v5, 2, v3\nv_xor_b32 v4, v4, v5\nv_lshlrev_b32 v4, 4, v4\nv_lshl_add_u32 v4, v3, 9, v4")
    for j in range(8):
        c=(8*(j&1)+(j>>1))*16 | (4096 if j>=4 else 0)
        A(f"v_xor_b32 v{vKO+j}, {c:#x}, v4")
    A(f"s_lshl_b32 s{sRING}, s{sWAVE}, 15\ns_lshl_b32 s{sREG}, s2, 20")
    A(f"s_mul_i32 s{sNEXT}, s2, {cfg.rot*32768}\ns_lshl_b32 s{sOFF}, s{sWAVE}, 13\ns_add_u32 s{sNEXT}, s{sNEXT}, s{sOFF}\ns_and_b32 s{sNEXT}, s{sNEXT}, 0xfffff")
    A("s_waitcnt lgkmcnt(0)")
    srd(SRDK,sK,1<<28)
    def issue_half(slot, isK, half, gate=None):
        if half==0: A(f"s_or_b32 s{sOFF}, s{sREG}, s{sNEXT}")
        A(f"s_add_u32 m0, s{sRING}, {slot*8192+half*4096}")
        if half==0: A(f"s_add_u32 s{sNEXT}, s{sNEXT}, 32768")
        else: A(f"s_and_b32 s{sNEXT}, s{sNEXT}, 0xfffff")
        for jj in range(4):
            j=half*4+jj
            vo = vKO+j if isK else vVO+half
            sr = SRDK if isK else SRDV
            if gate is not None and cfg.fb is not None and gate=='fb':
                th,lv,df=cfg.fb
                go=lab("go")
                w=[l[jj&1] for l in lv]
                A(f"s_waitcnt vmcnt({w[-1]-1})")
                cur=w[-1]
                for k in range(len(w)-2,-1,-1):
                    if w[k]<cur:
                        A(f"s_cmp_gt_u32 s{sLV}, {k}\ns_cbranch_scc1 {go}\ns_waitcnt vmcnt({w[k]-1})"); cur=w[k]
                A(f"{go}:")
            elif gate is not None and jj%cfg.gran==0:
                A(f"s_waitcnt vmcnt({gate-cfg.gran})")
            elif jj: A(f"s_add_u32 m0, s{sRING}, {slot*8192+half*4096}\ns_nop 0")
            A(f"buffer_load_dwordx4 v{vo}, s[{sr}:{sr+3}], s{sOFF} offen offset:{jj*1024} nt lds")
    def gissue(slot,isK):
        for half in range(2): issue_half(slot,isK,half,'fb' if (cfg.fb and not isK) else (cfg.infl if cfg.infl<32 else None))
    vFL=102; vFA=103
    def fb_pre(slot):
        if cfg.fb and slot in (1,3): A(f"ds_read_b32 v{vFL}, v{vFA}")
    def fb_post(slot):
        if cfg.fb and slot in (1,3): A(f"v_readfirstlane_b32 s{sLV}, v{vFL}")
    issue_half(0,True,0); issue_half(0,True,1)
    srd(SRDV,sV,1<<28)
    A(f"s_load_dword s{sT8}, s[{sWS}:{sWS+1}], 0")
    A(f"v_lshlrev_b32 v{vVO}, 4, v2\nv_add_u32 v{vVO+1}, 0x1000, v{vVO}")
    A("v_lshrrev_b32 v3, 4, v2\nv_and_b32 v4, 15, v2")
    A("v_and_b32 v5, 3, v4\nv_lshlrev_b32 v5, 2, v5\nv_lshrrev_b32 v6, 2, v4\nv_add_u32 v5, v5, v6")
    A(f"v_xor_b32 v6, v3, v4\nv_lshlrev_b32 v6, 4, v6\nv_lshl_add_u32 v6, v5, 9, v6\nv_add_u32 v6, s{sRING}, v6")
    for q in range(4): A(f"v_xor_b32 v{vKA+q}, {q*64}, v6")
    A(f"v_lshlrev_b32 v6, 4, v4\nv_lshl_add_u32 v6, v3, 9, v6\nv_add_u32 v{vVA}, s{sRING}, v6")
    A(f"s_lshl_b32 s{sCNT}, s{sWAVE}, 11\ns_add_u32 s{sCNT}, s{sCNT}, {SC}")
    A(f"v_lshrrev_b32 v5, 3, v4\nv_lshlrev_b32 v6, 5, v5\nv_lshl_add_u32 v6, v3, 3, v6\nv_add_u32 v{vSA}, s{sCNT}, v6")
    A(f"v_lshlrev_b32 v7, 9, v5\nv_lshl_add_u32 v7, v3, 4, v7\nv_add_u32 v7, {QB}, v7")
    masks(vMASK,4,5,6)
    A(f"v_mov_b32 v{vMAX}, 0xff800000")
    A(f"v_subrev_u32 v{vT}, s{sRING}, v{vVA}\nv_add_u32 v1, 0x1000, v{vT}")
    A(f"s_mov_b32 s{sV0}, s{sOFF}")
    for slot in range(1,4):
        for half in range(2):
            issue_half(slot,True,half,cfg.pace)
    if cfg.vpre:
        for i in range(4):
            for u in range(8):
                o=(u>>1)*2048+(u&1)*256
                vo = vT if o<4096 else 1
                A(f"s_waitcnt vmcnt({cfg.pace-1})")
                A(f"buffer_load_dwordx4 v[{VP+32*i+4*u}:{VP+32*i+4*u+3}], v{vo}, s[{SRDV}:{SRDV+3}], s{sV0} offen offset:{o&4095} nt")
            A(f"s_add_u32 s{sV0}, s{sV0}, 32768\ns_and_b32 s{sV0}, s{sV0}, 0xfffff\ns_or_b32 s{sV0}, s{sV0}, s{sREG}")
    A(f"s_waitcnt lgkmcnt(0)\ns_add_u32 s{sT8}, s{sT8}, 1\ns_and_b32 s{sT8}, s{sT8}, 0xff\ns_mov_b32 s{sFF}, 0xff\nv_mov_b32 v{vTG}, s{sT8}")
    srd(SRDW,sWS,1<<30)
    if cfg.fb:
        A(f"s_mov_b32 s{sLV}, {cfg.fb[2]}\nv_mov_b32 v{vFA}, {LV}\nv_mov_b32 v{vFL}, {cfg.fb[2]}\nds_write_b32 v{vFA}, v{vFL}\ns_waitcnt lgkmcnt(0)")
    A("s_barrier")
    for jj in range(8): A(f"ds_read_b128 v[{QF+4*jj}:{QF+4*jj+3}], v7 offset:{jj*64}")

    def ktile(slot, nextK):
        A("s_waitcnt vmcnt(24)")
        for jj in range(8):
            A(f"ds_read_b128 v[{TF+4*jj}:{TF+4*jj+3}], v{vKA+(jj&3)} offset:{slot*8192+(jj>>2)*256}")
        A("s_waitcnt lgkmcnt(0)")
        for jj in range(8):
            c = "0" if jj==0 else f"v[{D}:{D+3}]"
            A(f"v_mfma_f32_16x16x32_bf16 v[{D}:{D+3}], v[{TF+4*jj}:{TF+4*jj+3}], v[{QF+4*jj}:{QF+4*jj+3}], {c}")
        nop(8)
        A(f"v_cvt_pk_bf16_f32 v{S2}, v{D}, v{D+1}\nv_cvt_pk_bf16_f32 v{S2+1}, v{D+2}, v{D+3}")
        A(f"v_max3_f32 v{vMAX}, v{vMAX}, v{D}, v{D+1}\nv_max3_f32 v{vMAX}, v{vMAX}, v{D+2}, v{D+3}")
        A(f"ds_write_b64 v{vSA}, v[{S2}:{S2+1}] offset:{slot*64}")
        gissue(slot,nextK)
    def vtile(slot, issue_next, waitn, scoff=None, regs=None, pooled=False, smem=False):
        if issue_next==True: fb_pre(slot)
        if pooled: A(f"v_add_u32 v{vT}, s{sSCO+slot}, v{vSA}\nds_read_b64 v[{S2}:{S2+1}], v{vT}")
        else: A(f"ds_read_b64 v[{S2}:{S2+1}], v{vSA} offset:{slot*64 if scoff is None else scoff}")
        A("s_waitcnt lgkmcnt(0)")
        if issue_next==True: fb_post(slot)
        A(f"v_lshlrev_b32 v{P}, 16, v{S2}\nv_and_b32 v{P+1}, 0xffff0000, v{S2}\nv_lshlrev_b32 v{P+2}, 16, v{S2+1}\nv_and_b32 v{P+3}, 0xffff0000, v{S2+1}")
        for t in range(4): A(f"v_fma_f32 v{P+t}, v{P+t}, s{sC}, v{vNM}")
        for t in range(4): A(f"v_exp_f32 v{P+t}, v{P+t}")
        nop(1)
        for t in range(4): A(f"v_cvt_pk_bf16_f32 v{P+t}, v{P+t}, v{P+t}")
        for t in range(4):
            for r in range(4): A(f"v_and_b32 v{AR+4*t+r}, v{P+t}, v{vMASK+r}")
        src=TF if regs is None else regs
        if regs is None:
            if waitn=='y':
                go=lab("wy")
                A("s_waitcnt vmcnt(24)")
                for y in (3,2,1): A(f"s_cmp_ge_i32 s{sY}, {y}\ns_cbranch_scc1 {go}\ns_waitcnt vmcnt({8*(y-1)})")
                A(f"{go}:")
            else: A(f"s_waitcnt vmcnt({waitn})")
            for u in range(8):
                A(f"ds_read_b128 v[{TF+4*u}:{TF+4*u+3}], v{vVA} offset:{slot*8192+(u>>1)*2048+(u&1)*256}")
        else: nop(2)
        for u in range(8):
            t=u>>1; h=u&1
            if regs is None: A(f"s_waitcnt lgkmcnt({7-u})")
            A(f"v_mfma_f32_16x16x32_bf16 v[{ACC+4*h}:{ACC+4*h+3}], v[{AR+4*t}:{AR+4*t+3}], v[{src+4*u}:{src+4*u+3}], v[{ACC+4*h}:{ACC+4*h+3}]")
        if issue_next=='pool': pool_issue(slot)
        elif issue_next=='claim':
            g='fb' if cfg.fb else cfg.infl
            issue_half(slot,False,0,g); claim(); issue_half(slot,False,1,g)
        elif issue_next: gissue(slot,False)
    def claim():
        A(f"s_mov_b32 s{sCL}, 1\ns_atomic_add s{sCL}, s[{sPC}:{sPC+1}], 0 glc")
    def pool_issue(slot):
        sk=lab("pn"); dn=lab("pd")
        A(f"s_waitcnt lgkmcnt(0)\ns_cmp_ge_u32 s{sCL}, 32\ns_cbranch_scc1 {sk}")
        A(f"s_and_b32 s4, s{sCL}, 7\ns_lshr_b32 s5, s{sCL}, 3\ns_lshl_b32 s{sOFF}, s4, 20\ns_lshl_b32 s6, s5, 15\ns_add_u32 s{sOFF}, s{sOFF}, s6\ns_add_u32 s{sOFF}, s{sOFF}, s{sV0}")
        A(f"s_lshl_b32 s4, s4, 10\ns_lshl_b32 s5, s5, 8\ns_add_u32 s{sSCO+slot}, s4, s5")
        for j in range(8):
            half=j>>2; jj=j&3
            if j==cfg.pclaim: claim()
            A(f"s_add_u32 m0, s{sRING}, {slot*8192+half*4096}\ns_waitcnt vmcnt({cfg.pinfl-1})")
            A(f"buffer_load_dwordx4 v{vVO+half}, s[{SRDV}:{SRDV+3}], s{sOFF} offen offset:{jj*1024} nt lds")
        A(f"s_branch {dn}\n{sk}:\ns_mov_b32 s{sSCO+slot}, -1\ns_sub_u32 s{sY}, s{sY}, 1\n{dn}:")

    lk=lab("kloop")
    A(f"s_mov_b32 s{sCNT}, 7")
    A(f"{lk}:")
    for s in range(4): ktile(s,True)
    A(f"v_add_u32 v{vSA}, 256, v{vSA}")
    A(f"s_sub_u32 s{sCNT}, s{sCNT}, 1\ns_cmp_lg_u32 s{sCNT}, 0\ns_cbranch_scc1 {lk}")
    if cfg.vpre: A(f"s_add_u32 s{sNEXT}, s{sNEXT}, {4*32768}\ns_and_b32 s{sNEXT}, s{sNEXT}, 0xfffff")
    for s in range(4): ktile(s,False)
    A(f"v_subrev_u32 v{vSA}, {7*256}, v{vSA}")
    for r in range(8): A(f"v_mov_b32 v{ACC+r}, 0")
    xrowred("v_max_f32", vMAX, vT)
    rbf(vMAX,vMAX)
    A(f"v_bfe_u32 v3, v2, 3, 1\nv_lshlrev_b32 v3, 4, v3\nv_add_u32 v3, {MX}, v3")
    A(f"s_lshl_b32 s{sCNT}, s{sWAVE}, 2\nv_add_u32 v4, s{sCNT}, v3")
    A(f"ds_write_b32 v4, v{vMAX}\ns_waitcnt lgkmcnt(0)\ns_barrier")
    A(f"ds_read_b128 v[{D}:{D+3}], v3\ns_mov_b32 s{sC}, {f2u(CEXP):#x}\ns_waitcnt lgkmcnt(0)")
    A(f"v_max_f32 v{vMAX}, v{D}, v{D+1}\nv_max3_f32 v{vMAX}, v{vMAX}, v{D+2}, v{D+3}")
    A(f"v_mul_f32 v{vNM}, s{sC}, v{vMAX}\nv_sub_f32 v{vNM}, 0, v{vNM}")
    A("v_lshrrev_b32 v6, 5, v2\nv_lshlrev_b32 v6, 10, v6\nv_and_b32 v5, 15, v2\nv_lshl_add_u32 v6, v5, 5, v6\nv_bfe_u32 v5, v2, 4, 1\nv_lshl_add_u32 v6, v5, 4, v6")
    A(f"v_add_u32 v6, s{sRING}, v6")
    A(f"s_lshl_b32 s{sCNT}, s{sWAVE}, 9\nv_lshlrev_b32 v4, 3, v2\nv_add_u32 v4, s{sCNT}, v4\nv_add_u32 v5, 0x10000, v4")
    A(f"s_lshr_b32 s{sCNT}, s{sWAVE}, 1\ns_lshl_b32 s{sCNT}, s{sCNT}, 2\ns_add_u32 s{sCNT}, s{sCNT}, {FB}\nv_mov_b32 v3, s{sCNT}")
    lv=lab("vloop")
    if cfg.vpre:
        for s in range(4):
            vtile(s,True,24,scoff=256+s*64)
            vtile(s,False,0,scoff=s*64,regs=VP+32*s)
        A(f"v_add_u32 v{vSA}, 512, v{vSA}")
    assert cfg.vpre and (cfg.rot==0 or not cfg.pool)
    A(f"s_mov_b32 s{sCNT}, {3 if cfg.pool else 5}")
    A(f"{lv}:")
    for s in range(4): vtile(s,True,24)
    A(f"v_add_u32 v{vSA}, 256, v{vSA}")
    A(f"s_sub_u32 s{sCNT}, s{sCNT}, 1\ns_cmp_lg_u32 s{sCNT}, 0\ns_cbranch_scc1 {lv}")
    if cfg.pool:
        for s in range(3): vtile(s,True,24)
        lw=lab("rw"); lwd=lab("rwd")
        A(f"v_mov_b32 v{vT}, {RDY}\ns_mov_b32 s{sCNT}, 0")
        A(f"{lw}:\nds_read_b32 v{D}, v{vT}\ns_add_u32 s{sCNT}, s{sCNT}, 1\ns_waitcnt lgkmcnt(0)\nv_readfirstlane_b32 s4, v{D}\ns_cmp_lg_u32 s4, 0\ns_cbranch_scc1 {lwd}")
        A(f"s_sleep 4\ns_cmp_lt_u32 s{sCNT}, {SPIN_LIMIT*16}\ns_cbranch_scc1 {lw}\n{lwd}:")
        A(f"s_lshr_b32 s4, s2, 3\ns_lshl_b32 s5, s4, 2\ns_add_u32 s5, s5, s{sWAVE}\ns_mul_i32 s5, s5, {CSTR}\ns_add_u32 s5, s5, {CNT}\ns_add_u32 s{sPC}, s{sWS}, s5\ns_addc_u32 s{sPC+1}, s{sWS+1}, 0")
        A(f"s_lshl_b32 s{sV0}, s4, 23\ns_lshl_b32 s5, s{sWAVE}, 13\ns_add_u32 s{sV0}, s{sV0}, s5\ns_add_u32 s{sV0}, s{sV0}, {28*32768}\ns_mov_b32 s{sY}, 3")
        vtile(3,'claim',24)
        A(f"v_add_u32 v{vSA}, 256, v{vSA}")
        for s in range(4): vtile(s,'pool','y')
        A(f"v_lshrrev_b32 v{vT}, 5, v2\nv_lshlrev_b32 v{vT}, 2, v{vT}\nv_add_u32 v{vT}, {FB+8}, v{vT}\nds_read_b32 v{D}, v{vT}")
        A(f"v_bfe_u32 v{vT}, v2, 3, 1\nv_lshlrev_b32 v{vSA}, 5, v{vT}\nv_lshlrev_b32 v{vT}, 2, v{vT}\nv_add_u32 v{vT}, {FB+16}, v{vT}\nds_read_b32 v{vNM}, v{vT}")
        A(f"v_lshrrev_b32 v{vT}, 4, v2\nv_lshl_add_u32 v{vSA}, v{vT}, 3, v{vSA}\ns_lshl_b32 s4, s{sWAVE}, 6\ns_add_u32 s4, s4, {WBUF}\nv_add_u32 v{vSA}, s4, v{vSA}")
        A("s_waitcnt lgkmcnt(0)")
        for r in range(8): A(f"v_mul_f32 v{ACC+r}, v{ACC+r}, v{D}")
        lp=lab("ploop"); le=lab("pend")
        A(f"{lp}:")
        for s in range(4):
            A(f"s_cmp_eq_u32 s{sSCO+s}, -1\ns_cbranch_scc1 {le}")
            vtile(s,'pool','y',pooled=True)
        A(f"s_branch {lp}\n{le}:")
        A(f"s_lshl_b32 s{sOFF}, s2, 11\ns_add_u32 s{sOFF}, s{sOFF}, {OBOX}")
    else:
        A(f"s_lshl_b32 s{sOFF}, s2, 11\ns_add_u32 s{sOFF}, s{sOFF}, {OBOX}")
        for s in range(4): vtile(s,False,24-8*s)
    nop(7)
    A(f"ds_write_b128 v6, v[{ACC}:{ACC+3}]\nds_write_b128 v6, v[{ACC+4}:{ACC+7}] offset:512")
    A("s_waitcnt lgkmcnt(0)\ns_barrier")
    A(f"ds_read_b64 v[{TF}:{TF+1}], v4\nds_read_b64 v[{TF+2}:{TF+3}], v4 offset:32768\nds_read_b64 v[{TF+4}:{TF+5}], v5\nds_read_b64 v[{TF+6}:{TF+7}], v5 offset:32768\nds_read_b32 v{TF+8}, v3")
    A("s_waitcnt lgkmcnt(3)")
    A(f"v_add_f32 v{TF}, v{TF}, v{TF+2}\nv_add_f32 v{TF+1}, v{TF+1}, v{TF+3}")
    A("s_waitcnt lgkmcnt(1)")
    A(f"v_add_f32 v{TF+4}, v{TF+4}, v{TF+6}\nv_add_f32 v{TF+5}, v{TF+5}, v{TF+7}\nv_add_f32 v{TF}, v{TF}, v{TF+4}\nv_add_f32 v{TF+1}, v{TF+1}, v{TF+5}")
    A("s_waitcnt lgkmcnt(0)")
    A(f"v_mul_f32 v{TF}, v{TF}, v{TF+8}\nv_mul_f32 v{TF+1}, v{TF+1}, v{TF+8}")
    A(f"v_bfi_b32 v{TF}, s{sFF}, v{vTG}, v{TF}\nv_bfi_b32 v{TF+1}, s{sFF}, v{vTG}, v{TF+1}")
    if not cfg.noopub: A(f"buffer_store_dwordx2 v[{TF}:{TF+1}], v4, s[{SRDW}:{SRDW+3}], s{sOFF} offen sc1")
    A("s_endpgm")

    vL16=3; vWO_=4; vTR=5; vXA=6
    X=8; F=12; T=20
    XF=32; WF=88
    WT=144
    PA=208
    AM=216
    vT8=220; vFX=221; vG1=222; vG2=223; vPS=224; vTO=225; vFM=226; vH=227
    AT=88
    sE,sTAG,sCQ,sO2,sSPIN,sCM,sFF,sA,sB=60,61,62,63,64,65,78,66,67
    A(f"{Laux}:")
    lend=lab("end")
    if cfg.auxnull:
        A("s_waitcnt lgkmcnt(0)"); srd(SRDW,sWS,1<<30)
        A("s_barrier"); stamp(3); A("s_barrier"); stamp(4); A("s_barrier"); stamp(5); A(f"s_branch {lend}")
    A("s_setprio 3")
    A(f"v_lshrrev_b32 v7, 1, v2\nv_and_b32 v{T}, 1, v2\nv_lshlrev_b32 v{T}, 4, v{T}")
    A(f"v_lshl_add_u32 v{vWO_}, v7, 13, v{T}\nv_lshlrev_b32 v{vL16}, 4, v2")
    A(f"s_and_b32 s{sCQ}, s2, 7\ns_lshl_b32 s{sCQ}, s{sCQ}, 5\ns_lshr_b32 s{sO2}, s2, 3\ns_add_u32 s{sCQ}, s{sCQ}, s{sO2}\ns_lshl_b32 s{sO2}, s{sCQ}, 5")
    A("s_waitcnt lgkmcnt(0)")
    A(f"s_load_dword s{sE}, s[{sWS}:{sWS+1}], 0")
    srd(SRDA,sX,896)
    A(f"buffer_load_dwordx4 v[{X}:{X+3}], v{vL16}, s[{SRDA}:{SRDA+3}], 0 offen")
    srd(SRDK,sWQ,448*4096*2)
    def wdma(sr, step, gate=None):
        for i in range(14):
            if gate is not None: A(f"s_waitcnt vmcnt({gate})")
            A(f"s_mov_b32 m0, {WBUF+i*1024}")
            if i: A(f"s_add_u32 s{sO2}, s{sO2}, {step}")
            else: nop(1)
            A(f"buffer_load_dwordx4 v{vWO_}, s[{sr}:{sr+3}], s{sO2} offen {cfg.cnt} lds")
    wdma(SRDK,32*8192,cfg.qgate)
    srd(SRDW,sWS,1<<30)
    A(f"v_lshrrev_b32 v{T}, 4, v2\nv_bfe_u32 v{T+1}, v2, 2, 2\nv_lshl_add_u32 v{T+1}, v{T}, 3, v{T+1}\nv_and_b32 v{T+2}, 3, v2\nv_lshlrev_b32 v{T+2}, 3, v{T+2}\nv_add_u32 v{T+2}, {WBUF}, v{T+2}")
    A(f"v_lshl_add_u32 v{vTR}, v{T+1}, 5, v{T+2}\nv_lshl_add_u32 v{vG1}, v{T+1}, 6, v{T+2}")
    A(f"v_lshlrev_b32 v{T}, 4, v{T}\nv_add_u32 v{vXA}, {XN}, v{T}")
    A("v_cmp_gt_u32 s[74:75], 56, v2")
    A("s_waitcnt vmcnt(14)")
    for r in range(4):
        A(f"v_lshlrev_b32 v{F+2*r}, 16, v{X+r}\nv_and_b32 v{F+2*r+1}, 0xffff0000, v{X+r}")
    A(f"v_add_f32 v{T}, v{F}, v{F+1}\nv_add_f32 v{T+1}, v{F+2}, v{F+3}\nv_add_f32 v{T+2}, v{F+4}, v{F+5}\nv_add_f32 v{T+3}, v{F+6}, v{F+7}")
    A(f"v_add_f32 v{T}, v{T}, v{T+1}\nv_add_f32 v{T+2}, v{T+2}, v{T+3}\nv_add_f32 v{T}, v{T}, v{T+2}")
    rowred("v_add_f32",T,[1,2,4,8]); xrowred("v_add_f32",T,T+1)
    A(f"v_mul_f32 v{T}, {f2u(1.0/448):#x}, v{T}")
    A(f"v_sub_f32 v{T+2}, v{F}, v{T}\nv_mul_f32 v{T+1}, v{T+2}, v{T+2}")
    for r in range(1,8):
        A(f"v_sub_f32 v{T+2}, v{F+r}, v{T}\nv_fmac_f32 v{T+1}, v{T+2}, v{T+2}")
    A(f"v_cndmask_b32 v{T+1}, 0, v{T+1}, s[74:75]")
    rowred("v_add_f32",T+1,[1,2,4,8]); xrowred("v_add_f32",T+1,T+2)
    A(f"v_mul_f32 v{T+1}, {f2u(1.0/448):#x}, v{T+1}")
    rbf(T,T); rbf(T+1,T+1)
    A(f"v_add_f32 v{T+1}, {f2u(1e-5):#x}, v{T+1}"); rbf(T+1,T+1)
    A(f"v_sqrt_f32 v{T+1}, v{T+1}"); nop(1); rbf(T+1,T+1)
    A(f"v_rcp_f32 v{T+2}, v{T+1}")
    for r in range(8): A(f"v_sub_f32 v{F+r}, v{F+r}, v{T}")
    for r in range(4): A(f"v_cvt_pk_bf16_f32 v{X+r}, v{F+2*r}, v{F+2*r+1}")
    for r in range(4): A(f"v_lshlrev_b32 v{F+2*r}, 16, v{X+r}\nv_and_b32 v{F+2*r+1}, 0xffff0000, v{X+r}")
    for r in range(8):
        A(f"v_mul_f32 v{T+3}, v{F+r}, v{T+2}\nv_fma_f32 v{T+4}, -v{T+3}, v{T+1}, v{F+r}\nv_fma_f32 v{F+r}, v{T+4}, v{T+2}, v{T+3}")
    for r in range(4): A(f"v_cvt_pk_bf16_f32 v{X+r}, v{F+2*r}, v{F+2*r+1}")
    A(f"v_add_u32 v{T}, {XN}, v{vL16}\nds_write_b128 v{T}, v[{X}:{X+3}]\ns_waitcnt lgkmcnt(0)")
    for jj in range(14): A(f"ds_read_b128 v[{XF+4*jj}:{XF+4*jj+3}], v{vXA} offset:{jj*64}")
    A("s_waitcnt vmcnt(0)")
    for jj in range(14):
        A(f"ds_read_b64_tr_b16 v[{WF+4*jj}:{WF+4*jj+1}], v{vTR} offset:{jj*1024}\nds_read_b64_tr_b16 v[{WF+4*jj+2}:{WF+4*jj+3}], v{vTR} offset:{jj*1024+128}")
    A(f"s_waitcnt lgkmcnt(0)")
    for jj in range(14):
        c="0" if jj==0 else f"v[{T}:{T+3}]"
        A(f"v_mfma_f32_16x16x32_bf16 v[{T}:{T+3}], v[{XF+4*jj}:{XF+4*jj+3}], v[{WF+4*jj}:{WF+4*jj+3}], {c}")
    A(f"s_mul_i32 s{sTAG}, s{sE}, 0x9E3779B1\ns_add_u32 s{sTAG}, s{sTAG}, 0x7F4A7C15")
    A(f"s_add_u32 s{sFF}, s{sE}, 1\ns_and_b32 s{sFF}, s{sFF}, 0xff\nv_mov_b32 v{vT8}, s{sFF}\ns_mov_b32 s{sFF}, 0xff")
    A(f"s_lshl_b32 s{sO2}, s{sCQ}, 6\ns_add_u32 s{sO2}, s{sO2}, {QBOX}\nv_lshlrev_b32 v{T+6}, 3, v7\nv_mov_b32 v{T+5}, s{sTAG}")
    A(f"v_mov_b32_dpp v{T+1}, v{T} quad_perm:[1,1,3,3] {DPP}")
    A(f"v_cvt_pk_bf16_f32 v{T+4}, v{T}, v{T+1}")
    A("s_mov_b64 exec, 0x5555")
    A(f"buffer_store_dwordx2 v[{T+4}:{T+5}], v{T+6}, s[{SRDW}:{SRDW+3}], s{sO2} offen sc1")
    A("s_mov_b64 exec, -1")
    stamp(2)
    TT1=tt(lambda a,b,t:(a^t)|(b^t)); TT2=tt(lambda a,b,c:(a|b)&c)
    def poll(loads, soff, mode, sleep, fast=0, fthr=None):
        PM=4
        lp=lab("poll"); ld=lab("polld")
        for i,(d,vo,imm,lm) in enumerate(loads):
            if lm is None: A(f"s_mov_b64 s[{PM+2*i}:{PM+2*i+1}], -1")
            else: A(f"s_mov_b32 s{PM+2*i}, {lm&0xffffffff:#x}\ns_mov_b32 s{PM+2*i+1}, {lm>>32:#x}")
        A(f"s_mov_b32 s{sSPIN}, 0\ns_mov_b32 s14, 999")
        A(f"{lp}:")
        for i,(d,vo,imm,lm) in enumerate(loads):
            sk=lab("sk")
            A(f"s_mov_b64 exec, s[{PM+2*i}:{PM+2*i+1}]\ns_cbranch_execz {sk}")
            A(f"buffer_load_dwordx4 v[{d}:{d+3}], v{vo}, s[{SRDW}:{SRDW+3}], s{soff} offen offset:{imm} sc1")
            A(f"{sk}:")
        A(f"s_mov_b64 exec, -1\ns_add_u32 s{sSPIN}, s{sSPIN}, 1")
        if fast and fthr is not None:
            sk=lab("fs")
            A(f"s_cmp_le_u32 s14, {fthr}\ns_cbranch_scc1 {sk}\ns_waitcnt vmcnt(0)\n{sk}:")
        A(f"s_waitcnt vmcnt({fast})")
        for i,(d,vo,imm,lm) in enumerate(loads):
            if mode=='q':
                A(f"v_xor_b32 v{T+i}, s{sTAG}, v{d+1}\nv_xor_b32 v{T+4+i}, s{sTAG}, v{d+3}\nv_or_b32 v{T+i}, v{T+i}, v{T+4+i}")
            else:
                A(f"v_bitop3_b32 v{T+i}, v{d}, v{d+1}, v{vT8} bitop3:{TT1:#x}\nv_bitop3_b32 v{T+4+i}, v{d+2}, v{d+3}, v{vT8} bitop3:{TT1:#x}")
                A(f"v_bitop3_b32 v{T+i}, v{T+i}, v{T+4+i}, s{sFF} bitop3:{TT2:#x}")
        for i,(d,vo,imm,lm) in enumerate(loads):
            A(f"v_cmp_ne_u32 vcc, 0, v{T+i}\ns_and_b64 s[{PM+2*i}:{PM+2*i+1}], s[{PM+2*i}:{PM+2*i+1}], vcc")
        if len(loads)>1:
            A(f"s_or_b64 s[12:13], s[{PM}:{PM+1}], s[{PM+2}:{PM+3}]")
            for i in range(2,len(loads)): A(f"s_or_b64 s[12:13], s[12:13], s[{PM+2*i}:{PM+2*i+1}]")
        A(f"s_cbranch_scc0 {ld}")
        if fast and fthr is not None:
            A(f"s_bcnt1_i32_b64 s14, s[{PM}:{PM+1}]")
            for i in range(1,len(loads)): A(f"s_bcnt1_i32_b64 s15, s[{PM+2*i}:{PM+2*i+1}]\ns_add_u32 s14, s14, s15")
            if sleep:
                sk=lab("ns")
                A(f"s_cmp_le_u32 s14, {fthr}\ns_cbranch_scc1 {sk}\ns_sleep {sleep}\n{sk}:")
        elif sleep: A(f"s_sleep {sleep}")
        A(f"s_cmp_lt_u32 s{sSPIN}, {SPIN_LIMIT*4}\ns_cbranch_scc1 {lp}")
        A(f"{ld}:")
    A(f"s_lshr_b32 s{sO2}, s2, 5\ns_lshl_b32 s{sO2}, s{sO2}, 11\ns_add_u32 s{sO2}, s{sO2}, {QBOX}")
    poll([(F,vL16,0,None),(F+4,vL16,1024,None)], sO2, 'q', cfg.qsleep)
    A(f"v_mov_b32 v{T}, {RDY}\nv_mov_b32 v{T+1}, 0\nds_write_b32 v{T}, v{T+1}")
    A(f"v_lshlrev_b32 v{T}, 3, v2\nv_add_u32 v{T}, {QB}, v{T}")
    A(f"ds_write2_b32 v{T}, v{F}, v{F+2} offset0:0 offset1:1\nds_write2_b32 v{T}, v{F+4}, v{F+6} offset0:128 offset1:129")
    A("s_waitcnt lgkmcnt(0)\ns_barrier")
    stamp(3)
    if cfg.pool:
        lz=lab("nz")
        A(f"s_and_b32 s4, s2, 7\ns_cbranch_scc1 {lz}")
        A(f"s_lshr_b32 s4, s2, 3\ns_mul_i32 s4, s4, {4*CSTR}\ns_add_u32 s4, s4, {CNT}\nv_mul_u32_u24 v{T}, {CSTR}, v2\nv_mov_b32 v{T+1}, 0\ns_mov_b64 exec, 15")
        A(f"buffer_store_dword v{T+1}, v{T}, s[{SRDW}:{SRDW+3}], s4 offen sc1\ns_mov_b64 exec, -1\n{lz}:")
    if cfg.probe is not None and cfg.probe[0]=='g':
        A(f"s_lshl_b32 s4, s2, 2\ns_add_u32 s4, s4, 0x300000\nv_mov_b32 v{T}, 0\nv_mov_b32 v{T+1}, s80\ns_mov_b64 exec, 1\nbuffer_store_dword v{T+1}, v{T}, s[{SRDW}:{SRDW+3}], s4 offen sc1\ns_mov_b64 exec, -1")
    A(f"s_bfe_u32 s{sB}, s2, 0x10003\ns_lshr_b32 s{sA}, s2, 4\ns_lshl_b32 s{sA}, s{sA}, 3\ns_and_b32 s{sO2}, s2, 7\ns_add_u32 s{sA}, s{sA}, s{sO2}")
    A(f"v_and_b32 v{T}, 15, v2"); masks(AM,T,T+1,T+2)
    A(f"v_lshrrev_b32 v{T+1}, 4, v2\nv_mul_u32_u24 v{vTO}, 896, v{T+1}\nv_lshl_add_u32 v{vTO}, v{T}, 4, v{vTO}")
    for r in range(8): A(f"v_mov_b32 v{PA+r}, 0")
    def tile_load(sr):
        for t in range(8):
            if cfg.agate is not None: A(f"s_waitcnt vmcnt({cfg.agate})")
            A(f"buffer_load_dwordx4 v[{WT+8*t}:{WT+8*t+3}], v{vTO}, s[{sr}:{sr+3}], s{sO2} offen {cfg.wnt}")
            A("s_mov_b32 exec_lo, 0x0fff0fff\ns_mov_b32 exec_hi, 0x0fff0fff")
            A(f"buffer_load_dwordx4 v[{WT+8*t+4}:{WT+8*t+7}], v{vTO}, s[{sr}:{sr+3}], s{sO2} offen offset:256 {cfg.wnt}")
            A(f"s_mov_b64 exec, -1\ns_add_u32 s{sO2}, s{sO2}, 3584")
    def project(src):
        for t in range(8):
            v,ln=src(t)
            for r in range(4): A(f"v_and_b32_dpp v{AT+4*t+r}, v{v}, v{AM+r} row_newbcast:{ln} {DPP}")
            if t>=1:
                tp=t-1
                for cb in range(2):
                    A(f"v_mfma_f32_16x16x32_bf16 v[{PA+4*cb}:{PA+4*cb+3}], v[{AT+4*tp}:{AT+4*tp+3}], v[{WT+8*tp+4*cb}:{WT+8*tp+4*cb+3}], v[{PA+4*cb}:{PA+4*cb+3}]")
        for cb in range(2):
            A(f"v_mfma_f32_16x16x32_bf16 v[{PA+4*cb}:{PA+4*cb+3}], v[{AT+28}:{AT+31}], v[{WT+56+4*cb}:{WT+56+4*cb+3}], v[{PA+4*cb}:{PA+4*cb+3}]")
    A(f"v_lshrrev_b32 v{T}, 5, v2\nv_lshlrev_b32 v{T}, 9, v{T}\nv_and_b32 v{T+1}, 15, v2\nv_lshl_add_u32 v{T}, v{T+1}, 5, v{T}\nv_bfe_u32 v{T+1}, v2, 4, 1\nv_lshl_add_u32 v{vPS}, v{T+1}, 4, v{T}")
    def rec_store(soff):
        nop(8)
        for r in range(4): A(f"v_permlane32_swap_b32 v{PA+r}, v{PA+4+r}")
        for r in range(4): A(f"v_bfi_b32 v{PA+r}, s{sFF}, v{vT8}, v{PA+r}")
        A("s_mov_b32 exec_hi, 0x0fff0fff")
        A(f"buffer_store_dwordx4 v[{PA}:{PA+3}], v{vPS}, s[{SRDW}:{SRDW+3}], s{soff} offen sc1")
        A("s_mov_b32 exec_hi, -1")
    lnm=lab("nomlp")
    A(f"s_cmp_ge_u32 s2, {0 if cfg.nomlp else 112}\ns_cbranch_scc1 {lnm}")
    A(f"s_and_b32 s{sCM}, s2, 7\ns_mul_i32 s{sCM}, s{sCM}, 7\ns_lshr_b32 s{sO2}, s2, 4\ns_add_u32 s{sCM}, s{sCM}, s{sO2}")
    A(f"v_lshrrev_b32 v{T}, 2, v2\nv_mul_u32_u24 v{vWO_}, 3584, v{T}\nv_and_b32 v{T}, 3, v2\nv_lshl_add_u32 v{vWO_}, v{T}, 4, v{vWO_}")
    srd(SRDK,sW1,448*1792*2)
    srd(SRDA,sB1,3584)
    A(f"v_and_b32 v{T}, 15, v2\nv_lshlrev_b32 v{T}, 1, v{T}\ns_lshl_b32 s{sO2}, s{sCM}, 6")
    A(f"buffer_load_ushort v{F}, v{T}, s[{SRDA}:{SRDA+3}], s{sO2} offen\ns_nop 0\nbuffer_load_ushort v{F+1}, v{T}, s[{SRDA}:{SRDA+3}], s{sO2} offen offset:32")
    for ps in range(2):
        wdma(SRDK,16*3584,cfg.agate)
        A(f"s_add_u32 s{sO2}, s{sO2}, {16*3584}\ns_waitcnt vmcnt(0)")
        for kk in range(7):
            for u in range(2):
                r=WF+8*kk+4*u
                A(f"ds_read_b64_tr_b16 v[{r}:{r+1}], v{vG1} offset:{kk*2048+u*32}\nds_read_b64_tr_b16 v[{r+2}:{r+3}], v{vG1} offset:{kk*2048+u*32+256}")
        A("s_waitcnt lgkmcnt(0)")
        for kk in range(7):
            for u in range(2):
                r=WF+8*kk+4*u; x=XF+4*(7*ps+kk)
                c="0" if (ps==0 and kk==0) else f"v[{T+4*u}:{T+4*u+3}]"
                A(f"v_mfma_f32_16x16x32_bf16 v[{T+4*u}:{T+4*u+3}], v[{x}:{x+3}], v[{r}:{r+3}], {c}")
    srd(SRDK,sW2,1792*448*2)
    A(f"s_mul_i32 s{sO2}, s{sCM}, {32*896}\ns_mul_i32 s{sSPIN}, s{sB}, 448\ns_add_u32 s{sO2}, s{sO2}, s{sSPIN}")
    tile_load(SRDK)
    k0=math.sqrt(2/math.pi)
    for u in range(2):
        h=T+4*u; t1=h+1; t2=h+2
        rbf(h,h)
        A(f"v_lshlrev_b32 v{F+u}, 16, v{F+u}\nv_add_f32 v{h}, v{h}, v{F+u}"); rbf(h,h)
        A(f"v_mul_f32 v{t1}, v{h}, v{h}\nv_mul_f32 v{t1}, v{t1}, v{h}\nv_mov_b32 v{t2}, {f2u(0.044715):#x}\nv_fma_f32 v{t1}, v{t1}, v{t2}, v{h}")
        A(f"v_mul_f32 v{t1}, {f2u(-2*k0*math.log2(math.e)):#x}, v{t1}\nv_exp_f32 v{t1}, v{t1}"); nop(1)
        A(f"v_add_f32 v{t1}, 1.0, v{t1}\nv_rcp_f32 v{t1}, v{t1}"); nop(1)
        A(f"v_mul_f32 v{h}, v{h}, v{t1}\nv_cvt_pk_bf16_f32 v{h}, v{h}, v{h}\nv_mov_b32 v{t1}, v{h}"); nop(2)
        for g in range(1,4): A(f"v_mov_b32_dpp v{t1}, v{h} row_ror:{16-g} row_mask:{1<<g:#x} bank_mask:0xf")
    A("s_waitcnt vmcnt(0)"); nop(2)
    project(lambda t:(T+4*(t>>2)+1, 4*(t&3)))
    if cfg.mimic:
        A(f"s_lshl_b32 s{sO2}, s{sB}, 6\ns_add_u32 s{sO2}, s{sO2}, s{sCM}\ns_lshl_b32 s{sO2}, s{sO2}, 10\ns_add_u32 s{sO2}, s{sO2}, {MBOX}")
        rec_store(sO2)
        nop(2)
        for r in range(8): A(f"v_mov_b32 v{PA+r}, 0")
    nop(4)
    stamp('mlpdone')
    A(f"{lnm}:")
    srd(SRDK,sWO,4096*448*2)
    A(f"s_mul_i32 s{sO2}, s{sA}, {32*896}\ns_mul_i32 s{sSPIN}, s{sB}, 448\ns_add_u32 s{sO2}, s{sO2}, s{sSPIN}")
    if not cfg.nowo: tile_load(SRDK)
    FC=cfg.fc
    lnf=lab("nofin")
    FC0=256-FC
    if FC==56:
        A(f"v_lshrrev_b32 v{T}, 4, v2\nv_and_b32 v{T+1}, 1, v2\nv_lshl_add_u32 v{T}, v{T+1}, 2, v{T}\nv_lshlrev_b32 v{vG2}, 1, v{T}")
        A(f"s_sub_u32 s{sO2}, s2, {FC0}\ns_lshl_b32 s{sO2}, s{sO2}, 4")
    else:
        A(f"v_lshrrev_b32 v{T}, 4, v2\nv_lshlrev_b32 v{vG2}, 1, v{T}")
        A(f"s_sub_u32 s{sO2}, s2, {FC0}\ns_lshl_b32 s{sO2}, s{sO2}, 3")
    A(f"v_add_u32 v{vG2}, s{sO2}, v{vG2}")
    A(f"s_cmp_lt_u32 s2, {FC0}\ns_cbranch_scc1 {lnf}")
    srd(SRDA,sX,896)
    A(f"buffer_load_ushort v{vFX}, v{vG2}, s[{SRDA}:{SRDA+3}], 0 offen")
    srd(SRDK,sB2,896)
    A(f"buffer_load_ushort v{T}, v{vG2}, s[{SRDK}:{SRDK+3}], 0 offen")
    A(f"s_waitcnt vmcnt(0)\nv_lshlrev_b32 v{vFX}, 16, v{vFX}\nv_lshlrev_b32 v{vFM}, 16, v{T}")
    if not cfg.mimic: A(f"v_add_f32 v{vFX}, v{vFX}, v{vFM}")
    A(f"{lnf}:")
    stamp('wodone')
    A("s_barrier")
    stamp(4)
    A(f"s_mov_b32 s{sCM}, {f2u(CEXP):#x}")
    if cfg.pool:
        A(f"v_bfe_u32 v{T}, v2, 2, 2\nv_lshlrev_b32 v{T}, 11, v{T}\nv_lshrrev_b32 v{T+1}, 4, v2\nv_lshl_add_u32 v{T}, v{T+1}, 6, v{T}\nv_and_b32 v{T+1}, 3, v2\nv_lshl_add_u32 v{T}, v{T+1}, 4, v{T}\nv_add_u32 v{T}, {SC+28*64}, v{T}")
        A(f"ds_read_b128 v[{X}:{X+3}], v{T}\ns_lshl_b32 s4, s2, 10\ns_add_u32 s4, s4, {SBOX}\ns_waitcnt lgkmcnt(0)")
        A(f"buffer_store_dwordx4 v[{X}:{X+3}], v{vL16}, s[{SRDW}:{SRDW+3}], s4 offen sc1")
    A(f"v_and_b32 v{T}, 1, v2\nv_lshlrev_b32 v{T+1}, 4, v{T}\nv_add_u32 v{T+1}, {MX}, v{T+1}\nv_lshlrev_b32 v{T+2}, 5, v2\nv_add_u32 v{T+2}, {SC}, v{T+2}")
    A(f"ds_read_b128 v[{F}:{F+3}], v{T+1}")
    for w in range(4):
        A(f"ds_read_b128 v[{XF+8*w}:{XF+8*w+3}], v{T+2} offset:{w*2048}\nds_read_b128 v[{XF+8*w+4}:{XF+8*w+7}], v{T+2} offset:{w*2048+16}")
    A("s_waitcnt lgkmcnt(0)")
    A(f"v_max_f32 v{F}, v{F}, v{F+1}\nv_max3_f32 v{F}, v{F}, v{F+2}, v{F+3}\nv_mul_f32 v{F+4}, s{sCM}, v{F}\nv_sub_f32 v{F+4}, 0, v{F+4}")
    A(f"v_mov_b32 v{F+1}, 0\nv_mov_b32 v{F+5}, 0")
    for r in range(32):
        A(f"v_lshlrev_b32 v{T+3}, 16, v{XF+r}\nv_and_b32 v{T+4}, 0xffff0000, v{XF+r}")
        A(f"v_fma_f32 v{T+3}, v{T+3}, s{sCM}, v{F+4}\nv_fma_f32 v{T+4}, v{T+4}, s{sCM}, v{F+4}")
        A(f"v_exp_f32 v{T+3}, v{T+3}\nv_exp_f32 v{T+4}, v{T+4}"); nop(1)
        A(f"v_add_f32 v{F+1}, v{F+1}, v{T+3}\nv_add_f32 v{F+5}, v{F+5}, v{T+4}")
    A(f"v_add_f32 v{F+1}, v{F+1}, v{F+5}")
    rowred("v_add_f32",F+1,[2,4,8]); xrowred("v_add_f32",F+1,T+3)
    nop(2)
    A(f"v_mov_b32_dpp v{F+2}, v{F} quad_perm:[1,1,3,3] {DPP}\nv_mov_b32_dpp v{F+3}, v{F+1} quad_perm:[1,1,3,3] {DPP}")
    A(f"v_mov_b32 v{F+6}, v{F}")
    for r in range(4): A(f"v_bfi_b32 v{F+r}, s{sFF}, v{vT8}, v{F+r}")
    if cfg.probe is not None and cfg.probe[0]=='x':
        A(f"s_getreg_b32 s4, hwreg(HW_REG_XCC_ID)\ns_and_b32 s4, s4, 15\ns_lshl_b32 s4, s4, 8\nv_or_b32 v{F}, s4, v{F}")
    A(f"s_lshl_b32 s{sO2}, s2, 4\ns_add_u32 s{sO2}, s{sO2}, {MLBOX}\nv_mov_b32 v{T}, 0\ns_mov_b64 exec, 1\ns_waitcnt vmcnt(0)")
    if not cfg.noml: A(f"buffer_store_dwordx4 v[{F}:{F+3}], v{T}, s[{SRDW}:{SRDW+3}], s{sO2} offen sc1")
    A("s_mov_b64 exec, -1")
    I1=XF
    A(f"s_lshr_b32 s{sO2}, s2, 5\ns_lshl_b32 s{sO2}, s{sO2}, 9\ns_add_u32 s{sO2}, s{sO2}, {MLBOX}\nv_lshlrev_b32 v{vWO_}, 4, v7")
    if cfg.fb:
        th,lv,df=cfg.fb
        A(f"buffer_load_dwordx4 v[{I1}:{I1+3}], v{vWO_}, s[{SRDW}:{SRDW+3}], s{sO2} offen sc1\ns_waitcnt vmcnt(0)")
        A(f"v_bitop3_b32 v{T}, v{I1}, v{I1+1}, v{vT8} bitop3:{TT1:#x}\nv_bitop3_b32 v{T+4}, v{I1+2}, v{I1+3}, v{vT8} bitop3:{TT1:#x}\nv_bitop3_b32 v{T}, v{T}, v{T+4}, s{sFF} bitop3:{TT2:#x}")
        A(f"v_cmp_eq_u32 vcc, 0, v{T}\ns_bcnt1_i32_b64 s4, vcc\ns_mov_b32 s5, 0")
        for k,t_ in enumerate(th): A(f"s_cmp_ge_u32 s4, {2*t_}\ns_cselect_b32 s5, {k+1}, s5")
        A(f"v_mov_b32 v{T}, {LV}\nv_mov_b32 v{T+1}, s5\nds_write_b32 v{T}, v{T+1}")
    if not cfg.noml: poll([(I1,vWO_,0,None)], sO2, 't', cfg.mlsleep)
    if cfg.probe is not None and cfg.probe[0]=='x':
        A(f"v_bfe_u32 v{T}, v{I1}, 8, 4\nv_mov_b32 v{T+1}, v{T}"); nop(2)
        A(f"v_permlane16_swap_b32 v{T}, v{T+1}\nv_cmp_ne_u32 vcc, v{T}, v{T+1}\ns_bcnt1_i32_b64 s79, vcc")
    A(f"v_and_b32 v{T}, 1, v2\nv_cmp_eq_u32 vcc, 1, v{T}"); nop(2)
    A(f"v_cndmask_b32 v{I1}, v{I1}, v{I1+2}, vcc\nv_cndmask_b32 v{I1+1}, v{I1+1}, v{I1+3}, vcc\nv_and_b32 v{I1}, 0xffff0000, v{I1}\nv_mov_b32 v{T+1}, v{I1}")
    rowred("v_max_f32",T+1,[2,4,8]); xrowred("v_max_f32",T+1,T+2)
    A(f"v_sub_f32 v{T+2}, v{I1}, v{T+1}\nv_sub_f32 v{T+3}, v{F+6}, v{T+1}\nv_mul_f32 v{T+2}, s{sCM}, v{T+2}\nv_mul_f32 v{T+3}, s{sCM}, v{T+3}")
    A(f"v_exp_f32 v{T+2}, v{T+2}\nv_exp_f32 v{T+3}, v{T+3}"); nop(1)
    A(f"v_mul_f32 v{T+2}, v{T+2}, v{I1+1}")
    rowred("v_add_f32",T+2,[2,4,8]); xrowred("v_add_f32",T+2,T+4)
    A(f"v_rcp_f32 v{T+4}, v{T+2}"); nop(1)
    A(f"v_fma_f32 v{T+5}, -v{T+2}, v{T+4}, 1.0\nv_fma_f32 v{T+4}, v{T+5}, v{T+4}, v{T+4}")
    A(f"v_lshlrev_b32 v{T}, 2, v{T}\nv_add_u32 v{T}, {FB}, v{T}")
    if cfg.pool:
        A(f"v_mul_f32 v{T+1}, s{sCM}, v{T+1}\nv_sub_f32 v{T+1}, 0, v{T+1}")
        A(f"ds_write_b32 v{T}, v{T+4}\nds_write_b32 v{T}, v{T+3} offset:8\nds_write_b32 v{T}, v{T+1} offset:16")
        A(f"s_and_b32 s4, s2, 0xf8\ns_lshl_b32 s4, s4, 10\ns_add_u32 s4, s4, {SBOX}")
        for k in range(8):
            if k==4: A("s_add_u32 s4, s4, 4096")
            A(f"s_waitcnt vmcnt(1)\nbuffer_load_dwordx4 v[{I1+4*k}:{I1+4*k+3}], v{vL16}, s[{SRDW}:{SRDW+3}], s4 offen offset:{(k&3)*1024} sc1")
        A(f"v_add_u32 v{T}, {WBUF}, v{vL16}\ns_waitcnt vmcnt(0)")
        for k in range(8): A(f"ds_write_b128 v{T}, v[{I1+4*k}:{I1+4*k+3}] offset:{k*1024}")
        A(f"v_mov_b32 v{T}, {RDY}\nv_mov_b32 v{T+1}, 1\ns_waitcnt lgkmcnt(0)\nds_write_b32 v{T}, v{T+1}")
    else:
        A(f"v_mul_f32 v{T+3}, v{T+3}, v{T+4}\nds_write_b32 v{T}, v{T+3}")
    half=FC//2
    sH2=68
    A(f"s_sub_u32 s{sSPIN}, s2, {FC0}\ns_cmp_ge_u32 s{sSPIN}, {half}\ns_cselect_b32 s{sH2}, {128*1024-896}, 0\ns_cselect_b32 s{sO2}, {64*1024-896}, 0\ns_mul_i32 s{sSPIN}, s{sSPIN}, {1792//FC}")
    A(f"s_add_u32 s{sH2}, s{sH2}, s{sSPIN}\ns_add_u32 s{sH2}, s{sH2}, {PBOX}\ns_add_u32 s{sO2}, s{sO2}, s{sSPIN}\ns_add_u32 s{sO2}, s{sO2}, {MBOX}")
    assert FC==56
    A(f"v_lshlrev_b32 v{vH}, 10, v7\nv_and_b32 v{T}, 1, v2\nv_lshl_add_u32 v{vH}, v{T}, 4, v{vH}")
    for k in range(1,4): A(f"v_add_u32 v{vH+k}, {k*32768}, v{vH}")
    if cfg.mimic and not cfg.nomlp:
        lg=lab("nomg")
        A(f"s_cmp_lt_u32 s2, {FC0}\ns_cbranch_scc1 {lg}")
        for r in range(4): A(f"v_mov_b32 v{I1+4+r}, 0")
        poll([(I1,vH,0,None),(I1+4,vH+1,0,(1<<48)-1)], sO2, 't', 32)
        for r in range(4): A(f"v_add_f32 v{I1+r}, v{I1+r}, v{I1+4+r}")
        tred4(I1); rowred("v_add_f32",I1,[2,4,8])
        rbf(I1,I1)
        A(f"v_add_f32 v{vFM}, v{vFM}, v{I1}"); rbf(vFM,vFM)
        A(f"{lg}:")
    srd(SRDA,sOUT,896)
    A(f"v_bfe_u32 v{T}, v2, 3, 2\nv_lshlrev_b32 v{T}, 14, v{T}\nv_lshrrev_b32 v{T+1}, 5, v2\nv_lshl_add_u32 v{T}, v{T+1}, 11, v{T}\nv_and_b32 v{T+1}, 7, v2\nv_lshl_add_u32 v{vG1}, v{T+1}, 4, v{T}")
    for k in range(1,4): A(f"v_add_u32 v{X+k}, {k*4096}, v{vG1}")
    A(f"s_lshr_b32 s{sO2}, s2, 5\ns_lshl_b32 s{sO2}, s{sO2}, 16\ns_and_b32 s{sSPIN}, s{sA}, 15\ns_lshl_b32 s{sSPIN}, s{sSPIN}, 7\ns_add_u32 s{sO2}, s{sO2}, s{sSPIN}\ns_add_u32 s{sO2}, s{sO2}, {OBOX}")
    A(f"s_lshl_b32 s{sCQ}, s{sB}, 7\ns_add_u32 s{sCQ}, s{sCQ}, s{sA}\ns_lshl_b32 s{sCQ}, s{sCQ}, 10\ns_add_u32 s{sCQ}, s{sCQ}, {PBOX}")
    for r in range(32): A(f"v_not_b32 v{I1+r}, v{vT8}")
    A("s_waitcnt vmcnt(0) lgkmcnt(0)\ns_barrier")
    stamp(5)
    if cfg.notail: A(f"s_branch {lend}")
    R=F
    def sum16(I):
        for r in range(4): A(f"v_add_f32 v{R+r}, v{I+r}, v{I+4+r}\nv_add_f32 v{R+4+r}, v{I+8+r}, v{I+12+r}")
        for r in range(4): A(f"v_add_f32 v{R+r}, v{R+r}, v{R+4+r}")
        tred4(R)
    poll([(I1,vG1,0,None),(I1+4,X+1,0,None),(I1+8,X+2,0,None),(I1+12,X+3,0,None)], sO2, 't', cfg.sleep1, cfg.fast1, cfg.fthr)
    stamp(6)
    sum16(I1); rowred("v_add_f32",R,[8])
    A(f"v_cvt_pk_bf16_f32 v{R}, v{R}, v{R}"); nop(2)
    project(lambda t:(R,t))
    rec_store(sCQ)
    A(f"s_cmp_lt_u32 s2, {FC0}\ns_cbranch_scc1 {lend}")
    I2=XF+16
    poll([(I2+4*k,vH+k,0,None) for k in range(4)], sH2, 't', cfg.sleep2, cfg.fast2, None)
    sum16(I2); rowred("v_add_f32",R,[2,4,8])
    if cfg.mimic:
        rbf(R,R)
        A(f"v_add_f32 v{R}, v{vFX}, v{R}"); rbf(R,R)
        A(f"v_add_f32 v{R}, v{R}, v{vFM}\nv_cvt_pk_bf16_f32 v{R}, v{R}, v{R}")
    else:
        A(f"v_add_f32 v{R}, v{vFX}, v{R}\nv_cvt_pk_bf16_f32 v{R}, v{R}, v{R}")
    A(f"s_mov_b32 exec_lo, 0x00030003\ns_mov_b32 exec_hi, 0x00030003")
    A(f"buffer_store_short v{R}, v{vG2}, s[{SRDA}:{SRDA+3}], 0 offen")
    A(f"s_cmp_lg_u32 s2, 255\ns_cbranch_scc1 {lend}")
    A(f"s_mov_b64 exec, 1\ns_add_u32 s{sE}, s{sE}, 1\nv_mov_b32 v{T+1}, s{sE}\nv_mov_b32 v{T+2}, 0")
    A(f"buffer_store_dword v{T+1}, v{T+2}, s[{SRDW}:{SRDW+3}], 0 offen sc1")
    if cfg.probe is not None:
        lx=lab("px"); ly=lab("py")
        if cfg.probe[0]=='g':
            A(f"s_mov_b64 exec, -1\ns_mov_b32 s4, 0x300000\nbuffer_load_dwordx4 v[{F}:{F+3}], v{vL16}, s[{SRDW}:{SRDW+3}], s4 offen sc1")
            A("s_waitcnt vmcnt(0)\ns_memrealtime s[82:83]\ns_waitcnt lgkmcnt(0)")
            for r in range(4): A(f"v_sub_u32 v{F+r}, s82, v{F+r}")
            A(f"v_max3_u32 v{F}, v{F}, v{F+1}, v{F+2}\nv_max_u32 v{F}, v{F}, v{F+3}\ns_mov_b32 s4, {int(cfg.probe[1]*100)}\nv_cmp_lt_u32 vcc, s4, v{F}\ns_cbranch_vccz {lend}")
        elif cfg.probe[0]=='t':
            A("s_waitcnt vmcnt(0)\ns_memrealtime s[82:83]\ns_waitcnt lgkmcnt(0)")
            k={'end':82,'b1':86,'b2':88,'b3':90}[cfg.probe[2]]
            A(f"s_sub_u32 s4, s{k}, s80\ns_cmp_lt_u32 s4, {int(cfg.probe[1]*100)}\ns_cbranch_scc1 {lend}")
        else:
            A(f"s_cmp_eq_u32 s79, 0\ns_cbranch_scc1 {lend}")
        A(f"s_mov_b32 s4, 40\n{lx}:\ns_sleep 40\ns_sub_u32 s4, s4, 1\ns_cmp_lg_u32 s4, 0\ns_cbranch_scc1 {lx}")
        A("s_endpgm")
    A(f"{lend}:")
    if cfg.probe is not None: pass
    elif cfg.stamps and cfg.dbgout:
        A(f"s_cmp_lt_u32 s2, 252\ns_cbranch_scc1 {Ldone}")
        A("s_mov_b64 exec, 1\ns_waitcnt vmcnt(0)")
        stamp(1)
        srd(SRDA,sDBG,256)
        A(f"s_waitcnt lgkmcnt(0)\ns_sub_u32 s{sO2}, s2, 252\ns_lshl_b32 s{sO2}, s{sO2}, 4\nv_mov_b32 v{T}, 0")
        for i,k in enumerate((3,4,5,1)):
            A(f"s_sub_u32 s4, s{80+2*k}, s80\nv_mov_b32 v{F+i}, s4")
        A(f"buffer_store_dwordx4 v[{F}:{F+3}], v{T}, s[{SRDA}:{SRDA+3}], s{sO2} offen")
    elif cfg.stamps:
        A("s_mov_b64 exec, 1\ns_waitcnt vmcnt(0)")
        stamp(1)
        A("s_getreg_b32 s94, hwreg(HW_REG_XCC_ID)\ns_mov_b32 s95, 0\ns_waitcnt lgkmcnt(0)")
        A(f"s_lshl_b32 s{sO2}, s2, 6\ns_add_u32 s{sO2}, s{sO2}, {STAMP:#x}\nv_mov_b32 v{T}, 0")
        for k in range(8):
            A(f"v_mov_b32 v{F}, s{80+2*k}\nv_mov_b32 v{F+1}, s{81+2*k}\nbuffer_store_dwordx2 v[{F}:{F+1}], v{T}, s[{SRDW}:{SRDW+3}], s{sO2} offen offset:{8*k}\ns_nop 1")
    A(f"{Ldone}:")
    A("s_endpgm")
    body="\n".join(L)+"\n"
    kd=f""".section .rodata,"a"
.p2align 6
.amdhsa_kernel {N}
  .amdhsa_next_free_vgpr 232
  .amdhsa_next_free_sgpr 96
  .amdhsa_accum_offset 232
  .amdhsa_group_segment_fixed_size 0
  .amdhsa_kernarg_size 104
  .amdhsa_user_sgpr_count 2
  .amdhsa_user_sgpr_kernarg_segment_ptr 1
  .amdhsa_system_sgpr_workgroup_id_x 1
  .amdhsa_float_denorm_mode_32 3
.end_amdhsa_kernel
"""
    return body, kd

def header():
    ref=open('parallel_sum__gqa_block_cached__dense_activation_gelu__decode.s.ref').read().split("\n")
    out=[]
    for l in ref:
        if l.startswith("; @launch"):
            out.append(f"; @launch grid=(256,1,1) block=(320,1,1) lds={LDS_END}")
            break
        out.append(l)
    return "\n".join(out)+"\n"

def final(cfg, path):
    body,kd=gen(cfg)
    open(path,"w").write(header()+'.amdgcn_target "amdgcn-amd-amdhsa--gfx950"\n.text\n'+body+kd)

def bench(cfgs, path):
    sys.path.insert(0,'bench')
    from genstream import meta
    s='.amdgcn_target "amdgcn-amd-amdhsa--gfx950"\n'
    ks=[]; args=[]
    for c in cfgs:
        body,kd=gen(c)
        s+=".text\n"+body+kd.replace("kernarg_size 104","kernarg_size 112")
        ks.append((c.name,232,320)); args.append(f"{c.name} 256 320 {LDS_END}")
    s+=meta(ks)
    open(path+".s","w").write(s); open(path+".args","w").write(" @ ".join(args))

def mk(name, **kw):
    c=Cfg(); c.name=name
    for k,v in kw.items():
        assert hasattr(c,k), k
        setattr(c,k,v)
    return c

if __name__=="__main__":
    if sys.argv[1]=="final":
        kw=eval(sys.argv[3]) if len(sys.argv)>3 else {}
        final(mk(KNAME,**kw), sys.argv[2])
    else:
        bench([mk(n,**kw) for n,kw in eval(sys.argv[3])], sys.argv[2])
```

```python
import sys, struct, math

KNAME = "parallel_sum__gqa_block_cached__dense_activation_gelu__decode_kernel"
def f2u(f): return struct.unpack('<I', struct.pack('<f', f))[0]

class Cfg:
    name = KNAME
    rot = 0
    pace = 6
    infl = 5
    stamps = False
    smap = {}
    wnt = "nt"
    qsleep = 16
    sleep1 = 2
    sleep2 = 0
    mlsleep = 100
    fc = 56
    nomlp = False
    notail = False
    auxnull = False
    nowo = False
    qdelay = 100
    mldelay = 254
    prio2 = 0
    nowq = False
    noqx = False
    opol = 'sc1'
    lpol = 'sc1'
    probe = None
    pool = True
    pinfl = 8
    pclaim = 4
    first = 6
    fb = None
    qgate = None
    cnt = 'nt'
    noml = False
    noopub = False
    mimic = True
    fast1 = 0
    fast2 = 0
    fthr = 64
    vpre = True
    agate = 0
    gran = 1
    thr = None
    dbgout = False

RING=0; SC=131072; WBUF=SC+8192; XN=WBUF+14336; QB=XN+1024; MX=QB+1024; FB=MX+64; LV=FB+32; RDY=FB+36; LDS_END=FB+64
QBOX=0x1000; MLBOX=0x8000; OBOX=0x10000; PBOX=0x100000; MBOX=0x180000; SBOX=0x200000; CNT=0x280000; CSTR=4352; STAMP=0x20000000
SPIN_LIMIT = 1<<16
CEXP = 0.0625*math.log2(math.e)

def tt(f):
    r=0
    for idx in range(8):
        if f((idx>>2)&1,(idx>>1)&1,idx&1): r|=1<<idx
    return r

def gen(cfg):
    L=[]
    def A(s):
        for line in s.split("\n"):
            t=line.strip()
            L.append(t if t.endswith(":") else "    "+t)
    N=cfg.name
    pre = "L" if N==KNAME else f"L_{N}"
    uid=[0]
    def lab(p):
        uid[0]+=1; return f"{pre}_{p}{uid[0]}"
    def nop(n):
        if n>0: A(f"s_nop {n-1}")
    sX,sK,sV,sWQ,sWO,sW1,sB1=16,18,20,22,24,28,30
    sW2,sB2,sOUT,sDBG,sWS=32,34,36,38,40
    SRDK,SRDV,SRDA,SRDW=44,48,52,56
    sWAVE=3
    def srd(d, p, size):
        A(f"s_mov_b32 s{d}, s{p}\ns_mov_b32 s{d+1}, s{p+1}\ns_mov_b32 s{d+2}, {size:#x}\ns_mov_b32 s{d+3}, 0x20000")
    def stamp(k):
        if cfg.stamps:
            if isinstance(k,str):
                if k not in cfg.smap: return
                k=cfg.smap[k]
            elif k in cfg.smap.values(): return
            A(f"s_memrealtime s[{80+2*k}:{81+2*k}]")
    DPP="row_mask:0xf bank_mask:0xf"
    def rowred(op, v, rors):
        for r in rors:
            nop(2); A(f"{op}_dpp v{v}, v{v}, v{v} row_ror:{r} {DPP}")
    def xrowred(op, v, t):
        A(f"v_mov_b32 v{t}, v{v}"); nop(2); A(f"v_permlane16_swap_b32 v{v}, v{t}"); A(f"{op} v{v}, v{v}, v{t}")
        A(f"v_mov_b32 v{t}, v{v}"); nop(2); A(f"v_permlane32_swap_b32 v{v}, v{t}"); A(f"{op} v{v}, v{v}, v{t}")
    def tred4(a):
        nop(2)
        A(f"v_permlane32_swap_b32 v{a}, v{a+2}\nv_permlane32_swap_b32 v{a+1}, v{a+3}")
        A(f"v_add_f32 v{a}, v{a}, v{a+2}\nv_add_f32 v{a+1}, v{a+1}, v{a+3}")
        nop(2)
        A(f"v_permlane16_swap_b32 v{a}, v{a+1}")
        A(f"v_add_f32 v{a}, v{a}, v{a+1}")
    def rbf(d, s):
        A(f"v_cvt_pk_bf16_f32 v{d}, v{s}, v{s}\nv_and_b32 v{d}, 0xffff0000, v{d}")
    def masks(dst, n, t0, t1):
        A(f"v_and_b32 v{t0}, 1, v{n}\nv_lshlrev_b32 v{t0}, 4, v{t0}\nv_mov_b32 v{t1}, 0xffff\nv_lshlrev_b32 v{t1}, v{t0}, v{t1}\nv_bfe_u32 v{t0}, v{n}, 1, 2")
        for r in range(4):
            A(f"v_cmp_eq_u32 vcc, {r}, v{t0}"); nop(2); A(f"v_cndmask_b32 v{dst+r}, 0, v{t1}, vcc")

    Ldone=f"{pre}_done"; Laux=f"{pre}_aux"
    A(f".globl {N}\n.p2align 8\n.type {N},@function\n{N}:")
    A(f"s_cmp_ge_u32 s2, 256\ns_cbranch_scc1 {Ldone}")
    A("s_load_dwordx16 s[16:31], s[0:1], 0\ns_load_dwordx8 s[32:39], s[0:1], 64\ns_load_dwordx2 s[40:41], s[0:1], 96")
    stamp(0)
    A("v_lshrrev_b32 v1, 6, v0\nv_and_b32 v2, 63, v0")
    nop(1)
    A(f"v_readfirstlane_b32 s{sWAVE}, v1")
    A(f"s_cmp_eq_u32 s{sWAVE}, 4\ns_cbranch_scc1 {Laux}")

    vKO=8; vVO=16; vKA=18; vVA=22; vSA=23; vMASK=24; vMAX=28; vTG=29; vNM=30; vT=31
    QF=32; TF=64; D=96; S2=100; VP=104
    AR=32; ACC=48; P=56; vVP=7
    sRING,sREG,sNEXT,sOFF,sCNT,sC,sT8,sFF,sV0,sLV,sCL,sY,sSCO=60,61,62,63,64,65,66,67,68,69,70,71,72
    sPC=76
    A("v_lshrrev_b32 v3, 5, v2\nv_and_b32 v4, 31, v2\nv_lshlrev_b32 v5, 2, v3\nv_xor_b32 v4, v4, v5\nv_lshlrev_b32 v4, 4, v4\nv_lshl_add_u32 v4, v3, 9, v4")
    for j in range(8):
        c=(8*(j&1)+(j>>1))*16 | (4096 if j>=4 else 0)
        A(f"v_xor_b32 v{vKO+j}, {c:#x}, v4")
    A(f"s_lshl_b32 s{sRING}, s{sWAVE}, 15\ns_lshl_b32 s{sREG}, s2, 20")
    A(f"s_mul_i32 s{sNEXT}, s2, {cfg.rot*32768}\ns_lshl_b32 s{sOFF}, s{sWAVE}, 13\ns_add_u32 s{sNEXT}, s{sNEXT}, s{sOFF}\ns_and_b32 s{sNEXT}, s{sNEXT}, 0xfffff")
    A("s_waitcnt lgkmcnt(0)")
    srd(SRDK,sK,1<<28)
    def gate(j, lim):
        if lim is None: return "s_nop 0"
        return f"s_waitcnt vmcnt({lim[j&1]-1})"
    INF=cfg.infl if isinstance(cfg.infl,tuple) else (cfg.infl,cfg.infl)
    PINF=cfg.pinfl if isinstance(cfg.pinfl,tuple) else (cfg.pinfl,cfg.pinfl)
    def claim():
        A(f"s_mov_b32 s{sCL}, 1\ns_atomic_add s{sCL}, s[{sPC}:{sPC+1}], 0 glc")
    def steps(slot, kind, lim=INF, doclaim=False):
        def mk(j):
            def f():
                if kind is None: return
                half=j>>2; jj=j&3
                sk=None
                if kind=='P':
                    sk=lab("ps")
                    if j==0:
                        ok=lab("po")
                        A(f"s_waitcnt lgkmcnt(0)\ns_mov_b32 s{sSCO+slot}, -1\ns_cmp_ge_u32 s{sCL}, 32\ns_cbranch_scc1 {sk}")
                        A(f"s_and_b32 s4, s{sCL}, 7\ns_lshr_b32 s5, s{sCL}, 3\ns_lshl_b32 s{sOFF}, s4, 20\ns_lshl_b32 s6, s5, 15\ns_add_u32 s{sOFF}, s{sOFF}, s6\ns_add_u32 s{sOFF}, s{sOFF}, s{sV0}")
                        A(f"s_lshl_b32 s4, s4, 10\ns_lshl_b32 s5, s5, 8\ns_add_u32 s{sSCO+slot}, s4, s5")
                    else:
                        A(f"s_cmp_eq_u32 s{sSCO+slot}, -1\ns_cbranch_scc1 {sk}")
                elif j==0:
                    A(f"s_or_b32 s{sOFF}, s{sREG}, s{sNEXT}\ns_add_u32 s{sNEXT}, s{sNEXT}, 32768\ns_and_b32 s{sNEXT}, s{sNEXT}, 0xfffff")
                if (kind=='P' or doclaim) and j==cfg.pclaim: claim()
                vo = vKO+j if kind=='K' else vVO+half
                sr = SRDK if kind=='K' else SRDV
                A(f"s_add_u32 m0, s{sRING}, {slot*8192+half*4096}\n{gate(j, PINF if kind=='P' else lim)}")
                A(f"buffer_load_dwordx4 v{vo}, s[{sr}:{sr+3}], s{sOFF} offen offset:{jj*1024} nt lds")
                if sk: A(f"{sk}:")
            return f
        return [mk(j) for j in range(8)]
    def weave(st, sl):
        for u in range(8):
            st[u]()
            if u<len(sl): sl[u]()
    for j,f in enumerate(steps(0,'K',None)[:cfg.first]): f()
    srd(SRDV,sV,1<<28)
    A(f"s_load_dword s{sT8}, s[{sWS}:{sWS+1}], 0")
    A(f"v_lshlrev_b32 v{vVO}, 4, v2\nv_add_u32 v{vVO+1}, 0x1000, v{vVO}")
    A("v_lshrrev_b32 v3, 4, v2\nv_and_b32 v4, 15, v2")
    A("v_and_b32 v5, 3, v4\nv_lshlrev_b32 v5, 2, v5\nv_lshrrev_b32 v6, 2, v4\nv_add_u32 v5, v5, v6")
    A(f"v_xor_b32 v6, v3, v4\nv_lshlrev_b32 v6, 4, v6\nv_lshl_add_u32 v6, v5, 9, v6\nv_add_u32 v6, s{sRING}, v6")
    for q in range(4): A(f"v_xor_b32 v{vKA+q}, {q*64}, v6")
    A(f"v_lshlrev_b32 v6, 4, v4\nv_lshl_add_u32 v6, v3, 9, v6\nv_add_u32 v{vVA}, s{sRING}, v6")
    A(f"s_lshl_b32 s{sCNT}, s{sWAVE}, 11\ns_add_u32 s{sCNT}, s{sCNT}, {SC}")
    A(f"v_lshrrev_b32 v5, 3, v4\nv_lshlrev_b32 v6, 5, v5\nv_lshl_add_u32 v6, v3, 3, v6\nv_add_u32 v{vSA}, s{sCNT}, v6")
    A(f"v_lshlrev_b32 v7, 9, v5\nv_lshl_add_u32 v7, v3, 4, v7\nv_add_u32 v7, {QB}, v7")
    masks(vMASK,4,5,6)
    A(f"v_mov_b32 v{vMAX}, 0xff800000")
    A(f"v_subrev_u32 v{vT}, s{sRING}, v{vVA}\nv_add_u32 v1, 0x1000, v{vT}")
    A(f"s_mov_b32 s{sV0}, s{sOFF}")
    for f in steps(0,'K')[cfg.first:]: f()
    for slot in (1,2):
        for f in steps(slot,'K'): f()
    for i in range(4):
        for u in range(8):
            o=(u>>1)*2048+(u&1)*256
            vo = vT if o<4096 else 1
            A(gate(u,INF))
            A(f"buffer_load_dwordx4 v[{VP+32*i+4*u}:{VP+32*i+4*u+3}], v{vo}, s[{SRDV}:{SRDV+3}], s{sV0} offen offset:{o&4095} nt")
        A(f"s_add_u32 s{sV0}, s{sV0}, 32768\ns_and_b32 s{sV0}, s{sV0}, 0xfffff\ns_or_b32 s{sV0}, s{sV0}, s{sREG}")
    A(f"s_waitcnt lgkmcnt(0)\ns_add_u32 s{sT8}, s{sT8}, 1\ns_and_b32 s{sT8}, s{sT8}, 0xff\ns_mov_b32 s{sFF}, 0xff\nv_mov_b32 v{vTG}, s{sT8}")
    srd(SRDW,sWS,1<<30)
    A("s_barrier")
    for jj in range(8): A(f"ds_read_b128 v[{QF+4*jj}:{QF+4*jj+3}], v7 offset:{jj*64}")

    def ktile(slot, kind):
        def s0():
            A("s_waitcnt vmcnt(16)")
            for jj in range(8):
                A(f"ds_read_b128 v[{TF+4*jj}:{TF+4*jj+3}], v{vKA+(jj&3)} offset:{slot*8192+(jj>>2)*256}")
        def mf(r):
            def f():
                if r[0]==0: A("s_waitcnt lgkmcnt(0)")
                for jj in r:
                    c = "0" if jj==0 else f"v[{D}:{D+3}]"
                    A(f"v_mfma_f32_16x16x32_bf16 v[{D}:{D+3}], v[{TF+4*jj}:{TF+4*jj+3}], v[{QF+4*jj}:{QF+4*jj+3}], {c}")
            return f
        def s3():
            nop(5)
            A(f"v_cvt_pk_bf16_f32 v{S2}, v{D}, v{D+1}\nv_cvt_pk_bf16_f32 v{S2+1}, v{D+2}, v{D+3}")
            A(f"v_max3_f32 v{vMAX}, v{vMAX}, v{D}, v{D+1}\nv_max3_f32 v{vMAX}, v{vMAX}, v{D+2}, v{D+3}")
            A(f"ds_write_b64 v{vSA}, v[{S2}:{S2+1}] offset:{slot*64}")
        weave(steps((slot+3)&3,kind),[s0,mf([0,1,2,3]),mf([4,5,6,7]),s3])
    def pcalc():
        A(f"v_lshlrev_b32 v{P}, 16, v{S2}\nv_and_b32 v{P+1}, 0xffff0000, v{S2}\nv_lshlrev_b32 v{P+2}, 16, v{S2+1}\nv_and_b32 v{P+3}, 0xffff0000, v{S2+1}")
        for t in range(4): A(f"v_fma_f32 v{P+t}, v{P+t}, s{sC}, v{vNM}")
        for t in range(4): A(f"v_exp_f32 v{P+t}, v{P+t}")
        nop(1)
        for t in range(4): A(f"v_cvt_pk_bf16_f32 v{P+t}, v{P+t}, v{P+t}")
    def pmask():
        for t in range(4):
            for r in range(4): A(f"v_and_b32 v{AR+4*t+r}, v{P+t}, v{vMASK+r}")
    def pv(src, us):
        for u in us:
            t=u>>1; h=u&1
            A(f"v_mfma_f32_16x16x32_bf16 v[{ACC+4*h}:{ACC+4*h+3}], v[{AR+4*t}:{AR+4*t+3}], v[{src+4*u}:{src+4*u+3}], v[{ACC+4*h}:{ACC+4*h+3}]")
    def vtile(slot, kind, waitn, scoff=None, regs=None, pooled=False, doclaim=False):
        def s0():
            if pooled: A(f"v_add_u32 v{vT}, s{sSCO+slot}, v{vSA}\nds_read_b64 v[{S2}:{S2+1}], v{vT}")
            else: A(f"ds_read_b64 v[{S2}:{S2+1}], v{vSA} offset:{slot*64 if scoff is None else scoff}")
            A("s_waitcnt lgkmcnt(0)"); pcalc()
        def s1():
            if waitn=='y':
                go=lab("wy")
                A("s_waitcnt vmcnt(16)")
                for y in (2,1): A(f"s_cmp_ge_i32 s{sY}, {y}\ns_cbranch_scc1 {go}\ns_waitcnt vmcnt({8*(y-1)})")
                A(f"{go}:")
            else: A(f"s_waitcnt vmcnt({waitn})")
            for u in range(8):
                A(f"ds_read_b128 v[{TF+4*u}:{TF+4*u+3}], v{vVA} offset:{slot*8192+(u>>1)*2048+(u&1)*256}")
            pmask()
            A("s_waitcnt lgkmcnt(0)")
        sl=[s0,s1,lambda:pv(TF,[0,1,2,3]),lambda:pv(TF,[4,5,6,7])]
        if regs is not None:
            def r0():
                A(f"ds_read_b64 v[{S2}:{S2+1}], v{vSA} offset:{slot*64}\ns_waitcnt lgkmcnt(0)"); pcalc()
            sl+=[r0,pmask,lambda:pv(regs,[0,1,2,3]),lambda:pv(regs,[4,5,6,7])]
        weave(steps((slot+3)&3,kind,doclaim=doclaim),sl)
        if kind=='P':
            A(f"s_cmp_eq_u32 s{sSCO+((slot+3)&3)}, -1\ns_subb_u32 s{sY}, s{sY}, 0")

    lk=lab("kloop")
    A(f"s_mov_b32 s{sCNT}, 7")
    A(f"{lk}:")
    for s in range(4): ktile(s,'K')
    A(f"v_add_u32 v{vSA}, 256, v{vSA}")
    A(f"s_sub_u32 s{sCNT}, s{sCNT}, 1\ns_cmp_lg_u32 s{sCNT}, 0\ns_cbranch_scc1 {lk}")
    ktile(0,'K')
    A(f"s_add_u32 s{sNEXT}, s{sNEXT}, {4*32768}\ns_and_b32 s{sNEXT}, s{sNEXT}, 0xfffff")
    for s in range(1,4): ktile(s,'V')
    A(f"v_subrev_u32 v{vSA}, {7*256}, v{vSA}")
    for r in range(8): A(f"v_mov_b32 v{ACC+r}, 0")
    xrowred("v_max_f32", vMAX, vT)
    rbf(vMAX,vMAX)
    A(f"v_bfe_u32 v3, v2, 3, 1\nv_lshlrev_b32 v3, 4, v3\nv_add_u32 v3, {MX}, v3")
    A(f"s_lshl_b32 s{sCNT}, s{sWAVE}, 2\nv_add_u32 v4, s{sCNT}, v3")
    A(f"ds_write_b32 v4, v{vMAX}\ns_waitcnt lgkmcnt(0)\ns_barrier")
    A(f"ds_read_b128 v[{D}:{D+3}], v3\ns_mov_b32 s{sC}, {f2u(CEXP):#x}\ns_waitcnt lgkmcnt(0)")
    A(f"v_max_f32 v{vMAX}, v{D}, v{D+1}\nv_max3_f32 v{vMAX}, v{vMAX}, v{D+2}, v{D+3}")
    A(f"v_mul_f32 v{vNM}, s{sC}, v{vMAX}\nv_sub_f32 v{vNM}, 0, v{vNM}")
    A("v_lshrrev_b32 v6, 5, v2\nv_lshlrev_b32 v6, 10, v6\nv_and_b32 v5, 15, v2\nv_lshl_add_u32 v6, v5, 5, v6\nv_bfe_u32 v5, v2, 4, 1\nv_lshl_add_u32 v6, v5, 4, v6")
    A(f"v_add_u32 v6, s{sRING}, v6")
    A(f"s_lshl_b32 s{sCNT}, s{sWAVE}, 9\nv_lshlrev_b32 v4, 4, v2\nv_add_u32 v4, s{sCNT}, v4\nv_add_u32 v5, 0x10000, v4")
    A(f"s_lshr_b32 s{sCNT}, s{sWAVE}, 1\ns_lshl_b32 s{sCNT}, s{sCNT}, 2\ns_add_u32 s{sCNT}, s{sCNT}, {FB}\nv_mov_b32 v3, s{sCNT}")
    lv=lab("vloop")
    for s in range(4): vtile(s,'V',16,scoff=256+s*64,regs=VP+32*s)
    A(f"v_add_u32 v{vSA}, 512, v{vSA}")
    assert cfg.rot==0 or not cfg.pool
    A(f"s_mov_b32 s{sCNT}, {4 if cfg.pool else 5}")
    A(f"{lv}:")
    for s in range(4): vtile(s,'V',16)
    A(f"v_add_u32 v{vSA}, 256, v{vSA}")
    A(f"s_sub_u32 s{sCNT}, s{sCNT}, 1\ns_cmp_lg_u32 s{sCNT}, 0\ns_cbranch_scc1 {lv}")
    if cfg.pool:
        lw=lab("rw"); lwd=lab("rwd")
        A(f"v_mov_b32 v{vT}, {RDY}\ns_mov_b32 s{sCNT}, 0")
        A(f"{lw}:\nds_read_b32 v{D}, v{vT}\ns_add_u32 s{sCNT}, s{sCNT}, 1")
        A(f"s_lshr_b32 s4, s2, 3\ns_lshl_b32 s5, s4, 2\ns_add_u32 s5, s5, s{sWAVE}\ns_mul_i32 s5, s5, {CSTR}\ns_add_u32 s5, s5, {CNT}\ns_add_u32 s{sPC}, s{sWS}, s5\ns_addc_u32 s{sPC+1}, s{sWS+1}, 0")
        A(f"s_lshl_b32 s{sV0}, s4, 23\ns_lshl_b32 s5, s{sWAVE}, 13\ns_add_u32 s{sV0}, s{sV0}, s5\ns_add_u32 s{sV0}, s{sV0}, {28*32768}\ns_mov_b32 s{sY}, 2")
        A(f"s_waitcnt lgkmcnt(0)\nv_readfirstlane_b32 s4, v{D}\ns_cmp_lg_u32 s4, 0\ns_cbranch_scc1 {lwd}")
        A(f"s_sleep 4\ns_cmp_lt_u32 s{sCNT}, {SPIN_LIMIT*16}\ns_cbranch_scc1 {lw}\n{lwd}:")
        vtile(0,'V',16,doclaim=True)
        for s in range(1,4): vtile(s,'P','y')
        A(f"v_lshrrev_b32 v{vT}, 5, v2\nv_lshlrev_b32 v{vT}, 2, v{vT}\nv_add_u32 v{vT}, {FB+8}, v{vT}\nds_read_b32 v{D}, v{vT}")
        A(f"v_bfe_u32 v{vT}, v2, 3, 1\nv_lshlrev_b32 v{vSA}, 5, v{vT}\nv_lshlrev_b32 v{vT}, 2, v{vT}\nv_add_u32 v{vT}, {FB+16}, v{vT}\nds_read_b32 v{vNM}, v{vT}")
        A(f"v_lshrrev_b32 v{vT}, 4, v2\nv_lshl_add_u32 v{vSA}, v{vT}, 3, v{vSA}\ns_lshl_b32 s4, s{sWAVE}, 6\ns_add_u32 s4, s4, {WBUF}\nv_add_u32 v{vSA}, s4, v{vSA}")
        A("s_waitcnt lgkmcnt(0)")
        for r in range(8): A(f"v_mul_f32 v{ACC+r}, v{ACC+r}, v{D}")
        lp=lab("ploop"); le=lab("pend")
        A(f"{lp}:")
        for s in range(4):
            A(f"s_cmp_eq_u32 s{sSCO+s}, -1\ns_cbranch_scc1 {le}")
            vtile(s,'P','y',pooled=True)
        A(f"s_branch {lp}\n{le}:")
    else:
        vtile(0,'V',16); vtile(1,None,16); vtile(2,None,8); vtile(3,None,0)
    A(f"s_lshl_b32 s{sOFF}, s2, 11\ns_add_u32 s{sOFF}, s{sOFF}, {OBOX}")
    nop(7)
    A(f"ds_write_b128 v6, v[{ACC}:{ACC+3}]\nds_write_b128 v6, v[{ACC+4}:{ACC+7}] offset:512")
    A("s_waitcnt lgkmcnt(0)\ns_barrier")
    A("s_mov_b32 exec_hi, 0")
    A(f"ds_read_b128 v[{TF}:{TF+3}], v4\nds_read_b128 v[{TF+4}:{TF+7}], v4 offset:32768\nds_read_b128 v[{TF+8}:{TF+11}], v5\nds_read_b128 v[{TF+12}:{TF+15}], v5 offset:32768\nds_read_b32 v{TF+16}, v3")
    A("s_waitcnt lgkmcnt(3)")
    for r in range(4): A(f"v_add_f32 v{TF+r}, v{TF+r}, v{TF+4+r}")
    A("s_waitcnt lgkmcnt(1)")
    for r in range(4): A(f"v_add_f32 v{TF+8+r}, v{TF+8+r}, v{TF+12+r}")
    for r in range(4): A(f"v_add_f32 v{TF+r}, v{TF+r}, v{TF+8+r}")
    A("s_waitcnt lgkmcnt(0)")
    for r in range(4): A(f"v_mul_f32 v{TF+r}, v{TF+r}, v{TF+16}")
    for r in range(4): A(f"v_bfi_b32 v{TF+r}, s{sFF}, v{vTG}, v{TF+r}")
    if not cfg.noopub: A(f"buffer_store_dwordx4 v[{TF}:{TF+3}], v4, s[{SRDW}:{SRDW+3}], s{sOFF} offen {cfg.opol}")
    A("s_endpgm")

    vL16=3; vWO_=4; vTR=5; vXA=6
    X=8; F=12; T=20
    XF=32; WF=88
    WT=144
    PA=208
    AM=216
    vT8=220; vFX=221; vG1=222; vG2=223; vPS=224; vTO=225; vFM=226; vH=227
    AT=88
    sE,sTAG,sCQ,sO2,sSPIN,sCM,sFF,sA,sB=60,61,62,63,64,65,78,66,67
    A(f"{Laux}:")
    lend=lab("end")
    if cfg.auxnull:
        A("s_waitcnt lgkmcnt(0)"); srd(SRDW,sWS,1<<30)
        A("s_barrier"); stamp(3); A("s_barrier"); stamp(4); A("s_barrier"); stamp(5); A(f"s_branch {lend}")
    A("s_setprio 3")
    A(f"v_lshrrev_b32 v7, 1, v2\nv_and_b32 v{T}, 1, v2\nv_lshlrev_b32 v{T}, 4, v{T}")
    A(f"v_lshl_add_u32 v{vWO_}, v7, 13, v{T}\nv_lshlrev_b32 v{vL16}, 4, v2")
    A(f"s_and_b32 s{sCQ}, s2, 7\ns_lshl_b32 s{sCQ}, s{sCQ}, 5\ns_lshr_b32 s{sO2}, s2, 3\ns_add_u32 s{sCQ}, s{sCQ}, s{sO2}\ns_lshl_b32 s{sO2}, s{sCQ}, 5")
    A("s_waitcnt lgkmcnt(0)")
    stamp('karg')
    A(f"s_load_dword s{sE}, s[{sWS}:{sWS+1}], 0")
    srd(SRDA,sX,896)
    A(f"buffer_load_dwordx4 v[{X}:{X+3}], v{vL16}, s[{SRDA}:{SRDA+3}], 0 offen")
    srd(SRDK,sWQ,448*4096*2)
    def wdma(sr, step, gate=None):
        for i in range(14):
            if gate is not None: A(f"s_waitcnt vmcnt({gate})")
            A(f"s_mov_b32 m0, {WBUF+i*1024}")
            if i: A(f"s_add_u32 s{sO2}, s{sO2}, {step}")
            else: nop(1)
            A(f"buffer_load_dwordx4 v{vWO_}, s[{sr}:{sr+3}], s{sO2} offen {cfg.cnt} lds")
    if not cfg.nowq: wdma(SRDK,32*8192,cfg.qgate)
    srd(SRDW,sWS,1<<30)
    A(f"v_lshrrev_b32 v{T}, 4, v2\nv_bfe_u32 v{T+1}, v2, 2, 2\nv_lshl_add_u32 v{T+1}, v{T}, 3, v{T+1}\nv_and_b32 v{T+2}, 3, v2\nv_lshlrev_b32 v{T+2}, 3, v{T+2}\nv_add_u32 v{T+2}, {WBUF}, v{T+2}")
    A(f"v_lshl_add_u32 v{vTR}, v{T+1}, 5, v{T+2}\nv_lshl_add_u32 v{vG1}, v{T+1}, 6, v{T+2}")
    A(f"v_lshlrev_b32 v{T}, 4, v{T}\nv_add_u32 v{vXA}, {XN}, v{T}")
    A("v_cmp_gt_u32 s[74:75], 56, v2")
    stamp('issued')
    A("s_waitcnt vmcnt(14)")
    stamp('xland')
    for r in range(4):
        A(f"v_lshlrev_b32 v{F+2*r}, 16, v{X+r}\nv_and_b32 v{F+2*r+1}, 0xffff0000, v{X+r}")
    A(f"v_add_f32 v{T}, v{F}, v{F+1}\nv_add_f32 v{T+1}, v{F+2}, v{F+3}\nv_add_f32 v{T+2}, v{F+4}, v{F+5}\nv_add_f32 v{T+3}, v{F+6}, v{F+7}")
    A(f"v_add_f32 v{T}, v{T}, v{T+1}\nv_add_f32 v{T+2}, v{T+2}, v{T+3}\nv_add_f32 v{T}, v{T}, v{T+2}")
    rowred("v_add_f32",T,[1,2,4,8]); xrowred("v_add_f32",T,T+1)
    A(f"v_mul_f32 v{T}, {f2u(1.0/448):#x}, v{T}")
    A(f"v_sub_f32 v{T+2}, v{F}, v{T}\nv_mul_f32 v{T+1}, v{T+2}, v{T+2}")
    for r in range(1,8):
        A(f"v_sub_f32 v{T+2}, v{F+r}, v{T}\nv_fmac_f32 v{T+1}, v{T+2}, v{T+2}")
    A(f"v_cndmask_b32 v{T+1}, 0, v{T+1}, s[74:75]")
    rowred("v_add_f32",T+1,[1,2,4,8]); xrowred("v_add_f32",T+1,T+2)
    A(f"v_mul_f32 v{T+1}, {f2u(1.0/448):#x}, v{T+1}")
    rbf(T,T); rbf(T+1,T+1)
    A(f"v_add_f32 v{T+1}, {f2u(1e-5):#x}, v{T+1}"); rbf(T+1,T+1)
    A(f"v_sqrt_f32 v{T+1}, v{T+1}"); nop(1); rbf(T+1,T+1)
    A(f"v_rcp_f32 v{T+2}, v{T+1}")
    for r in range(8): A(f"v_sub_f32 v{F+r}, v{F+r}, v{T}")
    for r in range(4): A(f"v_cvt_pk_bf16_f32 v{X+r}, v{F+2*r}, v{F+2*r+1}")
    for r in range(4): A(f"v_lshlrev_b32 v{F+2*r}, 16, v{X+r}\nv_and_b32 v{F+2*r+1}, 0xffff0000, v{X+r}")
    for r in range(8):
        A(f"v_mul_f32 v{T+3}, v{F+r}, v{T+2}\nv_fma_f32 v{T+4}, -v{T+3}, v{T+1}, v{F+r}\nv_fma_f32 v{F+r}, v{T+4}, v{T+2}, v{T+3}")
    for r in range(4): A(f"v_cvt_pk_bf16_f32 v{X+r}, v{F+2*r}, v{F+2*r+1}")
    A(f"v_add_u32 v{T}, {XN}, v{vL16}\nds_write_b128 v{T}, v[{X}:{X+3}]\ns_waitcnt lgkmcnt(0)")
    for jj in range(14): A(f"ds_read_b128 v[{XF+4*jj}:{XF+4*jj+3}], v{vXA} offset:{jj*64}")
    stamp('lndone')
    A("s_waitcnt vmcnt(0)")
    stamp('wqland')
    for jj in range(14):
        A(f"ds_read_b64_tr_b16 v[{WF+4*jj}:{WF+4*jj+1}], v{vTR} offset:{jj*1024}\nds_read_b64_tr_b16 v[{WF+4*jj+2}:{WF+4*jj+3}], v{vTR} offset:{jj*1024+128}")
    A(f"s_waitcnt lgkmcnt(0)")
    for jj in range(14):
        c="0" if jj==0 else f"v[{T}:{T+3}]"
        A(f"v_mfma_f32_16x16x32_bf16 v[{T}:{T+3}], v[{XF+4*jj}:{XF+4*jj+3}], v[{WF+4*jj}:{WF+4*jj+3}], {c}")
    A(f"s_mul_i32 s{sTAG}, s{sE}, 0x9E3779B1\ns_add_u32 s{sTAG}, s{sTAG}, 0x7F4A7C15")
    A(f"s_add_u32 s{sFF}, s{sE}, 1\ns_and_b32 s{sFF}, s{sFF}, 0xff\nv_mov_b32 v{vT8}, s{sFF}\ns_mov_b32 s{sFF}, 0xff")
    A(f"s_lshl_b32 s{sO2}, s{sCQ}, 6\ns_add_u32 s{sO2}, s{sO2}, {QBOX}\nv_lshlrev_b32 v{T+6}, 3, v7\nv_mov_b32 v{T+5}, s{sTAG}")
    A(f"v_mov_b32_dpp v{T+1}, v{T} quad_perm:[1,1,3,3] {DPP}")
    A(f"v_cvt_pk_bf16_f32 v{T+4}, v{T}, v{T+1}")
    A("s_mov_b64 exec, 0x5555")
    if not cfg.noqx: A(f"buffer_store_dwordx2 v[{T+4}:{T+5}], v{T+6}, s[{SRDW}:{SRDW+3}], s{sO2} offen sc1")
    A("s_mov_b64 exec, -1")
    stamp(2)
    TT1=tt(lambda a,b,t:(a^t)|(b^t)); TT2=tt(lambda a,b,c:(a|b)&c)
    def poll(loads, soff, mode, sleep, fast=0, fthr=None):
        PM=4
        lp=lab("poll"); ld=lab("polld")
        for i,(d,vo,imm,lm) in enumerate(loads):
            if lm is None: A(f"s_mov_b64 s[{PM+2*i}:{PM+2*i+1}], -1")
            else: A(f"s_mov_b32 s{PM+2*i}, {lm&0xffffffff:#x}\ns_mov_b32 s{PM+2*i+1}, {lm>>32:#x}")
        A(f"s_mov_b32 s{sSPIN}, 0\ns_mov_b32 s14, 999")
        A(f"{lp}:")
        for i,(d,vo,imm,lm) in enumerate(loads):
            sk=lab("sk")
            A(f"s_mov_b64 exec, s[{PM+2*i}:{PM+2*i+1}]\ns_cbranch_execz {sk}")
            A(f"buffer_load_dwordx4 v[{d}:{d+3}], v{vo}, s[{SRDW}:{SRDW+3}], s{soff} offen offset:{imm} {cfg.lpol}")
            A(f"{sk}:")
        A(f"s_mov_b64 exec, -1\ns_add_u32 s{sSPIN}, s{sSPIN}, 1")
        if fast and fthr is not None:
            sk=lab("fs")
            A(f"s_cmp_le_u32 s14, {fthr}\ns_cbranch_scc1 {sk}\ns_waitcnt vmcnt(0)\n{sk}:")
        A(f"s_waitcnt vmcnt({fast})")
        for i,(d,vo,imm,lm) in enumerate(loads):
            if mode=='q':
                A(f"v_xor_b32 v{T+i}, s{sTAG}, v{d+1}\nv_xor_b32 v{T+4+i}, s{sTAG}, v{d+3}\nv_or_b32 v{T+i}, v{T+i}, v{T+4+i}")
            else:
                A(f"v_bitop3_b32 v{T+i}, v{d}, v{d+1}, v{vT8} bitop3:{TT1:#x}\nv_bitop3_b32 v{T+4+i}, v{d+2}, v{d+3}, v{vT8} bitop3:{TT1:#x}")
                A(f"v_bitop3_b32 v{T+i}, v{T+i}, v{T+4+i}, s{sFF} bitop3:{TT2:#x}")
        for i,(d,vo,imm,lm) in enumerate(loads):
            A(f"v_cmp_ne_u32 vcc, 0, v{T+i}\ns_and_b64 s[{PM+2*i}:{PM+2*i+1}], s[{PM+2*i}:{PM+2*i+1}], vcc")
        if len(loads)>1:
            A(f"s_or_b64 s[12:13], s[{PM}:{PM+1}], s[{PM+2}:{PM+3}]")
            for i in range(2,len(loads)): A(f"s_or_b64 s[12:13], s[12:13], s[{PM+2*i}:{PM+2*i+1}]")
        A(f"s_cbranch_scc0 {ld}")
        if fast and fthr is not None:
            A(f"s_bcnt1_i32_b64 s14, s[{PM}:{PM+1}]")
            for i in range(1,len(loads)): A(f"s_bcnt1_i32_b64 s15, s[{PM+2*i}:{PM+2*i+1}]\ns_add_u32 s14, s14, s15")
            if sleep:
                sk=lab("ns")
                A(f"s_cmp_le_u32 s14, {fthr}\ns_cbranch_scc1 {sk}\ns_sleep {sleep}\n{sk}:")
        elif sleep: A(f"s_sleep {sleep}")
        A(f"s_cmp_lt_u32 s{sSPIN}, {SPIN_LIMIT*4}\ns_cbranch_scc1 {lp}")
        A(f"{ld}:")
    A(f"s_lshr_b32 s{sO2}, s2, 5\ns_lshl_b32 s{sO2}, s{sO2}, 11\ns_add_u32 s{sO2}, s{sO2}, {QBOX}")
    def backoff(n):
        while n>0:
            A(f"s_sleep {min(n,127)}"); n-=127
    backoff(cfg.qdelay)
    if not cfg.noqx: poll([(F,vL16,0,None),(F+4,vL16,1024,None)], sO2, 'q', cfg.qsleep)
    A(f"v_mov_b32 v{T}, {RDY}\nv_mov_b32 v{T+1}, 0\nds_write_b32 v{T}, v{T+1}")
    A(f"v_lshlrev_b32 v{T}, 3, v2\nv_add_u32 v{T}, {QB}, v{T}")
    A(f"ds_write2_b32 v{T}, v{F}, v{F+2} offset0:0 offset1:1\nds_write2_b32 v{T}, v{F+4}, v{F+6} offset0:128 offset1:129")
    A("s_waitcnt lgkmcnt(0)\ns_barrier")
    stamp(3)
    if cfg.prio2!=3: A(f"s_setprio {cfg.prio2}")
    if cfg.pool:
        lz=lab("nz")
        A(f"s_and_b32 s4, s2, 7\ns_cbranch_scc1 {lz}")
        A(f"s_lshr_b32 s4, s2, 3\ns_mul_i32 s4, s4, {4*CSTR}\ns_add_u32 s4, s4, {CNT}\nv_mul_u32_u24 v{T}, {CSTR}, v2\nv_mov_b32 v{T+1}, 0\ns_mov_b64 exec, 15")
        A(f"buffer_store_dword v{T+1}, v{T}, s[{SRDW}:{SRDW+3}], s4 offen sc1\ns_mov_b64 exec, -1\n{lz}:")
    if cfg.probe is not None and cfg.probe[0]=='g':
        A(f"s_lshl_b32 s4, s2, 2\ns_add_u32 s4, s4, 0x300000\nv_mov_b32 v{T}, 0\nv_mov_b32 v{T+1}, s80\ns_mov_b64 exec, 1\nbuffer_store_dword v{T+1}, v{T}, s[{SRDW}:{SRDW+3}], s4 offen sc1\ns_mov_b64 exec, -1")
    A(f"s_bfe_u32 s{sB}, s2, 0x10003\ns_lshr_b32 s{sA}, s2, 4\ns_lshl_b32 s{sA}, s{sA}, 3\ns_and_b32 s{sO2}, s2, 7\ns_add_u32 s{sA}, s{sA}, s{sO2}")
    A(f"v_and_b32 v{T}, 15, v2"); masks(AM,T,T+1,T+2)
    A(f"v_lshrrev_b32 v{T+1}, 4, v2\nv_mul_u32_u24 v{vTO}, 896, v{T+1}\nv_lshl_add_u32 v{vTO}, v{T}, 4, v{vTO}")
    for r in range(8): A(f"v_mov_b32 v{PA+r}, 0")
    def tile_load(sr):
        for t in range(8):
            if cfg.agate is not None: A(f"s_waitcnt vmcnt({cfg.agate})")
            A(f"buffer_load_dwordx4 v[{WT+8*t}:{WT+8*t+3}], v{vTO}, s[{sr}:{sr+3}], s{sO2} offen {cfg.wnt}")
            A("s_mov_b32 exec_lo, 0x0fff0fff\ns_mov_b32 exec_hi, 0x0fff0fff")
            A(f"buffer_load_dwordx4 v[{WT+8*t+4}:{WT+8*t+7}], v{vTO}, s[{sr}:{sr+3}], s{sO2} offen offset:256 {cfg.wnt}")
            A(f"s_mov_b64 exec, -1\ns_add_u32 s{sO2}, s{sO2}, 3584")
    def project(src):
        for t in range(8):
            v,ln=src(t)
            for r in range(4): A(f"v_and_b32_dpp v{AT+4*t+r}, v{v}, v{AM+r} row_newbcast:{ln} {DPP}")
            if t>=1:
                tp=t-1
                for cb in range(2):
                    A(f"v_mfma_f32_16x16x32_bf16 v[{PA+4*cb}:{PA+4*cb+3}], v[{AT+4*tp}:{AT+4*tp+3}], v[{WT+8*tp+4*cb}:{WT+8*tp+4*cb+3}], v[{PA+4*cb}:{PA+4*cb+3}]")
        for cb in range(2):
            A(f"v_mfma_f32_16x16x32_bf16 v[{PA+4*cb}:{PA+4*cb+3}], v[{AT+28}:{AT+31}], v[{WT+56+4*cb}:{WT+56+4*cb+3}], v[{PA+4*cb}:{PA+4*cb+3}]")
    A(f"v_lshrrev_b32 v{T}, 5, v2\nv_lshlrev_b32 v{T}, 9, v{T}\nv_and_b32 v{T+1}, 15, v2\nv_lshl_add_u32 v{T}, v{T+1}, 5, v{T}\nv_bfe_u32 v{T+1}, v2, 4, 1\nv_lshl_add_u32 v{vPS}, v{T+1}, 4, v{T}")
    def rec_store(soff):
        nop(8)
        for r in range(4): A(f"v_permlane32_swap_b32 v{PA+r}, v{PA+4+r}")
        for r in range(4): A(f"v_bfi_b32 v{PA+r}, s{sFF}, v{vT8}, v{PA+r}")
        A("s_mov_b32 exec_hi, 0x0fff0fff")
        A(f"buffer_store_dwordx4 v[{PA}:{PA+3}], v{vPS}, s[{SRDW}:{SRDW+3}], s{soff} offen {cfg.opol}")
        A("s_mov_b32 exec_hi, -1")
    lnm=lab("nomlp")
    A(f"s_cmp_ge_u32 s2, {0 if cfg.nomlp else 112}\ns_cbranch_scc1 {lnm}")
    A(f"s_and_b32 s{sCM}, s2, 7\ns_mul_i32 s{sCM}, s{sCM}, 7\ns_lshr_b32 s{sO2}, s2, 4\ns_add_u32 s{sCM}, s{sCM}, s{sO2}")
    A(f"v_lshrrev_b32 v{T}, 2, v2\nv_mul_u32_u24 v{vWO_}, 3584, v{T}\nv_and_b32 v{T}, 3, v2\nv_lshl_add_u32 v{vWO_}, v{T}, 4, v{vWO_}")
    srd(SRDK,sW1,448*1792*2)
    srd(SRDA,sB1,3584)
    A(f"v_and_b32 v{T}, 15, v2\nv_lshlrev_b32 v{T}, 1, v{T}\ns_lshl_b32 s{sO2}, s{sCM}, 6")
    A(f"buffer_load_ushort v{F}, v{T}, s[{SRDA}:{SRDA+3}], s{sO2} offen\ns_nop 0\nbuffer_load_ushort v{F+1}, v{T}, s[{SRDA}:{SRDA+3}], s{sO2} offen offset:32")
    for ps in range(2):
        wdma(SRDK,16*3584,cfg.agate)
        A(f"s_add_u32 s{sO2}, s{sO2}, {16*3584}\ns_waitcnt vmcnt(0)")
        for kk in range(7):
            for u in range(2):
                r=WF+8*kk+4*u
                A(f"ds_read_b64_tr_b16 v[{r}:{r+1}], v{vG1} offset:{kk*2048+u*32}\nds_read_b64_tr_b16 v[{r+2}:{r+3}], v{vG1} offset:{kk*2048+u*32+256}")
        A("s_waitcnt lgkmcnt(0)")
        for kk in range(7):
            for u in range(2):
                r=WF+8*kk+4*u; x=XF+4*(7*ps+kk)
                c="0" if (ps==0 and kk==0) else f"v[{T+4*u}:{T+4*u+3}]"
                A(f"v_mfma_f32_16x16x32_bf16 v[{T+4*u}:{T+4*u+3}], v[{x}:{x+3}], v[{r}:{r+3}], {c}")
    srd(SRDK,sW2,1792*448*2)
    A(f"s_mul_i32 s{sO2}, s{sCM}, {32*896}\ns_mul_i32 s{sSPIN}, s{sB}, 448\ns_add_u32 s{sO2}, s{sO2}, s{sSPIN}")
    tile_load(SRDK)
    k0=math.sqrt(2/math.pi)
    for u in range(2):
        h=T+4*u; t1=h+1; t2=h+2
        rbf(h,h)
        A(f"v_lshlrev_b32 v{F+u}, 16, v{F+u}\nv_add_f32 v{h}, v{h}, v{F+u}"); rbf(h,h)
        A(f"v_mul_f32 v{t1}, v{h}, v{h}\nv_mul_f32 v{t1}, v{t1}, v{h}\nv_mov_b32 v{t2}, {f2u(0.044715):#x}\nv_fma_f32 v{t1}, v{t1}, v{t2}, v{h}")
        A(f"v_mul_f32 v{t1}, {f2u(-2*k0*math.log2(math.e)):#x}, v{t1}\nv_exp_f32 v{t1}, v{t1}"); nop(1)
        A(f"v_add_f32 v{t1}, 1.0, v{t1}\nv_rcp_f32 v{t1}, v{t1}"); nop(1)
        A(f"v_mul_f32 v{h}, v{h}, v{t1}\nv_cvt_pk_bf16_f32 v{h}, v{h}, v{h}\nv_mov_b32 v{t1}, v{h}"); nop(2)
        for g in range(1,4): A(f"v_mov_b32_dpp v{t1}, v{h} row_ror:{16-g} row_mask:{1<<g:#x} bank_mask:0xf")
    A("s_waitcnt vmcnt(0)"); nop(2)
    project(lambda t:(T+4*(t>>2)+1, 4*(t&3)))
    if cfg.mimic:
        A(f"s_lshl_b32 s{sO2}, s{sB}, 6\ns_add_u32 s{sO2}, s{sO2}, s{sCM}\ns_lshl_b32 s{sO2}, s{sO2}, 10\ns_add_u32 s{sO2}, s{sO2}, {MBOX}")
        rec_store(sO2)
        nop(2)
        for r in range(8): A(f"v_mov_b32 v{PA+r}, 0")
    nop(4)
    stamp('mlpdone')
    A(f"{lnm}:")
    srd(SRDK,sWO,4096*448*2)
    A(f"s_mul_i32 s{sO2}, s{sA}, {32*896}\ns_mul_i32 s{sSPIN}, s{sB}, 448\ns_add_u32 s{sO2}, s{sO2}, s{sSPIN}")
    if not cfg.nowo: tile_load(SRDK)
    FC=cfg.fc
    lnf=lab("nofin")
    FC0=256-FC
    if FC==56:
        A(f"v_lshrrev_b32 v{T}, 4, v2\nv_and_b32 v{T+1}, 1, v2\nv_lshl_add_u32 v{T}, v{T+1}, 2, v{T}\nv_lshlrev_b32 v{vG2}, 1, v{T}")
        A(f"s_sub_u32 s{sO2}, s2, {FC0}\ns_lshl_b32 s{sO2}, s{sO2}, 4")
    else:
        A(f"v_lshrrev_b32 v{T}, 4, v2\nv_lshlrev_b32 v{vG2}, 1, v{T}")
        A(f"s_sub_u32 s{sO2}, s2, {FC0}\ns_lshl_b32 s{sO2}, s{sO2}, 3")
    A(f"v_add_u32 v{vG2}, s{sO2}, v{vG2}")
    A(f"s_cmp_lt_u32 s2, {FC0}\ns_cbranch_scc1 {lnf}")
    srd(SRDA,sX,896)
    A(f"buffer_load_ushort v{vFX}, v{vG2}, s[{SRDA}:{SRDA+3}], 0 offen")
    srd(SRDK,sB2,896)
    A(f"buffer_load_ushort v{T}, v{vG2}, s[{SRDK}:{SRDK+3}], 0 offen")
    A(f"s_waitcnt vmcnt(0)\nv_lshlrev_b32 v{vFX}, 16, v{vFX}\nv_lshlrev_b32 v{vFM}, 16, v{T}")
    if not cfg.mimic: A(f"v_add_f32 v{vFX}, v{vFX}, v{vFM}")
    A(f"{lnf}:")
    stamp('wodone')
    A("s_barrier")
    stamp(4)
    A(f"s_mov_b32 s{sCM}, {f2u(CEXP):#x}")
    if cfg.pool:
        A(f"v_bfe_u32 v{T}, v2, 2, 2\nv_lshlrev_b32 v{T}, 11, v{T}\nv_lshrrev_b32 v{T+1}, 4, v2\nv_lshl_add_u32 v{T}, v{T+1}, 6, v{T}\nv_and_b32 v{T+1}, 3, v2\nv_lshl_add_u32 v{T}, v{T+1}, 4, v{T}\nv_add_u32 v{T}, {SC+28*64}, v{T}")
        A(f"ds_read_b128 v[{X}:{X+3}], v{T}\ns_lshl_b32 s4, s2, 10\ns_add_u32 s4, s4, {SBOX}\ns_waitcnt lgkmcnt(0)")
        A(f"buffer_store_dwordx4 v[{X}:{X+3}], v{vL16}, s[{SRDW}:{SRDW+3}], s4 offen sc1")
    A(f"v_and_b32 v{T}, 1, v2\nv_lshlrev_b32 v{T+1}, 4, v{T}\nv_add_u32 v{T+1}, {MX}, v{T+1}\nv_lshlrev_b32 v{T+2}, 5, v2\nv_add_u32 v{T+2}, {SC}, v{T+2}")
    A(f"ds_read_b128 v[{F}:{F+3}], v{T+1}")
    for w in range(4):
        A(f"ds_read_b128 v[{XF+8*w}:{XF+8*w+3}], v{T+2} offset:{w*2048}\nds_read_b128 v[{XF+8*w+4}:{XF+8*w+7}], v{T+2} offset:{w*2048+16}")
    A("s_waitcnt lgkmcnt(0)")
    A(f"v_max_f32 v{F}, v{F}, v{F+1}\nv_max3_f32 v{F}, v{F}, v{F+2}, v{F+3}\nv_mul_f32 v{F+4}, s{sCM}, v{F}\nv_sub_f32 v{F+4}, 0, v{F+4}")
    A(f"v_mov_b32 v{F+1}, 0\nv_mov_b32 v{F+5}, 0")
    for r in range(32):
        A(f"v_lshlrev_b32 v{T+3}, 16, v{XF+r}\nv_and_b32 v{T+4}, 0xffff0000, v{XF+r}")
        A(f"v_fma_f32 v{T+3}, v{T+3}, s{sCM}, v{F+4}\nv_fma_f32 v{T+4}, v{T+4}, s{sCM}, v{F+4}")
        A(f"v_exp_f32 v{T+3}, v{T+3}\nv_exp_f32 v{T+4}, v{T+4}"); nop(1)
        A(f"v_add_f32 v{F+1}, v{F+1}, v{T+3}\nv_add_f32 v{F+5}, v{F+5}, v{T+4}")
    A(f"v_add_f32 v{F+1}, v{F+1}, v{F+5}")
    rowred("v_add_f32",F+1,[2,4,8]); xrowred("v_add_f32",F+1,T+3)
    nop(2)
    A(f"v_mov_b32_dpp v{F+2}, v{F} quad_perm:[1,1,3,3] {DPP}\nv_mov_b32_dpp v{F+3}, v{F+1} quad_perm:[1,1,3,3] {DPP}")
    A(f"v_mov_b32 v{F+6}, v{F}")
    for r in range(4): A(f"v_bfi_b32 v{F+r}, s{sFF}, v{vT8}, v{F+r}")
    if cfg.probe is not None and cfg.probe[0]=='x':
        A(f"s_getreg_b32 s4, hwreg(HW_REG_XCC_ID)\ns_and_b32 s4, s4, 15\ns_lshl_b32 s4, s4, 8\nv_or_b32 v{F}, s4, v{F}")
    A(f"s_lshl_b32 s{sO2}, s2, 4\ns_add_u32 s{sO2}, s{sO2}, {MLBOX}\nv_mov_b32 v{T}, 0\ns_mov_b64 exec, 1\ns_waitcnt vmcnt(0)")
    if not cfg.noml: A(f"buffer_store_dwordx4 v[{F}:{F+3}], v{T}, s[{SRDW}:{SRDW+3}], s{sO2} offen sc1")
    A("s_mov_b64 exec, -1")
    I1=XF
    A(f"s_lshr_b32 s{sO2}, s2, 5\ns_lshl_b32 s{sO2}, s{sO2}, 9\ns_add_u32 s{sO2}, s{sO2}, {MLBOX}\nv_lshlrev_b32 v{vWO_}, 4, v7")
    backoff(cfg.mldelay)
    if not cfg.noml: poll([(I1,vWO_,0,None)], sO2, 't', cfg.mlsleep)
    if cfg.probe is not None and cfg.probe[0]=='x':
        A(f"v_bfe_u32 v{T}, v{I1}, 8, 4\nv_mov_b32 v{T+1}, v{T}"); nop(2)
        A(f"v_permlane16_swap_b32 v{T}, v{T+1}\nv_cmp_ne_u32 vcc, v{T}, v{T+1}\ns_bcnt1_i32_b64 s79, vcc")
    A(f"v_and_b32 v{T}, 1, v2\nv_cmp_eq_u32 vcc, 1, v{T}"); nop(2)
    A(f"v_cndmask_b32 v{I1}, v{I1}, v{I1+2}, vcc\nv_cndmask_b32 v{I1+1}, v{I1+1}, v{I1+3}, vcc\nv_and_b32 v{I1}, 0xffff0000, v{I1}\nv_mov_b32 v{T+1}, v{I1}")
    rowred("v_max_f32",T+1,[2,4,8]); xrowred("v_max_f32",T+1,T+2)
    A(f"v_sub_f32 v{T+2}, v{I1}, v{T+1}\nv_sub_f32 v{T+3}, v{F+6}, v{T+1}\nv_mul_f32 v{T+2}, s{sCM}, v{T+2}\nv_mul_f32 v{T+3}, s{sCM}, v{T+3}")
    A(f"v_exp_f32 v{T+2}, v{T+2}\nv_exp_f32 v{T+3}, v{T+3}"); nop(1)
    A(f"v_mul_f32 v{T+2}, v{T+2}, v{I1+1}")
    rowred("v_add_f32",T+2,[2,4,8]); xrowred("v_add_f32",T+2,T+4)
    A(f"v_rcp_f32 v{T+4}, v{T+2}"); nop(1)
    A(f"v_fma_f32 v{T+5}, -v{T+2}, v{T+4}, 1.0\nv_fma_f32 v{T+4}, v{T+5}, v{T+4}, v{T+4}")
    A(f"v_lshlrev_b32 v{T}, 2, v{T}\nv_add_u32 v{T}, {FB}, v{T}")
    if cfg.pool:
        A(f"v_mul_f32 v{T+1}, s{sCM}, v{T+1}\nv_sub_f32 v{T+1}, 0, v{T+1}")
        A(f"ds_write_b32 v{T}, v{T+4}\nds_write_b32 v{T}, v{T+3} offset:8\nds_write_b32 v{T}, v{T+1} offset:16")
        A(f"s_and_b32 s4, s2, 0xf8\ns_lshl_b32 s4, s4, 10\ns_add_u32 s4, s4, {SBOX}")
        for k in range(8):
            if k==4: A("s_add_u32 s4, s4, 4096")
            A(f"s_waitcnt vmcnt(1)\nbuffer_load_dwordx4 v[{I1+4*k}:{I1+4*k+3}], v{vL16}, s[{SRDW}:{SRDW+3}], s4 offen offset:{(k&3)*1024} sc1")
        A(f"v_add_u32 v{T}, {WBUF}, v{vL16}\ns_waitcnt vmcnt(0)")
        for k in range(8): A(f"ds_write_b128 v{T}, v[{I1+4*k}:{I1+4*k+3}] offset:{k*1024}")
        A(f"v_mov_b32 v{T}, {RDY}\nv_mov_b32 v{T+1}, 1\ns_waitcnt lgkmcnt(0)\nds_write_b32 v{T}, v{T+1}")
    else:
        A(f"v_mul_f32 v{T+3}, v{T+3}, v{T+4}\nds_write_b32 v{T}, v{T+3}")
    half=FC//2
    sH2=68
    A(f"s_sub_u32 s{sSPIN}, s2, {FC0}\ns_cmp_ge_u32 s{sSPIN}, {half}\ns_cselect_b32 s{sH2}, {128*1024-896}, 0\ns_cselect_b32 s{sO2}, {64*1024-896}, 0\ns_mul_i32 s{sSPIN}, s{sSPIN}, {1792//FC}")
    A(f"s_add_u32 s{sH2}, s{sH2}, s{sSPIN}\ns_add_u32 s{sH2}, s{sH2}, {PBOX}\ns_add_u32 s{sO2}, s{sO2}, s{sSPIN}\ns_add_u32 s{sO2}, s{sO2}, {MBOX}")
    assert FC==56
    A(f"v_lshlrev_b32 v{vH}, 10, v7\nv_and_b32 v{T}, 1, v2\nv_lshl_add_u32 v{vH}, v{T}, 4, v{vH}")
    for k in range(1,4): A(f"v_add_u32 v{vH+k}, {k*32768}, v{vH}")
    if cfg.mimic and not cfg.nomlp:
        lg=lab("nomg")
        A(f"s_cmp_lt_u32 s2, {FC0}\ns_cbranch_scc1 {lg}")
        for r in range(4): A(f"v_mov_b32 v{I1+4+r}, 0")
        poll([(I1,vH,0,None),(I1+4,vH+1,0,(1<<48)-1)], sO2, 't', 32)
        for r in range(4): A(f"v_add_f32 v{I1+r}, v{I1+r}, v{I1+4+r}")
        tred4(I1); rowred("v_add_f32",I1,[2,4,8])
        rbf(I1,I1)
        A(f"v_add_f32 v{vFM}, v{vFM}, v{I1}"); rbf(vFM,vFM)
        A(f"{lg}:")
    srd(SRDA,sOUT,896)
    A(f"v_bfe_u32 v{T}, v2, 3, 2\nv_lshlrev_b32 v{T}, 14, v{T}\nv_lshrrev_b32 v{T+1}, 5, v2\nv_lshl_add_u32 v{T}, v{T+1}, 11, v{T}\nv_and_b32 v{T+1}, 7, v2\nv_lshl_add_u32 v{vG1}, v{T+1}, 4, v{T}")
    for k in range(1,4): A(f"v_add_u32 v{X+k}, {k*4096}, v{vG1}")
    A(f"s_lshr_b32 s{sO2}, s2, 5\ns_lshl_b32 s{sO2}, s{sO2}, 16\ns_and_b32 s{sSPIN}, s{sA}, 15\ns_lshl_b32 s{sSPIN}, s{sSPIN}, 7\ns_add_u32 s{sO2}, s{sO2}, s{sSPIN}\ns_add_u32 s{sO2}, s{sO2}, {OBOX}")
    A(f"s_lshl_b32 s{sCQ}, s{sB}, 7\ns_add_u32 s{sCQ}, s{sCQ}, s{sA}\ns_lshl_b32 s{sCQ}, s{sCQ}, 10\ns_add_u32 s{sCQ}, s{sCQ}, {PBOX}")
    for r in range(32): A(f"v_not_b32 v{I1+r}, v{vT8}")
    A("s_waitcnt vmcnt(0) lgkmcnt(0)\ns_barrier")
    stamp(5)
    if cfg.notail: A(f"s_branch {lend}")
    R=F
    def sum16(I):
        for r in range(4): A(f"v_add_f32 v{R+r}, v{I+r}, v{I+4+r}\nv_add_f32 v{R+4+r}, v{I+8+r}, v{I+12+r}")
        for r in range(4): A(f"v_add_f32 v{R+r}, v{R+r}, v{R+4+r}")
        tred4(R)
    poll([(I1,vG1,0,None),(I1+4,X+1,0,None),(I1+8,X+2,0,None),(I1+12,X+3,0,None)], sO2, 't', cfg.sleep1, cfg.fast1, cfg.fthr)
    stamp(6)
    sum16(I1); rowred("v_add_f32",R,[8])
    A(f"v_cvt_pk_bf16_f32 v{R}, v{R}, v{R}"); nop(2)
    project(lambda t:(R,t))
    rec_store(sCQ)
    stamp('rec')
    A(f"s_cmp_lt_u32 s2, {FC0}\ns_cbranch_scc1 {lend}")
    I2=XF+16
    poll([(I2+4*k,vH+k,0,None) for k in range(4)], sH2, 't', cfg.sleep2, cfg.fast2, None)
    stamp('h2')
    sum16(I2); rowred("v_add_f32",R,[2,4,8])
    if cfg.mimic:
        rbf(R,R)
        A(f"v_add_f32 v{R}, v{vFX}, v{R}"); rbf(R,R)
        A(f"v_add_f32 v{R}, v{R}, v{vFM}\nv_cvt_pk_bf16_f32 v{R}, v{R}, v{R}")
    else:
        A(f"v_add_f32 v{R}, v{vFX}, v{R}\nv_cvt_pk_bf16_f32 v{R}, v{R}, v{R}")
    A(f"s_mov_b32 exec_lo, 0x00030003\ns_mov_b32 exec_hi, 0x00030003")
    A(f"buffer_store_short v{R}, v{vG2}, s[{SRDA}:{SRDA+3}], 0 offen")
    A(f"s_cmp_lg_u32 s2, 255\ns_cbranch_scc1 {lend}")
    A(f"s_mov_b64 exec, 1\ns_add_u32 s{sE}, s{sE}, 1\nv_mov_b32 v{T+1}, s{sE}\nv_mov_b32 v{T+2}, 0")
    A(f"buffer_store_dword v{T+1}, v{T+2}, s[{SRDW}:{SRDW+3}], 0 offen sc1")
    if cfg.probe is not None:
        lx=lab("px"); ly=lab("py")
        if cfg.probe[0]=='g':
            A(f"s_mov_b64 exec, -1\ns_mov_b32 s4, 0x300000\nbuffer_load_dwordx4 v[{F}:{F+3}], v{vL16}, s[{SRDW}:{SRDW+3}], s4 offen sc1")
            A("s_waitcnt vmcnt(0)\ns_memrealtime s[82:83]\ns_waitcnt lgkmcnt(0)")
            for r in range(4): A(f"v_sub_u32 v{F+r}, s82, v{F+r}")
            A(f"v_max3_u32 v{F}, v{F}, v{F+1}, v{F+2}\nv_max_u32 v{F}, v{F}, v{F+3}\ns_mov_b32 s4, {int(cfg.probe[1]*100)}\nv_cmp_lt_u32 vcc, s4, v{F}\ns_cbranch_vccz {lend}")
        elif cfg.probe[0]=='t':
            A("s_waitcnt vmcnt(0)\ns_memrealtime s[82:83]\ns_waitcnt lgkmcnt(0)")
            k={'end':82,'b1':86,'b2':88,'b3':90}[cfg.probe[2]]
            A(f"s_sub_u32 s4, s{k}, s80\ns_cmp_lt_u32 s4, {int(cfg.probe[1]*100)}\ns_cbranch_scc1 {lend}")
        else:
            A(f"s_cmp_eq_u32 s79, 0\ns_cbranch_scc1 {lend}")
        A(f"s_mov_b32 s4, 40\n{lx}:\ns_sleep 40\ns_sub_u32 s4, s4, 1\ns_cmp_lg_u32 s4, 0\ns_cbranch_scc1 {lx}")
        A("s_endpgm")
    A(f"{lend}:")
    if cfg.probe is not None: pass
    elif cfg.stamps and cfg.dbgout:
        A(f"s_cmp_lt_u32 s2, 252\ns_cbranch_scc1 {Ldone}")
        A("s_mov_b64 exec, 1\ns_waitcnt vmcnt(0)")
        stamp(1)
        srd(SRDA,sDBG,256)
        A(f"s_waitcnt lgkmcnt(0)\ns_sub_u32 s{sO2}, s2, 252\ns_lshl_b32 s{sO2}, s{sO2}, 4\nv_mov_b32 v{T}, 0")
        for i,k in enumerate((3,4,5,1)):
            A(f"s_sub_u32 s4, s{80+2*k}, s80\nv_mov_b32 v{F+i}, s4")
        A(f"buffer_store_dwordx4 v[{F}:{F+3}], v{T}, s[{SRDA}:{SRDA+3}], s{sO2} offen")
    elif cfg.stamps:
        A("s_mov_b64 exec, 1\ns_waitcnt vmcnt(0)")
        stamp(1)
        A("s_getreg_b32 s94, hwreg(HW_REG_XCC_ID)\ns_mov_b32 s95, 0\ns_waitcnt lgkmcnt(0)")
        A(f"s_lshl_b32 s{sO2}, s2, 6\ns_add_u32 s{sO2}, s{sO2}, {STAMP:#x}\nv_mov_b32 v{T}, 0")
        for k in range(8):
            A(f"v_mov_b32 v{F}, s{80+2*k}\nv_mov_b32 v{F+1}, s{81+2*k}\nbuffer_store_dwordx2 v[{F}:{F+1}], v{T}, s[{SRDW}:{SRDW+3}], s{sO2} offen offset:{8*k}\ns_nop 1")
    A(f"{Ldone}:")
    A("s_endpgm")
    body="\n".join(L)+"\n"
    kd=f""".section .rodata,"a"
.p2align 6
.amdhsa_kernel {N}
  .amdhsa_next_free_vgpr 232
  .amdhsa_next_free_sgpr 96
  .amdhsa_accum_offset 232
  .amdhsa_group_segment_fixed_size 0
  .amdhsa_kernarg_size 104
  .amdhsa_user_sgpr_count 2
  .amdhsa_user_sgpr_kernarg_segment_ptr 1
  .amdhsa_system_sgpr_workgroup_id_x 1
  .amdhsa_float_denorm_mode_32 3
.end_amdhsa_kernel
"""
    return body, kd

def header():
    ref=open('parallel_sum__gqa_block_cached__dense_activation_gelu__decode.s.ref').read().split("\n")
    out=[]
    for l in ref:
        if l.startswith("; @launch"):
            out.append(f"; @launch grid=(256,1,1) block=(320,1,1) lds={LDS_END}")
            break
        out.append(l)
    return "\n".join(out)+"\n"

def final(cfg, path):
    body,kd=gen(cfg)
    open(path,"w").write(header()+'.amdgcn_target "amdgcn-amd-amdhsa--gfx950"\n.text\n'+body+kd)

def bench(cfgs, path):
    sys.path.insert(0,'bench')
    from genstream import meta
    s='.amdgcn_target "amdgcn-amd-amdhsa--gfx950"\n'
    ks=[]; args=[]
    for c in cfgs:
        body,kd=gen(c)
        s+=".text\n"+body+kd.replace("kernarg_size 104","kernarg_size 112")
        ks.append((c.name,232,320)); args.append(f"{c.name} 256 320 {LDS_END}")
    s+=meta(ks)
    open(path+".s","w").write(s); open(path+".args","w").write(" @ ".join(args))

def mk(name, **kw):
    c=Cfg(); c.name=name
    for k,v in kw.items():
        assert hasattr(c,k), k
        setattr(c,k,v)
    return c

if __name__=="__main__":
    if sys.argv[1]=="final":
        kw=eval(sys.argv[3]) if len(sys.argv)>3 else {}
        final(mk(KNAME,**kw), sys.argv[2])
    else:
        bench([mk(n,**kw) for n,kw in eval(sys.argv[3])], sys.argv[2])
```

```python
import sys, struct, math

KNAME = "parallel_sum__gqa_block_cached__dense_activation_gelu__decode_kernel"
def f2u(f): return struct.unpack('<I', struct.pack('<f', f))[0]

class Cfg:
    name = KNAME
    rot = 0
    pace = 6
    infl = 5
    stamps = False
    smap = {}
    wnt = "nt"
    qsleep = 16
    sleep1 = 2
    sleep2 = 0
    mlsleep = 100
    fc = 56
    nomlp = False
    notail = False
    auxnull = False
    nowo = False
    ackw = True
    touch = 'sc1'
    h2delay = 8
    h1delay = 0
    mix = True
    tdiag = False
    qdelay = 30
    mldelay = 0
    prio2 = 0
    nowq = False
    noqx = False
    opol = 'sc1'
    lpol = 'sc1'
    probe = None
    pool = True
    pinfl = 10
    pclaim = 4
    first = 6
    fb = None
    qgate = 4
    cnt = 'nt'
    noml = False
    noopub = False
    mimic = True
    fast1 = 0
    fast2 = 0
    fthr = 64
    vpre = True
    agate = 1
    gran = 1
    thr = None
    dbgout = False

RING=0; SC=131072; WBUF=SC+8192; XN=WBUF+14336; QB=XN+1024; MX=QB+1024; FB=MX+64; LV=FB+32; RDY=FB+36; LDS_END=FB+64
QBOX=0x1000; MLBOX=0x8000; OBOX=0x10000; PBOX=0x100000; MBOX=0x180000; SBOX=0x200000; CNT=0x280000; CSTR=4352; STAMP=0x20000000
SPIN_LIMIT = 1<<16
CEXP = 0.0625*math.log2(math.e)

def tt(f):
    r=0
    for idx in range(8):
        if f((idx>>2)&1,(idx>>1)&1,idx&1): r|=1<<idx
    return r

def gen(cfg):
    L=[]
    def A(s):
        for line in s.split("\n"):
            t=line.strip()
            L.append(t if t.endswith(":") else "    "+t)
    N=cfg.name
    pre = "L" if N==KNAME else f"L_{N}"
    uid=[0]
    def lab(p):
        uid[0]+=1; return f"{pre}_{p}{uid[0]}"
    def nop(n):
        if n>0: A(f"s_nop {n-1}")
    sX,sK,sV,sWQ,sWO,sW1,sB1=16,18,20,22,24,28,30
    sW2,sB2,sOUT,sDBG,sWS=32,34,36,38,40
    SRDK,SRDV,SRDA,SRDW=44,48,52,56
    sWAVE=3
    def srd(d, p, size):
        A(f"s_mov_b32 s{d}, s{p}\ns_mov_b32 s{d+1}, s{p+1}\ns_mov_b32 s{d+2}, {size:#x}\ns_mov_b32 s{d+3}, 0x20000")
    def stamp(k):
        if cfg.stamps:
            if isinstance(k,str):
                if k not in cfg.smap: return
                k=cfg.smap[k]
            elif k in cfg.smap.values(): return
            A(f"s_memrealtime s[{80+2*k}:{81+2*k}]")
    DPP="row_mask:0xf bank_mask:0xf"
    def rowred(op, v, rors):
        for r in rors:
            nop(2); A(f"{op}_dpp v{v}, v{v}, v{v} row_ror:{r} {DPP}")
    def xrowred(op, v, t):
        A(f"v_mov_b32 v{t}, v{v}"); nop(2); A(f"v_permlane16_swap_b32 v{v}, v{t}"); A(f"{op} v{v}, v{v}, v{t}")
        A(f"v_mov_b32 v{t}, v{v}"); nop(2); A(f"v_permlane32_swap_b32 v{v}, v{t}"); A(f"{op} v{v}, v{v}, v{t}")
    def tred4(a):
        nop(2)
        A(f"v_permlane32_swap_b32 v{a}, v{a+2}\nv_permlane32_swap_b32 v{a+1}, v{a+3}")
        A(f"v_add_f32 v{a}, v{a}, v{a+2}\nv_add_f32 v{a+1}, v{a+1}, v{a+3}")
        nop(2)
        A(f"v_permlane16_swap_b32 v{a}, v{a+1}")
        A(f"v_add_f32 v{a}, v{a}, v{a+1}")
    def rbf(d, s):
        A(f"v_cvt_pk_bf16_f32 v{d}, v{s}, v{s}\nv_and_b32 v{d}, 0xffff0000, v{d}")
    def masks(dst, n, t0, t1):
        A(f"v_and_b32 v{t0}, 1, v{n}\nv_lshlrev_b32 v{t0}, 4, v{t0}\nv_mov_b32 v{t1}, 0xffff\nv_lshlrev_b32 v{t1}, v{t0}, v{t1}\nv_bfe_u32 v{t0}, v{n}, 1, 2")
        for r in range(4):
            A(f"v_cmp_eq_u32 vcc, {r}, v{t0}"); nop(2); A(f"v_cndmask_b32 v{dst+r}, 0, v{t1}, vcc")

    Ldone=f"{pre}_done"; Laux=f"{pre}_aux"
    A(f".globl {N}\n.p2align 8\n.type {N},@function\n{N}:")
    A(f"s_cmp_ge_u32 s2, 256\ns_cbranch_scc1 {Ldone}")
    A("s_load_dwordx16 s[16:31], s[0:1], 0\ns_load_dwordx8 s[32:39], s[0:1], 64\ns_load_dwordx2 s[40:41], s[0:1], 96")
    stamp(0)
    A("v_lshrrev_b32 v1, 6, v0\nv_and_b32 v2, 63, v0")
    nop(1)
    A(f"v_readfirstlane_b32 s{sWAVE}, v1")
    A(f"s_cmp_eq_u32 s{sWAVE}, 4\ns_cbranch_scc1 {Laux}")

    vKO=8; vVO=16; vKA=18; vVA=22; vSA=23; vMASK=24; vMAX=28; vTG=29; vNM=30; vT=31
    QF=32; TF=64; D=96; S2=100; VP=104
    AR=32; ACC=48; P=56; vVP=7
    sRING,sREG,sNEXT,sOFF,sCNT,sC,sT8,sFF,sV0,sLV,sCL,sY,sSCO=60,61,62,63,64,65,66,67,68,69,70,71,72
    sPC=76
    A("v_lshrrev_b32 v3, 5, v2\nv_and_b32 v4, 31, v2\nv_lshlrev_b32 v5, 2, v3\nv_xor_b32 v4, v4, v5\nv_lshlrev_b32 v4, 4, v4\nv_lshl_add_u32 v4, v3, 9, v4")
    for j in range(8):
        c=(8*(j&1)+(j>>1))*16 | (4096 if j>=4 else 0)
        A(f"v_xor_b32 v{vKO+j}, {c:#x}, v4")
    A(f"s_lshl_b32 s{sRING}, s{sWAVE}, 15\ns_lshl_b32 s{sREG}, s2, 20")
    A(f"s_mul_i32 s{sNEXT}, s2, {cfg.rot*32768}\ns_lshl_b32 s{sOFF}, s{sWAVE}, 13\ns_add_u32 s{sNEXT}, s{sNEXT}, s{sOFF}\ns_and_b32 s{sNEXT}, s{sNEXT}, 0xfffff")
    A("s_waitcnt lgkmcnt(0)")
    srd(SRDK,sK,1<<28)
    def gate(j, lim):
        if lim is None: return "s_nop 0"
        return f"s_waitcnt vmcnt({lim[j&1]-1})"
    INF=cfg.infl if isinstance(cfg.infl,tuple) else (cfg.infl,cfg.infl)
    PINF=cfg.pinfl if isinstance(cfg.pinfl,tuple) else (cfg.pinfl,cfg.pinfl)
    def claim():
        A(f"s_mov_b32 s{sCL}, 1\ns_atomic_add s{sCL}, s[{sPC}:{sPC+1}], 0 glc")
    def steps(slot, kind, lim=INF, doclaim=False):
        def mk(j):
            def f():
                if kind is None: return
                half=j>>2; jj=j&3
                sk=None
                if kind=='P':
                    sk=lab("ps")
                    if j==0:
                        ok=lab("po")
                        A(f"s_waitcnt lgkmcnt(0)\ns_mov_b32 s{sSCO+slot}, -1\ns_cmp_ge_u32 s{sCL}, 32\ns_cbranch_scc1 {sk}")
                        A(f"s_and_b32 s4, s{sCL}, 7\ns_lshr_b32 s5, s{sCL}, 3\ns_lshl_b32 s{sOFF}, s4, 20\ns_lshl_b32 s6, s5, 15\ns_add_u32 s{sOFF}, s{sOFF}, s6\ns_add_u32 s{sOFF}, s{sOFF}, s{sV0}")
                        A(f"s_lshl_b32 s4, s4, 10\ns_lshl_b32 s5, s5, 8\ns_add_u32 s{sSCO+slot}, s4, s5")
                    else:
                        A(f"s_cmp_eq_u32 s{sSCO+slot}, -1\ns_cbranch_scc1 {sk}")
                elif j==0:
                    A(f"s_or_b32 s{sOFF}, s{sREG}, s{sNEXT}\ns_add_u32 s{sNEXT}, s{sNEXT}, 32768\ns_and_b32 s{sNEXT}, s{sNEXT}, 0xfffff")
                if (kind=='P' or doclaim) and j==cfg.pclaim: claim()
                vo = vKO+j if kind=='K' else vVO+half
                sr = SRDK if kind=='K' else SRDV
                A(f"s_add_u32 m0, s{sRING}, {slot*8192+half*4096}\n{gate(j, PINF if kind=='P' else lim)}")
                A(f"buffer_load_dwordx4 v{vo}, s[{sr}:{sr+3}], s{sOFF} offen offset:{jj*1024} nt lds")
                if sk: A(f"{sk}:")
            return f
        return [mk(j) for j in range(8)]
    def weave(st, sl):
        for u in range(8):
            st[u]()
            if u<len(sl): sl[u]()
    for j,f in enumerate(steps(0,'K',None)[:cfg.first]): f()
    srd(SRDV,sV,1<<28)
    A(f"s_load_dword s{sT8}, s[{sWS}:{sWS+1}], 0")
    A(f"v_lshlrev_b32 v{vVO}, 4, v2\nv_add_u32 v{vVO+1}, 0x1000, v{vVO}")
    A("v_lshrrev_b32 v3, 4, v2\nv_and_b32 v4, 15, v2")
    A("v_and_b32 v5, 3, v4\nv_lshlrev_b32 v5, 2, v5\nv_lshrrev_b32 v6, 2, v4\nv_add_u32 v5, v5, v6")
    A(f"v_xor_b32 v6, v3, v4\nv_lshlrev_b32 v6, 4, v6\nv_lshl_add_u32 v6, v5, 9, v6\nv_add_u32 v6, s{sRING}, v6")
    for q in range(4): A(f"v_xor_b32 v{vKA+q}, {q*64}, v6")
    A(f"v_lshlrev_b32 v6, 4, v4\nv_lshl_add_u32 v6, v3, 9, v6\nv_add_u32 v{vVA}, s{sRING}, v6")
    A(f"s_lshl_b32 s{sCNT}, s{sWAVE}, 11\ns_add_u32 s{sCNT}, s{sCNT}, {SC}")
    A(f"v_lshrrev_b32 v5, 3, v4\nv_lshlrev_b32 v6, 5, v5\nv_lshl_add_u32 v6, v3, 3, v6\nv_add_u32 v{vSA}, s{sCNT}, v6")
    A(f"v_lshlrev_b32 v7, 9, v5\nv_lshl_add_u32 v7, v3, 4, v7\nv_add_u32 v7, {QB}, v7")
    masks(vMASK,4,5,6)
    A(f"v_mov_b32 v{vMAX}, 0xff800000")
    A(f"v_subrev_u32 v{vT}, s{sRING}, v{vVA}\nv_add_u32 v1, 0x1000, v{vT}")
    A(f"s_mov_b32 s{sV0}, s{sOFF}")
    for f in steps(0,'K')[cfg.first:]: f()
    for slot in (1,2):
        for f in steps(slot,'K'): f()
    for i in range(4):
        for u in range(8):
            o=(u>>1)*2048+(u&1)*256
            vo = vT if o<4096 else 1
            A(gate(u,INF))
            A(f"buffer_load_dwordx4 v[{VP+32*i+4*u}:{VP+32*i+4*u+3}], v{vo}, s[{SRDV}:{SRDV+3}], s{sV0} offen offset:{o&4095} nt")
        A(f"s_add_u32 s{sV0}, s{sV0}, 32768\ns_and_b32 s{sV0}, s{sV0}, 0xfffff\ns_or_b32 s{sV0}, s{sV0}, s{sREG}")
    A(f"s_waitcnt lgkmcnt(0)\ns_add_u32 s{sT8}, s{sT8}, 1\ns_and_b32 s{sT8}, s{sT8}, 0xff\ns_mov_b32 s{sFF}, 0xff\nv_mov_b32 v{vTG}, s{sT8}")
    srd(SRDW,sWS,1<<30)
    A("s_barrier")
    for jj in range(8): A(f"ds_read_b128 v[{QF+4*jj}:{QF+4*jj+3}], v7 offset:{jj*64}")

    def ktile(slot, kind):
        def s0():
            A("s_waitcnt vmcnt(16)")
            for jj in range(8):
                A(f"ds_read_b128 v[{TF+4*jj}:{TF+4*jj+3}], v{vKA+(jj&3)} offset:{slot*8192+(jj>>2)*256}")
        def mf(r):
            def f():
                if r[0]==0: A("s_waitcnt lgkmcnt(0)")
                for jj in r:
                    c = "0" if jj==0 else f"v[{D}:{D+3}]"
                    A(f"v_mfma_f32_16x16x32_bf16 v[{D}:{D+3}], v[{TF+4*jj}:{TF+4*jj+3}], v[{QF+4*jj}:{QF+4*jj+3}], {c}")
            return f
        def s3():
            nop(5)
            A(f"v_cvt_pk_bf16_f32 v{S2}, v{D}, v{D+1}\nv_cvt_pk_bf16_f32 v{S2+1}, v{D+2}, v{D+3}")
            A(f"v_max3_f32 v{vMAX}, v{vMAX}, v{D}, v{D+1}\nv_max3_f32 v{vMAX}, v{vMAX}, v{D+2}, v{D+3}")
            A(f"ds_write_b64 v{vSA}, v[{S2}:{S2+1}] offset:{slot*64}")
        weave(steps((slot+3)&3,kind),[s0,mf([0,1,2,3]),mf([4,5,6,7]),s3])
    def pcalc():
        A(f"v_lshlrev_b32 v{P}, 16, v{S2}\nv_and_b32 v{P+1}, 0xffff0000, v{S2}\nv_lshlrev_b32 v{P+2}, 16, v{S2+1}\nv_and_b32 v{P+3}, 0xffff0000, v{S2+1}")
        for t in range(4): A(f"v_fma_f32 v{P+t}, v{P+t}, s{sC}, v{vNM}")
        for t in range(4): A(f"v_exp_f32 v{P+t}, v{P+t}")
        nop(1)
        for t in range(4): A(f"v_cvt_pk_bf16_f32 v{P+t}, v{P+t}, v{P+t}")
    def pmask():
        for t in range(4):
            for r in range(4): A(f"v_and_b32 v{AR+4*t+r}, v{P+t}, v{vMASK+r}")
    def pv(src, us):
        for u in us:
            t=u>>1; h=u&1
            A(f"v_mfma_f32_16x16x32_bf16 v[{ACC+4*h}:{ACC+4*h+3}], v[{AR+4*t}:{AR+4*t+3}], v[{src+4*u}:{src+4*u+3}], v[{ACC+4*h}:{ACC+4*h+3}]")
    def vtile(slot, kind, waitn, scoff=None, regs=None, pooled=False, doclaim=False):
        def s0():
            if pooled: A(f"v_add_u32 v{vT}, s{sSCO+slot}, v{vSA}\nds_read_b64 v[{S2}:{S2+1}], v{vT}")
            else: A(f"ds_read_b64 v[{S2}:{S2+1}], v{vSA} offset:{slot*64 if scoff is None else scoff}")
            A("s_waitcnt lgkmcnt(0)"); pcalc()
        def s1():
            if waitn=='y':
                go=lab("wy")
                A("s_waitcnt vmcnt(16)")
                for y in (2,1): A(f"s_cmp_ge_i32 s{sY}, {y}\ns_cbranch_scc1 {go}\ns_waitcnt vmcnt({8*(y-1)})")
                A(f"{go}:")
            else: A(f"s_waitcnt vmcnt({waitn})")
            for u in range(8):
                A(f"ds_read_b128 v[{TF+4*u}:{TF+4*u+3}], v{vVA} offset:{slot*8192+(u>>1)*2048+(u&1)*256}")
            pmask()
            A("s_waitcnt lgkmcnt(0)")
        sl=[s0,s1,lambda:pv(TF,[0,1,2,3]),lambda:pv(TF,[4,5,6,7])]
        if regs is not None:
            def r0():
                A(f"ds_read_b64 v[{S2}:{S2+1}], v{vSA} offset:{slot*64}\ns_waitcnt lgkmcnt(0)"); pcalc()
            sl+=[r0,pmask,lambda:pv(regs,[0,1,2,3]),lambda:pv(regs,[4,5,6,7])]
        weave(steps((slot+3)&3,kind,doclaim=doclaim),sl)
        if kind=='P':
            A(f"s_cmp_eq_u32 s{sSCO+((slot+3)&3)}, -1\ns_subb_u32 s{sY}, s{sY}, 0")

    lk=lab("kloop")
    A(f"s_mov_b32 s{sCNT}, 7")
    A(f"{lk}:")
    for s in range(4): ktile(s,'K')
    A(f"v_add_u32 v{vSA}, 256, v{vSA}")
    A(f"s_sub_u32 s{sCNT}, s{sCNT}, 1\ns_cmp_lg_u32 s{sCNT}, 0\ns_cbranch_scc1 {lk}")
    ktile(0,'K')
    A(f"s_add_u32 s{sNEXT}, s{sNEXT}, {4*32768}\ns_and_b32 s{sNEXT}, s{sNEXT}, 0xfffff")
    for s in range(1,4): ktile(s,'V')
    A(f"v_subrev_u32 v{vSA}, {7*256}, v{vSA}")
    for r in range(8): A(f"v_mov_b32 v{ACC+r}, 0")
    xrowred("v_max_f32", vMAX, vT)
    rbf(vMAX,vMAX)
    A(f"v_bfe_u32 v3, v2, 3, 1\nv_lshlrev_b32 v3, 4, v3\nv_add_u32 v3, {MX}, v3")
    A(f"s_lshl_b32 s{sCNT}, s{sWAVE}, 2\nv_add_u32 v4, s{sCNT}, v3")
    A(f"ds_write_b32 v4, v{vMAX}\ns_waitcnt lgkmcnt(0)\ns_barrier")
    A(f"ds_read_b128 v[{D}:{D+3}], v3\ns_mov_b32 s{sC}, {f2u(CEXP):#x}\ns_waitcnt lgkmcnt(0)")
    A(f"v_max_f32 v{vMAX}, v{D}, v{D+1}\nv_max3_f32 v{vMAX}, v{vMAX}, v{D+2}, v{D+3}")
    A(f"v_mul_f32 v{vNM}, s{sC}, v{vMAX}\nv_sub_f32 v{vNM}, 0, v{vNM}")
    A("v_lshrrev_b32 v6, 5, v2\nv_lshlrev_b32 v6, 10, v6\nv_and_b32 v5, 15, v2\nv_lshl_add_u32 v6, v5, 5, v6\nv_bfe_u32 v5, v2, 4, 1\nv_lshl_add_u32 v6, v5, 4, v6")
    A(f"v_add_u32 v6, s{sRING}, v6")
    A(f"s_lshl_b32 s{sCNT}, s{sWAVE}, 9\nv_lshlrev_b32 v4, 4, v2\nv_add_u32 v4, s{sCNT}, v4\nv_add_u32 v5, 0x10000, v4")
    A(f"s_lshr_b32 s{sCNT}, s{sWAVE}, 1\ns_lshl_b32 s{sCNT}, s{sCNT}, 2\ns_add_u32 s{sCNT}, s{sCNT}, {FB}\nv_mov_b32 v3, s{sCNT}")
    lv=lab("vloop")
    for s in range(4): vtile(s,'V',16,scoff=256+s*64,regs=VP+32*s)
    A(f"v_add_u32 v{vSA}, 512, v{vSA}")
    assert cfg.rot==0 or not cfg.pool
    A(f"s_mov_b32 s{sCNT}, {4 if cfg.pool else 5}")
    A(f"{lv}:")
    for s in range(4): vtile(s,'V',16)
    A(f"v_add_u32 v{vSA}, 256, v{vSA}")
    A(f"s_sub_u32 s{sCNT}, s{sCNT}, 1\ns_cmp_lg_u32 s{sCNT}, 0\ns_cbranch_scc1 {lv}")
    if cfg.pool:
        lw=lab("rw"); lwd=lab("rwd")
        A(f"v_mov_b32 v{vT}, {RDY}\ns_mov_b32 s{sCNT}, 0")
        A(f"{lw}:\nds_read_b32 v{D}, v{vT}\ns_add_u32 s{sCNT}, s{sCNT}, 1")
        A(f"s_lshr_b32 s4, s2, 3\ns_lshl_b32 s5, s4, 2\ns_add_u32 s5, s5, s{sWAVE}\ns_mul_i32 s5, s5, {CSTR}\ns_add_u32 s5, s5, {CNT}\ns_add_u32 s{sPC}, s{sWS}, s5\ns_addc_u32 s{sPC+1}, s{sWS+1}, 0")
        A(f"s_lshl_b32 s{sV0}, s4, 23\ns_lshl_b32 s5, s{sWAVE}, 13\ns_add_u32 s{sV0}, s{sV0}, s5\ns_add_u32 s{sV0}, s{sV0}, {28*32768}\ns_mov_b32 s{sY}, 2")
        A(f"s_waitcnt lgkmcnt(0)\nv_readfirstlane_b32 s4, v{D}\ns_cmp_lg_u32 s4, 0\ns_cbranch_scc1 {lwd}")
        A(f"s_sleep 4\ns_cmp_lt_u32 s{sCNT}, {SPIN_LIMIT*16}\ns_cbranch_scc1 {lw}\n{lwd}:")
        vtile(0,'V',16,doclaim=True)
        for s in range(1,4): vtile(s,'P','y')
        A(f"v_lshrrev_b32 v{vT}, 5, v2\nv_lshlrev_b32 v{vT}, 2, v{vT}\nv_add_u32 v{vT}, {FB+8}, v{vT}\nds_read_b32 v{D}, v{vT}")
        A(f"v_bfe_u32 v{vT}, v2, 3, 1\nv_lshlrev_b32 v{vSA}, 5, v{vT}\nv_lshlrev_b32 v{vT}, 2, v{vT}\nv_add_u32 v{vT}, {FB+16}, v{vT}\nds_read_b32 v{vNM}, v{vT}")
        A(f"v_lshrrev_b32 v{vT}, 4, v2\nv_lshl_add_u32 v{vSA}, v{vT}, 3, v{vSA}\ns_lshl_b32 s4, s{sWAVE}, 6\ns_add_u32 s4, s4, {WBUF}\nv_add_u32 v{vSA}, s4, v{vSA}")
        A("s_waitcnt lgkmcnt(0)")
        for r in range(8): A(f"v_mul_f32 v{ACC+r}, v{ACC+r}, v{D}")
        lp=lab("ploop"); le=lab("pend")
        A(f"{lp}:")
        for s in range(4):
            A(f"s_cmp_eq_u32 s{sSCO+s}, -1\ns_cbranch_scc1 {le}")
            vtile(s,'P','y',pooled=True)
        A(f"s_branch {lp}\n{le}:")
    else:
        vtile(0,'V',16); vtile(1,None,16); vtile(2,None,8); vtile(3,None,0)
    A(f"s_lshl_b32 s{sOFF}, s2, 11\ns_add_u32 s{sOFF}, s{sOFF}, {OBOX}")
    nop(7)
    A(f"ds_write_b128 v6, v[{ACC}:{ACC+3}]\nds_write_b128 v6, v[{ACC+4}:{ACC+7}] offset:512")
    A("s_waitcnt lgkmcnt(0)\ns_barrier")
    A("s_mov_b32 exec_hi, 0")
    A(f"ds_read_b128 v[{TF}:{TF+3}], v4\nds_read_b128 v[{TF+4}:{TF+7}], v4 offset:32768\nds_read_b128 v[{TF+8}:{TF+11}], v5\nds_read_b128 v[{TF+12}:{TF+15}], v5 offset:32768\nds_read_b32 v{TF+16}, v3")
    A("s_waitcnt lgkmcnt(3)")
    for r in range(4): A(f"v_add_f32 v{TF+r}, v{TF+r}, v{TF+4+r}")
    A("s_waitcnt lgkmcnt(1)")
    for r in range(4): A(f"v_add_f32 v{TF+8+r}, v{TF+8+r}, v{TF+12+r}")
    for r in range(4): A(f"v_add_f32 v{TF+r}, v{TF+r}, v{TF+8+r}")
    A("s_waitcnt lgkmcnt(0)")
    for r in range(4): A(f"v_mul_f32 v{TF+r}, v{TF+r}, v{TF+16}")
    for r in range(4): A(f"v_bfi_b32 v{TF+r}, s{sFF}, v{vTG}, v{TF+r}")
    if cfg.tdiag: A("s_memrealtime s[82:83]")
    if not cfg.noopub: A(f"buffer_store_dwordx4 v[{TF}:{TF+3}], v4, s[{SRDW}:{SRDW+3}], s{sOFF} offen {cfg.opol}")
    if cfg.tdiag:
        A(f"s_waitcnt vmcnt(0)\ns_memrealtime s[84:85]\ns_waitcnt lgkmcnt(0)\ns_cmp_lg_u32 s{sWAVE}, 0\ns_cbranch_scc1 {Ldone}")
        A(f"s_lshl_b32 s4, s2, 6\ns_add_u32 s4, s4, {STAMP+0x100000:#x}\ns_mov_b64 exec, 1\nv_mov_b32 v1, 0\nv_mov_b32 v{TF}, s82\nv_mov_b32 v{TF+1}, s83\nv_mov_b32 v{TF+2}, s84\nv_mov_b32 v{TF+3}, s85")
        A(f"buffer_store_dwordx4 v[{TF}:{TF+3}], v1, s[{SRDW}:{SRDW+3}], s4 offen")
    A("s_endpgm")

    vL16=3; vWO_=4; vTR=5; vXA=6
    X=8; F=12; T=20
    XF=32; WF=88
    WT=144
    PA=208
    AM=216
    vT8=220; vFX=221; vG1=222; vG2=223; vPS=224; vTO=225; vFM=226; vH=227
    AT=88
    sE,sTAG,sCQ,sO2,sSPIN,sCM,sFF,sA,sB=60,61,62,63,64,65,78,66,67
    A(f"{Laux}:")
    lend=lab("end")
    if cfg.auxnull:
        A("s_waitcnt lgkmcnt(0)"); srd(SRDW,sWS,1<<30)
        A("s_barrier"); stamp(3); A("s_barrier"); stamp(4); A("s_barrier"); stamp(5); A(f"s_branch {lend}")
    A("s_setprio 3")
    A(f"v_lshrrev_b32 v7, 1, v2\nv_and_b32 v{T}, 1, v2\nv_lshlrev_b32 v{T}, 4, v{T}")
    A(f"v_lshl_add_u32 v{vWO_}, v7, 13, v{T}\nv_lshlrev_b32 v{vL16}, 4, v2")
    if cfg.mix:
        A(f"s_and_b32 s4, s2, 7\ns_lshr_b32 s5, s2, 5\ns_add_u32 s5, s5, s4\ns_and_b32 s5, s5, 7\ns_lshl_b32 s5, s5, 2\ns_lshl_b32 s{sCQ}, s4, 5\ns_add_u32 s{sCQ}, s{sCQ}, s5\ns_bfe_u32 s5, s2, 0x20003\ns_add_u32 s{sCQ}, s{sCQ}, s5\ns_lshl_b32 s{sO2}, s{sCQ}, 5")
    else:
        A(f"s_and_b32 s{sCQ}, s2, 7\ns_lshl_b32 s{sCQ}, s{sCQ}, 5\ns_lshr_b32 s{sO2}, s2, 3\ns_add_u32 s{sCQ}, s{sCQ}, s{sO2}\ns_lshl_b32 s{sO2}, s{sCQ}, 5")
    A("s_waitcnt lgkmcnt(0)")
    stamp('karg')
    A(f"s_load_dword s{sE}, s[{sWS}:{sWS+1}], 0")
    srd(SRDA,sX,896)
    A(f"buffer_load_dwordx4 v[{X}:{X+3}], v{vL16}, s[{SRDA}:{SRDA+3}], 0 offen")
    srd(SRDK,sWQ,448*4096*2)
    def wdma(sr, step, gate=None):
        for i in range(14):
            if gate is not None: A(f"s_waitcnt vmcnt({gate})")
            A(f"s_mov_b32 m0, {WBUF+i*1024}")
            if i: A(f"s_add_u32 s{sO2}, s{sO2}, {step}")
            else: nop(1)
            A(f"buffer_load_dwordx4 v{vWO_}, s[{sr}:{sr+3}], s{sO2} offen {cfg.cnt} lds")
    if not cfg.nowq: wdma(SRDK,32*8192,cfg.qgate)
    srd(SRDW,sWS,1<<30)
    A(f"v_lshrrev_b32 v{T}, 4, v2\nv_bfe_u32 v{T+1}, v2, 2, 2\nv_lshl_add_u32 v{T+1}, v{T}, 3, v{T+1}\nv_and_b32 v{T+2}, 3, v2\nv_lshlrev_b32 v{T+2}, 3, v{T+2}\nv_add_u32 v{T+2}, {WBUF}, v{T+2}")
    A(f"v_lshl_add_u32 v{vTR}, v{T+1}, 5, v{T+2}\nv_lshl_add_u32 v{vG1}, v{T+1}, 6, v{T+2}")
    A(f"v_lshlrev_b32 v{T}, 4, v{T}\nv_add_u32 v{vXA}, {XN}, v{T}")
    A("v_cmp_gt_u32 s[74:75], 56, v2")
    stamp('issued')
    A("s_waitcnt vmcnt(14)")
    stamp('xland')
    for r in range(4):
        A(f"v_lshlrev_b32 v{F+2*r}, 16, v{X+r}\nv_and_b32 v{F+2*r+1}, 0xffff0000, v{X+r}")
    A(f"v_add_f32 v{T}, v{F}, v{F+1}\nv_add_f32 v{T+1}, v{F+2}, v{F+3}\nv_add_f32 v{T+2}, v{F+4}, v{F+5}\nv_add_f32 v{T+3}, v{F+6}, v{F+7}")
    A(f"v_add_f32 v{T}, v{T}, v{T+1}\nv_add_f32 v{T+2}, v{T+2}, v{T+3}\nv_add_f32 v{T}, v{T}, v{T+2}")
    rowred("v_add_f32",T,[1,2,4,8]); xrowred("v_add_f32",T,T+1)
    A(f"v_mul_f32 v{T}, {f2u(1.0/448):#x}, v{T}")
    A(f"v_sub_f32 v{T+2}, v{F}, v{T}\nv_mul_f32 v{T+1}, v{T+2}, v{T+2}")
    for r in range(1,8):
        A(f"v_sub_f32 v{T+2}, v{F+r}, v{T}\nv_fmac_f32 v{T+1}, v{T+2}, v{T+2}")
    A(f"v_cndmask_b32 v{T+1}, 0, v{T+1}, s[74:75]")
    rowred("v_add_f32",T+1,[1,2,4,8]); xrowred("v_add_f32",T+1,T+2)
    A(f"v_mul_f32 v{T+1}, {f2u(1.0/448):#x}, v{T+1}")
    rbf(T,T); rbf(T+1,T+1)
    A(f"v_add_f32 v{T+1}, {f2u(1e-5):#x}, v{T+1}"); rbf(T+1,T+1)
    A(f"v_sqrt_f32 v{T+1}, v{T+1}"); nop(1); rbf(T+1,T+1)
    A(f"v_rcp_f32 v{T+2}, v{T+1}")
    for r in range(8): A(f"v_sub_f32 v{F+r}, v{F+r}, v{T}")
    for r in range(4): A(f"v_cvt_pk_bf16_f32 v{X+r}, v{F+2*r}, v{F+2*r+1}")
    for r in range(4): A(f"v_lshlrev_b32 v{F+2*r}, 16, v{X+r}\nv_and_b32 v{F+2*r+1}, 0xffff0000, v{X+r}")
    for r in range(8):
        A(f"v_mul_f32 v{T+3}, v{F+r}, v{T+2}\nv_fma_f32 v{T+4}, -v{T+3}, v{T+1}, v{F+r}\nv_fma_f32 v{F+r}, v{T+4}, v{T+2}, v{T+3}")
    for r in range(4): A(f"v_cvt_pk_bf16_f32 v{X+r}, v{F+2*r}, v{F+2*r+1}")
    A(f"v_add_u32 v{T}, {XN}, v{vL16}\nds_write_b128 v{T}, v[{X}:{X+3}]\ns_waitcnt lgkmcnt(0)")
    for jj in range(14): A(f"ds_read_b128 v[{XF+4*jj}:{XF+4*jj+3}], v{vXA} offset:{jj*64}")
    stamp('lndone')
    A("s_waitcnt vmcnt(0)")
    stamp('wqland')
    for jj in range(14):
        A(f"ds_read_b64_tr_b16 v[{WF+4*jj}:{WF+4*jj+1}], v{vTR} offset:{jj*1024}\nds_read_b64_tr_b16 v[{WF+4*jj+2}:{WF+4*jj+3}], v{vTR} offset:{jj*1024+128}")
    A(f"s_waitcnt lgkmcnt(0)")
    for jj in range(14):
        c="0" if jj==0 else f"v[{T}:{T+3}]"
        A(f"v_mfma_f32_16x16x32_bf16 v[{T}:{T+3}], v[{XF+4*jj}:{XF+4*jj+3}], v[{WF+4*jj}:{WF+4*jj+3}], {c}")
    A(f"s_mul_i32 s{sTAG}, s{sE}, 0x9E3779B1\ns_add_u32 s{sTAG}, s{sTAG}, 0x7F4A7C15")
    A(f"s_add_u32 s{sFF}, s{sE}, 1\ns_and_b32 s{sFF}, s{sFF}, 0xff\nv_mov_b32 v{vT8}, s{sFF}\ns_mov_b32 s{sFF}, 0xff")
    A(f"s_lshl_b32 s{sO2}, s{sCQ}, 6\ns_add_u32 s{sO2}, s{sO2}, {QBOX}\nv_lshlrev_b32 v{T+6}, 3, v7\nv_mov_b32 v{T+5}, s{sTAG}")
    A(f"v_mov_b32_dpp v{T+1}, v{T} quad_perm:[1,1,3,3] {DPP}")
    A(f"v_cvt_pk_bf16_f32 v{T+4}, v{T}, v{T+1}")
    A("s_mov_b64 exec, 0x5555")
    if not cfg.noqx: A(f"buffer_store_dwordx2 v[{T+4}:{T+5}], v{T+6}, s[{SRDW}:{SRDW+3}], s{sO2} offen sc1")
    A("s_mov_b64 exec, -1")
    stamp(2)
    TT1=tt(lambda a,b,t:(a^t)|(b^t)); TT2=tt(lambda a,b,c:(a|b)&c)
    def poll(loads, soff, mode, sleep, fast=0, fthr=None):
        PM=4
        lp=lab("poll"); ld=lab("polld")
        for i,(d,vo,imm,lm) in enumerate(loads):
            if lm is None: A(f"s_mov_b64 s[{PM+2*i}:{PM+2*i+1}], -1")
            else: A(f"s_mov_b32 s{PM+2*i}, {lm&0xffffffff:#x}\ns_mov_b32 s{PM+2*i+1}, {lm>>32:#x}")
        A(f"s_mov_b32 s{sSPIN}, 0\ns_mov_b32 s14, 999")
        A(f"{lp}:")
        for i,(d,vo,imm,lm) in enumerate(loads):
            sk=lab("sk")
            A(f"s_mov_b64 exec, s[{PM+2*i}:{PM+2*i+1}]\ns_cbranch_execz {sk}")
            A(f"buffer_load_dwordx4 v[{d}:{d+3}], v{vo}, s[{SRDW}:{SRDW+3}], s{soff} offen offset:{imm} {cfg.lpol}")
            A(f"{sk}:")
        A(f"s_mov_b64 exec, -1\ns_add_u32 s{sSPIN}, s{sSPIN}, 1")
        if fast and fthr is not None:
            sk=lab("fs")
            A(f"s_cmp_le_u32 s14, {fthr}\ns_cbranch_scc1 {sk}\ns_waitcnt vmcnt(0)\n{sk}:")
        A(f"s_waitcnt vmcnt({fast})")
        for i,(d,vo,imm,lm) in enumerate(loads):
            if mode=='q':
                A(f"v_xor_b32 v{T+i}, s{sTAG}, v{d+1}\nv_xor_b32 v{T+4+i}, s{sTAG}, v{d+3}\nv_or_b32 v{T+i}, v{T+i}, v{T+4+i}")
            else:
                A(f"v_bitop3_b32 v{T+i}, v{d}, v{d+1}, v{vT8} bitop3:{TT1:#x}\nv_bitop3_b32 v{T+4+i}, v{d+2}, v{d+3}, v{vT8} bitop3:{TT1:#x}")
                A(f"v_bitop3_b32 v{T+i}, v{T+i}, v{T+4+i}, s{sFF} bitop3:{TT2:#x}")
        for i,(d,vo,imm,lm) in enumerate(loads):
            A(f"v_cmp_ne_u32 vcc, 0, v{T+i}\ns_and_b64 s[{PM+2*i}:{PM+2*i+1}], s[{PM+2*i}:{PM+2*i+1}], vcc")
        if len(loads)>1:
            A(f"s_or_b64 s[12:13], s[{PM}:{PM+1}], s[{PM+2}:{PM+3}]")
            for i in range(2,len(loads)): A(f"s_or_b64 s[12:13], s[12:13], s[{PM+2*i}:{PM+2*i+1}]")
        A(f"s_cbranch_scc0 {ld}")
        if fast and fthr is not None:
            A(f"s_bcnt1_i32_b64 s14, s[{PM}:{PM+1}]")
            for i in range(1,len(loads)): A(f"s_bcnt1_i32_b64 s15, s[{PM+2*i}:{PM+2*i+1}]\ns_add_u32 s14, s14, s15")
            if sleep:
                sk=lab("ns")
                A(f"s_cmp_le_u32 s14, {fthr}\ns_cbranch_scc1 {sk}\ns_sleep {sleep}\n{sk}:")
        elif sleep: A(f"s_sleep {sleep}")
        A(f"s_cmp_lt_u32 s{sSPIN}, {SPIN_LIMIT*4}\ns_cbranch_scc1 {lp}")
        A(f"{ld}:")
    A(f"s_lshr_b32 s{sO2}, s2, 5\ns_lshl_b32 s{sO2}, s{sO2}, 11\ns_add_u32 s{sO2}, s{sO2}, {QBOX}")
    def backoff(n):
        while n>0:
            A(f"s_sleep {min(n,127)}"); n-=127
    backoff(cfg.qdelay)
    if not cfg.noqx: poll([(F,vL16,0,None),(F+4,vL16,1024,None)], sO2, 'q', cfg.qsleep)
    stamp('qrecv')
    A(f"v_mov_b32 v{T}, {RDY}\nv_mov_b32 v{T+1}, 0\nds_write_b32 v{T}, v{T+1}")
    A(f"v_lshlrev_b32 v{T}, 3, v2\nv_add_u32 v{T}, {QB}, v{T}")
    A(f"ds_write2_b32 v{T}, v{F}, v{F+2} offset0:0 offset1:1\nds_write2_b32 v{T}, v{F+4}, v{F+6} offset0:128 offset1:129")
    A("s_waitcnt lgkmcnt(0)\ns_barrier")
    stamp(3)
    if cfg.prio2!=3: A(f"s_setprio {cfg.prio2}")
    if cfg.pool:
        lz=lab("nz")
        A(f"s_and_b32 s4, s2, 7\ns_cbranch_scc1 {lz}")
        A(f"s_lshr_b32 s4, s2, 3\ns_mul_i32 s4, s4, {4*CSTR}\ns_add_u32 s4, s4, {CNT}\nv_mul_u32_u24 v{T}, {CSTR}, v2\nv_mov_b32 v{T+1}, 0\ns_mov_b64 exec, 15")
        A(f"buffer_store_dword v{T+1}, v{T}, s[{SRDW}:{SRDW+3}], s4 offen sc1\ns_mov_b64 exec, -1\n{lz}:")
    if cfg.probe is not None and cfg.probe[0]=='g':
        A(f"s_lshl_b32 s4, s2, 2\ns_add_u32 s4, s4, 0x300000\nv_mov_b32 v{T}, 0\nv_mov_b32 v{T+1}, s80\ns_mov_b64 exec, 1\nbuffer_store_dword v{T+1}, v{T}, s[{SRDW}:{SRDW+3}], s4 offen sc1\ns_mov_b64 exec, -1")
    A(f"s_bfe_u32 s{sB}, s2, 0x10003\ns_lshr_b32 s{sA}, s2, 4\ns_lshl_b32 s{sA}, s{sA}, 3\ns_and_b32 s{sO2}, s2, 7\ns_add_u32 s{sA}, s{sA}, s{sO2}")
    A(f"v_and_b32 v{T}, 15, v2"); masks(AM,T,T+1,T+2)
    A(f"v_lshrrev_b32 v{T+1}, 4, v2\nv_mul_u32_u24 v{vTO}, 896, v{T+1}\nv_lshl_add_u32 v{vTO}, v{T}, 4, v{vTO}")
    for r in range(8): A(f"v_mov_b32 v{PA+r}, 0")
    def tile_load(sr):
        for t in range(8):
            if cfg.agate is not None: A(f"s_waitcnt vmcnt({cfg.agate})")
            A(f"buffer_load_dwordx4 v[{WT+8*t}:{WT+8*t+3}], v{vTO}, s[{sr}:{sr+3}], s{sO2} offen {cfg.wnt}")
            A("s_mov_b32 exec_lo, 0x0fff0fff\ns_mov_b32 exec_hi, 0x0fff0fff")
            A(f"buffer_load_dwordx4 v[{WT+8*t+4}:{WT+8*t+7}], v{vTO}, s[{sr}:{sr+3}], s{sO2} offen offset:256 {cfg.wnt}")
            A(f"s_mov_b64 exec, -1\ns_add_u32 s{sO2}, s{sO2}, 3584")
    def project(src):
        for t in range(8):
            v,ln=src(t)
            for r in range(4): A(f"v_and_b32_dpp v{AT+4*t+r}, v{v}, v{AM+r} row_newbcast:{ln} {DPP}")
            if t>=1:
                tp=t-1
                for cb in range(2):
                    A(f"v_mfma_f32_16x16x32_bf16 v[{PA+4*cb}:{PA+4*cb+3}], v[{AT+4*tp}:{AT+4*tp+3}], v[{WT+8*tp+4*cb}:{WT+8*tp+4*cb+3}], v[{PA+4*cb}:{PA+4*cb+3}]")
        for cb in range(2):
            A(f"v_mfma_f32_16x16x32_bf16 v[{PA+4*cb}:{PA+4*cb+3}], v[{AT+28}:{AT+31}], v[{WT+56+4*cb}:{WT+56+4*cb+3}], v[{PA+4*cb}:{PA+4*cb+3}]")
    A(f"v_lshrrev_b32 v{T}, 5, v2\nv_lshlrev_b32 v{T}, 9, v{T}\nv_and_b32 v{T+1}, 15, v2\nv_lshl_add_u32 v{T}, v{T+1}, 5, v{T}\nv_bfe_u32 v{T+1}, v2, 4, 1\nv_lshl_add_u32 v{vPS}, v{T+1}, 4, v{T}")
    def rec_store(soff):
        nop(8)
        for r in range(4): A(f"v_permlane32_swap_b32 v{PA+r}, v{PA+4+r}")
        for r in range(4): A(f"v_bfi_b32 v{PA+r}, s{sFF}, v{vT8}, v{PA+r}")
        A("s_mov_b32 exec_hi, 0x0fff0fff")
        A(f"buffer_store_dwordx4 v[{PA}:{PA+3}], v{vPS}, s[{SRDW}:{SRDW+3}], s{soff} offen {cfg.opol}")
        A("s_mov_b32 exec_hi, -1")
    lnm=lab("nomlp")
    if cfg.mix:
        A(f"s_and_b32 s4, s2, 7\ns_lshl_b32 s5, s4, 1\ns_lshr_b32 s{sO2}, s2, 4\ns_sub_u32 s{sO2}, s{sO2}, s5\ns_and_b32 s{sO2}, s{sO2}, 15")
        A(f"s_cmp_ge_u32 s{sO2}, {0 if cfg.nomlp else 7}\ns_cbranch_scc1 {lnm}")
        A(f"s_mul_i32 s{sCM}, s4, 7\ns_add_u32 s{sCM}, s{sCM}, s{sO2}")
    else:
        A(f"s_cmp_ge_u32 s2, {0 if cfg.nomlp else 112}\ns_cbranch_scc1 {lnm}")
        A(f"s_and_b32 s{sCM}, s2, 7\ns_mul_i32 s{sCM}, s{sCM}, 7\ns_lshr_b32 s{sO2}, s2, 4\ns_add_u32 s{sCM}, s{sCM}, s{sO2}")
    A(f"v_lshrrev_b32 v{T}, 2, v2\nv_mul_u32_u24 v{vWO_}, 3584, v{T}\nv_and_b32 v{T}, 3, v2\nv_lshl_add_u32 v{vWO_}, v{T}, 4, v{vWO_}")
    srd(SRDK,sW1,448*1792*2)
    srd(SRDA,sB1,3584)
    A(f"v_and_b32 v{T}, 15, v2\nv_lshlrev_b32 v{T}, 1, v{T}\ns_lshl_b32 s{sO2}, s{sCM}, 6")
    A(f"buffer_load_ushort v{F}, v{T}, s[{SRDA}:{SRDA+3}], s{sO2} offen\ns_nop 0\nbuffer_load_ushort v{F+1}, v{T}, s[{SRDA}:{SRDA+3}], s{sO2} offen offset:32")
    for ps in range(2):
        wdma(SRDK,16*3584,cfg.agate)
        A(f"s_add_u32 s{sO2}, s{sO2}, {16*3584}\ns_waitcnt vmcnt(0)")
        for kk in range(7):
            for u in range(2):
                r=WF+8*kk+4*u
                A(f"ds_read_b64_tr_b16 v[{r}:{r+1}], v{vG1} offset:{kk*2048+u*32}\nds_read_b64_tr_b16 v[{r+2}:{r+3}], v{vG1} offset:{kk*2048+u*32+256}")
        A("s_waitcnt lgkmcnt(0)")
        for kk in range(7):
            for u in range(2):
                r=WF+8*kk+4*u; x=XF+4*(7*ps+kk)
                c="0" if (ps==0 and kk==0) else f"v[{T+4*u}:{T+4*u+3}]"
                A(f"v_mfma_f32_16x16x32_bf16 v[{T+4*u}:{T+4*u+3}], v[{x}:{x+3}], v[{r}:{r+3}], {c}")
    srd(SRDK,sW2,1792*448*2)
    A(f"s_mul_i32 s{sO2}, s{sCM}, {32*896}\ns_mul_i32 s{sSPIN}, s{sB}, 448\ns_add_u32 s{sO2}, s{sO2}, s{sSPIN}")
    tile_load(SRDK)
    k0=math.sqrt(2/math.pi)
    for u in range(2):
        h=T+4*u; t1=h+1; t2=h+2
        rbf(h,h)
        A(f"v_lshlrev_b32 v{F+u}, 16, v{F+u}\nv_add_f32 v{h}, v{h}, v{F+u}"); rbf(h,h)
        A(f"v_mul_f32 v{t1}, v{h}, v{h}\nv_mul_f32 v{t1}, v{t1}, v{h}\nv_mov_b32 v{t2}, {f2u(0.044715):#x}\nv_fma_f32 v{t1}, v{t1}, v{t2}, v{h}")
        A(f"v_mul_f32 v{t1}, {f2u(-2*k0*math.log2(math.e)):#x}, v{t1}\nv_exp_f32 v{t1}, v{t1}"); nop(1)
        A(f"v_add_f32 v{t1}, 1.0, v{t1}\nv_rcp_f32 v{t1}, v{t1}"); nop(1)
        A(f"v_mul_f32 v{h}, v{h}, v{t1}\nv_cvt_pk_bf16_f32 v{h}, v{h}, v{h}\nv_mov_b32 v{t1}, v{h}"); nop(2)
        for g in range(1,4): A(f"v_mov_b32_dpp v{t1}, v{h} row_ror:{16-g} row_mask:{1<<g:#x} bank_mask:0xf")
    A("s_waitcnt vmcnt(0)"); nop(2)
    project(lambda t:(T+4*(t>>2)+1, 4*(t&3)))
    if cfg.mimic:
        A(f"s_lshl_b32 s{sO2}, s{sB}, 6\ns_add_u32 s{sO2}, s{sO2}, s{sCM}\ns_lshl_b32 s{sO2}, s{sO2}, 10\ns_add_u32 s{sO2}, s{sO2}, {MBOX}")
        rec_store(sO2)
        nop(2)
        for r in range(8): A(f"v_mov_b32 v{PA+r}, 0")
    nop(4)
    stamp('mlpdone')
    A(f"{lnm}:")
    FC=cfg.fc; FC0=256-FC
    stamp('wodone')
    A("s_barrier")
    stamp(4)
    A(f"s_mov_b32 s{sCM}, {f2u(CEXP):#x}")
    if cfg.pool:
        A(f"v_bfe_u32 v{T}, v2, 2, 2\nv_lshlrev_b32 v{T}, 11, v{T}\nv_lshrrev_b32 v{T+1}, 4, v2\nv_lshl_add_u32 v{T}, v{T+1}, 6, v{T}\nv_and_b32 v{T+1}, 3, v2\nv_lshl_add_u32 v{T}, v{T+1}, 4, v{T}\nv_add_u32 v{T}, {SC+28*64}, v{T}")
        A(f"ds_read_b128 v[{X}:{X+3}], v{T}\ns_lshl_b32 s4, s2, 10\ns_add_u32 s4, s4, {SBOX}\ns_waitcnt lgkmcnt(0)")
        A(f"buffer_store_dwordx4 v[{X}:{X+3}], v{vL16}, s[{SRDW}:{SRDW+3}], s4 offen sc1")
    A(f"v_and_b32 v{T}, 1, v2\nv_lshlrev_b32 v{T+1}, 4, v{T}\nv_add_u32 v{T+1}, {MX}, v{T+1}\nv_lshlrev_b32 v{T+2}, 5, v2\nv_add_u32 v{T+2}, {SC}, v{T+2}")
    A(f"ds_read_b128 v[{F}:{F+3}], v{T+1}")
    for w in range(4):
        A(f"ds_read_b128 v[{XF+8*w}:{XF+8*w+3}], v{T+2} offset:{w*2048}\nds_read_b128 v[{XF+8*w+4}:{XF+8*w+7}], v{T+2} offset:{w*2048+16}")
    A("s_waitcnt lgkmcnt(0)")
    A(f"v_max_f32 v{F}, v{F}, v{F+1}\nv_max3_f32 v{F}, v{F}, v{F+2}, v{F+3}\nv_mul_f32 v{F+4}, s{sCM}, v{F}\nv_sub_f32 v{F+4}, 0, v{F+4}")
    A(f"v_mov_b32 v{F+1}, 0\nv_mov_b32 v{F+5}, 0")
    for r in range(32):
        A(f"v_lshlrev_b32 v{T+3}, 16, v{XF+r}\nv_and_b32 v{T+4}, 0xffff0000, v{XF+r}")
        A(f"v_fma_f32 v{T+3}, v{T+3}, s{sCM}, v{F+4}\nv_fma_f32 v{T+4}, v{T+4}, s{sCM}, v{F+4}")
        A(f"v_exp_f32 v{T+3}, v{T+3}\nv_exp_f32 v{T+4}, v{T+4}"); nop(1)
        A(f"v_add_f32 v{F+1}, v{F+1}, v{T+3}\nv_add_f32 v{F+5}, v{F+5}, v{T+4}")
    A(f"v_add_f32 v{F+1}, v{F+1}, v{F+5}")
    rowred("v_add_f32",F+1,[2,4,8]); xrowred("v_add_f32",F+1,T+3)
    nop(2)
    A(f"v_mov_b32_dpp v{F+2}, v{F} quad_perm:[1,1,3,3] {DPP}\nv_mov_b32_dpp v{F+3}, v{F+1} quad_perm:[1,1,3,3] {DPP}")
    A(f"v_mov_b32 v{F+6}, v{F}")
    for r in range(4): A(f"v_bfi_b32 v{F+r}, s{sFF}, v{vT8}, v{F+r}")
    if cfg.probe is not None and cfg.probe[0]=='x':
        A(f"s_getreg_b32 s4, hwreg(HW_REG_XCC_ID)\ns_and_b32 s4, s4, 15\ns_lshl_b32 s4, s4, 8\nv_or_b32 v{F}, s4, v{F}")
    A(f"s_lshl_b32 s{sO2}, s2, 4\ns_add_u32 s{sO2}, s{sO2}, {MLBOX}\nv_mov_b32 v{T}, 0\ns_mov_b64 exec, 1\ns_waitcnt vmcnt(0)")
    if not cfg.noml: A(f"buffer_store_dwordx4 v[{F}:{F+3}], v{T}, s[{SRDW}:{SRDW+3}], s{sO2} offen sc1")
    A("s_mov_b64 exec, -1")
    srd(SRDK,sWO,4096*448*2)
    A(f"s_mul_i32 s{sO2}, s{sA}, {32*896}\ns_mul_i32 s{sSPIN}, s{sB}, 448\ns_add_u32 s{sO2}, s{sO2}, s{sSPIN}")
    if not cfg.nowo: tile_load(SRDK)
    FC=cfg.fc
    lnf=lab("nofin")
    FC0=256-FC
    if FC==56:
        A(f"v_lshrrev_b32 v{T}, 4, v2\nv_and_b32 v{T+1}, 1, v2\nv_lshl_add_u32 v{T}, v{T+1}, 2, v{T}\nv_lshlrev_b32 v{vG2}, 1, v{T}")
        A(f"s_sub_u32 s{sO2}, s2, {FC0}\ns_lshl_b32 s{sO2}, s{sO2}, 4")
    else:
        A(f"v_lshrrev_b32 v{T}, 4, v2\nv_lshlrev_b32 v{vG2}, 1, v{T}")
        A(f"s_sub_u32 s{sO2}, s2, {FC0}\ns_lshl_b32 s{sO2}, s{sO2}, 3")
    A(f"v_add_u32 v{vG2}, s{sO2}, v{vG2}")
    A(f"s_cmp_lt_u32 s2, {FC0}\ns_cbranch_scc1 {lnf}")
    srd(SRDA,sX,896)
    A(f"buffer_load_ushort v{vFX}, v{vG2}, s[{SRDA}:{SRDA+3}], 0 offen")
    srd(SRDK,sB2,896)
    A(f"buffer_load_ushort v{T}, v{vG2}, s[{SRDK}:{SRDK+3}], 0 offen")
    A(f"s_waitcnt vmcnt(0)\nv_lshlrev_b32 v{vFX}, 16, v{vFX}\nv_lshlrev_b32 v{vFM}, 16, v{T}")
    if not cfg.mimic: A(f"v_add_f32 v{vFX}, v{vFX}, v{vFM}")
    A(f"{lnf}:")
    I1=XF
    A(f"s_lshr_b32 s{sO2}, s2, 5\ns_lshl_b32 s{sO2}, s{sO2}, 9\ns_add_u32 s{sO2}, s{sO2}, {MLBOX}\nv_lshlrev_b32 v{vWO_}, 4, v7")
    backoff(cfg.mldelay)
    if not cfg.noml: poll([(I1,vWO_,0,None)], sO2, 't', cfg.mlsleep)
    if cfg.probe is not None and cfg.probe[0]=='x':
        A(f"v_bfe_u32 v{T}, v{I1}, 8, 4\nv_mov_b32 v{T+1}, v{T}"); nop(2)
        A(f"v_permlane16_swap_b32 v{T}, v{T+1}\nv_cmp_ne_u32 vcc, v{T}, v{T+1}\ns_bcnt1_i32_b64 s79, vcc")
    A(f"v_and_b32 v{T}, 1, v2\nv_cmp_eq_u32 vcc, 1, v{T}"); nop(2)
    A(f"v_cndmask_b32 v{I1}, v{I1}, v{I1+2}, vcc\nv_cndmask_b32 v{I1+1}, v{I1+1}, v{I1+3}, vcc\nv_and_b32 v{I1}, 0xffff0000, v{I1}\nv_mov_b32 v{T+1}, v{I1}")
    rowred("v_max_f32",T+1,[2,4,8]); xrowred("v_max_f32",T+1,T+2)
    A(f"v_sub_f32 v{T+2}, v{I1}, v{T+1}\nv_sub_f32 v{T+3}, v{F+6}, v{T+1}\nv_mul_f32 v{T+2}, s{sCM}, v{T+2}\nv_mul_f32 v{T+3}, s{sCM}, v{T+3}")
    A(f"v_exp_f32 v{T+2}, v{T+2}\nv_exp_f32 v{T+3}, v{T+3}"); nop(1)
    A(f"v_mul_f32 v{T+2}, v{T+2}, v{I1+1}")
    rowred("v_add_f32",T+2,[2,4,8]); xrowred("v_add_f32",T+2,T+4)
    A(f"v_rcp_f32 v{T+4}, v{T+2}"); nop(1)
    A(f"v_fma_f32 v{T+5}, -v{T+2}, v{T+4}, 1.0\nv_fma_f32 v{T+4}, v{T+5}, v{T+4}, v{T+4}")
    A(f"v_lshlrev_b32 v{T}, 2, v{T}\nv_add_u32 v{T}, {FB}, v{T}")
    if cfg.pool:
        A(f"v_mul_f32 v{T+1}, s{sCM}, v{T+1}\nv_sub_f32 v{T+1}, 0, v{T+1}")
        A(f"ds_write_b32 v{T}, v{T+4}\nds_write_b32 v{T}, v{T+3} offset:8\nds_write_b32 v{T}, v{T+1} offset:16")
        A(f"s_and_b32 s4, s2, 0xf8\ns_lshl_b32 s4, s4, 10\ns_add_u32 s4, s4, {SBOX}")
        for k in range(8):
            if k==4: A("s_add_u32 s4, s4, 4096")
            A(f"s_waitcnt vmcnt(1)\nbuffer_load_dwordx4 v[{I1+4*k}:{I1+4*k+3}], v{vL16}, s[{SRDW}:{SRDW+3}], s4 offen offset:{(k&3)*1024} sc1")
        A(f"v_add_u32 v{T}, {WBUF}, v{vL16}\ns_waitcnt vmcnt(0)")
        for k in range(8): A(f"ds_write_b128 v{T}, v[{I1+4*k}:{I1+4*k+3}] offset:{k*1024}")
        A(f"v_mov_b32 v{T}, {RDY}\nv_mov_b32 v{T+1}, 1\ns_waitcnt lgkmcnt(0)\nds_write_b32 v{T}, v{T+1}")
    else:
        A(f"v_mul_f32 v{T+3}, v{T+3}, v{T+4}\nds_write_b32 v{T}, v{T+3}")
    half=FC//2
    sH2=68
    A(f"s_sub_u32 s{sSPIN}, s2, {FC0}\ns_cmp_ge_u32 s{sSPIN}, {half}\ns_cselect_b32 s{sH2}, {128*1024-896}, 0\ns_cselect_b32 s{sO2}, {64*1024-896}, 0\ns_mul_i32 s{sSPIN}, s{sSPIN}, {1792//FC}")
    A(f"s_add_u32 s{sH2}, s{sH2}, s{sSPIN}\ns_add_u32 s{sH2}, s{sH2}, {PBOX}\ns_add_u32 s{sO2}, s{sO2}, s{sSPIN}\ns_add_u32 s{sO2}, s{sO2}, {MBOX}")
    assert FC==56
    A(f"v_lshlrev_b32 v{vH}, 10, v7\nv_and_b32 v{T}, 1, v2\nv_lshl_add_u32 v{vH}, v{T}, 4, v{vH}")
    for k in range(1,4): A(f"v_add_u32 v{vH+k}, {k*32768}, v{vH}")
    if cfg.mimic and not cfg.nomlp:
        lg=lab("nomg")
        A(f"s_cmp_lt_u32 s2, {FC0}\ns_cbranch_scc1 {lg}")
        for r in range(4): A(f"v_mov_b32 v{I1+4+r}, 0")
        poll([(I1,vH,0,None),(I1+4,vH+1,0,(1<<48)-1)], sO2, 't', 32)
        for r in range(4): A(f"v_add_f32 v{I1+r}, v{I1+r}, v{I1+4+r}")
        tred4(I1); rowred("v_add_f32",I1,[2,4,8])
        rbf(I1,I1)
        A(f"v_add_f32 v{vFM}, v{vFM}, v{I1}"); rbf(vFM,vFM)
        A(f"{lg}:")
    srd(SRDA,sOUT,896)
    A(f"v_bfe_u32 v{T}, v2, 3, 2\nv_lshlrev_b32 v{T}, 14, v{T}\nv_lshrrev_b32 v{T+1}, 5, v2\nv_lshl_add_u32 v{T}, v{T+1}, 11, v{T}\nv_and_b32 v{T+1}, 7, v2\nv_lshl_add_u32 v{vG1}, v{T+1}, 4, v{T}")
    for k in range(1,4): A(f"v_add_u32 v{X+k}, {k*4096}, v{vG1}")
    A(f"s_lshr_b32 s{sO2}, s2, 5\ns_lshl_b32 s{sO2}, s{sO2}, 16\ns_and_b32 s{sSPIN}, s{sA}, 15\ns_lshl_b32 s{sSPIN}, s{sSPIN}, 7\ns_add_u32 s{sO2}, s{sO2}, s{sSPIN}\ns_add_u32 s{sO2}, s{sO2}, {OBOX}")
    A(f"s_lshl_b32 s{sCQ}, s{sB}, 7\ns_add_u32 s{sCQ}, s{sCQ}, s{sA}\ns_lshl_b32 s{sCQ}, s{sCQ}, 10\ns_add_u32 s{sCQ}, s{sCQ}, {PBOX}")
    if cfg.touch is not None:
        A(f"s_lshl_b32 s4, s2, 11\ns_add_u32 s4, s4, {OBOX}")
        A(f"buffer_load_dwordx4 v[{I1}:{I1+3}], v{vL16}, s[{SRDW}:{SRDW+3}], s4 offen {cfg.touch}\ns_nop 0")
        A(f"buffer_load_dwordx4 v[{I1+4}:{I1+7}], v{vL16}, s[{SRDW}:{SRDW+3}], s4 offen offset:1024 {cfg.touch}\ns_nop 0")
        A(f"buffer_load_dwordx4 v[{I1+8}:{I1+11}], v{vL16}, s[{SRDW}:{SRDW+3}], s{sCQ} offen {cfg.touch}\ns_waitcnt vmcnt(0)")
    for r in range(32): A(f"v_not_b32 v{I1+r}, v{vT8}")
    A("s_waitcnt vmcnt(0) lgkmcnt(0)\ns_barrier")
    stamp(5)
    if cfg.notail: A(f"s_branch {lend}")
    R=F
    def sum16(I):
        for r in range(4): A(f"v_add_f32 v{R+r}, v{I+r}, v{I+4+r}\nv_add_f32 v{R+4+r}, v{I+8+r}, v{I+12+r}")
        for r in range(4): A(f"v_add_f32 v{R+r}, v{R+r}, v{R+4+r}")
        tred4(R)
    backoff(cfg.h1delay)
    poll([(I1,vG1,0,None),(I1+4,X+1,0,None),(I1+8,X+2,0,None),(I1+12,X+3,0,None)], sO2, 't', cfg.sleep1, cfg.fast1, cfg.fthr)
    stamp(6)
    if cfg.tdiag: A(f"s_mov_b32 s95, s{sSPIN}")
    sum16(I1); rowred("v_add_f32",R,[8])
    A(f"v_cvt_pk_bf16_f32 v{R}, v{R}, v{R}"); nop(2)
    project(lambda t:(R,t))
    rec_store(sCQ)
    stamp('rec')
    A(f"s_cmp_lt_u32 s2, {FC0}\ns_cbranch_scc1 {lend}")
    I2=XF+16
    if cfg.ackw: A("s_waitcnt vmcnt(0)")
    backoff(cfg.h2delay)
    poll([(I2+4*k,vH+k,0,None) for k in range(4)], sH2, 't', cfg.sleep2, cfg.fast2, None)
    stamp('h2')
    sum16(I2); rowred("v_add_f32",R,[2,4,8])
    if cfg.mimic:
        rbf(R,R)
        A(f"v_add_f32 v{R}, v{vFX}, v{R}"); rbf(R,R)
        A(f"v_add_f32 v{R}, v{R}, v{vFM}\nv_cvt_pk_bf16_f32 v{R}, v{R}, v{R}")
    else:
        A(f"v_add_f32 v{R}, v{vFX}, v{R}\nv_cvt_pk_bf16_f32 v{R}, v{R}, v{R}")
    A(f"s_mov_b32 exec_lo, 0x00030003\ns_mov_b32 exec_hi, 0x00030003")
    A(f"buffer_store_short v{R}, v{vG2}, s[{SRDA}:{SRDA+3}], 0 offen")
    A(f"s_cmp_lg_u32 s2, 255\ns_cbranch_scc1 {lend}")
    A(f"s_mov_b64 exec, 1\ns_add_u32 s{sE}, s{sE}, 1\nv_mov_b32 v{T+1}, s{sE}\nv_mov_b32 v{T+2}, 0")
    A(f"buffer_store_dword v{T+1}, v{T+2}, s[{SRDW}:{SRDW+3}], 0 offen sc1")
    if cfg.probe is not None:
        lx=lab("px"); ly=lab("py")
        if cfg.probe[0]=='g':
            A(f"s_mov_b64 exec, -1\ns_mov_b32 s4, 0x300000\nbuffer_load_dwordx4 v[{F}:{F+3}], v{vL16}, s[{SRDW}:{SRDW+3}], s4 offen sc1")
            A("s_waitcnt vmcnt(0)\ns_memrealtime s[82:83]\ns_waitcnt lgkmcnt(0)")
            for r in range(4): A(f"v_sub_u32 v{F+r}, s82, v{F+r}")
            A(f"v_max3_u32 v{F}, v{F}, v{F+1}, v{F+2}\nv_max_u32 v{F}, v{F}, v{F+3}\ns_mov_b32 s4, {int(cfg.probe[1]*100)}\nv_cmp_lt_u32 vcc, s4, v{F}\ns_cbranch_vccz {lend}")
        elif cfg.probe[0]=='t':
            A("s_waitcnt vmcnt(0)\ns_memrealtime s[82:83]\ns_waitcnt lgkmcnt(0)")
            k={'end':82,'b1':86,'b2':88,'b3':90}[cfg.probe[2]]
            A(f"s_sub_u32 s4, s{k}, s80\ns_cmp_lt_u32 s4, {int(cfg.probe[1]*100)}\ns_cbranch_scc1 {lend}")
        else:
            A(f"s_cmp_eq_u32 s79, 0\ns_cbranch_scc1 {lend}")
        A(f"s_mov_b32 s4, 40\n{lx}:\ns_sleep 40\ns_sub_u32 s4, s4, 1\ns_cmp_lg_u32 s4, 0\ns_cbranch_scc1 {lx}")
        A("s_endpgm")
    A(f"{lend}:")
    if cfg.probe is not None: pass
    elif cfg.stamps and cfg.dbgout:
        A(f"s_cmp_lt_u32 s2, 252\ns_cbranch_scc1 {Ldone}")
        A("s_mov_b64 exec, 1\ns_waitcnt vmcnt(0)")
        stamp(1)
        srd(SRDA,sDBG,256)
        A(f"s_waitcnt lgkmcnt(0)\ns_sub_u32 s{sO2}, s2, 252\ns_lshl_b32 s{sO2}, s{sO2}, 4\nv_mov_b32 v{T}, 0")
        for i,k in enumerate((3,4,5,1)):
            A(f"s_sub_u32 s4, s{80+2*k}, s80\nv_mov_b32 v{F+i}, s4")
        A(f"buffer_store_dwordx4 v[{F}:{F+3}], v{T}, s[{SRDA}:{SRDA+3}], s{sO2} offen")
    elif cfg.stamps:
        A("s_mov_b64 exec, 1\ns_waitcnt vmcnt(0)")
        stamp(1)
        A("s_getreg_b32 s94, hwreg(HW_REG_XCC_ID)\ns_waitcnt lgkmcnt(0)")
        A(f"s_lshl_b32 s{sO2}, s2, 6\ns_add_u32 s{sO2}, s{sO2}, {STAMP:#x}\nv_mov_b32 v{T}, 0")
        for k in range(8):
            A(f"v_mov_b32 v{F}, s{80+2*k}\nv_mov_b32 v{F+1}, s{81+2*k}\nbuffer_store_dwordx2 v[{F}:{F+1}], v{T}, s[{SRDW}:{SRDW+3}], s{sO2} offen offset:{8*k}\ns_nop 1")
    A(f"{Ldone}:")
    A("s_endpgm")
    body="\n".join(L)+"\n"
    kd=f""".section .rodata,"a"
.p2align 6
.amdhsa_kernel {N}
  .amdhsa_next_free_vgpr 232
  .amdhsa_next_free_sgpr 96
  .amdhsa_accum_offset 232
  .amdhsa_group_segment_fixed_size 0
  .amdhsa_kernarg_size 104
  .amdhsa_user_sgpr_count 2
  .amdhsa_user_sgpr_kernarg_segment_ptr 1
  .amdhsa_system_sgpr_workgroup_id_x 1
  .amdhsa_float_denorm_mode_32 3
.end_amdhsa_kernel
"""
    return body, kd

def header():
    ref=open('parallel_sum__gqa_block_cached__dense_activation_gelu__decode.s.ref').read().split("\n")
    out=[]
    for l in ref:
        if l.startswith("; @launch"):
            out.append(f"; @launch grid=(256,1,1) block=(320,1,1) lds={LDS_END}")
            break
        out.append(l)
    return "\n".join(out)+"\n"

def final(cfg, path):
    body,kd=gen(cfg)
    open(path,"w").write(header()+'.amdgcn_target "amdgcn-amd-amdhsa--gfx950"\n.text\n'+body+kd)

def bench(cfgs, path):
    sys.path.insert(0,'bench')
    from genstream import meta
    s='.amdgcn_target "amdgcn-amd-amdhsa--gfx950"\n'
    ks=[]; args=[]
    for c in cfgs:
        body,kd=gen(c)
        s+=".text\n"+body+kd.replace("kernarg_size 104","kernarg_size 112")
        ks.append((c.name,232,320)); args.append(f"{c.name} 256 320 {LDS_END}")
    s+=meta(ks)
    open(path+".s","w").write(s); open(path+".args","w").write(" @ ".join(args))

def mk(name, **kw):
    c=Cfg(); c.name=name
    for k,v in kw.items():
        assert hasattr(c,k), k
        setattr(c,k,v)
    return c

if __name__=="__main__":
    if sys.argv[1]=="final":
        kw=eval(sys.argv[3]) if len(sys.argv)>3 else {}
        final(mk(KNAME,**kw), sys.argv[2])
    else:
        bench([mk(n,**kw) for n,kw in eval(sys.argv[3])], sys.argv[2])
```

```python
import sys, struct, math

KNAME = "parallel_sum__gqa_block_cached__dense_activation_gelu__decode_kernel"
def f2u(f): return struct.unpack('<I', struct.pack('<f', f))[0]

class Cfg:
    name = KNAME
    rot = 0
    pace = 6
    infl = 5
    stamps = False
    smap = {}
    wnt = "nt"
    qsleep = 16
    sleep1 = 2
    sleep2 = 0
    mlsleep = 100
    fc = 56
    nomlp = False
    notail = False
    auxnull = False
    nowo = False
    blk = 4
    rotH = 4
    rotS = 0
    ackw = True
    touch = 'sc1'
    h2delay = 8
    h1delay = 0
    mix = True
    tdiag = False
    qdelay = 30
    mldelay = 0
    prio2 = 0
    nowq = False
    noqx = False
    opol = 'sc1'
    lpol = 'sc1'
    probe = None
    pool = True
    pinfl = 10
    pclaim = 4
    first = 6
    fb = None
    qgate = 4
    cnt = 'nt'
    noml = False
    noopub = False
    mimic = True
    fast1 = 0
    fast2 = 0
    fthr = 64
    vpre = True
    agate = 1
    gran = 1
    thr = None
    dbgout = False

RING=0; SC=131072; WBUF=SC+8192; XN=WBUF+14336; QB=XN+1024; MX=QB+1024; FB=MX+64; LV=FB+32; RDY=FB+36; LDS_END=FB+64
QBOX=0x1000; MLBOX=0x8000; OBOX=0x10000; PBOX=0x100000; MBOX=0x180000; SBOX=0x200000; CNT=0x280000; CSTR=4352; STAMP=0x20000000
SPIN_LIMIT = 1<<16
CEXP = 0.0625*math.log2(math.e)

def tt(f):
    r=0
    for idx in range(8):
        if f((idx>>2)&1,(idx>>1)&1,idx&1): r|=1<<idx
    return r

def gen(cfg):
    L=[]
    def A(s):
        for line in s.split("\n"):
            t=line.strip()
            L.append(t if t.endswith(":") else "    "+t)
    N=cfg.name
    pre = "L" if N==KNAME else f"L_{N}"
    uid=[0]
    def lab(p):
        uid[0]+=1; return f"{pre}_{p}{uid[0]}"
    def nop(n):
        if n>0: A(f"s_nop {n-1}")
    sX,sK,sV,sWQ,sWO,sW1,sB1=16,18,20,22,24,28,30
    sW2,sB2,sOUT,sDBG,sWS=32,34,36,38,40
    SRDK,SRDV,SRDA,SRDW=44,48,52,56
    sWAVE=3
    def srd(d, p, size):
        A(f"s_mov_b32 s{d}, s{p}\ns_mov_b32 s{d+1}, s{p+1}\ns_mov_b32 s{d+2}, {size:#x}\ns_mov_b32 s{d+3}, 0x20000")
    def stamp(k):
        if cfg.stamps:
            if isinstance(k,str):
                if k not in cfg.smap: return
                k=cfg.smap[k]
            elif k in cfg.smap.values(): return
            A(f"s_memrealtime s[{80+2*k}:{81+2*k}]")
    DPP="row_mask:0xf bank_mask:0xf"
    def rowred(op, v, rors):
        for r in rors:
            nop(2); A(f"{op}_dpp v{v}, v{v}, v{v} row_ror:{r} {DPP}")
    def xrowred(op, v, t):
        A(f"v_mov_b32 v{t}, v{v}"); nop(2); A(f"v_permlane16_swap_b32 v{v}, v{t}"); A(f"{op} v{v}, v{v}, v{t}")
        A(f"v_mov_b32 v{t}, v{v}"); nop(2); A(f"v_permlane32_swap_b32 v{v}, v{t}"); A(f"{op} v{v}, v{v}, v{t}")
    def tred4(a):
        nop(2)
        A(f"v_permlane32_swap_b32 v{a}, v{a+2}\nv_permlane32_swap_b32 v{a+1}, v{a+3}")
        A(f"v_add_f32 v{a}, v{a}, v{a+2}\nv_add_f32 v{a+1}, v{a+1}, v{a+3}")
        nop(2)
        A(f"v_permlane16_swap_b32 v{a}, v{a+1}")
        A(f"v_add_f32 v{a}, v{a}, v{a+1}")
    def rbf(d, s):
        A(f"v_cvt_pk_bf16_f32 v{d}, v{s}, v{s}\nv_and_b32 v{d}, 0xffff0000, v{d}")
    def masks(dst, n, t0, t1):
        A(f"v_and_b32 v{t0}, 1, v{n}\nv_lshlrev_b32 v{t0}, 4, v{t0}\nv_mov_b32 v{t1}, 0xffff\nv_lshlrev_b32 v{t1}, v{t0}, v{t1}\nv_bfe_u32 v{t0}, v{n}, 1, 2")
        for r in range(4):
            A(f"v_cmp_eq_u32 vcc, {r}, v{t0}"); nop(2); A(f"v_cndmask_b32 v{dst+r}, 0, v{t1}, vcc")

    Ldone=f"{pre}_done"; Laux=f"{pre}_aux"
    A(f".globl {N}\n.p2align 8\n.type {N},@function\n{N}:")
    A(f"s_cmp_ge_u32 s2, 256\ns_cbranch_scc1 {Ldone}")
    A("s_load_dwordx16 s[16:31], s[0:1], 0\ns_load_dwordx8 s[32:39], s[0:1], 64\ns_load_dwordx2 s[40:41], s[0:1], 96")
    stamp(0)
    A("v_lshrrev_b32 v1, 6, v0\nv_and_b32 v2, 63, v0")
    nop(1)
    A(f"v_readfirstlane_b32 s{sWAVE}, v1")
    A(f"s_cmp_eq_u32 s{sWAVE}, 4\ns_cbranch_scc1 {Laux}")

    vKO=8; vVO=16; vKA=18; vVA=22; vSA=23; vMASK=24; vMAX=28; vTG=29; vNM=30; vT=31
    QF=32; TF=64; D=96; S2=100; VP=104
    AR=32; ACC=48; P=56; vVP=7
    sRING,sREG,sNEXT,sOFF,sCNT,sC,sT8,sFF,sV0,sLV,sCL,sY,sSCO=60,61,62,63,64,65,66,67,68,69,70,71,72
    sPC=76
    A("v_lshrrev_b32 v3, 5, v2\nv_and_b32 v4, 31, v2\nv_lshlrev_b32 v5, 2, v3\nv_xor_b32 v4, v4, v5\nv_lshlrev_b32 v4, 4, v4\nv_lshl_add_u32 v4, v3, 9, v4")
    for j in range(8):
        c=(8*(j&1)+(j>>1))*16 | (4096 if j>=4 else 0)
        A(f"v_xor_b32 v{vKO+j}, {c:#x}, v4")
    B=cfg.blk; lb=B.bit_length()-1
    sHB,sRS=78,79
    A(f"s_lshl_b32 s{sRING}, s{sWAVE}, 15\ns_lshr_b32 s4, s2, 5\ns_lshl_b32 s{sHB}, s4, 25\ns_lshl_b32 s5, s{sWAVE}, 13\ns_add_u32 s{sHB}, s{sHB}, s5")
    A(f"s_mul_i32 s{sNEXT}, s4, {cfg.rotH}\ns_and_b32 s5, s2, 31\ns_mul_i32 s{sRS}, s5, {cfg.rotS}\ns_lshl_b32 s{sREG}, s5, {15+lb}\ns_add_u32 s{sREG}, s{sREG}, s{sHB}\ns_mov_b32 s{sV0}, s{sNEXT}")
    def taddr(dst, t, base, rs):
        A(f"s_bfe_u32 s4, s{t}, {((5-lb)<<16)|lb:#x}\ns_lshl_b32 s4, s4, {20+lb}\ns_add_u32 s{dst}, s{base}, s4")
        if lb:
            A(f"s_add_u32 s4, s{t}, s{rs}\ns_and_b32 s4, s4, {B-1}\ns_lshl_b32 s4, s4, 15\ns_add_u32 s{dst}, s{dst}, s4")
    A("s_waitcnt lgkmcnt(0)")
    srd(SRDK,sK,1<<28)
    def gate(j, lim):
        if lim is None: return "s_nop 0"
        return f"s_waitcnt vmcnt({lim[j&1]-1})"
    INF=cfg.infl if isinstance(cfg.infl,tuple) else (cfg.infl,cfg.infl)
    PINF=cfg.pinfl if isinstance(cfg.pinfl,tuple) else (cfg.pinfl,cfg.pinfl)
    def claim():
        A(f"s_mov_b32 s{sCL}, 1\ns_atomic_add s{sCL}, s[{sPC}:{sPC+1}], 0 glc")
    def steps(slot, kind, lim=INF, doclaim=False):
        def mk(j):
            def f():
                if kind is None: return
                half=j>>2; jj=j&3
                sk=None
                if kind=='P':
                    sk=lab("ps")
                    if j==0:
                        ok=lab("po")
                        A(f"s_waitcnt lgkmcnt(0)\ns_mov_b32 s{sSCO+slot}, -1\ns_cmp_ge_u32 s{sCL}, 32\ns_cbranch_scc1 {sk}")
                        A(f"s_and_b32 s5, s{sCL}, 7\ns_lshr_b32 s6, s{sCL}, 3\ns_lshl_b32 s7, s5, 10\ns_lshl_b32 s8, s6, 8\ns_add_u32 s{sSCO+slot}, s7, s8")
                        A(f"s_and_b32 s7, s2, 0x18\ns_or_b32 s5, s5, s7\ns_mul_i32 s7, s5, {cfg.rotS}\ns_lshl_b32 s5, s5, {15+lb}\ns_add_u32 s5, s5, s{sHB}\ns_add_u32 s6, s6, s{sV0}")
                        taddr(sOFF,6,5,7)
                    else:
                        A(f"s_cmp_eq_u32 s{sSCO+slot}, -1\ns_cbranch_scc1 {sk}")
                elif j==0:
                    taddr(sOFF,sNEXT,sREG,sRS)
                    A(f"s_add_u32 s{sNEXT}, s{sNEXT}, 1")
                if (kind=='P' or doclaim) and j==cfg.pclaim: claim()
                vo = vKO+j if kind=='K' else vVO+half
                sr = SRDK if kind=='K' else SRDV
                A(f"s_add_u32 m0, s{sRING}, {slot*8192+half*4096}\n{gate(j, PINF if kind=='P' else lim)}")
                A(f"buffer_load_dwordx4 v{vo}, s[{sr}:{sr+3}], s{sOFF} offen offset:{jj*1024} nt lds")
                if sk: A(f"{sk}:")
            return f
        return [mk(j) for j in range(8)]
    def weave(st, sl):
        for u in range(8):
            st[u]()
            if u<len(sl): sl[u]()
    for j,f in enumerate(steps(0,'K',None)[:cfg.first]): f()
    srd(SRDV,sV,1<<28)
    A(f"s_load_dword s{sT8}, s[{sWS}:{sWS+1}], 0")
    A(f"v_lshlrev_b32 v{vVO}, 4, v2\nv_add_u32 v{vVO+1}, 0x1000, v{vVO}")
    A("v_lshrrev_b32 v3, 4, v2\nv_and_b32 v4, 15, v2")
    A("v_and_b32 v5, 3, v4\nv_lshlrev_b32 v5, 2, v5\nv_lshrrev_b32 v6, 2, v4\nv_add_u32 v5, v5, v6")
    A(f"v_xor_b32 v6, v3, v4\nv_lshlrev_b32 v6, 4, v6\nv_lshl_add_u32 v6, v5, 9, v6\nv_add_u32 v6, s{sRING}, v6")
    for q in range(4): A(f"v_xor_b32 v{vKA+q}, {q*64}, v6")
    A(f"v_lshlrev_b32 v6, 4, v4\nv_lshl_add_u32 v6, v3, 9, v6\nv_add_u32 v{vVA}, s{sRING}, v6")
    A(f"s_lshl_b32 s{sCNT}, s{sWAVE}, 11\ns_add_u32 s{sCNT}, s{sCNT}, {SC}")
    A(f"v_lshrrev_b32 v5, 3, v4\nv_lshlrev_b32 v6, 5, v5\nv_lshl_add_u32 v6, v3, 3, v6\nv_add_u32 v{vSA}, s{sCNT}, v6")
    A(f"v_lshlrev_b32 v7, 9, v5\nv_lshl_add_u32 v7, v3, 4, v7\nv_add_u32 v7, {QB}, v7")
    masks(vMASK,4,5,6)
    A(f"v_mov_b32 v{vMAX}, 0xff800000")
    A(f"v_subrev_u32 v{vT}, s{sRING}, v{vVA}\nv_add_u32 v1, 0x1000, v{vT}")
    for f in steps(0,'K')[cfg.first:]: f()
    for slot in (1,2):
        for f in steps(slot,'K'): f()
    for i in range(4):
        taddr(sOFF,sV0,sREG,sRS)
        for u in range(8):
            o=(u>>1)*2048+(u&1)*256
            vo = vT if o<4096 else 1
            A(gate(u,INF))
            A(f"buffer_load_dwordx4 v[{VP+32*i+4*u}:{VP+32*i+4*u+3}], v{vo}, s[{SRDV}:{SRDV+3}], s{sOFF} offen offset:{o&4095} nt")
        A(f"s_add_u32 s{sV0}, s{sV0}, {1 if i<3 else 25}")
    A(f"s_waitcnt lgkmcnt(0)\ns_add_u32 s{sT8}, s{sT8}, 1\ns_and_b32 s{sT8}, s{sT8}, 0xff\ns_mov_b32 s{sFF}, 0xff\nv_mov_b32 v{vTG}, s{sT8}")
    srd(SRDW,sWS,1<<30)
    A("s_barrier")
    for jj in range(8): A(f"ds_read_b128 v[{QF+4*jj}:{QF+4*jj+3}], v7 offset:{jj*64}")

    def ktile(slot, kind):
        def s0():
            A("s_waitcnt vmcnt(16)")
            for jj in range(8):
                A(f"ds_read_b128 v[{TF+4*jj}:{TF+4*jj+3}], v{vKA+(jj&3)} offset:{slot*8192+(jj>>2)*256}")
        def mf(r):
            def f():
                if r[0]==0: A("s_waitcnt lgkmcnt(0)")
                for jj in r:
                    c = "0" if jj==0 else f"v[{D}:{D+3}]"
                    A(f"v_mfma_f32_16x16x32_bf16 v[{D}:{D+3}], v[{TF+4*jj}:{TF+4*jj+3}], v[{QF+4*jj}:{QF+4*jj+3}], {c}")
            return f
        def s3():
            nop(5)
            A(f"v_cvt_pk_bf16_f32 v{S2}, v{D}, v{D+1}\nv_cvt_pk_bf16_f32 v{S2+1}, v{D+2}, v{D+3}")
            A(f"v_max3_f32 v{vMAX}, v{vMAX}, v{D}, v{D+1}\nv_max3_f32 v{vMAX}, v{vMAX}, v{D+2}, v{D+3}")
            A(f"ds_write_b64 v{vSA}, v[{S2}:{S2+1}] offset:{slot*64}")
        weave(steps((slot+3)&3,kind),[s0,mf([0,1,2,3]),mf([4,5,6,7]),s3])
    def pcalc():
        A(f"v_lshlrev_b32 v{P}, 16, v{S2}\nv_and_b32 v{P+1}, 0xffff0000, v{S2}\nv_lshlrev_b32 v{P+2}, 16, v{S2+1}\nv_and_b32 v{P+3}, 0xffff0000, v{S2+1}")
        for t in range(4): A(f"v_fma_f32 v{P+t}, v{P+t}, s{sC}, v{vNM}")
        for t in range(4): A(f"v_exp_f32 v{P+t}, v{P+t}")
        nop(1)
        for t in range(4): A(f"v_cvt_pk_bf16_f32 v{P+t}, v{P+t}, v{P+t}")
    def pmask():
        for t in range(4):
            for r in range(4): A(f"v_and_b32 v{AR+4*t+r}, v{P+t}, v{vMASK+r}")
    def pv(src, us):
        for u in us:
            t=u>>1; h=u&1
            A(f"v_mfma_f32_16x16x32_bf16 v[{ACC+4*h}:{ACC+4*h+3}], v[{AR+4*t}:{AR+4*t+3}], v[{src+4*u}:{src+4*u+3}], v[{ACC+4*h}:{ACC+4*h+3}]")
    def vtile(slot, kind, waitn, scoff=None, regs=None, pooled=False, doclaim=False):
        def s0():
            if pooled: A(f"v_add_u32 v{vT}, s{sSCO+slot}, v{vSA}\nds_read_b64 v[{S2}:{S2+1}], v{vT}")
            else: A(f"ds_read_b64 v[{S2}:{S2+1}], v{vSA} offset:{slot*64 if scoff is None else scoff}")
            A("s_waitcnt lgkmcnt(0)"); pcalc()
        def s1():
            if waitn=='y':
                go=lab("wy")
                A("s_waitcnt vmcnt(16)")
                for y in (2,1): A(f"s_cmp_ge_i32 s{sY}, {y}\ns_cbranch_scc1 {go}\ns_waitcnt vmcnt({8*(y-1)})")
                A(f"{go}:")
            else: A(f"s_waitcnt vmcnt({waitn})")
            for u in range(8):
                A(f"ds_read_b128 v[{TF+4*u}:{TF+4*u+3}], v{vVA} offset:{slot*8192+(u>>1)*2048+(u&1)*256}")
            pmask()
            A("s_waitcnt lgkmcnt(0)")
        sl=[s0,s1,lambda:pv(TF,[0,1,2,3]),lambda:pv(TF,[4,5,6,7])]
        if regs is not None:
            def r0():
                A(f"ds_read_b64 v[{S2}:{S2+1}], v{vSA} offset:{slot*64}\ns_waitcnt lgkmcnt(0)"); pcalc()
            sl+=[r0,pmask,lambda:pv(regs,[0,1,2,3]),lambda:pv(regs,[4,5,6,7])]
        weave(steps((slot+3)&3,kind,doclaim=doclaim),sl)
        if kind=='P':
            A(f"s_cmp_eq_u32 s{sSCO+((slot+3)&3)}, -1\ns_subb_u32 s{sY}, s{sY}, 0")

    lk=lab("kloop")
    A(f"s_mov_b32 s{sCNT}, 7")
    A(f"{lk}:")
    for s in range(4): ktile(s,'K')
    A(f"v_add_u32 v{vSA}, 256, v{vSA}")
    A(f"s_sub_u32 s{sCNT}, s{sCNT}, 1\ns_cmp_lg_u32 s{sCNT}, 0\ns_cbranch_scc1 {lk}")
    ktile(0,'K')
    A(f"s_add_u32 s{sNEXT}, s{sNEXT}, 4")
    for s in range(1,4): ktile(s,'V')
    A(f"v_subrev_u32 v{vSA}, {7*256}, v{vSA}")
    for r in range(8): A(f"v_mov_b32 v{ACC+r}, 0")
    xrowred("v_max_f32", vMAX, vT)
    rbf(vMAX,vMAX)
    A(f"v_bfe_u32 v3, v2, 3, 1\nv_lshlrev_b32 v3, 4, v3\nv_add_u32 v3, {MX}, v3")
    A(f"s_lshl_b32 s{sCNT}, s{sWAVE}, 2\nv_add_u32 v4, s{sCNT}, v3")
    A(f"ds_write_b32 v4, v{vMAX}\ns_waitcnt lgkmcnt(0)\ns_barrier")
    A(f"ds_read_b128 v[{D}:{D+3}], v3\ns_mov_b32 s{sC}, {f2u(CEXP):#x}\ns_waitcnt lgkmcnt(0)")
    A(f"v_max_f32 v{vMAX}, v{D}, v{D+1}\nv_max3_f32 v{vMAX}, v{vMAX}, v{D+2}, v{D+3}")
    A(f"v_mul_f32 v{vNM}, s{sC}, v{vMAX}\nv_sub_f32 v{vNM}, 0, v{vNM}")
    A("v_lshrrev_b32 v6, 5, v2\nv_lshlrev_b32 v6, 10, v6\nv_and_b32 v5, 15, v2\nv_lshl_add_u32 v6, v5, 5, v6\nv_bfe_u32 v5, v2, 4, 1\nv_lshl_add_u32 v6, v5, 4, v6")
    A(f"v_add_u32 v6, s{sRING}, v6")
    A(f"s_lshl_b32 s{sCNT}, s{sWAVE}, 9\nv_lshlrev_b32 v4, 4, v2\nv_add_u32 v4, s{sCNT}, v4\nv_add_u32 v5, 0x10000, v4")
    A(f"s_lshr_b32 s{sCNT}, s{sWAVE}, 1\ns_lshl_b32 s{sCNT}, s{sCNT}, 2\ns_add_u32 s{sCNT}, s{sCNT}, {FB}\nv_mov_b32 v3, s{sCNT}")
    lv=lab("vloop")
    for s in range(4): vtile(s,'V',16,scoff=256+s*64,regs=VP+32*s)
    A(f"v_add_u32 v{vSA}, 512, v{vSA}")
    A(f"s_mov_b32 s{sCNT}, {4 if cfg.pool else 5}")
    A(f"{lv}:")
    for s in range(4): vtile(s,'V',16)
    A(f"v_add_u32 v{vSA}, 256, v{vSA}")
    A(f"s_sub_u32 s{sCNT}, s{sCNT}, 1\ns_cmp_lg_u32 s{sCNT}, 0\ns_cbranch_scc1 {lv}")
    if cfg.pool:
        lw=lab("rw"); lwd=lab("rwd")
        A(f"v_mov_b32 v{vT}, {RDY}\ns_mov_b32 s{sCNT}, 0")
        A(f"{lw}:\nds_read_b32 v{D}, v{vT}\ns_add_u32 s{sCNT}, s{sCNT}, 1")
        A(f"s_lshr_b32 s4, s2, 3\ns_lshl_b32 s5, s4, 2\ns_add_u32 s5, s5, s{sWAVE}\ns_mul_i32 s5, s5, {CSTR}\ns_add_u32 s5, s5, {CNT}\ns_add_u32 s{sPC}, s{sWS}, s5\ns_addc_u32 s{sPC+1}, s{sWS+1}, 0")
        A(f"s_mov_b32 s{sY}, 2")
        A(f"s_waitcnt lgkmcnt(0)\nv_readfirstlane_b32 s4, v{D}\ns_cmp_lg_u32 s4, 0\ns_cbranch_scc1 {lwd}")
        A(f"s_sleep 4\ns_cmp_lt_u32 s{sCNT}, {SPIN_LIMIT*16}\ns_cbranch_scc1 {lw}\n{lwd}:")
        vtile(0,'V',16,doclaim=True)
        for s in range(1,4): vtile(s,'P','y')
        A(f"v_lshrrev_b32 v{vT}, 5, v2\nv_lshlrev_b32 v{vT}, 2, v{vT}\nv_add_u32 v{vT}, {FB+8}, v{vT}\nds_read_b32 v{D}, v{vT}")
        A(f"v_bfe_u32 v{vT}, v2, 3, 1\nv_lshlrev_b32 v{vSA}, 5, v{vT}\nv_lshlrev_b32 v{vT}, 2, v{vT}\nv_add_u32 v{vT}, {FB+16}, v{vT}\nds_read_b32 v{vNM}, v{vT}")
        A(f"v_lshrrev_b32 v{vT}, 4, v2\nv_lshl_add_u32 v{vSA}, v{vT}, 3, v{vSA}\ns_lshl_b32 s4, s{sWAVE}, 6\ns_add_u32 s4, s4, {WBUF}\nv_add_u32 v{vSA}, s4, v{vSA}")
        A("s_waitcnt lgkmcnt(0)")
        for r in range(8): A(f"v_mul_f32 v{ACC+r}, v{ACC+r}, v{D}")
        lp=lab("ploop"); le=lab("pend")
        A(f"{lp}:")
        for s in range(4):
            A(f"s_cmp_eq_u32 s{sSCO+s}, -1\ns_cbranch_scc1 {le}")
            vtile(s,'P','y',pooled=True)
        A(f"s_branch {lp}\n{le}:")
    else:
        vtile(0,'V',16); vtile(1,None,16); vtile(2,None,8); vtile(3,None,0)
    A(f"s_lshl_b32 s{sOFF}, s2, 11\ns_add_u32 s{sOFF}, s{sOFF}, {OBOX}")
    nop(7)
    A(f"ds_write_b128 v6, v[{ACC}:{ACC+3}]\nds_write_b128 v6, v[{ACC+4}:{ACC+7}] offset:512")
    A("s_waitcnt lgkmcnt(0)\ns_barrier")
    A("s_mov_b32 exec_hi, 0")
    A(f"ds_read_b128 v[{TF}:{TF+3}], v4\nds_read_b128 v[{TF+4}:{TF+7}], v4 offset:32768\nds_read_b128 v[{TF+8}:{TF+11}], v5\nds_read_b128 v[{TF+12}:{TF+15}], v5 offset:32768\nds_read_b32 v{TF+16}, v3")
    A("s_waitcnt lgkmcnt(3)")
    for r in range(4): A(f"v_add_f32 v{TF+r}, v{TF+r}, v{TF+4+r}")
    A("s_waitcnt lgkmcnt(1)")
    for r in range(4): A(f"v_add_f32 v{TF+8+r}, v{TF+8+r}, v{TF+12+r}")
    for r in range(4): A(f"v_add_f32 v{TF+r}, v{TF+r}, v{TF+8+r}")
    A("s_waitcnt lgkmcnt(0)")
    for r in range(4): A(f"v_mul_f32 v{TF+r}, v{TF+r}, v{TF+16}")
    for r in range(4): A(f"v_bfi_b32 v{TF+r}, s{sFF}, v{vTG}, v{TF+r}")
    if cfg.tdiag: A("s_memrealtime s[82:83]")
    if not cfg.noopub: A(f"buffer_store_dwordx4 v[{TF}:{TF+3}], v4, s[{SRDW}:{SRDW+3}], s{sOFF} offen {cfg.opol}")
    if cfg.tdiag:
        A(f"s_waitcnt vmcnt(0)\ns_memrealtime s[84:85]\ns_waitcnt lgkmcnt(0)\ns_cmp_lg_u32 s{sWAVE}, 0\ns_cbranch_scc1 {Ldone}")
        A(f"s_lshl_b32 s4, s2, 6\ns_add_u32 s4, s4, {STAMP+0x100000:#x}\ns_mov_b64 exec, 1\nv_mov_b32 v1, 0\nv_mov_b32 v{TF}, s82\nv_mov_b32 v{TF+1}, s83\nv_mov_b32 v{TF+2}, s84\nv_mov_b32 v{TF+3}, s85")
        A(f"buffer_store_dwordx4 v[{TF}:{TF+3}], v1, s[{SRDW}:{SRDW+3}], s4 offen")
    A("s_endpgm")

    vL16=3; vWO_=4; vTR=5; vXA=6
    X=8; F=12; T=20
    XF=32; WF=88
    WT=144
    PA=208
    AM=216
    vT8=220; vFX=221; vG1=222; vG2=223; vPS=224; vTO=225; vFM=226; vH=227
    AT=88
    sE,sTAG,sCQ,sO2,sSPIN,sCM,sFF,sA,sB=60,61,62,63,64,65,78,66,67
    A(f"{Laux}:")
    lend=lab("end")
    if cfg.auxnull:
        A("s_waitcnt lgkmcnt(0)"); srd(SRDW,sWS,1<<30)
        A("s_barrier"); stamp(3); A("s_barrier"); stamp(4); A("s_barrier"); stamp(5); A(f"s_branch {lend}")
    A("s_setprio 3")
    A(f"v_lshrrev_b32 v7, 1, v2\nv_and_b32 v{T}, 1, v2\nv_lshlrev_b32 v{T}, 4, v{T}")
    A(f"v_lshl_add_u32 v{vWO_}, v7, 13, v{T}\nv_lshlrev_b32 v{vL16}, 4, v2")
    if cfg.mix:
        A(f"s_and_b32 s4, s2, 7\ns_lshr_b32 s5, s2, 5\ns_add_u32 s5, s5, s4\ns_and_b32 s5, s5, 7\ns_lshl_b32 s5, s5, 2\ns_lshl_b32 s{sCQ}, s4, 5\ns_add_u32 s{sCQ}, s{sCQ}, s5\ns_bfe_u32 s5, s2, 0x20003\ns_add_u32 s{sCQ}, s{sCQ}, s5\ns_lshl_b32 s{sO2}, s{sCQ}, 5")
    else:
        A(f"s_and_b32 s{sCQ}, s2, 7\ns_lshl_b32 s{sCQ}, s{sCQ}, 5\ns_lshr_b32 s{sO2}, s2, 3\ns_add_u32 s{sCQ}, s{sCQ}, s{sO2}\ns_lshl_b32 s{sO2}, s{sCQ}, 5")
    A("s_waitcnt lgkmcnt(0)")
    stamp('karg')
    A(f"s_load_dword s{sE}, s[{sWS}:{sWS+1}], 0")
    srd(SRDA,sX,896)
    A(f"buffer_load_dwordx4 v[{X}:{X+3}], v{vL16}, s[{SRDA}:{SRDA+3}], 0 offen")
    srd(SRDK,sWQ,448*4096*2)
    def wdma(sr, step, gate=None):
        for i in range(14):
            if gate is not None: A(f"s_waitcnt vmcnt({gate})")
            A(f"s_mov_b32 m0, {WBUF+i*1024}")
            if i: A(f"s_add_u32 s{sO2}, s{sO2}, {step}")
            else: nop(1)
            A(f"buffer_load_dwordx4 v{vWO_}, s[{sr}:{sr+3}], s{sO2} offen {cfg.cnt} lds")
    if not cfg.nowq: wdma(SRDK,32*8192,cfg.qgate)
    srd(SRDW,sWS,1<<30)
    A(f"v_lshrrev_b32 v{T}, 4, v2\nv_bfe_u32 v{T+1}, v2, 2, 2\nv_lshl_add_u32 v{T+1}, v{T}, 3, v{T+1}\nv_and_b32 v{T+2}, 3, v2\nv_lshlrev_b32 v{T+2}, 3, v{T+2}\nv_add_u32 v{T+2}, {WBUF}, v{T+2}")
    A(f"v_lshl_add_u32 v{vTR}, v{T+1}, 5, v{T+2}\nv_lshl_add_u32 v{vG1}, v{T+1}, 6, v{T+2}")
    A(f"v_lshlrev_b32 v{T}, 4, v{T}\nv_add_u32 v{vXA}, {XN}, v{T}")
    A("v_cmp_gt_u32 s[74:75], 56, v2")
    stamp('issued')
    A("s_waitcnt vmcnt(14)")
    stamp('xland')
    for r in range(4):
        A(f"v_lshlrev_b32 v{F+2*r}, 16, v{X+r}\nv_and_b32 v{F+2*r+1}, 0xffff0000, v{X+r}")
    A(f"v_add_f32 v{T}, v{F}, v{F+1}\nv_add_f32 v{T+1}, v{F+2}, v{F+3}\nv_add_f32 v{T+2}, v{F+4}, v{F+5}\nv_add_f32 v{T+3}, v{F+6}, v{F+7}")
    A(f"v_add_f32 v{T}, v{T}, v{T+1}\nv_add_f32 v{T+2}, v{T+2}, v{T+3}\nv_add_f32 v{T}, v{T}, v{T+2}")
    rowred("v_add_f32",T,[1,2,4,8]); xrowred("v_add_f32",T,T+1)
    A(f"v_mul_f32 v{T}, {f2u(1.0/448):#x}, v{T}")
    A(f"v_sub_f32 v{T+2}, v{F}, v{T}\nv_mul_f32 v{T+1}, v{T+2}, v{T+2}")
    for r in range(1,8):
        A(f"v_sub_f32 v{T+2}, v{F+r}, v{T}\nv_fmac_f32 v{T+1}, v{T+2}, v{T+2}")
    A(f"v_cndmask_b32 v{T+1}, 0, v{T+1}, s[74:75]")
    rowred("v_add_f32",T+1,[1,2,4,8]); xrowred("v_add_f32",T+1,T+2)
    A(f"v_mul_f32 v{T+1}, {f2u(1.0/448):#x}, v{T+1}")
    rbf(T,T); rbf(T+1,T+1)
    A(f"v_add_f32 v{T+1}, {f2u(1e-5):#x}, v{T+1}"); rbf(T+1,T+1)
    A(f"v_sqrt_f32 v{T+1}, v{T+1}"); nop(1); rbf(T+1,T+1)
    A(f"v_rcp_f32 v{T+2}, v{T+1}")
    for r in range(8): A(f"v_sub_f32 v{F+r}, v{F+r}, v{T}")
    for r in range(4): A(f"v_cvt_pk_bf16_f32 v{X+r}, v{F+2*r}, v{F+2*r+1}")
    for r in range(4): A(f"v_lshlrev_b32 v{F+2*r}, 16, v{X+r}\nv_and_b32 v{F+2*r+1}, 0xffff0000, v{X+r}")
    for r in range(8):
        A(f"v_mul_f32 v{T+3}, v{F+r}, v{T+2}\nv_fma_f32 v{T+4}, -v{T+3}, v{T+1}, v{F+r}\nv_fma_f32 v{F+r}, v{T+4}, v{T+2}, v{T+3}")
    for r in range(4): A(f"v_cvt_pk_bf16_f32 v{X+r}, v{F+2*r}, v{F+2*r+1}")
    A(f"v_add_u32 v{T}, {XN}, v{vL16}\nds_write_b128 v{T}, v[{X}:{X+3}]\ns_waitcnt lgkmcnt(0)")
    for jj in range(14): A(f"ds_read_b128 v[{XF+4*jj}:{XF+4*jj+3}], v{vXA} offset:{jj*64}")
    stamp('lndone')
    A("s_waitcnt vmcnt(0)")
    stamp('wqland')
    for jj in range(14):
        A(f"ds_read_b64_tr_b16 v[{WF+4*jj}:{WF+4*jj+1}], v{vTR} offset:{jj*1024}\nds_read_b64_tr_b16 v[{WF+4*jj+2}:{WF+4*jj+3}], v{vTR} offset:{jj*1024+128}")
    A(f"s_waitcnt lgkmcnt(0)")
    for jj in range(14):
        c="0" if jj==0 else f"v[{T}:{T+3}]"
        A(f"v_mfma_f32_16x16x32_bf16 v[{T}:{T+3}], v[{XF+4*jj}:{XF+4*jj+3}], v[{WF+4*jj}:{WF+4*jj+3}], {c}")
    A(f"s_mul_i32 s{sTAG}, s{sE}, 0x9E3779B1\ns_add_u32 s{sTAG}, s{sTAG}, 0x7F4A7C15")
    A(f"s_add_u32 s{sFF}, s{sE}, 1\ns_and_b32 s{sFF}, s{sFF}, 0xff\nv_mov_b32 v{vT8}, s{sFF}\ns_mov_b32 s{sFF}, 0xff")
    A(f"s_lshl_b32 s{sO2}, s{sCQ}, 6\ns_add_u32 s{sO2}, s{sO2}, {QBOX}\nv_lshlrev_b32 v{T+6}, 3, v7\nv_mov_b32 v{T+5}, s{sTAG}")
    A(f"v_mov_b32_dpp v{T+1}, v{T} quad_perm:[1,1,3,3] {DPP}")
    A(f"v_cvt_pk_bf16_f32 v{T+4}, v{T}, v{T+1}")
    A("s_mov_b64 exec, 0x5555")
    if not cfg.noqx: A(f"buffer_store_dwordx2 v[{T+4}:{T+5}], v{T+6}, s[{SRDW}:{SRDW+3}], s{sO2} offen sc1")
    A("s_mov_b64 exec, -1")
    stamp(2)
    TT1=tt(lambda a,b,t:(a^t)|(b^t)); TT2=tt(lambda a,b,c:(a|b)&c)
    def poll(loads, soff, mode, sleep, fast=0, fthr=None):
        PM=4
        lp=lab("poll"); ld=lab("polld")
        for i,(d,vo,imm,lm) in enumerate(loads):
            if lm is None: A(f"s_mov_b64 s[{PM+2*i}:{PM+2*i+1}], -1")
            else: A(f"s_mov_b32 s{PM+2*i}, {lm&0xffffffff:#x}\ns_mov_b32 s{PM+2*i+1}, {lm>>32:#x}")
        A(f"s_mov_b32 s{sSPIN}, 0\ns_mov_b32 s14, 999")
        A(f"{lp}:")
        for i,(d,vo,imm,lm) in enumerate(loads):
            sk=lab("sk")
            A(f"s_mov_b64 exec, s[{PM+2*i}:{PM+2*i+1}]\ns_cbranch_execz {sk}")
            A(f"buffer_load_dwordx4 v[{d}:{d+3}], v{vo}, s[{SRDW}:{SRDW+3}], s{soff} offen offset:{imm} {cfg.lpol}")
            A(f"{sk}:")
        A(f"s_mov_b64 exec, -1\ns_add_u32 s{sSPIN}, s{sSPIN}, 1")
        if fast and fthr is not None:
            sk=lab("fs")
            A(f"s_cmp_le_u32 s14, {fthr}\ns_cbranch_scc1 {sk}\ns_waitcnt vmcnt(0)\n{sk}:")
        A(f"s_waitcnt vmcnt({fast})")
        for i,(d,vo,imm,lm) in enumerate(loads):
            if mode=='q':
                A(f"v_xor_b32 v{T+i}, s{sTAG}, v{d+1}\nv_xor_b32 v{T+4+i}, s{sTAG}, v{d+3}\nv_or_b32 v{T+i}, v{T+i}, v{T+4+i}")
            else:
                A(f"v_bitop3_b32 v{T+i}, v{d}, v{d+1}, v{vT8} bitop3:{TT1:#x}\nv_bitop3_b32 v{T+4+i}, v{d+2}, v{d+3}, v{vT8} bitop3:{TT1:#x}")
                A(f"v_bitop3_b32 v{T+i}, v{T+i}, v{T+4+i}, s{sFF} bitop3:{TT2:#x}")
        for i,(d,vo,imm,lm) in enumerate(loads):
            A(f"v_cmp_ne_u32 vcc, 0, v{T+i}\ns_and_b64 s[{PM+2*i}:{PM+2*i+1}], s[{PM+2*i}:{PM+2*i+1}], vcc")
        if len(loads)>1:
            A(f"s_or_b64 s[12:13], s[{PM}:{PM+1}], s[{PM+2}:{PM+3}]")
            for i in range(2,len(loads)): A(f"s_or_b64 s[12:13], s[12:13], s[{PM+2*i}:{PM+2*i+1}]")
        A(f"s_cbranch_scc0 {ld}")
        if fast and fthr is not None:
            A(f"s_bcnt1_i32_b64 s14, s[{PM}:{PM+1}]")
            for i in range(1,len(loads)): A(f"s_bcnt1_i32_b64 s15, s[{PM+2*i}:{PM+2*i+1}]\ns_add_u32 s14, s14, s15")
            if sleep:
                sk=lab("ns")
                A(f"s_cmp_le_u32 s14, {fthr}\ns_cbranch_scc1 {sk}\ns_sleep {sleep}\n{sk}:")
        elif sleep: A(f"s_sleep {sleep}")
        A(f"s_cmp_lt_u32 s{sSPIN}, {SPIN_LIMIT*4}\ns_cbranch_scc1 {lp}")
        A(f"{ld}:")
    A(f"s_lshr_b32 s{sO2}, s2, 5\ns_lshl_b32 s{sO2}, s{sO2}, 11\ns_add_u32 s{sO2}, s{sO2}, {QBOX}")
    def backoff(n):
        while n>0:
            A(f"s_sleep {min(n,127)}"); n-=127
    backoff(cfg.qdelay)
    if not cfg.noqx: poll([(F,vL16,0,None),(F+4,vL16,1024,None)], sO2, 'q', cfg.qsleep)
    stamp('qrecv')
    A(f"v_mov_b32 v{T}, {RDY}\nv_mov_b32 v{T+1}, 0\nds_write_b32 v{T}, v{T+1}")
    A(f"v_lshlrev_b32 v{T}, 3, v2\nv_add_u32 v{T}, {QB}, v{T}")
    A(f"ds_write2_b32 v{T}, v{F}, v{F+2} offset0:0 offset1:1\nds_write2_b32 v{T}, v{F+4}, v{F+6} offset0:128 offset1:129")
    A("s_waitcnt lgkmcnt(0)\ns_barrier")
    stamp(3)
    if cfg.prio2!=3: A(f"s_setprio {cfg.prio2}")
    if cfg.pool:
        lz=lab("nz")
        A(f"s_and_b32 s4, s2, 7\ns_cbranch_scc1 {lz}")
        A(f"s_lshr_b32 s4, s2, 3\ns_mul_i32 s4, s4, {4*CSTR}\ns_add_u32 s4, s4, {CNT}\nv_mul_u32_u24 v{T}, {CSTR}, v2\nv_mov_b32 v{T+1}, 0\ns_mov_b64 exec, 15")
        A(f"buffer_store_dword v{T+1}, v{T}, s[{SRDW}:{SRDW+3}], s4 offen sc1\ns_mov_b64 exec, -1\n{lz}:")
    if cfg.probe is not None and cfg.probe[0]=='g':
        A(f"s_lshl_b32 s4, s2, 2\ns_add_u32 s4, s4, 0x300000\nv_mov_b32 v{T}, 0\nv_mov_b32 v{T+1}, s80\ns_mov_b64 exec, 1\nbuffer_store_dword v{T+1}, v{T}, s[{SRDW}:{SRDW+3}], s4 offen sc1\ns_mov_b64 exec, -1")
    A(f"s_bfe_u32 s{sB}, s2, 0x10003\ns_lshr_b32 s{sA}, s2, 4\ns_lshl_b32 s{sA}, s{sA}, 3\ns_and_b32 s{sO2}, s2, 7\ns_add_u32 s{sA}, s{sA}, s{sO2}")
    A(f"v_and_b32 v{T}, 15, v2"); masks(AM,T,T+1,T+2)
    A(f"v_lshrrev_b32 v{T+1}, 4, v2\nv_mul_u32_u24 v{vTO}, 896, v{T+1}\nv_lshl_add_u32 v{vTO}, v{T}, 4, v{vTO}")
    for r in range(8): A(f"v_mov_b32 v{PA+r}, 0")
    def tile_load(sr):
        for t in range(8):
            if cfg.agate is not None: A(f"s_waitcnt vmcnt({cfg.agate})")
            A(f"buffer_load_dwordx4 v[{WT+8*t}:{WT+8*t+3}], v{vTO}, s[{sr}:{sr+3}], s{sO2} offen {cfg.wnt}")
            A("s_mov_b32 exec_lo, 0x0fff0fff\ns_mov_b32 exec_hi, 0x0fff0fff")
            A(f"buffer_load_dwordx4 v[{WT+8*t+4}:{WT+8*t+7}], v{vTO}, s[{sr}:{sr+3}], s{sO2} offen offset:256 {cfg.wnt}")
            A(f"s_mov_b64 exec, -1\ns_add_u32 s{sO2}, s{sO2}, 3584")
    def project(src):
        for t in range(8):
            v,ln=src(t)
            for r in range(4): A(f"v_and_b32_dpp v{AT+4*t+r}, v{v}, v{AM+r} row_newbcast:{ln} {DPP}")
            if t>=1:
                tp=t-1
                for cb in range(2):
                    A(f"v_mfma_f32_16x16x32_bf16 v[{PA+4*cb}:{PA+4*cb+3}], v[{AT+4*tp}:{AT+4*tp+3}], v[{WT+8*tp+4*cb}:{WT+8*tp+4*cb+3}], v[{PA+4*cb}:{PA+4*cb+3}]")
        for cb in range(2):
            A(f"v_mfma_f32_16x16x32_bf16 v[{PA+4*cb}:{PA+4*cb+3}], v[{AT+28}:{AT+31}], v[{WT+56+4*cb}:{WT+56+4*cb+3}], v[{PA+4*cb}:{PA+4*cb+3}]")
    A(f"v_lshrrev_b32 v{T}, 5, v2\nv_lshlrev_b32 v{T}, 9, v{T}\nv_and_b32 v{T+1}, 15, v2\nv_lshl_add_u32 v{T}, v{T+1}, 5, v{T}\nv_bfe_u32 v{T+1}, v2, 4, 1\nv_lshl_add_u32 v{vPS}, v{T+1}, 4, v{T}")
    def rec_store(soff):
        nop(8)
        for r in range(4): A(f"v_permlane32_swap_b32 v{PA+r}, v{PA+4+r}")
        for r in range(4): A(f"v_bfi_b32 v{PA+r}, s{sFF}, v{vT8}, v{PA+r}")
        A("s_mov_b32 exec_hi, 0x0fff0fff")
        A(f"buffer_store_dwordx4 v[{PA}:{PA+3}], v{vPS}, s[{SRDW}:{SRDW+3}], s{soff} offen {cfg.opol}")
        A("s_mov_b32 exec_hi, -1")
    lnm=lab("nomlp")
    if cfg.mix:
        A(f"s_and_b32 s4, s2, 7\ns_lshl_b32 s5, s4, 1\ns_lshr_b32 s{sO2}, s2, 4\ns_sub_u32 s{sO2}, s{sO2}, s5\ns_and_b32 s{sO2}, s{sO2}, 15")
        A(f"s_cmp_ge_u32 s{sO2}, {0 if cfg.nomlp else 7}\ns_cbranch_scc1 {lnm}")
        A(f"s_mul_i32 s{sCM}, s4, 7\ns_add_u32 s{sCM}, s{sCM}, s{sO2}")
    else:
        A(f"s_cmp_ge_u32 s2, {0 if cfg.nomlp else 112}\ns_cbranch_scc1 {lnm}")
        A(f"s_and_b32 s{sCM}, s2, 7\ns_mul_i32 s{sCM}, s{sCM}, 7\ns_lshr_b32 s{sO2}, s2, 4\ns_add_u32 s{sCM}, s{sCM}, s{sO2}")
    A(f"v_lshrrev_b32 v{T}, 2, v2\nv_mul_u32_u24 v{vWO_}, 3584, v{T}\nv_and_b32 v{T}, 3, v2\nv_lshl_add_u32 v{vWO_}, v{T}, 4, v{vWO_}")
    srd(SRDK,sW1,448*1792*2)
    srd(SRDA,sB1,3584)
    A(f"v_and_b32 v{T}, 15, v2\nv_lshlrev_b32 v{T}, 1, v{T}\ns_lshl_b32 s{sO2}, s{sCM}, 6")
    A(f"buffer_load_ushort v{F}, v{T}, s[{SRDA}:{SRDA+3}], s{sO2} offen\ns_nop 0\nbuffer_load_ushort v{F+1}, v{T}, s[{SRDA}:{SRDA+3}], s{sO2} offen offset:32")
    for ps in range(2):
        wdma(SRDK,16*3584,cfg.agate)
        A(f"s_add_u32 s{sO2}, s{sO2}, {16*3584}\ns_waitcnt vmcnt(0)")
        for kk in range(7):
            for u in range(2):
                r=WF+8*kk+4*u
                A(f"ds_read_b64_tr_b16 v[{r}:{r+1}], v{vG1} offset:{kk*2048+u*32}\nds_read_b64_tr_b16 v[{r+2}:{r+3}], v{vG1} offset:{kk*2048+u*32+256}")
        A("s_waitcnt lgkmcnt(0)")
        for kk in range(7):
            for u in range(2):
                r=WF+8*kk+4*u; x=XF+4*(7*ps+kk)
                c="0" if (ps==0 and kk==0) else f"v[{T+4*u}:{T+4*u+3}]"
                A(f"v_mfma_f32_16x16x32_bf16 v[{T+4*u}:{T+4*u+3}], v[{x}:{x+3}], v[{r}:{r+3}], {c}")
    srd(SRDK,sW2,1792*448*2)
    A(f"s_mul_i32 s{sO2}, s{sCM}, {32*896}\ns_mul_i32 s{sSPIN}, s{sB}, 448\ns_add_u32 s{sO2}, s{sO2}, s{sSPIN}")
    tile_load(SRDK)
    k0=math.sqrt(2/math.pi)
    for u in range(2):
        h=T+4*u; t1=h+1; t2=h+2
        rbf(h,h)
        A(f"v_lshlrev_b32 v{F+u}, 16, v{F+u}\nv_add_f32 v{h}, v{h}, v{F+u}"); rbf(h,h)
        A(f"v_mul_f32 v{t1}, v{h}, v{h}\nv_mul_f32 v{t1}, v{t1}, v{h}\nv_mov_b32 v{t2}, {f2u(0.044715):#x}\nv_fma_f32 v{t1}, v{t1}, v{t2}, v{h}")
        A(f"v_mul_f32 v{t1}, {f2u(-2*k0*math.log2(math.e)):#x}, v{t1}\nv_exp_f32 v{t1}, v{t1}"); nop(1)
        A(f"v_add_f32 v{t1}, 1.0, v{t1}\nv_rcp_f32 v{t1}, v{t1}"); nop(1)
        A(f"v_mul_f32 v{h}, v{h}, v{t1}\nv_cvt_pk_bf16_f32 v{h}, v{h}, v{h}\nv_mov_b32 v{t1}, v{h}"); nop(2)
        for g in range(1,4): A(f"v_mov_b32_dpp v{t1}, v{h} row_ror:{16-g} row_mask:{1<<g:#x} bank_mask:0xf")
    A("s_waitcnt vmcnt(0)"); nop(2)
    project(lambda t:(T+4*(t>>2)+1, 4*(t&3)))
    if cfg.mimic:
        A(f"s_lshl_b32 s{sO2}, s{sB}, 6\ns_add_u32 s{sO2}, s{sO2}, s{sCM}\ns_lshl_b32 s{sO2}, s{sO2}, 10\ns_add_u32 s{sO2}, s{sO2}, {MBOX}")
        rec_store(sO2)
        nop(2)
        for r in range(8): A(f"v_mov_b32 v{PA+r}, 0")
    nop(4)
    stamp('mlpdone')
    A(f"{lnm}:")
    FC=cfg.fc; FC0=256-FC
    stamp('wodone')
    A("s_barrier")
    stamp(4)
    A(f"s_mov_b32 s{sCM}, {f2u(CEXP):#x}")
    if cfg.pool:
        A(f"v_bfe_u32 v{T}, v2, 2, 2\nv_lshlrev_b32 v{T}, 11, v{T}\nv_lshrrev_b32 v{T+1}, 4, v2\nv_lshl_add_u32 v{T}, v{T+1}, 6, v{T}\nv_and_b32 v{T+1}, 3, v2\nv_lshl_add_u32 v{T}, v{T+1}, 4, v{T}\nv_add_u32 v{T}, {SC+28*64}, v{T}")
        A(f"ds_read_b128 v[{X}:{X+3}], v{T}\ns_lshl_b32 s4, s2, 10\ns_add_u32 s4, s4, {SBOX}\ns_waitcnt lgkmcnt(0)")
        A(f"buffer_store_dwordx4 v[{X}:{X+3}], v{vL16}, s[{SRDW}:{SRDW+3}], s4 offen sc1")
    A(f"v_and_b32 v{T}, 1, v2\nv_lshlrev_b32 v{T+1}, 4, v{T}\nv_add_u32 v{T+1}, {MX}, v{T+1}\nv_lshlrev_b32 v{T+2}, 5, v2\nv_add_u32 v{T+2}, {SC}, v{T+2}")
    A(f"ds_read_b128 v[{F}:{F+3}], v{T+1}")
    for w in range(4):
        A(f"ds_read_b128 v[{XF+8*w}:{XF+8*w+3}], v{T+2} offset:{w*2048}\nds_read_b128 v[{XF+8*w+4}:{XF+8*w+7}], v{T+2} offset:{w*2048+16}")
    A("s_waitcnt lgkmcnt(0)")
    A(f"v_max_f32 v{F}, v{F}, v{F+1}\nv_max3_f32 v{F}, v{F}, v{F+2}, v{F+3}\nv_mul_f32 v{F+4}, s{sCM}, v{F}\nv_sub_f32 v{F+4}, 0, v{F+4}")
    A(f"v_mov_b32 v{F+1}, 0\nv_mov_b32 v{F+5}, 0")
    for r in range(32):
        A(f"v_lshlrev_b32 v{T+3}, 16, v{XF+r}\nv_and_b32 v{T+4}, 0xffff0000, v{XF+r}")
        A(f"v_fma_f32 v{T+3}, v{T+3}, s{sCM}, v{F+4}\nv_fma_f32 v{T+4}, v{T+4}, s{sCM}, v{F+4}")
        A(f"v_exp_f32 v{T+3}, v{T+3}\nv_exp_f32 v{T+4}, v{T+4}"); nop(1)
        A(f"v_add_f32 v{F+1}, v{F+1}, v{T+3}\nv_add_f32 v{F+5}, v{F+5}, v{T+4}")
    A(f"v_add_f32 v{F+1}, v{F+1}, v{F+5}")
    rowred("v_add_f32",F+1,[2,4,8]); xrowred("v_add_f32",F+1,T+3)
    nop(2)
    A(f"v_mov_b32_dpp v{F+2}, v{F} quad_perm:[1,1,3,3] {DPP}\nv_mov_b32_dpp v{F+3}, v{F+1} quad_perm:[1,1,3,3] {DPP}")
    A(f"v_mov_b32 v{F+6}, v{F}")
    for r in range(4): A(f"v_bfi_b32 v{F+r}, s{sFF}, v{vT8}, v{F+r}")
    if cfg.probe is not None and cfg.probe[0]=='x':
        A(f"s_getreg_b32 s4, hwreg(HW_REG_XCC_ID)\ns_and_b32 s4, s4, 15\ns_lshl_b32 s4, s4, 8\nv_or_b32 v{F}, s4, v{F}")
    A(f"s_lshl_b32 s{sO2}, s2, 4\ns_add_u32 s{sO2}, s{sO2}, {MLBOX}\nv_mov_b32 v{T}, 0\ns_mov_b64 exec, 1\ns_waitcnt vmcnt(0)")
    if not cfg.noml: A(f"buffer_store_dwordx4 v[{F}:{F+3}], v{T}, s[{SRDW}:{SRDW+3}], s{sO2} offen sc1")
    A("s_mov_b64 exec, -1")
    srd(SRDK,sWO,4096*448*2)
    A(f"s_mul_i32 s{sO2}, s{sA}, {32*896}\ns_mul_i32 s{sSPIN}, s{sB}, 448\ns_add_u32 s{sO2}, s{sO2}, s{sSPIN}")
    if not cfg.nowo: tile_load(SRDK)
    FC=cfg.fc
    lnf=lab("nofin")
    FC0=256-FC
    if FC==56:
        A(f"v_lshrrev_b32 v{T}, 4, v2\nv_and_b32 v{T+1}, 1, v2\nv_lshl_add_u32 v{T}, v{T+1}, 2, v{T}\nv_lshlrev_b32 v{vG2}, 1, v{T}")
        A(f"s_sub_u32 s{sO2}, s2, {FC0}\ns_lshl_b32 s{sO2}, s{sO2}, 4")
    else:
        A(f"v_lshrrev_b32 v{T}, 4, v2\nv_lshlrev_b32 v{vG2}, 1, v{T}")
        A(f"s_sub_u32 s{sO2}, s2, {FC0}\ns_lshl_b32 s{sO2}, s{sO2}, 3")
    A(f"v_add_u32 v{vG2}, s{sO2}, v{vG2}")
    A(f"s_cmp_lt_u32 s2, {FC0}\ns_cbranch_scc1 {lnf}")
    srd(SRDA,sX,896)
    A(f"buffer_load_ushort v{vFX}, v{vG2}, s[{SRDA}:{SRDA+3}], 0 offen")
    srd(SRDK,sB2,896)
    A(f"buffer_load_ushort v{T}, v{vG2}, s[{SRDK}:{SRDK+3}], 0 offen")
    A(f"s_waitcnt vmcnt(0)\nv_lshlrev_b32 v{vFX}, 16, v{vFX}\nv_lshlrev_b32 v{vFM}, 16, v{T}")
    if not cfg.mimic: A(f"v_add_f32 v{vFX}, v{vFX}, v{vFM}")
    A(f"{lnf}:")
    I1=XF
    A(f"s_lshr_b32 s{sO2}, s2, 5\ns_lshl_b32 s{sO2}, s{sO2}, 9\ns_add_u32 s{sO2}, s{sO2}, {MLBOX}\nv_lshlrev_b32 v{vWO_}, 4, v7")
    backoff(cfg.mldelay)
    if not cfg.noml: poll([(I1,vWO_,0,None)], sO2, 't', cfg.mlsleep)
    if cfg.probe is not None and cfg.probe[0]=='x':
        A(f"v_bfe_u32 v{T}, v{I1}, 8, 4\nv_mov_b32 v{T+1}, v{T}"); nop(2)
        A(f"v_permlane16_swap_b32 v{T}, v{T+1}\nv_cmp_ne_u32 vcc, v{T}, v{T+1}\ns_bcnt1_i32_b64 s79, vcc")
    A(f"v_and_b32 v{T}, 1, v2\nv_cmp_eq_u32 vcc, 1, v{T}"); nop(2)
    A(f"v_cndmask_b32 v{I1}, v{I1}, v{I1+2}, vcc\nv_cndmask_b32 v{I1+1}, v{I1+1}, v{I1+3}, vcc\nv_and_b32 v{I1}, 0xffff0000, v{I1}\nv_mov_b32 v{T+1}, v{I1}")
    rowred("v_max_f32",T+1,[2,4,8]); xrowred("v_max_f32",T+1,T+2)
    A(f"v_sub_f32 v{T+2}, v{I1}, v{T+1}\nv_sub_f32 v{T+3}, v{F+6}, v{T+1}\nv_mul_f32 v{T+2}, s{sCM}, v{T+2}\nv_mul_f32 v{T+3}, s{sCM}, v{T+3}")
    A(f"v_exp_f32 v{T+2}, v{T+2}\nv_exp_f32 v{T+3}, v{T+3}"); nop(1)
    A(f"v_mul_f32 v{T+2}, v{T+2}, v{I1+1}")
    rowred("v_add_f32",T+2,[2,4,8]); xrowred("v_add_f32",T+2,T+4)
    A(f"v_rcp_f32 v{T+4}, v{T+2}"); nop(1)
    A(f"v_fma_f32 v{T+5}, -v{T+2}, v{T+4}, 1.0\nv_fma_f32 v{T+4}, v{T+5}, v{T+4}, v{T+4}")
    A(f"v_lshlrev_b32 v{T}, 2, v{T}\nv_add_u32 v{T}, {FB}, v{T}")
    if cfg.pool:
        A(f"v_mul_f32 v{T+1}, s{sCM}, v{T+1}\nv_sub_f32 v{T+1}, 0, v{T+1}")
        A(f"ds_write_b32 v{T}, v{T+4}\nds_write_b32 v{T}, v{T+3} offset:8\nds_write_b32 v{T}, v{T+1} offset:16")
        A(f"s_and_b32 s4, s2, 0xf8\ns_lshl_b32 s4, s4, 10\ns_add_u32 s4, s4, {SBOX}")
        for k in range(8):
            if k==4: A("s_add_u32 s4, s4, 4096")
            A(f"s_waitcnt vmcnt(1)\nbuffer_load_dwordx4 v[{I1+4*k}:{I1+4*k+3}], v{vL16}, s[{SRDW}:{SRDW+3}], s4 offen offset:{(k&3)*1024} sc1")
        A(f"v_add_u32 v{T}, {WBUF}, v{vL16}\ns_waitcnt vmcnt(0)")
        for k in range(8): A(f"ds_write_b128 v{T}, v[{I1+4*k}:{I1+4*k+3}] offset:{k*1024}")
        A(f"v_mov_b32 v{T}, {RDY}\nv_mov_b32 v{T+1}, 1\ns_waitcnt lgkmcnt(0)\nds_write_b32 v{T}, v{T+1}")
    else:
        A(f"v_mul_f32 v{T+3}, v{T+3}, v{T+4}\nds_write_b32 v{T}, v{T+3}")
    half=FC//2
    sH2=68
    A(f"s_sub_u32 s{sSPIN}, s2, {FC0}\ns_cmp_ge_u32 s{sSPIN}, {half}\ns_cselect_b32 s{sH2}, {128*1024-896}, 0\ns_cselect_b32 s{sO2}, {64*1024-896}, 0\ns_mul_i32 s{sSPIN}, s{sSPIN}, {1792//FC}")
    A(f"s_add_u32 s{sH2}, s{sH2}, s{sSPIN}\ns_add_u32 s{sH2}, s{sH2}, {PBOX}\ns_add_u32 s{sO2}, s{sO2}, s{sSPIN}\ns_add_u32 s{sO2}, s{sO2}, {MBOX}")
    assert FC==56
    A(f"v_lshlrev_b32 v{vH}, 10, v7\nv_and_b32 v{T}, 1, v2\nv_lshl_add_u32 v{vH}, v{T}, 4, v{vH}")
    for k in range(1,4): A(f"v_add_u32 v{vH+k}, {k*32768}, v{vH}")
    if cfg.mimic and not cfg.nomlp:
        lg=lab("nomg")
        A(f"s_cmp_lt_u32 s2, {FC0}\ns_cbranch_scc1 {lg}")
        for r in range(4): A(f"v_mov_b32 v{I1+4+r}, 0")
        poll([(I1,vH,0,None),(I1+4,vH+1,0,(1<<48)-1)], sO2, 't', 32)
        for r in range(4): A(f"v_add_f32 v{I1+r}, v{I1+r}, v{I1+4+r}")
        tred4(I1); rowred("v_add_f32",I1,[2,4,8])
        rbf(I1,I1)
        A(f"v_add_f32 v{vFM}, v{vFM}, v{I1}"); rbf(vFM,vFM)
        A(f"{lg}:")
    srd(SRDA,sOUT,896)
    A(f"v_bfe_u32 v{T}, v2, 3, 2\nv_lshlrev_b32 v{T}, 14, v{T}\nv_lshrrev_b32 v{T+1}, 5, v2\nv_lshl_add_u32 v{T}, v{T+1}, 11, v{T}\nv_and_b32 v{T+1}, 7, v2\nv_lshl_add_u32 v{vG1}, v{T+1}, 4, v{T}")
    for k in range(1,4): A(f"v_add_u32 v{X+k}, {k*4096}, v{vG1}")
    A(f"s_lshr_b32 s{sO2}, s2, 5\ns_lshl_b32 s{sO2}, s{sO2}, 16\ns_and_b32 s{sSPIN}, s{sA}, 15\ns_lshl_b32 s{sSPIN}, s{sSPIN}, 7\ns_add_u32 s{sO2}, s{sO2}, s{sSPIN}\ns_add_u32 s{sO2}, s{sO2}, {OBOX}")
    A(f"s_lshl_b32 s{sCQ}, s{sB}, 7\ns_add_u32 s{sCQ}, s{sCQ}, s{sA}\ns_lshl_b32 s{sCQ}, s{sCQ}, 10\ns_add_u32 s{sCQ}, s{sCQ}, {PBOX}")
    if cfg.touch is not None:
        A(f"s_lshl_b32 s4, s2, 11\ns_add_u32 s4, s4, {OBOX}")
        A(f"buffer_load_dwordx4 v[{I1}:{I1+3}], v{vL16}, s[{SRDW}:{SRDW+3}], s4 offen {cfg.touch}\ns_nop 0")
        A(f"buffer_load_dwordx4 v[{I1+4}:{I1+7}], v{vL16}, s[{SRDW}:{SRDW+3}], s4 offen offset:1024 {cfg.touch}\ns_nop 0")
        A(f"buffer_load_dwordx4 v[{I1+8}:{I1+11}], v{vL16}, s[{SRDW}:{SRDW+3}], s{sCQ} offen {cfg.touch}\ns_waitcnt vmcnt(0)")
    for r in range(32): A(f"v_not_b32 v{I1+r}, v{vT8}")
    A("s_waitcnt vmcnt(0) lgkmcnt(0)\ns_barrier")
    stamp(5)
    if cfg.notail: A(f"s_branch {lend}")
    R=F
    def sum16(I):
        for r in range(4): A(f"v_add_f32 v{R+r}, v{I+r}, v{I+4+r}\nv_add_f32 v{R+4+r}, v{I+8+r}, v{I+12+r}")
        for r in range(4): A(f"v_add_f32 v{R+r}, v{R+r}, v{R+4+r}")
        tred4(R)
    backoff(cfg.h1delay)
    poll([(I1,vG1,0,None),(I1+4,X+1,0,None),(I1+8,X+2,0,None),(I1+12,X+3,0,None)], sO2, 't', cfg.sleep1, cfg.fast1, cfg.fthr)
    stamp(6)
    if cfg.tdiag: A(f"s_mov_b32 s95, s{sSPIN}")
    sum16(I1); rowred("v_add_f32",R,[8])
    A(f"v_cvt_pk_bf16_f32 v{R}, v{R}, v{R}"); nop(2)
    project(lambda t:(R,t))
    rec_store(sCQ)
    stamp('rec')
    A(f"s_cmp_lt_u32 s2, {FC0}\ns_cbranch_scc1 {lend}")
    I2=XF+16
    if cfg.ackw: A("s_waitcnt vmcnt(0)")
    backoff(cfg.h2delay)
    poll([(I2+4*k,vH+k,0,None) for k in range(4)], sH2, 't', cfg.sleep2, cfg.fast2, None)
    stamp('h2')
    sum16(I2); rowred("v_add_f32",R,[2,4,8])
    if cfg.mimic:
        rbf(R,R)
        A(f"v_add_f32 v{R}, v{vFX}, v{R}"); rbf(R,R)
        A(f"v_add_f32 v{R}, v{R}, v{vFM}\nv_cvt_pk_bf16_f32 v{R}, v{R}, v{R}")
    else:
        A(f"v_add_f32 v{R}, v{vFX}, v{R}\nv_cvt_pk_bf16_f32 v{R}, v{R}, v{R}")
    A(f"s_mov_b32 exec_lo, 0x00030003\ns_mov_b32 exec_hi, 0x00030003")
    A(f"buffer_store_short v{R}, v{vG2}, s[{SRDA}:{SRDA+3}], 0 offen")
    A(f"s_cmp_lg_u32 s2, 255\ns_cbranch_scc1 {lend}")
    A(f"s_mov_b64 exec, 1\ns_add_u32 s{sE}, s{sE}, 1\nv_mov_b32 v{T+1}, s{sE}\nv_mov_b32 v{T+2}, 0")
    A(f"buffer_store_dword v{T+1}, v{T+2}, s[{SRDW}:{SRDW+3}], 0 offen sc1")
    if cfg.probe is not None:
        lx=lab("px"); ly=lab("py")
        if cfg.probe[0]=='g':
            A(f"s_mov_b64 exec, -1\ns_mov_b32 s4, 0x300000\nbuffer_load_dwordx4 v[{F}:{F+3}], v{vL16}, s[{SRDW}:{SRDW+3}], s4 offen sc1")
            A("s_waitcnt vmcnt(0)\ns_memrealtime s[82:83]\ns_waitcnt lgkmcnt(0)")
            for r in range(4): A(f"v_sub_u32 v{F+r}, s82, v{F+r}")
            A(f"v_max3_u32 v{F}, v{F}, v{F+1}, v{F+2}\nv_max_u32 v{F}, v{F}, v{F+3}\ns_mov_b32 s4, {int(cfg.probe[1]*100)}\nv_cmp_lt_u32 vcc, s4, v{F}\ns_cbranch_vccz {lend}")
        elif cfg.probe[0]=='t':
            A("s_waitcnt vmcnt(0)\ns_memrealtime s[82:83]\ns_waitcnt lgkmcnt(0)")
            k={'end':82,'b1':86,'b2':88,'b3':90}[cfg.probe[2]]
            A(f"s_sub_u32 s4, s{k}, s80\ns_cmp_lt_u32 s4, {int(cfg.probe[1]*100)}\ns_cbranch_scc1 {lend}")
        else:
            A(f"s_cmp_eq_u32 s79, 0\ns_cbranch_scc1 {lend}")
        A(f"s_mov_b32 s4, 40\n{lx}:\ns_sleep 40\ns_sub_u32 s4, s4, 1\ns_cmp_lg_u32 s4, 0\ns_cbranch_scc1 {lx}")
        A("s_endpgm")
    A(f"{lend}:")
    if cfg.probe is not None: pass
    elif cfg.stamps and cfg.dbgout:
        A(f"s_cmp_lt_u32 s2, 252\ns_cbranch_scc1 {Ldone}")
        A("s_mov_b64 exec, 1\ns_waitcnt vmcnt(0)")
        stamp(1)
        srd(SRDA,sDBG,256)
        A(f"s_waitcnt lgkmcnt(0)\ns_sub_u32 s{sO2}, s2, 252\ns_lshl_b32 s{sO2}, s{sO2}, 4\nv_mov_b32 v{T}, 0")
        for i,k in enumerate((3,4,5,1)):
            A(f"s_sub_u32 s4, s{80+2*k}, s80\nv_mov_b32 v{F+i}, s4")
        A(f"buffer_store_dwordx4 v[{F}:{F+3}], v{T}, s[{SRDA}:{SRDA+3}], s{sO2} offen")
    elif cfg.stamps:
        A("s_mov_b64 exec, 1\ns_waitcnt vmcnt(0)")
        stamp(1)
        A("s_getreg_b32 s94, hwreg(HW_REG_XCC_ID)\ns_waitcnt lgkmcnt(0)")
        A(f"s_lshl_b32 s{sO2}, s2, 6\ns_add_u32 s{sO2}, s{sO2}, {STAMP:#x}\nv_mov_b32 v{T}, 0")
        for k in range(8):
            A(f"v_mov_b32 v{F}, s{80+2*k}\nv_mov_b32 v{F+1}, s{81+2*k}\nbuffer_store_dwordx2 v[{F}:{F+1}], v{T}, s[{SRDW}:{SRDW+3}], s{sO2} offen offset:{8*k}\ns_nop 1")
    A(f"{Ldone}:")
    A("s_endpgm")
    body="\n".join(L)+"\n"
    kd=f""".section .rodata,"a"
.p2align 6
.amdhsa_kernel {N}
  .amdhsa_next_free_vgpr 232
  .amdhsa_next_free_sgpr 96
  .amdhsa_accum_offset 232
  .amdhsa_group_segment_fixed_size 0
  .amdhsa_kernarg_size 104
  .amdhsa_user_sgpr_count 2
  .amdhsa_user_sgpr_kernarg_segment_ptr 1
  .amdhsa_system_sgpr_workgroup_id_x 1
  .amdhsa_float_denorm_mode_32 3
.end_amdhsa_kernel
"""
    return body, kd

def header():
    ref=open('parallel_sum__gqa_block_cached__dense_activation_gelu__decode.s.ref').read().split("\n")
    out=[]
    for l in ref:
        if l.startswith("; @launch"):
            out.append(f"; @launch grid=(256,1,1) block=(320,1,1) lds={LDS_END}")
            break
        out.append(l)
    return "\n".join(out)+"\n"

def final(cfg, path):
    body,kd=gen(cfg)
    open(path,"w").write(header()+'.amdgcn_target "amdgcn-amd-amdhsa--gfx950"\n.text\n'+body+kd)

def bench(cfgs, path):
    sys.path.insert(0,'bench')
    from genstream import meta
    s='.amdgcn_target "amdgcn-amd-amdhsa--gfx950"\n'
    ks=[]; args=[]
    for c in cfgs:
        body,kd=gen(c)
        s+=".text\n"+body+kd.replace("kernarg_size 104","kernarg_size 112")
        ks.append((c.name,232,320)); args.append(f"{c.name} 256 320 {LDS_END}")
    s+=meta(ks)
    open(path+".s","w").write(s); open(path+".args","w").write(" @ ".join(args))

def mk(name, **kw):
    c=Cfg(); c.name=name
    for k,v in kw.items():
        assert hasattr(c,k), k
        setattr(c,k,v)
    return c

if __name__=="__main__":
    if sys.argv[1]=="final":
        kw=eval(sys.argv[3]) if len(sys.argv)>3 else {}
        final(mk(KNAME,**kw), sys.argv[2])
    else:
        bench([mk(n,**kw) for n,kw in eval(sys.argv[3])], sys.argv[2])
```

```python
import sys, struct, math

KNAME = "parallel_sum__gqa_block_cached__dense_activation_gelu__decode_kernel"
def f2u(f): return struct.unpack('<I', struct.pack('<f', f))[0]

class Cfg:
    name = KNAME
    rot = 0
    pace = 6
    infl = 5
    stamps = False
    smap = {}
    wnt = "nt"
    qsleep = 16
    sleep1 = 2
    sleep2 = 0
    mlsleep = 100
    fc = 56
    nomlp = False
    notail = False
    auxnull = False
    nowo = False
    nobar = False
    wmaj = False
    order = [0,4,2,6,1,5,3,7]
    vorder = [0,1,2,3,4,5,6,7]
    sent = True
    sent2 = False
    cpol = 'sc1'
    cgate = 1
    now1 = False
    now2 = False
    mgate = 6
    wodelay = 0
    wolate = 2
    blk = 4
    rotH = 12
    rotS = 0
    ackw = True
    touch = 'sc1'
    h2delay = 8
    h1delay = 0
    mix = True
    tdiag = False
    qdelay = 50
    mldelay = 100
    prio2 = 0
    nowq = False
    noqx = False
    opol = 'sc1'
    lpol = 'sc1'
    probe = None
    pool = True
    pinfl = 10
    pclaim = 4
    first = 8
    fb = None
    qgate = 6
    cnt = 'nt'
    noml = False
    noopub = False
    mimic = True
    fast1 = 0
    fast2 = 0
    fthr = 64
    vpre = True
    agate = 6
    gran = 1
    thr = None
    dbgout = False

RING=0; SC=131072; WBUF=SC+8192; XN=WBUF+16384; QB=XN+1024; MX=QB+1024; FB=MX+64; RDY=FB+32; DONE=FB+36; QRDY=FB+40; KCNT=FB+44; LDS_END=FB+64
QBOX=0x1000; MLBOX=0x8000; OBOX=0x10000; PBOX=0x100000; MBOX=0x180000; SBOX=0x200000; CNT=0x280000; CSTR=4352; STAMP=0x20000000
SPIN_LIMIT = 1<<16
CEXP = 0.0625*math.log2(math.e)

def tt(f):
    r=0
    for idx in range(8):
        if f((idx>>2)&1,(idx>>1)&1,idx&1): r|=1<<idx
    return r

def gen(cfg):
    L=[]
    def A(s):
        for line in s.split("\n"):
            t=line.strip()
            L.append(t if t.endswith(":") else "    "+t)
    N=cfg.name
    pre = "L" if N==KNAME else f"L_{N}"
    uid=[0]
    def lab(p):
        uid[0]+=1; return f"{pre}_{p}{uid[0]}"
    def nop(n):
        if n>0: A(f"s_nop {n-1}")
    sX,sK,sV,sWQ,sWO,sW1,sB1=16,18,20,22,24,28,30
    sW2,sB2,sOUT,sDBG,sWS=32,34,36,38,40
    SRDK,SRDV,SRDA,SRDW=44,48,52,56
    sWAVE=3
    def srd(d, p, size):
        A(f"s_mov_b32 s{d}, s{p}\ns_mov_b32 s{d+1}, s{p+1}\ns_mov_b32 s{d+2}, {size:#x}\ns_mov_b32 s{d+3}, 0x20000")
    def stamp(k):
        if cfg.stamps:
            if isinstance(k,str):
                if k not in cfg.smap: return
                k=cfg.smap[k]
            elif k in cfg.smap.values(): return
            A(f"s_memrealtime s[{80+2*k}:{81+2*k}]")
    DPP="row_mask:0xf bank_mask:0xf"
    def rowred(op, v, rors):
        for r in rors:
            nop(2); A(f"{op}_dpp v{v}, v{v}, v{v} row_ror:{r} {DPP}")
    def xrowred(op, v, t):
        A(f"v_mov_b32 v{t}, v{v}"); nop(2); A(f"v_permlane16_swap_b32 v{v}, v{t}"); A(f"{op} v{v}, v{v}, v{t}")
        A(f"v_mov_b32 v{t}, v{v}"); nop(2); A(f"v_permlane32_swap_b32 v{v}, v{t}"); A(f"{op} v{v}, v{v}, v{t}")
    def tred4(a):
        nop(2)
        A(f"v_permlane32_swap_b32 v{a}, v{a+2}\nv_permlane32_swap_b32 v{a+1}, v{a+3}")
        A(f"v_add_f32 v{a}, v{a}, v{a+2}\nv_add_f32 v{a+1}, v{a+1}, v{a+3}")
        nop(2)
        A(f"v_permlane16_swap_b32 v{a}, v{a+1}")
        A(f"v_add_f32 v{a}, v{a}, v{a+1}")
    def rbf(d, s):
        A(f"v_cvt_pk_bf16_f32 v{d}, v{s}, v{s}\nv_and_b32 v{d}, 0xffff0000, v{d}")
    def masks(dst, n, t0, t1):
        A(f"v_and_b32 v{t0}, 1, v{n}\nv_lshlrev_b32 v{t0}, 4, v{t0}\nv_mov_b32 v{t1}, 0xffff\nv_lshlrev_b32 v{t1}, v{t0}, v{t1}\nv_bfe_u32 v{t0}, v{n}, 1, 2")
        for r in range(4):
            A(f"v_cmp_eq_u32 vcc, {r}, v{t0}"); nop(2); A(f"v_cndmask_b32 v{dst+r}, 0, v{t1}, vcc")

    def ldswait(addr, va, vd, cnt, need, sleep, mult=16):
        lw=lab("lw"); lwd=lab("lwd")
        A(f"v_mov_b32 v{va}, {addr}\ns_mov_b32 s{cnt}, 0")
        A(f"{lw}:\nds_read_b32 v{vd}, v{va}\ns_add_u32 s{cnt}, s{cnt}, 1\ns_waitcnt lgkmcnt(0)\nv_readfirstlane_b32 s4, v{vd}\ns_cmp_ge_u32 s4, {need}\ns_cbranch_scc1 {lwd}")
        A(f"s_sleep {sleep}\ns_cmp_lt_u32 s{cnt}, {SPIN_LIMIT*mult}\ns_cbranch_scc1 {lw}\n{lwd}:")
    Ldone=f"{pre}_done"; Laux=f"{pre}_aux"
    A(f".globl {N}\n.p2align 8\n.type {N},@function\n{N}:")
    A(f"s_cmp_ge_u32 s2, 256\ns_cbranch_scc1 {Ldone}")
    A("s_load_dwordx16 s[16:31], s[0:1], 0\ns_load_dwordx8 s[32:39], s[0:1], 64\ns_load_dwordx2 s[40:41], s[0:1], 96")
    stamp(0)
    A("v_lshrrev_b32 v1, 6, v0\nv_and_b32 v2, 63, v0")
    nop(1)
    A(f"v_readfirstlane_b32 s{sWAVE}, v1")
    A(f"s_cmp_eq_u32 s{sWAVE}, 4\ns_cbranch_scc1 {Laux}")

    vKO=8; vVO=16; vKA=18; vVA=22; vSA=23; vMASK=24; vMAX=28; vTG=29; vNM=30; vT=31
    QF=32; TF=64; D=96; S2=100; VP=104
    AR=32; ACC=48; P=56; vVP=7
    sRING,sREG,sNEXT,sOFF,sCNT,sC,sT8,sFF,sV0,sLV,sCL,sY,sSCO=60,61,62,63,64,65,66,67,68,69,70,71,72
    sPC=76
    A("v_lshrrev_b32 v3, 5, v2\nv_and_b32 v4, 31, v2\nv_lshlrev_b32 v5, 2, v3\nv_xor_b32 v4, v4, v5\nv_lshlrev_b32 v4, 4, v4\nv_lshl_add_u32 v4, v3, 9, v4")
    for j in range(8):
        c=(8*(j&1)+(j>>1))*16 | (4096 if j>=4 else 0)
        A(f"v_xor_b32 v{vKO+j}, {c:#x}, v4")
    B=cfg.blk; lb=B.bit_length()-1
    sHB,sRS=78,79
    A(f"s_lshl_b32 s{sRING}, s{sWAVE}, 15\ns_lshr_b32 s4, s2, 5\ns_lshl_b32 s{sHB}, s4, 25\ns_lshl_b32 s5, s{sWAVE}, {13+lb if cfg.wmaj else 13}\ns_add_u32 s{sHB}, s{sHB}, s5")
    A(f"s_mul_i32 s{sNEXT}, s4, {cfg.rotH}\ns_and_b32 s5, s2, 31\ns_mul_i32 s{sRS}, s5, {cfg.rotS}\ns_lshl_b32 s{sREG}, s5, {15+lb}\ns_add_u32 s{sREG}, s{sREG}, s{sHB}\ns_mov_b32 s{sV0}, s{sNEXT}")
    def taddr(dst, t, base, rs):
        A(f"s_bfe_u32 s4, s{t}, {((5-lb)<<16)|lb:#x}\ns_lshl_b32 s4, s4, {20+lb}\ns_add_u32 s{dst}, s{base}, s4")
        if lb:
            A(f"s_add_u32 s4, s{t}, s{rs}\ns_and_b32 s4, s4, {B-1}\ns_lshl_b32 s4, s4, {13 if cfg.wmaj else 15}\ns_add_u32 s{dst}, s{dst}, s4")
    A("s_waitcnt lgkmcnt(0)")
    srd(SRDK,sK,1<<28)
    def gate(j, lim):
        if lim is None: return "s_nop 0"
        return f"s_waitcnt vmcnt({lim[j&1]-1})"
    INF=cfg.infl if isinstance(cfg.infl,tuple) else (cfg.infl,cfg.infl)
    PINF=cfg.pinfl if isinstance(cfg.pinfl,tuple) else (cfg.pinfl,cfg.pinfl)
    def claim():
        A(f"s_mov_b32 s{sCL}, 1\ns_atomic_add s{sCL}, s[{sPC}:{sPC+1}], 0 glc")
    def steps(slot, kind, lim=INF, doclaim=False):
        def mk(j):
            def f():
                if kind is None: return
                pj=cfg.order[j]; half=pj>>2; jj=pj&3
                sk=None
                if kind=='P':
                    sk=lab("ps")
                    if j==0:
                        ok=lab("po")
                        if cfg.wolate:
                            A(f"s_waitcnt lgkmcnt(0)\ns_mov_b32 s{sSCO+slot}, -1\ns_cmp_lt_u32 s{sCL}, 32\ns_cbranch_scc1 {ok}")
                            A(f"v_mov_b32 v{vT}, {DONE}\nds_write_b32 v{vT}, v{vT}\ns_branch {sk}\n{ok}:")
                        else:
                            A(f"s_waitcnt lgkmcnt(0)\ns_mov_b32 s{sSCO+slot}, -1\ns_cmp_ge_u32 s{sCL}, 32\ns_cbranch_scc1 {sk}")
                        A(f"s_and_b32 s5, s{sCL}, 7\ns_lshr_b32 s6, s{sCL}, 3\ns_lshl_b32 s7, s5, 10\ns_lshl_b32 s8, s6, 8\ns_add_u32 s{sSCO+slot}, s7, s8")
                        A(f"s_and_b32 s7, s2, 0x18\ns_or_b32 s5, s5, s7\ns_mul_i32 s7, s5, {cfg.rotS}\ns_lshl_b32 s5, s5, {15+lb}\ns_add_u32 s5, s5, s{sHB}\ns_add_u32 s6, s6, s{sV0}")
                        taddr(sOFF,6,5,7)
                    else:
                        A(f"s_cmp_eq_u32 s{sSCO+slot}, -1\ns_cbranch_scc1 {sk}")
                elif j==0:
                    taddr(sOFF,sNEXT,sREG,sRS)
                    A(f"s_add_u32 s{sNEXT}, s{sNEXT}, 1")
                if (kind=='P' or doclaim) and j==cfg.pclaim: claim()
                vo = vKO+pj if kind=='K' else vVO+half
                sr = SRDK if kind=='K' else SRDV
                A(f"s_add_u32 m0, s{sRING}, {slot*8192+half*4096}\n{gate(j, PINF if kind=='P' else lim)}")
                A(f"buffer_load_dwordx4 v{vo}, s[{sr}:{sr+3}], s{sOFF} offen offset:{jj*1024} nt lds")
                if sk: A(f"{sk}:")
            return f
        return [mk(j) for j in range(8)]
    def weave(st, sl):
        for u in range(8):
            st[u]()
            if u<len(sl): sl[u]()
    for j,f in enumerate(steps(0,'K',None)[:cfg.first]): f()
    NB = cfg.nobar and cfg.pool and not cfg.auxnull
    if NB: A("s_barrier")
    srd(SRDV,sV,1<<28)
    A(f"s_load_dword s{sT8}, s[{sWS}:{sWS+1}], 0")
    A(f"v_lshlrev_b32 v{vVO}, 4, v2\nv_add_u32 v{vVO+1}, 0x1000, v{vVO}")
    A("v_lshrrev_b32 v3, 4, v2\nv_and_b32 v4, 15, v2")
    A("v_and_b32 v5, 3, v4\nv_lshlrev_b32 v5, 2, v5\nv_lshrrev_b32 v6, 2, v4\nv_add_u32 v5, v5, v6")
    A(f"v_xor_b32 v6, v3, v4\nv_lshlrev_b32 v6, 4, v6\nv_lshl_add_u32 v6, v5, 9, v6\nv_add_u32 v6, s{sRING}, v6")
    for q in range(4): A(f"v_xor_b32 v{vKA+q}, {q*64}, v6")
    A(f"v_lshlrev_b32 v6, 4, v4\nv_lshl_add_u32 v6, v3, 9, v6\nv_add_u32 v{vVA}, s{sRING}, v6")
    A(f"s_lshl_b32 s{sCNT}, s{sWAVE}, 11\ns_add_u32 s{sCNT}, s{sCNT}, {SC}")
    A(f"v_lshrrev_b32 v5, 3, v4\nv_lshlrev_b32 v6, 5, v5\nv_lshl_add_u32 v6, v3, 3, v6\nv_add_u32 v{vSA}, s{sCNT}, v6")
    A(f"v_lshlrev_b32 v7, 9, v5\nv_lshl_add_u32 v7, v3, 4, v7\nv_add_u32 v7, {QB}, v7")
    masks(vMASK,4,5,6)
    A(f"v_mov_b32 v{vMAX}, 0xff800000")
    A(f"v_subrev_u32 v{vT}, s{sRING}, v{vVA}\nv_add_u32 v1, 0x1000, v{vT}")
    for f in steps(0,'K')[cfg.first:]: f()
    for slot in (1,2):
        for f in steps(slot,'K'): f()
    for i in range(4):
        taddr(sOFF,sV0,sREG,sRS)
        for u in cfg.vorder:
            o=(u>>1)*2048+(u&1)*256
            vo = vT if o<4096 else 1
            A(gate(u,INF))
            A(f"buffer_load_dwordx4 v[{VP+32*i+4*u}:{VP+32*i+4*u+3}], v{vo}, s[{SRDV}:{SRDV+3}], s{sOFF} offen offset:{o&4095} nt")
        A(f"s_add_u32 s{sV0}, s{sV0}, {1 if i<3 else 25}")
    A(f"s_waitcnt lgkmcnt(0)\ns_add_u32 s{sT8}, s{sT8}, 1\ns_and_b32 s{sT8}, s{sT8}, 0xff\ns_mov_b32 s{sFF}, 0xff\nv_mov_b32 v{vTG}, s{sT8}")
    srd(SRDW,sWS,1<<30)
    if NB: ldswait(QRDY, vT, D, sCNT, 1, 2)
    else: A("s_barrier")
    for jj in range(8): A(f"ds_read_b128 v[{QF+4*jj}:{QF+4*jj+3}], v7 offset:{jj*64}")

    def ktile(slot, kind):
        def s0():
            A("s_waitcnt vmcnt(16)")
            for jj in range(8):
                A(f"ds_read_b128 v[{TF+4*jj}:{TF+4*jj+3}], v{vKA+(jj&3)} offset:{slot*8192+(jj>>2)*256}")
        def mf(r):
            def f():
                if r[0]==0: A("s_waitcnt lgkmcnt(0)")
                for jj in r:
                    c = "0" if jj==0 else f"v[{D}:{D+3}]"
                    A(f"v_mfma_f32_16x16x32_bf16 v[{D}:{D+3}], v[{TF+4*jj}:{TF+4*jj+3}], v[{QF+4*jj}:{QF+4*jj+3}], {c}")
            return f
        def s3():
            nop(5)
            A(f"v_cvt_pk_bf16_f32 v{S2}, v{D}, v{D+1}\nv_cvt_pk_bf16_f32 v{S2+1}, v{D+2}, v{D+3}")
            A(f"v_max3_f32 v{vMAX}, v{vMAX}, v{D}, v{D+1}\nv_max3_f32 v{vMAX}, v{vMAX}, v{D+2}, v{D+3}")
            A(f"ds_write_b64 v{vSA}, v[{S2}:{S2+1}] offset:{slot*64}")
        weave(steps((slot+3)&3,kind),[s0,mf([0,1,2,3]),mf([4,5,6,7]),s3])
    def pcalc():
        A(f"v_lshlrev_b32 v{P}, 16, v{S2}\nv_and_b32 v{P+1}, 0xffff0000, v{S2}\nv_lshlrev_b32 v{P+2}, 16, v{S2+1}\nv_and_b32 v{P+3}, 0xffff0000, v{S2+1}")
        for t in range(4): A(f"v_fma_f32 v{P+t}, v{P+t}, s{sC}, v{vNM}")
        for t in range(4): A(f"v_exp_f32 v{P+t}, v{P+t}")
        nop(1)
        for t in range(4): A(f"v_cvt_pk_bf16_f32 v{P+t}, v{P+t}, v{P+t}")
    def pmask():
        for t in range(4):
            for r in range(4): A(f"v_and_b32 v{AR+4*t+r}, v{P+t}, v{vMASK+r}")
    def pv(src, us):
        for u in us:
            t=u>>1; h=u&1
            A(f"v_mfma_f32_16x16x32_bf16 v[{ACC+4*h}:{ACC+4*h+3}], v[{AR+4*t}:{AR+4*t+3}], v[{src+4*u}:{src+4*u+3}], v[{ACC+4*h}:{ACC+4*h+3}]")
    def vtile(slot, kind, waitn, scoff=None, regs=None, pooled=False, doclaim=False):
        def s0():
            if pooled: A(f"v_add_u32 v{vT}, s{sSCO+slot}, v{vSA}\nds_read_b64 v[{S2}:{S2+1}], v{vT}")
            else: A(f"ds_read_b64 v[{S2}:{S2+1}], v{vSA} offset:{slot*64 if scoff is None else scoff}")
            A("s_waitcnt lgkmcnt(0)"); pcalc()
        def s1():
            if waitn=='y':
                go=lab("wy")
                A("s_waitcnt vmcnt(16)")
                for y in (2,1): A(f"s_cmp_ge_i32 s{sY}, {y}\ns_cbranch_scc1 {go}\ns_waitcnt vmcnt({8*(y-1)})")
                A(f"{go}:")
            else: A(f"s_waitcnt vmcnt({waitn})")
            for u in range(8):
                A(f"ds_read_b128 v[{TF+4*u}:{TF+4*u+3}], v{vVA} offset:{slot*8192+(u>>1)*2048+(u&1)*256}")
            pmask()
            A("s_waitcnt lgkmcnt(0)")
        sl=[s0,s1,lambda:pv(TF,[0,1,2,3]),lambda:pv(TF,[4,5,6,7])]
        if regs is not None:
            def r0():
                A(f"ds_read_b64 v[{S2}:{S2+1}], v{vSA} offset:{slot*64}\ns_waitcnt lgkmcnt(0)"); pcalc()
            sl+=[r0,pmask,lambda:pv(regs,[0,1,2,3]),lambda:pv(regs,[4,5,6,7])]
        weave(steps((slot+3)&3,kind,doclaim=doclaim),sl)
        if kind=='P':
            A(f"s_cmp_eq_u32 s{sSCO+((slot+3)&3)}, -1\ns_subb_u32 s{sY}, s{sY}, 0")

    lk=lab("kloop")
    A(f"s_mov_b32 s{sCNT}, 7")
    A(f"{lk}:")
    for s in range(4): ktile(s,'K')
    A(f"v_add_u32 v{vSA}, 256, v{vSA}")
    A(f"s_sub_u32 s{sCNT}, s{sCNT}, 1\ns_cmp_lg_u32 s{sCNT}, 0\ns_cbranch_scc1 {lk}")
    ktile(0,'K')
    A(f"s_add_u32 s{sNEXT}, s{sNEXT}, 4")
    for s in range(1,4): ktile(s,'V')
    A(f"v_subrev_u32 v{vSA}, {7*256}, v{vSA}")
    for r in range(8): A(f"v_mov_b32 v{ACC+r}, 0")
    xrowred("v_max_f32", vMAX, vT)
    rbf(vMAX,vMAX)
    A(f"v_bfe_u32 v3, v2, 3, 1\nv_lshlrev_b32 v3, 4, v3\nv_add_u32 v3, {MX}, v3")
    A(f"s_lshl_b32 s{sCNT}, s{sWAVE}, 2\nv_add_u32 v4, s{sCNT}, v3")
    if NB:
        A(f"ds_write_b32 v4, v{vMAX}\nv_mov_b32 v3, {KCNT}\nv_mov_b32 v4, 1\ns_mov_b32 s{sC}, {f2u(CEXP):#x}\ns_mov_b64 exec, 1\nds_add_u32 v3, v4\ns_mov_b64 exec, -1")
    else:
        A(f"ds_write_b32 v4, v{vMAX}\ns_waitcnt lgkmcnt(0)\ns_barrier")
        A(f"ds_read_b128 v[{D}:{D+3}], v3\ns_mov_b32 s{sC}, {f2u(CEXP):#x}\ns_waitcnt lgkmcnt(0)")
        A(f"v_max_f32 v{vMAX}, v{D}, v{D+1}\nv_max3_f32 v{vMAX}, v{vMAX}, v{D+2}, v{D+3}")
    A(f"v_mul_f32 v{vNM}, s{sC}, v{vMAX}\nv_sub_f32 v{vNM}, 0, v{vNM}")
    A("v_lshrrev_b32 v6, 5, v2\nv_lshlrev_b32 v6, 10, v6\nv_and_b32 v5, 15, v2\nv_lshl_add_u32 v6, v5, 5, v6\nv_bfe_u32 v5, v2, 4, 1\nv_lshl_add_u32 v6, v5, 4, v6")
    A(f"v_add_u32 v6, s{sRING}, v6")
    A(f"s_lshl_b32 s{sCNT}, s{sWAVE}, 9\nv_lshlrev_b32 v4, 4, v2\nv_add_u32 v4, s{sCNT}, v4\nv_add_u32 v5, 0x10000, v4")
    A(f"s_lshr_b32 s{sCNT}, s{sWAVE}, 1\ns_lshl_b32 s{sCNT}, s{sCNT}, 2\ns_add_u32 s{sCNT}, s{sCNT}, {FB}\nv_mov_b32 v3, s{sCNT}")
    lv=lab("vloop")
    for s in range(4): vtile(s,'V',16,scoff=256+s*64,regs=VP+32*s)
    A(f"v_add_u32 v{vSA}, 512, v{vSA}")
    A(f"s_mov_b32 s{sCNT}, {4 if cfg.pool else 5}")
    A(f"{lv}:")
    for s in range(4): vtile(s,'V',16)
    A(f"v_add_u32 v{vSA}, 256, v{vSA}")
    A(f"s_sub_u32 s{sCNT}, s{sCNT}, 1\ns_cmp_lg_u32 s{sCNT}, 0\ns_cbranch_scc1 {lv}")
    if cfg.pool:
        lw=lab("rw"); lwd=lab("rwd")
        A(f"v_mov_b32 v{vT}, {RDY}\ns_mov_b32 s{sCNT}, 0")
        A(f"{lw}:\nds_read_b32 v{D}, v{vT}\ns_add_u32 s{sCNT}, s{sCNT}, 1")
        A(f"s_lshr_b32 s4, s2, 3\ns_lshl_b32 s5, s4, 2\ns_add_u32 s5, s5, s{sWAVE}\ns_mul_i32 s5, s5, {CSTR}\ns_add_u32 s5, s5, {CNT}\ns_add_u32 s{sPC}, s{sWS}, s5\ns_addc_u32 s{sPC+1}, s{sWS+1}, 0")
        A(f"s_mov_b32 s{sY}, 2")
        A(f"s_waitcnt lgkmcnt(0)\nv_readfirstlane_b32 s4, v{D}\ns_cmp_lg_u32 s4, 0\ns_cbranch_scc1 {lwd}")
        A(f"s_sleep 4\ns_cmp_lt_u32 s{sCNT}, {SPIN_LIMIT*16}\ns_cbranch_scc1 {lw}\n{lwd}:")
        vtile(0,'V',16,doclaim=True)
        for s in range(1,4): vtile(s,'P','y')
        if NB:
            A(f"v_lshrrev_b32 v{vT}, 5, v2\nv_lshlrev_b32 v{D+2}, 2, v{vT}\nv_add_u32 v{D+2}, {FB+16}, v{D+2}\nds_read_b32 v{D}, v{D+2}")
            A(f"s_lshl_b32 s4, s{sWAVE}, 2\ns_add_u32 s4, s4, {MX}\nv_lshlrev_b32 v{vT}, 4, v{vT}\nv_add_u32 v{vT}, s4, v{vT}\nds_read_b32 v{D+1}, v{vT}")
        else:
            A(f"v_lshrrev_b32 v{vT}, 5, v2\nv_lshlrev_b32 v{vT}, 2, v{vT}\nv_add_u32 v{vT}, {FB+8}, v{vT}\nds_read_b32 v{D}, v{vT}")
        A(f"v_bfe_u32 v{vT}, v2, 3, 1\nv_lshlrev_b32 v{vSA}, 5, v{vT}\nv_lshlrev_b32 v{vT}, 2, v{vT}\nv_add_u32 v{vT}, {FB+16}, v{vT}\nds_read_b32 v{vNM}, v{vT}")
        A(f"v_lshrrev_b32 v{vT}, 4, v2\nv_lshl_add_u32 v{vSA}, v{vT}, 3, v{vSA}\ns_lshl_b32 s4, s{sWAVE}, 6\ns_add_u32 s4, s4, {WBUF}\nv_add_u32 v{vSA}, s4, v{vSA}")
        A("s_waitcnt lgkmcnt(0)")
        if NB:
            A(f"v_mul_f32 v{D+1}, s{sC}, v{D+1}\nv_add_f32 v{D}, v{D}, v{D+1}\nv_exp_f32 v{D}, v{D}"); nop(1)
        for r in range(8): A(f"v_mul_f32 v{ACC+r}, v{ACC+r}, v{D}")
        lp=lab("ploop"); le=lab("pend")
        A(f"{lp}:")
        for s in range(4):
            A(f"s_cmp_eq_u32 s{sSCO+s}, -1\ns_cbranch_scc1 {le}")
            vtile(s,'P','y',pooled=True)
        A(f"s_branch {lp}\n{le}:")
    else:
        vtile(0,'V',16); vtile(1,None,16); vtile(2,None,8); vtile(3,None,0)
    A(f"s_lshl_b32 s{sOFF}, s2, 11\ns_add_u32 s{sOFF}, s{sOFF}, {OBOX}")
    nop(7)
    A(f"ds_write_b128 v6, v[{ACC}:{ACC+3}]\nds_write_b128 v6, v[{ACC+4}:{ACC+7}] offset:512")
    A("s_waitcnt lgkmcnt(0)\ns_barrier")
    A("s_mov_b32 exec_hi, 0")
    A(f"ds_read_b128 v[{TF}:{TF+3}], v4\nds_read_b128 v[{TF+4}:{TF+7}], v4 offset:32768\nds_read_b128 v[{TF+8}:{TF+11}], v5\nds_read_b128 v[{TF+12}:{TF+15}], v5 offset:32768\nds_read_b32 v{TF+16}, v3")
    A("s_waitcnt lgkmcnt(3)")
    for r in range(4): A(f"v_add_f32 v{TF+r}, v{TF+r}, v{TF+4+r}")
    A("s_waitcnt lgkmcnt(1)")
    for r in range(4): A(f"v_add_f32 v{TF+8+r}, v{TF+8+r}, v{TF+12+r}")
    for r in range(4): A(f"v_add_f32 v{TF+r}, v{TF+r}, v{TF+8+r}")
    A("s_waitcnt lgkmcnt(0)")
    for r in range(4): A(f"v_mul_f32 v{TF+r}, v{TF+r}, v{TF+16}")
    for r in range(4):
        if cfg.sent: A(f"v_min_u32 v{TF+r}, -2, v{TF+r}")
        else: A(f"v_bfi_b32 v{TF+r}, s{sFF}, v{vTG}, v{TF+r}")
    if cfg.tdiag: A("s_memrealtime s[82:83]")
    if not cfg.noopub: A(f"buffer_store_dwordx4 v[{TF}:{TF+3}], v4, s[{SRDW}:{SRDW+3}], s{sOFF} offen {cfg.opol}")
    if cfg.tdiag:
        A(f"s_waitcnt vmcnt(0)\ns_memrealtime s[84:85]\ns_waitcnt lgkmcnt(0)\ns_cmp_lg_u32 s{sWAVE}, 0\ns_cbranch_scc1 {Ldone}")
        A(f"s_lshl_b32 s4, s2, 6\ns_add_u32 s4, s4, {STAMP+0x100000:#x}\ns_mov_b64 exec, 1\nv_mov_b32 v1, 0\nv_mov_b32 v{TF}, s82\nv_mov_b32 v{TF+1}, s83\nv_mov_b32 v{TF+2}, s84\nv_mov_b32 v{TF+3}, s85")
        A(f"buffer_store_dwordx4 v[{TF}:{TF+3}], v1, s[{SRDW}:{SRDW+3}], s4 offen")
    A("s_endpgm")

    vL16=3; vWO_=4; vTR=5; vXA=6
    X=8; F=12; T=20
    XF=32; WF=88
    WT=144
    PA=208
    AM=216
    vT8=220; vFX=221; vG1=222; vG2=223; vPS=224; vTO=225; vFM=226; vH=227
    AT=88
    sE,sTAG,sCQ,sO2,sSPIN,sCM,sFF,sA,sB,sNM=60,61,62,63,64,65,78,66,67,71
    A(f"{Laux}:")
    lend=lab("end")
    if cfg.auxnull:
        A("s_waitcnt lgkmcnt(0)"); srd(SRDW,sWS,1<<30)
        A("s_barrier"); stamp(3); A("s_barrier"); stamp(4); A("s_barrier"); stamp(5); A(f"s_branch {lend}")
    A("s_setprio 3")
    if NB:
        A(f"v_mov_b32 v{X}, 0\nv_mov_b32 v{X+1}, 0\nv_mov_b32 v{X+2}, 0\nv_mov_b32 v{X+3}, 0\nv_mov_b32 v{T}, {RDY}\nds_write_b128 v{T}, v[{X}:{X+3}]")
    A(f"v_lshrrev_b32 v7, 1, v2\nv_and_b32 v{T}, 1, v2\nv_lshlrev_b32 v{T}, 4, v{T}")
    A(f"v_lshl_add_u32 v{vWO_}, v7, 13, v{T}\nv_lshlrev_b32 v{vL16}, 4, v2")
    if cfg.mix:
        A(f"s_and_b32 s4, s2, 7\ns_lshr_b32 s5, s2, 5\ns_add_u32 s5, s5, s4\ns_and_b32 s5, s5, 7\ns_lshl_b32 s5, s5, 2\ns_lshl_b32 s{sCQ}, s4, 5\ns_add_u32 s{sCQ}, s{sCQ}, s5\ns_bfe_u32 s5, s2, 0x20003\ns_add_u32 s{sCQ}, s{sCQ}, s5\ns_lshl_b32 s{sO2}, s{sCQ}, 5")
    else:
        A(f"s_and_b32 s{sCQ}, s2, 7\ns_lshl_b32 s{sCQ}, s{sCQ}, 5\ns_lshr_b32 s{sO2}, s2, 3\ns_add_u32 s{sCQ}, s{sCQ}, s{sO2}\ns_lshl_b32 s{sO2}, s{sCQ}, 5")
    A("s_waitcnt lgkmcnt(0)")
    stamp('karg')
    A(f"s_load_dword s{sE}, s[{sWS}:{sWS+1}], 0")
    srd(SRDA,sX,896)
    A(f"buffer_load_dwordx4 v[{X}:{X+3}], v{vL16}, s[{SRDA}:{SRDA+3}], 0 offen")
    if NB: A("s_barrier")
    srd(SRDK,sWQ,448*4096*2)
    def wdma(sr, step, gate=None):
        for i in range(14):
            if gate is not None: A(f"s_waitcnt vmcnt({gate})")
            A(f"s_mov_b32 m0, {WBUF+i*1024}")
            if i: A(f"s_add_u32 s{sO2}, s{sO2}, {step}")
            else: nop(1)
            A(f"buffer_load_dwordx4 v{vWO_}, s[{sr}:{sr+3}], s{sO2} offen {cfg.cnt} lds")
    if not cfg.nowq: wdma(SRDK,32*8192,cfg.qgate)
    srd(SRDW,sWS,1<<30)
    A(f"v_lshrrev_b32 v{T}, 4, v2\nv_bfe_u32 v{T+1}, v2, 2, 2\nv_lshl_add_u32 v{T+1}, v{T}, 3, v{T+1}\nv_and_b32 v{T+2}, 3, v2\nv_lshlrev_b32 v{T+2}, 3, v{T+2}\nv_add_u32 v{T+2}, {WBUF}, v{T+2}")
    A(f"v_lshl_add_u32 v{vTR}, v{T+1}, 5, v{T+2}\nv_lshl_add_u32 v{vG1}, v{T+1}, 7, v{T+2}")
    A(f"v_lshlrev_b32 v{T}, 4, v{T}\nv_add_u32 v{vXA}, {XN}, v{T}")
    A("v_cmp_gt_u32 s[74:75], 56, v2")
    stamp('issued')
    A("s_waitcnt vmcnt(14)")
    stamp('xland')
    for r in range(4):
        A(f"v_lshlrev_b32 v{F+2*r}, 16, v{X+r}\nv_and_b32 v{F+2*r+1}, 0xffff0000, v{X+r}")
    A(f"v_add_f32 v{T}, v{F}, v{F+1}\nv_add_f32 v{T+1}, v{F+2}, v{F+3}\nv_add_f32 v{T+2}, v{F+4}, v{F+5}\nv_add_f32 v{T+3}, v{F+6}, v{F+7}")
    A(f"v_add_f32 v{T}, v{T}, v{T+1}\nv_add_f32 v{T+2}, v{T+2}, v{T+3}\nv_add_f32 v{T}, v{T}, v{T+2}")
    rowred("v_add_f32",T,[1,2,4,8]); xrowred("v_add_f32",T,T+1)
    A(f"v_mul_f32 v{T}, {f2u(1.0/448):#x}, v{T}")
    A(f"v_sub_f32 v{T+2}, v{F}, v{T}\nv_mul_f32 v{T+1}, v{T+2}, v{T+2}")
    for r in range(1,8):
        A(f"v_sub_f32 v{T+2}, v{F+r}, v{T}\nv_fmac_f32 v{T+1}, v{T+2}, v{T+2}")
    A(f"v_cndmask_b32 v{T+1}, 0, v{T+1}, s[74:75]")
    rowred("v_add_f32",T+1,[1,2,4,8]); xrowred("v_add_f32",T+1,T+2)
    A(f"v_mul_f32 v{T+1}, {f2u(1.0/448):#x}, v{T+1}")
    rbf(T,T); rbf(T+1,T+1)
    A(f"v_add_f32 v{T+1}, {f2u(1e-5):#x}, v{T+1}"); rbf(T+1,T+1)
    A(f"v_sqrt_f32 v{T+1}, v{T+1}"); nop(1); rbf(T+1,T+1)
    A(f"v_rcp_f32 v{T+2}, v{T+1}")
    for r in range(8): A(f"v_sub_f32 v{F+r}, v{F+r}, v{T}")
    for r in range(4): A(f"v_cvt_pk_bf16_f32 v{X+r}, v{F+2*r}, v{F+2*r+1}")
    for r in range(4): A(f"v_lshlrev_b32 v{F+2*r}, 16, v{X+r}\nv_and_b32 v{F+2*r+1}, 0xffff0000, v{X+r}")
    for r in range(8):
        A(f"v_mul_f32 v{T+3}, v{F+r}, v{T+2}\nv_fma_f32 v{T+4}, -v{T+3}, v{T+1}, v{F+r}\nv_fma_f32 v{F+r}, v{T+4}, v{T+2}, v{T+3}")
    for r in range(4): A(f"v_cvt_pk_bf16_f32 v{X+r}, v{F+2*r}, v{F+2*r+1}")
    A(f"v_add_u32 v{T}, {XN}, v{vL16}\nds_write_b128 v{T}, v[{X}:{X+3}]\ns_waitcnt lgkmcnt(0)")
    for jj in range(14): A(f"ds_read_b128 v[{XF+4*jj}:{XF+4*jj+3}], v{vXA} offset:{jj*64}")
    stamp('lndone')
    A("s_waitcnt vmcnt(0)")
    stamp('wqland')
    for jj in range(14):
        A(f"ds_read_b64_tr_b16 v[{WF+4*jj}:{WF+4*jj+1}], v{vTR} offset:{jj*1024}\nds_read_b64_tr_b16 v[{WF+4*jj+2}:{WF+4*jj+3}], v{vTR} offset:{jj*1024+128}")
    A(f"s_waitcnt lgkmcnt(0)")
    for jj in range(14):
        c="0" if jj==0 else f"v[{T}:{T+3}]"
        A(f"v_mfma_f32_16x16x32_bf16 v[{T}:{T+3}], v[{XF+4*jj}:{XF+4*jj+3}], v[{WF+4*jj}:{WF+4*jj+3}], {c}")
    A(f"s_mul_i32 s{sTAG}, s{sE}, 0x9E3779B1\ns_add_u32 s{sTAG}, s{sTAG}, 0x7F4A7C15")
    A(f"s_add_u32 s{sFF}, s{sE}, 1\ns_and_b32 s{sFF}, s{sFF}, 0xff\nv_mov_b32 v{vT8}, s{sFF}\ns_mov_b32 s{sFF}, 0xff\ns_mov_b32 s{sNM}, 0xffffff00")
    A(f"s_lshl_b32 s{sO2}, s{sCQ}, 6\ns_add_u32 s{sO2}, s{sO2}, {QBOX}\nv_lshlrev_b32 v{T+6}, 3, v7\nv_mov_b32 v{T+5}, s{sTAG}")
    A(f"v_mov_b32_dpp v{T+1}, v{T} quad_perm:[1,1,3,3] {DPP}")
    A(f"v_cvt_pk_bf16_f32 v{T+4}, v{T}, v{T+1}")
    A("s_mov_b64 exec, 0x5555")
    if not cfg.noqx: A(f"buffer_store_dwordx2 v[{T+4}:{T+5}], v{T+6}, s[{SRDW}:{SRDW+3}], s{sO2} offen sc1")
    A("s_mov_b64 exec, -1")
    stamp(2)
    TT1=tt(lambda a,b,t:(a^t)|(b^t)); TT2=tt(lambda a,b,c:(a|b)&c)
    def poll(loads, soff, mode, sleep, fast=0, fthr=None):
        PM=4
        lp=lab("poll"); ld=lab("polld")
        for i,(d,vo,imm,lm) in enumerate(loads):
            if lm is None: A(f"s_mov_b64 s[{PM+2*i}:{PM+2*i+1}], -1")
            else: A(f"s_mov_b32 s{PM+2*i}, {lm&0xffffffff:#x}\ns_mov_b32 s{PM+2*i+1}, {lm>>32:#x}")
        A(f"s_mov_b32 s{sSPIN}, 0\ns_mov_b32 s14, 999")
        A(f"{lp}:")
        for i,(d,vo,imm,lm) in enumerate(loads):
            sk=lab("sk")
            A(f"s_mov_b64 exec, s[{PM+2*i}:{PM+2*i+1}]\ns_cbranch_execz {sk}")
            A(f"buffer_load_dwordx4 v[{d}:{d+3}], v{vo}, s[{SRDW}:{SRDW+3}], s{soff} offen offset:{imm} {cfg.lpol}")
            A(f"{sk}:")
        A(f"s_mov_b64 exec, -1\ns_add_u32 s{sSPIN}, s{sSPIN}, 1")
        if fast and fthr is not None:
            sk=lab("fs")
            A(f"s_cmp_le_u32 s14, {fthr}\ns_cbranch_scc1 {sk}\ns_waitcnt vmcnt(0)\n{sk}:")
        A(f"s_waitcnt vmcnt({fast})")
        for i,(d,vo,imm,lm) in enumerate(loads):
            if mode=='s':
                A(f"v_max3_u32 v{T+i}, v{d}, v{d+1}, v{d+2}\nv_max_u32 v{T+i}, v{T+i}, v{d+3}")
            elif mode=='q':
                A(f"v_xor_b32 v{T+i}, s{sTAG}, v{d+1}\nv_xor_b32 v{T+4+i}, s{sTAG}, v{d+3}\nv_or_b32 v{T+i}, v{T+i}, v{T+4+i}")
            else:
                A(f"v_bitop3_b32 v{T+i}, v{d}, v{d+1}, v{vT8} bitop3:{TT1:#x}\nv_bitop3_b32 v{T+4+i}, v{d+2}, v{d+3}, v{vT8} bitop3:{TT1:#x}")
                A(f"v_bitop3_b32 v{T+i}, v{T+i}, v{T+4+i}, s{sFF} bitop3:{TT2:#x}")
        for i,(d,vo,imm,lm) in enumerate(loads):
            A(("v_cmp_eq_u32 vcc, -1" if mode=='s' else "v_cmp_ne_u32 vcc, 0")+f", v{T+i}\ns_and_b64 s[{PM+2*i}:{PM+2*i+1}], s[{PM+2*i}:{PM+2*i+1}], vcc")
        if len(loads)>1:
            A(f"s_or_b64 s[12:13], s[{PM}:{PM+1}], s[{PM+2}:{PM+3}]")
            for i in range(2,len(loads)): A(f"s_or_b64 s[12:13], s[12:13], s[{PM+2*i}:{PM+2*i+1}]")
        A(f"s_cbranch_scc0 {ld}")
        if fast and fthr is not None:
            A(f"s_bcnt1_i32_b64 s14, s[{PM}:{PM+1}]")
            for i in range(1,len(loads)): A(f"s_bcnt1_i32_b64 s15, s[{PM+2*i}:{PM+2*i+1}]\ns_add_u32 s14, s14, s15")
            if sleep:
                sk=lab("ns")
                A(f"s_cmp_le_u32 s14, {fthr}\ns_cbranch_scc1 {sk}\ns_sleep {sleep}\n{sk}:")
        elif sleep: A(f"s_sleep {sleep}")
        A(f"s_cmp_lt_u32 s{sSPIN}, {SPIN_LIMIT*4}\ns_cbranch_scc1 {lp}")
        A(f"{ld}:")
    A(f"s_lshr_b32 s{sO2}, s2, 5\ns_lshl_b32 s{sO2}, s{sO2}, 11\ns_add_u32 s{sO2}, s{sO2}, {QBOX}")
    def backoff(n):
        while n>0:
            A(f"s_sleep {min(n,127)}"); n-=127
    backoff(cfg.qdelay)
    if not cfg.noqx: poll([(F,vL16,0,None),(F+4,vL16,1024,None)], sO2, 'q', cfg.qsleep)
    stamp('qrecv')
    if not NB: A(f"v_mov_b32 v{T}, {RDY}\nv_mov_b32 v{T+1}, 0\nds_write2_b32 v{T}, v{T+1}, v{T+1} offset0:0 offset1:1")
    A(f"v_lshlrev_b32 v{T}, 3, v2\nv_add_u32 v{T}, {QB}, v{T}")
    A(f"ds_write2_b32 v{T}, v{F}, v{F+2} offset0:0 offset1:1\nds_write2_b32 v{T}, v{F+4}, v{F+6} offset0:128 offset1:129")
    if NB: A(f"v_mov_b32 v{T}, {QRDY}\nv_mov_b32 v{T+1}, 1\ns_waitcnt lgkmcnt(0)\nds_write_b32 v{T}, v{T+1}")
    else: A("s_waitcnt lgkmcnt(0)\ns_barrier")
    stamp(3)
    if cfg.prio2!=3: A(f"s_setprio {cfg.prio2}")
    if cfg.pool:
        lz=lab("nz")
        A(f"s_and_b32 s4, s2, 7\ns_cbranch_scc1 {lz}")
        A(f"s_lshr_b32 s4, s2, 3\ns_mul_i32 s4, s4, {4*CSTR}\ns_add_u32 s4, s4, {CNT}\nv_mul_u32_u24 v{T}, {CSTR}, v2\nv_mov_b32 v{T+1}, 0\ns_mov_b64 exec, 15")
        A(f"buffer_store_dword v{T+1}, v{T}, s[{SRDW}:{SRDW+3}], s4 offen sc1\ns_mov_b64 exec, -1\n{lz}:")
    if cfg.probe is not None and cfg.probe[0]=='g':
        A(f"s_lshl_b32 s4, s2, 2\ns_add_u32 s4, s4, 0x300000\nv_mov_b32 v{T}, 0\nv_mov_b32 v{T+1}, s80\ns_mov_b64 exec, 1\nbuffer_store_dword v{T+1}, v{T}, s[{SRDW}:{SRDW+3}], s4 offen sc1\ns_mov_b64 exec, -1")
    A(f"s_bfe_u32 s{sB}, s2, 0x10003\ns_lshr_b32 s{sA}, s2, 4\ns_lshl_b32 s{sA}, s{sA}, 3\ns_and_b32 s{sO2}, s2, 7\ns_add_u32 s{sA}, s{sA}, s{sO2}")
    A(f"v_and_b32 v{T}, 15, v2"); masks(AM,T,T+1,T+2)
    A(f"v_lshrrev_b32 v{T+1}, 4, v2\nv_mul_u32_u24 v{vTO}, 896, v{T+1}\nv_lshl_add_u32 v{vTO}, v{T}, 4, v{vTO}")
    for r in range(8): A(f"v_mov_b32 v{PA+r}, 0")
    def tile_load(sr, gated=True, so=None):
        for t in range(8):
            o=sO2 if so is None else so
            if gated and cfg.agate is not None: A(f"s_waitcnt vmcnt({cfg.agate})")
            A(f"buffer_load_dwordx4 v[{WT+8*t}:{WT+8*t+3}], v{vTO}, s[{sr}:{sr+3}], s{o} offen {cfg.wnt}")
            A("s_mov_b32 exec_lo, 0x0fff0fff\ns_mov_b32 exec_hi, 0x0fff0fff")
            A(f"buffer_load_dwordx4 v[{WT+8*t+4}:{WT+8*t+7}], v{vTO}, s[{sr}:{sr+3}], s{o} offen offset:256 {cfg.wnt}")
            A(f"s_mov_b64 exec, -1\ns_add_u32 s{o}, s{o}, 3584")
    def project(src):
        for t in range(8):
            v,ln=src(t)
            for r in range(4): A(f"v_and_b32_dpp v{AT+4*t+r}, v{v}, v{AM+r} row_newbcast:{ln} {DPP}")
            if t>=1:
                tp=t-1
                for cb in range(2):
                    A(f"v_mfma_f32_16x16x32_bf16 v[{PA+4*cb}:{PA+4*cb+3}], v[{AT+4*tp}:{AT+4*tp+3}], v[{WT+8*tp+4*cb}:{WT+8*tp+4*cb+3}], v[{PA+4*cb}:{PA+4*cb+3}]")
        for cb in range(2):
            A(f"v_mfma_f32_16x16x32_bf16 v[{PA+4*cb}:{PA+4*cb+3}], v[{AT+28}:{AT+31}], v[{WT+56+4*cb}:{WT+56+4*cb+3}], v[{PA+4*cb}:{PA+4*cb+3}]")
    A(f"v_lshrrev_b32 v{T}, 5, v2\nv_lshlrev_b32 v{T}, 9, v{T}\nv_and_b32 v{T+1}, 15, v2\nv_lshl_add_u32 v{T}, v{T+1}, 5, v{T}\nv_bfe_u32 v{T+1}, v2, 4, 1\nv_lshl_add_u32 v{vPS}, v{T+1}, 4, v{T}")
    def rec_store(soff, sent=False):
        nop(8)
        for r in range(4): A(f"v_permlane32_swap_b32 v{PA+r}, v{PA+4+r}")
        for r in range(4):
            if sent: A(f"v_min_u32 v{PA+r}, -2, v{PA+r}")
            else: A(f"v_bfi_b32 v{PA+r}, s{sFF}, v{vT8}, v{PA+r}")
        A("s_mov_b32 exec_hi, 0x0fff0fff")
        A(f"buffer_store_dwordx4 v[{PA}:{PA+3}], v{vPS}, s[{SRDW}:{SRDW+3}], s{soff} offen {cfg.opol}")
        A("s_mov_b32 exec_hi, -1")
    A(f"s_lshl_b32 s{sCQ}, s{sB}, 7\ns_add_u32 s{sCQ}, s{sCQ}, s{sA}\ns_lshl_b32 s{sCQ}, s{sCQ}, 10\ns_add_u32 s{sCQ}, s{sCQ}, {PBOX}")
    if cfg.sent:
        for r in range(4): A(f"v_mov_b32 v{F+r}, -1")
        A(f"s_lshl_b32 s4, s2, 11\ns_add_u32 s4, s4, {OBOX}")
        A(f"buffer_store_dwordx4 v[{F}:{F+3}], v{vL16}, s[{SRDW}:{SRDW+3}], s4 offen {cfg.cpol}\ns_waitcnt vmcnt({cfg.cgate})")
        A(f"buffer_store_dwordx4 v[{F}:{F+3}], v{vL16}, s[{SRDW}:{SRDW+3}], s4 offen offset:1024 {cfg.cpol}\ns_waitcnt vmcnt({cfg.cgate})")
        if cfg.cpol=='': A("s_waitcnt vmcnt(0)\nbuffer_wbl2 sc1\ns_waitcnt vmcnt(0)")
        if cfg.sent2: A(f"s_mov_b64 exec, s[74:75]\nbuffer_store_dwordx4 v[{F}:{F+3}], v{vL16}, s[{SRDW}:{SRDW+3}], s{sCQ} offen sc1\ns_mov_b64 exec, -1")
        nop(2)
    lnm=lab("nomlp")
    HA=WF; HS=WF+32; sMO=70
    A(f"s_lshr_b32 s{sCM}, s2, 3\ns_xor_b32 s4, s{sCM}, s2\ns_and_b32 s4, s4, 7\ns_cbranch_scc1 {lnm}")
    A(f"s_cmp_ge_u32 s{sCM}, {0 if cfg.nomlp else 28}\ns_cbranch_scc1 {lnm}")
    A(f"v_lshrrev_b32 v{T}, 3, v2\nv_mul_u32_u24 v{vWO_}, 3584, v{T}\nv_and_b32 v{T}, 7, v2\nv_lshl_add_u32 v{vWO_}, v{T}, 4, v{vWO_}")
    srd(SRDK,sW1,448*1792*2)
    srd(SRDA,sB1,3584)
    A(f"v_and_b32 v{T}, 15, v2\nv_lshlrev_b32 v{T}, 1, v{T}\ns_lshl_b32 s{sO2}, s{sCM}, 7")
    for u in range(4): A(f"buffer_load_ushort v{F+u}, v{T}, s[{SRDA}:{SRDA+3}], s{sO2} offen offset:{32*u}\ns_nop 0")
    for ps in range(4):
        nk = 4 if ps<3 else 2
        for i in range(4*nk):
            if cfg.mgate is not None: A(f"s_waitcnt vmcnt({cfg.mgate})")
            A(f"s_mov_b32 m0, {WBUF+i*1024}\ns_nop 0")
            if not cfg.now1: A(f"buffer_load_dwordx4 v{vWO_}, s[{SRDK}:{SRDK+3}], s{sO2} offen {cfg.wnt} lds")
            A(f"s_add_u32 s{sO2}, s{sO2}, {8*3584}")
        A("s_waitcnt vmcnt(0)")
        for kk in range(nk):
            for u in range(4):
                r=WT+16*kk+4*u
                A(f"ds_read_b64_tr_b16 v[{r}:{r+1}], v{vG1} offset:{kk*4096+u*32}\nds_read_b64_tr_b16 v[{r+2}:{r+3}], v{vG1} offset:{kk*4096+u*32+512}")
        A("s_waitcnt lgkmcnt(0)")
        for kk in range(nk):
            for u in range(4):
                r=WT+16*kk+4*u; x=XF+4*(4*ps+kk)
                c="0" if (ps==0 and kk==0) else f"v[{HA+4*u}:{HA+4*u+3}]"
                A(f"v_mfma_f32_16x16x32_bf16 v[{HA+4*u}:{HA+4*u+3}], v[{x}:{x+3}], v[{r}:{r+3}], {c}")
    nop(8)
    k0=math.sqrt(2/math.pi)
    for u in range(4):
        h=HA+4*u; t1=h+1; t2=h+2
        rbf(h,h)
        A(f"v_lshlrev_b32 v{F+u}, 16, v{F+u}\nv_add_f32 v{h}, v{h}, v{F+u}"); rbf(h,h)
        A(f"v_mul_f32 v{t1}, v{h}, v{h}\nv_mul_f32 v{t1}, v{t1}, v{h}\nv_mov_b32 v{t2}, {f2u(0.044715):#x}\nv_fma_f32 v{t1}, v{t1}, v{t2}, v{h}")
        A(f"v_mul_f32 v{t1}, {f2u(-2*k0*math.log2(math.e)):#x}, v{t1}\nv_exp_f32 v{t1}, v{t1}"); nop(1)
        A(f"v_add_f32 v{t1}, 1.0, v{t1}\nv_rcp_f32 v{t1}, v{t1}"); nop(1)
        A(f"v_mul_f32 v{h}, v{h}, v{t1}\nv_cvt_pk_bf16_f32 v{h}, v{h}, v{h}\nv_mov_b32 v{HS+u}, v{h}"); nop(2)
        for g in range(1,4): A(f"v_mov_b32_dpp v{HS+u}, v{h} row_ror:{16-g} row_mask:{1<<g:#x} bank_mask:0xf")
    srd(SRDK,sW2,1792*448*2)
    for bb in range(2):
        A(f"s_mul_i32 s{sO2}, s{sCM}, {64*896}\ns_add_u32 s{sO2}, s{sO2}, {448*bb}")
        for rb in range(2):
            if not cfg.now2: tile_load(SRDK)
            A("s_waitcnt vmcnt(0)")
            project(lambda t:(HS+2*rb+(t>>2), 4*(t&3)))
            nop(4)
        A(f"s_lshl_b32 s4, s{sCM}, 10\ns_add_u32 s4, s4, {MBOX+bb*32768}")
        rec_store(4)
        nop(2)
        for r in range(8): A(f"v_mov_b32 v{PA+r}, 0")
    stamp('mlpdone')
    A(f"{lnm}:")
    FC=cfg.fc; FC0=256-FC
    stamp('wodone')
    if NB: ldswait(KCNT, T, T+1, sSPIN, 4, 16)
    else: A("s_barrier")
    stamp(4)
    A(f"s_mov_b32 s{sCM}, {f2u(CEXP):#x}")
    if cfg.pool:
        A(f"v_bfe_u32 v{T}, v2, 2, 2\nv_lshlrev_b32 v{T}, 11, v{T}\nv_lshrrev_b32 v{T+1}, 4, v2\nv_lshl_add_u32 v{T}, v{T+1}, 6, v{T}\nv_and_b32 v{T+1}, 3, v2\nv_lshl_add_u32 v{T}, v{T+1}, 4, v{T}\nv_add_u32 v{T}, {SC+28*64}, v{T}")
        A(f"ds_read_b128 v[{X}:{X+3}], v{T}\ns_lshl_b32 s4, s2, 10\ns_add_u32 s4, s4, {SBOX}\ns_waitcnt lgkmcnt(0)")
        A(f"buffer_store_dwordx4 v[{X}:{X+3}], v{vL16}, s[{SRDW}:{SRDW+3}], s4 offen sc1")
    A(f"v_and_b32 v{T}, 1, v2\nv_lshlrev_b32 v{T+1}, 4, v{T}\nv_add_u32 v{T+1}, {MX}, v{T+1}\nv_lshlrev_b32 v{T+2}, 5, v2\nv_add_u32 v{T+2}, {SC}, v{T+2}")
    A(f"ds_read_b128 v[{F}:{F+3}], v{T+1}")
    for w in range(4):
        A(f"ds_read_b128 v[{XF+8*w}:{XF+8*w+3}], v{T+2} offset:{w*2048}\nds_read_b128 v[{XF+8*w+4}:{XF+8*w+7}], v{T+2} offset:{w*2048+16}")
    A("s_waitcnt lgkmcnt(0)")
    A(f"v_max_f32 v{F}, v{F}, v{F+1}\nv_max3_f32 v{F}, v{F}, v{F+2}, v{F+3}\nv_mul_f32 v{F+4}, s{sCM}, v{F}\nv_sub_f32 v{F+4}, 0, v{F+4}")
    A(f"v_mov_b32 v{F+1}, 0\nv_mov_b32 v{F+5}, 0")
    for r in range(32):
        A(f"v_lshlrev_b32 v{T+3}, 16, v{XF+r}\nv_and_b32 v{T+4}, 0xffff0000, v{XF+r}")
        A(f"v_fma_f32 v{T+3}, v{T+3}, s{sCM}, v{F+4}\nv_fma_f32 v{T+4}, v{T+4}, s{sCM}, v{F+4}")
        A(f"v_exp_f32 v{T+3}, v{T+3}\nv_exp_f32 v{T+4}, v{T+4}"); nop(1)
        A(f"v_add_f32 v{F+1}, v{F+1}, v{T+3}\nv_add_f32 v{F+5}, v{F+5}, v{T+4}")
    A(f"v_add_f32 v{F+1}, v{F+1}, v{F+5}")
    rowred("v_add_f32",F+1,[2,4,8]); xrowred("v_add_f32",F+1,T+3)
    nop(2)
    A(f"v_mov_b32_dpp v{F+2}, v{F} quad_perm:[1,1,3,3] {DPP}\nv_mov_b32_dpp v{F+3}, v{F+1} quad_perm:[1,1,3,3] {DPP}")
    A(f"v_mov_b32 v{F+6}, v{F}")
    for r in range(4): A(f"v_bfi_b32 v{F+r}, s{sFF}, v{vT8}, v{F+r}")
    if cfg.probe is not None and cfg.probe[0]=='x':
        A(f"s_getreg_b32 s4, hwreg(HW_REG_XCC_ID)\ns_and_b32 s4, s4, 15\ns_lshl_b32 s4, s4, 8\nv_or_b32 v{F}, s4, v{F}")
    A(f"s_lshl_b32 s{sO2}, s2, 4\ns_add_u32 s{sO2}, s{sO2}, {MLBOX}\nv_mov_b32 v{T}, 0\ns_mov_b64 exec, 1\ns_waitcnt vmcnt(0)")
    if not cfg.noml: A(f"buffer_store_dwordx4 v[{F}:{F+3}], v{T}, s[{SRDW}:{SRDW+3}], s{sO2} offen sc1")
    A("s_mov_b64 exec, -1")
    srd(SRDK,sWO,4096*448*2)
    A(f"s_mul_i32 s{sO2}, s{sA}, {32*896}\ns_mul_i32 s{sSPIN}, s{sB}, 448\ns_add_u32 s{sO2}, s{sO2}, s{sSPIN}")
    LATE = cfg.wolate and cfg.pool
    if not cfg.nowo and not LATE: tile_load(SRDK)
    FC=cfg.fc
    lnf=lab("nofin")
    FC0=256-FC
    if FC==56:
        A(f"v_lshrrev_b32 v{T}, 4, v2\nv_and_b32 v{T+1}, 1, v2\nv_lshl_add_u32 v{T}, v{T+1}, 2, v{T}\nv_lshlrev_b32 v{vG2}, 1, v{T}")
        A(f"s_sub_u32 s{sO2}, s2, {FC0}\ns_lshl_b32 s{sO2}, s{sO2}, 4")
    else:
        A(f"v_lshrrev_b32 v{T}, 4, v2\nv_lshlrev_b32 v{vG2}, 1, v{T}")
        A(f"s_sub_u32 s{sO2}, s2, {FC0}\ns_lshl_b32 s{sO2}, s{sO2}, 3")
    A(f"v_add_u32 v{vG2}, s{sO2}, v{vG2}")
    A(f"s_cmp_lt_u32 s2, {FC0}\ns_cbranch_scc1 {lnf}")
    srd(SRDA,sX,896)
    A(f"buffer_load_ushort v{vFX}, v{vG2}, s[{SRDA}:{SRDA+3}], 0 offen")
    srd(SRDK,sB2,896)
    A(f"buffer_load_ushort v{T}, v{vG2}, s[{SRDK}:{SRDK+3}], 0 offen")
    A(f"s_waitcnt vmcnt(0)\nv_lshlrev_b32 v{vFX}, 16, v{vFX}\nv_lshlrev_b32 v{vFM}, 16, v{T}")
    if not cfg.mimic: A(f"v_add_f32 v{vFX}, v{vFX}, v{vFM}")
    A(f"{lnf}:")
    backoff(cfg.mldelay)
    I1=XF
    A(f"s_lshr_b32 s{sO2}, s2, 5\ns_lshl_b32 s{sO2}, s{sO2}, 9\ns_add_u32 s{sO2}, s{sO2}, {MLBOX}\nv_lshlrev_b32 v{vWO_}, 4, v7")
    if not cfg.noml: poll([(I1,vWO_,0,None)], sO2, 't', cfg.mlsleep)
    if cfg.probe is not None and cfg.probe[0]=='x':
        A(f"v_bfe_u32 v{T}, v{I1}, 8, 4\nv_mov_b32 v{T+1}, v{T}"); nop(2)
        A(f"v_permlane16_swap_b32 v{T}, v{T+1}\nv_cmp_ne_u32 vcc, v{T}, v{T+1}\ns_bcnt1_i32_b64 s79, vcc")
    A(f"v_and_b32 v{T}, 1, v2\nv_cmp_eq_u32 vcc, 1, v{T}"); nop(2)
    A(f"v_cndmask_b32 v{I1}, v{I1}, v{I1+2}, vcc\nv_cndmask_b32 v{I1+1}, v{I1+1}, v{I1+3}, vcc\nv_and_b32 v{I1}, 0xffff0000, v{I1}\nv_and_b32 v{I1+1}, s{sNM}, v{I1+1}\nv_mov_b32 v{T+1}, v{I1}")
    rowred("v_max_f32",T+1,[2,4,8]); xrowred("v_max_f32",T+1,T+2)
    A(f"v_sub_f32 v{T+2}, v{I1}, v{T+1}\nv_sub_f32 v{T+3}, v{F+6}, v{T+1}\nv_mul_f32 v{T+2}, s{sCM}, v{T+2}\nv_mul_f32 v{T+3}, s{sCM}, v{T+3}")
    A(f"v_exp_f32 v{T+2}, v{T+2}\nv_exp_f32 v{T+3}, v{T+3}"); nop(1)
    A(f"v_mul_f32 v{T+2}, v{T+2}, v{I1+1}")
    rowred("v_add_f32",T+2,[2,4,8]); xrowred("v_add_f32",T+2,T+4)
    A(f"v_rcp_f32 v{T+4}, v{T+2}"); nop(1)
    A(f"v_fma_f32 v{T+5}, -v{T+2}, v{T+4}, 1.0\nv_fma_f32 v{T+4}, v{T+5}, v{T+4}, v{T+4}")
    A(f"v_lshlrev_b32 v{T}, 2, v{T}\nv_add_u32 v{T}, {FB}, v{T}")
    if cfg.pool:
        A(f"v_mul_f32 v{T+1}, s{sCM}, v{T+1}\nv_sub_f32 v{T+1}, 0, v{T+1}")
        A(f"ds_write_b32 v{T}, v{T+4}\nds_write_b32 v{T}, v{T+3} offset:8\nds_write_b32 v{T}, v{T+1} offset:16")
        A(f"s_and_b32 s4, s2, 0xf8\ns_lshl_b32 s4, s4, 10\ns_add_u32 s4, s4, {SBOX}")
        for k in range(8):
            if k==4: A("s_add_u32 s4, s4, 4096")
            A(f"s_waitcnt vmcnt(1)\nbuffer_load_dwordx4 v[{I1+4*k}:{I1+4*k+3}], v{vL16}, s[{SRDW}:{SRDW+3}], s4 offen offset:{(k&3)*1024} sc1")
        A(f"v_add_u32 v{T}, {WBUF}, v{vL16}\ns_waitcnt vmcnt(0)")
        for k in range(8): A(f"ds_write_b128 v{T}, v[{I1+4*k}:{I1+4*k+3}] offset:{k*1024}")
        A(f"v_mov_b32 v{T}, {RDY}\nv_mov_b32 v{T+1}, 1\ns_waitcnt lgkmcnt(0)\nds_write_b32 v{T}, v{T+1}")
        stamp('rdy')
    else:
        A(f"v_mul_f32 v{T+3}, v{T+3}, v{T+4}\nds_write_b32 v{T}, v{T+3}")
    half=FC//2
    sH2=68
    A(f"s_sub_u32 s{sSPIN}, s2, {FC0}\ns_cmp_ge_u32 s{sSPIN}, {half}\ns_cselect_b32 s{sH2}, {128*1024-896}, 0\ns_cselect_b32 s{sO2}, {32*1024-896}, 0\ns_mul_i32 s{sSPIN}, s{sSPIN}, {1792//FC}")
    A(f"s_add_u32 s{sH2}, s{sH2}, s{sSPIN}\ns_add_u32 s{sH2}, s{sH2}, {PBOX}\ns_add_u32 s{sO2}, s{sO2}, s{sSPIN}\ns_add_u32 s{sO2}, s{sO2}, {MBOX}")
    assert FC==56
    A(f"v_lshlrev_b32 v{vH}, 10, v7\nv_and_b32 v{T}, 1, v2\nv_lshl_add_u32 v{vH}, v{T}, 4, v{vH}")
    for k in range(1,4): A(f"v_add_u32 v{vH+k}, {k*32768}, v{vH}")
    if cfg.mimic and not cfg.nomlp:
        lg=lab("nomg")
        A(f"s_cmp_lt_u32 s2, {FC0}\ns_cbranch_scc1 {lg}")
        if cfg.sent2:
            A(f"s_mov_b32 s69, {MLBOX}")
            poll([(I1+4*k,vL16,1024*k,None) for k in range(4)], 69, 't', 64)
        for r in range(4): A(f"v_mov_b32 v{I1+r}, 0")
        poll([(I1,vH,0,(1<<56)-1)], sO2, 't', 64)
        for r in range(4): A(f"v_and_b32 v{I1+r}, s{sNM}, v{I1+r}")
        tred4(I1); rowred("v_add_f32",I1,[2,4,8])
        rbf(I1,I1)
        A(f"v_add_f32 v{vFM}, v{vFM}, v{I1}"); rbf(vFM,vFM)
        A(f"{lg}:")
    srd(SRDA,sOUT,896)
    A(f"v_bfe_u32 v{T}, v2, 3, 2\nv_lshlrev_b32 v{T}, 14, v{T}\nv_lshrrev_b32 v{T+1}, 5, v2\nv_lshl_add_u32 v{T}, v{T+1}, 11, v{T}\nv_and_b32 v{T+1}, 7, v2\nv_lshl_add_u32 v{vG1}, v{T+1}, 4, v{T}")
    for k in range(1,4): A(f"v_add_u32 v{X+k}, {k*4096}, v{vG1}")
    A(f"s_lshr_b32 s{sO2}, s2, 5\ns_lshl_b32 s{sO2}, s{sO2}, 16\ns_and_b32 s{sSPIN}, s{sA}, 15\ns_lshl_b32 s{sSPIN}, s{sSPIN}, 7\ns_add_u32 s{sO2}, s{sO2}, s{sSPIN}\ns_add_u32 s{sO2}, s{sO2}, {OBOX}")
    if cfg.touch is not None:
        if not cfg.sent:
            A(f"s_lshl_b32 s4, s2, 11\ns_add_u32 s4, s4, {OBOX}")
            A(f"buffer_load_dwordx4 v[{I1}:{I1+3}], v{vL16}, s[{SRDW}:{SRDW+3}], s4 offen {cfg.touch}\ns_nop 0")
            A(f"buffer_load_dwordx4 v[{I1+4}:{I1+7}], v{vL16}, s[{SRDW}:{SRDW+3}], s4 offen offset:1024 {cfg.touch}\ns_nop 0")
        if not cfg.sent2:
            A(f"buffer_load_dwordx4 v[{I1+8}:{I1+11}], v{vL16}, s[{SRDW}:{SRDW+3}], s{sCQ} offen {cfg.touch}")
        A("s_waitcnt vmcnt(0)")
    if LATE:
        srd(SRDK,sWO,4096*448*2)
        A(f"s_mul_i32 s69, s{sA}, {32*896}\ns_mul_i32 s4, s{sB}, 448\ns_add_u32 s69, s69, s4")
        lw=lab("dw"); lwd=lab("dwd")
    if LATE and cfg.wolate==2:
        A("s_waitcnt vmcnt(0) lgkmcnt(0)\ns_barrier")
        stamp(5)
        tile_load(SRDK, gated=False, so=69)
    elif LATE:
        A(f"v_mov_b32 v{T}, {DONE}\ns_mov_b32 s{sSPIN}, 0")
        A(f"{lw}:\nds_read_b32 v{T+1}, v{T}\ns_add_u32 s{sSPIN}, s{sSPIN}, 1\ns_waitcnt lgkmcnt(0)\nv_readfirstlane_b32 s4, v{T+1}\ns_cmp_lg_u32 s4, 0\ns_cbranch_scc1 {lwd}")
        A(f"s_sleep 2\ns_cmp_lt_u32 s{sSPIN}, {SPIN_LIMIT*64}\ns_cbranch_scc1 {lw}\n{lwd}:")
        backoff(cfg.wodelay)
        tile_load(SRDK, gated=False, so=69)
        A("s_barrier")
    else:
        A("s_waitcnt vmcnt(0) lgkmcnt(0)\ns_barrier")
    if cfg.wolate!=2: stamp(5)
    if cfg.notail: A(f"s_branch {lend}")
    R=F
    def sum16(I, sent):
        assert not (cfg.fast1 or cfg.fast2)
        if not sent:
            for r in range(16): A(f"v_and_b32 v{I+r}, s{sNM}, v{I+r}")
        for r in range(4): A(f"v_add_f32 v{R+r}, v{I+r}, v{I+4+r}\nv_add_f32 v{R+4+r}, v{I+8+r}, v{I+12+r}")
        for r in range(4): A(f"v_add_f32 v{R+r}, v{R+r}, v{R+4+r}")
        tred4(R)
    backoff(cfg.h1delay)
    poll([(I1,vG1,0,None),(I1+4,X+1,0,None),(I1+8,X+2,0,None),(I1+12,X+3,0,None)], sO2, 's' if cfg.sent else 't', cfg.sleep1, cfg.fast1, cfg.fthr)
    stamp(6)
    if cfg.tdiag: A(f"s_mov_b32 s95, s{sSPIN}")
    sum16(I1,cfg.sent); rowred("v_add_f32",R,[8])
    A(f"v_cvt_pk_bf16_f32 v{R}, v{R}, v{R}"); nop(2)
    project(lambda t:(R,t))
    rec_store(sCQ, cfg.sent2)
    stamp('rec')
    A(f"s_cmp_lt_u32 s2, {FC0}\ns_cbranch_scc1 {lend}")
    I2=XF+16
    if cfg.ackw: A("s_waitcnt vmcnt(0)")
    backoff(cfg.h2delay)
    poll([(I2+4*k,vH+k,0,None) for k in range(4)], sH2, 's' if cfg.sent2 else 't', cfg.sleep2, cfg.fast2, None)
    stamp('h2')
    sum16(I2,cfg.sent2); rowred("v_add_f32",R,[2,4,8])
    if cfg.mimic:
        rbf(R,R)
        A(f"v_add_f32 v{R}, v{vFX}, v{R}"); rbf(R,R)
        A(f"v_add_f32 v{R}, v{R}, v{vFM}\nv_cvt_pk_bf16_f32 v{R}, v{R}, v{R}")
    else:
        A(f"v_add_f32 v{R}, v{vFX}, v{R}\nv_cvt_pk_bf16_f32 v{R}, v{R}, v{R}")
    A(f"s_mov_b32 exec_lo, 0x00030003\ns_mov_b32 exec_hi, 0x00030003")
    A(f"buffer_store_short v{R}, v{vG2}, s[{SRDA}:{SRDA+3}], 0 offen")
    A(f"s_cmp_lg_u32 s2, 255\ns_cbranch_scc1 {lend}")
    A(f"s_mov_b64 exec, 1\ns_add_u32 s{sE}, s{sE}, 1\nv_mov_b32 v{T+1}, s{sE}\nv_mov_b32 v{T+2}, 0")
    A(f"buffer_store_dword v{T+1}, v{T+2}, s[{SRDW}:{SRDW+3}], 0 offen sc1")
    if cfg.probe is not None:
        lx=lab("px"); ly=lab("py")
        if cfg.probe[0]=='g':
            A(f"s_mov_b64 exec, -1\ns_mov_b32 s4, 0x300000\nbuffer_load_dwordx4 v[{F}:{F+3}], v{vL16}, s[{SRDW}:{SRDW+3}], s4 offen sc1")
            A("s_waitcnt vmcnt(0)\ns_memrealtime s[82:83]\ns_waitcnt lgkmcnt(0)")
            for r in range(4): A(f"v_sub_u32 v{F+r}, s82, v{F+r}")
            A(f"v_max3_u32 v{F}, v{F}, v{F+1}, v{F+2}\nv_max_u32 v{F}, v{F}, v{F+3}\ns_mov_b32 s4, {int(cfg.probe[1]*100)}\nv_cmp_lt_u32 vcc, s4, v{F}\ns_cbranch_vccz {lend}")
        elif cfg.probe[0]=='t':
            A("s_waitcnt vmcnt(0)\ns_memrealtime s[82:83]\ns_waitcnt lgkmcnt(0)")
            k={'end':82,'b1':86,'b2':88,'b3':90}[cfg.probe[2]]
            A(f"s_sub_u32 s4, s{k}, s80\ns_cmp_lt_u32 s4, {int(cfg.probe[1]*100)}\ns_cbranch_scc1 {lend}")
        else:
            A(f"s_cmp_eq_u32 s79, 0\ns_cbranch_scc1 {lend}")
        A(f"s_mov_b32 s4, 40\n{lx}:\ns_sleep 40\ns_sub_u32 s4, s4, 1\ns_cmp_lg_u32 s4, 0\ns_cbranch_scc1 {lx}")
        A("s_endpgm")
    A(f"{lend}:")
    if cfg.probe is not None: pass
    elif cfg.stamps and cfg.dbgout:
        A(f"s_cmp_lt_u32 s2, 252\ns_cbranch_scc1 {Ldone}")
        A("s_mov_b64 exec, 1\ns_waitcnt vmcnt(0)")
        stamp(1)
        srd(SRDA,sDBG,256)
        A(f"s_waitcnt lgkmcnt(0)\ns_sub_u32 s{sO2}, s2, 252\ns_lshl_b32 s{sO2}, s{sO2}, 4\nv_mov_b32 v{T}, 0")
        for i,k in enumerate((3,4,5,1)):
            A(f"s_sub_u32 s4, s{80+2*k}, s80\nv_mov_b32 v{F+i}, s4")
        A(f"buffer_store_dwordx4 v[{F}:{F+3}], v{T}, s[{SRDA}:{SRDA+3}], s{sO2} offen")
    elif cfg.stamps:
        A("s_mov_b64 exec, 1\ns_waitcnt vmcnt(0)")
        stamp(1)
        A("s_getreg_b32 s94, hwreg(HW_REG_XCC_ID)\ns_waitcnt lgkmcnt(0)")
        A(f"s_lshl_b32 s{sO2}, s2, 6\ns_add_u32 s{sO2}, s{sO2}, {STAMP:#x}\nv_mov_b32 v{T}, 0")
        for k in range(8):
            A(f"v_mov_b32 v{F}, s{80+2*k}\nv_mov_b32 v{F+1}, s{81+2*k}\nbuffer_store_dwordx2 v[{F}:{F+1}], v{T}, s[{SRDW}:{SRDW+3}], s{sO2} offen offset:{8*k}\ns_nop 1")
    A(f"{Ldone}:")
    A("s_endpgm")
    body="\n".join(L)+"\n"
    kd=f""".section .rodata,"a"
.p2align 6
.amdhsa_kernel {N}
  .amdhsa_next_free_vgpr 232
  .amdhsa_next_free_sgpr 96
  .amdhsa_accum_offset 232
  .amdhsa_group_segment_fixed_size 0
  .amdhsa_kernarg_size 104
  .amdhsa_user_sgpr_count 2
  .amdhsa_user_sgpr_kernarg_segment_ptr 1
  .amdhsa_system_sgpr_workgroup_id_x 1
  .amdhsa_float_denorm_mode_32 3
.end_amdhsa_kernel
"""
    return body, kd

def header():
    ref=open('parallel_sum__gqa_block_cached__dense_activation_gelu__decode.s.ref').read().split("\n")
    out=[]
    for l in ref:
        if l.startswith("; @launch"):
            out.append(f"; @launch grid=(256,1,1) block=(320,1,1) lds={LDS_END}")
            break
        out.append(l)
    return "\n".join(out)+"\n"

def final(cfg, path):
    body,kd=gen(cfg)
    open(path,"w").write(header()+'.amdgcn_target "amdgcn-amd-amdhsa--gfx950"\n.text\n'+body+kd)

def bench(cfgs, path):
    sys.path.insert(0,'bench')
    from genstream import meta
    s='.amdgcn_target "amdgcn-amd-amdhsa--gfx950"\n'
    ks=[]; args=[]
    for c in cfgs:
        body,kd=gen(c)
        s+=".text\n"+body+kd.replace("kernarg_size 104","kernarg_size 112")
        ks.append((c.name,232,320)); args.append(f"{c.name} 256 320 {LDS_END}")
    s+=meta(ks)
    open(path+".s","w").write(s); open(path+".args","w").write(" @ ".join(args))

def mk(name, **kw):
    c=Cfg(); c.name=name
    for k,v in kw.items():
        assert hasattr(c,k), k
        setattr(c,k,v)
    return c

if __name__=="__main__":
    if sys.argv[1]=="final":
        kw=eval(sys.argv[3]) if len(sys.argv)>3 else {}
        final(mk(KNAME,**kw), sys.argv[2])
    else:
        bench([mk(n,**kw) for n,kw in eval(sys.argv[3])], sys.argv[2])
```

```python
import sys, struct, math

KNAME = "parallel_sum__gqa_block_cached__dense_activation_gelu__decode_kernel"
def f2u(f): return struct.unpack('<I', struct.pack('<f', f))[0]

class Cfg:
    name = KNAME
    rot = 0
    pace = 6
    infl = 5
    stamps = False
    smap = {}
    wnt = "nt"
    qsleep = 16
    sleep1 = 2
    sleep2 = 0
    mlsleep = 100
    fc = 56
    nomlp = False
    notail = False
    auxnull = False
    nowo = False
    warm = False
    nobar = False
    wmaj = False
    order = [0,4,2,6,1,5,3,7]
    vorder = [0,1,2,3,4,5,6,7]
    sent = True
    sent2 = False
    cpol = 'sc1'
    cgate = 1
    now1 = False
    now2 = False
    mgate = 6
    wodelay = 0
    wolate = 2
    blk = 4
    rotH = 12
    rotS = 0
    ackw = True
    touch = 'sc1'
    h2delay = 8
    h1delay = 0
    mix = True
    tdiag = False
    qdelay = 50
    mldelay = 100
    prio2 = 0
    nowq = False
    noqx = False
    opol = 'sc1'
    lpol = 'sc1'
    probe = None
    pool = True
    pinfl = 12
    pclaim = 4
    first = 8
    fb = None
    qgate = 6
    cnt = 'nt'
    noml = False
    noopub = False
    mimic = True
    fast1 = 0
    fast2 = 0
    fthr = 64
    vpre = True
    agate = 6
    gran = 1
    thr = None
    dbgout = False

RING=0; SC=131072; WBUF=SC+8192; XN=WBUF+16384; QB=XN+1024; MX=QB+1024; FB=MX+64; RDY=FB+32; DONE=FB+36; QRDY=FB+40; KCNT=FB+44; LDS_END=FB+64
QBOX=0x1000; MLBOX=0x8000; OBOX=0x10000; PBOX=0x100000; MBOX=0x180000; SBOX=0x200000; CNT=0x280000; CSTR=4352; STAMP=0x20000000
SPIN_LIMIT = 1<<16
CEXP = 0.0625*math.log2(math.e)

def tt(f):
    r=0
    for idx in range(8):
        if f((idx>>2)&1,(idx>>1)&1,idx&1): r|=1<<idx
    return r

def gen(cfg):
    L=[]
    def A(s):
        for line in s.split("\n"):
            t=line.strip()
            L.append(t if t.endswith(":") else "    "+t)
    N=cfg.name
    pre = "L" if N==KNAME else f"L_{N}"
    uid=[0]
    def lab(p):
        uid[0]+=1; return f"{pre}_{p}{uid[0]}"
    def nop(n):
        if n>0: A(f"s_nop {n-1}")
    sX,sK,sV,sWQ,sWO,sW1,sB1=16,18,20,22,24,28,30
    sW2,sB2,sOUT,sDBG,sWS=32,34,36,38,40
    SRDK,SRDV,SRDA,SRDW=44,48,52,56
    sWAVE=3
    def srd(d, p, size):
        A(f"s_mov_b32 s{d}, s{p}\ns_mov_b32 s{d+1}, s{p+1}\ns_mov_b32 s{d+2}, {size:#x}\ns_mov_b32 s{d+3}, 0x20000")
    def stamp(k):
        if cfg.stamps:
            if isinstance(k,str):
                if k not in cfg.smap: return
                k=cfg.smap[k]
            elif k in cfg.smap.values(): return
            A(f"s_memrealtime s[{80+2*k}:{81+2*k}]")
    DPP="row_mask:0xf bank_mask:0xf"
    def rowred(op, v, rors):
        for r in rors:
            nop(2); A(f"{op}_dpp v{v}, v{v}, v{v} row_ror:{r} {DPP}")
    def xrowred(op, v, t):
        A(f"v_mov_b32 v{t}, v{v}"); nop(2); A(f"v_permlane16_swap_b32 v{v}, v{t}"); A(f"{op} v{v}, v{v}, v{t}")
        A(f"v_mov_b32 v{t}, v{v}"); nop(2); A(f"v_permlane32_swap_b32 v{v}, v{t}"); A(f"{op} v{v}, v{v}, v{t}")
    def tred4(a):
        nop(2)
        A(f"v_permlane32_swap_b32 v{a}, v{a+2}\nv_permlane32_swap_b32 v{a+1}, v{a+3}")
        A(f"v_add_f32 v{a}, v{a}, v{a+2}\nv_add_f32 v{a+1}, v{a+1}, v{a+3}")
        nop(2)
        A(f"v_permlane16_swap_b32 v{a}, v{a+1}")
        A(f"v_add_f32 v{a}, v{a}, v{a+1}")
    def rbf(d, s):
        A(f"v_cvt_pk_bf16_f32 v{d}, v{s}, v{s}\nv_and_b32 v{d}, 0xffff0000, v{d}")
    def masks(dst, n, t0, t1):
        A(f"v_and_b32 v{t0}, 1, v{n}\nv_lshlrev_b32 v{t0}, 4, v{t0}\nv_mov_b32 v{t1}, 0xffff\nv_lshlrev_b32 v{t1}, v{t0}, v{t1}\nv_bfe_u32 v{t0}, v{n}, 1, 2")
        for r in range(4):
            A(f"v_cmp_eq_u32 vcc, {r}, v{t0}"); nop(2); A(f"v_cndmask_b32 v{dst+r}, 0, v{t1}, vcc")

    def ldswait(addr, va, vd, cnt, need, sleep, mult=16):
        lw=lab("lw"); lwd=lab("lwd")
        A(f"v_mov_b32 v{va}, {addr}\ns_mov_b32 s{cnt}, 0")
        A(f"{lw}:\nds_read_b32 v{vd}, v{va}\ns_add_u32 s{cnt}, s{cnt}, 1\ns_waitcnt lgkmcnt(0)\nv_readfirstlane_b32 s4, v{vd}\ns_cmp_ge_u32 s4, {need}\ns_cbranch_scc1 {lwd}")
        A(f"s_sleep {sleep}\ns_cmp_lt_u32 s{cnt}, {SPIN_LIMIT*mult}\ns_cbranch_scc1 {lw}\n{lwd}:")
    Ldone=f"{pre}_done"; Laux=f"{pre}_aux"
    A(f".globl {N}\n.p2align 8\n.type {N},@function\n{N}:")
    A(f"s_cmp_ge_u32 s2, 256\ns_cbranch_scc1 {Ldone}")
    A("s_load_dwordx16 s[16:31], s[0:1], 0\ns_load_dwordx8 s[32:39], s[0:1], 64\ns_load_dwordx2 s[40:41], s[0:1], 96")
    stamp(0)
    A("v_lshrrev_b32 v1, 6, v0\nv_and_b32 v2, 63, v0")
    nop(1)
    A(f"v_readfirstlane_b32 s{sWAVE}, v1")
    A(f"s_cmp_eq_u32 s{sWAVE}, 4\ns_cbranch_scc1 {Laux}")

    vKO=8; vVO=16; vKA=18; vVA=22; vSA=23; vMASK=24; vMAX=28; vTG=29; vNM=30; vT=31
    QF=32; TF=64; D=96; S2=100; VP=104
    AR=32; ACC=48; P=56; vVP=7
    sRING,sREG,sNEXT,sOFF,sCNT,sC,sT8,sFF,sV0,sLV,sCL,sY,sSCO=60,61,62,63,64,65,66,67,68,69,70,71,72
    sPC=76
    A("v_lshrrev_b32 v3, 5, v2\nv_and_b32 v4, 31, v2\nv_lshlrev_b32 v5, 2, v3\nv_xor_b32 v4, v4, v5\nv_lshlrev_b32 v4, 4, v4\nv_lshl_add_u32 v4, v3, 9, v4")
    for j in range(8):
        c=(8*(j&1)+(j>>1))*16 | (4096 if j>=4 else 0)
        A(f"v_xor_b32 v{vKO+j}, {c:#x}, v4")
    B=cfg.blk; lb=B.bit_length()-1
    sHB,sRS=78,79
    A(f"s_lshl_b32 s{sRING}, s{sWAVE}, 15\ns_lshr_b32 s4, s2, 5\ns_lshl_b32 s{sHB}, s4, 25\ns_lshl_b32 s5, s{sWAVE}, {13+lb if cfg.wmaj else 13}\ns_add_u32 s{sHB}, s{sHB}, s5")
    A(f"s_mul_i32 s{sNEXT}, s4, {cfg.rotH}\ns_and_b32 s5, s2, 31\ns_mul_i32 s{sRS}, s5, {cfg.rotS}\ns_lshl_b32 s{sREG}, s5, {15+lb}\ns_add_u32 s{sREG}, s{sREG}, s{sHB}\ns_mov_b32 s{sV0}, s{sNEXT}")
    def taddr(dst, t, base, rs):
        A(f"s_bfe_u32 s4, s{t}, {((5-lb)<<16)|lb:#x}\ns_lshl_b32 s4, s4, {20+lb}\ns_add_u32 s{dst}, s{base}, s4")
        if lb:
            A(f"s_add_u32 s4, s{t}, s{rs}\ns_and_b32 s4, s4, {B-1}\ns_lshl_b32 s4, s4, {13 if cfg.wmaj else 15}\ns_add_u32 s{dst}, s{dst}, s4")
    A("s_waitcnt lgkmcnt(0)")
    srd(SRDK,sK,1<<28)
    def gate(j, lim):
        if lim is None: return "s_nop 0"
        return f"s_waitcnt vmcnt({lim[j%len(lim)]-1})"
    INF=cfg.infl if isinstance(cfg.infl,tuple) else (cfg.infl,cfg.infl)
    PINF=cfg.pinfl if isinstance(cfg.pinfl,tuple) else (cfg.pinfl,cfg.pinfl)
    def claim():
        A(f"s_mov_b32 s{sCL}, 1\ns_atomic_add s{sCL}, s[{sPC}:{sPC+1}], 0 glc")
    def steps(slot, kind, lim=INF, doclaim=False):
        def mk(j):
            def f():
                if kind is None: return
                pj=cfg.order[j]; half=pj>>2; jj=pj&3
                sk=None
                if kind=='P':
                    sk=lab("ps")
                    if j==0:
                        ok=lab("po")
                        if cfg.wolate:
                            A(f"s_waitcnt lgkmcnt(0)\ns_mov_b32 s{sSCO+slot}, -1\ns_cmp_lt_u32 s{sCL}, 32\ns_cbranch_scc1 {ok}")
                            A(f"v_mov_b32 v{vT}, {DONE}\nds_write_b32 v{vT}, v{vT}\ns_branch {sk}\n{ok}:")
                        else:
                            A(f"s_waitcnt lgkmcnt(0)\ns_mov_b32 s{sSCO+slot}, -1\ns_cmp_ge_u32 s{sCL}, 32\ns_cbranch_scc1 {sk}")
                        A(f"s_and_b32 s5, s{sCL}, 7\ns_lshr_b32 s6, s{sCL}, 3\ns_lshl_b32 s7, s5, 10\ns_lshl_b32 s8, s6, 8\ns_add_u32 s{sSCO+slot}, s7, s8")
                        A(f"s_and_b32 s7, s2, 0x18\ns_or_b32 s5, s5, s7\ns_mul_i32 s7, s5, {cfg.rotS}\ns_lshl_b32 s5, s5, {15+lb}\ns_add_u32 s5, s5, s{sHB}\ns_add_u32 s6, s6, s{sV0}")
                        taddr(sOFF,6,5,7)
                    else:
                        A(f"s_cmp_eq_u32 s{sSCO+slot}, -1\ns_cbranch_scc1 {sk}")
                elif j==0:
                    taddr(sOFF,sNEXT,sREG,sRS)
                    A(f"s_add_u32 s{sNEXT}, s{sNEXT}, 1")
                if (kind=='P' or doclaim) and j==cfg.pclaim: claim()
                vo = vKO+pj if kind=='K' else vVO+half
                sr = SRDK if kind=='K' else SRDV
                A(f"s_add_u32 m0, s{sRING}, {slot*8192+half*4096}\n{gate(j, PINF if kind=='P' else lim)}")
                A(f"buffer_load_dwordx4 v{vo}, s[{sr}:{sr+3}], s{sOFF} offen offset:{jj*1024} nt lds")
                if sk: A(f"{sk}:")
            return f
        return [mk(j) for j in range(8)]
    def weave(st, sl):
        for u in range(8):
            st[u]()
            if u<len(sl): sl[u]()
    for j,f in enumerate(steps(0,'K',None)[:cfg.first]): f()
    NB = cfg.nobar and cfg.pool and not cfg.auxnull
    if NB: A("s_barrier")
    srd(SRDV,sV,1<<28)
    A(f"s_load_dword s{sT8}, s[{sWS}:{sWS+1}], 0")
    A(f"v_lshlrev_b32 v{vVO}, 4, v2\nv_add_u32 v{vVO+1}, 0x1000, v{vVO}")
    A("v_lshrrev_b32 v3, 4, v2\nv_and_b32 v4, 15, v2")
    A("v_and_b32 v5, 3, v4\nv_lshlrev_b32 v5, 2, v5\nv_lshrrev_b32 v6, 2, v4\nv_add_u32 v5, v5, v6")
    A(f"v_xor_b32 v6, v3, v4\nv_lshlrev_b32 v6, 4, v6\nv_lshl_add_u32 v6, v5, 9, v6\nv_add_u32 v6, s{sRING}, v6")
    for q in range(4): A(f"v_xor_b32 v{vKA+q}, {q*64}, v6")
    A(f"v_lshlrev_b32 v6, 4, v4\nv_lshl_add_u32 v6, v3, 9, v6\nv_add_u32 v{vVA}, s{sRING}, v6")
    A(f"s_lshl_b32 s{sCNT}, s{sWAVE}, 11\ns_add_u32 s{sCNT}, s{sCNT}, {SC}")
    A(f"v_lshrrev_b32 v5, 3, v4\nv_lshlrev_b32 v6, 5, v5\nv_lshl_add_u32 v6, v3, 3, v6\nv_add_u32 v{vSA}, s{sCNT}, v6")
    A(f"v_lshlrev_b32 v7, 9, v5\nv_lshl_add_u32 v7, v3, 4, v7\nv_add_u32 v7, {QB}, v7")
    masks(vMASK,4,5,6)
    A(f"v_mov_b32 v{vMAX}, 0xff800000")
    A(f"v_subrev_u32 v{vT}, s{sRING}, v{vVA}\nv_add_u32 v1, 0x1000, v{vT}")
    for f in steps(0,'K')[cfg.first:]: f()
    for slot in (1,2):
        for f in steps(slot,'K'): f()
    for i in range(4):
        taddr(sOFF,sV0,sREG,sRS)
        for u in cfg.vorder:
            o=(u>>1)*2048+(u&1)*256
            vo = vT if o<4096 else 1
            A(gate(u,INF))
            A(f"buffer_load_dwordx4 v[{VP+32*i+4*u}:{VP+32*i+4*u+3}], v{vo}, s[{SRDV}:{SRDV+3}], s{sOFF} offen offset:{o&4095} nt")
        A(f"s_add_u32 s{sV0}, s{sV0}, {1 if i<3 else 25}")
    A(f"s_waitcnt lgkmcnt(0)\ns_add_u32 s{sT8}, s{sT8}, 1\ns_and_b32 s{sT8}, s{sT8}, 0xff\ns_mov_b32 s{sFF}, 0xff\nv_mov_b32 v{vTG}, s{sT8}")
    srd(SRDW,sWS,1<<30)
    if NB: ldswait(QRDY, vT, D, sCNT, 1, 2)
    else: A("s_barrier")
    for jj in range(8): A(f"ds_read_b128 v[{QF+4*jj}:{QF+4*jj+3}], v7 offset:{jj*64}")

    def ktile(slot, kind):
        def s0():
            A("s_waitcnt vmcnt(16)")
            for jj in range(8):
                A(f"ds_read_b128 v[{TF+4*jj}:{TF+4*jj+3}], v{vKA+(jj&3)} offset:{slot*8192+(jj>>2)*256}")
        def mf(r):
            def f():
                if r[0]==0: A("s_waitcnt lgkmcnt(0)")
                for jj in r:
                    c = "0" if jj==0 else f"v[{D}:{D+3}]"
                    A(f"v_mfma_f32_16x16x32_bf16 v[{D}:{D+3}], v[{TF+4*jj}:{TF+4*jj+3}], v[{QF+4*jj}:{QF+4*jj+3}], {c}")
            return f
        def s3():
            nop(5)
            A(f"v_cvt_pk_bf16_f32 v{S2}, v{D}, v{D+1}\nv_cvt_pk_bf16_f32 v{S2+1}, v{D+2}, v{D+3}")
            A(f"v_max3_f32 v{vMAX}, v{vMAX}, v{D}, v{D+1}\nv_max3_f32 v{vMAX}, v{vMAX}, v{D+2}, v{D+3}")
            A(f"ds_write_b64 v{vSA}, v[{S2}:{S2+1}] offset:{slot*64}")
        weave(steps((slot+3)&3,kind),[s0,mf([0,1,2,3]),mf([4,5,6,7]),s3])
    def pcalc():
        A(f"v_lshlrev_b32 v{P}, 16, v{S2}\nv_and_b32 v{P+1}, 0xffff0000, v{S2}\nv_lshlrev_b32 v{P+2}, 16, v{S2+1}\nv_and_b32 v{P+3}, 0xffff0000, v{S2+1}")
        for t in range(4): A(f"v_fma_f32 v{P+t}, v{P+t}, s{sC}, v{vNM}")
        for t in range(4): A(f"v_exp_f32 v{P+t}, v{P+t}")
        nop(1)
        for t in range(4): A(f"v_cvt_pk_bf16_f32 v{P+t}, v{P+t}, v{P+t}")
    def pmask():
        for t in range(4):
            for r in range(4): A(f"v_and_b32 v{AR+4*t+r}, v{P+t}, v{vMASK+r}")
    def pv(src, us):
        for u in us:
            t=u>>1; h=u&1
            A(f"v_mfma_f32_16x16x32_bf16 v[{ACC+4*h}:{ACC+4*h+3}], v[{AR+4*t}:{AR+4*t+3}], v[{src+4*u}:{src+4*u+3}], v[{ACC+4*h}:{ACC+4*h+3}]")
    def vtile(slot, kind, waitn, scoff=None, regs=None, pooled=False, doclaim=False):
        def s0():
            if pooled: A(f"v_add_u32 v{vT}, s{sSCO+slot}, v{vSA}\nds_read_b64 v[{S2}:{S2+1}], v{vT}")
            else: A(f"ds_read_b64 v[{S2}:{S2+1}], v{vSA} offset:{slot*64 if scoff is None else scoff}")
            A("s_waitcnt lgkmcnt(0)"); pcalc()
        def s1():
            if waitn=='y':
                go=lab("wy")
                A("s_waitcnt vmcnt(16)")
                for y in (2,1): A(f"s_cmp_ge_i32 s{sY}, {y}\ns_cbranch_scc1 {go}\ns_waitcnt vmcnt({8*(y-1)})")
                A(f"{go}:")
            else: A(f"s_waitcnt vmcnt({waitn})")
            for u in range(8):
                A(f"ds_read_b128 v[{TF+4*u}:{TF+4*u+3}], v{vVA} offset:{slot*8192+(u>>1)*2048+(u&1)*256}")
            pmask()
            A("s_waitcnt lgkmcnt(0)")
        sl=[s0,s1,lambda:pv(TF,[0,1,2,3]),lambda:pv(TF,[4,5,6,7])]
        if regs is not None:
            def r0():
                A(f"ds_read_b64 v[{S2}:{S2+1}], v{vSA} offset:{slot*64}\ns_waitcnt lgkmcnt(0)"); pcalc()
            sl+=[r0,pmask,lambda:pv(regs,[0,1,2,3]),lambda:pv(regs,[4,5,6,7])]
        weave(steps((slot+3)&3,kind,doclaim=doclaim),sl)
        if kind=='P':
            A(f"s_cmp_eq_u32 s{sSCO+((slot+3)&3)}, -1\ns_subb_u32 s{sY}, s{sY}, 0")

    lk=lab("kloop")
    A(f"s_mov_b32 s{sCNT}, 7")
    A(f"{lk}:")
    for s in range(4): ktile(s,'K')
    A(f"v_add_u32 v{vSA}, 256, v{vSA}")
    A(f"s_sub_u32 s{sCNT}, s{sCNT}, 1\ns_cmp_lg_u32 s{sCNT}, 0\ns_cbranch_scc1 {lk}")
    ktile(0,'K')
    A(f"s_add_u32 s{sNEXT}, s{sNEXT}, 4")
    for s in range(1,4): ktile(s,'V')
    A(f"v_subrev_u32 v{vSA}, {7*256}, v{vSA}")
    for r in range(8): A(f"v_mov_b32 v{ACC+r}, 0")
    xrowred("v_max_f32", vMAX, vT)
    rbf(vMAX,vMAX)
    A(f"v_bfe_u32 v3, v2, 3, 1\nv_lshlrev_b32 v3, 4, v3\nv_add_u32 v3, {MX}, v3")
    A(f"s_lshl_b32 s{sCNT}, s{sWAVE}, 2\nv_add_u32 v4, s{sCNT}, v3")
    if NB:
        A(f"ds_write_b32 v4, v{vMAX}\nv_mov_b32 v3, {KCNT}\nv_mov_b32 v4, 1\ns_mov_b32 s{sC}, {f2u(CEXP):#x}\ns_mov_b64 exec, 1\nds_add_u32 v3, v4\ns_mov_b64 exec, -1")
    else:
        A(f"ds_write_b32 v4, v{vMAX}\ns_waitcnt lgkmcnt(0)\ns_barrier")
        A(f"ds_read_b128 v[{D}:{D+3}], v3\ns_mov_b32 s{sC}, {f2u(CEXP):#x}\ns_waitcnt lgkmcnt(0)")
        A(f"v_max_f32 v{vMAX}, v{D}, v{D+1}\nv_max3_f32 v{vMAX}, v{vMAX}, v{D+2}, v{D+3}")
    A(f"v_mul_f32 v{vNM}, s{sC}, v{vMAX}\nv_sub_f32 v{vNM}, 0, v{vNM}")
    A("v_lshrrev_b32 v6, 5, v2\nv_lshlrev_b32 v6, 10, v6\nv_and_b32 v5, 15, v2\nv_lshl_add_u32 v6, v5, 5, v6\nv_bfe_u32 v5, v2, 4, 1\nv_lshl_add_u32 v6, v5, 4, v6")
    A(f"v_add_u32 v6, s{sRING}, v6")
    A(f"s_lshl_b32 s{sCNT}, s{sWAVE}, 9\nv_lshlrev_b32 v4, 4, v2\nv_add_u32 v4, s{sCNT}, v4\nv_add_u32 v5, 0x10000, v4")
    A(f"s_lshr_b32 s{sCNT}, s{sWAVE}, 1\ns_lshl_b32 s{sCNT}, s{sCNT}, 2\ns_add_u32 s{sCNT}, s{sCNT}, {FB}\nv_mov_b32 v3, s{sCNT}")
    lv=lab("vloop")
    for s in range(4): vtile(s,'V',16,scoff=256+s*64,regs=VP+32*s)
    A(f"v_add_u32 v{vSA}, 512, v{vSA}")
    A(f"s_mov_b32 s{sCNT}, {4 if cfg.pool else 5}")
    A(f"{lv}:")
    for s in range(4): vtile(s,'V',16)
    A(f"v_add_u32 v{vSA}, 256, v{vSA}")
    A(f"s_sub_u32 s{sCNT}, s{sCNT}, 1\ns_cmp_lg_u32 s{sCNT}, 0\ns_cbranch_scc1 {lv}")
    Lpool=f"{pre}_poolcode"
    A(f"{Lpool}:")
    if cfg.pool:
        lw=lab("rw"); lwd=lab("rwd")
        A(f"v_mov_b32 v{vT}, {RDY}\ns_mov_b32 s{sCNT}, 0")
        A(f"{lw}:\nds_read_b32 v{D}, v{vT}\ns_add_u32 s{sCNT}, s{sCNT}, 1")
        A(f"s_lshr_b32 s4, s2, 3\ns_lshl_b32 s5, s4, 2\ns_add_u32 s5, s5, s{sWAVE}\ns_mul_i32 s5, s5, {CSTR}\ns_add_u32 s5, s5, {CNT}\ns_add_u32 s{sPC}, s{sWS}, s5\ns_addc_u32 s{sPC+1}, s{sWS+1}, 0")
        A(f"s_mov_b32 s{sY}, 2")
        A(f"s_waitcnt lgkmcnt(0)\nv_readfirstlane_b32 s4, v{D}\ns_cmp_lg_u32 s4, 0\ns_cbranch_scc1 {lwd}")
        A(f"s_sleep 4\ns_cmp_lt_u32 s{sCNT}, {SPIN_LIMIT*16}\ns_cbranch_scc1 {lw}\n{lwd}:")
        vtile(0,'V',16,doclaim=True)
        for s in range(1,4): vtile(s,'P','y')
        if NB:
            A(f"v_lshrrev_b32 v{vT}, 5, v2\nv_lshlrev_b32 v{D+2}, 2, v{vT}\nv_add_u32 v{D+2}, {FB+16}, v{D+2}\nds_read_b32 v{D}, v{D+2}")
            A(f"s_lshl_b32 s4, s{sWAVE}, 2\ns_add_u32 s4, s4, {MX}\nv_lshlrev_b32 v{vT}, 4, v{vT}\nv_add_u32 v{vT}, s4, v{vT}\nds_read_b32 v{D+1}, v{vT}")
        else:
            A(f"v_lshrrev_b32 v{vT}, 5, v2\nv_lshlrev_b32 v{vT}, 2, v{vT}\nv_add_u32 v{vT}, {FB+8}, v{vT}\nds_read_b32 v{D}, v{vT}")
        A(f"v_bfe_u32 v{vT}, v2, 3, 1\nv_lshlrev_b32 v{vSA}, 5, v{vT}\nv_lshlrev_b32 v{vT}, 2, v{vT}\nv_add_u32 v{vT}, {FB+16}, v{vT}\nds_read_b32 v{vNM}, v{vT}")
        A(f"v_lshrrev_b32 v{vT}, 4, v2\nv_lshl_add_u32 v{vSA}, v{vT}, 3, v{vSA}\ns_lshl_b32 s4, s{sWAVE}, 6\ns_add_u32 s4, s4, {WBUF}\nv_add_u32 v{vSA}, s4, v{vSA}")
        A("s_waitcnt lgkmcnt(0)")
        if NB:
            A(f"v_mul_f32 v{D+1}, s{sC}, v{D+1}\nv_add_f32 v{D}, v{D}, v{D+1}\nv_exp_f32 v{D}, v{D}"); nop(1)
        for r in range(8): A(f"v_mul_f32 v{ACC+r}, v{ACC+r}, v{D}")
        lp=lab("ploop"); le=lab("pend")
        A(f"{lp}:")
        for s in range(4):
            A(f"s_cmp_eq_u32 s{sSCO+s}, -1\ns_cbranch_scc1 {le}")
            vtile(s,'P','y',pooled=True)
        A(f"s_branch {lp}\n{le}:")
    else:
        vtile(0,'V',16); vtile(1,None,16); vtile(2,None,8); vtile(3,None,0)
    A(f"s_lshl_b32 s{sOFF}, s2, 11\ns_add_u32 s{sOFF}, s{sOFF}, {OBOX}")
    nop(7)
    A(f"ds_write_b128 v6, v[{ACC}:{ACC+3}]\nds_write_b128 v6, v[{ACC+4}:{ACC+7}] offset:512")
    A("s_waitcnt lgkmcnt(0)\ns_barrier")
    A("s_mov_b32 exec_hi, 0")
    A(f"ds_read_b128 v[{TF}:{TF+3}], v4\nds_read_b128 v[{TF+4}:{TF+7}], v4 offset:32768\nds_read_b128 v[{TF+8}:{TF+11}], v5\nds_read_b128 v[{TF+12}:{TF+15}], v5 offset:32768\nds_read_b32 v{TF+16}, v3")
    A("s_waitcnt lgkmcnt(3)")
    for r in range(4): A(f"v_add_f32 v{TF+r}, v{TF+r}, v{TF+4+r}")
    A("s_waitcnt lgkmcnt(1)")
    for r in range(4): A(f"v_add_f32 v{TF+8+r}, v{TF+8+r}, v{TF+12+r}")
    for r in range(4): A(f"v_add_f32 v{TF+r}, v{TF+r}, v{TF+8+r}")
    A("s_waitcnt lgkmcnt(0)")
    for r in range(4): A(f"v_mul_f32 v{TF+r}, v{TF+r}, v{TF+16}")
    for r in range(4):
        if cfg.sent: A(f"v_min_u32 v{TF+r}, -2, v{TF+r}")
        else: A(f"v_bfi_b32 v{TF+r}, s{sFF}, v{vTG}, v{TF+r}")
    if cfg.tdiag: A("s_memrealtime s[82:83]")
    if not cfg.noopub: A(f"buffer_store_dwordx4 v[{TF}:{TF+3}], v4, s[{SRDW}:{SRDW+3}], s{sOFF} offen {cfg.opol}")
    if cfg.tdiag:
        A(f"s_waitcnt vmcnt(0)\ns_memrealtime s[84:85]\ns_waitcnt lgkmcnt(0)\ns_cmp_lg_u32 s{sWAVE}, 0\ns_cbranch_scc1 {Ldone}")
        A(f"s_lshl_b32 s4, s2, 6\ns_add_u32 s4, s4, {STAMP+0x100000:#x}\ns_mov_b64 exec, 1\nv_mov_b32 v1, 0\nv_mov_b32 v{TF}, s82\nv_mov_b32 v{TF+1}, s83\nv_mov_b32 v{TF+2}, s84\nv_mov_b32 v{TF+3}, s85")
        A(f"buffer_store_dwordx4 v[{TF}:{TF+3}], v1, s[{SRDW}:{SRDW+3}], s4 offen")
    A("s_endpgm")

    vL16=3; vWO_=4; vTR=5; vXA=6
    X=8; F=12; T=20
    XF=32; WF=88
    WT=144
    PA=208
    AM=216
    vT8=220; vFX=221; vG1=222; vG2=223; vPS=224; vTO=225; vFM=226; vH=227
    AT=88
    sE,sTAG,sCQ,sO2,sSPIN,sCM,sFF,sA,sB,sNM=60,61,62,63,64,65,78,66,67,71
    A(f"{Laux}:")
    lend=lab("end")
    if cfg.auxnull:
        A("s_waitcnt lgkmcnt(0)"); srd(SRDW,sWS,1<<30)
        A("s_barrier"); stamp(3); A("s_barrier"); stamp(4); A("s_barrier"); stamp(5); A(f"s_branch {lend}")
    A("s_setprio 3")
    if NB:
        A(f"v_mov_b32 v{X}, 0\nv_mov_b32 v{X+1}, 0\nv_mov_b32 v{X+2}, 0\nv_mov_b32 v{X+3}, 0\nv_mov_b32 v{T}, {RDY}\nds_write_b128 v{T}, v[{X}:{X+3}]")
    A(f"v_lshrrev_b32 v7, 1, v2\nv_and_b32 v{T}, 1, v2\nv_lshlrev_b32 v{T}, 4, v{T}")
    A(f"v_lshl_add_u32 v{vWO_}, v7, 13, v{T}\nv_lshlrev_b32 v{vL16}, 4, v2")
    if cfg.mix:
        A(f"s_and_b32 s4, s2, 7\ns_lshr_b32 s5, s2, 5\ns_add_u32 s5, s5, s4\ns_and_b32 s5, s5, 7\ns_lshl_b32 s5, s5, 2\ns_lshl_b32 s{sCQ}, s4, 5\ns_add_u32 s{sCQ}, s{sCQ}, s5\ns_bfe_u32 s5, s2, 0x20003\ns_add_u32 s{sCQ}, s{sCQ}, s5\ns_lshl_b32 s{sO2}, s{sCQ}, 5")
    else:
        A(f"s_and_b32 s{sCQ}, s2, 7\ns_lshl_b32 s{sCQ}, s{sCQ}, 5\ns_lshr_b32 s{sO2}, s2, 3\ns_add_u32 s{sCQ}, s{sCQ}, s{sO2}\ns_lshl_b32 s{sO2}, s{sCQ}, 5")
    A("s_waitcnt lgkmcnt(0)")
    stamp('karg')
    A(f"s_load_dword s{sE}, s[{sWS}:{sWS+1}], 0")
    srd(SRDA,sX,896)
    A(f"buffer_load_dwordx4 v[{X}:{X+3}], v{vL16}, s[{SRDA}:{SRDA+3}], 0 offen")
    if NB: A("s_barrier")
    srd(SRDK,sWQ,448*4096*2)
    def wdma(sr, step, gate=None):
        for i in range(14):
            if gate is not None: A(f"s_waitcnt vmcnt({gate})")
            A(f"s_mov_b32 m0, {WBUF+i*1024}")
            if i: A(f"s_add_u32 s{sO2}, s{sO2}, {step}")
            else: nop(1)
            A(f"buffer_load_dwordx4 v{vWO_}, s[{sr}:{sr+3}], s{sO2} offen {cfg.cnt} lds")
    if not cfg.nowq: wdma(SRDK,32*8192,cfg.qgate)
    srd(SRDW,sWS,1<<30)
    A(f"v_lshrrev_b32 v{T}, 4, v2\nv_bfe_u32 v{T+1}, v2, 2, 2\nv_lshl_add_u32 v{T+1}, v{T}, 3, v{T+1}\nv_and_b32 v{T+2}, 3, v2\nv_lshlrev_b32 v{T+2}, 3, v{T+2}\nv_add_u32 v{T+2}, {WBUF}, v{T+2}")
    A(f"v_lshl_add_u32 v{vTR}, v{T+1}, 5, v{T+2}\nv_lshl_add_u32 v{vG1}, v{T+1}, 7, v{T+2}")
    A(f"v_lshlrev_b32 v{T}, 4, v{T}\nv_add_u32 v{vXA}, {XN}, v{T}")
    A("v_cmp_gt_u32 s[74:75], 56, v2")
    stamp('issued')
    A("s_waitcnt vmcnt(14)")
    stamp('xland')
    for r in range(4):
        A(f"v_lshlrev_b32 v{F+2*r}, 16, v{X+r}\nv_and_b32 v{F+2*r+1}, 0xffff0000, v{X+r}")
    A(f"v_add_f32 v{T}, v{F}, v{F+1}\nv_add_f32 v{T+1}, v{F+2}, v{F+3}\nv_add_f32 v{T+2}, v{F+4}, v{F+5}\nv_add_f32 v{T+3}, v{F+6}, v{F+7}")
    A(f"v_add_f32 v{T}, v{T}, v{T+1}\nv_add_f32 v{T+2}, v{T+2}, v{T+3}\nv_add_f32 v{T}, v{T}, v{T+2}")
    rowred("v_add_f32",T,[1,2,4,8]); xrowred("v_add_f32",T,T+1)
    A(f"v_mul_f32 v{T}, {f2u(1.0/448):#x}, v{T}")
    A(f"v_sub_f32 v{T+2}, v{F}, v{T}\nv_mul_f32 v{T+1}, v{T+2}, v{T+2}")
    for r in range(1,8):
        A(f"v_sub_f32 v{T+2}, v{F+r}, v{T}\nv_fmac_f32 v{T+1}, v{T+2}, v{T+2}")
    A(f"v_cndmask_b32 v{T+1}, 0, v{T+1}, s[74:75]")
    rowred("v_add_f32",T+1,[1,2,4,8]); xrowred("v_add_f32",T+1,T+2)
    A(f"v_mul_f32 v{T+1}, {f2u(1.0/448):#x}, v{T+1}")
    rbf(T,T); rbf(T+1,T+1)
    A(f"v_add_f32 v{T+1}, {f2u(1e-5):#x}, v{T+1}"); rbf(T+1,T+1)
    A(f"v_sqrt_f32 v{T+1}, v{T+1}"); nop(1); rbf(T+1,T+1)
    A(f"v_rcp_f32 v{T+2}, v{T+1}")
    for r in range(8): A(f"v_sub_f32 v{F+r}, v{F+r}, v{T}")
    for r in range(4): A(f"v_cvt_pk_bf16_f32 v{X+r}, v{F+2*r}, v{F+2*r+1}")
    for r in range(4): A(f"v_lshlrev_b32 v{F+2*r}, 16, v{X+r}\nv_and_b32 v{F+2*r+1}, 0xffff0000, v{X+r}")
    for r in range(8):
        A(f"v_mul_f32 v{T+3}, v{F+r}, v{T+2}\nv_fma_f32 v{T+4}, -v{T+3}, v{T+1}, v{F+r}\nv_fma_f32 v{F+r}, v{T+4}, v{T+2}, v{T+3}")
    for r in range(4): A(f"v_cvt_pk_bf16_f32 v{X+r}, v{F+2*r}, v{F+2*r+1}")
    A(f"v_add_u32 v{T}, {XN}, v{vL16}\nds_write_b128 v{T}, v[{X}:{X+3}]\ns_waitcnt lgkmcnt(0)")
    for jj in range(14): A(f"ds_read_b128 v[{XF+4*jj}:{XF+4*jj+3}], v{vXA} offset:{jj*64}")
    stamp('lndone')
    A("s_waitcnt vmcnt(0)")
    stamp('wqland')
    for jj in range(14):
        A(f"ds_read_b64_tr_b16 v[{WF+4*jj}:{WF+4*jj+1}], v{vTR} offset:{jj*1024}\nds_read_b64_tr_b16 v[{WF+4*jj+2}:{WF+4*jj+3}], v{vTR} offset:{jj*1024+128}")
    A(f"s_waitcnt lgkmcnt(0)")
    for jj in range(14):
        c="0" if jj==0 else f"v[{T}:{T+3}]"
        A(f"v_mfma_f32_16x16x32_bf16 v[{T}:{T+3}], v[{XF+4*jj}:{XF+4*jj+3}], v[{WF+4*jj}:{WF+4*jj+3}], {c}")
    A(f"s_mul_i32 s{sTAG}, s{sE}, 0x9E3779B1\ns_add_u32 s{sTAG}, s{sTAG}, 0x7F4A7C15")
    A(f"s_add_u32 s{sFF}, s{sE}, 1\ns_and_b32 s{sFF}, s{sFF}, 0xff\nv_mov_b32 v{vT8}, s{sFF}\ns_mov_b32 s{sFF}, 0xff\ns_mov_b32 s{sNM}, 0xffffff00")
    A(f"s_lshl_b32 s{sO2}, s{sCQ}, 6\ns_add_u32 s{sO2}, s{sO2}, {QBOX}\nv_lshlrev_b32 v{T+6}, 3, v7\nv_mov_b32 v{T+5}, s{sTAG}")
    A(f"v_mov_b32_dpp v{T+1}, v{T} quad_perm:[1,1,3,3] {DPP}")
    A(f"v_cvt_pk_bf16_f32 v{T+4}, v{T}, v{T+1}")
    A("s_mov_b64 exec, 0x5555")
    if not cfg.noqx: A(f"buffer_store_dwordx2 v[{T+4}:{T+5}], v{T+6}, s[{SRDW}:{SRDW+3}], s{sO2} offen sc1")
    A("s_mov_b64 exec, -1")
    stamp(2)
    TT1=tt(lambda a,b,t:(a^t)|(b^t)); TT2=tt(lambda a,b,c:(a|b)&c)
    def poll(loads, soff, mode, sleep, fast=0, fthr=None):
        PM=4
        lp=lab("poll"); ld=lab("polld")
        for i,(d,vo,imm,lm) in enumerate(loads):
            if lm is None: A(f"s_mov_b64 s[{PM+2*i}:{PM+2*i+1}], -1")
            else: A(f"s_mov_b32 s{PM+2*i}, {lm&0xffffffff:#x}\ns_mov_b32 s{PM+2*i+1}, {lm>>32:#x}")
        A(f"s_mov_b32 s{sSPIN}, 0\ns_mov_b32 s14, 999")
        A(f"{lp}:")
        for i,(d,vo,imm,lm) in enumerate(loads):
            sk=lab("sk")
            A(f"s_mov_b64 exec, s[{PM+2*i}:{PM+2*i+1}]\ns_cbranch_execz {sk}")
            A(f"buffer_load_dwordx4 v[{d}:{d+3}], v{vo}, s[{SRDW}:{SRDW+3}], s{soff} offen offset:{imm} {cfg.lpol}")
            A(f"{sk}:")
        A(f"s_mov_b64 exec, -1\ns_add_u32 s{sSPIN}, s{sSPIN}, 1")
        if fast and fthr is not None:
            sk=lab("fs")
            A(f"s_cmp_le_u32 s14, {fthr}\ns_cbranch_scc1 {sk}\ns_waitcnt vmcnt(0)\n{sk}:")
        A(f"s_waitcnt vmcnt({fast})")
        for i,(d,vo,imm,lm) in enumerate(loads):
            if mode=='s':
                A(f"v_max3_u32 v{T+i}, v{d}, v{d+1}, v{d+2}\nv_max_u32 v{T+i}, v{T+i}, v{d+3}")
            elif mode=='q':
                A(f"v_xor_b32 v{T+i}, s{sTAG}, v{d+1}\nv_xor_b32 v{T+4+i}, s{sTAG}, v{d+3}\nv_or_b32 v{T+i}, v{T+i}, v{T+4+i}")
            else:
                A(f"v_bitop3_b32 v{T+i}, v{d}, v{d+1}, v{vT8} bitop3:{TT1:#x}\nv_bitop3_b32 v{T+4+i}, v{d+2}, v{d+3}, v{vT8} bitop3:{TT1:#x}")
                A(f"v_bitop3_b32 v{T+i}, v{T+i}, v{T+4+i}, s{sFF} bitop3:{TT2:#x}")
        for i,(d,vo,imm,lm) in enumerate(loads):
            A(("v_cmp_eq_u32 vcc, -1" if mode=='s' else "v_cmp_ne_u32 vcc, 0")+f", v{T+i}\ns_and_b64 s[{PM+2*i}:{PM+2*i+1}], s[{PM+2*i}:{PM+2*i+1}], vcc")
        if len(loads)>1:
            A(f"s_or_b64 s[12:13], s[{PM}:{PM+1}], s[{PM+2}:{PM+3}]")
            for i in range(2,len(loads)): A(f"s_or_b64 s[12:13], s[12:13], s[{PM+2*i}:{PM+2*i+1}]")
        A(f"s_cbranch_scc0 {ld}")
        if fast and fthr is not None:
            A(f"s_bcnt1_i32_b64 s14, s[{PM}:{PM+1}]")
            for i in range(1,len(loads)): A(f"s_bcnt1_i32_b64 s15, s[{PM+2*i}:{PM+2*i+1}]\ns_add_u32 s14, s14, s15")
            if sleep:
                sk=lab("ns")
                A(f"s_cmp_le_u32 s14, {fthr}\ns_cbranch_scc1 {sk}\ns_sleep {sleep}\n{sk}:")
        elif sleep: A(f"s_sleep {sleep}")
        A(f"s_cmp_lt_u32 s{sSPIN}, {SPIN_LIMIT*4}\ns_cbranch_scc1 {lp}")
        A(f"{ld}:")
    A(f"s_lshr_b32 s{sO2}, s2, 5\ns_lshl_b32 s{sO2}, s{sO2}, 11\ns_add_u32 s{sO2}, s{sO2}, {QBOX}")
    def backoff(n):
        while n>0:
            A(f"s_sleep {min(n,127)}"); n-=127
    backoff(cfg.qdelay)
    if not cfg.noqx: poll([(F,vL16,0,None),(F+4,vL16,1024,None)], sO2, 'q', cfg.qsleep)
    stamp('qrecv')
    if not NB: A(f"v_mov_b32 v{T}, {RDY}\nv_mov_b32 v{T+1}, 0\nds_write2_b32 v{T}, v{T+1}, v{T+1} offset0:0 offset1:1")
    A(f"v_lshlrev_b32 v{T}, 3, v2\nv_add_u32 v{T}, {QB}, v{T}")
    A(f"ds_write2_b32 v{T}, v{F}, v{F+2} offset0:0 offset1:1\nds_write2_b32 v{T}, v{F+4}, v{F+6} offset0:128 offset1:129")
    if NB: A(f"v_mov_b32 v{T}, {QRDY}\nv_mov_b32 v{T+1}, 1\ns_waitcnt lgkmcnt(0)\nds_write_b32 v{T}, v{T+1}")
    else: A("s_waitcnt lgkmcnt(0)\ns_barrier")
    stamp(3)
    if cfg.prio2!=3: A(f"s_setprio {cfg.prio2}")
    if cfg.pool:
        lz=lab("nz")
        A(f"s_and_b32 s4, s2, 7\ns_cbranch_scc1 {lz}")
        A(f"s_lshr_b32 s4, s2, 3\ns_mul_i32 s4, s4, {4*CSTR}\ns_add_u32 s4, s4, {CNT}\nv_mul_u32_u24 v{T}, {CSTR}, v2\nv_mov_b32 v{T+1}, 0\ns_mov_b64 exec, 15")
        A(f"buffer_store_dword v{T+1}, v{T}, s[{SRDW}:{SRDW+3}], s4 offen sc1\ns_mov_b64 exec, -1\n{lz}:")
    if cfg.probe is not None and cfg.probe[0]=='g':
        A(f"s_lshl_b32 s4, s2, 2\ns_add_u32 s4, s4, 0x300000\nv_mov_b32 v{T}, 0\nv_mov_b32 v{T+1}, s80\ns_mov_b64 exec, 1\nbuffer_store_dword v{T+1}, v{T}, s[{SRDW}:{SRDW+3}], s4 offen sc1\ns_mov_b64 exec, -1")
    A(f"s_bfe_u32 s{sB}, s2, 0x10003\ns_lshr_b32 s{sA}, s2, 4\ns_lshl_b32 s{sA}, s{sA}, 3\ns_and_b32 s{sO2}, s2, 7\ns_add_u32 s{sA}, s{sA}, s{sO2}")
    A(f"v_and_b32 v{T}, 15, v2"); masks(AM,T,T+1,T+2)
    A(f"v_lshrrev_b32 v{T+1}, 4, v2\nv_mul_u32_u24 v{vTO}, 896, v{T+1}\nv_lshl_add_u32 v{vTO}, v{T}, 4, v{vTO}")
    for r in range(8): A(f"v_mov_b32 v{PA+r}, 0")
    def tile_load(sr, gated=True, so=None):
        for t in range(8):
            o=sO2 if so is None else so
            if gated and cfg.agate is not None: A(f"s_waitcnt vmcnt({cfg.agate})")
            A(f"buffer_load_dwordx4 v[{WT+8*t}:{WT+8*t+3}], v{vTO}, s[{sr}:{sr+3}], s{o} offen {cfg.wnt}")
            A("s_mov_b32 exec_lo, 0x0fff0fff\ns_mov_b32 exec_hi, 0x0fff0fff")
            A(f"buffer_load_dwordx4 v[{WT+8*t+4}:{WT+8*t+7}], v{vTO}, s[{sr}:{sr+3}], s{o} offen offset:256 {cfg.wnt}")
            A(f"s_mov_b64 exec, -1\ns_add_u32 s{o}, s{o}, 3584")
    def project(src):
        for t in range(8):
            v,ln=src(t)
            for r in range(4): A(f"v_and_b32_dpp v{AT+4*t+r}, v{v}, v{AM+r} row_newbcast:{ln} {DPP}")
            if t>=1:
                tp=t-1
                for cb in range(2):
                    A(f"v_mfma_f32_16x16x32_bf16 v[{PA+4*cb}:{PA+4*cb+3}], v[{AT+4*tp}:{AT+4*tp+3}], v[{WT+8*tp+4*cb}:{WT+8*tp+4*cb+3}], v[{PA+4*cb}:{PA+4*cb+3}]")
        for cb in range(2):
            A(f"v_mfma_f32_16x16x32_bf16 v[{PA+4*cb}:{PA+4*cb+3}], v[{AT+28}:{AT+31}], v[{WT+56+4*cb}:{WT+56+4*cb+3}], v[{PA+4*cb}:{PA+4*cb+3}]")
    A(f"v_lshrrev_b32 v{T}, 5, v2\nv_lshlrev_b32 v{T}, 9, v{T}\nv_and_b32 v{T+1}, 15, v2\nv_lshl_add_u32 v{T}, v{T+1}, 5, v{T}\nv_bfe_u32 v{T+1}, v2, 4, 1\nv_lshl_add_u32 v{vPS}, v{T+1}, 4, v{T}")
    def rec_store(soff, sent=False):
        nop(8)
        for r in range(4): A(f"v_permlane32_swap_b32 v{PA+r}, v{PA+4+r}")
        for r in range(4):
            if sent: A(f"v_min_u32 v{PA+r}, -2, v{PA+r}")
            else: A(f"v_bfi_b32 v{PA+r}, s{sFF}, v{vT8}, v{PA+r}")
        A("s_mov_b32 exec_hi, 0x0fff0fff")
        A(f"buffer_store_dwordx4 v[{PA}:{PA+3}], v{vPS}, s[{SRDW}:{SRDW+3}], s{soff} offen {cfg.opol}")
        A("s_mov_b32 exec_hi, -1")
    A(f"s_lshl_b32 s{sCQ}, s{sB}, 7\ns_add_u32 s{sCQ}, s{sCQ}, s{sA}\ns_lshl_b32 s{sCQ}, s{sCQ}, 10\ns_add_u32 s{sCQ}, s{sCQ}, {PBOX}")
    if cfg.sent:
        for r in range(4): A(f"v_mov_b32 v{F+r}, -1")
        A(f"s_lshl_b32 s4, s2, 11\ns_add_u32 s4, s4, {OBOX}")
        A(f"buffer_store_dwordx4 v[{F}:{F+3}], v{vL16}, s[{SRDW}:{SRDW+3}], s4 offen {cfg.cpol}\ns_waitcnt vmcnt({cfg.cgate})")
        A(f"buffer_store_dwordx4 v[{F}:{F+3}], v{vL16}, s[{SRDW}:{SRDW+3}], s4 offen offset:1024 {cfg.cpol}\ns_waitcnt vmcnt({cfg.cgate})")
        if cfg.cpol=='': A("s_waitcnt vmcnt(0)\nbuffer_wbl2 sc1\ns_waitcnt vmcnt(0)")
        if cfg.sent2: A(f"s_mov_b64 exec, s[74:75]\nbuffer_store_dwordx4 v[{F}:{F+3}], v{vL16}, s[{SRDW}:{SRDW+3}], s{sCQ} offen sc1\ns_mov_b64 exec, -1")
        nop(2)
    lnm=lab("nomlp")
    HA=WF; HS=WF+32; sMO=70
    A(f"s_lshr_b32 s{sCM}, s2, 3\ns_xor_b32 s4, s{sCM}, s2\ns_and_b32 s4, s4, 7\ns_cbranch_scc1 {lnm}")
    A(f"s_cmp_ge_u32 s{sCM}, {0 if cfg.nomlp else 28}\ns_cbranch_scc1 {lnm}")
    A(f"v_lshrrev_b32 v{T}, 3, v2\nv_mul_u32_u24 v{vWO_}, 3584, v{T}\nv_and_b32 v{T}, 7, v2\nv_lshl_add_u32 v{vWO_}, v{T}, 4, v{vWO_}")
    srd(SRDK,sW1,448*1792*2)
    srd(SRDA,sB1,3584)
    A(f"v_and_b32 v{T}, 15, v2\nv_lshlrev_b32 v{T}, 1, v{T}\ns_lshl_b32 s{sO2}, s{sCM}, 7")
    for u in range(4): A(f"buffer_load_ushort v{F+u}, v{T}, s[{SRDA}:{SRDA+3}], s{sO2} offen offset:{32*u}\ns_nop 0")
    for ps in range(4):
        nk = 4 if ps<3 else 2
        for i in range(4*nk):
            if cfg.mgate is not None: A(f"s_waitcnt vmcnt({cfg.mgate})")
            A(f"s_mov_b32 m0, {WBUF+i*1024}\ns_nop 0")
            if not cfg.now1: A(f"buffer_load_dwordx4 v{vWO_}, s[{SRDK}:{SRDK+3}], s{sO2} offen {cfg.wnt} lds")
            A(f"s_add_u32 s{sO2}, s{sO2}, {8*3584}")
        A("s_waitcnt vmcnt(0)")
        for kk in range(nk):
            for u in range(4):
                r=WT+16*kk+4*u
                A(f"ds_read_b64_tr_b16 v[{r}:{r+1}], v{vG1} offset:{kk*4096+u*32}\nds_read_b64_tr_b16 v[{r+2}:{r+3}], v{vG1} offset:{kk*4096+u*32+512}")
        A("s_waitcnt lgkmcnt(0)")
        for kk in range(nk):
            for u in range(4):
                r=WT+16*kk+4*u; x=XF+4*(4*ps+kk)
                c="0" if (ps==0 and kk==0) else f"v[{HA+4*u}:{HA+4*u+3}]"
                A(f"v_mfma_f32_16x16x32_bf16 v[{HA+4*u}:{HA+4*u+3}], v[{x}:{x+3}], v[{r}:{r+3}], {c}")
    nop(8)
    k0=math.sqrt(2/math.pi)
    for u in range(4):
        h=HA+4*u; t1=h+1; t2=h+2
        rbf(h,h)
        A(f"v_lshlrev_b32 v{F+u}, 16, v{F+u}\nv_add_f32 v{h}, v{h}, v{F+u}"); rbf(h,h)
        A(f"v_mul_f32 v{t1}, v{h}, v{h}\nv_mul_f32 v{t1}, v{t1}, v{h}\nv_mov_b32 v{t2}, {f2u(0.044715):#x}\nv_fma_f32 v{t1}, v{t1}, v{t2}, v{h}")
        A(f"v_mul_f32 v{t1}, {f2u(-2*k0*math.log2(math.e)):#x}, v{t1}\nv_exp_f32 v{t1}, v{t1}"); nop(1)
        A(f"v_add_f32 v{t1}, 1.0, v{t1}\nv_rcp_f32 v{t1}, v{t1}"); nop(1)
        A(f"v_mul_f32 v{h}, v{h}, v{t1}\nv_cvt_pk_bf16_f32 v{h}, v{h}, v{h}\nv_mov_b32 v{HS+u}, v{h}"); nop(2)
        for g in range(1,4): A(f"v_mov_b32_dpp v{HS+u}, v{h} row_ror:{16-g} row_mask:{1<<g:#x} bank_mask:0xf")
    srd(SRDK,sW2,1792*448*2)
    for bb in range(2):
        A(f"s_mul_i32 s{sO2}, s{sCM}, {64*896}\ns_add_u32 s{sO2}, s{sO2}, {448*bb}")
        for rb in range(2):
            if not cfg.now2: tile_load(SRDK)
            A("s_waitcnt vmcnt(0)")
            project(lambda t:(HS+2*rb+(t>>2), 4*(t&3)))
            nop(4)
        A(f"s_lshl_b32 s4, s{sCM}, 10\ns_add_u32 s4, s4, {MBOX+bb*32768}")
        rec_store(4)
        nop(2)
        for r in range(8): A(f"v_mov_b32 v{PA+r}, 0")
    stamp('mlpdone')
    A(f"{lnm}:")
    FC=cfg.fc; FC0=256-FC
    stamp('wodone')
    if NB: ldswait(KCNT, T, T+1, sSPIN, 4, 16)
    else: A("s_barrier")
    stamp(4)
    A(f"s_mov_b32 s{sCM}, {f2u(CEXP):#x}")
    if cfg.pool:
        A(f"v_bfe_u32 v{T}, v2, 2, 2\nv_lshlrev_b32 v{T}, 11, v{T}\nv_lshrrev_b32 v{T+1}, 4, v2\nv_lshl_add_u32 v{T}, v{T+1}, 6, v{T}\nv_and_b32 v{T+1}, 3, v2\nv_lshl_add_u32 v{T}, v{T+1}, 4, v{T}\nv_add_u32 v{T}, {SC+28*64}, v{T}")
        A(f"ds_read_b128 v[{X}:{X+3}], v{T}\ns_lshl_b32 s4, s2, 10\ns_add_u32 s4, s4, {SBOX}\ns_waitcnt lgkmcnt(0)")
        A(f"buffer_store_dwordx4 v[{X}:{X+3}], v{vL16}, s[{SRDW}:{SRDW+3}], s4 offen sc1")
    A(f"v_and_b32 v{T}, 1, v2\nv_lshlrev_b32 v{T+1}, 4, v{T}\nv_add_u32 v{T+1}, {MX}, v{T+1}\nv_lshlrev_b32 v{T+2}, 5, v2\nv_add_u32 v{T+2}, {SC}, v{T+2}")
    A(f"ds_read_b128 v[{F}:{F+3}], v{T+1}")
    for w in range(4):
        A(f"ds_read_b128 v[{XF+8*w}:{XF+8*w+3}], v{T+2} offset:{w*2048}\nds_read_b128 v[{XF+8*w+4}:{XF+8*w+7}], v{T+2} offset:{w*2048+16}")
    A("s_waitcnt lgkmcnt(0)")
    A(f"v_max_f32 v{F}, v{F}, v{F+1}\nv_max3_f32 v{F}, v{F}, v{F+2}, v{F+3}\nv_mul_f32 v{F+4}, s{sCM}, v{F}\nv_sub_f32 v{F+4}, 0, v{F+4}")
    A(f"v_mov_b32 v{F+1}, 0\nv_mov_b32 v{F+5}, 0")
    for r in range(32):
        A(f"v_lshlrev_b32 v{T+3}, 16, v{XF+r}\nv_and_b32 v{T+4}, 0xffff0000, v{XF+r}")
        A(f"v_fma_f32 v{T+3}, v{T+3}, s{sCM}, v{F+4}\nv_fma_f32 v{T+4}, v{T+4}, s{sCM}, v{F+4}")
        A(f"v_exp_f32 v{T+3}, v{T+3}\nv_exp_f32 v{T+4}, v{T+4}"); nop(1)
        A(f"v_add_f32 v{F+1}, v{F+1}, v{T+3}\nv_add_f32 v{F+5}, v{F+5}, v{T+4}")
    A(f"v_add_f32 v{F+1}, v{F+1}, v{F+5}")
    rowred("v_add_f32",F+1,[2,4,8]); xrowred("v_add_f32",F+1,T+3)
    nop(2)
    A(f"v_mov_b32_dpp v{F+2}, v{F} quad_perm:[1,1,3,3] {DPP}\nv_mov_b32_dpp v{F+3}, v{F+1} quad_perm:[1,1,3,3] {DPP}")
    A(f"v_mov_b32 v{F+6}, v{F}")
    for r in range(4): A(f"v_bfi_b32 v{F+r}, s{sFF}, v{vT8}, v{F+r}")
    if cfg.probe is not None and cfg.probe[0]=='x':
        A(f"s_getreg_b32 s4, hwreg(HW_REG_XCC_ID)\ns_and_b32 s4, s4, 15\ns_lshl_b32 s4, s4, 8\nv_or_b32 v{F}, s4, v{F}")
    A(f"s_lshl_b32 s{sO2}, s2, 4\ns_add_u32 s{sO2}, s{sO2}, {MLBOX}\nv_mov_b32 v{T}, 0\ns_mov_b64 exec, 1\ns_waitcnt vmcnt(0)")
    if not cfg.noml: A(f"buffer_store_dwordx4 v[{F}:{F+3}], v{T}, s[{SRDW}:{SRDW+3}], s{sO2} offen sc1")
    A("s_mov_b64 exec, -1")
    srd(SRDK,sWO,4096*448*2)
    A(f"s_mul_i32 s{sO2}, s{sA}, {32*896}\ns_mul_i32 s{sSPIN}, s{sB}, 448\ns_add_u32 s{sO2}, s{sO2}, s{sSPIN}")
    LATE = cfg.wolate and cfg.pool
    if not cfg.nowo and not LATE: tile_load(SRDK)
    FC=cfg.fc
    lnf=lab("nofin")
    FC0=256-FC
    if FC==56:
        A(f"v_lshrrev_b32 v{T}, 4, v2\nv_and_b32 v{T+1}, 1, v2\nv_lshl_add_u32 v{T}, v{T+1}, 2, v{T}\nv_lshlrev_b32 v{vG2}, 1, v{T}")
        A(f"s_sub_u32 s{sO2}, s2, {FC0}\ns_lshl_b32 s{sO2}, s{sO2}, 4")
    else:
        A(f"v_lshrrev_b32 v{T}, 4, v2\nv_lshlrev_b32 v{vG2}, 1, v{T}")
        A(f"s_sub_u32 s{sO2}, s2, {FC0}\ns_lshl_b32 s{sO2}, s{sO2}, 3")
    A(f"v_add_u32 v{vG2}, s{sO2}, v{vG2}")
    A(f"s_cmp_lt_u32 s2, {FC0}\ns_cbranch_scc1 {lnf}")
    srd(SRDA,sX,896)
    A(f"buffer_load_ushort v{vFX}, v{vG2}, s[{SRDA}:{SRDA+3}], 0 offen")
    srd(SRDK,sB2,896)
    A(f"buffer_load_ushort v{T}, v{vG2}, s[{SRDK}:{SRDK+3}], 0 offen")
    A(f"s_waitcnt vmcnt(0)\nv_lshlrev_b32 v{vFX}, 16, v{vFX}\nv_lshlrev_b32 v{vFM}, 16, v{T}")
    if not cfg.mimic: A(f"v_add_f32 v{vFX}, v{vFX}, v{vFM}")
    A(f"{lnf}:")
    backoff(cfg.mldelay)
    I1=XF
    A(f"s_lshr_b32 s{sO2}, s2, 5\ns_lshl_b32 s{sO2}, s{sO2}, 9\ns_add_u32 s{sO2}, s{sO2}, {MLBOX}\nv_lshlrev_b32 v{vWO_}, 4, v7")
    if not cfg.noml: poll([(I1,vWO_,0,None)], sO2, 't', cfg.mlsleep)
    if cfg.probe is not None and cfg.probe[0]=='x':
        A(f"v_bfe_u32 v{T}, v{I1}, 8, 4\nv_mov_b32 v{T+1}, v{T}"); nop(2)
        A(f"v_permlane16_swap_b32 v{T}, v{T+1}\nv_cmp_ne_u32 vcc, v{T}, v{T+1}\ns_bcnt1_i32_b64 s79, vcc")
    A(f"v_and_b32 v{T}, 1, v2\nv_cmp_eq_u32 vcc, 1, v{T}"); nop(2)
    A(f"v_cndmask_b32 v{I1}, v{I1}, v{I1+2}, vcc\nv_cndmask_b32 v{I1+1}, v{I1+1}, v{I1+3}, vcc\nv_and_b32 v{I1}, 0xffff0000, v{I1}\nv_and_b32 v{I1+1}, s{sNM}, v{I1+1}\nv_mov_b32 v{T+1}, v{I1}")
    rowred("v_max_f32",T+1,[2,4,8]); xrowred("v_max_f32",T+1,T+2)
    A(f"v_sub_f32 v{T+2}, v{I1}, v{T+1}\nv_sub_f32 v{T+3}, v{F+6}, v{T+1}\nv_mul_f32 v{T+2}, s{sCM}, v{T+2}\nv_mul_f32 v{T+3}, s{sCM}, v{T+3}")
    A(f"v_exp_f32 v{T+2}, v{T+2}\nv_exp_f32 v{T+3}, v{T+3}"); nop(1)
    A(f"v_mul_f32 v{T+2}, v{T+2}, v{I1+1}")
    rowred("v_add_f32",T+2,[2,4,8]); xrowred("v_add_f32",T+2,T+4)
    A(f"v_rcp_f32 v{T+4}, v{T+2}"); nop(1)
    A(f"v_fma_f32 v{T+5}, -v{T+2}, v{T+4}, 1.0\nv_fma_f32 v{T+4}, v{T+5}, v{T+4}, v{T+4}")
    A(f"v_lshlrev_b32 v{T}, 2, v{T}\nv_add_u32 v{T}, {FB}, v{T}")
    if cfg.pool:
        A(f"v_mul_f32 v{T+1}, s{sCM}, v{T+1}\nv_sub_f32 v{T+1}, 0, v{T+1}")
        A(f"ds_write_b32 v{T}, v{T+4}\nds_write_b32 v{T}, v{T+3} offset:8\nds_write_b32 v{T}, v{T+1} offset:16")
        A(f"s_and_b32 s4, s2, 0xf8\ns_lshl_b32 s4, s4, 10\ns_add_u32 s4, s4, {SBOX}")
        for k in range(8):
            if k==4: A("s_add_u32 s4, s4, 4096")
            A(f"s_waitcnt vmcnt(1)\nbuffer_load_dwordx4 v[{I1+4*k}:{I1+4*k+3}], v{vL16}, s[{SRDW}:{SRDW+3}], s4 offen offset:{(k&3)*1024} sc1")
        A(f"v_add_u32 v{T}, {WBUF}, v{vL16}\ns_waitcnt vmcnt(0)")
        for k in range(8): A(f"ds_write_b128 v{T}, v[{I1+4*k}:{I1+4*k+3}] offset:{k*1024}")
        A(f"v_mov_b32 v{T}, {RDY}\nv_mov_b32 v{T+1}, 1\ns_waitcnt lgkmcnt(0)\nds_write_b32 v{T}, v{T+1}")
        stamp('rdy')
    else:
        A(f"v_mul_f32 v{T+3}, v{T+3}, v{T+4}\nds_write_b32 v{T}, v{T+3}")
    half=FC//2
    sH2=68
    A(f"s_sub_u32 s{sSPIN}, s2, {FC0}\ns_cmp_ge_u32 s{sSPIN}, {half}\ns_cselect_b32 s{sH2}, {128*1024-896}, 0\ns_cselect_b32 s{sO2}, {32*1024-896}, 0\ns_mul_i32 s{sSPIN}, s{sSPIN}, {1792//FC}")
    A(f"s_add_u32 s{sH2}, s{sH2}, s{sSPIN}\ns_add_u32 s{sH2}, s{sH2}, {PBOX}\ns_add_u32 s{sO2}, s{sO2}, s{sSPIN}\ns_add_u32 s{sO2}, s{sO2}, {MBOX}")
    assert FC==56
    A(f"v_lshlrev_b32 v{vH}, 10, v7\nv_and_b32 v{T}, 1, v2\nv_lshl_add_u32 v{vH}, v{T}, 4, v{vH}")
    for k in range(1,4): A(f"v_add_u32 v{vH+k}, {k*32768}, v{vH}")
    if cfg.mimic and not cfg.nomlp:
        lg=lab("nomg")
        A(f"s_cmp_lt_u32 s2, {FC0}\ns_cbranch_scc1 {lg}")
        if cfg.sent2:
            A(f"s_mov_b32 s69, {MLBOX}")
            poll([(I1+4*k,vL16,1024*k,None) for k in range(4)], 69, 't', 64)
        for r in range(4): A(f"v_mov_b32 v{I1+r}, 0")
        poll([(I1,vH,0,(1<<56)-1)], sO2, 't', 64)
        for r in range(4): A(f"v_and_b32 v{I1+r}, s{sNM}, v{I1+r}")
        tred4(I1); rowred("v_add_f32",I1,[2,4,8])
        rbf(I1,I1)
        A(f"v_add_f32 v{vFM}, v{vFM}, v{I1}"); rbf(vFM,vFM)
        A(f"{lg}:")
    srd(SRDA,sOUT,896)
    A(f"v_bfe_u32 v{T}, v2, 3, 2\nv_lshlrev_b32 v{T}, 14, v{T}\nv_lshrrev_b32 v{T+1}, 5, v2\nv_lshl_add_u32 v{T}, v{T+1}, 11, v{T}\nv_and_b32 v{T+1}, 7, v2\nv_lshl_add_u32 v{vG1}, v{T+1}, 4, v{T}")
    for k in range(1,4): A(f"v_add_u32 v{X+k}, {k*4096}, v{vG1}")
    A(f"s_lshr_b32 s{sO2}, s2, 5\ns_lshl_b32 s{sO2}, s{sO2}, 16\ns_and_b32 s{sSPIN}, s{sA}, 15\ns_lshl_b32 s{sSPIN}, s{sSPIN}, 7\ns_add_u32 s{sO2}, s{sO2}, s{sSPIN}\ns_add_u32 s{sO2}, s{sO2}, {OBOX}")
    if cfg.warm:
        lh=lab("pc")
        A(f"s_getpc_b64 s[4:5]\n{lh}:\nv_lshlrev_b32 v{T}, 6, v2")
        A(f"v_min_u32 v{T+1}, {Ldone}-{lh}, v{T}\nglobal_load_dword v{T+1}, v{T+1}, s[4:5]")
        A(f"s_add_u32 s6, s4, {Lpool}-{lh}\ns_addc_u32 s7, s5, -1")
        for k in range(cfg.warm):
            A(f"global_load_dword v{T+2+k}, v{T}, s[6:7]\ns_add_u32 s6, s6, 4096\ns_addc_u32 s7, s7, 0")
    if cfg.touch is not None:
        if not cfg.sent:
            A(f"s_lshl_b32 s4, s2, 11\ns_add_u32 s4, s4, {OBOX}")
            A(f"buffer_load_dwordx4 v[{I1}:{I1+3}], v{vL16}, s[{SRDW}:{SRDW+3}], s4 offen {cfg.touch}\ns_nop 0")
            A(f"buffer_load_dwordx4 v[{I1+4}:{I1+7}], v{vL16}, s[{SRDW}:{SRDW+3}], s4 offen offset:1024 {cfg.touch}\ns_nop 0")
        if not cfg.sent2:
            A(f"buffer_load_dwordx4 v[{I1+8}:{I1+11}], v{vL16}, s[{SRDW}:{SRDW+3}], s{sCQ} offen {cfg.touch}")
        A("s_waitcnt vmcnt(0)")
    if LATE:
        srd(SRDK,sWO,4096*448*2)
        A(f"s_mul_i32 s69, s{sA}, {32*896}\ns_mul_i32 s4, s{sB}, 448\ns_add_u32 s69, s69, s4")
        lw=lab("dw"); lwd=lab("dwd")
    if LATE and cfg.wolate==2:
        A("s_waitcnt vmcnt(0) lgkmcnt(0)\ns_barrier")
        stamp(5)
        tile_load(SRDK, gated=False, so=69)
    elif LATE:
        A(f"v_mov_b32 v{T}, {DONE}\ns_mov_b32 s{sSPIN}, 0")
        A(f"{lw}:\nds_read_b32 v{T+1}, v{T}\ns_add_u32 s{sSPIN}, s{sSPIN}, 1\ns_waitcnt lgkmcnt(0)\nv_readfirstlane_b32 s4, v{T+1}\ns_cmp_lg_u32 s4, 0\ns_cbranch_scc1 {lwd}")
        A(f"s_sleep 2\ns_cmp_lt_u32 s{sSPIN}, {SPIN_LIMIT*64}\ns_cbranch_scc1 {lw}\n{lwd}:")
        backoff(cfg.wodelay)
        tile_load(SRDK, gated=False, so=69)
        A("s_barrier")
    else:
        A("s_waitcnt vmcnt(0) lgkmcnt(0)\ns_barrier")
    if cfg.wolate!=2: stamp(5)
    if cfg.notail: A(f"s_branch {lend}")
    R=F
    def sum16(I, sent):
        assert not (cfg.fast1 or cfg.fast2)
        if not sent:
            for r in range(16): A(f"v_and_b32 v{I+r}, s{sNM}, v{I+r}")
        for r in range(4): A(f"v_add_f32 v{R+r}, v{I+r}, v{I+4+r}\nv_add_f32 v{R+4+r}, v{I+8+r}, v{I+12+r}")
        for r in range(4): A(f"v_add_f32 v{R+r}, v{R+r}, v{R+4+r}")
        tred4(R)
    backoff(cfg.h1delay)
    poll([(I1,vG1,0,None),(I1+4,X+1,0,None),(I1+8,X+2,0,None),(I1+12,X+3,0,None)], sO2, 's' if cfg.sent else 't', cfg.sleep1, cfg.fast1, cfg.fthr)
    stamp(6)
    if cfg.tdiag: A(f"s_mov_b32 s95, s{sSPIN}")
    sum16(I1,cfg.sent); rowred("v_add_f32",R,[8])
    A(f"v_cvt_pk_bf16_f32 v{R}, v{R}, v{R}"); nop(2)
    project(lambda t:(R,t))
    rec_store(sCQ, cfg.sent2)
    stamp('rec')
    A(f"s_cmp_lt_u32 s2, {FC0}\ns_cbranch_scc1 {lend}")
    I2=XF+16
    if cfg.ackw: A("s_waitcnt vmcnt(0)")
    backoff(cfg.h2delay)
    poll([(I2+4*k,vH+k,0,None) for k in range(4)], sH2, 's' if cfg.sent2 else 't', cfg.sleep2, cfg.fast2, None)
    stamp('h2')
    sum16(I2,cfg.sent2); rowred("v_add_f32",R,[2,4,8])
    if cfg.mimic:
        rbf(R,R)
        A(f"v_add_f32 v{R}, v{vFX}, v{R}"); rbf(R,R)
        A(f"v_add_f32 v{R}, v{R}, v{vFM}\nv_cvt_pk_bf16_f32 v{R}, v{R}, v{R}")
    else:
        A(f"v_add_f32 v{R}, v{vFX}, v{R}\nv_cvt_pk_bf16_f32 v{R}, v{R}, v{R}")
    A(f"s_mov_b32 exec_lo, 0x00030003\ns_mov_b32 exec_hi, 0x00030003")
    A(f"buffer_store_short v{R}, v{vG2}, s[{SRDA}:{SRDA+3}], 0 offen")
    A(f"s_cmp_lg_u32 s2, 255\ns_cbranch_scc1 {lend}")
    A(f"s_mov_b64 exec, 1\ns_add_u32 s{sE}, s{sE}, 1\nv_mov_b32 v{T+1}, s{sE}\nv_mov_b32 v{T+2}, 0")
    A(f"buffer_store_dword v{T+1}, v{T+2}, s[{SRDW}:{SRDW+3}], 0 offen sc1")
    if cfg.probe is not None:
        lx=lab("px"); ly=lab("py")
        if cfg.probe[0]=='g':
            A(f"s_mov_b64 exec, -1\ns_mov_b32 s4, 0x300000\nbuffer_load_dwordx4 v[{F}:{F+3}], v{vL16}, s[{SRDW}:{SRDW+3}], s4 offen sc1")
            A("s_waitcnt vmcnt(0)\ns_memrealtime s[82:83]\ns_waitcnt lgkmcnt(0)")
            for r in range(4): A(f"v_sub_u32 v{F+r}, s82, v{F+r}")
            A(f"v_max3_u32 v{F}, v{F}, v{F+1}, v{F+2}\nv_max_u32 v{F}, v{F}, v{F+3}\ns_mov_b32 s4, {int(cfg.probe[1]*100)}\nv_cmp_lt_u32 vcc, s4, v{F}\ns_cbranch_vccz {lend}")
        elif cfg.probe[0]=='t':
            A("s_waitcnt vmcnt(0)\ns_memrealtime s[82:83]\ns_waitcnt lgkmcnt(0)")
            k={'end':82,'b1':86,'b2':88,'b3':90}[cfg.probe[2]]
            A(f"s_sub_u32 s4, s{k}, s80\ns_cmp_lt_u32 s4, {int(cfg.probe[1]*100)}\ns_cbranch_scc1 {lend}")
        else:
            A(f"s_cmp_eq_u32 s79, 0\ns_cbranch_scc1 {lend}")
        A(f"s_mov_b32 s4, 40\n{lx}:\ns_sleep 40\ns_sub_u32 s4, s4, 1\ns_cmp_lg_u32 s4, 0\ns_cbranch_scc1 {lx}")
        A("s_endpgm")
    A(f"{lend}:")
    if cfg.probe is not None: pass
    elif cfg.stamps and cfg.dbgout:
        A(f"s_cmp_lt_u32 s2, 252\ns_cbranch_scc1 {Ldone}")
        A("s_mov_b64 exec, 1\ns_waitcnt vmcnt(0)")
        stamp(1)
        srd(SRDA,sDBG,256)
        A(f"s_waitcnt lgkmcnt(0)\ns_sub_u32 s{sO2}, s2, 252\ns_lshl_b32 s{sO2}, s{sO2}, 4\nv_mov_b32 v{T}, 0")
        for i,k in enumerate((3,4,5,1)):
            A(f"s_sub_u32 s4, s{80+2*k}, s80\nv_mov_b32 v{F+i}, s4")
        A(f"buffer_store_dwordx4 v[{F}:{F+3}], v{T}, s[{SRDA}:{SRDA+3}], s{sO2} offen")
    elif cfg.stamps:
        A("s_mov_b64 exec, 1\ns_waitcnt vmcnt(0)")
        stamp(1)
        A("s_getreg_b32 s94, hwreg(HW_REG_XCC_ID)\ns_waitcnt lgkmcnt(0)")
        A(f"s_lshl_b32 s{sO2}, s2, 6\ns_add_u32 s{sO2}, s{sO2}, {STAMP:#x}\nv_mov_b32 v{T}, 0")
        for k in range(8):
            A(f"v_mov_b32 v{F}, s{80+2*k}\nv_mov_b32 v{F+1}, s{81+2*k}\nbuffer_store_dwordx2 v[{F}:{F+1}], v{T}, s[{SRDW}:{SRDW+3}], s{sO2} offen offset:{8*k}\ns_nop 1")
    A(f"{Ldone}:")
    A("s_endpgm")
    body="\n".join(L)+"\n"
    kd=f""".section .rodata,"a"
.p2align 6
.amdhsa_kernel {N}
  .amdhsa_next_free_vgpr 232
  .amdhsa_next_free_sgpr 96
  .amdhsa_accum_offset 232
  .amdhsa_group_segment_fixed_size 0
  .amdhsa_kernarg_size 104
  .amdhsa_user_sgpr_count 2
  .amdhsa_user_sgpr_kernarg_segment_ptr 1
  .amdhsa_system_sgpr_workgroup_id_x 1
  .amdhsa_float_denorm_mode_32 3
.end_amdhsa_kernel
"""
    return body, kd

def header():
    ref=open('parallel_sum__gqa_block_cached__dense_activation_gelu__decode.s.ref').read().split("\n")
    out=[]
    for l in ref:
        if l.startswith("; @launch"):
            out.append(f"; @launch grid=(256,1,1) block=(320,1,1) lds={LDS_END}")
            break
        out.append(l)
    return "\n".join(out)+"\n"

def final(cfg, path):
    body,kd=gen(cfg)
    open(path,"w").write(header()+'.amdgcn_target "amdgcn-amd-amdhsa--gfx950"\n.text\n'+body+kd)

def bench(cfgs, path):
    sys.path.insert(0,'bench')
    from genstream import meta
    s='.amdgcn_target "amdgcn-amd-amdhsa--gfx950"\n'
    ks=[]; args=[]
    for c in cfgs:
        body,kd=gen(c)
        s+=".text\n"+body+kd.replace("kernarg_size 104","kernarg_size 112")
        ks.append((c.name,232,320)); args.append(f"{c.name} 256 320 {LDS_END}")
    s+=meta(ks)
    open(path+".s","w").write(s); open(path+".args","w").write(" @ ".join(args))

def mk(name, **kw):
    c=Cfg(); c.name=name
    for k,v in kw.items():
        assert hasattr(c,k), k
        setattr(c,k,v)
    return c

if __name__=="__main__":
    if sys.argv[1]=="final":
        kw=eval(sys.argv[3]) if len(sys.argv)>3 else {}
        final(mk(KNAME,**kw), sys.argv[2])
    else:
        bench([mk(n,**kw) for n,kw in eval(sys.argv[3])], sys.argv[2])
```

```python
import sys, struct, math

KNAME = "parallel_sum__gqa_block_cached__dense_activation_gelu__decode_kernel"
def f2u(f): return struct.unpack('<I', struct.pack('<f', f))[0]

class Cfg:
    name = KNAME
    rot = 0
    pace = 6
    infl = 5
    stamps = False
    smap = {}
    wnt = "nt"
    qsleep = 16
    sleep1 = 2
    sleep2 = 0
    mlsleep = 100
    fc = 56
    nomlp = False
    notail = False
    auxnull = False
    nowo = False
    binf = None
    binfv = (6,6)
    brank = 26
    drain = True
    warm = False
    nobar = False
    wmaj = False
    order = [0,4,2,6,1,5,3,7]
    vorder = [0,1,2,3,4,5,6,7]
    sent = True
    sent2 = False
    cpol = 'sc1'
    cgate = 1
    now1 = False
    now2 = False
    mgate = 6
    wodelay = 0
    wolate = 2
    blk = 4
    rotH = 12
    rotS = 0
    ackw = True
    touch = 'sc1'
    h2delay = 8
    h1delay = 0
    mix = True
    tdiag = False
    qdelay = 50
    mldelay = 100
    prio2 = 0
    nowq = False
    noqx = False
    opol = 'sc1'
    lpol = 'sc1'
    probe = None
    pool = True
    pinfl = 12
    pclaim = 4
    first = 8
    fb = None
    qgate = 6
    cnt = 'nt'
    noml = False
    noopub = False
    mimic = True
    fast1 = 0
    fast2 = 0
    fthr = 64
    vpre = True
    agate = 6
    gran = 1
    thr = None
    dbgout = False

RING=0; SC=131072; WBUF=SC+8192; XN=WBUF+16384; QB=XN+1024; MX=QB+1024; FB=MX+64; RDY=FB+32; DONE=FB+36; QRDY=FB+40; KCNT=FB+44; BOOST=FB+48; LDS_END=FB+64
QBOX=0x1000; MLBOX=0x8000; OBOX=0x10000; PBOX=0x100000; MBOX=0x180000; SBOX=0x200000; CNT=0x280000; CSTR=4352; STAMP=0x20000000
SPIN_LIMIT = 1<<16
CEXP = 0.0625*math.log2(math.e)

def tt(f):
    r=0
    for idx in range(8):
        if f((idx>>2)&1,(idx>>1)&1,idx&1): r|=1<<idx
    return r

def gen(cfg):
    L=[]
    def A(s):
        for line in s.split("\n"):
            t=line.strip()
            L.append(t if t.endswith(":") else "    "+t)
    N=cfg.name
    pre = "L" if N==KNAME else f"L_{N}"
    uid=[0]
    def lab(p):
        uid[0]+=1; return f"{pre}_{p}{uid[0]}"
    def nop(n):
        if n>0: A(f"s_nop {n-1}")
    sX,sK,sV,sWQ,sWO,sW1,sB1=16,18,20,22,24,28,30
    sW2,sB2,sOUT,sDBG,sWS=32,34,36,38,40
    SRDK,SRDV,SRDA,SRDW=44,48,52,56
    sWAVE=3
    def srd(d, p, size):
        A(f"s_mov_b32 s{d}, s{p}\ns_mov_b32 s{d+1}, s{p+1}\ns_mov_b32 s{d+2}, {size:#x}\ns_mov_b32 s{d+3}, 0x20000")
    def stamp(k):
        if cfg.stamps:
            if isinstance(k,str):
                if k not in cfg.smap: return
                k=cfg.smap[k]
            elif k in cfg.smap.values(): return
            A(f"s_memrealtime s[{80+2*k}:{81+2*k}]")
    DPP="row_mask:0xf bank_mask:0xf"
    def rowred(op, v, rors):
        for r in rors:
            nop(2); A(f"{op}_dpp v{v}, v{v}, v{v} row_ror:{r} {DPP}")
    def xrowred(op, v, t):
        A(f"v_mov_b32 v{t}, v{v}"); nop(2); A(f"v_permlane16_swap_b32 v{v}, v{t}"); A(f"{op} v{v}, v{v}, v{t}")
        A(f"v_mov_b32 v{t}, v{v}"); nop(2); A(f"v_permlane32_swap_b32 v{v}, v{t}"); A(f"{op} v{v}, v{v}, v{t}")
    def tred4(a):
        nop(2)
        A(f"v_permlane32_swap_b32 v{a}, v{a+2}\nv_permlane32_swap_b32 v{a+1}, v{a+3}")
        A(f"v_add_f32 v{a}, v{a}, v{a+2}\nv_add_f32 v{a+1}, v{a+1}, v{a+3}")
        nop(2)
        A(f"v_permlane16_swap_b32 v{a}, v{a+1}")
        A(f"v_add_f32 v{a}, v{a}, v{a+1}")
    def rbf(d, s):
        A(f"v_cvt_pk_bf16_f32 v{d}, v{s}, v{s}\nv_and_b32 v{d}, 0xffff0000, v{d}")
    def masks(dst, n, t0, t1):
        A(f"v_and_b32 v{t0}, 1, v{n}\nv_lshlrev_b32 v{t0}, 4, v{t0}\nv_mov_b32 v{t1}, 0xffff\nv_lshlrev_b32 v{t1}, v{t0}, v{t1}\nv_bfe_u32 v{t0}, v{n}, 1, 2")
        for r in range(4):
            A(f"v_cmp_eq_u32 vcc, {r}, v{t0}"); nop(2); A(f"v_cndmask_b32 v{dst+r}, 0, v{t1}, vcc")

    def ldswait(addr, va, vd, cnt, need, sleep, mult=16):
        lw=lab("lw"); lwd=lab("lwd")
        A(f"v_mov_b32 v{va}, {addr}\ns_mov_b32 s{cnt}, 0")
        A(f"{lw}:\nds_read_b32 v{vd}, v{va}\ns_add_u32 s{cnt}, s{cnt}, 1\ns_waitcnt lgkmcnt(0)\nv_readfirstlane_b32 s4, v{vd}\ns_cmp_ge_u32 s4, {need}\ns_cbranch_scc1 {lwd}")
        A(f"s_sleep {sleep}\ns_cmp_lt_u32 s{cnt}, {SPIN_LIMIT*mult}\ns_cbranch_scc1 {lw}\n{lwd}:")
    Ldone=f"{pre}_done"; Laux=f"{pre}_aux"
    A(f".globl {N}\n.p2align 8\n.type {N},@function\n{N}:")
    A(f"s_cmp_ge_u32 s2, 256\ns_cbranch_scc1 {Ldone}")
    A("s_load_dwordx16 s[16:31], s[0:1], 0\ns_load_dwordx8 s[32:39], s[0:1], 64\ns_load_dwordx2 s[40:41], s[0:1], 96")
    stamp(0)
    A("v_lshrrev_b32 v1, 6, v0\nv_and_b32 v2, 63, v0")
    nop(1)
    A(f"v_readfirstlane_b32 s{sWAVE}, v1")
    A(f"s_cmp_eq_u32 s{sWAVE}, 4\ns_cbranch_scc1 {Laux}")

    vKO=8; vVO=16; vKA=18; vVA=22; vSA=23; vMASK=24; vMAX=28; vTG=29; vNM=30; vT=31
    QF=32; TF=64; D=96; S2=100; VP=104
    AR=32; ACC=48; P=56; vVP=7
    sRING,sREG,sNEXT,sOFF,sCNT,sC,sT8,sFF,sV0,sLV,sCL,sY,sSCO=60,61,62,63,64,65,66,67,68,69,70,71,72
    sPC=76
    A("v_lshrrev_b32 v3, 5, v2\nv_and_b32 v4, 31, v2\nv_lshlrev_b32 v5, 2, v3\nv_xor_b32 v4, v4, v5\nv_lshlrev_b32 v4, 4, v4\nv_lshl_add_u32 v4, v3, 9, v4")
    for j in range(8):
        c=(8*(j&1)+(j>>1))*16 | (4096 if j>=4 else 0)
        A(f"v_xor_b32 v{vKO+j}, {c:#x}, v4")
    B=cfg.blk; lb=B.bit_length()-1
    sHB,sRS=78,79
    A(f"s_lshl_b32 s{sRING}, s{sWAVE}, 15\ns_lshr_b32 s4, s2, 5\ns_lshl_b32 s{sHB}, s4, 25\ns_lshl_b32 s5, s{sWAVE}, {13+lb if cfg.wmaj else 13}\ns_add_u32 s{sHB}, s{sHB}, s5")
    A(f"s_mul_i32 s{sNEXT}, s4, {cfg.rotH}\ns_and_b32 s5, s2, 31\ns_mul_i32 s{sRS}, s5, {cfg.rotS}\ns_lshl_b32 s{sREG}, s5, {15+lb}\ns_add_u32 s{sREG}, s{sREG}, s{sHB}\ns_mov_b32 s{sV0}, s{sNEXT}")
    def taddr(dst, t, base, rs):
        A(f"s_bfe_u32 s4, s{t}, {((5-lb)<<16)|lb:#x}\ns_lshl_b32 s4, s4, {20+lb}\ns_add_u32 s{dst}, s{base}, s4")
        if lb:
            A(f"s_add_u32 s4, s{t}, s{rs}\ns_and_b32 s4, s4, {B-1}\ns_lshl_b32 s4, s4, {13 if cfg.wmaj else 15}\ns_add_u32 s{dst}, s{dst}, s4")
    A("s_waitcnt lgkmcnt(0)")
    srd(SRDK,sK,1<<28)
    INF=cfg.infl if isinstance(cfg.infl,tuple) else (cfg.infl,cfg.infl)
    phase=['K']
    def gate(j, lim):
        if lim is None: return "s_nop 0"
        bi = cfg.binf if phase[0]=='K' else cfg.binfv
        if lim is INF and bi is not None and bi[j%len(bi)]>lim[j%len(lim)]:
            g=lab("bg")
            return f"s_waitcnt vmcnt({bi[j%len(bi)]-1})\ns_cbranch_vccnz {g}\ns_waitcnt vmcnt({lim[j%len(lim)]-1})\n{g}:"
        return f"s_waitcnt vmcnt({lim[j%len(lim)]-1})"
    PINF=cfg.pinfl if isinstance(cfg.pinfl,tuple) else (cfg.pinfl,cfg.pinfl)
    def claim():
        A(f"s_mov_b32 s{sCL}, 1\ns_atomic_add s{sCL}, s[{sPC}:{sPC+1}], 0 glc")
    def steps(slot, kind, lim=INF, doclaim=False):
        def mk(j):
            def f():
                if kind is None: return
                pj=cfg.order[j]; half=pj>>2; jj=pj&3
                sk=None
                if kind in 'PQ':
                    if kind=='P': sk=lab("ps")
                    if j==0:
                        ok=lab("po")
                        if kind=='Q': pass
                        elif cfg.wolate==1:
                            A(f"s_waitcnt lgkmcnt(0)\ns_mov_b32 s{sSCO+slot}, -1\ns_cmp_lt_u32 s{sCL}, 32\ns_cbranch_scc1 {ok}")
                            A(f"v_mov_b32 v{vT}, {DONE}\nds_write_b32 v{vT}, v{vT}\ns_branch {sk}\n{ok}:")
                        else:
                            A(f"s_waitcnt lgkmcnt(0)\ns_mov_b32 s{sSCO+slot}, -1\ns_cmp_ge_u32 s{sCL}, 32\ns_cbranch_scc1 {sk}")
                        A(f"s_and_b32 s5, s{sCL}, 7\ns_lshr_b32 s6, s{sCL}, 3\ns_lshl_b32 s7, s5, 10\ns_lshl_b32 s8, s6, 8\ns_add_u32 s{sSCO+slot}, s7, s8")
                        A(f"s_and_b32 s7, s2, 0x18\ns_or_b32 s5, s5, s7\ns_mul_i32 s7, s5, {cfg.rotS}\ns_lshl_b32 s5, s5, {15+lb}\ns_add_u32 s5, s5, s{sHB}\ns_add_u32 s6, s6, s{sV0}")
                        taddr(sOFF,6,5,7)
                    elif kind=='P':
                        A(f"s_cmp_eq_u32 s{sSCO+slot}, -1\ns_cbranch_scc1 {sk}")
                elif j==0:
                    taddr(sOFF,sNEXT,sREG,sRS)
                    A(f"s_add_u32 s{sNEXT}, s{sNEXT}, 1")
                if (kind in 'PQ' or doclaim) and j==cfg.pclaim: claim()
                vo = vKO+pj if kind=='K' else vVO+half
                sr = SRDK if kind=='K' else SRDV
                A(f"s_add_u32 m0, s{sRING}, {slot*8192+half*4096}\n{gate(j, PINF if kind in 'PQ' else lim)}")
                A(f"buffer_load_dwordx4 v{vo}, s[{sr}:{sr+3}], s{sOFF} offen offset:{jj*1024} nt lds")
                if sk: A(f"{sk}:")
            return f
        return [mk(j) for j in range(8)]
    def weave(st, sl):
        for u in range(8):
            st[u]()
            if u<len(sl): sl[u]()
    for j,f in enumerate(steps(0,'K',None)[:cfg.first]): f()
    NB = cfg.nobar and cfg.pool and not cfg.auxnull
    if NB: A("s_barrier")
    srd(SRDV,sV,1<<28)
    A(f"s_load_dword s{sT8}, s[{sWS}:{sWS+1}], 0")
    A(f"v_lshlrev_b32 v{vVO}, 4, v2\nv_add_u32 v{vVO+1}, 0x1000, v{vVO}")
    A("v_lshrrev_b32 v3, 4, v2\nv_and_b32 v4, 15, v2")
    A("v_and_b32 v5, 3, v4\nv_lshlrev_b32 v5, 2, v5\nv_lshrrev_b32 v6, 2, v4\nv_add_u32 v5, v5, v6")
    A(f"v_xor_b32 v6, v3, v4\nv_lshlrev_b32 v6, 4, v6\nv_lshl_add_u32 v6, v5, 9, v6\nv_add_u32 v6, s{sRING}, v6")
    for q in range(4): A(f"v_xor_b32 v{vKA+q}, {q*64}, v6")
    A(f"v_lshlrev_b32 v6, 4, v4\nv_lshl_add_u32 v6, v3, 9, v6\nv_add_u32 v{vVA}, s{sRING}, v6")
    A(f"s_lshl_b32 s{sCNT}, s{sWAVE}, 11\ns_add_u32 s{sCNT}, s{sCNT}, {SC}")
    A(f"v_lshrrev_b32 v5, 3, v4\nv_lshlrev_b32 v6, 5, v5\nv_lshl_add_u32 v6, v3, 3, v6\nv_add_u32 v{vSA}, s{sCNT}, v6")
    A(f"v_lshlrev_b32 v7, 9, v5\nv_lshl_add_u32 v7, v3, 4, v7\nv_add_u32 v7, {QB}, v7")
    masks(vMASK,4,5,6)
    A(f"v_mov_b32 v{vMAX}, 0xff800000")
    A(f"s_lshr_b32 s4, s2, 3\ns_xor_b32 s5, s4, s2\ns_and_b32 s5, s5, 7\ns_cmp_lt_u32 s4, 28\ns_cselect_b32 s5, s5, 1\ns_cmp_eq_u32 s5, 0\ns_cselect_b64 vcc, 1, 0")
    A(f"v_subrev_u32 v{vT}, s{sRING}, v{vVA}\nv_add_u32 v1, 0x1000, v{vT}")
    for f in steps(0,'K')[cfg.first:]: f()
    for slot in (1,2):
        for f in steps(slot,'K'): f()
    for i in range(4):
        taddr(sOFF,sV0,sREG,sRS)
        for u in cfg.vorder:
            o=(u>>1)*2048+(u&1)*256
            vo = vT if o<4096 else 1
            A(gate(u,INF))
            A(f"buffer_load_dwordx4 v[{VP+32*i+4*u}:{VP+32*i+4*u+3}], v{vo}, s[{SRDV}:{SRDV+3}], s{sOFF} offen offset:{o&4095} nt")
        A(f"s_add_u32 s{sV0}, s{sV0}, {1 if i<3 else 25}")
    A(f"s_waitcnt lgkmcnt(0)\ns_add_u32 s{sT8}, s{sT8}, 1\ns_and_b32 s{sT8}, s{sT8}, 0xff\ns_mov_b32 s{sFF}, 0xff\nv_mov_b32 v{vTG}, s{sT8}")
    srd(SRDW,sWS,1<<30)
    if NB: ldswait(QRDY, vT, D, sCNT, 1, 2)
    else: A("s_barrier")
    for jj in range(8): A(f"ds_read_b128 v[{QF+4*jj}:{QF+4*jj+3}], v7 offset:{jj*64}")

    def ktile(slot, kind):
        def s0():
            A("s_waitcnt vmcnt(16)")
            for jj in range(8):
                A(f"ds_read_b128 v[{TF+4*jj}:{TF+4*jj+3}], v{vKA+(jj&3)} offset:{slot*8192+(jj>>2)*256}")
        def mf(r):
            def f():
                if r[0]==0: A("s_waitcnt lgkmcnt(0)")
                for jj in r:
                    c = "0" if jj==0 else f"v[{D}:{D+3}]"
                    A(f"v_mfma_f32_16x16x32_bf16 v[{D}:{D+3}], v[{TF+4*jj}:{TF+4*jj+3}], v[{QF+4*jj}:{QF+4*jj+3}], {c}")
            return f
        def s3():
            nop(5)
            A(f"v_cvt_pk_bf16_f32 v{S2}, v{D}, v{D+1}\nv_cvt_pk_bf16_f32 v{S2+1}, v{D+2}, v{D+3}")
            A(f"v_max3_f32 v{vMAX}, v{vMAX}, v{D}, v{D+1}\nv_max3_f32 v{vMAX}, v{vMAX}, v{D+2}, v{D+3}")
            A(f"ds_write_b64 v{vSA}, v[{S2}:{S2+1}] offset:{slot*64}")
        weave(steps((slot+3)&3,kind),[s0,mf([0,1,2,3]),mf([4,5,6,7]),s3])
    def pcalc():
        A(f"v_lshlrev_b32 v{P}, 16, v{S2}\nv_and_b32 v{P+1}, 0xffff0000, v{S2}\nv_lshlrev_b32 v{P+2}, 16, v{S2+1}\nv_and_b32 v{P+3}, 0xffff0000, v{S2+1}")
        for t in range(4): A(f"v_fma_f32 v{P+t}, v{P+t}, s{sC}, v{vNM}")
        for t in range(4): A(f"v_exp_f32 v{P+t}, v{P+t}")
        nop(1)
        for t in range(4): A(f"v_cvt_pk_bf16_f32 v{P+t}, v{P+t}, v{P+t}")
    def pmask():
        for t in range(4):
            for r in range(4): A(f"v_and_b32 v{AR+4*t+r}, v{P+t}, v{vMASK+r}")
    def pv(src, us):
        for u in us:
            t=u>>1; h=u&1
            A(f"v_mfma_f32_16x16x32_bf16 v[{ACC+4*h}:{ACC+4*h+3}], v[{AR+4*t}:{AR+4*t+3}], v[{src+4*u}:{src+4*u+3}], v[{ACC+4*h}:{ACC+4*h+3}]")
    def vtile(slot, kind, waitn, scoff=None, regs=None, pooled=False, doclaim=False):
        def s0():
            if pooled: A(f"v_add_u32 v{vT}, s{sSCO+slot}, v{vSA}\nds_read_b64 v[{S2}:{S2+1}], v{vT}")
            else: A(f"ds_read_b64 v[{S2}:{S2+1}], v{vSA} offset:{slot*64 if scoff is None else scoff}")
            rb = kind=='V' and cfg.binfv is not None and (slot&1)
            if rb: A(f"ds_read_b32 v{D}, v{vBA}")
            A("s_waitcnt lgkmcnt(0)")
            if rb: A(f"v_cmp_ne_u32 vcc, 0, v{D}")
            pcalc()
        def s1():
            if waitn=='y':
                go=lab("wy")
                A("s_waitcnt vmcnt(16)")
                for y in (2,1): A(f"s_cmp_ge_i32 s{sY}, {y}\ns_cbranch_scc1 {go}\ns_waitcnt vmcnt({8*(y-1)})")
                A(f"{go}:")
            else: A(f"s_waitcnt vmcnt({waitn})")
            for u in range(8):
                A(f"ds_read_b128 v[{TF+4*u}:{TF+4*u+3}], v{vVA} offset:{slot*8192+(u>>1)*2048+(u&1)*256}")
            if kind is not None:
                pmask()
                A("s_waitcnt lgkmcnt(0)")
        sl=[s0,s1,lambda:pv(TF,[0,1,2,3]),lambda:pv(TF,[4,5,6,7])]
        if kind is None:
            s0(); pmask(); s1()
            for u in range(8):
                A(f"s_waitcnt lgkmcnt({7-u})"); pv(TF,[u])
            return
        if regs is not None:
            def r0():
                A(f"ds_read_b64 v[{S2}:{S2+1}], v{vSA} offset:{slot*64}\ns_waitcnt lgkmcnt(0)"); pcalc()
            sl+=[r0,pmask,lambda:pv(regs,[0,1,2,3]),lambda:pv(regs,[4,5,6,7])]
        weave(steps((slot+3)&3,kind,doclaim=doclaim),sl)
        if kind=='P':
            A(f"s_cmp_eq_u32 s{sSCO+((slot+3)&3)}, -1\ns_subb_u32 s{sY}, s{sY}, 0")

    lk=lab("kloop")
    A(f"s_mov_b32 s{sCNT}, 7")
    A(f"{lk}:")
    for s in range(4): ktile(s,'K')
    A(f"v_add_u32 v{vSA}, 256, v{vSA}")
    A(f"s_sub_u32 s{sCNT}, s{sCNT}, 1\ns_cmp_lg_u32 s{sCNT}, 0\ns_cbranch_scc1 {lk}")
    ktile(0,'K')
    A(f"s_add_u32 s{sNEXT}, s{sNEXT}, 4")
    for s in range(1,4): ktile(s,'V')
    A(f"v_subrev_u32 v{vSA}, {7*256}, v{vSA}")
    for r in range(8): A(f"v_mov_b32 v{ACC+r}, 0")
    xrowred("v_max_f32", vMAX, vT)
    rbf(vMAX,vMAX)
    A(f"v_bfe_u32 v3, v2, 3, 1\nv_lshlrev_b32 v3, 4, v3\nv_add_u32 v3, {MX}, v3")
    A(f"s_lshl_b32 s{sCNT}, s{sWAVE}, 2\nv_add_u32 v4, s{sCNT}, v3")
    if NB:
        A(f"ds_write_b32 v4, v{vMAX}\nv_mov_b32 v3, {KCNT}\nv_mov_b32 v4, 1\ns_mov_b32 s{sC}, {f2u(CEXP):#x}\ns_mov_b64 exec, 1\nds_add_u32 v3, v4\ns_mov_b64 exec, -1")
    else:
        A(f"ds_write_b32 v4, v{vMAX}\ns_waitcnt lgkmcnt(0)\ns_barrier")
        A(f"ds_read_b128 v[{D}:{D+3}], v3\ns_mov_b32 s{sC}, {f2u(CEXP):#x}\ns_waitcnt lgkmcnt(0)")
        A(f"v_max_f32 v{vMAX}, v{D}, v{D+1}\nv_max3_f32 v{vMAX}, v{vMAX}, v{D+2}, v{D+3}")
    A(f"v_mul_f32 v{vNM}, s{sC}, v{vMAX}\nv_sub_f32 v{vNM}, 0, v{vNM}")
    A("v_lshrrev_b32 v6, 5, v2\nv_lshlrev_b32 v6, 10, v6\nv_and_b32 v5, 15, v2\nv_lshl_add_u32 v6, v5, 5, v6\nv_bfe_u32 v5, v2, 4, 1\nv_lshl_add_u32 v6, v5, 4, v6")
    A(f"v_add_u32 v6, s{sRING}, v6")
    A(f"s_lshl_b32 s{sCNT}, s{sWAVE}, 9\nv_lshlrev_b32 v4, 4, v2\nv_add_u32 v4, s{sCNT}, v4\nv_add_u32 v5, 0x10000, v4")
    A(f"s_lshr_b32 s{sCNT}, s{sWAVE}, 1\ns_lshl_b32 s{sCNT}, s{sCNT}, 2\ns_add_u32 s{sCNT}, s{sCNT}, {FB}\nv_mov_b32 v3, s{sCNT}")
    lv=lab("vloop")
    phase[0]='V'
    vBA=102
    A(f"v_mov_b32 v{vBA}, {BOOST}\ns_mov_b64 vcc, 0")
    for s in range(4): vtile(s,'V',16,scoff=256+s*64,regs=VP+32*s)
    A(f"v_add_u32 v{vSA}, 512, v{vSA}")
    A(f"s_mov_b32 s{sCNT}, {4 if cfg.pool else 5}")
    A(f"{lv}:")
    for s in range(4): vtile(s,'V',16)
    A(f"v_add_u32 v{vSA}, 256, v{vSA}")
    A(f"s_sub_u32 s{sCNT}, s{sCNT}, 1\ns_cmp_lg_u32 s{sCNT}, 0\ns_cbranch_scc1 {lv}")
    Lpool=f"{pre}_poolcode"
    A(f"{Lpool}:")
    if cfg.pool:
        lw=lab("rw"); lwd=lab("rwd")
        A(f"v_mov_b32 v{vT}, {RDY}\ns_mov_b32 s{sCNT}, 0")
        A(f"{lw}:\nds_read_b32 v{D}, v{vT}\ns_add_u32 s{sCNT}, s{sCNT}, 1")
        A(f"s_lshr_b32 s4, s2, 3\ns_lshl_b32 s5, s4, 2\ns_add_u32 s5, s5, s{sWAVE}\ns_mul_i32 s5, s5, {CSTR}\ns_add_u32 s5, s5, {CNT}\ns_add_u32 s{sPC}, s{sWS}, s5\ns_addc_u32 s{sPC+1}, s{sWS+1}, 0")
        A(f"s_mov_b32 s{sY}, 2")
        A(f"s_waitcnt lgkmcnt(0)\nv_readfirstlane_b32 s4, v{D}\ns_cmp_lg_u32 s4, 0\ns_cbranch_scc1 {lwd}")
        A(f"s_sleep 4\ns_cmp_lt_u32 s{sCNT}, {SPIN_LIMIT*16}\ns_cbranch_scc1 {lw}\n{lwd}:")
        vtile(0,'V',16,doclaim=True)
        for s in range(1,4): vtile(s,'P','y')
        if NB:
            A(f"v_lshrrev_b32 v{vT}, 5, v2\nv_lshlrev_b32 v{D+2}, 2, v{vT}\nv_add_u32 v{D+2}, {FB+16}, v{D+2}\nds_read_b32 v{D}, v{D+2}")
            A(f"s_lshl_b32 s4, s{sWAVE}, 2\ns_add_u32 s4, s4, {MX}\nv_lshlrev_b32 v{vT}, 4, v{vT}\nv_add_u32 v{vT}, s4, v{vT}\nds_read_b32 v{D+1}, v{vT}")
        else:
            A(f"v_lshrrev_b32 v{vT}, 5, v2\nv_lshlrev_b32 v{vT}, 2, v{vT}\nv_add_u32 v{vT}, {FB+8}, v{vT}\nds_read_b32 v{D}, v{vT}")
        A(f"v_bfe_u32 v{vT}, v2, 3, 1\nv_lshlrev_b32 v{vSA}, 5, v{vT}\nv_lshlrev_b32 v{vT}, 2, v{vT}\nv_add_u32 v{vT}, {FB+16}, v{vT}\nds_read_b32 v{vNM}, v{vT}")
        A(f"v_lshrrev_b32 v{vT}, 4, v2\nv_lshl_add_u32 v{vSA}, v{vT}, 3, v{vSA}\ns_lshl_b32 s4, s{sWAVE}, 6\ns_add_u32 s4, s4, {WBUF}\nv_add_u32 v{vSA}, s4, v{vSA}")
        A("s_waitcnt lgkmcnt(0)")
        if NB:
            A(f"v_mul_f32 v{D+1}, s{sC}, v{D+1}\nv_add_f32 v{D}, v{D}, v{D+1}\nv_exp_f32 v{D}, v{D}"); nop(1)
        for r in range(8): A(f"v_mul_f32 v{ACC+r}, v{ACC+r}, v{D}")
        lp=lab("ploop"); le=lab("pend")
        if cfg.drain:
            ld=[lab("drain") for _ in range(4)]
            A(f"{lp}:")
            for s in range(4):
                A(f"s_waitcnt lgkmcnt(0)\ns_cmp_ge_u32 s{sCL}, 32\ns_cbranch_scc1 {ld[s]}")
                vtile(s,'Q',16,pooled=True)
            A(f"s_branch {lp}")
            for s in range(4):
                A(f"{ld[s]}:")
                for d in range(3):
                    sl=(s+d)&3
                    A(f"s_cmp_eq_u32 s{sSCO+sl}, -1\ns_cbranch_scc1 {le}")
                    vtile(sl,None,'y',pooled=True)
                    if d<2: A(f"s_sub_u32 s{sY}, s{sY}, 1")
                if s<3: A(f"s_branch {le}")
            A(f"{le}:")
        else:
            A(f"{lp}:")
            for s in range(4):
                A(f"s_cmp_eq_u32 s{sSCO+s}, -1\ns_cbranch_scc1 {le}")
                vtile(s,'P','y',pooled=True)
            A(f"s_branch {lp}\n{le}:")
    else:
        vtile(0,'V',16); vtile(1,None,16); vtile(2,None,8); vtile(3,None,0)
    A(f"s_lshl_b32 s{sOFF}, s2, 11\ns_add_u32 s{sOFF}, s{sOFF}, {OBOX}")
    nop(7)
    A(f"ds_write_b128 v6, v[{ACC}:{ACC+3}]\nds_write_b128 v6, v[{ACC+4}:{ACC+7}] offset:512")
    A("s_waitcnt lgkmcnt(0)\ns_barrier")
    A("s_mov_b32 exec_hi, 0")
    A(f"ds_read_b128 v[{TF}:{TF+3}], v4\nds_read_b128 v[{TF+4}:{TF+7}], v4 offset:32768\nds_read_b128 v[{TF+8}:{TF+11}], v5\nds_read_b128 v[{TF+12}:{TF+15}], v5 offset:32768\nds_read_b32 v{TF+16}, v3")
    A("s_waitcnt lgkmcnt(3)")
    for r in range(4): A(f"v_add_f32 v{TF+r}, v{TF+r}, v{TF+4+r}")
    A("s_waitcnt lgkmcnt(1)")
    for r in range(4): A(f"v_add_f32 v{TF+8+r}, v{TF+8+r}, v{TF+12+r}")
    for r in range(4): A(f"v_add_f32 v{TF+r}, v{TF+r}, v{TF+8+r}")
    A("s_waitcnt lgkmcnt(0)")
    for r in range(4): A(f"v_mul_f32 v{TF+r}, v{TF+r}, v{TF+16}")
    for r in range(4):
        if cfg.sent: A(f"v_min_u32 v{TF+r}, -2, v{TF+r}")
        else: A(f"v_bfi_b32 v{TF+r}, s{sFF}, v{vTG}, v{TF+r}")
    if cfg.tdiag: A("s_memrealtime s[82:83]")
    if not cfg.noopub: A(f"buffer_store_dwordx4 v[{TF}:{TF+3}], v4, s[{SRDW}:{SRDW+3}], s{sOFF} offen {cfg.opol}")
    if cfg.tdiag:
        A(f"s_waitcnt vmcnt(0)\ns_memrealtime s[84:85]\ns_waitcnt lgkmcnt(0)\ns_cmp_lg_u32 s{sWAVE}, 0\ns_cbranch_scc1 {Ldone}")
        A(f"s_lshl_b32 s4, s2, 6\ns_add_u32 s4, s4, {STAMP+0x100000:#x}\ns_mov_b64 exec, 1\nv_mov_b32 v1, 0\nv_mov_b32 v{TF}, s82\nv_mov_b32 v{TF+1}, s83\nv_mov_b32 v{TF+2}, s84\nv_mov_b32 v{TF+3}, s85")
        A(f"buffer_store_dwordx4 v[{TF}:{TF+3}], v1, s[{SRDW}:{SRDW+3}], s4 offen")
    A("s_endpgm")

    vL16=3; vWO_=4; vTR=5; vXA=6
    X=8; F=12; T=20
    XF=32; WF=88
    WT=144
    PA=208
    AM=216
    vT8=220; vFX=221; vG1=222; vG2=223; vPS=224; vTO=225; vFM=226; vH=227
    AT=88
    sE,sTAG,sCQ,sO2,sSPIN,sCM,sFF,sA,sB,sNM=60,61,62,63,64,65,78,66,67,71
    A(f"{Laux}:")
    lend=lab("end")
    if cfg.auxnull:
        A("s_waitcnt lgkmcnt(0)"); srd(SRDW,sWS,1<<30)
        A("s_barrier"); stamp(3); A("s_barrier"); stamp(4); A("s_barrier"); stamp(5); A(f"s_branch {lend}")
    A("s_setprio 3")
    if NB:
        A(f"v_mov_b32 v{X}, 0\nv_mov_b32 v{X+1}, 0\nv_mov_b32 v{X+2}, 0\nv_mov_b32 v{X+3}, 0\nv_mov_b32 v{T}, {RDY}\nds_write_b128 v{T}, v[{X}:{X+3}]")
    A(f"v_lshrrev_b32 v7, 1, v2\nv_and_b32 v{T}, 1, v2\nv_lshlrev_b32 v{T}, 4, v{T}")
    A(f"v_lshl_add_u32 v{vWO_}, v7, 13, v{T}\nv_lshlrev_b32 v{vL16}, 4, v2")
    if cfg.mix:
        A(f"s_and_b32 s4, s2, 7\ns_lshr_b32 s5, s2, 5\ns_add_u32 s5, s5, s4\ns_and_b32 s5, s5, 7\ns_lshl_b32 s5, s5, 2\ns_lshl_b32 s{sCQ}, s4, 5\ns_add_u32 s{sCQ}, s{sCQ}, s5\ns_bfe_u32 s5, s2, 0x20003\ns_add_u32 s{sCQ}, s{sCQ}, s5\ns_lshl_b32 s{sO2}, s{sCQ}, 5")
    else:
        A(f"s_and_b32 s{sCQ}, s2, 7\ns_lshl_b32 s{sCQ}, s{sCQ}, 5\ns_lshr_b32 s{sO2}, s2, 3\ns_add_u32 s{sCQ}, s{sCQ}, s{sO2}\ns_lshl_b32 s{sO2}, s{sCQ}, 5")
    A("s_waitcnt lgkmcnt(0)")
    stamp('karg')
    A(f"s_load_dword s{sE}, s[{sWS}:{sWS+1}], 0")
    srd(SRDA,sX,896)
    A(f"buffer_load_dwordx4 v[{X}:{X+3}], v{vL16}, s[{SRDA}:{SRDA+3}], 0 offen")
    if NB: A("s_barrier")
    srd(SRDK,sWQ,448*4096*2)
    def wdma(sr, step, gate=None):
        for i in range(14):
            if gate is not None: A(f"s_waitcnt vmcnt({gate})")
            A(f"s_mov_b32 m0, {WBUF+i*1024}")
            if i: A(f"s_add_u32 s{sO2}, s{sO2}, {step}")
            else: nop(1)
            A(f"buffer_load_dwordx4 v{vWO_}, s[{sr}:{sr+3}], s{sO2} offen {cfg.cnt} lds")
    if not cfg.nowq: wdma(SRDK,32*8192,cfg.qgate)
    srd(SRDW,sWS,1<<30)
    A(f"v_lshrrev_b32 v{T}, 4, v2\nv_bfe_u32 v{T+1}, v2, 2, 2\nv_lshl_add_u32 v{T+1}, v{T}, 3, v{T+1}\nv_and_b32 v{T+2}, 3, v2\nv_lshlrev_b32 v{T+2}, 3, v{T+2}\nv_add_u32 v{T+2}, {WBUF}, v{T+2}")
    A(f"v_lshl_add_u32 v{vTR}, v{T+1}, 5, v{T+2}\nv_lshl_add_u32 v{vG1}, v{T+1}, 7, v{T+2}")
    A(f"v_lshlrev_b32 v{T}, 4, v{T}\nv_add_u32 v{vXA}, {XN}, v{T}")
    A("v_cmp_gt_u32 s[74:75], 56, v2")
    stamp('issued')
    A("s_waitcnt vmcnt(14)")
    stamp('xland')
    for r in range(4):
        A(f"v_lshlrev_b32 v{F+2*r}, 16, v{X+r}\nv_and_b32 v{F+2*r+1}, 0xffff0000, v{X+r}")
    A(f"v_add_f32 v{T}, v{F}, v{F+1}\nv_add_f32 v{T+1}, v{F+2}, v{F+3}\nv_add_f32 v{T+2}, v{F+4}, v{F+5}\nv_add_f32 v{T+3}, v{F+6}, v{F+7}")
    A(f"v_add_f32 v{T}, v{T}, v{T+1}\nv_add_f32 v{T+2}, v{T+2}, v{T+3}\nv_add_f32 v{T}, v{T}, v{T+2}")
    rowred("v_add_f32",T,[1,2,4,8]); xrowred("v_add_f32",T,T+1)
    A(f"v_mul_f32 v{T}, {f2u(1.0/448):#x}, v{T}")
    A(f"v_sub_f32 v{T+2}, v{F}, v{T}\nv_mul_f32 v{T+1}, v{T+2}, v{T+2}")
    for r in range(1,8):
        A(f"v_sub_f32 v{T+2}, v{F+r}, v{T}\nv_fmac_f32 v{T+1}, v{T+2}, v{T+2}")
    A(f"v_cndmask_b32 v{T+1}, 0, v{T+1}, s[74:75]")
    rowred("v_add_f32",T+1,[1,2,4,8]); xrowred("v_add_f32",T+1,T+2)
    A(f"v_mul_f32 v{T+1}, {f2u(1.0/448):#x}, v{T+1}")
    rbf(T,T); rbf(T+1,T+1)
    A(f"v_add_f32 v{T+1}, {f2u(1e-5):#x}, v{T+1}"); rbf(T+1,T+1)
    A(f"v_sqrt_f32 v{T+1}, v{T+1}"); nop(1); rbf(T+1,T+1)
    A(f"v_rcp_f32 v{T+2}, v{T+1}")
    for r in range(8): A(f"v_sub_f32 v{F+r}, v{F+r}, v{T}")
    for r in range(4): A(f"v_cvt_pk_bf16_f32 v{X+r}, v{F+2*r}, v{F+2*r+1}")
    for r in range(4): A(f"v_lshlrev_b32 v{F+2*r}, 16, v{X+r}\nv_and_b32 v{F+2*r+1}, 0xffff0000, v{X+r}")
    for r in range(8):
        A(f"v_mul_f32 v{T+3}, v{F+r}, v{T+2}\nv_fma_f32 v{T+4}, -v{T+3}, v{T+1}, v{F+r}\nv_fma_f32 v{F+r}, v{T+4}, v{T+2}, v{T+3}")
    for r in range(4): A(f"v_cvt_pk_bf16_f32 v{X+r}, v{F+2*r}, v{F+2*r+1}")
    A(f"v_add_u32 v{T}, {XN}, v{vL16}\nds_write_b128 v{T}, v[{X}:{X+3}]\ns_waitcnt lgkmcnt(0)")
    for jj in range(14): A(f"ds_read_b128 v[{XF+4*jj}:{XF+4*jj+3}], v{vXA} offset:{jj*64}")
    stamp('lndone')
    A("s_waitcnt vmcnt(0)")
    stamp('wqland')
    for jj in range(14):
        A(f"ds_read_b64_tr_b16 v[{WF+4*jj}:{WF+4*jj+1}], v{vTR} offset:{jj*1024}\nds_read_b64_tr_b16 v[{WF+4*jj+2}:{WF+4*jj+3}], v{vTR} offset:{jj*1024+128}")
    A(f"s_waitcnt lgkmcnt(0)")
    for jj in range(14):
        c="0" if jj==0 else f"v[{T}:{T+3}]"
        A(f"v_mfma_f32_16x16x32_bf16 v[{T}:{T+3}], v[{XF+4*jj}:{XF+4*jj+3}], v[{WF+4*jj}:{WF+4*jj+3}], {c}")
    A(f"s_mul_i32 s{sTAG}, s{sE}, 0x9E3779B1\ns_add_u32 s{sTAG}, s{sTAG}, 0x7F4A7C15")
    A(f"s_add_u32 s{sFF}, s{sE}, 1\ns_and_b32 s{sFF}, s{sFF}, 0xff\nv_mov_b32 v{vT8}, s{sFF}\ns_mov_b32 s{sFF}, 0xff\ns_mov_b32 s{sNM}, 0xffffff00")
    A(f"s_lshl_b32 s{sO2}, s{sCQ}, 6\ns_add_u32 s{sO2}, s{sO2}, {QBOX}\nv_lshlrev_b32 v{T+6}, 3, v7\nv_mov_b32 v{T+5}, s{sTAG}")
    A(f"v_mov_b32_dpp v{T+1}, v{T} quad_perm:[1,1,3,3] {DPP}")
    A(f"v_cvt_pk_bf16_f32 v{T+4}, v{T}, v{T+1}")
    A("s_mov_b64 exec, 0x5555")
    if not cfg.noqx: A(f"buffer_store_dwordx2 v[{T+4}:{T+5}], v{T+6}, s[{SRDW}:{SRDW+3}], s{sO2} offen sc1")
    A("s_mov_b64 exec, -1")
    stamp(2)
    TT1=tt(lambda a,b,t:(a^t)|(b^t)); TT2=tt(lambda a,b,c:(a|b)&c)
    def poll(loads, soff, mode, sleep, fast=0, fthr=None):
        PM=4
        lp=lab("poll"); ld=lab("polld")
        for i,(d,vo,imm,lm) in enumerate(loads):
            if lm is None: A(f"s_mov_b64 s[{PM+2*i}:{PM+2*i+1}], -1")
            else: A(f"s_mov_b32 s{PM+2*i}, {lm&0xffffffff:#x}\ns_mov_b32 s{PM+2*i+1}, {lm>>32:#x}")
        A(f"s_mov_b32 s{sSPIN}, 0\ns_mov_b32 s14, 999")
        A(f"{lp}:")
        for i,(d,vo,imm,lm) in enumerate(loads):
            sk=lab("sk")
            A(f"s_mov_b64 exec, s[{PM+2*i}:{PM+2*i+1}]\ns_cbranch_execz {sk}")
            A(f"buffer_load_dwordx4 v[{d}:{d+3}], v{vo}, s[{SRDW}:{SRDW+3}], s{soff} offen offset:{imm} {cfg.lpol}")
            A(f"{sk}:")
        A(f"s_mov_b64 exec, -1\ns_add_u32 s{sSPIN}, s{sSPIN}, 1")
        if fast and fthr is not None:
            sk=lab("fs")
            A(f"s_cmp_le_u32 s14, {fthr}\ns_cbranch_scc1 {sk}\ns_waitcnt vmcnt(0)\n{sk}:")
        A(f"s_waitcnt vmcnt({fast})")
        for i,(d,vo,imm,lm) in enumerate(loads):
            if mode=='s':
                A(f"v_max3_u32 v{T+i}, v{d}, v{d+1}, v{d+2}\nv_max_u32 v{T+i}, v{T+i}, v{d+3}")
            elif mode=='q':
                A(f"v_xor_b32 v{T+i}, s{sTAG}, v{d+1}\nv_xor_b32 v{T+4+i}, s{sTAG}, v{d+3}\nv_or_b32 v{T+i}, v{T+i}, v{T+4+i}")
            else:
                A(f"v_bitop3_b32 v{T+i}, v{d}, v{d+1}, v{vT8} bitop3:{TT1:#x}\nv_bitop3_b32 v{T+4+i}, v{d+2}, v{d+3}, v{vT8} bitop3:{TT1:#x}")
                A(f"v_bitop3_b32 v{T+i}, v{T+i}, v{T+4+i}, s{sFF} bitop3:{TT2:#x}")
        for i,(d,vo,imm,lm) in enumerate(loads):
            A(("v_cmp_eq_u32 vcc, -1" if mode=='s' else "v_cmp_ne_u32 vcc, 0")+f", v{T+i}\ns_and_b64 s[{PM+2*i}:{PM+2*i+1}], s[{PM+2*i}:{PM+2*i+1}], vcc")
        if len(loads)>1:
            A(f"s_or_b64 s[12:13], s[{PM}:{PM+1}], s[{PM+2}:{PM+3}]")
            for i in range(2,len(loads)): A(f"s_or_b64 s[12:13], s[12:13], s[{PM+2*i}:{PM+2*i+1}]")
        A(f"s_cbranch_scc0 {ld}")
        if fast and fthr is not None:
            A(f"s_bcnt1_i32_b64 s14, s[{PM}:{PM+1}]")
            for i in range(1,len(loads)): A(f"s_bcnt1_i32_b64 s15, s[{PM+2*i}:{PM+2*i+1}]\ns_add_u32 s14, s14, s15")
            if sleep:
                sk=lab("ns")
                A(f"s_cmp_le_u32 s14, {fthr}\ns_cbranch_scc1 {sk}\ns_sleep {sleep}\n{sk}:")
        elif sleep: A(f"s_sleep {sleep}")
        A(f"s_cmp_lt_u32 s{sSPIN}, {SPIN_LIMIT*4}\ns_cbranch_scc1 {lp}")
        A(f"{ld}:")
    A(f"s_lshr_b32 s{sO2}, s2, 5\ns_lshl_b32 s{sO2}, s{sO2}, 11\ns_add_u32 s{sO2}, s{sO2}, {QBOX}")
    def backoff(n):
        while n>0:
            A(f"s_sleep {min(n,127)}"); n-=127
    backoff(cfg.qdelay)
    if not cfg.noqx: poll([(F,vL16,0,None),(F+4,vL16,1024,None)], sO2, 'q', cfg.qsleep)
    stamp('qrecv')
    if not NB: A(f"v_mov_b32 v{T}, {RDY}\nv_mov_b32 v{T+1}, 0\nds_write2_b32 v{T}, v{T+1}, v{T+1} offset0:0 offset1:4")
    A(f"v_lshlrev_b32 v{T}, 3, v2\nv_add_u32 v{T}, {QB}, v{T}")
    A(f"ds_write2_b32 v{T}, v{F}, v{F+2} offset0:0 offset1:1\nds_write2_b32 v{T}, v{F+4}, v{F+6} offset0:128 offset1:129")
    if NB: A(f"v_mov_b32 v{T}, {QRDY}\nv_mov_b32 v{T+1}, 1\ns_waitcnt lgkmcnt(0)\nds_write_b32 v{T}, v{T+1}")
    else: A("s_waitcnt lgkmcnt(0)\ns_barrier")
    stamp(3)
    if cfg.prio2!=3: A(f"s_setprio {cfg.prio2}")
    if cfg.pool:
        lz=lab("nz")
        A(f"s_and_b32 s4, s2, 7\ns_cbranch_scc1 {lz}")
        A(f"s_lshr_b32 s4, s2, 3\ns_mul_i32 s4, s4, {4*CSTR}\ns_add_u32 s4, s4, {CNT}\nv_mul_u32_u24 v{T}, {CSTR}, v2\nv_mov_b32 v{T+1}, 0\ns_mov_b64 exec, 15")
        A(f"buffer_store_dword v{T+1}, v{T}, s[{SRDW}:{SRDW+3}], s4 offen sc1\ns_mov_b64 exec, -1\n{lz}:")
    if cfg.probe is not None and cfg.probe[0]=='g':
        A(f"s_lshl_b32 s4, s2, 2\ns_add_u32 s4, s4, 0x300000\nv_mov_b32 v{T}, 0\nv_mov_b32 v{T+1}, s80\ns_mov_b64 exec, 1\nbuffer_store_dword v{T+1}, v{T}, s[{SRDW}:{SRDW+3}], s4 offen sc1\ns_mov_b64 exec, -1")
    A(f"s_bfe_u32 s{sB}, s2, 0x10003\ns_lshr_b32 s{sA}, s2, 4\ns_lshl_b32 s{sA}, s{sA}, 3\ns_and_b32 s{sO2}, s2, 7\ns_add_u32 s{sA}, s{sA}, s{sO2}")
    A(f"v_and_b32 v{T}, 15, v2"); masks(AM,T,T+1,T+2)
    A(f"v_lshrrev_b32 v{T+1}, 4, v2\nv_mul_u32_u24 v{vTO}, 896, v{T+1}\nv_lshl_add_u32 v{vTO}, v{T}, 4, v{vTO}")
    for r in range(8): A(f"v_mov_b32 v{PA+r}, 0")
    def tile_load(sr, gated=True, so=None):
        for t in range(8):
            o=sO2 if so is None else so
            if gated and cfg.agate is not None: A(f"s_waitcnt vmcnt({cfg.agate})")
            A(f"buffer_load_dwordx4 v[{WT+8*t}:{WT+8*t+3}], v{vTO}, s[{sr}:{sr+3}], s{o} offen {cfg.wnt}")
            A("s_mov_b32 exec_lo, 0x0fff0fff\ns_mov_b32 exec_hi, 0x0fff0fff")
            A(f"buffer_load_dwordx4 v[{WT+8*t+4}:{WT+8*t+7}], v{vTO}, s[{sr}:{sr+3}], s{o} offen offset:256 {cfg.wnt}")
            A(f"s_mov_b64 exec, -1\ns_add_u32 s{o}, s{o}, 3584")
    def project(src):
        for t in range(8):
            v,ln=src(t)
            for r in range(4): A(f"v_and_b32_dpp v{AT+4*t+r}, v{v}, v{AM+r} row_newbcast:{ln} {DPP}")
            if t>=1:
                tp=t-1
                for cb in range(2):
                    A(f"v_mfma_f32_16x16x32_bf16 v[{PA+4*cb}:{PA+4*cb+3}], v[{AT+4*tp}:{AT+4*tp+3}], v[{WT+8*tp+4*cb}:{WT+8*tp+4*cb+3}], v[{PA+4*cb}:{PA+4*cb+3}]")
        for cb in range(2):
            A(f"v_mfma_f32_16x16x32_bf16 v[{PA+4*cb}:{PA+4*cb+3}], v[{AT+28}:{AT+31}], v[{WT+56+4*cb}:{WT+56+4*cb+3}], v[{PA+4*cb}:{PA+4*cb+3}]")
    A(f"v_lshrrev_b32 v{T}, 5, v2\nv_lshlrev_b32 v{T}, 9, v{T}\nv_and_b32 v{T+1}, 15, v2\nv_lshl_add_u32 v{T}, v{T+1}, 5, v{T}\nv_bfe_u32 v{T+1}, v2, 4, 1\nv_lshl_add_u32 v{vPS}, v{T+1}, 4, v{T}")
    def rec_store(soff, sent=False):
        nop(8)
        for r in range(4): A(f"v_permlane32_swap_b32 v{PA+r}, v{PA+4+r}")
        for r in range(4):
            if sent: A(f"v_min_u32 v{PA+r}, -2, v{PA+r}")
            else: A(f"v_bfi_b32 v{PA+r}, s{sFF}, v{vT8}, v{PA+r}")
        A("s_mov_b32 exec_hi, 0x0fff0fff")
        A(f"buffer_store_dwordx4 v[{PA}:{PA+3}], v{vPS}, s[{SRDW}:{SRDW+3}], s{soff} offen {cfg.opol}")
        A("s_mov_b32 exec_hi, -1")
    A(f"s_lshl_b32 s{sCQ}, s{sB}, 7\ns_add_u32 s{sCQ}, s{sCQ}, s{sA}\ns_lshl_b32 s{sCQ}, s{sCQ}, 10\ns_add_u32 s{sCQ}, s{sCQ}, {PBOX}")
    if cfg.sent:
        for r in range(4): A(f"v_mov_b32 v{F+r}, -1")
        A(f"s_lshl_b32 s4, s2, 11\ns_add_u32 s4, s4, {OBOX}")
        A(f"buffer_store_dwordx4 v[{F}:{F+3}], v{vL16}, s[{SRDW}:{SRDW+3}], s4 offen {cfg.cpol}\ns_waitcnt vmcnt({cfg.cgate})")
        A(f"buffer_store_dwordx4 v[{F}:{F+3}], v{vL16}, s[{SRDW}:{SRDW+3}], s4 offen offset:1024 {cfg.cpol}\ns_waitcnt vmcnt({cfg.cgate})")
        if cfg.cpol=='': A("s_waitcnt vmcnt(0)\nbuffer_wbl2 sc1\ns_waitcnt vmcnt(0)")
        if cfg.sent2: A(f"s_mov_b64 exec, s[74:75]\nbuffer_store_dwordx4 v[{F}:{F+3}], v{vL16}, s[{SRDW}:{SRDW+3}], s{sCQ} offen sc1\ns_mov_b64 exec, -1")
        nop(2)
    lnm=lab("nomlp")
    HA=WF; HS=WF+32; sMO=70
    A(f"s_lshr_b32 s{sCM}, s2, 3\ns_xor_b32 s4, s{sCM}, s2\ns_and_b32 s4, s4, 7\ns_cbranch_scc1 {lnm}")
    A(f"s_cmp_ge_u32 s{sCM}, {0 if cfg.nomlp else 28}\ns_cbranch_scc1 {lnm}")
    A(f"v_lshrrev_b32 v{T}, 3, v2\nv_mul_u32_u24 v{vWO_}, 3584, v{T}\nv_and_b32 v{T}, 7, v2\nv_lshl_add_u32 v{vWO_}, v{T}, 4, v{vWO_}")
    srd(SRDK,sW1,448*1792*2)
    srd(SRDA,sB1,3584)
    A(f"v_and_b32 v{T}, 15, v2\nv_lshlrev_b32 v{T}, 1, v{T}\ns_lshl_b32 s{sO2}, s{sCM}, 7")
    for u in range(4): A(f"buffer_load_ushort v{F+u}, v{T}, s[{SRDA}:{SRDA+3}], s{sO2} offen offset:{32*u}\ns_nop 0")
    for ps in range(4):
        nk = 4 if ps<3 else 2
        for i in range(4*nk):
            if cfg.mgate is not None: A(f"s_waitcnt vmcnt({cfg.mgate})")
            A(f"s_mov_b32 m0, {WBUF+i*1024}\ns_nop 0")
            if not cfg.now1: A(f"buffer_load_dwordx4 v{vWO_}, s[{SRDK}:{SRDK+3}], s{sO2} offen {cfg.wnt} lds")
            A(f"s_add_u32 s{sO2}, s{sO2}, {8*3584}")
        A("s_waitcnt vmcnt(0)")
        for kk in range(nk):
            for u in range(4):
                r=WT+16*kk+4*u
                A(f"ds_read_b64_tr_b16 v[{r}:{r+1}], v{vG1} offset:{kk*4096+u*32}\nds_read_b64_tr_b16 v[{r+2}:{r+3}], v{vG1} offset:{kk*4096+u*32+512}")
        A("s_waitcnt lgkmcnt(0)")
        for kk in range(nk):
            for u in range(4):
                r=WT+16*kk+4*u; x=XF+4*(4*ps+kk)
                c="0" if (ps==0 and kk==0) else f"v[{HA+4*u}:{HA+4*u+3}]"
                A(f"v_mfma_f32_16x16x32_bf16 v[{HA+4*u}:{HA+4*u+3}], v[{x}:{x+3}], v[{r}:{r+3}], {c}")
    nop(8)
    k0=math.sqrt(2/math.pi)
    for u in range(4):
        h=HA+4*u; t1=h+1; t2=h+2
        rbf(h,h)
        A(f"v_lshlrev_b32 v{F+u}, 16, v{F+u}\nv_add_f32 v{h}, v{h}, v{F+u}"); rbf(h,h)
        A(f"v_mul_f32 v{t1}, v{h}, v{h}\nv_mul_f32 v{t1}, v{t1}, v{h}\nv_mov_b32 v{t2}, {f2u(0.044715):#x}\nv_fma_f32 v{t1}, v{t1}, v{t2}, v{h}")
        A(f"v_mul_f32 v{t1}, {f2u(-2*k0*math.log2(math.e)):#x}, v{t1}\nv_exp_f32 v{t1}, v{t1}"); nop(1)
        A(f"v_add_f32 v{t1}, 1.0, v{t1}\nv_rcp_f32 v{t1}, v{t1}"); nop(1)
        A(f"v_mul_f32 v{h}, v{h}, v{t1}\nv_cvt_pk_bf16_f32 v{h}, v{h}, v{h}\nv_mov_b32 v{HS+u}, v{h}"); nop(2)
        for g in range(1,4): A(f"v_mov_b32_dpp v{HS+u}, v{h} row_ror:{16-g} row_mask:{1<<g:#x} bank_mask:0xf")
    srd(SRDK,sW2,1792*448*2)
    for bb in range(2):
        A(f"s_mul_i32 s{sO2}, s{sCM}, {64*896}\ns_add_u32 s{sO2}, s{sO2}, {448*bb}")
        for rb in range(2):
            if not cfg.now2: tile_load(SRDK)
            A("s_waitcnt vmcnt(0)")
            project(lambda t:(HS+2*rb+(t>>2), 4*(t&3)))
            nop(4)
        A(f"s_lshl_b32 s4, s{sCM}, 10\ns_add_u32 s4, s4, {MBOX+bb*32768}")
        rec_store(4)
        nop(2)
        for r in range(8): A(f"v_mov_b32 v{PA+r}, 0")
    stamp('mlpdone')
    A(f"{lnm}:")
    FC=cfg.fc; FC0=256-FC
    stamp('wodone')
    if NB: ldswait(KCNT, T, T+1, sSPIN, 4, 16)
    else: A("s_barrier")
    stamp(4)
    A(f"s_mov_b32 s{sCM}, {f2u(CEXP):#x}")
    if cfg.binfv is not None:
        A(f"s_lshr_b32 s4, s2, 5\ns_lshl_b32 s4, s4, 9\ns_add_u32 s4, s4, {MLBOX}\ns_mov_b32 exec_hi, 0")
        A(f"buffer_load_dwordx4 v[{WF}:{WF+3}], v{vL16}, s[{SRDW}:{SRDW+3}], s4 offen sc1\ns_mov_b32 exec_hi, -1")
    if cfg.pool:
        A(f"v_bfe_u32 v{T}, v2, 2, 2\nv_lshlrev_b32 v{T}, 11, v{T}\nv_lshrrev_b32 v{T+1}, 4, v2\nv_lshl_add_u32 v{T}, v{T+1}, 6, v{T}\nv_and_b32 v{T+1}, 3, v2\nv_lshl_add_u32 v{T}, v{T+1}, 4, v{T}\nv_add_u32 v{T}, {SC+28*64}, v{T}")
        A(f"ds_read_b128 v[{X}:{X+3}], v{T}\ns_lshl_b32 s4, s2, 10\ns_add_u32 s4, s4, {SBOX}\ns_waitcnt lgkmcnt(0)")
        A(f"buffer_store_dwordx4 v[{X}:{X+3}], v{vL16}, s[{SRDW}:{SRDW+3}], s4 offen sc1")
    A(f"v_and_b32 v{T}, 1, v2\nv_lshlrev_b32 v{T+1}, 4, v{T}\nv_add_u32 v{T+1}, {MX}, v{T+1}\nv_lshlrev_b32 v{T+2}, 5, v2\nv_add_u32 v{T+2}, {SC}, v{T+2}")
    A(f"ds_read_b128 v[{F}:{F+3}], v{T+1}")
    for w in range(4):
        A(f"ds_read_b128 v[{XF+8*w}:{XF+8*w+3}], v{T+2} offset:{w*2048}\nds_read_b128 v[{XF+8*w+4}:{XF+8*w+7}], v{T+2} offset:{w*2048+16}")
    A("s_waitcnt lgkmcnt(0)")
    A(f"v_max_f32 v{F}, v{F}, v{F+1}\nv_max3_f32 v{F}, v{F}, v{F+2}, v{F+3}\nv_mul_f32 v{F+4}, s{sCM}, v{F}\nv_sub_f32 v{F+4}, 0, v{F+4}")
    A(f"v_mov_b32 v{F+1}, 0\nv_mov_b32 v{F+5}, 0")
    for r in range(32):
        A(f"v_lshlrev_b32 v{T+3}, 16, v{XF+r}\nv_and_b32 v{T+4}, 0xffff0000, v{XF+r}")
        A(f"v_fma_f32 v{T+3}, v{T+3}, s{sCM}, v{F+4}\nv_fma_f32 v{T+4}, v{T+4}, s{sCM}, v{F+4}")
        A(f"v_exp_f32 v{T+3}, v{T+3}\nv_exp_f32 v{T+4}, v{T+4}"); nop(1)
        A(f"v_add_f32 v{F+1}, v{F+1}, v{T+3}\nv_add_f32 v{F+5}, v{F+5}, v{T+4}")
    A(f"v_add_f32 v{F+1}, v{F+1}, v{F+5}")
    rowred("v_add_f32",F+1,[2,4,8]); xrowred("v_add_f32",F+1,T+3)
    nop(2)
    A(f"v_mov_b32_dpp v{F+2}, v{F} quad_perm:[1,1,3,3] {DPP}\nv_mov_b32_dpp v{F+3}, v{F+1} quad_perm:[1,1,3,3] {DPP}")
    A(f"v_mov_b32 v{F+6}, v{F}")
    for r in range(4): A(f"v_bfi_b32 v{F+r}, s{sFF}, v{vT8}, v{F+r}")
    if cfg.probe is not None and cfg.probe[0]=='x':
        A(f"s_getreg_b32 s4, hwreg(HW_REG_XCC_ID)\ns_and_b32 s4, s4, 15\ns_lshl_b32 s4, s4, 8\nv_or_b32 v{F}, s4, v{F}")
    A(f"s_lshl_b32 s{sO2}, s2, 4\ns_add_u32 s{sO2}, s{sO2}, {MLBOX}\nv_mov_b32 v{T}, 0\ns_mov_b64 exec, 1\ns_waitcnt vmcnt(0)")
    if not cfg.noml: A(f"buffer_store_dwordx4 v[{F}:{F+3}], v{T}, s[{SRDW}:{SRDW+3}], s{sO2} offen sc1")
    A("s_mov_b64 exec, -1")
    if cfg.binfv is not None:
        A(f"v_bitop3_b32 v{T}, v{WF}, v{WF+1}, v{vT8} bitop3:{TT1:#x}\nv_bitop3_b32 v{T+1}, v{WF+2}, v{WF+3}, v{vT8} bitop3:{TT1:#x}\nv_bitop3_b32 v{T}, v{T}, v{T+1}, s{sFF} bitop3:{TT2:#x}")
        A(f"v_cmp_eq_u32 vcc, 0, v{T}\ns_bcnt1_i32_b32 s4, vcc_lo\ns_cmp_ge_u32 s4, {cfg.brank}\ns_cselect_b32 s4, 1, 0\nv_mov_b32 v{T}, {BOOST}\nv_mov_b32 v{T+1}, s4\nds_write_b32 v{T}, v{T+1}")
    srd(SRDK,sWO,4096*448*2)
    A(f"s_mul_i32 s{sO2}, s{sA}, {32*896}\ns_mul_i32 s{sSPIN}, s{sB}, 448\ns_add_u32 s{sO2}, s{sO2}, s{sSPIN}")
    LATE = cfg.wolate and cfg.pool
    if not cfg.nowo and not LATE: tile_load(SRDK)
    FC=cfg.fc
    lnf=lab("nofin")
    FC0=256-FC
    if FC==56:
        A(f"v_lshrrev_b32 v{T}, 4, v2\nv_and_b32 v{T+1}, 1, v2\nv_lshl_add_u32 v{T}, v{T+1}, 2, v{T}\nv_lshlrev_b32 v{vG2}, 1, v{T}")
        A(f"s_sub_u32 s{sO2}, s2, {FC0}\ns_lshl_b32 s{sO2}, s{sO2}, 4")
    else:
        A(f"v_lshrrev_b32 v{T}, 4, v2\nv_lshlrev_b32 v{vG2}, 1, v{T}")
        A(f"s_sub_u32 s{sO2}, s2, {FC0}\ns_lshl_b32 s{sO2}, s{sO2}, 3")
    A(f"v_add_u32 v{vG2}, s{sO2}, v{vG2}")
    A(f"s_cmp_lt_u32 s2, {FC0}\ns_cbranch_scc1 {lnf}")
    srd(SRDA,sX,896)
    A(f"buffer_load_ushort v{vFX}, v{vG2}, s[{SRDA}:{SRDA+3}], 0 offen")
    srd(SRDK,sB2,896)
    A(f"buffer_load_ushort v{T}, v{vG2}, s[{SRDK}:{SRDK+3}], 0 offen")
    A(f"s_waitcnt vmcnt(0)\nv_lshlrev_b32 v{vFX}, 16, v{vFX}\nv_lshlrev_b32 v{vFM}, 16, v{T}")
    if not cfg.mimic: A(f"v_add_f32 v{vFX}, v{vFX}, v{vFM}")
    A(f"{lnf}:")
    backoff(cfg.mldelay)
    I1=XF
    A(f"s_lshr_b32 s{sO2}, s2, 5\ns_lshl_b32 s{sO2}, s{sO2}, 9\ns_add_u32 s{sO2}, s{sO2}, {MLBOX}\nv_lshlrev_b32 v{vWO_}, 4, v7")
    if not cfg.noml: poll([(I1,vWO_,0,None)], sO2, 't', cfg.mlsleep)
    if cfg.probe is not None and cfg.probe[0]=='x':
        A(f"v_bfe_u32 v{T}, v{I1}, 8, 4\nv_mov_b32 v{T+1}, v{T}"); nop(2)
        A(f"v_permlane16_swap_b32 v{T}, v{T+1}\nv_cmp_ne_u32 vcc, v{T}, v{T+1}\ns_bcnt1_i32_b64 s79, vcc")
    A(f"v_and_b32 v{T}, 1, v2\nv_cmp_eq_u32 vcc, 1, v{T}"); nop(2)
    A(f"v_cndmask_b32 v{I1}, v{I1}, v{I1+2}, vcc\nv_cndmask_b32 v{I1+1}, v{I1+1}, v{I1+3}, vcc\nv_and_b32 v{I1}, 0xffff0000, v{I1}\nv_and_b32 v{I1+1}, s{sNM}, v{I1+1}\nv_mov_b32 v{T+1}, v{I1}")
    rowred("v_max_f32",T+1,[2,4,8]); xrowred("v_max_f32",T+1,T+2)
    A(f"v_sub_f32 v{T+2}, v{I1}, v{T+1}\nv_sub_f32 v{T+3}, v{F+6}, v{T+1}\nv_mul_f32 v{T+2}, s{sCM}, v{T+2}\nv_mul_f32 v{T+3}, s{sCM}, v{T+3}")
    A(f"v_exp_f32 v{T+2}, v{T+2}\nv_exp_f32 v{T+3}, v{T+3}"); nop(1)
    A(f"v_mul_f32 v{T+2}, v{T+2}, v{I1+1}")
    rowred("v_add_f32",T+2,[2,4,8]); xrowred("v_add_f32",T+2,T+4)
    A(f"v_rcp_f32 v{T+4}, v{T+2}"); nop(1)
    A(f"v_fma_f32 v{T+5}, -v{T+2}, v{T+4}, 1.0\nv_fma_f32 v{T+4}, v{T+5}, v{T+4}, v{T+4}")
    A(f"v_lshlrev_b32 v{T}, 2, v{T}\nv_add_u32 v{T}, {FB}, v{T}")
    if cfg.pool:
        A(f"v_mul_f32 v{T+1}, s{sCM}, v{T+1}\nv_sub_f32 v{T+1}, 0, v{T+1}")
        A(f"ds_write_b32 v{T}, v{T+4}\nds_write_b32 v{T}, v{T+3} offset:8\nds_write_b32 v{T}, v{T+1} offset:16")
        A(f"s_and_b32 s4, s2, 0xf8\ns_lshl_b32 s4, s4, 10\ns_add_u32 s4, s4, {SBOX}")
        for k in range(8):
            if k==4: A("s_add_u32 s4, s4, 4096")
            A(f"s_waitcnt vmcnt(1)\nbuffer_load_dwordx4 v[{I1+4*k}:{I1+4*k+3}], v{vL16}, s[{SRDW}:{SRDW+3}], s4 offen offset:{(k&3)*1024} sc1")
        A(f"v_add_u32 v{T}, {WBUF}, v{vL16}\ns_waitcnt vmcnt(0)")
        for k in range(8): A(f"ds_write_b128 v{T}, v[{I1+4*k}:{I1+4*k+3}] offset:{k*1024}")
        A(f"v_mov_b32 v{T}, {RDY}\nv_mov_b32 v{T+1}, 1\ns_waitcnt lgkmcnt(0)\nds_write_b32 v{T}, v{T+1}")
        stamp('rdy')
    else:
        A(f"v_mul_f32 v{T+3}, v{T+3}, v{T+4}\nds_write_b32 v{T}, v{T+3}")
    half=FC//2
    sH2=68
    A(f"s_sub_u32 s{sSPIN}, s2, {FC0}\ns_cmp_ge_u32 s{sSPIN}, {half}\ns_cselect_b32 s{sH2}, {128*1024-896}, 0\ns_cselect_b32 s{sO2}, {32*1024-896}, 0\ns_mul_i32 s{sSPIN}, s{sSPIN}, {1792//FC}")
    A(f"s_add_u32 s{sH2}, s{sH2}, s{sSPIN}\ns_add_u32 s{sH2}, s{sH2}, {PBOX}\ns_add_u32 s{sO2}, s{sO2}, s{sSPIN}\ns_add_u32 s{sO2}, s{sO2}, {MBOX}")
    assert FC==56
    A(f"v_lshlrev_b32 v{vH}, 10, v7\nv_and_b32 v{T}, 1, v2\nv_lshl_add_u32 v{vH}, v{T}, 4, v{vH}")
    for k in range(1,4): A(f"v_add_u32 v{vH+k}, {k*32768}, v{vH}")
    if cfg.mimic and not cfg.nomlp:
        lg=lab("nomg")
        A(f"s_cmp_lt_u32 s2, {FC0}\ns_cbranch_scc1 {lg}")
        if cfg.sent2:
            A(f"s_mov_b32 s69, {MLBOX}")
            poll([(I1+4*k,vL16,1024*k,None) for k in range(4)], 69, 't', 64)
        for r in range(4): A(f"v_mov_b32 v{I1+r}, 0")
        poll([(I1,vH,0,(1<<56)-1)], sO2, 't', 64)
        for r in range(4): A(f"v_and_b32 v{I1+r}, s{sNM}, v{I1+r}")
        tred4(I1); rowred("v_add_f32",I1,[2,4,8])
        rbf(I1,I1)
        A(f"v_add_f32 v{vFM}, v{vFM}, v{I1}"); rbf(vFM,vFM)
        A(f"{lg}:")
    srd(SRDA,sOUT,896)
    A(f"v_bfe_u32 v{T}, v2, 3, 2\nv_lshlrev_b32 v{T}, 14, v{T}\nv_lshrrev_b32 v{T+1}, 5, v2\nv_lshl_add_u32 v{T}, v{T+1}, 11, v{T}\nv_and_b32 v{T+1}, 7, v2\nv_lshl_add_u32 v{vG1}, v{T+1}, 4, v{T}")
    for k in range(1,4): A(f"v_add_u32 v{X+k}, {k*4096}, v{vG1}")
    A(f"s_lshr_b32 s{sO2}, s2, 5\ns_lshl_b32 s{sO2}, s{sO2}, 16\ns_and_b32 s{sSPIN}, s{sA}, 15\ns_lshl_b32 s{sSPIN}, s{sSPIN}, 7\ns_add_u32 s{sO2}, s{sO2}, s{sSPIN}\ns_add_u32 s{sO2}, s{sO2}, {OBOX}")
    if cfg.warm:
        lh=lab("pc")
        A(f"s_getpc_b64 s[4:5]\n{lh}:\nv_lshlrev_b32 v{T}, 6, v2")
        A(f"v_min_u32 v{T+1}, {Ldone}-{lh}, v{T}\nglobal_load_dword v{T+1}, v{T+1}, s[4:5]")
        A(f"s_add_u32 s6, s4, {Lpool}-{lh}\ns_addc_u32 s7, s5, -1")
        for k in range(cfg.warm):
            A(f"global_load_dword v{T+2+k}, v{T}, s[6:7]\ns_add_u32 s6, s6, 4096\ns_addc_u32 s7, s7, 0")
    if cfg.touch is not None:
        if not cfg.sent:
            A(f"s_lshl_b32 s4, s2, 11\ns_add_u32 s4, s4, {OBOX}")
            A(f"buffer_load_dwordx4 v[{I1}:{I1+3}], v{vL16}, s[{SRDW}:{SRDW+3}], s4 offen {cfg.touch}\ns_nop 0")
            A(f"buffer_load_dwordx4 v[{I1+4}:{I1+7}], v{vL16}, s[{SRDW}:{SRDW+3}], s4 offen offset:1024 {cfg.touch}\ns_nop 0")
        if not cfg.sent2:
            A(f"buffer_load_dwordx4 v[{I1+8}:{I1+11}], v{vL16}, s[{SRDW}:{SRDW+3}], s{sCQ} offen {cfg.touch}")
        A("s_waitcnt vmcnt(0)")
    if LATE:
        srd(SRDK,sWO,4096*448*2)
        A(f"s_mul_i32 s69, s{sA}, {32*896}\ns_mul_i32 s4, s{sB}, 448\ns_add_u32 s69, s69, s4")
        lw=lab("dw"); lwd=lab("dwd")
    if LATE and cfg.wolate==2:
        A("s_waitcnt vmcnt(0) lgkmcnt(0)\ns_barrier")
        stamp(5)
        tile_load(SRDK, gated=False, so=69)
    elif LATE:
        A(f"v_mov_b32 v{T}, {DONE}\ns_mov_b32 s{sSPIN}, 0")
        A(f"{lw}:\nds_read_b32 v{T+1}, v{T}\ns_add_u32 s{sSPIN}, s{sSPIN}, 1\ns_waitcnt lgkmcnt(0)\nv_readfirstlane_b32 s4, v{T+1}\ns_cmp_lg_u32 s4, 0\ns_cbranch_scc1 {lwd}")
        A(f"s_sleep 2\ns_cmp_lt_u32 s{sSPIN}, {SPIN_LIMIT*64}\ns_cbranch_scc1 {lw}\n{lwd}:")
        backoff(cfg.wodelay)
        tile_load(SRDK, gated=False, so=69)
        A("s_barrier")
    else:
        A("s_waitcnt vmcnt(0) lgkmcnt(0)\ns_barrier")
    if cfg.wolate!=2: stamp(5)
    if cfg.notail: A(f"s_branch {lend}")
    R=F
    def sum16(I, sent):
        assert not (cfg.fast1 or cfg.fast2)
        if not sent:
            for r in range(16): A(f"v_and_b32 v{I+r}, s{sNM}, v{I+r}")
        for r in range(4): A(f"v_add_f32 v{R+r}, v{I+r}, v{I+4+r}\nv_add_f32 v{R+4+r}, v{I+8+r}, v{I+12+r}")
        for r in range(4): A(f"v_add_f32 v{R+r}, v{R+r}, v{R+4+r}")
        tred4(R)
    backoff(cfg.h1delay)
    poll([(I1,vG1,0,None),(I1+4,X+1,0,None),(I1+8,X+2,0,None),(I1+12,X+3,0,None)], sO2, 's' if cfg.sent else 't', cfg.sleep1, cfg.fast1, cfg.fthr)
    stamp(6)
    if cfg.tdiag: A(f"s_mov_b32 s95, s{sSPIN}")
    sum16(I1,cfg.sent); rowred("v_add_f32",R,[8])
    A(f"v_cvt_pk_bf16_f32 v{R}, v{R}, v{R}"); nop(2)
    project(lambda t:(R,t))
    rec_store(sCQ, cfg.sent2)
    stamp('rec')
    A(f"s_cmp_lt_u32 s2, {FC0}\ns_cbranch_scc1 {lend}")
    I2=XF+16
    if cfg.ackw: A("s_waitcnt vmcnt(0)")
    backoff(cfg.h2delay)
    poll([(I2+4*k,vH+k,0,None) for k in range(4)], sH2, 's' if cfg.sent2 else 't', cfg.sleep2, cfg.fast2, None)
    stamp('h2')
    sum16(I2,cfg.sent2); rowred("v_add_f32",R,[2,4,8])
    if cfg.mimic:
        rbf(R,R)
        A(f"v_add_f32 v{R}, v{vFX}, v{R}"); rbf(R,R)
        A(f"v_add_f32 v{R}, v{R}, v{vFM}\nv_cvt_pk_bf16_f32 v{R}, v{R}, v{R}")
    else:
        A(f"v_add_f32 v{R}, v{vFX}, v{R}\nv_cvt_pk_bf16_f32 v{R}, v{R}, v{R}")
    A(f"s_mov_b32 exec_lo, 0x00030003\ns_mov_b32 exec_hi, 0x00030003")
    A(f"buffer_store_short v{R}, v{vG2}, s[{SRDA}:{SRDA+3}], 0 offen")
    A(f"s_cmp_lg_u32 s2, 255\ns_cbranch_scc1 {lend}")
    A(f"s_mov_b64 exec, 1\ns_add_u32 s{sE}, s{sE}, 1\nv_mov_b32 v{T+1}, s{sE}\nv_mov_b32 v{T+2}, 0")
    A(f"buffer_store_dword v{T+1}, v{T+2}, s[{SRDW}:{SRDW+3}], 0 offen sc1")
    if cfg.probe is not None:
        lx=lab("px"); ly=lab("py")
        if cfg.probe[0]=='g':
            A(f"s_mov_b64 exec, -1\ns_mov_b32 s4, 0x300000\nbuffer_load_dwordx4 v[{F}:{F+3}], v{vL16}, s[{SRDW}:{SRDW+3}], s4 offen sc1")
            A("s_waitcnt vmcnt(0)\ns_memrealtime s[82:83]\ns_waitcnt lgkmcnt(0)")
            for r in range(4): A(f"v_sub_u32 v{F+r}, s82, v{F+r}")
            A(f"v_max3_u32 v{F}, v{F}, v{F+1}, v{F+2}\nv_max_u32 v{F}, v{F}, v{F+3}\ns_mov_b32 s4, {int(cfg.probe[1]*100)}\nv_cmp_lt_u32 vcc, s4, v{F}\ns_cbranch_vccz {lend}")
        elif cfg.probe[0]=='t':
            A("s_waitcnt vmcnt(0)\ns_memrealtime s[82:83]\ns_waitcnt lgkmcnt(0)")
            k={'end':82,'b1':86,'b2':88,'b3':90}[cfg.probe[2]]
            A(f"s_sub_u32 s4, s{k}, s80\ns_cmp_lt_u32 s4, {int(cfg.probe[1]*100)}\ns_cbranch_scc1 {lend}")
        else:
            A(f"s_cmp_eq_u32 s79, 0\ns_cbranch_scc1 {lend}")
        A(f"s_mov_b32 s4, 40\n{lx}:\ns_sleep 40\ns_sub_u32 s4, s4, 1\ns_cmp_lg_u32 s4, 0\ns_cbranch_scc1 {lx}")
        A("s_endpgm")
    A(f"{lend}:")
    if cfg.probe is not None: pass
    elif cfg.stamps and cfg.dbgout:
        A(f"s_cmp_lt_u32 s2, 252\ns_cbranch_scc1 {Ldone}")
        A("s_mov_b64 exec, 1\ns_waitcnt vmcnt(0)")
        stamp(1)
        srd(SRDA,sDBG,256)
        A(f"s_waitcnt lgkmcnt(0)\ns_sub_u32 s{sO2}, s2, 252\ns_lshl_b32 s{sO2}, s{sO2}, 4\nv_mov_b32 v{T}, 0")
        for i,k in enumerate((3,4,5,1)):
            A(f"s_sub_u32 s4, s{80+2*k}, s80\nv_mov_b32 v{F+i}, s4")
        A(f"buffer_store_dwordx4 v[{F}:{F+3}], v{T}, s[{SRDA}:{SRDA+3}], s{sO2} offen")
    elif cfg.stamps:
        A("s_mov_b64 exec, 1\ns_waitcnt vmcnt(0)")
        stamp(1)
        A("s_getreg_b32 s94, hwreg(HW_REG_XCC_ID)\ns_waitcnt lgkmcnt(0)")
        A(f"s_lshl_b32 s{sO2}, s2, 6\ns_add_u32 s{sO2}, s{sO2}, {STAMP:#x}\nv_mov_b32 v{T}, 0")
        for k in range(8):
            A(f"v_mov_b32 v{F}, s{80+2*k}\nv_mov_b32 v{F+1}, s{81+2*k}\nbuffer_store_dwordx2 v[{F}:{F+1}], v{T}, s[{SRDW}:{SRDW+3}], s{sO2} offen offset:{8*k}\ns_nop 1")
    A(f"{Ldone}:")
    A("s_endpgm")
    body="\n".join(L)+"\n"
    kd=f""".section .rodata,"a"
.p2align 6
.amdhsa_kernel {N}
  .amdhsa_next_free_vgpr 232
  .amdhsa_next_free_sgpr 96
  .amdhsa_accum_offset 232
  .amdhsa_group_segment_fixed_size 0
  .amdhsa_kernarg_size 104
  .amdhsa_user_sgpr_count 2
  .amdhsa_user_sgpr_kernarg_segment_ptr 1
  .amdhsa_system_sgpr_workgroup_id_x 1
  .amdhsa_float_denorm_mode_32 3
.end_amdhsa_kernel
"""
    return body, kd

def header():
    ref=open('parallel_sum__gqa_block_cached__dense_activation_gelu__decode.s.ref').read().split("\n")
    out=[]
    for l in ref:
        if l.startswith("; @launch"):
            out.append(f"; @launch grid=(256,1,1) block=(320,1,1) lds={LDS_END}")
            break
        out.append(l)
    return "\n".join(out)+"\n"

def final(cfg, path):
    body,kd=gen(cfg)
    open(path,"w").write(header()+'.amdgcn_target "amdgcn-amd-amdhsa--gfx950"\n.text\n'+body+kd)

def bench(cfgs, path):
    sys.path.insert(0,'bench')
    from genstream import meta
    s='.amdgcn_target "amdgcn-amd-amdhsa--gfx950"\n'
    ks=[]; args=[]
    for c in cfgs:
        body,kd=gen(c)
        s+=".text\n"+body+kd.replace("kernarg_size 104","kernarg_size 112")
        ks.append((c.name,232,320)); args.append(f"{c.name} 256 320 {LDS_END}")
    s+=meta(ks)
    open(path+".s","w").write(s); open(path+".args","w").write(" @ ".join(args))

def mk(name, **kw):
    c=Cfg(); c.name=name
    for k,v in kw.items():
        assert hasattr(c,k), k
        setattr(c,k,v)
    return c

if __name__=="__main__":
    if sys.argv[1]=="final":
        kw=eval(sys.argv[3]) if len(sys.argv)>3 else {}
        final(mk(KNAME,**kw), sys.argv[2])
    else:
        bench([mk(n,**kw) for n,kw in eval(sys.argv[3])], sys.argv[2])
```

```python
import sys, struct, math

KNAME = "parallel_sum__gqa_block_cached__dense_activation_gelu__decode_kernel"
def f2u(f): return struct.unpack('<I', struct.pack('<f', f))[0]

class Cfg:
    name = KNAME
    rot = 0
    pace = 6
    infl = 5
    stamps = False
    smap = {}
    wnt = "nt"
    qsleep = 16
    sleep1 = 0
    sleep2 = 0
    mlsleep = 100
    fc = 56
    nomlp = False
    notail = False
    auxnull = False
    nowo = False
    wowait = 15
    pg = 32
    pord = 0
    sdir = True
    wqtest = 0
    inf0 = None
    inf1 = None
    pfq = False
    pfm = 1
    mnt = 'nt'
    pfgate = 14
    nosbw = False
    nosbr = False
    binf = None
    binfv = (6,6)
    brank = 26
    drain = True
    warm = False
    nobar = False
    wmaj = False
    order = [0,4,2,6,1,5,3,7]
    vorder = [0,1,2,3,4,5,6,7]
    sent = True
    sent2 = False
    cpol = 'sc1'
    cgate = 1
    now1 = False
    now2 = False
    mgate = 6
    wodelay = 0
    wolate = 2
    blk = 4
    rotH = 12
    rotS = 0
    ackw = True
    touch = 'sc1'
    h2delay = 8
    h1delay = 0
    mix = True
    tdiag = False
    qdelay = 50
    mldelay = 100
    prio2 = 0
    nowq = False
    noqx = False
    opol = 'sc1'
    lpol = 'sc1'
    probe = None
    pool = True
    pinfl = 16
    pclaim = 4
    first = 8
    fb = None
    qgate = 6
    cnt = 'nt'
    noml = False
    noopub = False
    mimic = True
    fast1 = 0
    fast2 = 0
    fthr = 64
    vpre = True
    agate = 6
    gran = 1
    thr = None
    dbgout = False

RING=0; SC=131072; WBUF=SC+8192; XN=WBUF+16384; QB=XN+1024; MX=QB+1024; FB=MX+64; RDY=FB+32; DONE=FB+36; QRDY=FB+40; KCNT=FB+44; BOOST=FB+48; LDS_END=FB+64
QBOX=0x1000; MLBOX=0x8000; OBOX=0x10000; PBOX=0x100000; MBOX=0x180000; SBOX=0x200000; CNT=0x280000; CSTR=4352; STAMP=0x20000000
SPIN_LIMIT = 1<<16
CEXP = 0.0625*math.log2(math.e)

def tt(f):
    r=0
    for idx in range(8):
        if f((idx>>2)&1,(idx>>1)&1,idx&1): r|=1<<idx
    return r

def gen(cfg):
    L=[]
    def A(s):
        for line in s.split("\n"):
            t=line.strip()
            L.append(t if t.endswith(":") else "    "+t)
    N=cfg.name
    pre = "L" if N==KNAME else f"L_{N}"
    uid=[0]
    def lab(p):
        uid[0]+=1; return f"{pre}_{p}{uid[0]}"
    def nop(n):
        if n>0: A(f"s_nop {n-1}")
    sX,sK,sV,sWQ,sWO,sW1,sB1=16,18,20,22,24,28,30
    sW2,sB2,sOUT,sDBG,sWS=32,34,36,38,40
    SRDK,SRDV,SRDA,SRDW=44,48,52,56
    sWAVE=3
    def srd(d, p, size):
        A(f"s_mov_b32 s{d}, s{p}\ns_mov_b32 s{d+1}, s{p+1}\ns_mov_b32 s{d+2}, {size:#x}\ns_mov_b32 s{d+3}, 0x20000")
    def stamp(k):
        if cfg.stamps:
            if isinstance(k,str):
                if k not in cfg.smap: return
                k=cfg.smap[k]
            elif k in cfg.smap.values(): return
            A(f"s_memrealtime s[{80+2*k}:{81+2*k}]")
    DPP="row_mask:0xf bank_mask:0xf"
    def rowred(op, v, rors):
        for r in rors:
            nop(2); A(f"{op}_dpp v{v}, v{v}, v{v} row_ror:{r} {DPP}")
    def xrowred(op, v, t):
        A(f"v_mov_b32 v{t}, v{v}"); nop(2); A(f"v_permlane16_swap_b32 v{v}, v{t}"); A(f"{op} v{v}, v{v}, v{t}")
        A(f"v_mov_b32 v{t}, v{v}"); nop(2); A(f"v_permlane32_swap_b32 v{v}, v{t}"); A(f"{op} v{v}, v{v}, v{t}")
    def tred4(a):
        nop(2)
        A(f"v_permlane32_swap_b32 v{a}, v{a+2}\nv_permlane32_swap_b32 v{a+1}, v{a+3}")
        A(f"v_add_f32 v{a}, v{a}, v{a+2}\nv_add_f32 v{a+1}, v{a+1}, v{a+3}")
        nop(2)
        A(f"v_permlane16_swap_b32 v{a}, v{a+1}")
        A(f"v_add_f32 v{a}, v{a}, v{a+1}")
    def rbf(d, s):
        A(f"v_cvt_pk_bf16_f32 v{d}, v{s}, v{s}\nv_and_b32 v{d}, 0xffff0000, v{d}")
    def masks(dst, n, t0, t1):
        A(f"v_and_b32 v{t0}, 1, v{n}\nv_lshlrev_b32 v{t0}, 4, v{t0}\nv_mov_b32 v{t1}, 0xffff\nv_lshlrev_b32 v{t1}, v{t0}, v{t1}\nv_bfe_u32 v{t0}, v{n}, 1, 2")
        for r in range(4):
            A(f"v_cmp_eq_u32 vcc, {r}, v{t0}"); nop(2); A(f"v_cndmask_b32 v{dst+r}, 0, v{t1}, vcc")

    def ldswait(addr, va, vd, cnt, need, sleep, mult=16):
        lw=lab("lw"); lwd=lab("lwd")
        A(f"v_mov_b32 v{va}, {addr}\ns_mov_b32 s{cnt}, 0")
        A(f"{lw}:\nds_read_b32 v{vd}, v{va}\ns_add_u32 s{cnt}, s{cnt}, 1\ns_waitcnt lgkmcnt(0)\nv_readfirstlane_b32 s4, v{vd}\ns_cmp_ge_u32 s4, {need}\ns_cbranch_scc1 {lwd}")
        A(f"s_sleep {sleep}\ns_cmp_lt_u32 s{cnt}, {SPIN_LIMIT*mult}\ns_cbranch_scc1 {lw}\n{lwd}:")
    Ldone=f"{pre}_done"; Laux=f"{pre}_aux"
    A(f".globl {N}\n.p2align 8\n.type {N},@function\n{N}:")
    A(f"s_cmp_ge_u32 s2, 256\ns_cbranch_scc1 {Ldone}")
    A("s_load_dwordx16 s[16:31], s[0:1], 0\ns_load_dwordx8 s[32:39], s[0:1], 64\ns_load_dwordx2 s[40:41], s[0:1], 96")
    stamp(0)
    A("v_lshrrev_b32 v1, 6, v0\nv_and_b32 v2, 63, v0")
    nop(1)
    A(f"v_readfirstlane_b32 s{sWAVE}, v1")
    A(f"s_cmp_eq_u32 s{sWAVE}, 4\ns_cbranch_scc1 {Laux}")

    vKO=8; vVO=16; vKA=18; vVA=22; vSA=23; vMASK=24; vMAX=28; vTG=29; vNM=30; vT=31
    QF=32; TF=64; D=96; S2=100; VP=104
    AR=32; ACC=48; P=56; vVP=7
    sRING,sREG,sNEXT,sOFF,sCNT,sC,sT8,sFF,sV0,sLV,sCL,sY,sSCO=60,61,62,63,64,65,66,67,68,69,70,71,72
    sPC=76
    A("v_lshrrev_b32 v3, 5, v2\nv_and_b32 v4, 31, v2\nv_lshlrev_b32 v5, 2, v3\nv_xor_b32 v4, v4, v5\nv_lshlrev_b32 v4, 4, v4\nv_lshl_add_u32 v4, v3, 9, v4")
    for j in range(8):
        c=(8*(j&1)+(j>>1))*16 | (4096 if j>=4 else 0)
        A(f"v_xor_b32 v{vKO+j}, {c:#x}, v4")
    B=cfg.blk; lb=B.bit_length()-1
    sHB,sRS=78,79
    A(f"s_lshl_b32 s{sRING}, s{sWAVE}, 15\ns_lshr_b32 s4, s2, 5\ns_lshl_b32 s{sHB}, s4, 25\ns_lshl_b32 s5, s{sWAVE}, {13+lb if cfg.wmaj else 13}\ns_add_u32 s{sHB}, s{sHB}, s5")
    A(f"s_mul_i32 s{sNEXT}, s4, {cfg.rotH}\ns_and_b32 s5, s2, 31\ns_mul_i32 s{sRS}, s5, {cfg.rotS}\ns_lshl_b32 s{sREG}, s5, {15+lb}\ns_add_u32 s{sREG}, s{sREG}, s{sHB}\ns_mov_b32 s{sV0}, s{sNEXT}")
    def taddr(dst, t, base, rs):
        A(f"s_bfe_u32 s4, s{t}, {((5-lb)<<16)|lb:#x}\ns_lshl_b32 s4, s4, {20+lb}\ns_add_u32 s{dst}, s{base}, s4")
        if lb:
            A(f"s_add_u32 s4, s{t}, s{rs}\ns_and_b32 s4, s4, {B-1}\ns_lshl_b32 s4, s4, {13 if cfg.wmaj else 15}\ns_add_u32 s{dst}, s{dst}, s4")
    A("s_waitcnt lgkmcnt(0)")
    srd(SRDK,sK,1<<28)
    INF=cfg.infl if isinstance(cfg.infl,tuple) else (cfg.infl,cfg.infl)
    phase=['K']
    def gate(j, lim):
        if lim is None: return "s_nop 0"
        bi = cfg.binf if phase[0]=='K' else cfg.binfv
        if lim is INF and bi is not None and bi[j%len(bi)]>lim[j%len(lim)]:
            g=lab("bg")
            return f"s_waitcnt vmcnt({bi[j%len(bi)]-1})\ns_cbranch_vccnz {g}\ns_waitcnt vmcnt({lim[j%len(lim)]-1})\n{g}:"
        return f"s_waitcnt vmcnt({lim[j%len(lim)]-1})"
    PINF=cfg.pinfl if isinstance(cfg.pinfl,tuple) else (cfg.pinfl,cfg.pinfl)
    sSB=9; vSD=103
    G=cfg.pg; lg=G.bit_length()-1; NI=4*G
    def claim():
        A(f"s_mov_b32 s{sCL}, 1\ns_atomic_add s{sCL}, s[{sPC}:{sPC+1}], 0 glc")
    def steps(slot, kind, lim=INF, doclaim=False):
        def mk(j):
            def f():
                if kind is None: return
                pj=cfg.order[j]; half=pj>>2; jj=pj&3
                sk=None
                if kind in 'PQ':
                    if kind=='P': sk=lab("ps")
                    if j==0:
                        ok=lab("po")
                        if kind=='Q': pass
                        elif cfg.wolate==1:
                            A(f"s_waitcnt lgkmcnt(0)\ns_mov_b32 s{sSCO+slot}, -1\ns_cmp_lt_u32 s{sCL}, {NI}\ns_cbranch_scc1 {ok}")
                            A(f"v_mov_b32 v{vT}, {DONE}\nds_write_b32 v{vT}, v{vT}\ns_branch {sk}\n{ok}:")
                        else:
                            A(f"s_waitcnt lgkmcnt(0)\ns_mov_b32 s{sSCO+slot}, -1\ns_cmp_ge_u32 s{sCL}, {NI}\ns_cbranch_scc1 {sk}")
                        if cfg.pord: A(f"s_lshr_b32 s5, s{sCL}, 2\ns_and_b32 s6, s{sCL}, 3")
                        else: A(f"s_and_b32 s5, s{sCL}, {G-1}\ns_lshr_b32 s6, s{sCL}, {lg}")
                        A(f"s_lshl_b32 s7, s5, 10\ns_lshl_b32 s8, s6, 8\ns_add_u32 s{sSCO+slot}, s7, s8")
                        A(f"s_and_b32 s7, s2, {31&~(G-1)}\ns_or_b32 s5, s5, s7\ns_mul_i32 s7, s5, {cfg.rotS}\ns_lshl_b32 s5, s5, {15+lb}\ns_add_u32 s5, s5, s{sHB}\ns_add_u32 s6, s6, s{sV0}")
                        taddr(sOFF,6,5,7)
                        if cfg.sdir:
                            A(f"s_add_u32 s4, s{sSCO+slot}, s{sSB}\nbuffer_load_dwordx2 v[{VP+2*slot}:{VP+2*slot+1}], v{vSD}, s[{SRDW}:{SRDW+3}], s4 offen sc1")
                    elif kind=='P':
                        A(f"s_cmp_eq_u32 s{sSCO+slot}, -1\ns_cbranch_scc1 {sk}")
                elif j==0:
                    taddr(sOFF,sNEXT,sREG,sRS)
                    A(f"s_add_u32 s{sNEXT}, s{sNEXT}, 1")
                if (kind in 'PQ' or doclaim) and j==cfg.pclaim: claim()
                vo = vKO+pj if kind=='K' else vVO+half
                sr = SRDK if kind=='K' else SRDV
                A(f"s_add_u32 m0, s{sRING}, {slot*8192+half*4096}\n{gate(j, PINF if kind in 'PQ' else lim)}")
                A(f"buffer_load_dwordx4 v{vo}, s[{sr}:{sr+3}], s{sOFF} offen offset:{jj*1024} nt lds")
                if sk: A(f"{sk}:")
            return f
        return [mk(j) for j in range(8)]
    def weave(st, sl):
        for u in range(8):
            st[u]()
            if u<len(sl): sl[u]()
    for j,f in enumerate(steps(0,'K',None)[:cfg.first]): f()
    NB = cfg.nobar and cfg.pool and not cfg.auxnull
    if NB: A("s_barrier")
    srd(SRDV,sV,1<<28)
    A(f"s_load_dword s{sT8}, s[{sWS}:{sWS+1}], 0")
    A(f"v_lshlrev_b32 v{vVO}, 4, v2\nv_add_u32 v{vVO+1}, 0x1000, v{vVO}")
    A("v_lshrrev_b32 v3, 4, v2\nv_and_b32 v4, 15, v2")
    A("v_and_b32 v5, 3, v4\nv_lshlrev_b32 v5, 2, v5\nv_lshrrev_b32 v6, 2, v4\nv_add_u32 v5, v5, v6")
    A(f"v_xor_b32 v6, v3, v4\nv_lshlrev_b32 v6, 4, v6\nv_lshl_add_u32 v6, v5, 9, v6\nv_add_u32 v6, s{sRING}, v6")
    for q in range(4): A(f"v_xor_b32 v{vKA+q}, {q*64}, v6")
    A(f"v_lshlrev_b32 v6, 4, v4\nv_lshl_add_u32 v6, v3, 9, v6\nv_add_u32 v{vVA}, s{sRING}, v6")
    A(f"s_lshl_b32 s{sCNT}, s{sWAVE}, 11\ns_add_u32 s{sCNT}, s{sCNT}, {SC}")
    A(f"v_lshrrev_b32 v5, 3, v4\nv_lshlrev_b32 v6, 5, v5\nv_lshl_add_u32 v6, v3, 3, v6\nv_add_u32 v{vSA}, s{sCNT}, v6")
    A(f"v_lshlrev_b32 v7, 9, v5\nv_lshl_add_u32 v7, v3, 4, v7\nv_add_u32 v7, {QB}, v7")
    masks(vMASK,4,5,6)
    A(f"v_mov_b32 v{vMAX}, 0xff800000")
    A(f"s_lshr_b32 s4, s2, 3\ns_xor_b32 s5, s4, s2\ns_and_b32 s5, s5, 7\ns_cmp_lt_u32 s4, 28\ns_cselect_b32 s5, s5, 1\ns_cmp_eq_u32 s5, 0\ns_cselect_b64 vcc, 1, 0")
    A(f"v_subrev_u32 v{vT}, s{sRING}, v{vVA}\nv_add_u32 v1, 0x1000, v{vT}")
    I0 = INF if cfg.inf0 is None else cfg.inf0
    I1_ = INF if cfg.inf1 is None else cfg.inf1
    for f in steps(0,'K',I0)[cfg.first:]: f()
    for slot in (1,2):
        for f in steps(slot,'K',I0): f()
    for i in range(4):
        taddr(sOFF,sV0,sREG,sRS)
        for u in cfg.vorder:
            o=(u>>1)*2048+(u&1)*256
            vo = vT if o<4096 else 1
            A(gate(u,I1_))
            A(f"buffer_load_dwordx4 v[{VP+32*i+4*u}:{VP+32*i+4*u+3}], v{vo}, s[{SRDV}:{SRDV+3}], s{sOFF} offen offset:{o&4095} nt")
        A(f"s_add_u32 s{sV0}, s{sV0}, {1 if i<3 else 25}")
    A(f"s_waitcnt lgkmcnt(0)\ns_add_u32 s{sT8}, s{sT8}, 1\ns_and_b32 s{sT8}, s{sT8}, 0xff\ns_mov_b32 s{sFF}, 0xff\nv_mov_b32 v{vTG}, s{sT8}")
    srd(SRDW,sWS,1<<30)
    if NB: ldswait(QRDY, vT, D, sCNT, 1, 2)
    else: A("s_barrier")
    for jj in range(8): A(f"ds_read_b128 v[{QF+4*jj}:{QF+4*jj+3}], v7 offset:{jj*64}")

    def ktile(slot, kind):
        def s0():
            A("s_waitcnt vmcnt(16)")
            for jj in range(8):
                A(f"ds_read_b128 v[{TF+4*jj}:{TF+4*jj+3}], v{vKA+(jj&3)} offset:{slot*8192+(jj>>2)*256}")
        def mf(r):
            def f():
                if r[0]==0: A("s_waitcnt lgkmcnt(0)")
                for jj in r:
                    c = "0" if jj==0 else f"v[{D}:{D+3}]"
                    A(f"v_mfma_f32_16x16x32_bf16 v[{D}:{D+3}], v[{TF+4*jj}:{TF+4*jj+3}], v[{QF+4*jj}:{QF+4*jj+3}], {c}")
            return f
        def s3():
            nop(5)
            A(f"v_cvt_pk_bf16_f32 v{S2}, v{D}, v{D+1}\nv_cvt_pk_bf16_f32 v{S2+1}, v{D+2}, v{D+3}")
            A(f"v_max3_f32 v{vMAX}, v{vMAX}, v{D}, v{D+1}\nv_max3_f32 v{vMAX}, v{vMAX}, v{D+2}, v{D+3}")
            A(f"ds_write_b64 v{vSA}, v[{S2}:{S2+1}] offset:{slot*64}")
        weave(steps((slot+3)&3,kind),[s0,mf([0,1,2,3]),mf([4,5,6,7]),s3])
    def pcalc(S2=S2):
        A(f"v_lshlrev_b32 v{P}, 16, v{S2}\nv_and_b32 v{P+1}, 0xffff0000, v{S2}\nv_lshlrev_b32 v{P+2}, 16, v{S2+1}\nv_and_b32 v{P+3}, 0xffff0000, v{S2+1}")
        for t in range(4): A(f"v_fma_f32 v{P+t}, v{P+t}, s{sC}, v{vNM}")
        for t in range(4): A(f"v_exp_f32 v{P+t}, v{P+t}")
        nop(1)
        for t in range(4): A(f"v_cvt_pk_bf16_f32 v{P+t}, v{P+t}, v{P+t}")
    def pmask():
        for t in range(4):
            for r in range(4): A(f"v_and_b32 v{AR+4*t+r}, v{P+t}, v{vMASK+r}")
    def pv(src, us):
        for u in us:
            t=u>>1; h=u&1
            A(f"v_mfma_f32_16x16x32_bf16 v[{ACC+4*h}:{ACC+4*h+3}], v[{AR+4*t}:{AR+4*t+3}], v[{src+4*u}:{src+4*u+3}], v[{ACC+4*h}:{ACC+4*h+3}]")
    def vtile(slot, kind, waitn, scoff=None, regs=None, pooled=False, doclaim=False):
        def ywait(extra):
            go=lab("wy")
            A(f"s_waitcnt vmcnt({16+extra})")
            for y in (2,1): A(f"s_cmp_ge_i32 s{sY}, {y}\ns_cbranch_scc1 {go}\ns_waitcnt vmcnt({8*(y-1)+extra})")
            A(f"{go}:")
        def s0():
            if pooled and cfg.sdir:
                if waitn=='y': ywait(8)
                else: A(f"s_waitcnt vmcnt({waitn+8})")
                pcalc(VP+2*slot); return
            if pooled: A(f"v_add_u32 v{vT}, s{sSCO+slot}, v{vSA}\nds_read_b64 v[{S2}:{S2+1}], v{vT}")
            else: A(f"ds_read_b64 v[{S2}:{S2+1}], v{vSA} offset:{slot*64 if scoff is None else scoff}")
            rb = kind=='V' and cfg.binfv is not None and (slot&1)
            if rb: A(f"ds_read_b32 v{D}, v{vBA}")
            A("s_waitcnt lgkmcnt(0)")
            if rb: A(f"v_cmp_ne_u32 vcc, 0, v{D}")
            pcalc()
        def s1():
            if waitn=='y': ywait(0)
            else: A(f"s_waitcnt vmcnt({waitn})")
            for u in range(8):
                A(f"ds_read_b128 v[{TF+4*u}:{TF+4*u+3}], v{vVA} offset:{slot*8192+(u>>1)*2048+(u&1)*256}")
            if kind is not None:
                pmask()
                A("s_waitcnt lgkmcnt(0)")
        sl=[s0,s1,lambda:pv(TF,[0,1,2,3]),lambda:pv(TF,[4,5,6,7])]
        if kind is None:
            s0(); pmask(); s1()
            for u in range(8):
                A(f"s_waitcnt lgkmcnt({7-u})"); pv(TF,[u])
            return
        if regs is not None:
            def r0():
                A(f"ds_read_b64 v[{S2}:{S2+1}], v{vSA} offset:{slot*64}\ns_waitcnt lgkmcnt(0)"); pcalc()
            sl+=[r0,pmask,lambda:pv(regs,[0,1,2,3]),lambda:pv(regs,[4,5,6,7])]
        weave(steps((slot+3)&3,kind,doclaim=doclaim),sl)
        if kind=='P':
            A(f"s_cmp_eq_u32 s{sSCO+((slot+3)&3)}, -1\ns_subb_u32 s{sY}, s{sY}, 0")

    lk=lab("kloop")
    A(f"s_mov_b32 s{sCNT}, 7")
    A(f"{lk}:")
    for s in range(4): ktile(s,'K')
    A(f"v_add_u32 v{vSA}, 256, v{vSA}")
    A(f"s_sub_u32 s{sCNT}, s{sCNT}, 1\ns_cmp_lg_u32 s{sCNT}, 0\ns_cbranch_scc1 {lk}")
    ktile(0,'K')
    A(f"s_add_u32 s{sNEXT}, s{sNEXT}, 4")
    for s in range(1,4): ktile(s,'V')
    A(f"v_subrev_u32 v{vSA}, {7*256}, v{vSA}")
    for r in range(8): A(f"v_mov_b32 v{ACC+r}, 0")
    xrowred("v_max_f32", vMAX, vT)
    rbf(vMAX,vMAX)
    A(f"v_bfe_u32 v3, v2, 3, 1\nv_lshlrev_b32 v3, 4, v3\nv_add_u32 v3, {MX}, v3")
    A(f"s_lshl_b32 s{sCNT}, s{sWAVE}, 2\nv_add_u32 v4, s{sCNT}, v3")
    if NB:
        A(f"ds_write_b32 v4, v{vMAX}\nv_mov_b32 v3, {KCNT}\nv_mov_b32 v4, 1\ns_mov_b32 s{sC}, {f2u(CEXP):#x}\ns_mov_b64 exec, 1\nds_add_u32 v3, v4\ns_mov_b64 exec, -1")
    else:
        A(f"ds_write_b32 v4, v{vMAX}\ns_waitcnt lgkmcnt(0)\ns_barrier")
        A(f"ds_read_b128 v[{D}:{D+3}], v3\ns_mov_b32 s{sC}, {f2u(CEXP):#x}\ns_waitcnt lgkmcnt(0)")
        A(f"v_max_f32 v{vMAX}, v{D}, v{D+1}\nv_max3_f32 v{vMAX}, v{vMAX}, v{D+2}, v{D+3}")
    A(f"v_mul_f32 v{vNM}, s{sC}, v{vMAX}\nv_sub_f32 v{vNM}, 0, v{vNM}")
    A("v_lshrrev_b32 v6, 5, v2\nv_lshlrev_b32 v6, 10, v6\nv_and_b32 v5, 15, v2\nv_lshl_add_u32 v6, v5, 5, v6\nv_bfe_u32 v5, v2, 4, 1\nv_lshl_add_u32 v6, v5, 4, v6")
    A(f"v_add_u32 v6, s{sRING}, v6")
    A(f"s_lshl_b32 s{sCNT}, s{sWAVE}, 9\nv_lshlrev_b32 v4, 4, v2\nv_add_u32 v4, s{sCNT}, v4\nv_add_u32 v5, 0x10000, v4")
    A(f"s_lshr_b32 s{sCNT}, s{sWAVE}, 1\ns_lshl_b32 s{sCNT}, s{sCNT}, 2\ns_add_u32 s{sCNT}, s{sCNT}, {FB}\nv_mov_b32 v3, s{sCNT}")
    lv=lab("vloop")
    phase[0]='V'
    vBA=102
    A(f"v_mov_b32 v{vBA}, {BOOST}\ns_mov_b64 vcc, 0")
    for s in range(4): vtile(s,'V',16,scoff=256+s*64,regs=VP+32*s)
    A(f"v_add_u32 v{vSA}, 512, v{vSA}")
    A(f"s_mov_b32 s{sCNT}, {4 if cfg.pool else 5}")
    A(f"{lv}:")
    for s in range(4): vtile(s,'V',16)
    A(f"v_add_u32 v{vSA}, 256, v{vSA}")
    A(f"s_sub_u32 s{sCNT}, s{sCNT}, 1\ns_cmp_lg_u32 s{sCNT}, 0\ns_cbranch_scc1 {lv}")
    Lpool=f"{pre}_poolcode"
    A(f"{Lpool}:")
    if cfg.pool:
        lw=lab("rw"); lwd=lab("rwd")
        A(f"v_mov_b32 v{vT}, {RDY}\ns_mov_b32 s{sCNT}, 0")
        A(f"{lw}:\nds_read_b32 v{D}, v{vT}\ns_add_u32 s{sCNT}, s{sCNT}, 1")
        A(f"s_lshr_b32 s4, s2, {lg}\ns_lshl_b32 s5, s4, 2\ns_add_u32 s5, s5, s{sWAVE}\ns_mul_i32 s5, s5, {CSTR}\ns_add_u32 s5, s5, {CNT}\ns_add_u32 s{sPC}, s{sWS}, s5\ns_addc_u32 s{sPC+1}, s{sWS+1}, 0")
        A(f"s_mov_b32 s{sY}, 2")
        if cfg.sdir:
            A(f"s_and_b32 s{sSB}, s2, {255&~(G-1)}\ns_lshl_b32 s{sSB}, s{sSB}, 10\ns_lshl_b32 s5, s{sWAVE}, 6\ns_add_u32 s{sSB}, s{sSB}, s5\ns_add_u32 s{sSB}, s{sSB}, {SBOX}")
            A(f"v_bfe_u32 v{vSD}, v2, 3, 1\nv_lshlrev_b32 v{vSD}, 5, v{vSD}\nv_lshrrev_b32 v{D+1}, 4, v2\nv_lshl_add_u32 v{vSD}, v{D+1}, 3, v{vSD}")
        A(f"s_waitcnt lgkmcnt(0)\nv_readfirstlane_b32 s4, v{D}\ns_cmp_lg_u32 s4, 0\ns_cbranch_scc1 {lwd}")
        A(f"s_sleep 4\ns_cmp_lt_u32 s{sCNT}, {SPIN_LIMIT*16}\ns_cbranch_scc1 {lw}\n{lwd}:")
        vtile(0,'V',16,doclaim=True)
        for s in range(1,4): vtile(s,'P','y')
        if NB:
            A(f"v_lshrrev_b32 v{vT}, 5, v2\nv_lshlrev_b32 v{D+2}, 2, v{vT}\nv_add_u32 v{D+2}, {FB+16}, v{D+2}\nds_read_b32 v{D}, v{D+2}")
            A(f"s_lshl_b32 s4, s{sWAVE}, 2\ns_add_u32 s4, s4, {MX}\nv_lshlrev_b32 v{vT}, 4, v{vT}\nv_add_u32 v{vT}, s4, v{vT}\nds_read_b32 v{D+1}, v{vT}")
        else:
            A(f"v_lshrrev_b32 v{vT}, 5, v2\nv_lshlrev_b32 v{vT}, 2, v{vT}\nv_add_u32 v{vT}, {FB+8}, v{vT}\nds_read_b32 v{D}, v{vT}")
        A(f"v_bfe_u32 v{vT}, v2, 3, 1\nv_lshlrev_b32 v{vSA}, 5, v{vT}\nv_lshlrev_b32 v{vT}, 2, v{vT}\nv_add_u32 v{vT}, {FB+16}, v{vT}\nds_read_b32 v{vNM}, v{vT}")
        A(f"v_lshrrev_b32 v{vT}, 4, v2\nv_lshl_add_u32 v{vSA}, v{vT}, 3, v{vSA}\ns_lshl_b32 s4, s{sWAVE}, 6\ns_add_u32 s4, s4, {WBUF}\nv_add_u32 v{vSA}, s4, v{vSA}")
        A("s_waitcnt lgkmcnt(0)")
        if NB:
            A(f"v_mul_f32 v{D+1}, s{sC}, v{D+1}\nv_add_f32 v{D}, v{D}, v{D+1}\nv_exp_f32 v{D}, v{D}"); nop(1)
        for r in range(8): A(f"v_mul_f32 v{ACC+r}, v{ACC+r}, v{D}")
        lp=lab("ploop"); le=lab("pend")
        if cfg.drain:
            ld=[lab("drain") for _ in range(4)]
            A(f"{lp}:")
            for s in range(4):
                A(f"s_waitcnt lgkmcnt(0)\ns_cmp_ge_u32 s{sCL}, {NI}\ns_cbranch_scc1 {ld[s]}")
                vtile(s,'Q',16,pooled=True)
            A(f"s_branch {lp}")
            for s in range(4):
                A(f"{ld[s]}:")
                for d in range(3):
                    sl=(s+d)&3
                    A(f"s_cmp_eq_u32 s{sSCO+sl}, -1\ns_cbranch_scc1 {le}")
                    vtile(sl,None,'y',pooled=True)
                    if d<2: A(f"s_sub_u32 s{sY}, s{sY}, 1")
                if s<3: A(f"s_branch {le}")
            A(f"{le}:")
        else:
            A(f"{lp}:")
            for s in range(4):
                A(f"s_cmp_eq_u32 s{sSCO+s}, -1\ns_cbranch_scc1 {le}")
                vtile(s,'P','y',pooled=True)
            A(f"s_branch {lp}\n{le}:")
    else:
        vtile(0,'V',16); vtile(1,None,16); vtile(2,None,8); vtile(3,None,0)
    A(f"s_lshl_b32 s{sOFF}, s2, 11\ns_add_u32 s{sOFF}, s{sOFF}, {OBOX}")
    nop(7)
    A(f"ds_write_b128 v6, v[{ACC}:{ACC+3}]\nds_write_b128 v6, v[{ACC+4}:{ACC+7}] offset:512")
    A("s_waitcnt lgkmcnt(0)\ns_barrier")
    A("s_mov_b32 exec_hi, 0")
    A(f"ds_read_b128 v[{TF}:{TF+3}], v4\nds_read_b128 v[{TF+4}:{TF+7}], v4 offset:32768\nds_read_b128 v[{TF+8}:{TF+11}], v5\nds_read_b128 v[{TF+12}:{TF+15}], v5 offset:32768\nds_read_b32 v{TF+16}, v3")
    A("s_waitcnt lgkmcnt(3)")
    for r in range(4): A(f"v_add_f32 v{TF+r}, v{TF+r}, v{TF+4+r}")
    A("s_waitcnt lgkmcnt(1)")
    for r in range(4): A(f"v_add_f32 v{TF+8+r}, v{TF+8+r}, v{TF+12+r}")
    for r in range(4): A(f"v_add_f32 v{TF+r}, v{TF+r}, v{TF+8+r}")
    A("s_waitcnt lgkmcnt(0)")
    for r in range(4): A(f"v_mul_f32 v{TF+r}, v{TF+r}, v{TF+16}")
    for r in range(4):
        if cfg.sent: A(f"v_min_u32 v{TF+r}, -2, v{TF+r}")
        else: A(f"v_bfi_b32 v{TF+r}, s{sFF}, v{vTG}, v{TF+r}")
    if cfg.tdiag: A("s_memrealtime s[82:83]")
    if not cfg.noopub: A(f"buffer_store_dwordx4 v[{TF}:{TF+3}], v4, s[{SRDW}:{SRDW+3}], s{sOFF} offen {cfg.opol}")
    if cfg.tdiag:
        A(f"s_waitcnt vmcnt(0)\ns_memrealtime s[84:85]\ns_waitcnt lgkmcnt(0)\ns_cmp_lg_u32 s{sWAVE}, 0\ns_cbranch_scc1 {Ldone}")
        A(f"s_lshl_b32 s4, s2, 6\ns_add_u32 s4, s4, {STAMP+0x100000:#x}\ns_mov_b64 exec, 1\nv_mov_b32 v1, 0\nv_mov_b32 v{TF}, s82\nv_mov_b32 v{TF+1}, s83\nv_mov_b32 v{TF+2}, s84\nv_mov_b32 v{TF+3}, s85")
        A(f"buffer_store_dwordx4 v[{TF}:{TF+3}], v1, s[{SRDW}:{SRDW+3}], s4 offen")
    A("s_endpgm")

    vL16=3; vWO_=4; vTR=5; vXA=6
    X=8; F=12; T=20
    XF=32; WF=88
    WT=144
    PA=208
    AM=216
    vT8=220; vFX=221; vG1=222; vG2=223; vPS=224; vTO=225; vFM=226; vH=227
    AT=88
    sE,sTAG,sCQ,sO2,sSPIN,sCM,sFF,sA,sB,sNM=60,61,62,63,64,65,78,66,67,71
    A(f"{Laux}:")
    lend=lab("end")
    if cfg.auxnull:
        A("s_waitcnt lgkmcnt(0)"); srd(SRDW,sWS,1<<30)
        A("s_barrier"); stamp(3); A("s_barrier"); stamp(4); A("s_barrier"); stamp(5); A(f"s_branch {lend}")
    A("s_setprio 3")
    if NB:
        A(f"v_mov_b32 v{X}, 0\nv_mov_b32 v{X+1}, 0\nv_mov_b32 v{X+2}, 0\nv_mov_b32 v{X+3}, 0\nv_mov_b32 v{T}, {RDY}\nds_write_b128 v{T}, v[{X}:{X+3}]")
    A(f"v_lshrrev_b32 v7, 1, v2\nv_and_b32 v{T}, 1, v2\nv_lshlrev_b32 v{T}, 4, v{T}")
    A(f"v_lshl_add_u32 v{vWO_}, v7, 13, v{T}\nv_lshlrev_b32 v{vL16}, 4, v2")
    if cfg.mix:
        A(f"s_and_b32 s4, s2, 7\ns_lshr_b32 s5, s2, 5\ns_add_u32 s5, s5, s4\ns_and_b32 s5, s5, 7\ns_lshl_b32 s5, s5, 2\ns_lshl_b32 s{sCQ}, s4, 5\ns_add_u32 s{sCQ}, s{sCQ}, s5\ns_bfe_u32 s5, s2, 0x20003\ns_add_u32 s{sCQ}, s{sCQ}, s5\ns_lshl_b32 s{sO2}, s{sCQ}, 5")
    else:
        A(f"s_and_b32 s{sCQ}, s2, 7\ns_lshl_b32 s{sCQ}, s{sCQ}, 5\ns_lshr_b32 s{sO2}, s2, 3\ns_add_u32 s{sCQ}, s{sCQ}, s{sO2}\ns_lshl_b32 s{sO2}, s{sCQ}, 5")
    A("s_waitcnt lgkmcnt(0)")
    stamp('karg')
    A(f"s_load_dword s{sE}, s[{sWS}:{sWS+1}], 0")
    srd(SRDA,sX,896)
    A(f"buffer_load_dwordx4 v[{X}:{X+3}], v{vL16}, s[{SRDA}:{SRDA+3}], 0 offen")
    if NB: A("s_barrier")
    srd(SRDK,sWQ,448*4096*2)
    def wdma(sr, step, gate=None):
        for i in range(14):
            if gate is not None: A(f"s_waitcnt vmcnt({gate})")
            A(f"s_mov_b32 m0, {WBUF+i*1024}")
            if i: A(f"s_add_u32 s{sO2}, s{sO2}, {step}")
            else: nop(1)
            A(f"buffer_load_dwordx4 v{vWO_}, s[{sr}:{sr+3}], s{sO2} offen {cfg.cnt} lds")
    if cfg.pfq:
        A(f"s_mul_i32 s5, s2, 14336")
        for i in range(14):
            A(f"buffer_load_dwordx4 v[{WF+4*i}:{WF+4*i+3}], v{vL16}, s[{SRDK}:{SRDK+3}], s5 offen\ns_add_u32 s5, s5, 1024")
        A("s_waitcnt vmcnt(0)")
    if cfg.wqtest==1:
        A(f"v_lshrrev_b32 v{T}, 3, v2\nv_and_b32 v{T+1}, 7, v2\nv_lshlrev_b32 v{T+1}, 4, v{T+1}\nv_lshl_add_u32 v{vWO_}, v{T}, 13, v{T+1}")
        A(f"s_and_b32 s4, s{sCQ}, 3\ns_mul_i32 s4, s4, {112*8192}\ns_lshr_b32 s{sO2}, s{sCQ}, 2\ns_lshl_b32 s{sO2}, s{sO2}, 7\ns_add_u32 s{sO2}, s{sO2}, s4")
        wdma(SRDK,8*8192,cfg.qgate)
    elif cfg.wqtest==2:
        A(f"v_mov_b32 v{vWO_}, v{vL16}\ns_mul_i32 s{sO2}, s2, 14336")
        wdma(SRDK,1024,cfg.qgate)
    elif cfg.wqtest==3:
        A(f"v_mov_b32 v{vWO_}, v{vL16}\ns_and_b32 s4, s2, 7\ns_lshl_b32 s4, s4, 10\ns_lshr_b32 s{sO2}, s2, 3\ns_mul_i32 s{sO2}, s{sO2}, {14*8192}\ns_add_u32 s{sO2}, s{sO2}, s4")
        wdma(SRDK,8192,cfg.qgate)
    elif not cfg.nowq: wdma(SRDK,32*8192,cfg.qgate)
    srd(SRDW,sWS,1<<30)
    A(f"v_lshrrev_b32 v{T}, 4, v2\nv_bfe_u32 v{T+1}, v2, 2, 2\nv_lshl_add_u32 v{T+1}, v{T}, 3, v{T+1}\nv_and_b32 v{T+2}, 3, v2\nv_lshlrev_b32 v{T+2}, 3, v{T+2}\nv_add_u32 v{T+2}, {WBUF}, v{T+2}")
    A(f"v_lshl_add_u32 v{vTR}, v{T+1}, 5, v{T+2}\nv_lshl_add_u32 v{vG1}, v{T+1}, 7, v{T+2}")
    A(f"v_lshlrev_b32 v{T}, 4, v{T}\nv_add_u32 v{vXA}, {XN}, v{T}")
    A("v_cmp_gt_u32 s[74:75], 56, v2")
    stamp('issued')
    A("s_waitcnt vmcnt(14)")
    stamp('xland')
    for r in range(4):
        A(f"v_lshlrev_b32 v{F+2*r}, 16, v{X+r}\nv_and_b32 v{F+2*r+1}, 0xffff0000, v{X+r}")
    A(f"v_add_f32 v{T}, v{F}, v{F+1}\nv_add_f32 v{T+1}, v{F+2}, v{F+3}\nv_add_f32 v{T+2}, v{F+4}, v{F+5}\nv_add_f32 v{T+3}, v{F+6}, v{F+7}")
    A(f"v_add_f32 v{T}, v{T}, v{T+1}\nv_add_f32 v{T+2}, v{T+2}, v{T+3}\nv_add_f32 v{T}, v{T}, v{T+2}")
    rowred("v_add_f32",T,[1,2,4,8]); xrowred("v_add_f32",T,T+1)
    A(f"v_mul_f32 v{T}, {f2u(1.0/448):#x}, v{T}")
    A(f"v_sub_f32 v{T+2}, v{F}, v{T}\nv_mul_f32 v{T+1}, v{T+2}, v{T+2}")
    for r in range(1,8):
        A(f"v_sub_f32 v{T+2}, v{F+r}, v{T}\nv_fmac_f32 v{T+1}, v{T+2}, v{T+2}")
    A(f"v_cndmask_b32 v{T+1}, 0, v{T+1}, s[74:75]")
    rowred("v_add_f32",T+1,[1,2,4,8]); xrowred("v_add_f32",T+1,T+2)
    A(f"v_mul_f32 v{T+1}, {f2u(1.0/448):#x}, v{T+1}")
    rbf(T,T); rbf(T+1,T+1)
    A(f"v_add_f32 v{T+1}, {f2u(1e-5):#x}, v{T+1}"); rbf(T+1,T+1)
    A(f"v_sqrt_f32 v{T+1}, v{T+1}"); nop(1); rbf(T+1,T+1)
    A(f"v_rcp_f32 v{T+2}, v{T+1}")
    for r in range(8): A(f"v_sub_f32 v{F+r}, v{F+r}, v{T}")
    for r in range(4): A(f"v_cvt_pk_bf16_f32 v{X+r}, v{F+2*r}, v{F+2*r+1}")
    for r in range(4): A(f"v_lshlrev_b32 v{F+2*r}, 16, v{X+r}\nv_and_b32 v{F+2*r+1}, 0xffff0000, v{X+r}")
    for r in range(8):
        A(f"v_mul_f32 v{T+3}, v{F+r}, v{T+2}\nv_fma_f32 v{T+4}, -v{T+3}, v{T+1}, v{F+r}\nv_fma_f32 v{F+r}, v{T+4}, v{T+2}, v{T+3}")
    for r in range(4): A(f"v_cvt_pk_bf16_f32 v{X+r}, v{F+2*r}, v{F+2*r+1}")
    A(f"v_add_u32 v{T}, {XN}, v{vL16}\nds_write_b128 v{T}, v[{X}:{X+3}]\ns_waitcnt lgkmcnt(0)")
    for jj in range(14): A(f"ds_read_b128 v[{XF+4*jj}:{XF+4*jj+3}], v{vXA} offset:{jj*64}")
    stamp('lndone')
    A("s_waitcnt vmcnt(0)")
    stamp('wqland')
    for jj in range(14):
        A(f"ds_read_b64_tr_b16 v[{WF+4*jj}:{WF+4*jj+1}], v{vTR} offset:{jj*1024}\nds_read_b64_tr_b16 v[{WF+4*jj+2}:{WF+4*jj+3}], v{vTR} offset:{jj*1024+128}")
    A(f"s_waitcnt lgkmcnt(0)")
    for jj in range(14):
        c="0" if jj==0 else f"v[{T}:{T+3}]"
        A(f"v_mfma_f32_16x16x32_bf16 v[{T}:{T+3}], v[{XF+4*jj}:{XF+4*jj+3}], v[{WF+4*jj}:{WF+4*jj+3}], {c}")
    A(f"s_mul_i32 s{sTAG}, s{sE}, 0x9E3779B1\ns_add_u32 s{sTAG}, s{sTAG}, 0x7F4A7C15")
    A(f"s_add_u32 s{sFF}, s{sE}, 1\ns_and_b32 s{sFF}, s{sFF}, 0xff\nv_mov_b32 v{vT8}, s{sFF}\ns_mov_b32 s{sFF}, 0xff\ns_mov_b32 s{sNM}, 0xffffff00")
    A(f"s_lshl_b32 s{sO2}, s{sCQ}, 6\ns_add_u32 s{sO2}, s{sO2}, {QBOX}\nv_lshlrev_b32 v{T+6}, 3, v7\nv_mov_b32 v{T+5}, s{sTAG}")
    A(f"v_mov_b32_dpp v{T+1}, v{T} quad_perm:[1,1,3,3] {DPP}")
    A(f"v_cvt_pk_bf16_f32 v{T+4}, v{T}, v{T+1}")
    A("s_mov_b64 exec, 0x5555")
    if not cfg.noqx: A(f"buffer_store_dwordx2 v[{T+4}:{T+5}], v{T+6}, s[{SRDW}:{SRDW+3}], s{sO2} offen sc1")
    A("s_mov_b64 exec, -1")
    stamp(2)
    TT1=tt(lambda a,b,t:(a^t)|(b^t)); TT2=tt(lambda a,b,c:(a|b)&c)
    def poll(loads, soff, mode, sleep, fast=0, fthr=None):
        PM=4
        lp=lab("poll"); ld=lab("polld")
        for i,(d,vo,imm,lm) in enumerate(loads):
            if lm is None: A(f"s_mov_b64 s[{PM+2*i}:{PM+2*i+1}], -1")
            else: A(f"s_mov_b32 s{PM+2*i}, {lm&0xffffffff:#x}\ns_mov_b32 s{PM+2*i+1}, {lm>>32:#x}")
        A(f"s_mov_b32 s{sSPIN}, 0\ns_mov_b32 s14, 999")
        A(f"{lp}:")
        for i,(d,vo,imm,lm) in enumerate(loads):
            sk=lab("sk")
            A(f"s_mov_b64 exec, s[{PM+2*i}:{PM+2*i+1}]\ns_cbranch_execz {sk}")
            A(f"buffer_load_dwordx4 v[{d}:{d+3}], v{vo}, s[{SRDW}:{SRDW+3}], s{soff} offen offset:{imm} {cfg.lpol}")
            A(f"{sk}:")
        A(f"s_mov_b64 exec, -1\ns_add_u32 s{sSPIN}, s{sSPIN}, 1")
        if fast and fthr is not None:
            sk=lab("fs")
            A(f"s_cmp_le_u32 s14, {fthr}\ns_cbranch_scc1 {sk}\ns_waitcnt vmcnt(0)\n{sk}:")
        A(f"s_waitcnt vmcnt({fast})")
        for i,(d,vo,imm,lm) in enumerate(loads):
            if mode=='s':
                A(f"v_max3_u32 v{T+i}, v{d}, v{d+1}, v{d+2}\nv_max_u32 v{T+i}, v{T+i}, v{d+3}")
            elif mode=='q':
                A(f"v_xor_b32 v{T+i}, s{sTAG}, v{d+1}\nv_xor_b32 v{T+4+i}, s{sTAG}, v{d+3}\nv_or_b32 v{T+i}, v{T+i}, v{T+4+i}")
            else:
                A(f"v_bitop3_b32 v{T+i}, v{d}, v{d+1}, v{vT8} bitop3:{TT1:#x}\nv_bitop3_b32 v{T+4+i}, v{d+2}, v{d+3}, v{vT8} bitop3:{TT1:#x}")
                A(f"v_bitop3_b32 v{T+i}, v{T+i}, v{T+4+i}, s{sFF} bitop3:{TT2:#x}")
        for i,(d,vo,imm,lm) in enumerate(loads):
            A(("v_cmp_eq_u32 vcc, -1" if mode=='s' else "v_cmp_ne_u32 vcc, 0")+f", v{T+i}\ns_and_b64 s[{PM+2*i}:{PM+2*i+1}], s[{PM+2*i}:{PM+2*i+1}], vcc")
        if len(loads)>1:
            A(f"s_or_b64 s[12:13], s[{PM}:{PM+1}], s[{PM+2}:{PM+3}]")
            for i in range(2,len(loads)): A(f"s_or_b64 s[12:13], s[12:13], s[{PM+2*i}:{PM+2*i+1}]")
        A(f"s_cbranch_scc0 {ld}")
        if fast and fthr is not None:
            A(f"s_bcnt1_i32_b64 s14, s[{PM}:{PM+1}]")
            for i in range(1,len(loads)): A(f"s_bcnt1_i32_b64 s15, s[{PM+2*i}:{PM+2*i+1}]\ns_add_u32 s14, s14, s15")
            if sleep:
                sk=lab("ns")
                A(f"s_cmp_le_u32 s14, {fthr}\ns_cbranch_scc1 {sk}\ns_sleep {sleep}\n{sk}:")
        elif sleep: A(f"s_sleep {sleep}")
        A(f"s_cmp_lt_u32 s{sSPIN}, {SPIN_LIMIT*4}\ns_cbranch_scc1 {lp}")
        A(f"{ld}:")
    A(f"s_lshr_b32 s{sO2}, s2, 5\ns_lshl_b32 s{sO2}, s{sO2}, 11\ns_add_u32 s{sO2}, s{sO2}, {QBOX}")
    def backoff(n):
        while n>0:
            A(f"s_sleep {min(n,127)}"); n-=127
    backoff(cfg.qdelay)
    if not cfg.noqx: poll([(F,vL16,0,None),(F+4,vL16,1024,None)], sO2, 'q', cfg.qsleep)
    stamp('qrecv')
    if not NB: A(f"v_mov_b32 v{T}, {RDY}\nv_mov_b32 v{T+1}, 0\nds_write2_b32 v{T}, v{T+1}, v{T+1} offset0:0 offset1:4")
    A(f"v_lshlrev_b32 v{T}, 3, v2\nv_add_u32 v{T}, {QB}, v{T}")
    A(f"ds_write2_b32 v{T}, v{F}, v{F+2} offset0:0 offset1:1\nds_write2_b32 v{T}, v{F+4}, v{F+6} offset0:128 offset1:129")
    if NB: A(f"v_mov_b32 v{T}, {QRDY}\nv_mov_b32 v{T+1}, 1\ns_waitcnt lgkmcnt(0)\nds_write_b32 v{T}, v{T+1}")
    else: A("s_waitcnt lgkmcnt(0)\ns_barrier")
    stamp(3)
    if cfg.prio2!=3: A(f"s_setprio {cfg.prio2}")
    if cfg.pool:
        lz=lab("nz")
        A(f"s_and_b32 s4, s2, {G-1}\ns_cbranch_scc1 {lz}")
        A(f"s_lshr_b32 s4, s2, {lg}\ns_mul_i32 s4, s4, {4*CSTR}\ns_add_u32 s4, s4, {CNT}\nv_mul_u32_u24 v{T}, {CSTR}, v2\nv_mov_b32 v{T+1}, 0\ns_mov_b64 exec, 15")
        A(f"buffer_store_dword v{T+1}, v{T}, s[{SRDW}:{SRDW+3}], s4 offen sc1\ns_mov_b64 exec, -1\n{lz}:")
    if cfg.probe is not None and cfg.probe[0]=='g':
        A(f"s_lshl_b32 s4, s2, 2\ns_add_u32 s4, s4, 0x300000\nv_mov_b32 v{T}, 0\nv_mov_b32 v{T+1}, s80\ns_mov_b64 exec, 1\nbuffer_store_dword v{T+1}, v{T}, s[{SRDW}:{SRDW+3}], s4 offen sc1\ns_mov_b64 exec, -1")
    A(f"s_bfe_u32 s{sB}, s2, 0x10003\ns_lshr_b32 s{sA}, s2, 4\ns_lshl_b32 s{sA}, s{sA}, 3\ns_and_b32 s{sO2}, s2, 7\ns_add_u32 s{sA}, s{sA}, s{sO2}")
    A(f"v_and_b32 v{T}, 15, v2"); masks(AM,T,T+1,T+2)
    A(f"v_lshrrev_b32 v{T+1}, 4, v2\nv_mul_u32_u24 v{vTO}, 896, v{T+1}\nv_lshl_add_u32 v{vTO}, v{T}, 4, v{vTO}")
    for r in range(8): A(f"v_mov_b32 v{PA+r}, 0")
    def tile_load(sr, gated=True, so=None, pol=None):
        if pol is None: pol=cfg.wnt
        for t in range(8):
            o=sO2 if so is None else so
            if gated and cfg.agate is not None: A(f"s_waitcnt vmcnt({cfg.agate})")
            A(f"buffer_load_dwordx4 v[{WT+8*t}:{WT+8*t+3}], v{vTO}, s[{sr}:{sr+3}], s{o} offen {pol}")
            A("s_mov_b32 exec_lo, 0x0fff0fff\ns_mov_b32 exec_hi, 0x0fff0fff")
            A(f"buffer_load_dwordx4 v[{WT+8*t+4}:{WT+8*t+7}], v{vTO}, s[{sr}:{sr+3}], s{o} offen offset:256 {pol}")
            A(f"s_mov_b64 exec, -1\ns_add_u32 s{o}, s{o}, 3584")
    def project(src):
        for t in range(8):
            v,ln=src(t)
            for r in range(4): A(f"v_and_b32_dpp v{AT+4*t+r}, v{v}, v{AM+r} row_newbcast:{ln} {DPP}")
            if t>=1:
                tp=t-1
                for cb in range(2):
                    A(f"v_mfma_f32_16x16x32_bf16 v[{PA+4*cb}:{PA+4*cb+3}], v[{AT+4*tp}:{AT+4*tp+3}], v[{WT+8*tp+4*cb}:{WT+8*tp+4*cb+3}], v[{PA+4*cb}:{PA+4*cb+3}]")
        for cb in range(2):
            A(f"v_mfma_f32_16x16x32_bf16 v[{PA+4*cb}:{PA+4*cb+3}], v[{AT+28}:{AT+31}], v[{WT+56+4*cb}:{WT+56+4*cb+3}], v[{PA+4*cb}:{PA+4*cb+3}]")
    A(f"v_lshrrev_b32 v{T}, 5, v2\nv_lshlrev_b32 v{T}, 9, v{T}\nv_and_b32 v{T+1}, 15, v2\nv_lshl_add_u32 v{T}, v{T+1}, 5, v{T}\nv_bfe_u32 v{T+1}, v2, 4, 1\nv_lshl_add_u32 v{vPS}, v{T+1}, 4, v{T}")
    def rec_store(soff, sent=False):
        nop(8)
        for r in range(4): A(f"v_permlane32_swap_b32 v{PA+r}, v{PA+4+r}")
        for r in range(4):
            if sent: A(f"v_min_u32 v{PA+r}, -2, v{PA+r}")
            else: A(f"v_bfi_b32 v{PA+r}, s{sFF}, v{vT8}, v{PA+r}")
        A("s_mov_b32 exec_hi, 0x0fff0fff")
        A(f"buffer_store_dwordx4 v[{PA}:{PA+3}], v{vPS}, s[{SRDW}:{SRDW+3}], s{soff} offen {cfg.opol}")
        A("s_mov_b32 exec_hi, -1")
    A(f"s_lshl_b32 s{sCQ}, s{sB}, 7\ns_add_u32 s{sCQ}, s{sCQ}, s{sA}\ns_lshl_b32 s{sCQ}, s{sCQ}, 10\ns_add_u32 s{sCQ}, s{sCQ}, {PBOX}")
    if cfg.sent:
        for r in range(4): A(f"v_mov_b32 v{F+r}, -1")
        A(f"s_lshl_b32 s4, s2, 11\ns_add_u32 s4, s4, {OBOX}")
        A(f"buffer_store_dwordx4 v[{F}:{F+3}], v{vL16}, s[{SRDW}:{SRDW+3}], s4 offen {cfg.cpol}\ns_waitcnt vmcnt({cfg.cgate})")
        A(f"buffer_store_dwordx4 v[{F}:{F+3}], v{vL16}, s[{SRDW}:{SRDW+3}], s4 offen offset:1024 {cfg.cpol}\ns_waitcnt vmcnt({cfg.cgate})")
        if cfg.cpol=='': A("s_waitcnt vmcnt(0)\nbuffer_wbl2 sc1\ns_waitcnt vmcnt(0)")
        if cfg.sent2: A(f"s_mov_b64 exec, s[74:75]\nbuffer_store_dwordx4 v[{F}:{F+3}], v{vL16}, s[{SRDW}:{SRDW+3}], s{sCQ} offen sc1\ns_mov_b64 exec, -1")
        nop(2)
    if cfg.pfm:
        srd(SRDK,sW1,448*1792*2); srd(SRDA,sW2,448*1792*2)
        A(f"s_mul_i32 s5, s2, 7168")
        for i in range(7):
            A(f"s_waitcnt vmcnt({cfg.pfgate})\nbuffer_load_dwordx4 v[{WF+4*i}:{WF+4*i+3}], v{vL16}, s[{SRDK}:{SRDK+3}], s5 offen\ns_add_u32 s5, s5, 1024")
        if cfg.pfm>1:
            A(f"s_mul_i32 s5, s2, 7168")
            for i in range(7):
                A(f"s_waitcnt vmcnt({cfg.pfgate})\nbuffer_load_dwordx4 v[{WF+28+4*i}:{WF+28+4*i+3}], v{vL16}, s[{SRDA}:{SRDA+3}], s5 offen\ns_add_u32 s5, s5, 1024")
        A("s_waitcnt vmcnt(0)")
        backoff(64)
    lnm=lab("nomlp")
    HA=WF; HS=WF+32; sMO=70
    A(f"s_lshr_b32 s{sCM}, s2, 3\ns_xor_b32 s4, s{sCM}, s2\ns_and_b32 s4, s4, 7\ns_cbranch_scc1 {lnm}")
    A(f"s_cmp_ge_u32 s{sCM}, {0 if cfg.nomlp else 28}\ns_cbranch_scc1 {lnm}")
    A(f"v_lshrrev_b32 v{T}, 3, v2\nv_mul_u32_u24 v{vWO_}, 3584, v{T}\nv_and_b32 v{T}, 7, v2\nv_lshl_add_u32 v{vWO_}, v{T}, 4, v{vWO_}")
    srd(SRDK,sW1,448*1792*2)
    srd(SRDA,sB1,3584)
    A(f"v_and_b32 v{T}, 15, v2\nv_lshlrev_b32 v{T}, 1, v{T}\ns_lshl_b32 s{sO2}, s{sCM}, 7")
    for u in range(4): A(f"buffer_load_ushort v{F+u}, v{T}, s[{SRDA}:{SRDA+3}], s{sO2} offen offset:{32*u}\ns_nop 0")
    for ps in range(4):
        nk = 4 if ps<3 else 2
        for i in range(4*nk):
            if cfg.mgate is not None: A(f"s_waitcnt vmcnt({cfg.mgate})")
            A(f"s_mov_b32 m0, {WBUF+i*1024}\ns_nop 0")
            if not cfg.now1: A(f"buffer_load_dwordx4 v{vWO_}, s[{SRDK}:{SRDK+3}], s{sO2} offen {cfg.mnt} lds")
            A(f"s_add_u32 s{sO2}, s{sO2}, {8*3584}")
        A("s_waitcnt vmcnt(0)")
        for kk in range(nk):
            for u in range(4):
                r=WT+16*kk+4*u
                A(f"ds_read_b64_tr_b16 v[{r}:{r+1}], v{vG1} offset:{kk*4096+u*32}\nds_read_b64_tr_b16 v[{r+2}:{r+3}], v{vG1} offset:{kk*4096+u*32+512}")
        A("s_waitcnt lgkmcnt(0)")
        for kk in range(nk):
            for u in range(4):
                r=WT+16*kk+4*u; x=XF+4*(4*ps+kk)
                c="0" if (ps==0 and kk==0) else f"v[{HA+4*u}:{HA+4*u+3}]"
                A(f"v_mfma_f32_16x16x32_bf16 v[{HA+4*u}:{HA+4*u+3}], v[{x}:{x+3}], v[{r}:{r+3}], {c}")
    nop(8)
    k0=math.sqrt(2/math.pi)
    for u in range(4):
        h=HA+4*u; t1=h+1; t2=h+2
        rbf(h,h)
        A(f"v_lshlrev_b32 v{F+u}, 16, v{F+u}\nv_add_f32 v{h}, v{h}, v{F+u}"); rbf(h,h)
        A(f"v_mul_f32 v{t1}, v{h}, v{h}\nv_mul_f32 v{t1}, v{t1}, v{h}\nv_mov_b32 v{t2}, {f2u(0.044715):#x}\nv_fma_f32 v{t1}, v{t1}, v{t2}, v{h}")
        A(f"v_mul_f32 v{t1}, {f2u(-2*k0*math.log2(math.e)):#x}, v{t1}\nv_exp_f32 v{t1}, v{t1}"); nop(1)
        A(f"v_add_f32 v{t1}, 1.0, v{t1}\nv_rcp_f32 v{t1}, v{t1}"); nop(1)
        A(f"v_mul_f32 v{h}, v{h}, v{t1}\nv_cvt_pk_bf16_f32 v{h}, v{h}, v{h}\nv_mov_b32 v{HS+u}, v{h}"); nop(2)
        for g in range(1,4): A(f"v_mov_b32_dpp v{HS+u}, v{h} row_ror:{16-g} row_mask:{1<<g:#x} bank_mask:0xf")
    srd(SRDK,sW2,1792*448*2)
    for bb in range(2):
        A(f"s_mul_i32 s{sO2}, s{sCM}, {64*896}\ns_add_u32 s{sO2}, s{sO2}, {448*bb}")
        for rb in range(2):
            if not cfg.now2: tile_load(SRDK,pol=cfg.mnt)
            A("s_waitcnt vmcnt(0)")
            project(lambda t:(HS+2*rb+(t>>2), 4*(t&3)))
            nop(4)
        A(f"s_lshl_b32 s4, s{sCM}, 10\ns_add_u32 s4, s4, {MBOX+bb*32768}")
        rec_store(4)
        nop(2)
        for r in range(8): A(f"v_mov_b32 v{PA+r}, 0")
    stamp('mlpdone')
    A(f"{lnm}:")
    FC=cfg.fc; FC0=256-FC
    stamp('wodone')
    if NB: ldswait(KCNT, T, T+1, sSPIN, 4, 16)
    else: A("s_barrier")
    stamp(4)
    A(f"s_mov_b32 s{sCM}, {f2u(CEXP):#x}")
    if cfg.binfv is not None:
        A(f"s_lshr_b32 s4, s2, 5\ns_lshl_b32 s4, s4, 9\ns_add_u32 s4, s4, {MLBOX}\ns_mov_b32 exec_hi, 0")
        A(f"buffer_load_dwordx4 v[{WF}:{WF+3}], v{vL16}, s[{SRDW}:{SRDW+3}], s4 offen sc1\ns_mov_b32 exec_hi, -1")
    if cfg.pool:
        A(f"v_bfe_u32 v{T}, v2, 2, 2\nv_lshlrev_b32 v{T}, 11, v{T}\nv_lshrrev_b32 v{T+1}, 4, v2\nv_lshl_add_u32 v{T}, v{T+1}, 6, v{T}\nv_and_b32 v{T+1}, 3, v2\nv_lshl_add_u32 v{T}, v{T+1}, 4, v{T}\nv_add_u32 v{T}, {SC+28*64}, v{T}")
        A(f"ds_read_b128 v[{X}:{X+3}], v{T}\ns_lshl_b32 s4, s2, 10\ns_add_u32 s4, s4, {SBOX}\ns_waitcnt lgkmcnt(0)")
        if not cfg.nosbw: A(f"buffer_store_dwordx4 v[{X}:{X+3}], v{vL16}, s[{SRDW}:{SRDW+3}], s4 offen sc1")
    A(f"v_and_b32 v{T}, 1, v2\nv_lshlrev_b32 v{T+1}, 4, v{T}\nv_add_u32 v{T+1}, {MX}, v{T+1}\nv_lshlrev_b32 v{T+2}, 5, v2\nv_add_u32 v{T+2}, {SC}, v{T+2}")
    A(f"ds_read_b128 v[{F}:{F+3}], v{T+1}")
    for w in range(4):
        A(f"ds_read_b128 v[{XF+8*w}:{XF+8*w+3}], v{T+2} offset:{w*2048}\nds_read_b128 v[{XF+8*w+4}:{XF+8*w+7}], v{T+2} offset:{w*2048+16}")
    A("s_waitcnt lgkmcnt(0)")
    A(f"v_max_f32 v{F}, v{F}, v{F+1}\nv_max3_f32 v{F}, v{F}, v{F+2}, v{F+3}\nv_mul_f32 v{F+4}, s{sCM}, v{F}\nv_sub_f32 v{F+4}, 0, v{F+4}")
    A(f"v_mov_b32 v{F+1}, 0\nv_mov_b32 v{F+5}, 0")
    for r in range(32):
        A(f"v_lshlrev_b32 v{T+3}, 16, v{XF+r}\nv_and_b32 v{T+4}, 0xffff0000, v{XF+r}")
        A(f"v_fma_f32 v{T+3}, v{T+3}, s{sCM}, v{F+4}\nv_fma_f32 v{T+4}, v{T+4}, s{sCM}, v{F+4}")
        A(f"v_exp_f32 v{T+3}, v{T+3}\nv_exp_f32 v{T+4}, v{T+4}"); nop(1)
        A(f"v_add_f32 v{F+1}, v{F+1}, v{T+3}\nv_add_f32 v{F+5}, v{F+5}, v{T+4}")
    A(f"v_add_f32 v{F+1}, v{F+1}, v{F+5}")
    rowred("v_add_f32",F+1,[2,4,8]); xrowred("v_add_f32",F+1,T+3)
    nop(2)
    A(f"v_mov_b32_dpp v{F+2}, v{F} quad_perm:[1,1,3,3] {DPP}\nv_mov_b32_dpp v{F+3}, v{F+1} quad_perm:[1,1,3,3] {DPP}")
    A(f"v_mov_b32 v{F+6}, v{F}")
    for r in range(4): A(f"v_bfi_b32 v{F+r}, s{sFF}, v{vT8}, v{F+r}")
    if cfg.probe is not None and cfg.probe[0]=='x':
        A(f"s_getreg_b32 s4, hwreg(HW_REG_XCC_ID)\ns_and_b32 s4, s4, 15\ns_lshl_b32 s4, s4, 8\nv_or_b32 v{F}, s4, v{F}")
    A(f"s_lshl_b32 s{sO2}, s2, 4\ns_add_u32 s{sO2}, s{sO2}, {MLBOX}\nv_mov_b32 v{T}, 0\ns_mov_b64 exec, 1\ns_waitcnt vmcnt(0)")
    if not cfg.noml: A(f"buffer_store_dwordx4 v[{F}:{F+3}], v{T}, s[{SRDW}:{SRDW+3}], s{sO2} offen sc1")
    A("s_mov_b64 exec, -1")
    if cfg.binfv is not None:
        A(f"v_bitop3_b32 v{T}, v{WF}, v{WF+1}, v{vT8} bitop3:{TT1:#x}\nv_bitop3_b32 v{T+1}, v{WF+2}, v{WF+3}, v{vT8} bitop3:{TT1:#x}\nv_bitop3_b32 v{T}, v{T}, v{T+1}, s{sFF} bitop3:{TT2:#x}")
        A(f"v_cmp_eq_u32 vcc, 0, v{T}\ns_bcnt1_i32_b32 s4, vcc_lo\ns_cmp_ge_u32 s4, {cfg.brank}\ns_cselect_b32 s4, 1, 0\nv_mov_b32 v{T}, {BOOST}\nv_mov_b32 v{T+1}, s4\nds_write_b32 v{T}, v{T+1}")
    srd(SRDK,sWO,4096*448*2)
    A(f"s_mul_i32 s{sO2}, s{sA}, {32*896}\ns_mul_i32 s{sSPIN}, s{sB}, 448\ns_add_u32 s{sO2}, s{sO2}, s{sSPIN}")
    LATE = cfg.wolate and cfg.pool
    if not cfg.nowo and not LATE: tile_load(SRDK)
    FC=cfg.fc
    lnf=lab("nofin")
    FC0=256-FC
    if FC==56:
        A(f"v_lshrrev_b32 v{T}, 4, v2\nv_and_b32 v{T+1}, 1, v2\nv_lshl_add_u32 v{T}, v{T+1}, 2, v{T}\nv_lshlrev_b32 v{vG2}, 1, v{T}")
        A(f"s_sub_u32 s{sO2}, s2, {FC0}\ns_lshl_b32 s{sO2}, s{sO2}, 4")
    else:
        A(f"v_lshrrev_b32 v{T}, 4, v2\nv_lshlrev_b32 v{vG2}, 1, v{T}")
        A(f"s_sub_u32 s{sO2}, s2, {FC0}\ns_lshl_b32 s{sO2}, s{sO2}, 3")
    A(f"v_add_u32 v{vG2}, s{sO2}, v{vG2}")
    A(f"s_cmp_lt_u32 s2, {FC0}\ns_cbranch_scc1 {lnf}")
    srd(SRDA,sX,896)
    A(f"buffer_load_ushort v{vFX}, v{vG2}, s[{SRDA}:{SRDA+3}], 0 offen")
    srd(SRDK,sB2,896)
    A(f"buffer_load_ushort v{T}, v{vG2}, s[{SRDK}:{SRDK+3}], 0 offen")
    A(f"s_waitcnt vmcnt(0)\nv_lshlrev_b32 v{vFX}, 16, v{vFX}\nv_lshlrev_b32 v{vFM}, 16, v{T}")
    if not cfg.mimic: A(f"v_add_f32 v{vFX}, v{vFX}, v{vFM}")
    A(f"{lnf}:")
    backoff(cfg.mldelay)
    I1=XF
    A(f"s_lshr_b32 s{sO2}, s2, 5\ns_lshl_b32 s{sO2}, s{sO2}, 9\ns_add_u32 s{sO2}, s{sO2}, {MLBOX}\nv_lshlrev_b32 v{vWO_}, 4, v7")
    if not cfg.noml: poll([(I1,vWO_,0,None)], sO2, 't', cfg.mlsleep)
    if cfg.probe is not None and cfg.probe[0]=='x':
        A(f"v_bfe_u32 v{T}, v{I1}, 8, 4\nv_mov_b32 v{T+1}, v{T}"); nop(2)
        A(f"v_permlane16_swap_b32 v{T}, v{T+1}\nv_cmp_ne_u32 vcc, v{T}, v{T+1}\ns_bcnt1_i32_b64 s79, vcc")
    A(f"v_and_b32 v{T}, 1, v2\nv_cmp_eq_u32 vcc, 1, v{T}"); nop(2)
    A(f"v_cndmask_b32 v{I1}, v{I1}, v{I1+2}, vcc\nv_cndmask_b32 v{I1+1}, v{I1+1}, v{I1+3}, vcc\nv_and_b32 v{I1}, 0xffff0000, v{I1}\nv_and_b32 v{I1+1}, s{sNM}, v{I1+1}\nv_mov_b32 v{T+1}, v{I1}")
    rowred("v_max_f32",T+1,[2,4,8]); xrowred("v_max_f32",T+1,T+2)
    A(f"v_sub_f32 v{T+2}, v{I1}, v{T+1}\nv_sub_f32 v{T+3}, v{F+6}, v{T+1}\nv_mul_f32 v{T+2}, s{sCM}, v{T+2}\nv_mul_f32 v{T+3}, s{sCM}, v{T+3}")
    A(f"v_exp_f32 v{T+2}, v{T+2}\nv_exp_f32 v{T+3}, v{T+3}"); nop(1)
    A(f"v_mul_f32 v{T+2}, v{T+2}, v{I1+1}")
    rowred("v_add_f32",T+2,[2,4,8]); xrowred("v_add_f32",T+2,T+4)
    A(f"v_rcp_f32 v{T+4}, v{T+2}"); nop(1)
    A(f"v_fma_f32 v{T+5}, -v{T+2}, v{T+4}, 1.0\nv_fma_f32 v{T+4}, v{T+5}, v{T+4}, v{T+4}")
    A(f"v_lshlrev_b32 v{T}, 2, v{T}\nv_add_u32 v{T}, {FB}, v{T}")
    if cfg.pool:
        A(f"v_mul_f32 v{T+1}, s{sCM}, v{T+1}\nv_sub_f32 v{T+1}, 0, v{T+1}")
        A(f"ds_write_b32 v{T}, v{T+4}\nds_write_b32 v{T}, v{T+3} offset:8\nds_write_b32 v{T}, v{T+1} offset:16")
        A(f"s_and_b32 s4, s2, 0xf8\ns_lshl_b32 s4, s4, 10\ns_add_u32 s4, s4, {SBOX}")
        for k in range(8):
            if k==4: A("s_add_u32 s4, s4, 4096")
            if not cfg.nosbr and not cfg.sdir: A(f"s_waitcnt vmcnt(1)\nbuffer_load_dwordx4 v[{I1+4*k}:{I1+4*k+3}], v{vL16}, s[{SRDW}:{SRDW+3}], s4 offen offset:{(k&3)*1024} sc1")
        A(f"v_add_u32 v{T}, {WBUF}, v{vL16}\ns_waitcnt vmcnt(0)")
        if not cfg.sdir:
            for k in range(8): A(f"ds_write_b128 v{T}, v[{I1+4*k}:{I1+4*k+3}] offset:{k*1024}")
        A(f"v_mov_b32 v{T}, {RDY}\nv_mov_b32 v{T+1}, 1\ns_waitcnt lgkmcnt(0)\nds_write_b32 v{T}, v{T+1}")
        stamp('rdy')
    else:
        A(f"v_mul_f32 v{T+3}, v{T+3}, v{T+4}\nds_write_b32 v{T}, v{T+3}")
    half=FC//2
    sH2=68
    A(f"s_sub_u32 s{sSPIN}, s2, {FC0}\ns_cmp_ge_u32 s{sSPIN}, {half}\ns_cselect_b32 s{sH2}, {128*1024-896}, 0\ns_cselect_b32 s{sO2}, {32*1024-896}, 0\ns_mul_i32 s{sSPIN}, s{sSPIN}, {1792//FC}")
    A(f"s_add_u32 s{sH2}, s{sH2}, s{sSPIN}\ns_add_u32 s{sH2}, s{sH2}, {PBOX}\ns_add_u32 s{sO2}, s{sO2}, s{sSPIN}\ns_add_u32 s{sO2}, s{sO2}, {MBOX}")
    assert FC==56
    A(f"v_lshlrev_b32 v{vH}, 10, v7\nv_and_b32 v{T}, 1, v2\nv_lshl_add_u32 v{vH}, v{T}, 4, v{vH}")
    for k in range(1,4): A(f"v_add_u32 v{vH+k}, {k*32768}, v{vH}")
    if cfg.mimic and not cfg.nomlp:
        lg=lab("nomg")
        A(f"s_cmp_lt_u32 s2, {FC0}\ns_cbranch_scc1 {lg}")
        if cfg.sent2:
            A(f"s_mov_b32 s69, {MLBOX}")
            poll([(I1+4*k,vL16,1024*k,None) for k in range(4)], 69, 't', 64)
        for r in range(4): A(f"v_mov_b32 v{I1+r}, 0")
        poll([(I1,vH,0,(1<<56)-1)], sO2, 't', 64)
        for r in range(4): A(f"v_and_b32 v{I1+r}, s{sNM}, v{I1+r}")
        tred4(I1); rowred("v_add_f32",I1,[2,4,8])
        rbf(I1,I1)
        A(f"v_add_f32 v{vFM}, v{vFM}, v{I1}"); rbf(vFM,vFM)
        A(f"{lg}:")
    srd(SRDA,sOUT,896)
    A(f"v_bfe_u32 v{T}, v2, 3, 2\nv_lshlrev_b32 v{T}, 14, v{T}\nv_lshrrev_b32 v{T+1}, 5, v2\nv_lshl_add_u32 v{T}, v{T+1}, 11, v{T}\nv_and_b32 v{T+1}, 7, v2\nv_lshl_add_u32 v{vG1}, v{T+1}, 4, v{T}")
    for k in range(1,4): A(f"v_add_u32 v{X+k}, {k*4096}, v{vG1}")
    A(f"s_lshr_b32 s{sO2}, s2, 5\ns_lshl_b32 s{sO2}, s{sO2}, 16\ns_and_b32 s{sSPIN}, s{sA}, 15\ns_lshl_b32 s{sSPIN}, s{sSPIN}, 7\ns_add_u32 s{sO2}, s{sO2}, s{sSPIN}\ns_add_u32 s{sO2}, s{sO2}, {OBOX}")
    if cfg.warm:
        lh=lab("pc")
        A(f"s_getpc_b64 s[4:5]\n{lh}:\nv_lshlrev_b32 v{T}, 6, v2")
        A(f"v_min_u32 v{T+1}, {Ldone}-{lh}, v{T}\nglobal_load_dword v{T+1}, v{T+1}, s[4:5]")
        A(f"s_add_u32 s6, s4, {Lpool}-{lh}\ns_addc_u32 s7, s5, -1")
        for k in range(cfg.warm):
            A(f"global_load_dword v{T+2+k}, v{T}, s[6:7]\ns_add_u32 s6, s6, 4096\ns_addc_u32 s7, s7, 0")
    if cfg.touch is not None:
        if not cfg.sent:
            A(f"s_lshl_b32 s4, s2, 11\ns_add_u32 s4, s4, {OBOX}")
            A(f"buffer_load_dwordx4 v[{I1}:{I1+3}], v{vL16}, s[{SRDW}:{SRDW+3}], s4 offen {cfg.touch}\ns_nop 0")
            A(f"buffer_load_dwordx4 v[{I1+4}:{I1+7}], v{vL16}, s[{SRDW}:{SRDW+3}], s4 offen offset:1024 {cfg.touch}\ns_nop 0")
        if not cfg.sent2:
            A(f"buffer_load_dwordx4 v[{I1+8}:{I1+11}], v{vL16}, s[{SRDW}:{SRDW+3}], s{sCQ} offen {cfg.touch}")
        A("s_waitcnt vmcnt(0)")
    if LATE:
        srd(SRDK,sWO,4096*448*2)
        A(f"s_mul_i32 s69, s{sA}, {32*896}\ns_mul_i32 s4, s{sB}, 448\ns_add_u32 s69, s69, s4")
        lw=lab("dw"); lwd=lab("dwd")
    if LATE and cfg.wolate==2:
        A("s_waitcnt vmcnt(0) lgkmcnt(0)\ns_barrier")
        stamp(5)
        if not cfg.nowo: tile_load(SRDK, gated=False, so=69)
    elif LATE:
        A(f"v_mov_b32 v{T}, {DONE}\ns_mov_b32 s{sSPIN}, 0")
        A(f"{lw}:\nds_read_b32 v{T+1}, v{T}\ns_add_u32 s{sSPIN}, s{sSPIN}, 1\ns_waitcnt lgkmcnt(0)\nv_readfirstlane_b32 s4, v{T+1}\ns_cmp_lg_u32 s4, 0\ns_cbranch_scc1 {lwd}")
        A(f"s_sleep 2\ns_cmp_lt_u32 s{sSPIN}, {SPIN_LIMIT*64}\ns_cbranch_scc1 {lw}\n{lwd}:")
        backoff(cfg.wodelay)
        tile_load(SRDK, gated=False, so=69)
        A("s_barrier")
    else:
        A("s_waitcnt vmcnt(0) lgkmcnt(0)\ns_barrier")
    if cfg.wolate!=2: stamp(5)
    if cfg.notail: A(f"s_branch {lend}")
    R=F
    def sum16(I, sent):
        assert not (cfg.fast1 or cfg.fast2)
        if not sent:
            for r in range(16): A(f"v_and_b32 v{I+r}, s{sNM}, v{I+r}")
        for r in range(4): A(f"v_add_f32 v{R+r}, v{I+r}, v{I+4+r}\nv_add_f32 v{R+4+r}, v{I+8+r}, v{I+12+r}")
        for r in range(4): A(f"v_add_f32 v{R+r}, v{R+r}, v{R+4+r}")
        tred4(R)
    if cfg.wowait is not None: A(f"s_waitcnt vmcnt({cfg.wowait})")
    backoff(cfg.h1delay)
    poll([(I1,vG1,0,None),(I1+4,X+1,0,None),(I1+8,X+2,0,None),(I1+12,X+3,0,None)], sO2, 's' if cfg.sent else 't', cfg.sleep1, cfg.fast1, cfg.fthr)
    stamp(6)
    if cfg.tdiag: A(f"s_mov_b32 s95, s{sSPIN}")
    sum16(I1,cfg.sent); rowred("v_add_f32",R,[8])
    A(f"v_cvt_pk_bf16_f32 v{R}, v{R}, v{R}"); nop(2)
    project(lambda t:(R,t))
    rec_store(sCQ, cfg.sent2)
    stamp('rec')
    A(f"s_cmp_lt_u32 s2, {FC0}\ns_cbranch_scc1 {lend}")
    I2=XF+16
    if cfg.ackw: A("s_waitcnt vmcnt(0)")
    backoff(cfg.h2delay)
    poll([(I2+4*k,vH+k,0,None) for k in range(4)], sH2, 's' if cfg.sent2 else 't', cfg.sleep2, cfg.fast2, None)
    stamp('h2')
    sum16(I2,cfg.sent2); rowred("v_add_f32",R,[2,4,8])
    if cfg.mimic:
        rbf(R,R)
        A(f"v_add_f32 v{R}, v{vFX}, v{R}"); rbf(R,R)
        A(f"v_add_f32 v{R}, v{R}, v{vFM}\nv_cvt_pk_bf16_f32 v{R}, v{R}, v{R}")
    else:
        A(f"v_add_f32 v{R}, v{vFX}, v{R}\nv_cvt_pk_bf16_f32 v{R}, v{R}, v{R}")
    A(f"s_mov_b32 exec_lo, 0x00030003\ns_mov_b32 exec_hi, 0x00030003")
    A(f"buffer_store_short v{R}, v{vG2}, s[{SRDA}:{SRDA+3}], 0 offen")
    A(f"s_cmp_lg_u32 s2, 255\ns_cbranch_scc1 {lend}")
    A(f"s_mov_b64 exec, 1\ns_add_u32 s{sE}, s{sE}, 1\nv_mov_b32 v{T+1}, s{sE}\nv_mov_b32 v{T+2}, 0")
    A(f"buffer_store_dword v{T+1}, v{T+2}, s[{SRDW}:{SRDW+3}], 0 offen sc1")
    if cfg.probe is not None:
        lx=lab("px"); ly=lab("py")
        if cfg.probe[0]=='g':
            A(f"s_mov_b64 exec, -1\ns_mov_b32 s4, 0x300000\nbuffer_load_dwordx4 v[{F}:{F+3}], v{vL16}, s[{SRDW}:{SRDW+3}], s4 offen sc1")
            A("s_waitcnt vmcnt(0)\ns_memrealtime s[82:83]\ns_waitcnt lgkmcnt(0)")
            for r in range(4): A(f"v_sub_u32 v{F+r}, s82, v{F+r}")
            A(f"v_max3_u32 v{F}, v{F}, v{F+1}, v{F+2}\nv_max_u32 v{F}, v{F}, v{F+3}\ns_mov_b32 s4, {int(cfg.probe[1]*100)}\nv_cmp_lt_u32 vcc, s4, v{F}\ns_cbranch_vccz {lend}")
        elif cfg.probe[0]=='t':
            A("s_waitcnt vmcnt(0)\ns_memrealtime s[82:83]\ns_waitcnt lgkmcnt(0)")
            k={'end':82,'b1':86,'b2':88,'b3':90}[cfg.probe[2]]
            A(f"s_sub_u32 s4, s{k}, s80\ns_cmp_lt_u32 s4, {int(cfg.probe[1]*100)}\ns_cbranch_scc1 {lend}")
        else:
            A(f"s_cmp_eq_u32 s79, 0\ns_cbranch_scc1 {lend}")
        A(f"s_mov_b32 s4, 40\n{lx}:\ns_sleep 40\ns_sub_u32 s4, s4, 1\ns_cmp_lg_u32 s4, 0\ns_cbranch_scc1 {lx}")
        A("s_endpgm")
    A(f"{lend}:")
    if cfg.probe is not None: pass
    elif cfg.stamps and cfg.dbgout:
        A(f"s_cmp_lt_u32 s2, 252\ns_cbranch_scc1 {Ldone}")
        A("s_mov_b64 exec, 1\ns_waitcnt vmcnt(0)")
        stamp(1)
        srd(SRDA,sDBG,256)
        A(f"s_waitcnt lgkmcnt(0)\ns_sub_u32 s{sO2}, s2, 252\ns_lshl_b32 s{sO2}, s{sO2}, 4\nv_mov_b32 v{T}, 0")
        for i,k in enumerate((3,4,5,1)):
            A(f"s_sub_u32 s4, s{80+2*k}, s80\nv_mov_b32 v{F+i}, s4")
        A(f"buffer_store_dwordx4 v[{F}:{F+3}], v{T}, s[{SRDA}:{SRDA+3}], s{sO2} offen")
    elif cfg.stamps:
        A("s_mov_b64 exec, 1\ns_waitcnt vmcnt(0)")
        stamp(1)
        A("s_getreg_b32 s94, hwreg(HW_REG_XCC_ID)\ns_waitcnt lgkmcnt(0)")
        A(f"s_lshl_b32 s{sO2}, s2, 6\ns_add_u32 s{sO2}, s{sO2}, {STAMP:#x}\nv_mov_b32 v{T}, 0")
        for k in range(8):
            A(f"v_mov_b32 v{F}, s{80+2*k}\nv_mov_b32 v{F+1}, s{81+2*k}\nbuffer_store_dwordx2 v[{F}:{F+1}], v{T}, s[{SRDW}:{SRDW+3}], s{sO2} offen offset:{8*k}\ns_nop 1")
    A(f"{Ldone}:")
    A("s_endpgm")
    body="\n".join(L)+"\n"
    kd=f""".section .rodata,"a"
.p2align 6
.amdhsa_kernel {N}
  .amdhsa_next_free_vgpr 232
  .amdhsa_next_free_sgpr 96
  .amdhsa_accum_offset 232
  .amdhsa_group_segment_fixed_size 0
  .amdhsa_kernarg_size 104
  .amdhsa_user_sgpr_count 2
  .amdhsa_user_sgpr_kernarg_segment_ptr 1
  .amdhsa_system_sgpr_workgroup_id_x 1
  .amdhsa_float_denorm_mode_32 3
.end_amdhsa_kernel
"""
    return body, kd

def header():
    ref=open('parallel_sum__gqa_block_cached__dense_activation_gelu__decode.s.ref').read().split("\n")
    out=[]
    for l in ref:
        if l.startswith("; @launch"):
            out.append(f"; @launch grid=(256,1,1) block=(320,1,1) lds={LDS_END}")
            break
        out.append(l)
    return "\n".join(out)+"\n"

def final(cfg, path):
    body,kd=gen(cfg)
    open(path,"w").write(header()+'.amdgcn_target "amdgcn-amd-amdhsa--gfx950"\n.text\n'+body+kd)

def bench(cfgs, path):
    sys.path.insert(0,'bench')
    from genstream import meta
    s='.amdgcn_target "amdgcn-amd-amdhsa--gfx950"\n'
    ks=[]; args=[]
    for c in cfgs:
        body,kd=gen(c)
        s+=".text\n"+body+kd.replace("kernarg_size 104","kernarg_size 112")
        ks.append((c.name,232,320)); args.append(f"{c.name} 256 320 {LDS_END}")
    s+=meta(ks)
    open(path+".s","w").write(s); open(path+".args","w").write(" @ ".join(args))

def mk(name, **kw):
    c=Cfg(); c.name=name
    for k,v in kw.items():
        assert hasattr(c,k), k
        setattr(c,k,v)
    return c

if __name__=="__main__":
    if sys.argv[1]=="final":
        kw=eval(sys.argv[3]) if len(sys.argv)>3 else {}
        final(mk(KNAME,**kw), sys.argv[2])
    else:
        bench([mk(n,**kw) for n,kw in eval(sys.argv[3])], sys.argv[2])
```

```python
import sys, struct, math

KNAME = "parallel_sum__gqa_block_cached__dense_activation_gelu__decode_kernel"
def f2u(f): return struct.unpack('<I', struct.pack('<f', f))[0]

class Cfg:
    name = KNAME
    rot = 0
    pace = 6
    infl = 5
    stamps = False
    smap = {}
    wnt = "nt"
    qsleep = 16
    sleep1 = 0
    sleep2 = 0
    mlsleep = 100
    fc = 56
    nomlp = False
    notail = False
    auxnull = False
    nowo = False
    mlp2 = True
    hdelay = 100
    wowait = 15
    pg = 32
    pord = 0
    sdir = True
    wqtest = 0
    inf0 = None
    inf1 = None
    pfq = False
    pfm = 1
    mnt = 'nt'
    pfgate = 14
    nosbw = False
    nosbr = False
    binf = None
    binfv = (6,6)
    brank = 26
    drain = True
    warm = False
    nobar = False
    wmaj = False
    order = [0,4,2,6,1,5,3,7]
    vorder = [0,1,2,3,4,5,6,7]
    sent = True
    sent2 = False
    cpol = 'sc1'
    cgate = 1
    now1 = False
    now2 = False
    mgate = 6
    wodelay = 0
    wolate = 2
    blk = 4
    rotH = 12
    rotS = 0
    ackw = True
    touch = 'sc1'
    h2delay = 8
    h1delay = 0
    mix = True
    tdiag = False
    qdelay = 50
    mldelay = 100
    prio2 = 0
    nowq = False
    noqx = False
    opol = 'sc1'
    lpol = 'sc1'
    probe = None
    pool = True
    pinfl = 16
    pclaim = 4
    first = 8
    fb = None
    qgate = 6
    cnt = 'nt'
    noml = False
    noopub = False
    mimic = True
    fast1 = 0
    fast2 = 0
    fthr = 64
    vpre = True
    agate = 6
    gran = 1
    thr = None
    dbgout = False

RING=0; SC=131072; WBUF=SC+8192; XN=WBUF+16384; QB=XN+1024; MX=QB+1024; FB=MX+64; RDY=FB+32; DONE=FB+36; QRDY=FB+40; KCNT=FB+44; BOOST=FB+48; LDS_END=FB+64
QBOX=0x1000; MLBOX=0x8000; OBOX=0x10000; PBOX=0x100000; MBOX=0x180000; HBOX=0x1c0000; SBOX=0x200000; CNT=0x280000; CSTR=4352; STAMP=0x20000000
SPIN_LIMIT = 1<<16
CEXP = 0.0625*math.log2(math.e)

def tt(f):
    r=0
    for idx in range(8):
        if f((idx>>2)&1,(idx>>1)&1,idx&1): r|=1<<idx
    return r

def gen(cfg):
    L=[]
    def A(s):
        for line in s.split("\n"):
            t=line.strip()
            L.append(t if t.endswith(":") else "    "+t)
    N=cfg.name
    pre = "L" if N==KNAME else f"L_{N}"
    uid=[0]
    def lab(p):
        uid[0]+=1; return f"{pre}_{p}{uid[0]}"
    def nop(n):
        if n>0: A(f"s_nop {n-1}")
    sX,sK,sV,sWQ,sWO,sW1,sB1=16,18,20,22,24,28,30
    sW2,sB2,sOUT,sDBG,sWS=32,34,36,38,40
    SRDK,SRDV,SRDA,SRDW=44,48,52,56
    sWAVE=3
    def srd(d, p, size):
        A(f"s_mov_b32 s{d}, s{p}\ns_mov_b32 s{d+1}, s{p+1}\ns_mov_b32 s{d+2}, {size:#x}\ns_mov_b32 s{d+3}, 0x20000")
    def stamp(k):
        if cfg.stamps:
            if isinstance(k,str):
                if k not in cfg.smap: return
                k=cfg.smap[k]
            elif k in cfg.smap.values(): return
            A(f"s_memrealtime s[{80+2*k}:{81+2*k}]")
    DPP="row_mask:0xf bank_mask:0xf"
    def rowred(op, v, rors):
        for r in rors:
            nop(2); A(f"{op}_dpp v{v}, v{v}, v{v} row_ror:{r} {DPP}")
    def xrowred(op, v, t):
        A(f"v_mov_b32 v{t}, v{v}"); nop(2); A(f"v_permlane16_swap_b32 v{v}, v{t}"); A(f"{op} v{v}, v{v}, v{t}")
        A(f"v_mov_b32 v{t}, v{v}"); nop(2); A(f"v_permlane32_swap_b32 v{v}, v{t}"); A(f"{op} v{v}, v{v}, v{t}")
    def tred4(a):
        nop(2)
        A(f"v_permlane32_swap_b32 v{a}, v{a+2}\nv_permlane32_swap_b32 v{a+1}, v{a+3}")
        A(f"v_add_f32 v{a}, v{a}, v{a+2}\nv_add_f32 v{a+1}, v{a+1}, v{a+3}")
        nop(2)
        A(f"v_permlane16_swap_b32 v{a}, v{a+1}")
        A(f"v_add_f32 v{a}, v{a}, v{a+1}")
    def rbf(d, s):
        A(f"v_cvt_pk_bf16_f32 v{d}, v{s}, v{s}\nv_and_b32 v{d}, 0xffff0000, v{d}")
    def masks(dst, n, t0, t1):
        A(f"v_and_b32 v{t0}, 1, v{n}\nv_lshlrev_b32 v{t0}, 4, v{t0}\nv_mov_b32 v{t1}, 0xffff\nv_lshlrev_b32 v{t1}, v{t0}, v{t1}\nv_bfe_u32 v{t0}, v{n}, 1, 2")
        for r in range(4):
            A(f"v_cmp_eq_u32 vcc, {r}, v{t0}"); nop(2); A(f"v_cndmask_b32 v{dst+r}, 0, v{t1}, vcc")

    def ldswait(addr, va, vd, cnt, need, sleep, mult=16):
        lw=lab("lw"); lwd=lab("lwd")
        A(f"v_mov_b32 v{va}, {addr}\ns_mov_b32 s{cnt}, 0")
        A(f"{lw}:\nds_read_b32 v{vd}, v{va}\ns_add_u32 s{cnt}, s{cnt}, 1\ns_waitcnt lgkmcnt(0)\nv_readfirstlane_b32 s4, v{vd}\ns_cmp_ge_u32 s4, {need}\ns_cbranch_scc1 {lwd}")
        A(f"s_sleep {sleep}\ns_cmp_lt_u32 s{cnt}, {SPIN_LIMIT*mult}\ns_cbranch_scc1 {lw}\n{lwd}:")
    Ldone=f"{pre}_done"; Laux=f"{pre}_aux"
    A(f".globl {N}\n.p2align 8\n.type {N},@function\n{N}:")
    A(f"s_cmp_ge_u32 s2, 256\ns_cbranch_scc1 {Ldone}")
    A("s_load_dwordx16 s[16:31], s[0:1], 0\ns_load_dwordx8 s[32:39], s[0:1], 64\ns_load_dwordx2 s[40:41], s[0:1], 96")
    stamp(0)
    A("v_lshrrev_b32 v1, 6, v0\nv_and_b32 v2, 63, v0")
    nop(1)
    A(f"v_readfirstlane_b32 s{sWAVE}, v1")
    A(f"s_cmp_eq_u32 s{sWAVE}, 4\ns_cbranch_scc1 {Laux}")

    vKO=8; vVO=16; vKA=18; vVA=22; vSA=23; vMASK=24; vMAX=28; vTG=29; vNM=30; vT=31
    QF=32; TF=64; D=96; S2=100; VP=104
    AR=32; ACC=48; P=56; vVP=7
    sRING,sREG,sNEXT,sOFF,sCNT,sC,sT8,sFF,sV0,sLV,sCL,sY,sSCO=60,61,62,63,64,65,66,67,68,69,70,71,72
    sPC=76
    A("v_lshrrev_b32 v3, 5, v2\nv_and_b32 v4, 31, v2\nv_lshlrev_b32 v5, 2, v3\nv_xor_b32 v4, v4, v5\nv_lshlrev_b32 v4, 4, v4\nv_lshl_add_u32 v4, v3, 9, v4")
    for j in range(8):
        c=(8*(j&1)+(j>>1))*16 | (4096 if j>=4 else 0)
        A(f"v_xor_b32 v{vKO+j}, {c:#x}, v4")
    B=cfg.blk; lb=B.bit_length()-1
    sHB,sRS=78,79
    A(f"s_lshl_b32 s{sRING}, s{sWAVE}, 15\ns_lshr_b32 s4, s2, 5\ns_lshl_b32 s{sHB}, s4, 25\ns_lshl_b32 s5, s{sWAVE}, {13+lb if cfg.wmaj else 13}\ns_add_u32 s{sHB}, s{sHB}, s5")
    A(f"s_mul_i32 s{sNEXT}, s4, {cfg.rotH}\ns_and_b32 s5, s2, 31\ns_mul_i32 s{sRS}, s5, {cfg.rotS}\ns_lshl_b32 s{sREG}, s5, {15+lb}\ns_add_u32 s{sREG}, s{sREG}, s{sHB}\ns_mov_b32 s{sV0}, s{sNEXT}")
    def taddr(dst, t, base, rs):
        A(f"s_bfe_u32 s4, s{t}, {((5-lb)<<16)|lb:#x}\ns_lshl_b32 s4, s4, {20+lb}\ns_add_u32 s{dst}, s{base}, s4")
        if lb:
            A(f"s_add_u32 s4, s{t}, s{rs}\ns_and_b32 s4, s4, {B-1}\ns_lshl_b32 s4, s4, {13 if cfg.wmaj else 15}\ns_add_u32 s{dst}, s{dst}, s4")
    A("s_waitcnt lgkmcnt(0)")
    srd(SRDK,sK,1<<28)
    INF=cfg.infl if isinstance(cfg.infl,tuple) else (cfg.infl,cfg.infl)
    phase=['K']
    def gate(j, lim):
        if lim is None: return "s_nop 0"
        bi = cfg.binf if phase[0]=='K' else cfg.binfv
        if lim is INF and bi is not None and bi[j%len(bi)]>lim[j%len(lim)]:
            g=lab("bg")
            return f"s_waitcnt vmcnt({bi[j%len(bi)]-1})\ns_cbranch_vccnz {g}\ns_waitcnt vmcnt({lim[j%len(lim)]-1})\n{g}:"
        return f"s_waitcnt vmcnt({lim[j%len(lim)]-1})"
    PINF=cfg.pinfl if isinstance(cfg.pinfl,tuple) else (cfg.pinfl,cfg.pinfl)
    sSB=9; vSD=103
    G=cfg.pg; lg=G.bit_length()-1; NI=4*G
    def claim():
        A(f"s_mov_b32 s{sCL}, 1\ns_atomic_add s{sCL}, s[{sPC}:{sPC+1}], 0 glc")
    def steps(slot, kind, lim=INF, doclaim=False):
        def mk(j):
            def f():
                if kind is None: return
                pj=cfg.order[j]; half=pj>>2; jj=pj&3
                sk=None
                if kind in 'PQ':
                    if kind=='P': sk=lab("ps")
                    if j==0:
                        ok=lab("po")
                        if kind=='Q': pass
                        elif cfg.wolate==1:
                            A(f"s_waitcnt lgkmcnt(0)\ns_mov_b32 s{sSCO+slot}, -1\ns_cmp_lt_u32 s{sCL}, {NI}\ns_cbranch_scc1 {ok}")
                            A(f"v_mov_b32 v{vT}, {DONE}\nds_write_b32 v{vT}, v{vT}\ns_branch {sk}\n{ok}:")
                        else:
                            A(f"s_waitcnt lgkmcnt(0)\ns_mov_b32 s{sSCO+slot}, -1\ns_cmp_ge_u32 s{sCL}, {NI}\ns_cbranch_scc1 {sk}")
                        if cfg.pord: A(f"s_lshr_b32 s5, s{sCL}, 2\ns_and_b32 s6, s{sCL}, 3")
                        else: A(f"s_and_b32 s5, s{sCL}, {G-1}\ns_lshr_b32 s6, s{sCL}, {lg}")
                        A(f"s_lshl_b32 s7, s5, 10\ns_lshl_b32 s8, s6, 8\ns_add_u32 s{sSCO+slot}, s7, s8")
                        A(f"s_and_b32 s7, s2, {31&~(G-1)}\ns_or_b32 s5, s5, s7\ns_mul_i32 s7, s5, {cfg.rotS}\ns_lshl_b32 s5, s5, {15+lb}\ns_add_u32 s5, s5, s{sHB}\ns_add_u32 s6, s6, s{sV0}")
                        taddr(sOFF,6,5,7)
                        if cfg.sdir:
                            A(f"s_add_u32 s4, s{sSCO+slot}, s{sSB}\nbuffer_load_dwordx2 v[{VP+2*slot}:{VP+2*slot+1}], v{vSD}, s[{SRDW}:{SRDW+3}], s4 offen sc1")
                    elif kind=='P':
                        A(f"s_cmp_eq_u32 s{sSCO+slot}, -1\ns_cbranch_scc1 {sk}")
                elif j==0:
                    taddr(sOFF,sNEXT,sREG,sRS)
                    A(f"s_add_u32 s{sNEXT}, s{sNEXT}, 1")
                if (kind in 'PQ' or doclaim) and j==cfg.pclaim: claim()
                vo = vKO+pj if kind=='K' else vVO+half
                sr = SRDK if kind=='K' else SRDV
                A(f"s_add_u32 m0, s{sRING}, {slot*8192+half*4096}\n{gate(j, PINF if kind in 'PQ' else lim)}")
                A(f"buffer_load_dwordx4 v{vo}, s[{sr}:{sr+3}], s{sOFF} offen offset:{jj*1024} nt lds")
                if sk: A(f"{sk}:")
            return f
        return [mk(j) for j in range(8)]
    def weave(st, sl):
        for u in range(8):
            st[u]()
            if u<len(sl): sl[u]()
    for j,f in enumerate(steps(0,'K',None)[:cfg.first]): f()
    NB = cfg.nobar and cfg.pool and not cfg.auxnull
    if NB: A("s_barrier")
    srd(SRDV,sV,1<<28)
    A(f"s_load_dword s{sT8}, s[{sWS}:{sWS+1}], 0")
    A(f"v_lshlrev_b32 v{vVO}, 4, v2\nv_add_u32 v{vVO+1}, 0x1000, v{vVO}")
    A("v_lshrrev_b32 v3, 4, v2\nv_and_b32 v4, 15, v2")
    A("v_and_b32 v5, 3, v4\nv_lshlrev_b32 v5, 2, v5\nv_lshrrev_b32 v6, 2, v4\nv_add_u32 v5, v5, v6")
    A(f"v_xor_b32 v6, v3, v4\nv_lshlrev_b32 v6, 4, v6\nv_lshl_add_u32 v6, v5, 9, v6\nv_add_u32 v6, s{sRING}, v6")
    for q in range(4): A(f"v_xor_b32 v{vKA+q}, {q*64}, v6")
    A(f"v_lshlrev_b32 v6, 4, v4\nv_lshl_add_u32 v6, v3, 9, v6\nv_add_u32 v{vVA}, s{sRING}, v6")
    A(f"s_lshl_b32 s{sCNT}, s{sWAVE}, 11\ns_add_u32 s{sCNT}, s{sCNT}, {SC}")
    A(f"v_lshrrev_b32 v5, 3, v4\nv_lshlrev_b32 v6, 5, v5\nv_lshl_add_u32 v6, v3, 3, v6\nv_add_u32 v{vSA}, s{sCNT}, v6")
    A(f"v_lshlrev_b32 v7, 9, v5\nv_lshl_add_u32 v7, v3, 4, v7\nv_add_u32 v7, {QB}, v7")
    masks(vMASK,4,5,6)
    A(f"v_mov_b32 v{vMAX}, 0xff800000")
    A(f"s_lshr_b32 s4, s2, 3\ns_xor_b32 s5, s4, s2\ns_and_b32 s5, s5, 7\ns_cmp_lt_u32 s4, 28\ns_cselect_b32 s5, s5, 1\ns_cmp_eq_u32 s5, 0\ns_cselect_b64 vcc, 1, 0")
    A(f"v_subrev_u32 v{vT}, s{sRING}, v{vVA}\nv_add_u32 v1, 0x1000, v{vT}")
    I0 = INF if cfg.inf0 is None else cfg.inf0
    I1_ = INF if cfg.inf1 is None else cfg.inf1
    for f in steps(0,'K',I0)[cfg.first:]: f()
    for slot in (1,2):
        for f in steps(slot,'K',I0): f()
    for i in range(4):
        taddr(sOFF,sV0,sREG,sRS)
        for u in cfg.vorder:
            o=(u>>1)*2048+(u&1)*256
            vo = vT if o<4096 else 1
            A(gate(u,I1_))
            A(f"buffer_load_dwordx4 v[{VP+32*i+4*u}:{VP+32*i+4*u+3}], v{vo}, s[{SRDV}:{SRDV+3}], s{sOFF} offen offset:{o&4095} nt")
        A(f"s_add_u32 s{sV0}, s{sV0}, {1 if i<3 else 25}")
    A(f"s_waitcnt lgkmcnt(0)\ns_add_u32 s{sT8}, s{sT8}, 1\ns_and_b32 s{sT8}, s{sT8}, 0xff\ns_mov_b32 s{sFF}, 0xff\nv_mov_b32 v{vTG}, s{sT8}")
    srd(SRDW,sWS,1<<30)
    if NB: ldswait(QRDY, vT, D, sCNT, 1, 2)
    else: A("s_barrier")
    for jj in range(8): A(f"ds_read_b128 v[{QF+4*jj}:{QF+4*jj+3}], v7 offset:{jj*64}")

    def ktile(slot, kind):
        def s0():
            A("s_waitcnt vmcnt(16)")
            for jj in range(8):
                A(f"ds_read_b128 v[{TF+4*jj}:{TF+4*jj+3}], v{vKA+(jj&3)} offset:{slot*8192+(jj>>2)*256}")
        def mf(r):
            def f():
                if r[0]==0: A("s_waitcnt lgkmcnt(0)")
                for jj in r:
                    c = "0" if jj==0 else f"v[{D}:{D+3}]"
                    A(f"v_mfma_f32_16x16x32_bf16 v[{D}:{D+3}], v[{TF+4*jj}:{TF+4*jj+3}], v[{QF+4*jj}:{QF+4*jj+3}], {c}")
            return f
        def s3():
            nop(5)
            A(f"v_cvt_pk_bf16_f32 v{S2}, v{D}, v{D+1}\nv_cvt_pk_bf16_f32 v{S2+1}, v{D+2}, v{D+3}")
            A(f"v_max3_f32 v{vMAX}, v{vMAX}, v{D}, v{D+1}\nv_max3_f32 v{vMAX}, v{vMAX}, v{D+2}, v{D+3}")
            A(f"ds_write_b64 v{vSA}, v[{S2}:{S2+1}] offset:{slot*64}")
        weave(steps((slot+3)&3,kind),[s0,mf([0,1,2,3]),mf([4,5,6,7]),s3])
    def pcalc(S2=S2):
        A(f"v_lshlrev_b32 v{P}, 16, v{S2}\nv_and_b32 v{P+1}, 0xffff0000, v{S2}\nv_lshlrev_b32 v{P+2}, 16, v{S2+1}\nv_and_b32 v{P+3}, 0xffff0000, v{S2+1}")
        for t in range(4): A(f"v_fma_f32 v{P+t}, v{P+t}, s{sC}, v{vNM}")
        for t in range(4): A(f"v_exp_f32 v{P+t}, v{P+t}")
        nop(1)
        for t in range(4): A(f"v_cvt_pk_bf16_f32 v{P+t}, v{P+t}, v{P+t}")
    def pmask():
        for t in range(4):
            for r in range(4): A(f"v_and_b32 v{AR+4*t+r}, v{P+t}, v{vMASK+r}")
    def pv(src, us):
        for u in us:
            t=u>>1; h=u&1
            A(f"v_mfma_f32_16x16x32_bf16 v[{ACC+4*h}:{ACC+4*h+3}], v[{AR+4*t}:{AR+4*t+3}], v[{src+4*u}:{src+4*u+3}], v[{ACC+4*h}:{ACC+4*h+3}]")
    def vtile(slot, kind, waitn, scoff=None, regs=None, pooled=False, doclaim=False):
        def ywait(extra):
            go=lab("wy")
            A(f"s_waitcnt vmcnt({16+extra})")
            for y in (2,1): A(f"s_cmp_ge_i32 s{sY}, {y}\ns_cbranch_scc1 {go}\ns_waitcnt vmcnt({8*(y-1)+extra})")
            A(f"{go}:")
        def s0():
            if pooled and cfg.sdir:
                if waitn=='y': ywait(8)
                else: A(f"s_waitcnt vmcnt({waitn+8})")
                pcalc(VP+2*slot); return
            if pooled: A(f"v_add_u32 v{vT}, s{sSCO+slot}, v{vSA}\nds_read_b64 v[{S2}:{S2+1}], v{vT}")
            else: A(f"ds_read_b64 v[{S2}:{S2+1}], v{vSA} offset:{slot*64 if scoff is None else scoff}")
            rb = kind=='V' and cfg.binfv is not None and (slot&1)
            if rb: A(f"ds_read_b32 v{D}, v{vBA}")
            A("s_waitcnt lgkmcnt(0)")
            if rb: A(f"v_cmp_ne_u32 vcc, 0, v{D}")
            pcalc()
        def s1():
            if waitn=='y': ywait(0)
            else: A(f"s_waitcnt vmcnt({waitn})")
            for u in range(8):
                A(f"ds_read_b128 v[{TF+4*u}:{TF+4*u+3}], v{vVA} offset:{slot*8192+(u>>1)*2048+(u&1)*256}")
            if kind is not None:
                pmask()
                A("s_waitcnt lgkmcnt(0)")
        sl=[s0,s1,lambda:pv(TF,[0,1,2,3]),lambda:pv(TF,[4,5,6,7])]
        if kind is None:
            s0(); pmask(); s1()
            for u in range(8):
                A(f"s_waitcnt lgkmcnt({7-u})"); pv(TF,[u])
            return
        if regs is not None:
            def r0():
                A(f"ds_read_b64 v[{S2}:{S2+1}], v{vSA} offset:{slot*64}\ns_waitcnt lgkmcnt(0)"); pcalc()
            sl+=[r0,pmask,lambda:pv(regs,[0,1,2,3]),lambda:pv(regs,[4,5,6,7])]
        weave(steps((slot+3)&3,kind,doclaim=doclaim),sl)
        if kind=='P':
            A(f"s_cmp_eq_u32 s{sSCO+((slot+3)&3)}, -1\ns_subb_u32 s{sY}, s{sY}, 0")

    lk=lab("kloop")
    A(f"s_mov_b32 s{sCNT}, 7")
    A(f"{lk}:")
    for s in range(4): ktile(s,'K')
    A(f"v_add_u32 v{vSA}, 256, v{vSA}")
    A(f"s_sub_u32 s{sCNT}, s{sCNT}, 1\ns_cmp_lg_u32 s{sCNT}, 0\ns_cbranch_scc1 {lk}")
    ktile(0,'K')
    A(f"s_add_u32 s{sNEXT}, s{sNEXT}, 4")
    for s in range(1,4): ktile(s,'V')
    A(f"v_subrev_u32 v{vSA}, {7*256}, v{vSA}")
    for r in range(8): A(f"v_mov_b32 v{ACC+r}, 0")
    xrowred("v_max_f32", vMAX, vT)
    rbf(vMAX,vMAX)
    A(f"v_bfe_u32 v3, v2, 3, 1\nv_lshlrev_b32 v3, 4, v3\nv_add_u32 v3, {MX}, v3")
    A(f"s_lshl_b32 s{sCNT}, s{sWAVE}, 2\nv_add_u32 v4, s{sCNT}, v3")
    if NB:
        A(f"ds_write_b32 v4, v{vMAX}\nv_mov_b32 v3, {KCNT}\nv_mov_b32 v4, 1\ns_mov_b32 s{sC}, {f2u(CEXP):#x}\ns_mov_b64 exec, 1\nds_add_u32 v3, v4\ns_mov_b64 exec, -1")
    else:
        A(f"ds_write_b32 v4, v{vMAX}\ns_waitcnt lgkmcnt(0)\ns_barrier")
        A(f"ds_read_b128 v[{D}:{D+3}], v3\ns_mov_b32 s{sC}, {f2u(CEXP):#x}\ns_waitcnt lgkmcnt(0)")
        A(f"v_max_f32 v{vMAX}, v{D}, v{D+1}\nv_max3_f32 v{vMAX}, v{vMAX}, v{D+2}, v{D+3}")
    A(f"v_mul_f32 v{vNM}, s{sC}, v{vMAX}\nv_sub_f32 v{vNM}, 0, v{vNM}")
    A("v_lshrrev_b32 v6, 5, v2\nv_lshlrev_b32 v6, 10, v6\nv_and_b32 v5, 15, v2\nv_lshl_add_u32 v6, v5, 5, v6\nv_bfe_u32 v5, v2, 4, 1\nv_lshl_add_u32 v6, v5, 4, v6")
    A(f"v_add_u32 v6, s{sRING}, v6")
    A(f"s_lshl_b32 s{sCNT}, s{sWAVE}, 9\nv_lshlrev_b32 v4, 4, v2\nv_add_u32 v4, s{sCNT}, v4\nv_add_u32 v5, 0x10000, v4")
    A(f"s_lshr_b32 s{sCNT}, s{sWAVE}, 1\ns_lshl_b32 s{sCNT}, s{sCNT}, 2\ns_add_u32 s{sCNT}, s{sCNT}, {FB}\nv_mov_b32 v3, s{sCNT}")
    lv=lab("vloop")
    phase[0]='V'
    vBA=102
    A(f"v_mov_b32 v{vBA}, {BOOST}\ns_mov_b64 vcc, 0")
    for s in range(4): vtile(s,'V',16,scoff=256+s*64,regs=VP+32*s)
    A(f"v_add_u32 v{vSA}, 512, v{vSA}")
    A(f"s_mov_b32 s{sCNT}, {4 if cfg.pool else 5}")
    A(f"{lv}:")
    for s in range(4): vtile(s,'V',16)
    A(f"v_add_u32 v{vSA}, 256, v{vSA}")
    A(f"s_sub_u32 s{sCNT}, s{sCNT}, 1\ns_cmp_lg_u32 s{sCNT}, 0\ns_cbranch_scc1 {lv}")
    Lpool=f"{pre}_poolcode"
    A(f"{Lpool}:")
    if cfg.pool:
        lw=lab("rw"); lwd=lab("rwd")
        A(f"v_mov_b32 v{vT}, {RDY}\ns_mov_b32 s{sCNT}, 0")
        A(f"{lw}:\nds_read_b32 v{D}, v{vT}\ns_add_u32 s{sCNT}, s{sCNT}, 1")
        A(f"s_lshr_b32 s4, s2, {lg}\ns_lshl_b32 s5, s4, 2\ns_add_u32 s5, s5, s{sWAVE}\ns_mul_i32 s5, s5, {CSTR}\ns_add_u32 s5, s5, {CNT}\ns_add_u32 s{sPC}, s{sWS}, s5\ns_addc_u32 s{sPC+1}, s{sWS+1}, 0")
        A(f"s_mov_b32 s{sY}, 2")
        if cfg.sdir:
            A(f"s_and_b32 s{sSB}, s2, {255&~(G-1)}\ns_lshl_b32 s{sSB}, s{sSB}, 10\ns_lshl_b32 s5, s{sWAVE}, 6\ns_add_u32 s{sSB}, s{sSB}, s5\ns_add_u32 s{sSB}, s{sSB}, {SBOX}")
            A(f"v_bfe_u32 v{vSD}, v2, 3, 1\nv_lshlrev_b32 v{vSD}, 5, v{vSD}\nv_lshrrev_b32 v{D+1}, 4, v2\nv_lshl_add_u32 v{vSD}, v{D+1}, 3, v{vSD}")
        A(f"s_waitcnt lgkmcnt(0)\nv_readfirstlane_b32 s4, v{D}\ns_cmp_lg_u32 s4, 0\ns_cbranch_scc1 {lwd}")
        A(f"s_sleep 4\ns_cmp_lt_u32 s{sCNT}, {SPIN_LIMIT*16}\ns_cbranch_scc1 {lw}\n{lwd}:")
        vtile(0,'V',16,doclaim=True)
        for s in range(1,4): vtile(s,'P','y')
        if NB:
            A(f"v_lshrrev_b32 v{vT}, 5, v2\nv_lshlrev_b32 v{D+2}, 2, v{vT}\nv_add_u32 v{D+2}, {FB+16}, v{D+2}\nds_read_b32 v{D}, v{D+2}")
            A(f"s_lshl_b32 s4, s{sWAVE}, 2\ns_add_u32 s4, s4, {MX}\nv_lshlrev_b32 v{vT}, 4, v{vT}\nv_add_u32 v{vT}, s4, v{vT}\nds_read_b32 v{D+1}, v{vT}")
        else:
            A(f"v_lshrrev_b32 v{vT}, 5, v2\nv_lshlrev_b32 v{vT}, 2, v{vT}\nv_add_u32 v{vT}, {FB+8}, v{vT}\nds_read_b32 v{D}, v{vT}")
        A(f"v_bfe_u32 v{vT}, v2, 3, 1\nv_lshlrev_b32 v{vSA}, 5, v{vT}\nv_lshlrev_b32 v{vT}, 2, v{vT}\nv_add_u32 v{vT}, {FB+16}, v{vT}\nds_read_b32 v{vNM}, v{vT}")
        A(f"v_lshrrev_b32 v{vT}, 4, v2\nv_lshl_add_u32 v{vSA}, v{vT}, 3, v{vSA}\ns_lshl_b32 s4, s{sWAVE}, 6\ns_add_u32 s4, s4, {WBUF}\nv_add_u32 v{vSA}, s4, v{vSA}")
        A("s_waitcnt lgkmcnt(0)")
        if NB:
            A(f"v_mul_f32 v{D+1}, s{sC}, v{D+1}\nv_add_f32 v{D}, v{D}, v{D+1}\nv_exp_f32 v{D}, v{D}"); nop(1)
        for r in range(8): A(f"v_mul_f32 v{ACC+r}, v{ACC+r}, v{D}")
        lp=lab("ploop"); le=lab("pend")
        if cfg.drain:
            ld=[lab("drain") for _ in range(4)]
            A(f"{lp}:")
            for s in range(4):
                A(f"s_waitcnt lgkmcnt(0)\ns_cmp_ge_u32 s{sCL}, {NI}\ns_cbranch_scc1 {ld[s]}")
                vtile(s,'Q',16,pooled=True)
            A(f"s_branch {lp}")
            for s in range(4):
                A(f"{ld[s]}:")
                for d in range(3):
                    sl=(s+d)&3
                    A(f"s_cmp_eq_u32 s{sSCO+sl}, -1\ns_cbranch_scc1 {le}")
                    vtile(sl,None,'y',pooled=True)
                    if d<2: A(f"s_sub_u32 s{sY}, s{sY}, 1")
                if s<3: A(f"s_branch {le}")
            A(f"{le}:")
        else:
            A(f"{lp}:")
            for s in range(4):
                A(f"s_cmp_eq_u32 s{sSCO+s}, -1\ns_cbranch_scc1 {le}")
                vtile(s,'P','y',pooled=True)
            A(f"s_branch {lp}\n{le}:")
    else:
        vtile(0,'V',16); vtile(1,None,16); vtile(2,None,8); vtile(3,None,0)
    A(f"s_lshl_b32 s{sOFF}, s2, 11\ns_add_u32 s{sOFF}, s{sOFF}, {OBOX}")
    nop(7)
    A(f"ds_write_b128 v6, v[{ACC}:{ACC+3}]\nds_write_b128 v6, v[{ACC+4}:{ACC+7}] offset:512")
    A("s_waitcnt lgkmcnt(0)\ns_barrier")
    A("s_mov_b32 exec_hi, 0")
    A(f"ds_read_b128 v[{TF}:{TF+3}], v4\nds_read_b128 v[{TF+4}:{TF+7}], v4 offset:32768\nds_read_b128 v[{TF+8}:{TF+11}], v5\nds_read_b128 v[{TF+12}:{TF+15}], v5 offset:32768\nds_read_b32 v{TF+16}, v3")
    A("s_waitcnt lgkmcnt(3)")
    for r in range(4): A(f"v_add_f32 v{TF+r}, v{TF+r}, v{TF+4+r}")
    A("s_waitcnt lgkmcnt(1)")
    for r in range(4): A(f"v_add_f32 v{TF+8+r}, v{TF+8+r}, v{TF+12+r}")
    for r in range(4): A(f"v_add_f32 v{TF+r}, v{TF+r}, v{TF+8+r}")
    A("s_waitcnt lgkmcnt(0)")
    for r in range(4): A(f"v_mul_f32 v{TF+r}, v{TF+r}, v{TF+16}")
    for r in range(4):
        if cfg.sent: A(f"v_min_u32 v{TF+r}, -2, v{TF+r}")
        else: A(f"v_bfi_b32 v{TF+r}, s{sFF}, v{vTG}, v{TF+r}")
    if cfg.tdiag: A("s_memrealtime s[82:83]")
    if not cfg.noopub: A(f"buffer_store_dwordx4 v[{TF}:{TF+3}], v4, s[{SRDW}:{SRDW+3}], s{sOFF} offen {cfg.opol}")
    if cfg.tdiag:
        A(f"s_waitcnt vmcnt(0)\ns_memrealtime s[84:85]\ns_waitcnt lgkmcnt(0)\ns_cmp_lg_u32 s{sWAVE}, 0\ns_cbranch_scc1 {Ldone}")
        A(f"s_lshl_b32 s4, s2, 6\ns_add_u32 s4, s4, {STAMP+0x100000:#x}\ns_mov_b64 exec, 1\nv_mov_b32 v1, 0\nv_mov_b32 v{TF}, s82\nv_mov_b32 v{TF+1}, s83\nv_mov_b32 v{TF+2}, s84\nv_mov_b32 v{TF+3}, s85")
        A(f"buffer_store_dwordx4 v[{TF}:{TF+3}], v1, s[{SRDW}:{SRDW+3}], s4 offen")
    A("s_endpgm")

    vL16=3; vWO_=4; vTR=5; vXA=6
    X=8; F=12; T=20
    XF=32; WF=88
    WT=144
    PA=208
    AM=216
    vT8=220; vFX=221; vG1=222; vG2=223; vPS=224; vTO=225; vFM=226; vH=227
    AT=96
    sE,sTAG,sCQ,sO2,sSPIN,sCM,sFF,sA,sB,sNM=60,61,62,63,64,65,78,66,67,71
    A(f"{Laux}:")
    lend=lab("end")
    if cfg.auxnull:
        A("s_waitcnt lgkmcnt(0)"); srd(SRDW,sWS,1<<30)
        A("s_barrier"); stamp(3); A("s_barrier"); stamp(4); A("s_barrier"); stamp(5); A(f"s_branch {lend}")
    A("s_setprio 3")
    if NB:
        A(f"v_mov_b32 v{X}, 0\nv_mov_b32 v{X+1}, 0\nv_mov_b32 v{X+2}, 0\nv_mov_b32 v{X+3}, 0\nv_mov_b32 v{T}, {RDY}\nds_write_b128 v{T}, v[{X}:{X+3}]")
    A(f"v_lshrrev_b32 v7, 1, v2\nv_and_b32 v{T}, 1, v2\nv_lshlrev_b32 v{T}, 4, v{T}")
    A(f"v_lshl_add_u32 v{vWO_}, v7, 13, v{T}\nv_lshlrev_b32 v{vL16}, 4, v2")
    if cfg.mix:
        A(f"s_and_b32 s4, s2, 7\ns_lshr_b32 s5, s2, 5\ns_add_u32 s5, s5, s4\ns_and_b32 s5, s5, 7\ns_lshl_b32 s5, s5, 2\ns_lshl_b32 s{sCQ}, s4, 5\ns_add_u32 s{sCQ}, s{sCQ}, s5\ns_bfe_u32 s5, s2, 0x20003\ns_add_u32 s{sCQ}, s{sCQ}, s5\ns_lshl_b32 s{sO2}, s{sCQ}, 5")
    else:
        A(f"s_and_b32 s{sCQ}, s2, 7\ns_lshl_b32 s{sCQ}, s{sCQ}, 5\ns_lshr_b32 s{sO2}, s2, 3\ns_add_u32 s{sCQ}, s{sCQ}, s{sO2}\ns_lshl_b32 s{sO2}, s{sCQ}, 5")
    A("s_waitcnt lgkmcnt(0)")
    stamp('karg')
    A(f"s_load_dword s{sE}, s[{sWS}:{sWS+1}], 0")
    srd(SRDA,sX,896)
    A(f"buffer_load_dwordx4 v[{X}:{X+3}], v{vL16}, s[{SRDA}:{SRDA+3}], 0 offen")
    if NB: A("s_barrier")
    srd(SRDK,sWQ,448*4096*2)
    def wdma(sr, step, gate=None):
        for i in range(14):
            if gate is not None: A(f"s_waitcnt vmcnt({gate})")
            A(f"s_mov_b32 m0, {WBUF+i*1024}")
            if i: A(f"s_add_u32 s{sO2}, s{sO2}, {step}")
            else: nop(1)
            A(f"buffer_load_dwordx4 v{vWO_}, s[{sr}:{sr+3}], s{sO2} offen {cfg.cnt} lds")
    if cfg.pfq:
        A(f"s_mul_i32 s5, s2, 14336")
        for i in range(14):
            A(f"buffer_load_dwordx4 v[{WF+4*i}:{WF+4*i+3}], v{vL16}, s[{SRDK}:{SRDK+3}], s5 offen\ns_add_u32 s5, s5, 1024")
        A("s_waitcnt vmcnt(0)")
    if cfg.wqtest==1:
        A(f"v_lshrrev_b32 v{T}, 3, v2\nv_and_b32 v{T+1}, 7, v2\nv_lshlrev_b32 v{T+1}, 4, v{T+1}\nv_lshl_add_u32 v{vWO_}, v{T}, 13, v{T+1}")
        A(f"s_and_b32 s4, s{sCQ}, 3\ns_mul_i32 s4, s4, {112*8192}\ns_lshr_b32 s{sO2}, s{sCQ}, 2\ns_lshl_b32 s{sO2}, s{sO2}, 7\ns_add_u32 s{sO2}, s{sO2}, s4")
        wdma(SRDK,8*8192,cfg.qgate)
    elif cfg.wqtest==2:
        A(f"v_mov_b32 v{vWO_}, v{vL16}\ns_mul_i32 s{sO2}, s2, 14336")
        wdma(SRDK,1024,cfg.qgate)
    elif cfg.wqtest==3:
        A(f"v_mov_b32 v{vWO_}, v{vL16}\ns_and_b32 s4, s2, 7\ns_lshl_b32 s4, s4, 10\ns_lshr_b32 s{sO2}, s2, 3\ns_mul_i32 s{sO2}, s{sO2}, {14*8192}\ns_add_u32 s{sO2}, s{sO2}, s4")
        wdma(SRDK,8192,cfg.qgate)
    elif not cfg.nowq: wdma(SRDK,32*8192,cfg.qgate)
    srd(SRDW,sWS,1<<30)
    A(f"v_lshrrev_b32 v{T}, 4, v2\nv_bfe_u32 v{T+1}, v2, 2, 2\nv_lshl_add_u32 v{T+1}, v{T}, 3, v{T+1}\nv_and_b32 v{T+2}, 3, v2\nv_lshlrev_b32 v{T+2}, 3, v{T+2}\nv_add_u32 v{T+2}, {WBUF}, v{T+2}")
    A(f"v_lshl_add_u32 v{vTR}, v{T+1}, 5, v{T+2}\nv_lshl_add_u32 v{vG1}, v{T+1}, 7, v{T+2}")
    A(f"v_lshlrev_b32 v{T}, 4, v{T}\nv_add_u32 v{vXA}, {XN}, v{T}")
    A("v_cmp_gt_u32 s[74:75], 56, v2")
    stamp('issued')
    A("s_waitcnt vmcnt(14)")
    stamp('xland')
    for r in range(4):
        A(f"v_lshlrev_b32 v{F+2*r}, 16, v{X+r}\nv_and_b32 v{F+2*r+1}, 0xffff0000, v{X+r}")
    A(f"v_add_f32 v{T}, v{F}, v{F+1}\nv_add_f32 v{T+1}, v{F+2}, v{F+3}\nv_add_f32 v{T+2}, v{F+4}, v{F+5}\nv_add_f32 v{T+3}, v{F+6}, v{F+7}")
    A(f"v_add_f32 v{T}, v{T}, v{T+1}\nv_add_f32 v{T+2}, v{T+2}, v{T+3}\nv_add_f32 v{T}, v{T}, v{T+2}")
    rowred("v_add_f32",T,[1,2,4,8]); xrowred("v_add_f32",T,T+1)
    A(f"v_mul_f32 v{T}, {f2u(1.0/448):#x}, v{T}")
    A(f"v_sub_f32 v{T+2}, v{F}, v{T}\nv_mul_f32 v{T+1}, v{T+2}, v{T+2}")
    for r in range(1,8):
        A(f"v_sub_f32 v{T+2}, v{F+r}, v{T}\nv_fmac_f32 v{T+1}, v{T+2}, v{T+2}")
    A(f"v_cndmask_b32 v{T+1}, 0, v{T+1}, s[74:75]")
    rowred("v_add_f32",T+1,[1,2,4,8]); xrowred("v_add_f32",T+1,T+2)
    A(f"v_mul_f32 v{T+1}, {f2u(1.0/448):#x}, v{T+1}")
    rbf(T,T); rbf(T+1,T+1)
    A(f"v_add_f32 v{T+1}, {f2u(1e-5):#x}, v{T+1}"); rbf(T+1,T+1)
    A(f"v_sqrt_f32 v{T+1}, v{T+1}"); nop(1); rbf(T+1,T+1)
    A(f"v_rcp_f32 v{T+2}, v{T+1}")
    for r in range(8): A(f"v_sub_f32 v{F+r}, v{F+r}, v{T}")
    for r in range(4): A(f"v_cvt_pk_bf16_f32 v{X+r}, v{F+2*r}, v{F+2*r+1}")
    for r in range(4): A(f"v_lshlrev_b32 v{F+2*r}, 16, v{X+r}\nv_and_b32 v{F+2*r+1}, 0xffff0000, v{X+r}")
    for r in range(8):
        A(f"v_mul_f32 v{T+3}, v{F+r}, v{T+2}\nv_fma_f32 v{T+4}, -v{T+3}, v{T+1}, v{F+r}\nv_fma_f32 v{F+r}, v{T+4}, v{T+2}, v{T+3}")
    for r in range(4): A(f"v_cvt_pk_bf16_f32 v{X+r}, v{F+2*r}, v{F+2*r+1}")
    A(f"v_add_u32 v{T}, {XN}, v{vL16}\nds_write_b128 v{T}, v[{X}:{X+3}]\ns_waitcnt lgkmcnt(0)")
    for jj in range(14): A(f"ds_read_b128 v[{XF+4*jj}:{XF+4*jj+3}], v{vXA} offset:{jj*64}")
    stamp('lndone')
    A("s_waitcnt vmcnt(0)")
    stamp('wqland')
    for jj in range(14):
        A(f"ds_read_b64_tr_b16 v[{WF+4*jj}:{WF+4*jj+1}], v{vTR} offset:{jj*1024}\nds_read_b64_tr_b16 v[{WF+4*jj+2}:{WF+4*jj+3}], v{vTR} offset:{jj*1024+128}")
    A(f"s_waitcnt lgkmcnt(0)")
    for jj in range(14):
        c="0" if jj==0 else f"v[{T}:{T+3}]"
        A(f"v_mfma_f32_16x16x32_bf16 v[{T}:{T+3}], v[{XF+4*jj}:{XF+4*jj+3}], v[{WF+4*jj}:{WF+4*jj+3}], {c}")
    A(f"s_mul_i32 s{sTAG}, s{sE}, 0x9E3779B1\ns_add_u32 s{sTAG}, s{sTAG}, 0x7F4A7C15")
    A(f"s_add_u32 s{sFF}, s{sE}, 1\ns_and_b32 s{sFF}, s{sFF}, 0xff\nv_mov_b32 v{vT8}, s{sFF}\ns_mov_b32 s{sFF}, 0xff\ns_mov_b32 s{sNM}, 0xffffff00")
    A(f"s_lshl_b32 s{sO2}, s{sCQ}, 6\ns_add_u32 s{sO2}, s{sO2}, {QBOX}\nv_lshlrev_b32 v{T+6}, 3, v7\nv_mov_b32 v{T+5}, s{sTAG}")
    A(f"v_mov_b32_dpp v{T+1}, v{T} quad_perm:[1,1,3,3] {DPP}")
    A(f"v_cvt_pk_bf16_f32 v{T+4}, v{T}, v{T+1}")
    A("s_mov_b64 exec, 0x5555")
    if not cfg.noqx: A(f"buffer_store_dwordx2 v[{T+4}:{T+5}], v{T+6}, s[{SRDW}:{SRDW+3}], s{sO2} offen sc1")
    A("s_mov_b64 exec, -1")
    stamp(2)
    TT1=tt(lambda a,b,t:(a^t)|(b^t)); TT2=tt(lambda a,b,c:(a|b)&c)
    def poll(loads, soff, mode, sleep, fast=0, fthr=None):
        PM=4
        lp=lab("poll"); ld=lab("polld")
        for i,(d,vo,imm,lm) in enumerate(loads):
            if lm is None: A(f"s_mov_b64 s[{PM+2*i}:{PM+2*i+1}], -1")
            else: A(f"s_mov_b32 s{PM+2*i}, {lm&0xffffffff:#x}\ns_mov_b32 s{PM+2*i+1}, {lm>>32:#x}")
        A(f"s_mov_b32 s{sSPIN}, 0\ns_mov_b32 s14, 999")
        A(f"{lp}:")
        for i,(d,vo,imm,lm) in enumerate(loads):
            sk=lab("sk")
            A(f"s_mov_b64 exec, s[{PM+2*i}:{PM+2*i+1}]\ns_cbranch_execz {sk}")
            A(f"buffer_load_dwordx4 v[{d}:{d+3}], v{vo}, s[{SRDW}:{SRDW+3}], s{soff} offen offset:{imm} {cfg.lpol}")
            A(f"{sk}:")
        A(f"s_mov_b64 exec, -1\ns_add_u32 s{sSPIN}, s{sSPIN}, 1")
        if fast and fthr is not None:
            sk=lab("fs")
            A(f"s_cmp_le_u32 s14, {fthr}\ns_cbranch_scc1 {sk}\ns_waitcnt vmcnt(0)\n{sk}:")
        A(f"s_waitcnt vmcnt({fast})")
        for i,(d,vo,imm,lm) in enumerate(loads):
            if mode=='s':
                A(f"v_max3_u32 v{T+i}, v{d}, v{d+1}, v{d+2}\nv_max_u32 v{T+i}, v{T+i}, v{d+3}")
            elif mode=='q':
                A(f"v_xor_b32 v{T+i}, s{sTAG}, v{d+1}\nv_xor_b32 v{T+4+i}, s{sTAG}, v{d+3}\nv_or_b32 v{T+i}, v{T+i}, v{T+4+i}")
            else:
                A(f"v_bitop3_b32 v{T+i}, v{d}, v{d+1}, v{vT8} bitop3:{TT1:#x}\nv_bitop3_b32 v{T+4+i}, v{d+2}, v{d+3}, v{vT8} bitop3:{TT1:#x}")
                A(f"v_bitop3_b32 v{T+i}, v{T+i}, v{T+4+i}, s{sFF} bitop3:{TT2:#x}")
        for i,(d,vo,imm,lm) in enumerate(loads):
            A(("v_cmp_eq_u32 vcc, -1" if mode=='s' else "v_cmp_ne_u32 vcc, 0")+f", v{T+i}\ns_and_b64 s[{PM+2*i}:{PM+2*i+1}], s[{PM+2*i}:{PM+2*i+1}], vcc")
        if len(loads)>1:
            A(f"s_or_b64 s[12:13], s[{PM}:{PM+1}], s[{PM+2}:{PM+3}]")
            for i in range(2,len(loads)): A(f"s_or_b64 s[12:13], s[12:13], s[{PM+2*i}:{PM+2*i+1}]")
        A(f"s_cbranch_scc0 {ld}")
        if fast and fthr is not None:
            A(f"s_bcnt1_i32_b64 s14, s[{PM}:{PM+1}]")
            for i in range(1,len(loads)): A(f"s_bcnt1_i32_b64 s15, s[{PM+2*i}:{PM+2*i+1}]\ns_add_u32 s14, s14, s15")
            if sleep:
                sk=lab("ns")
                A(f"s_cmp_le_u32 s14, {fthr}\ns_cbranch_scc1 {sk}\ns_sleep {sleep}\n{sk}:")
        elif sleep: A(f"s_sleep {sleep}")
        A(f"s_cmp_lt_u32 s{sSPIN}, {SPIN_LIMIT*4}\ns_cbranch_scc1 {lp}")
        A(f"{ld}:")
    A(f"s_lshr_b32 s{sO2}, s2, 5\ns_lshl_b32 s{sO2}, s{sO2}, 11\ns_add_u32 s{sO2}, s{sO2}, {QBOX}")
    def backoff(n):
        while n>0:
            A(f"s_sleep {min(n,127)}"); n-=127
    backoff(cfg.qdelay)
    if not cfg.noqx: poll([(F,vL16,0,None),(F+4,vL16,1024,None)], sO2, 'q', cfg.qsleep)
    stamp('qrecv')
    if not NB: A(f"v_mov_b32 v{T}, {RDY}\nv_mov_b32 v{T+1}, 0\nds_write2_b32 v{T}, v{T+1}, v{T+1} offset0:0 offset1:4")
    A(f"v_lshlrev_b32 v{T}, 3, v2\nv_add_u32 v{T}, {QB}, v{T}")
    A(f"ds_write2_b32 v{T}, v{F}, v{F+2} offset0:0 offset1:1\nds_write2_b32 v{T}, v{F+4}, v{F+6} offset0:128 offset1:129")
    if NB: A(f"v_mov_b32 v{T}, {QRDY}\nv_mov_b32 v{T+1}, 1\ns_waitcnt lgkmcnt(0)\nds_write_b32 v{T}, v{T+1}")
    else: A("s_waitcnt lgkmcnt(0)\ns_barrier")
    stamp(3)
    if cfg.prio2!=3: A(f"s_setprio {cfg.prio2}")
    if cfg.pool:
        lz=lab("nz")
        A(f"s_and_b32 s4, s2, {G-1}\ns_cbranch_scc1 {lz}")
        A(f"s_lshr_b32 s4, s2, {lg}\ns_mul_i32 s4, s4, {4*CSTR}\ns_add_u32 s4, s4, {CNT}\nv_mul_u32_u24 v{T}, {CSTR}, v2\nv_mov_b32 v{T+1}, 0\ns_mov_b64 exec, 15")
        A(f"buffer_store_dword v{T+1}, v{T}, s[{SRDW}:{SRDW+3}], s4 offen sc1\ns_mov_b64 exec, -1\n{lz}:")
    if cfg.probe is not None and cfg.probe[0]=='g':
        A(f"s_lshl_b32 s4, s2, 2\ns_add_u32 s4, s4, 0x300000\nv_mov_b32 v{T}, 0\nv_mov_b32 v{T+1}, s80\ns_mov_b64 exec, 1\nbuffer_store_dword v{T+1}, v{T}, s[{SRDW}:{SRDW+3}], s4 offen sc1\ns_mov_b64 exec, -1")
    A(f"s_bfe_u32 s{sB}, s2, 0x10003\ns_lshr_b32 s{sA}, s2, 4\ns_lshl_b32 s{sA}, s{sA}, 3\ns_and_b32 s{sO2}, s2, 7\ns_add_u32 s{sA}, s{sA}, s{sO2}")
    A(f"v_and_b32 v{T}, 15, v2"); masks(AM,T,T+1,T+2)
    A(f"v_lshrrev_b32 v{T+1}, 4, v2\nv_mul_u32_u24 v{vTO}, 896, v{T+1}\nv_lshl_add_u32 v{vTO}, v{T}, 4, v{vTO}")
    for r in range(8): A(f"v_mov_b32 v{PA+r}, 0")
    def tile_load(sr, gated=True, so=None, pol=None):
        if pol is None: pol=cfg.wnt
        for t in range(8):
            o=sO2 if so is None else so
            if gated and cfg.agate is not None: A(f"s_waitcnt vmcnt({cfg.agate})")
            A(f"buffer_load_dwordx4 v[{WT+8*t}:{WT+8*t+3}], v{vTO}, s[{sr}:{sr+3}], s{o} offen {pol}")
            A("s_mov_b32 exec_lo, 0x0fff0fff\ns_mov_b32 exec_hi, 0x0fff0fff")
            A(f"buffer_load_dwordx4 v[{WT+8*t+4}:{WT+8*t+7}], v{vTO}, s[{sr}:{sr+3}], s{o} offen offset:256 {pol}")
            A(f"s_mov_b64 exec, -1\ns_add_u32 s{o}, s{o}, 3584")
    def project(src, WT=WT):
        for t in range(8):
            v,ln=src(t)
            for r in range(4): A(f"v_and_b32_dpp v{AT+4*t+r}, v{v}, v{AM+r} row_newbcast:{ln} {DPP}")
            if t>=1:
                tp=t-1
                for cb in range(2):
                    A(f"v_mfma_f32_16x16x32_bf16 v[{PA+4*cb}:{PA+4*cb+3}], v[{AT+4*tp}:{AT+4*tp+3}], v[{WT+8*tp+4*cb}:{WT+8*tp+4*cb+3}], v[{PA+4*cb}:{PA+4*cb+3}]")
        for cb in range(2):
            A(f"v_mfma_f32_16x16x32_bf16 v[{PA+4*cb}:{PA+4*cb+3}], v[{AT+28}:{AT+31}], v[{WT+56+4*cb}:{WT+56+4*cb+3}], v[{PA+4*cb}:{PA+4*cb+3}]")
    A(f"v_lshrrev_b32 v{T}, 5, v2\nv_lshlrev_b32 v{T}, 9, v{T}\nv_and_b32 v{T+1}, 15, v2\nv_lshl_add_u32 v{T}, v{T+1}, 5, v{T}\nv_bfe_u32 v{T+1}, v2, 4, 1\nv_lshl_add_u32 v{vPS}, v{T+1}, 4, v{T}")
    def rec_store(soff, sent=False):
        nop(8)
        for r in range(4): A(f"v_permlane32_swap_b32 v{PA+r}, v{PA+4+r}")
        for r in range(4):
            if sent: A(f"v_min_u32 v{PA+r}, -2, v{PA+r}")
            else: A(f"v_bfi_b32 v{PA+r}, s{sFF}, v{vT8}, v{PA+r}")
        A("s_mov_b32 exec_hi, 0x0fff0fff")
        A(f"buffer_store_dwordx4 v[{PA}:{PA+3}], v{vPS}, s[{SRDW}:{SRDW+3}], s{soff} offen {cfg.opol}")
        A("s_mov_b32 exec_hi, -1")
    A(f"s_lshl_b32 s{sCQ}, s{sB}, 7\ns_add_u32 s{sCQ}, s{sCQ}, s{sA}\ns_lshl_b32 s{sCQ}, s{sCQ}, 10\ns_add_u32 s{sCQ}, s{sCQ}, {PBOX}")
    if cfg.sent:
        for r in range(4): A(f"v_mov_b32 v{F+r}, -1")
        A(f"s_lshl_b32 s4, s2, 11\ns_add_u32 s4, s4, {OBOX}")
        A(f"buffer_store_dwordx4 v[{F}:{F+3}], v{vL16}, s[{SRDW}:{SRDW+3}], s4 offen {cfg.cpol}\ns_waitcnt vmcnt({cfg.cgate})")
        A(f"buffer_store_dwordx4 v[{F}:{F+3}], v{vL16}, s[{SRDW}:{SRDW+3}], s4 offen offset:1024 {cfg.cpol}\ns_waitcnt vmcnt({cfg.cgate})")
        if cfg.cpol=='': A("s_waitcnt vmcnt(0)\nbuffer_wbl2 sc1\ns_waitcnt vmcnt(0)")
        if cfg.sent2: A(f"s_mov_b64 exec, s[74:75]\nbuffer_store_dwordx4 v[{F}:{F+3}], v{vL16}, s[{SRDW}:{SRDW+3}], s{sCQ} offen sc1\ns_mov_b64 exec, -1")
        nop(2)
    if cfg.pfm and not cfg.mlp2:
        srd(SRDK,sW1,448*1792*2); srd(SRDA,sW2,448*1792*2)
        A(f"s_mul_i32 s5, s2, 7168")
        for i in range(7):
            A(f"s_waitcnt vmcnt({cfg.pfgate})\nbuffer_load_dwordx4 v[{WF+4*i}:{WF+4*i+3}], v{vL16}, s[{SRDK}:{SRDK+3}], s5 offen\ns_add_u32 s5, s5, 1024")
        if cfg.pfm>1:
            A(f"s_mul_i32 s5, s2, 7168")
            for i in range(7):
                A(f"s_waitcnt vmcnt({cfg.pfgate})\nbuffer_load_dwordx4 v[{WF+28+4*i}:{WF+28+4*i+3}], v{vL16}, s[{SRDA}:{SRDA+3}], s5 offen\ns_add_u32 s5, s5, 1024")
        A("s_waitcnt vmcnt(0)")
        backoff(64)
    lnm=lab("nomlp")
    HA=WF; HS=128; sMO=70
    k0=math.sqrt(2/math.pi)
    def gelu_rot(h, bias, dst):
        t1=h+1; t2=h+2
        rbf(h,h)
        A(f"v_lshlrev_b32 v{bias}, 16, v{bias}\nv_add_f32 v{h}, v{h}, v{bias}"); rbf(h,h)
        A(f"v_mul_f32 v{t1}, v{h}, v{h}\nv_mul_f32 v{t1}, v{t1}, v{h}\nv_mov_b32 v{t2}, {f2u(0.044715):#x}\nv_fma_f32 v{t1}, v{t1}, v{t2}, v{h}")
        A(f"v_mul_f32 v{t1}, {f2u(-2*k0*math.log2(math.e)):#x}, v{t1}\nv_exp_f32 v{t1}, v{t1}"); nop(1)
        A(f"v_add_f32 v{t1}, 1.0, v{t1}\nv_rcp_f32 v{t1}, v{t1}"); nop(1)
        A(f"v_mul_f32 v{h}, v{h}, v{t1}\nv_cvt_pk_bf16_f32 v{h}, v{h}, v{h}\nv_mov_b32 v{dst}, v{h}"); nop(2)
        for g in range(1,4): A(f"v_mov_b32_dpp v{dst}, v{h} row_ror:{16-g} row_mask:{1<<g:#x} bank_mask:0xf")
    if cfg.mlp2:
        ls2=lab("st2")
        if cfg.nomlp: A(f"s_branch {lnm}")
        A("s_and_b32 s4, s2, 7\ns_lshr_b32 s5, s2, 5\ns_bfe_u32 s6, s2, 0x20003\ns_and_b32 s7, s5, 3")
        A("s_cmp_gt_u32 s6, s7\ns_subb_u32 s8, s6, 0\ns_lshl_b32 s8, s8, 3\ns_add_u32 s8, s8, s4")
        A("s_cmp_eq_u32 s6, s7\ns_cselect_b32 s8, 24, s8\ns_cselect_b32 s9, s4, s5")
        A(f"s_cmp_lg_u32 s9, s5\ns_cbranch_scc1 {ls2}")
        A(f"s_mul_i32 s9, s5, 25\ns_add_u32 s8, s8, s9\ns_cmp_ge_u32 s8, 196\ns_cbranch_scc1 {lnm}")
        A(f"s_mul_i32 s9, s8, 2341\ns_lshr_b32 s9, s9, 16\ns_mul_i32 s10, s9, 28\ns_sub_u32 s8, s8, s10")
        A(f"v_lshrrev_b32 v{T}, 3, v2\nv_mul_u32_u24 v{vWO_}, 3584, v{T}\nv_and_b32 v{T}, 7, v2\nv_lshl_add_u32 v{vWO_}, v{T}, 4, v{vWO_}")
        srd(SRDK,sW1,448*1792*2)
        A(f"s_mul_i32 s{sO2}, s9, {64*3584}\ns_lshl_b32 s10, s8, 7\ns_add_u32 s{sO2}, s{sO2}, s10")
        for i in range(8):
            if cfg.mgate is not None: A(f"s_waitcnt vmcnt({cfg.mgate})")
            A(f"s_mov_b32 m0, {WBUF+i*1024}\ns_nop 0")
            if not cfg.now1: A(f"buffer_load_dwordx4 v{vWO_}, s[{SRDK}:{SRDK+3}], s{sO2} offen {cfg.mnt} lds")
            A(f"s_add_u32 s{sO2}, s{sO2}, {8*3584}")
        A(f"s_lshl_b32 s10, s9, 7\nv_add_u32 v{T}, s10, v{vXA}\nds_read_b128 v[{XF}:{XF+3}], v{T}\nds_read_b128 v[{XF+4}:{XF+7}], v{T} offset:64")
        A("s_waitcnt vmcnt(0)")
        for kk in range(2):
            for u in range(4):
                r=WT+16*kk+4*u
                A(f"ds_read_b64_tr_b16 v[{r}:{r+1}], v{vG1} offset:{kk*4096+u*32}\nds_read_b64_tr_b16 v[{r+2}:{r+3}], v{vG1} offset:{kk*4096+u*32+512}")
        A("s_waitcnt lgkmcnt(0)")
        for kk in range(2):
            for u in range(4):
                r=WT+16*kk+4*u; x=XF+4*kk
                c="0" if kk==0 else f"v[{HA+4*u}:{HA+4*u+3}]"
                A(f"v_mfma_f32_16x16x32_bf16 v[{HA+4*u}:{HA+4*u+3}], v[{x}:{x+3}], v[{r}:{r+3}], {c}")
        A(f"s_lshl_b32 s8, s8, 11\ns_lshl_b32 s9, s9, 8\ns_add_u32 s8, s8, s9\ns_add_u32 s8, s8, {HBOX}")
        nop(8)
        for u in range(4): A(f"v_bfi_b32 v{F+u}, s{sFF}, v{vT8}, v{HA+4*u}")
        A(f"s_mov_b64 exec, 0xffff\nbuffer_store_dwordx4 v[{F}:{F+3}], v{vL16}, s[{SRDW}:{SRDW+3}], s8 offen sc1\ns_mov_b64 exec, -1")
        A(f"s_branch {lnm}")
        A(f"{ls2}:")
        A(f"s_cmp_gt_u32 s4, s5\ns_subb_u32 s4, s4, 0\ns_mul_i32 s{sCM}, s5, 7\ns_add_u32 s{sCM}, s{sCM}, s4")
        srd(SRDK,sW2,1792*448*2)
        srd(SRDA,sB1,3584)
        A(f"v_and_b32 v{T}, 15, v2\nv_lshlrev_b32 v{T}, 1, v{T}\ns_lshl_b32 s{sO2}, s{sCM}, 6")
        for u in range(2): A(f"buffer_load_ushort v{X+u}, v{T}, s[{SRDA}:{SRDA+3}], s{sO2} offen offset:{32*u}\ns_nop 0")
        W2B=32
        A(f"s_mul_i32 s{sO2}, s{sCM}, {32*896}")
        for t in range(8):
            for bb,base in enumerate((WT,W2B)):
                if cfg.now2: continue
                if cfg.agate is not None: A(f"s_waitcnt vmcnt({cfg.agate})")
                A(f"buffer_load_dwordx4 v[{base+8*t}:{base+8*t+3}], v{vTO}, s[{SRDK}:{SRDK+3}], s{sO2} offen offset:{448*bb} {cfg.mnt}")
                A("s_mov_b32 exec_lo, 0x0fff0fff\ns_mov_b32 exec_hi, 0x0fff0fff")
                A(f"buffer_load_dwordx4 v[{base+8*t+4}:{base+8*t+7}], v{vTO}, s[{SRDK}:{SRDK+3}], s{sO2} offen offset:{448*bb+256} {cfg.mnt}")
                A("s_mov_b64 exec, -1")
            A(f"s_add_u32 s{sO2}, s{sO2}, 3584")
        HG=132
        A(f"s_lshr_b32 s{sO2}, s{sCM}, 1\ns_lshl_b32 s{sO2}, s{sO2}, 11\ns_add_u32 s{sO2}, s{sO2}, {HBOX}")
        for r in range(4): A(f"v_mov_b32 v{HG+4+r}, 0")
        backoff(cfg.hdelay)
        poll([(HG,vL16,0,None),(HG+4,vL16,1024,(1<<48)-1)], sO2, 't', 64)
        for r in range(8): A(f"v_and_b32 v{HG+r}, s{sNM}, v{HG+r}")
        for r in range(4): A(f"v_add_f32 v{HG+r}, v{HG+r}, v{HG+4+r}")
        A(f"s_bitcmp1_b32 s{sCM}, 0\ns_cselect_b64 vcc, -1, 0"); nop(1)
        A(f"v_cndmask_b32 v{F}, v{HG}, v{HG+2}, vcc\nv_cndmask_b32 v{F+4}, v{HG+1}, v{HG+3}, vcc")
        xrowred("v_add_f32",F,T); xrowred("v_add_f32",F+4,T)
        gelu_rot(F,X,HS); gelu_rot(F+4,X+1,HS+1)
        nop(2)
        for bb,base in enumerate((WT,W2B)):
            project(lambda t:(HS+(t>>2), 4*(t&3)), base)
            A(f"s_lshl_b32 s4, s{sCM}, 10\ns_add_u32 s4, s4, {MBOX+bb*65536}")
            rec_store(4)
            nop(2)
            for r in range(8): A(f"v_mov_b32 v{PA+r}, 0")
    else:
        A(f"s_lshr_b32 s{sCM}, s2, 3\ns_xor_b32 s4, s{sCM}, s2\ns_and_b32 s4, s4, 7\ns_cbranch_scc1 {lnm}")
        A(f"s_cmp_ge_u32 s{sCM}, {0 if cfg.nomlp else 28}\ns_cbranch_scc1 {lnm}")
        A(f"v_lshrrev_b32 v{T}, 3, v2\nv_mul_u32_u24 v{vWO_}, 3584, v{T}\nv_and_b32 v{T}, 7, v2\nv_lshl_add_u32 v{vWO_}, v{T}, 4, v{vWO_}")
        srd(SRDK,sW1,448*1792*2)
        srd(SRDA,sB1,3584)
        A(f"v_and_b32 v{T}, 15, v2\nv_lshlrev_b32 v{T}, 1, v{T}\ns_lshl_b32 s{sO2}, s{sCM}, 7")
        for u in range(4): A(f"buffer_load_ushort v{F+u}, v{T}, s[{SRDA}:{SRDA+3}], s{sO2} offen offset:{32*u}\ns_nop 0")
        for ps in range(4):
            nk = 4 if ps<3 else 2
            for i in range(4*nk):
                if cfg.mgate is not None: A(f"s_waitcnt vmcnt({cfg.mgate})")
                A(f"s_mov_b32 m0, {WBUF+i*1024}\ns_nop 0")
                if not cfg.now1: A(f"buffer_load_dwordx4 v{vWO_}, s[{SRDK}:{SRDK+3}], s{sO2} offen {cfg.mnt} lds")
                A(f"s_add_u32 s{sO2}, s{sO2}, {8*3584}")
            A("s_waitcnt vmcnt(0)")
            for kk in range(nk):
                for u in range(4):
                    r=WT+16*kk+4*u
                    A(f"ds_read_b64_tr_b16 v[{r}:{r+1}], v{vG1} offset:{kk*4096+u*32}\nds_read_b64_tr_b16 v[{r+2}:{r+3}], v{vG1} offset:{kk*4096+u*32+512}")
            A("s_waitcnt lgkmcnt(0)")
            for kk in range(nk):
                for u in range(4):
                    r=WT+16*kk+4*u; x=XF+4*(4*ps+kk)
                    c="0" if (ps==0 and kk==0) else f"v[{HA+4*u}:{HA+4*u+3}]"
                    A(f"v_mfma_f32_16x16x32_bf16 v[{HA+4*u}:{HA+4*u+3}], v[{x}:{x+3}], v[{r}:{r+3}], {c}")
        nop(8)
        k0=math.sqrt(2/math.pi)
        for u in range(4):
            h=HA+4*u; t1=h+1; t2=h+2
            rbf(h,h)
            A(f"v_lshlrev_b32 v{F+u}, 16, v{F+u}\nv_add_f32 v{h}, v{h}, v{F+u}"); rbf(h,h)
            A(f"v_mul_f32 v{t1}, v{h}, v{h}\nv_mul_f32 v{t1}, v{t1}, v{h}\nv_mov_b32 v{t2}, {f2u(0.044715):#x}\nv_fma_f32 v{t1}, v{t1}, v{t2}, v{h}")
            A(f"v_mul_f32 v{t1}, {f2u(-2*k0*math.log2(math.e)):#x}, v{t1}\nv_exp_f32 v{t1}, v{t1}"); nop(1)
            A(f"v_add_f32 v{t1}, 1.0, v{t1}\nv_rcp_f32 v{t1}, v{t1}"); nop(1)
            A(f"v_mul_f32 v{h}, v{h}, v{t1}\nv_cvt_pk_bf16_f32 v{h}, v{h}, v{h}\nv_mov_b32 v{HS+u}, v{h}"); nop(2)
            for g in range(1,4): A(f"v_mov_b32_dpp v{HS+u}, v{h} row_ror:{16-g} row_mask:{1<<g:#x} bank_mask:0xf")
        srd(SRDK,sW2,1792*448*2)
        for bb in range(2):
            A(f"s_mul_i32 s{sO2}, s{sCM}, {64*896}\ns_add_u32 s{sO2}, s{sO2}, {448*bb}")
            for rb in range(2):
                if not cfg.now2: tile_load(SRDK,pol=cfg.mnt)
                A("s_waitcnt vmcnt(0)")
                project(lambda t:(HS+2*rb+(t>>2), 4*(t&3)))
                nop(4)
            A(f"s_lshl_b32 s4, s{sCM}, 10\ns_add_u32 s4, s4, {MBOX+bb*32768}")
            rec_store(4)
            nop(2)
            for r in range(8): A(f"v_mov_b32 v{PA+r}, 0")
    stamp('mlpdone')
    A(f"{lnm}:")
    FC=cfg.fc; FC0=256-FC
    stamp('wodone')
    if NB: ldswait(KCNT, T, T+1, sSPIN, 4, 16)
    else: A("s_barrier")
    stamp(4)
    A(f"s_mov_b32 s{sCM}, {f2u(CEXP):#x}")
    if cfg.binfv is not None:
        A(f"s_lshr_b32 s4, s2, 5\ns_lshl_b32 s4, s4, 9\ns_add_u32 s4, s4, {MLBOX}\ns_mov_b32 exec_hi, 0")
        A(f"buffer_load_dwordx4 v[{WF}:{WF+3}], v{vL16}, s[{SRDW}:{SRDW+3}], s4 offen sc1\ns_mov_b32 exec_hi, -1")
    if cfg.pool:
        A(f"v_bfe_u32 v{T}, v2, 2, 2\nv_lshlrev_b32 v{T}, 11, v{T}\nv_lshrrev_b32 v{T+1}, 4, v2\nv_lshl_add_u32 v{T}, v{T+1}, 6, v{T}\nv_and_b32 v{T+1}, 3, v2\nv_lshl_add_u32 v{T}, v{T+1}, 4, v{T}\nv_add_u32 v{T}, {SC+28*64}, v{T}")
        A(f"ds_read_b128 v[{X}:{X+3}], v{T}\ns_lshl_b32 s4, s2, 10\ns_add_u32 s4, s4, {SBOX}\ns_waitcnt lgkmcnt(0)")
        if not cfg.nosbw: A(f"buffer_store_dwordx4 v[{X}:{X+3}], v{vL16}, s[{SRDW}:{SRDW+3}], s4 offen sc1")
    A(f"v_and_b32 v{T}, 1, v2\nv_lshlrev_b32 v{T+1}, 4, v{T}\nv_add_u32 v{T+1}, {MX}, v{T+1}\nv_lshlrev_b32 v{T+2}, 5, v2\nv_add_u32 v{T+2}, {SC}, v{T+2}")
    A(f"ds_read_b128 v[{F}:{F+3}], v{T+1}")
    for w in range(4):
        A(f"ds_read_b128 v[{XF+8*w}:{XF+8*w+3}], v{T+2} offset:{w*2048}\nds_read_b128 v[{XF+8*w+4}:{XF+8*w+7}], v{T+2} offset:{w*2048+16}")
    A("s_waitcnt lgkmcnt(0)")
    A(f"v_max_f32 v{F}, v{F}, v{F+1}\nv_max3_f32 v{F}, v{F}, v{F+2}, v{F+3}\nv_mul_f32 v{F+4}, s{sCM}, v{F}\nv_sub_f32 v{F+4}, 0, v{F+4}")
    A(f"v_mov_b32 v{F+1}, 0\nv_mov_b32 v{F+5}, 0")
    for r in range(32):
        A(f"v_lshlrev_b32 v{T+3}, 16, v{XF+r}\nv_and_b32 v{T+4}, 0xffff0000, v{XF+r}")
        A(f"v_fma_f32 v{T+3}, v{T+3}, s{sCM}, v{F+4}\nv_fma_f32 v{T+4}, v{T+4}, s{sCM}, v{F+4}")
        A(f"v_exp_f32 v{T+3}, v{T+3}\nv_exp_f32 v{T+4}, v{T+4}"); nop(1)
        A(f"v_add_f32 v{F+1}, v{F+1}, v{T+3}\nv_add_f32 v{F+5}, v{F+5}, v{T+4}")
    A(f"v_add_f32 v{F+1}, v{F+1}, v{F+5}")
    rowred("v_add_f32",F+1,[2,4,8]); xrowred("v_add_f32",F+1,T+3)
    nop(2)
    A(f"v_mov_b32_dpp v{F+2}, v{F} quad_perm:[1,1,3,3] {DPP}\nv_mov_b32_dpp v{F+3}, v{F+1} quad_perm:[1,1,3,3] {DPP}")
    A(f"v_mov_b32 v{F+6}, v{F}")
    for r in range(4): A(f"v_bfi_b32 v{F+r}, s{sFF}, v{vT8}, v{F+r}")
    if cfg.probe is not None and cfg.probe[0]=='x':
        A(f"s_getreg_b32 s4, hwreg(HW_REG_XCC_ID)\ns_and_b32 s4, s4, 15\ns_lshl_b32 s4, s4, 8\nv_or_b32 v{F}, s4, v{F}")
    A(f"s_lshl_b32 s{sO2}, s2, 4\ns_add_u32 s{sO2}, s{sO2}, {MLBOX}\nv_mov_b32 v{T}, 0\ns_mov_b64 exec, 1\ns_waitcnt vmcnt(0)")
    if not cfg.noml: A(f"buffer_store_dwordx4 v[{F}:{F+3}], v{T}, s[{SRDW}:{SRDW+3}], s{sO2} offen sc1")
    A("s_mov_b64 exec, -1")
    if cfg.binfv is not None:
        A(f"v_bitop3_b32 v{T}, v{WF}, v{WF+1}, v{vT8} bitop3:{TT1:#x}\nv_bitop3_b32 v{T+1}, v{WF+2}, v{WF+3}, v{vT8} bitop3:{TT1:#x}\nv_bitop3_b32 v{T}, v{T}, v{T+1}, s{sFF} bitop3:{TT2:#x}")
        A(f"v_cmp_eq_u32 vcc, 0, v{T}\ns_bcnt1_i32_b32 s4, vcc_lo\ns_cmp_ge_u32 s4, {cfg.brank}\ns_cselect_b32 s4, 1, 0\nv_mov_b32 v{T}, {BOOST}\nv_mov_b32 v{T+1}, s4\nds_write_b32 v{T}, v{T+1}")
    srd(SRDK,sWO,4096*448*2)
    A(f"s_mul_i32 s{sO2}, s{sA}, {32*896}\ns_mul_i32 s{sSPIN}, s{sB}, 448\ns_add_u32 s{sO2}, s{sO2}, s{sSPIN}")
    LATE = cfg.wolate and cfg.pool
    if not cfg.nowo and not LATE: tile_load(SRDK)
    FC=cfg.fc
    lnf=lab("nofin")
    FC0=256-FC
    if FC==56:
        A(f"v_lshrrev_b32 v{T}, 4, v2\nv_and_b32 v{T+1}, 1, v2\nv_lshl_add_u32 v{T}, v{T+1}, 2, v{T}\nv_lshlrev_b32 v{vG2}, 1, v{T}")
        A(f"s_sub_u32 s{sO2}, s2, {FC0}\ns_lshl_b32 s{sO2}, s{sO2}, 4")
    else:
        A(f"v_lshrrev_b32 v{T}, 4, v2\nv_lshlrev_b32 v{vG2}, 1, v{T}")
        A(f"s_sub_u32 s{sO2}, s2, {FC0}\ns_lshl_b32 s{sO2}, s{sO2}, 3")
    A(f"v_add_u32 v{vG2}, s{sO2}, v{vG2}")
    A(f"s_cmp_lt_u32 s2, {FC0}\ns_cbranch_scc1 {lnf}")
    srd(SRDA,sX,896)
    A(f"buffer_load_ushort v{vFX}, v{vG2}, s[{SRDA}:{SRDA+3}], 0 offen")
    srd(SRDK,sB2,896)
    A(f"buffer_load_ushort v{T}, v{vG2}, s[{SRDK}:{SRDK+3}], 0 offen")
    A(f"s_waitcnt vmcnt(0)\nv_lshlrev_b32 v{vFX}, 16, v{vFX}\nv_lshlrev_b32 v{vFM}, 16, v{T}")
    if not cfg.mimic: A(f"v_add_f32 v{vFX}, v{vFX}, v{vFM}")
    A(f"{lnf}:")
    backoff(cfg.mldelay)
    I1=XF
    A(f"s_lshr_b32 s{sO2}, s2, 5\ns_lshl_b32 s{sO2}, s{sO2}, 9\ns_add_u32 s{sO2}, s{sO2}, {MLBOX}\nv_lshlrev_b32 v{vWO_}, 4, v7")
    if not cfg.noml: poll([(I1,vWO_,0,None)], sO2, 't', cfg.mlsleep)
    if cfg.probe is not None and cfg.probe[0]=='x':
        A(f"v_bfe_u32 v{T}, v{I1}, 8, 4\nv_mov_b32 v{T+1}, v{T}"); nop(2)
        A(f"v_permlane16_swap_b32 v{T}, v{T+1}\nv_cmp_ne_u32 vcc, v{T}, v{T+1}\ns_bcnt1_i32_b64 s79, vcc")
    A(f"v_and_b32 v{T}, 1, v2\nv_cmp_eq_u32 vcc, 1, v{T}"); nop(2)
    A(f"v_cndmask_b32 v{I1}, v{I1}, v{I1+2}, vcc\nv_cndmask_b32 v{I1+1}, v{I1+1}, v{I1+3}, vcc\nv_and_b32 v{I1}, 0xffff0000, v{I1}\nv_and_b32 v{I1+1}, s{sNM}, v{I1+1}\nv_mov_b32 v{T+1}, v{I1}")
    rowred("v_max_f32",T+1,[2,4,8]); xrowred("v_max_f32",T+1,T+2)
    A(f"v_sub_f32 v{T+2}, v{I1}, v{T+1}\nv_sub_f32 v{T+3}, v{F+6}, v{T+1}\nv_mul_f32 v{T+2}, s{sCM}, v{T+2}\nv_mul_f32 v{T+3}, s{sCM}, v{T+3}")
    A(f"v_exp_f32 v{T+2}, v{T+2}\nv_exp_f32 v{T+3}, v{T+3}"); nop(1)
    A(f"v_mul_f32 v{T+2}, v{T+2}, v{I1+1}")
    rowred("v_add_f32",T+2,[2,4,8]); xrowred("v_add_f32",T+2,T+4)
    A(f"v_rcp_f32 v{T+4}, v{T+2}"); nop(1)
    A(f"v_fma_f32 v{T+5}, -v{T+2}, v{T+4}, 1.0\nv_fma_f32 v{T+4}, v{T+5}, v{T+4}, v{T+4}")
    A(f"v_lshlrev_b32 v{T}, 2, v{T}\nv_add_u32 v{T}, {FB}, v{T}")
    if cfg.pool:
        A(f"v_mul_f32 v{T+1}, s{sCM}, v{T+1}\nv_sub_f32 v{T+1}, 0, v{T+1}")
        A(f"ds_write_b32 v{T}, v{T+4}\nds_write_b32 v{T}, v{T+3} offset:8\nds_write_b32 v{T}, v{T+1} offset:16")
        A(f"s_and_b32 s4, s2, 0xf8\ns_lshl_b32 s4, s4, 10\ns_add_u32 s4, s4, {SBOX}")
        for k in range(8):
            if k==4: A("s_add_u32 s4, s4, 4096")
            if not cfg.nosbr and not cfg.sdir: A(f"s_waitcnt vmcnt(1)\nbuffer_load_dwordx4 v[{I1+4*k}:{I1+4*k+3}], v{vL16}, s[{SRDW}:{SRDW+3}], s4 offen offset:{(k&3)*1024} sc1")
        A(f"v_add_u32 v{T}, {WBUF}, v{vL16}\ns_waitcnt vmcnt(0)")
        if not cfg.sdir:
            for k in range(8): A(f"ds_write_b128 v{T}, v[{I1+4*k}:{I1+4*k+3}] offset:{k*1024}")
        A(f"v_mov_b32 v{T}, {RDY}\nv_mov_b32 v{T+1}, 1\ns_waitcnt lgkmcnt(0)\nds_write_b32 v{T}, v{T+1}")
        stamp('rdy')
    else:
        A(f"v_mul_f32 v{T+3}, v{T+3}, v{T+4}\nds_write_b32 v{T}, v{T+3}")
    half=FC//2
    sH2=68
    A(f"s_sub_u32 s{sSPIN}, s2, {FC0}\ns_cmp_ge_u32 s{sSPIN}, {half}\ns_cselect_b32 s{sH2}, {128*1024-896}, 0\ns_cselect_b32 s{sO2}, {(64 if cfg.mlp2 else 32)*1024-896}, 0\ns_mul_i32 s{sSPIN}, s{sSPIN}, {1792//FC}")
    A(f"s_add_u32 s{sH2}, s{sH2}, s{sSPIN}\ns_add_u32 s{sH2}, s{sH2}, {PBOX}\ns_add_u32 s{sO2}, s{sO2}, s{sSPIN}\ns_add_u32 s{sO2}, s{sO2}, {MBOX}")
    assert FC==56
    A(f"v_lshlrev_b32 v{vH}, 10, v7\nv_and_b32 v{T}, 1, v2\nv_lshl_add_u32 v{vH}, v{T}, 4, v{vH}")
    for k in range(1,4): A(f"v_add_u32 v{vH+k}, {k*32768}, v{vH}")
    if cfg.mimic and not cfg.nomlp:
        lg=lab("nomg")
        A(f"s_cmp_lt_u32 s2, {FC0}\ns_cbranch_scc1 {lg}")
        if cfg.sent2:
            A(f"s_mov_b32 s69, {MLBOX}")
            poll([(I1+4*k,vL16,1024*k,None) for k in range(4)], 69, 't', 64)
        if cfg.mlp2:
            for r in range(4): A(f"v_mov_b32 v{I1+4+r}, 0")
            poll([(I1,vH,0,None),(I1+4,vH+1,0,(1<<48)-1)], sO2, 't', 64)
            for r in range(8): A(f"v_and_b32 v{I1+r}, s{sNM}, v{I1+r}")
            for r in range(4): A(f"v_add_f32 v{I1+r}, v{I1+r}, v{I1+4+r}")
        else:
            for r in range(4): A(f"v_mov_b32 v{I1+r}, 0")
            poll([(I1,vH,0,(1<<56)-1)], sO2, 't', 64)
            for r in range(4): A(f"v_and_b32 v{I1+r}, s{sNM}, v{I1+r}")
        tred4(I1); rowred("v_add_f32",I1,[2,4,8])
        rbf(I1,I1)
        A(f"v_add_f32 v{vFM}, v{vFM}, v{I1}"); rbf(vFM,vFM)
        A(f"{lg}:")
    srd(SRDA,sOUT,896)
    A(f"v_bfe_u32 v{T}, v2, 3, 2\nv_lshlrev_b32 v{T}, 14, v{T}\nv_lshrrev_b32 v{T+1}, 5, v2\nv_lshl_add_u32 v{T}, v{T+1}, 11, v{T}\nv_and_b32 v{T+1}, 7, v2\nv_lshl_add_u32 v{vG1}, v{T+1}, 4, v{T}")
    for k in range(1,4): A(f"v_add_u32 v{X+k}, {k*4096}, v{vG1}")
    A(f"s_lshr_b32 s{sO2}, s2, 5\ns_lshl_b32 s{sO2}, s{sO2}, 16\ns_and_b32 s{sSPIN}, s{sA}, 15\ns_lshl_b32 s{sSPIN}, s{sSPIN}, 7\ns_add_u32 s{sO2}, s{sO2}, s{sSPIN}\ns_add_u32 s{sO2}, s{sO2}, {OBOX}")
    if cfg.warm:
        lh=lab("pc")
        A(f"s_getpc_b64 s[4:5]\n{lh}:\nv_lshlrev_b32 v{T}, 6, v2")
        A(f"v_min_u32 v{T+1}, {Ldone}-{lh}, v{T}\nglobal_load_dword v{T+1}, v{T+1}, s[4:5]")
        A(f"s_add_u32 s6, s4, {Lpool}-{lh}\ns_addc_u32 s7, s5, -1")
        for k in range(cfg.warm):
            A(f"global_load_dword v{T+2+k}, v{T}, s[6:7]\ns_add_u32 s6, s6, 4096\ns_addc_u32 s7, s7, 0")
    if cfg.touch is not None:
        if not cfg.sent:
            A(f"s_lshl_b32 s4, s2, 11\ns_add_u32 s4, s4, {OBOX}")
            A(f"buffer_load_dwordx4 v[{I1}:{I1+3}], v{vL16}, s[{SRDW}:{SRDW+3}], s4 offen {cfg.touch}\ns_nop 0")
            A(f"buffer_load_dwordx4 v[{I1+4}:{I1+7}], v{vL16}, s[{SRDW}:{SRDW+3}], s4 offen offset:1024 {cfg.touch}\ns_nop 0")
        if not cfg.sent2:
            A(f"buffer_load_dwordx4 v[{I1+8}:{I1+11}], v{vL16}, s[{SRDW}:{SRDW+3}], s{sCQ} offen {cfg.touch}")
        A("s_waitcnt vmcnt(0)")
    if LATE:
        srd(SRDK,sWO,4096*448*2)
        A(f"s_mul_i32 s69, s{sA}, {32*896}\ns_mul_i32 s4, s{sB}, 448\ns_add_u32 s69, s69, s4")
        lw=lab("dw"); lwd=lab("dwd")
    if LATE and cfg.wolate==2:
        A("s_waitcnt vmcnt(0) lgkmcnt(0)\ns_barrier")
        stamp(5)
        if not cfg.nowo: tile_load(SRDK, gated=False, so=69)
    elif LATE:
        A(f"v_mov_b32 v{T}, {DONE}\ns_mov_b32 s{sSPIN}, 0")
        A(f"{lw}:\nds_read_b32 v{T+1}, v{T}\ns_add_u32 s{sSPIN}, s{sSPIN}, 1\ns_waitcnt lgkmcnt(0)\nv_readfirstlane_b32 s4, v{T+1}\ns_cmp_lg_u32 s4, 0\ns_cbranch_scc1 {lwd}")
        A(f"s_sleep 2\ns_cmp_lt_u32 s{sSPIN}, {SPIN_LIMIT*64}\ns_cbranch_scc1 {lw}\n{lwd}:")
        backoff(cfg.wodelay)
        tile_load(SRDK, gated=False, so=69)
        A("s_barrier")
    else:
        A("s_waitcnt vmcnt(0) lgkmcnt(0)\ns_barrier")
    if cfg.wolate!=2: stamp(5)
    if cfg.notail: A(f"s_branch {lend}")
    R=F
    def sum16(I, sent):
        assert not (cfg.fast1 or cfg.fast2)
        if not sent:
            for r in range(16): A(f"v_and_b32 v{I+r}, s{sNM}, v{I+r}")
        for r in range(4): A(f"v_add_f32 v{R+r}, v{I+r}, v{I+4+r}\nv_add_f32 v{R+4+r}, v{I+8+r}, v{I+12+r}")
        for r in range(4): A(f"v_add_f32 v{R+r}, v{R+r}, v{R+4+r}")
        tred4(R)
    if cfg.wowait is not None: A(f"s_waitcnt vmcnt({cfg.wowait})")
    backoff(cfg.h1delay)
    poll([(I1,vG1,0,None),(I1+4,X+1,0,None),(I1+8,X+2,0,None),(I1+12,X+3,0,None)], sO2, 's' if cfg.sent else 't', cfg.sleep1, cfg.fast1, cfg.fthr)
    stamp(6)
    if cfg.tdiag: A(f"s_mov_b32 s95, s{sSPIN}")
    sum16(I1,cfg.sent); rowred("v_add_f32",R,[8])
    A(f"v_cvt_pk_bf16_f32 v{R}, v{R}, v{R}"); nop(2)
    project(lambda t:(R,t))
    rec_store(sCQ, cfg.sent2)
    stamp('rec')
    A(f"s_cmp_lt_u32 s2, {FC0}\ns_cbranch_scc1 {lend}")
    I2=XF+16
    if cfg.ackw: A("s_waitcnt vmcnt(0)")
    backoff(cfg.h2delay)
    poll([(I2+4*k,vH+k,0,None) for k in range(4)], sH2, 's' if cfg.sent2 else 't', cfg.sleep2, cfg.fast2, None)
    stamp('h2')
    sum16(I2,cfg.sent2); rowred("v_add_f32",R,[2,4,8])
    if cfg.mimic:
        rbf(R,R)
        A(f"v_add_f32 v{R}, v{vFX}, v{R}"); rbf(R,R)
        A(f"v_add_f32 v{R}, v{R}, v{vFM}\nv_cvt_pk_bf16_f32 v{R}, v{R}, v{R}")
    else:
        A(f"v_add_f32 v{R}, v{vFX}, v{R}\nv_cvt_pk_bf16_f32 v{R}, v{R}, v{R}")
    A(f"s_mov_b32 exec_lo, 0x00030003\ns_mov_b32 exec_hi, 0x00030003")
    A(f"buffer_store_short v{R}, v{vG2}, s[{SRDA}:{SRDA+3}], 0 offen")
    A(f"s_cmp_lg_u32 s2, 255\ns_cbranch_scc1 {lend}")
    A(f"s_mov_b64 exec, 1\ns_add_u32 s{sE}, s{sE}, 1\nv_mov_b32 v{T+1}, s{sE}\nv_mov_b32 v{T+2}, 0")
    A(f"buffer_store_dword v{T+1}, v{T+2}, s[{SRDW}:{SRDW+3}], 0 offen sc1")
    if cfg.probe is not None:
        lx=lab("px"); ly=lab("py")
        if cfg.probe[0]=='g':
            A(f"s_mov_b64 exec, -1\ns_mov_b32 s4, 0x300000\nbuffer_load_dwordx4 v[{F}:{F+3}], v{vL16}, s[{SRDW}:{SRDW+3}], s4 offen sc1")
            A("s_waitcnt vmcnt(0)\ns_memrealtime s[82:83]\ns_waitcnt lgkmcnt(0)")
            for r in range(4): A(f"v_sub_u32 v{F+r}, s82, v{F+r}")
            A(f"v_max3_u32 v{F}, v{F}, v{F+1}, v{F+2}\nv_max_u32 v{F}, v{F}, v{F+3}\ns_mov_b32 s4, {int(cfg.probe[1]*100)}\nv_cmp_lt_u32 vcc, s4, v{F}\ns_cbranch_vccz {lend}")
        elif cfg.probe[0]=='t':
            A("s_waitcnt vmcnt(0)\ns_memrealtime s[82:83]\ns_waitcnt lgkmcnt(0)")
            k={'end':82,'b1':86,'b2':88,'b3':90}[cfg.probe[2]]
            A(f"s_sub_u32 s4, s{k}, s80\ns_cmp_lt_u32 s4, {int(cfg.probe[1]*100)}\ns_cbranch_scc1 {lend}")
        else:
            A(f"s_cmp_eq_u32 s79, 0\ns_cbranch_scc1 {lend}")
        A(f"s_mov_b32 s4, 40\n{lx}:\ns_sleep 40\ns_sub_u32 s4, s4, 1\ns_cmp_lg_u32 s4, 0\ns_cbranch_scc1 {lx}")
        A("s_endpgm")
    A(f"{lend}:")
    if cfg.probe is not None: pass
    elif cfg.stamps and cfg.dbgout:
        A(f"s_cmp_lt_u32 s2, 252\ns_cbranch_scc1 {Ldone}")
        A("s_mov_b64 exec, 1\ns_waitcnt vmcnt(0)")
        stamp(1)
        srd(SRDA,sDBG,256)
        A(f"s_waitcnt lgkmcnt(0)\ns_sub_u32 s{sO2}, s2, 252\ns_lshl_b32 s{sO2}, s{sO2}, 4\nv_mov_b32 v{T}, 0")
        for i,k in enumerate((3,4,5,1)):
            A(f"s_sub_u32 s4, s{80+2*k}, s80\nv_mov_b32 v{F+i}, s4")
        A(f"buffer_store_dwordx4 v[{F}:{F+3}], v{T}, s[{SRDA}:{SRDA+3}], s{sO2} offen")
    elif cfg.stamps:
        A("s_mov_b64 exec, 1\ns_waitcnt vmcnt(0)")
        stamp(1)
        A("s_getreg_b32 s94, hwreg(HW_REG_XCC_ID)\ns_waitcnt lgkmcnt(0)")
        A(f"s_lshl_b32 s{sO2}, s2, 6\ns_add_u32 s{sO2}, s{sO2}, {STAMP:#x}\nv_mov_b32 v{T}, 0")
        for k in range(8):
            A(f"v_mov_b32 v{F}, s{80+2*k}\nv_mov_b32 v{F+1}, s{81+2*k}\nbuffer_store_dwordx2 v[{F}:{F+1}], v{T}, s[{SRDW}:{SRDW+3}], s{sO2} offen offset:{8*k}\ns_nop 1")
    A(f"{Ldone}:")
    A("s_endpgm")
    body="\n".join(L)+"\n"
    kd=f""".section .rodata,"a"
.p2align 6
.amdhsa_kernel {N}
  .amdhsa_next_free_vgpr 232
  .amdhsa_next_free_sgpr 96
  .amdhsa_accum_offset 232
  .amdhsa_group_segment_fixed_size 0
  .amdhsa_kernarg_size 104
  .amdhsa_user_sgpr_count 2
  .amdhsa_user_sgpr_kernarg_segment_ptr 1
  .amdhsa_system_sgpr_workgroup_id_x 1
  .amdhsa_float_denorm_mode_32 3
.end_amdhsa_kernel
"""
    return body, kd

def header():
    ref=open('parallel_sum__gqa_block_cached__dense_activation_gelu__decode.s.ref').read().split("\n")
    out=[]
    for l in ref:
        if l.startswith("; @launch"):
            out.append(f"; @launch grid=(256,1,1) block=(320,1,1) lds={LDS_END}")
            break
        out.append(l)
    return "\n".join(out)+"\n"

def final(cfg, path):
    body,kd=gen(cfg)
    open(path,"w").write(header()+'.amdgcn_target "amdgcn-amd-amdhsa--gfx950"\n.text\n'+body+kd)

def bench(cfgs, path):
    sys.path.insert(0,'bench')
    from genstream import meta
    s='.amdgcn_target "amdgcn-amd-amdhsa--gfx950"\n'
    ks=[]; args=[]
    for c in cfgs:
        body,kd=gen(c)
        s+=".text\n"+body+kd.replace("kernarg_size 104","kernarg_size 112")
        ks.append((c.name,232,320)); args.append(f"{c.name} 256 320 {LDS_END}")
    s+=meta(ks)
    open(path+".s","w").write(s); open(path+".args","w").write(" @ ".join(args))

def mk(name, **kw):
    c=Cfg(); c.name=name
    for k,v in kw.items():
        assert hasattr(c,k), k
        setattr(c,k,v)
    return c

if __name__=="__main__":
    if sys.argv[1]=="final":
        kw=eval(sys.argv[3]) if len(sys.argv)>3 else {}
        final(mk(KNAME,**kw), sys.argv[2])
    else:
        bench([mk(n,**kw) for n,kw in eval(sys.argv[3])], sys.argv[2])
```

```python
import sys, struct, math

KNAME = "parallel_sum__gqa_block_cached__dense_activation_gelu__decode_kernel"
def f2u(f): return struct.unpack('<I', struct.pack('<f', f))[0]

class Cfg:
    name = KNAME
    rot = 0
    pace = 6
    infl = 5
    stamps = False
    smap = {}
    wnt = "nt"
    qsleep = 16
    sleep1 = 0
    sleep2 = 0
    mlsleep = 100
    fc = 56
    nomlp = False
    notail = False
    auxnull = False
    nowo = False
    tolp = None
    fuse = True
    perm = None
    mlp2 = True
    hdelay = 100
    wowait = 15
    pg = 32
    pord = 0
    sdir = True
    wqtest = 0
    inf0 = None
    inf1 = None
    pfq = False
    pfm = 1
    mnt = 'nt'
    pfgate = 14
    nosbw = False
    nosbr = False
    binf = None
    binfv = (6,6)
    brank = 26
    drain = True
    warm = False
    nobar = False
    wmaj = False
    order = [0,4,2,6,1,5,3,7]
    vorder = [0,1,2,3,4,5,6,7]
    sent = True
    sent2 = False
    cpol = 'sc1'
    cgate = 1
    now1 = False
    now2 = False
    mgate = 6
    wodelay = 0
    wolate = 2
    blk = 4
    rotH = 12
    rotS = 0
    ackw = True
    touch = 'sc1'
    h2delay = 8
    h1delay = 0
    mix = True
    tdiag = False
    qdelay = 50
    mldelay = 100
    prio2 = 0
    nowq = False
    noqx = False
    opol = 'sc1'
    lpol = 'sc1'
    probe = None
    pool = True
    pinfl = 16
    pclaim = 4
    first = 8
    fb = None
    qgate = 6
    cnt = 'nt'
    noml = False
    noopub = False
    mimic = True
    fast1 = 0
    fast2 = 0
    fthr = 64
    vpre = True
    agate = 6
    gran = 1
    thr = None
    dbgout = False

RING=0; SC=131072; WBUF=SC+8192; XN=WBUF+16384; QB=XN+1024; MX=QB+1024; FB=MX+64; RDY=FB+32; DONE=FB+36; QRDY=FB+40; KCNT=FB+44; BOOST=FB+48; LDS_END=FB+64
QBOX=0x1000; MLBOX=0x8000; OBOX=0x10000; PBOX=0x100000; MBOX=0x180000; HBOX=0x1c0000; SBOX=0x200000; CNT=0x280000; CSTR=4352; STAMP=0x20000000
SPIN_LIMIT = 1<<16
CEXP = 0.0625*math.log2(math.e)

def tt(f):
    r=0
    for idx in range(8):
        if f((idx>>2)&1,(idx>>1)&1,idx&1): r|=1<<idx
    return r

def gen(cfg):
    L=[]
    def A(s):
        for line in s.split("\n"):
            t=line.strip()
            L.append(t if t.endswith(":") else "    "+t)
    def C(t): L.append("    ; "+t)
    N=cfg.name
    pre = "L" if N==KNAME else f"L_{N}"
    uid=[0]
    def lab(p):
        uid[0]+=1; return f"{pre}_{p}{uid[0]}"
    def nop(n):
        if n>0: A(f"s_nop {n-1}")
    sX,sK,sV,sWQ,sWO,sW1,sB1=16,18,20,22,24,28,30
    sW2,sB2,sOUT,sDBG,sWS=32,34,36,38,40
    SRDK,SRDV,SRDA,SRDW=44,48,52,56
    sWAVE=3
    def srd(d, p, size):
        A(f"s_mov_b32 s{d}, s{p}\ns_mov_b32 s{d+1}, s{p+1}\ns_mov_b32 s{d+2}, {size:#x}\ns_mov_b32 s{d+3}, 0x20000")
    def stamp(k):
        if cfg.stamps:
            if isinstance(k,str):
                if k not in cfg.smap: return
                k=cfg.smap[k]
            elif k in cfg.smap.values(): return
            A(f"s_memrealtime s[{80+2*k}:{81+2*k}]")
    DPP="row_mask:0xf bank_mask:0xf"
    def rowred(op, v, rors):
        for r in rors:
            nop(2); A(f"{op}_dpp v{v}, v{v}, v{v} row_ror:{r} {DPP}")
    def xrowred(op, v, t):
        A(f"v_mov_b32 v{t}, v{v}"); nop(2); A(f"v_permlane16_swap_b32 v{v}, v{t}"); A(f"{op} v{v}, v{v}, v{t}")
        A(f"v_mov_b32 v{t}, v{v}"); nop(2); A(f"v_permlane32_swap_b32 v{v}, v{t}"); A(f"{op} v{v}, v{v}, v{t}")
    def tred4(a):
        nop(2)
        A(f"v_permlane32_swap_b32 v{a}, v{a+2}\nv_permlane32_swap_b32 v{a+1}, v{a+3}")
        A(f"v_add_f32 v{a}, v{a}, v{a+2}\nv_add_f32 v{a+1}, v{a+1}, v{a+3}")
        nop(2)
        A(f"v_permlane16_swap_b32 v{a}, v{a+1}")
        A(f"v_add_f32 v{a}, v{a}, v{a+1}")
    def rbf(d, s):
        A(f"v_cvt_pk_bf16_f32 v{d}, v{s}, v{s}\nv_and_b32 v{d}, 0xffff0000, v{d}")
    def masks(dst, n, t0, t1):
        A(f"v_and_b32 v{t0}, 1, v{n}\nv_lshlrev_b32 v{t0}, 4, v{t0}\nv_mov_b32 v{t1}, 0xffff\nv_lshlrev_b32 v{t1}, v{t0}, v{t1}\nv_bfe_u32 v{t0}, v{n}, 1, 2")
        for r in range(4):
            A(f"v_cmp_eq_u32 vcc, {r}, v{t0}"); nop(2); A(f"v_cndmask_b32 v{dst+r}, 0, v{t1}, vcc")

    def ldswait(addr, va, vd, cnt, need, sleep, mult=16):
        lw=lab("lw"); lwd=lab("lwd")
        A(f"v_mov_b32 v{va}, {addr}\ns_mov_b32 s{cnt}, 0")
        A(f"{lw}:\nds_read_b32 v{vd}, v{va}\ns_add_u32 s{cnt}, s{cnt}, 1\ns_waitcnt lgkmcnt(0)\nv_readfirstlane_b32 s4, v{vd}\ns_cmp_ge_u32 s4, {need}\ns_cbranch_scc1 {lwd}")
        A(f"s_sleep {sleep}\ns_cmp_lt_u32 s{cnt}, {SPIN_LIMIT*mult}\ns_cbranch_scc1 {lw}\n{lwd}:")
    Ldone=f"{pre}_done"; Laux=f"{pre}_aux"
    A(f".globl {N}\n.p2align 8\n.type {N},@function\n{N}:")
    A(f"s_cmp_ge_u32 s2, 256\ns_cbranch_scc1 {Ldone}")
    if cfg.perm:
        for bit,mask in cfg.perm:
            sk=lab("pm"); A(f"s_bitcmp1_b32 s2, {bit}\ns_cbranch_scc0 {sk}\ns_xor_b32 s2, s2, {mask}\n{sk}:")
    A("s_load_dwordx16 s[16:31], s[0:1], 0\ns_load_dwordx8 s[32:39], s[0:1], 64\ns_load_dwordx2 s[40:41], s[0:1], 96")
    stamp(0)
    A("v_lshrrev_b32 v1, 6, v0\nv_and_b32 v2, 63, v0")
    nop(1)
    A(f"v_readfirstlane_b32 s{sWAVE}, v1")
    A(f"s_cmp_eq_u32 s{sWAVE}, 4\ns_cbranch_scc1 {Laux}")

    C("================= stream waves 0..3: K pass (scores), V pass (P.V) =================")
    vKO=8; vVO=16; vKA=18; vVA=22; vSA=23; vMASK=24; vMAX=28; vTG=29; vNM=30; vT=31
    QF=32; TF=64; D=96; S2=100; VP=104
    AR=32; ACC=48; P=56; vVP=7
    sRING,sREG,sNEXT,sOFF,sCNT,sC,sT8,sFF,sV0,sLV,sCL,sY,sSCO=60,61,62,63,64,65,66,67,68,69,70,71,72
    sPC=76
    A("v_lshrrev_b32 v3, 5, v2\nv_and_b32 v4, 31, v2\nv_lshlrev_b32 v5, 2, v3\nv_xor_b32 v4, v4, v5\nv_lshlrev_b32 v4, 4, v4\nv_lshl_add_u32 v4, v3, 9, v4")
    for j in range(8):
        c=(8*(j&1)+(j>>1))*16 | (4096 if j>=4 else 0)
        A(f"v_xor_b32 v{vKO+j}, {c:#x}, v4")
    B=cfg.blk; lb=B.bit_length()-1
    sHB,sRS=78,79
    A(f"s_lshl_b32 s{sRING}, s{sWAVE}, 15\ns_lshr_b32 s4, s2, 5\ns_lshl_b32 s{sHB}, s4, 25\ns_lshl_b32 s5, s{sWAVE}, {13+lb if cfg.wmaj else 13}\ns_add_u32 s{sHB}, s{sHB}, s5")
    A(f"s_mul_i32 s{sNEXT}, s4, {cfg.rotH}\ns_and_b32 s5, s2, 31\ns_mul_i32 s{sRS}, s5, {cfg.rotS}\ns_lshl_b32 s{sREG}, s5, {15+lb}\ns_add_u32 s{sREG}, s{sREG}, s{sHB}\ns_mov_b32 s{sV0}, s{sNEXT}")
    def taddr(dst, t, base, rs):
        A(f"s_bfe_u32 s4, s{t}, {((5-lb)<<16)|lb:#x}\ns_lshl_b32 s4, s4, {20+lb}\ns_add_u32 s{dst}, s{base}, s4")
        if lb:
            A(f"s_add_u32 s4, s{t}, s{rs}\ns_and_b32 s4, s4, {B-1}\ns_lshl_b32 s4, s4, {13 if cfg.wmaj else 15}\ns_add_u32 s{dst}, s{dst}, s4")
    A("s_waitcnt lgkmcnt(0)")
    srd(SRDK,sK,1<<28)
    INF=cfg.infl if isinstance(cfg.infl,tuple) else (cfg.infl,cfg.infl)
    phase=['K']
    def gate(j, lim):
        if lim is None: return "s_nop 0"
        bi = cfg.binf if phase[0]=='K' else cfg.binfv
        if lim is INF and bi is not None and bi[j%len(bi)]>lim[j%len(lim)]:
            g=lab("bg")
            return f"s_waitcnt vmcnt({bi[j%len(bi)]-1})\ns_cbranch_vccnz {g}\ns_waitcnt vmcnt({lim[j%len(lim)]-1})\n{g}:"
        return f"s_waitcnt vmcnt({lim[j%len(lim)]-1})"
    PINF=cfg.pinfl if isinstance(cfg.pinfl,tuple) else (cfg.pinfl,cfg.pinfl)
    sSB=9; vSD=103
    G=cfg.pg; lg=G.bit_length()-1; NI=4*G
    def claim():
        A(f"s_mov_b32 s{sCL}, 1\ns_atomic_add s{sCL}, s[{sPC}:{sPC+1}], 0 glc")
    def steps(slot, kind, lim=INF, doclaim=False):
        def mk(j):
            def f():
                if kind is None: return
                pj=cfg.order[j]; half=pj>>2; jj=pj&3
                sk=None
                if kind in 'PQ':
                    if kind=='P': sk=lab("ps")
                    if j==0:
                        ok=lab("po")
                        if kind=='Q': pass
                        elif cfg.wolate==1:
                            A(f"s_waitcnt lgkmcnt(0)\ns_mov_b32 s{sSCO+slot}, -1\ns_cmp_lt_u32 s{sCL}, {NI}\ns_cbranch_scc1 {ok}")
                            A(f"v_mov_b32 v{vT}, {DONE}\nds_write_b32 v{vT}, v{vT}\ns_branch {sk}\n{ok}:")
                        else:
                            A(f"s_waitcnt lgkmcnt(0)\ns_mov_b32 s{sSCO+slot}, -1\ns_cmp_ge_u32 s{sCL}, {NI}\ns_cbranch_scc1 {sk}")
                        if cfg.pord: A(f"s_lshr_b32 s5, s{sCL}, 2\ns_and_b32 s6, s{sCL}, 3")
                        else: A(f"s_and_b32 s5, s{sCL}, {G-1}\ns_lshr_b32 s6, s{sCL}, {lg}")
                        A(f"s_lshl_b32 s7, s5, 10\ns_lshl_b32 s8, s6, 8\ns_add_u32 s{sSCO+slot}, s7, s8")
                        A(f"s_and_b32 s7, s2, {31&~(G-1)}\ns_or_b32 s5, s5, s7\ns_mul_i32 s7, s5, {cfg.rotS}\ns_lshl_b32 s5, s5, {15+lb}\ns_add_u32 s5, s5, s{sHB}\ns_add_u32 s6, s6, s{sV0}")
                        taddr(sOFF,6,5,7)
                        if cfg.sdir:
                            A(f"s_add_u32 s4, s{sSCO+slot}, s{sSB}\nbuffer_load_dwordx2 v[{VP+2*slot}:{VP+2*slot+1}], v{vSD}, s[{SRDW}:{SRDW+3}], s4 offen sc1")
                    elif kind=='P':
                        A(f"s_cmp_eq_u32 s{sSCO+slot}, -1\ns_cbranch_scc1 {sk}")
                elif j==0:
                    taddr(sOFF,sNEXT,sREG,sRS)
                    A(f"s_add_u32 s{sNEXT}, s{sNEXT}, 1")
                if (kind in 'PQ' or doclaim) and j==cfg.pclaim: claim()
                vo = vKO+pj if kind=='K' else vVO+half
                sr = SRDK if kind=='K' else SRDV
                A(f"s_add_u32 m0, s{sRING}, {slot*8192+half*4096}\n{gate(j, PINF if kind in 'PQ' else lim)}")
                A(f"buffer_load_dwordx4 v{vo}, s[{sr}:{sr+3}], s{sOFF} offen offset:{jj*1024} nt lds")
                if sk: A(f"{sk}:")
            return f
        return [mk(j) for j in range(8)]
    def weave(st, sl):
        for u in range(8):
            st[u]()
            if u<len(sl): sl[u]()
    for j,f in enumerate(steps(0,'K',None)[:cfg.first]): f()
    NB = cfg.nobar and cfg.pool and not cfg.auxnull
    if NB: A("s_barrier")
    srd(SRDV,sV,1<<28)
    if not cfg.sent: A(f"s_load_dword s{sT8}, s[{sWS}:{sWS+1}], 0")
    A(f"v_lshlrev_b32 v{vVO}, 4, v2\nv_add_u32 v{vVO+1}, 0x1000, v{vVO}")
    A("v_lshrrev_b32 v3, 4, v2\nv_and_b32 v4, 15, v2")
    A("v_and_b32 v5, 3, v4\nv_lshlrev_b32 v5, 2, v5\nv_lshrrev_b32 v6, 2, v4\nv_add_u32 v5, v5, v6")
    A(f"v_xor_b32 v6, v3, v4\nv_lshlrev_b32 v6, 4, v6\nv_lshl_add_u32 v6, v5, 9, v6\nv_add_u32 v6, s{sRING}, v6")
    for q in range(4): A(f"v_xor_b32 v{vKA+q}, {q*64}, v6")
    A(f"v_lshlrev_b32 v6, 4, v4\nv_lshl_add_u32 v6, v3, 9, v6\nv_add_u32 v{vVA}, s{sRING}, v6")
    A(f"s_lshl_b32 s{sCNT}, s{sWAVE}, 11\ns_add_u32 s{sCNT}, s{sCNT}, {SC}")
    A(f"v_lshrrev_b32 v5, 3, v4\nv_lshlrev_b32 v6, 5, v5\nv_lshl_add_u32 v6, v3, 3, v6\nv_add_u32 v{vSA}, s{sCNT}, v6")
    A(f"v_lshlrev_b32 v7, 9, v5\nv_lshl_add_u32 v7, v3, 4, v7\nv_add_u32 v7, {QB}, v7")
    masks(vMASK,4,5,6)
    A(f"v_mov_b32 v{vMAX}, 0xff800000")
    if cfg.binf is not None: A(f"s_lshr_b32 s4, s2, 3\ns_xor_b32 s5, s4, s2\ns_and_b32 s5, s5, 7\ns_cmp_lt_u32 s4, 28\ns_cselect_b32 s5, s5, 1\ns_cmp_eq_u32 s5, 0\ns_cselect_b64 vcc, 1, 0")
    A(f"v_subrev_u32 v{vT}, s{sRING}, v{vVA}\nv_add_u32 v1, 0x1000, v{vT}")
    I0 = INF if cfg.inf0 is None else cfg.inf0
    I1_ = INF if cfg.inf1 is None else cfg.inf1
    for f in steps(0,'K',I0)[cfg.first:]: f()
    for slot in (1,2):
        for f in steps(slot,'K',I0): f()
    C("first four V tiles of this wave go straight to registers (covers the q latency)")
    for i in range(4):
        taddr(sOFF,sV0,sREG,sRS)
        for u in cfg.vorder:
            o=(u>>1)*2048+(u&1)*256
            vo = vT if o<4096 else 1
            A(gate(u,I1_))
            A(f"buffer_load_dwordx4 v[{VP+32*i+4*u}:{VP+32*i+4*u+3}], v{vo}, s[{SRDV}:{SRDV+3}], s{sOFF} offen offset:{o&4095} nt")
        A(f"s_add_u32 s{sV0}, s{sV0}, {1 if i<3 else 25}")
    if not cfg.sent: A(f"s_waitcnt lgkmcnt(0)\ns_add_u32 s{sT8}, s{sT8}, 1\ns_and_b32 s{sT8}, s{sT8}, 0xff\ns_mov_b32 s{sFF}, 0xff\nv_mov_b32 v{vTG}, s{sT8}")
    srd(SRDW,sWS,1<<30)
    if NB: ldswait(QRDY, vT, D, sCNT, 1, 2)
    else: A("s_barrier")
    for jj in range(8): A(f"ds_read_b128 v[{QF+4*jj}:{QF+4*jj+3}], v7 offset:{jj*64}")

    def ktile(slot, kind):
        def s0():
            A("s_waitcnt vmcnt(16)")
            for jj in range(8):
                A(f"ds_read_b128 v[{TF+4*jj}:{TF+4*jj+3}], v{vKA+(jj&3)} offset:{slot*8192+(jj>>2)*256}")
        def mf(r):
            def f():
                if r[0]==0: A("s_waitcnt lgkmcnt(0)")
                for jj in r:
                    c = "0" if jj==0 else f"v[{D}:{D+3}]"
                    A(f"v_mfma_f32_16x16x32_bf16 v[{D}:{D+3}], v[{TF+4*jj}:{TF+4*jj+3}], v[{QF+4*jj}:{QF+4*jj+3}], {c}")
            return f
        def s3():
            nop(5)
            A(f"v_cvt_pk_bf16_f32 v{S2}, v{D}, v{D+1}\nv_cvt_pk_bf16_f32 v{S2+1}, v{D+2}, v{D+3}")
            A(f"v_max3_f32 v{vMAX}, v{vMAX}, v{D}, v{D+1}\nv_max3_f32 v{vMAX}, v{vMAX}, v{D+2}, v{D+3}")
            A(f"ds_write_b64 v{vSA}, v[{S2}:{S2+1}] offset:{slot*64}")
        weave(steps((slot+3)&3,kind),[s0,mf([0,1,2,3]),mf([4,5,6,7]),s3])
    def pcalc(S2=S2):
        A(f"v_lshlrev_b32 v{P}, 16, v{S2}\nv_and_b32 v{P+1}, 0xffff0000, v{S2}\nv_lshlrev_b32 v{P+2}, 16, v{S2+1}\nv_and_b32 v{P+3}, 0xffff0000, v{S2+1}")
        for t in range(4): A(f"v_fma_f32 v{P+t}, v{P+t}, s{sC}, v{vNM}")
        for t in range(4): A(f"v_exp_f32 v{P+t}, v{P+t}")
        nop(1)
        for t in range(4): A(f"v_cvt_pk_bf16_f32 v{P+t}, v{P+t}, v{P+t}")
    def pmask():
        for t in range(4):
            for r in range(4): A(f"v_and_b32 v{AR+4*t+r}, v{P+t}, v{vMASK+r}")
    def pv(src, us):
        for u in us:
            t=u>>1; h=u&1
            A(f"v_mfma_f32_16x16x32_bf16 v[{ACC+4*h}:{ACC+4*h+3}], v[{AR+4*t}:{AR+4*t+3}], v[{src+4*u}:{src+4*u+3}], v[{ACC+4*h}:{ACC+4*h+3}]")
    def vtile(slot, kind, waitn, scoff=None, regs=None, pooled=False, doclaim=False):
        def ywait(extra):
            go=lab("wy")
            A(f"s_waitcnt vmcnt({16+extra})")
            for y in (2,1): A(f"s_cmp_ge_i32 s{sY}, {y}\ns_cbranch_scc1 {go}\ns_waitcnt vmcnt({8*(y-1)+extra})")
            A(f"{go}:")
        def s0():
            if pooled and cfg.sdir:
                if waitn=='y': ywait(8)
                else: A(f"s_waitcnt vmcnt({waitn+8})")
                pcalc(VP+2*slot); return
            if pooled: A(f"v_add_u32 v{vT}, s{sSCO+slot}, v{vSA}\nds_read_b64 v[{S2}:{S2+1}], v{vT}")
            else: A(f"ds_read_b64 v[{S2}:{S2+1}], v{vSA} offset:{slot*64 if scoff is None else scoff}")
            rb = kind=='V' and cfg.binfv is not None and (slot&1)
            if rb: A(f"ds_read_b32 v{D}, v{vBA}")
            A("s_waitcnt lgkmcnt(0)")
            if rb: A(f"v_cmp_ne_u32 vcc, 0, v{D}")
            pcalc()
        def s1():
            if waitn=='y': ywait(0)
            else: A(f"s_waitcnt vmcnt({waitn})")
            for u in range(8):
                A(f"ds_read_b128 v[{TF+4*u}:{TF+4*u+3}], v{vVA} offset:{slot*8192+(u>>1)*2048+(u&1)*256}")
            if kind is not None:
                pmask()
                A("s_waitcnt lgkmcnt(0)")
        sl=[s0,s1,lambda:pv(TF,[0,1,2,3]),lambda:pv(TF,[4,5,6,7])]
        if kind is None:
            s0(); pmask(); s1()
            for u in range(8):
                A(f"s_waitcnt lgkmcnt({7-u})"); pv(TF,[u])
            return
        if regs is not None:
            def r0():
                A(f"ds_read_b64 v[{S2}:{S2+1}], v{vSA} offset:{slot*64}\ns_waitcnt lgkmcnt(0)"); pcalc()
            sl+=[r0,pmask,lambda:pv(regs,[0,1,2,3]),lambda:pv(regs,[4,5,6,7])]
        weave(steps((slot+3)&3,kind,doclaim=doclaim),sl)
        if kind=='P':
            A(f"s_cmp_eq_u32 s{sSCO+((slot+3)&3)}, -1\ns_subb_u32 s{sY}, s{sY}, 0")

    lk=lab("kloop")
    C("K pass: one 16-key tile per period; one gated 1 KiB load between compute slices")
    A(f"s_mov_b32 s{sCNT}, 7")
    A(f"{lk}:")
    for s in range(4): ktile(s,'K')
    A(f"v_add_u32 v{vSA}, 256, v{vSA}")
    A(f"s_sub_u32 s{sCNT}, s{sCNT}, 1\ns_cmp_lg_u32 s{sCNT}, 0\ns_cbranch_scc1 {lk}")
    ktile(0,'K')
    A(f"s_add_u32 s{sNEXT}, s{sNEXT}, 4")
    for s in range(1,4): ktile(s,'V')
    A(f"v_subrev_u32 v{vSA}, {7*256}, v{vSA}")
    for r in range(8): A(f"v_mov_b32 v{ACC+r}, 0")
    xrowred("v_max_f32", vMAX, vT)
    rbf(vMAX,vMAX)
    A(f"v_bfe_u32 v3, v2, 3, 1\nv_lshlrev_b32 v3, 4, v3\nv_add_u32 v3, {MX}, v3")
    A(f"s_lshl_b32 s{sCNT}, s{sWAVE}, 2\nv_add_u32 v4, s{sCNT}, v3")
    if NB:
        A(f"ds_write_b32 v4, v{vMAX}\nv_mov_b32 v3, {KCNT}\nv_mov_b32 v4, 1\ns_mov_b32 s{sC}, {f2u(CEXP):#x}\ns_mov_b64 exec, 1\nds_add_u32 v3, v4\ns_mov_b64 exec, -1")
    else:
        A(f"ds_write_b32 v4, v{vMAX}\ns_waitcnt lgkmcnt(0)\ns_barrier")
        A(f"ds_read_b128 v[{D}:{D+3}], v3\ns_mov_b32 s{sC}, {f2u(CEXP):#x}\ns_waitcnt lgkmcnt(0)")
        A(f"v_max_f32 v{vMAX}, v{D}, v{D+1}\nv_max3_f32 v{vMAX}, v{vMAX}, v{D+2}, v{D+3}")
    A(f"v_mul_f32 v{vNM}, s{sC}, v{vMAX}\nv_sub_f32 v{vNM}, 0, v{vNM}")
    A("v_lshrrev_b32 v6, 5, v2\nv_lshlrev_b32 v6, 10, v6\nv_and_b32 v5, 15, v2\nv_lshl_add_u32 v6, v5, 5, v6\nv_bfe_u32 v5, v2, 4, 1\nv_lshl_add_u32 v6, v5, 4, v6")
    A(f"v_add_u32 v6, s{sRING}, v6")
    A(f"s_lshl_b32 s{sCNT}, s{sWAVE}, 9\nv_lshlrev_b32 v4, 4, v2\nv_add_u32 v4, s{sCNT}, v4\nv_add_u32 v5, 0x10000, v4")
    A(f"s_lshr_b32 s{sCNT}, s{sWAVE}, 1\ns_lshl_b32 s{sCNT}, s{sCNT}, 2\ns_add_u32 s{sCNT}, s{sCNT}, {FB}\nv_mov_b32 v3, s{sCNT}")
    lv=lab("vloop")
    C("V pass")
    phase[0]='V'
    vBA=102
    A(f"v_mov_b32 v{vBA}, {BOOST}\ns_mov_b64 vcc, 0")
    for s in range(4): vtile(s,'V',16,scoff=256+s*64,regs=VP+32*s)
    A(f"v_add_u32 v{vSA}, 512, v{vSA}")
    A(f"s_mov_b32 s{sCNT}, {4 if cfg.pool else 5}")
    A(f"{lv}:")
    for s in range(4): vtile(s,'V',16)
    A(f"v_add_u32 v{vSA}, 256, v{vSA}")
    A(f"s_sub_u32 s{sCNT}, s{sCNT}, 1\ns_cmp_lg_u32 s{sCNT}, 0\ns_cbranch_scc1 {lv}")
    Lpool=f"{pre}_poolcode"
    A(f"{Lpool}:")
    if cfg.pool:
        C("shared pool of the last 4 steps of every split of this head: wait for the global max first")
        lw=lab("rw"); lwd=lab("rwd")
        A(f"v_mov_b32 v{vT}, {RDY}\ns_mov_b32 s{sCNT}, 0")
        A(f"{lw}:\nds_read_b32 v{D}, v{vT}\ns_add_u32 s{sCNT}, s{sCNT}, 1")
        A(f"s_lshr_b32 s4, s2, {lg}\ns_lshl_b32 s5, s4, 2\ns_add_u32 s5, s5, s{sWAVE}\ns_mul_i32 s5, s5, {CSTR}\ns_add_u32 s5, s5, {CNT}\ns_add_u32 s{sPC}, s{sWS}, s5\ns_addc_u32 s{sPC+1}, s{sWS+1}, 0")
        A(f"s_mov_b32 s{sY}, 2")
        if cfg.sdir:
            A(f"s_and_b32 s{sSB}, s2, {255&~(G-1)}\ns_lshl_b32 s{sSB}, s{sSB}, 10\ns_lshl_b32 s5, s{sWAVE}, 6\ns_add_u32 s{sSB}, s{sSB}, s5\ns_add_u32 s{sSB}, s{sSB}, {SBOX}")
            A(f"v_bfe_u32 v{vSD}, v2, 3, 1\nv_lshlrev_b32 v{vSD}, 5, v{vSD}\nv_lshrrev_b32 v{D+1}, 4, v2\nv_lshl_add_u32 v{vSD}, v{D+1}, 3, v{vSD}")
        A(f"s_waitcnt lgkmcnt(0)\nv_readfirstlane_b32 s4, v{D}\ns_cmp_lg_u32 s4, 0\ns_cbranch_scc1 {lwd}")
        A(f"s_sleep 4\ns_cmp_lt_u32 s{sCNT}, {SPIN_LIMIT*16}\ns_cbranch_scc1 {lw}\n{lwd}:")
        vtile(0,'V',16,doclaim=True)
        for s in range(1,4): vtile(s,'P','y')
        C("rescale the accumulators to the global row max")
        if NB:
            A(f"v_lshrrev_b32 v{vT}, 5, v2\nv_lshlrev_b32 v{D+2}, 2, v{vT}\nv_add_u32 v{D+2}, {FB+16}, v{D+2}\nds_read_b32 v{D}, v{D+2}")
            A(f"s_lshl_b32 s4, s{sWAVE}, 2\ns_add_u32 s4, s4, {MX}\nv_lshlrev_b32 v{vT}, 4, v{vT}\nv_add_u32 v{vT}, s4, v{vT}\nds_read_b32 v{D+1}, v{vT}")
        else:
            A(f"v_lshrrev_b32 v{vT}, 5, v2\nv_lshlrev_b32 v{vT}, 2, v{vT}\nv_add_u32 v{vT}, {FB+8}, v{vT}\nds_read_b32 v{D}, v{vT}")
        A(f"v_bfe_u32 v{vT}, v2, 3, 1\nv_lshlrev_b32 v{vSA}, 5, v{vT}\nv_lshlrev_b32 v{vT}, 2, v{vT}\nv_add_u32 v{vT}, {FB+16}, v{vT}\nds_read_b32 v{vNM}, v{vT}")
        A(f"v_lshrrev_b32 v{vT}, 4, v2\nv_lshl_add_u32 v{vSA}, v{vT}, 3, v{vSA}\ns_lshl_b32 s4, s{sWAVE}, 6\ns_add_u32 s4, s4, {WBUF}\nv_add_u32 v{vSA}, s4, v{vSA}")
        A("s_waitcnt lgkmcnt(0)")
        if NB:
            A(f"v_mul_f32 v{D+1}, s{sC}, v{D+1}\nv_add_f32 v{D}, v{D}, v{D+1}\nv_exp_f32 v{D}, v{D}"); nop(1)
        for r in range(8): A(f"v_mul_f32 v{ACC+r}, v{ACC+r}, v{D}")
        lp=lab("ploop"); le=lab("pend")
        if cfg.drain:
            ld=[lab("drain") for _ in range(4)]
            A(f"{lp}:")
            for s in range(4):
                A(f"s_waitcnt lgkmcnt(0)\ns_cmp_ge_u32 s{sCL}, {NI}\ns_cbranch_scc1 {ld[s]}")
                vtile(s,'Q',16,pooled=True)
            A(f"s_branch {lp}")
            for s in range(4):
                A(f"{ld[s]}:")
                for d in range(3):
                    sl=(s+d)&3
                    A(f"s_cmp_eq_u32 s{sSCO+sl}, -1\ns_cbranch_scc1 {le}")
                    vtile(sl,None,'y',pooled=True)
                    if d<2: A(f"s_sub_u32 s{sY}, s{sY}, 1")
                if s<3: A(f"s_branch {le}")
            A(f"{le}:")
        else:
            A(f"{lp}:")
            for s in range(4):
                A(f"s_cmp_eq_u32 s{sSCO+s}, -1\ns_cbranch_scc1 {le}")
                vtile(s,'P','y',pooled=True)
            A(f"s_branch {lp}\n{le}:")
    else:
        vtile(0,'V',16); vtile(1,None,16); vtile(2,None,8); vtile(3,None,0)
    A(f"s_lshl_b32 s{sOFF}, s2, 11\ns_add_u32 s{sOFF}, s{sOFF}, {OBOX}")
    nop(7)
    A(f"ds_write_b128 v6, v[{ACC}:{ACC+3}]\nds_write_b128 v6, v[{ACC+4}:{ACC+7}] offset:512")
    A("s_waitcnt lgkmcnt(0)\ns_barrier")
    A("s_mov_b32 exec_hi, 0")
    A(f"ds_read_b128 v[{TF}:{TF+3}], v4\nds_read_b128 v[{TF+4}:{TF+7}], v4 offset:32768\nds_read_b128 v[{TF+8}:{TF+11}], v5\nds_read_b128 v[{TF+12}:{TF+15}], v5 offset:32768\nds_read_b32 v{TF+16}, v3")
    A("s_waitcnt lgkmcnt(3)")
    for r in range(4): A(f"v_add_f32 v{TF+r}, v{TF+r}, v{TF+4+r}")
    A("s_waitcnt lgkmcnt(1)")
    for r in range(4): A(f"v_add_f32 v{TF+8+r}, v{TF+8+r}, v{TF+12+r}")
    for r in range(4): A(f"v_add_f32 v{TF+r}, v{TF+r}, v{TF+8+r}")
    A("s_waitcnt lgkmcnt(0)")
    for r in range(4): A(f"v_mul_f32 v{TF+r}, v{TF+r}, v{TF+16}")
    for r in range(4):
        if cfg.sent: A(f"v_min_u32 v{TF+r}, -2, v{TF+r}")
        else: A(f"v_bfi_b32 v{TF+r}, s{sFF}, v{vTG}, v{TF+r}")
    if cfg.tdiag: A("s_memrealtime s[82:83]")
    if not cfg.noopub: A(f"buffer_store_dwordx4 v[{TF}:{TF+3}], v4, s[{SRDW}:{SRDW+3}], s{sOFF} offen {cfg.opol}")
    if cfg.tdiag:
        A(f"s_waitcnt vmcnt(0)\ns_memrealtime s[84:85]\ns_waitcnt lgkmcnt(0)\ns_cmp_lg_u32 s{sWAVE}, 0\ns_cbranch_scc1 {Ldone}")
        A(f"s_lshl_b32 s4, s2, 6\ns_add_u32 s4, s4, {STAMP+0x100000:#x}\ns_mov_b64 exec, 1\nv_mov_b32 v1, 0\nv_mov_b32 v{TF}, s82\nv_mov_b32 v{TF+1}, s83\nv_mov_b32 v{TF+2}, s84\nv_mov_b32 v{TF+3}, s85")
        A(f"buffer_store_dwordx4 v[{TF}:{TF+3}], v1, s[{SRDW}:{SRDW+3}], s4 offen")
    A("s_endpgm")

    vL16=3; vWO_=4; vTR=5; vXA=6
    X=8; F=12; T=20
    XF=32; WF=88
    WT=144
    PA=208
    AM=216
    vT8=220; vFX=221; vG1=222; vG2=223; vPS=224; vTO=225; vFM=226; vH=227
    AT=96
    sE,sTAG,sCQ,sO2,sSPIN,sCM,sFF,sA,sB,sNM=60,61,62,63,64,65,78,66,67,71
    A(f"{Laux}:")
    C("================= aux wave: q projection, MLP, hand-offs, output projection =================")
    lend=lab("end")
    if cfg.auxnull:
        A("s_waitcnt lgkmcnt(0)"); srd(SRDW,sWS,1<<30)
        A("s_barrier"); stamp(3); A("s_barrier"); stamp(4); A("s_barrier"); stamp(5); A(f"s_branch {lend}")
    A("s_setprio 3")
    if NB:
        A(f"v_mov_b32 v{X}, 0\nv_mov_b32 v{X+1}, 0\nv_mov_b32 v{X+2}, 0\nv_mov_b32 v{X+3}, 0\nv_mov_b32 v{T}, {RDY}\nds_write_b128 v{T}, v[{X}:{X+3}]")
    A(f"v_lshrrev_b32 v7, 1, v2\nv_and_b32 v{T}, 1, v2\nv_lshlrev_b32 v{T}, 4, v{T}")
    A(f"v_lshl_add_u32 v{vWO_}, v7, 13, v{T}\nv_lshlrev_b32 v{vL16}, 4, v2")
    if cfg.mix:
        A(f"s_and_b32 s4, s2, 7\ns_lshr_b32 s5, s2, 5\ns_add_u32 s5, s5, s4\ns_and_b32 s5, s5, 7\ns_lshl_b32 s5, s5, 2\ns_lshl_b32 s{sCQ}, s4, 5\ns_add_u32 s{sCQ}, s{sCQ}, s5\ns_bfe_u32 s5, s2, 0x20003\ns_add_u32 s{sCQ}, s{sCQ}, s5\ns_lshl_b32 s{sO2}, s{sCQ}, 5")
    else:
        A(f"s_and_b32 s{sCQ}, s2, 7\ns_lshl_b32 s{sCQ}, s{sCQ}, 5\ns_lshr_b32 s{sO2}, s2, 3\ns_add_u32 s{sCQ}, s{sCQ}, s{sO2}\ns_lshl_b32 s{sO2}, s{sCQ}, 5")
    A("s_waitcnt lgkmcnt(0)")
    stamp('karg')
    A(f"s_load_dword s{sE}, s[{sWS}:{sWS+1}], 0")
    srd(SRDA,sX,896)
    A(f"buffer_load_dwordx4 v[{X}:{X+3}], v{vL16}, s[{SRDA}:{SRDA+3}], 0 offen")
    if NB: A("s_barrier")
    srd(SRDK,sWQ,448*4096*2)
    def wdma(sr, step, gate=None):
        for i in range(14):
            if gate is not None: A(f"s_waitcnt vmcnt({gate})")
            A(f"s_mov_b32 m0, {WBUF+i*1024}")
            if i: A(f"s_add_u32 s{sO2}, s{sO2}, {step}")
            else: nop(1)
            A(f"buffer_load_dwordx4 v{vWO_}, s[{sr}:{sr+3}], s{sO2} offen {cfg.cnt} lds")
    if cfg.pfq:
        A(f"s_mul_i32 s5, s2, 14336")
        for i in range(14):
            A(f"buffer_load_dwordx4 v[{WF+4*i}:{WF+4*i+3}], v{vL16}, s[{SRDK}:{SRDK+3}], s5 offen\ns_add_u32 s5, s5, 1024")
        A("s_waitcnt vmcnt(0)")
    if cfg.wqtest==1:
        A(f"v_lshrrev_b32 v{T}, 3, v2\nv_and_b32 v{T+1}, 7, v2\nv_lshlrev_b32 v{T+1}, 4, v{T+1}\nv_lshl_add_u32 v{vWO_}, v{T}, 13, v{T+1}")
        A(f"s_and_b32 s4, s{sCQ}, 3\ns_mul_i32 s4, s4, {112*8192}\ns_lshr_b32 s{sO2}, s{sCQ}, 2\ns_lshl_b32 s{sO2}, s{sO2}, 7\ns_add_u32 s{sO2}, s{sO2}, s4")
        wdma(SRDK,8*8192,cfg.qgate)
    elif cfg.wqtest==2:
        A(f"v_mov_b32 v{vWO_}, v{vL16}\ns_mul_i32 s{sO2}, s2, 14336")
        wdma(SRDK,1024,cfg.qgate)
    elif cfg.wqtest==3:
        A(f"v_mov_b32 v{vWO_}, v{vL16}\ns_and_b32 s4, s2, 7\ns_lshl_b32 s4, s4, 10\ns_lshr_b32 s{sO2}, s2, 3\ns_mul_i32 s{sO2}, s{sO2}, {14*8192}\ns_add_u32 s{sO2}, s{sO2}, s4")
        wdma(SRDK,8192,cfg.qgate)
    elif not cfg.nowq: wdma(SRDK,32*8192,cfg.qgate)
    srd(SRDW,sWS,1<<30)
    A(f"v_lshrrev_b32 v{T}, 4, v2\nv_bfe_u32 v{T+1}, v2, 2, 2\nv_lshl_add_u32 v{T+1}, v{T}, 3, v{T+1}\nv_and_b32 v{T+2}, 3, v2\nv_lshlrev_b32 v{T+2}, 3, v{T+2}\nv_add_u32 v{T+2}, {WBUF}, v{T+2}")
    A(f"v_lshl_add_u32 v{vTR}, v{T+1}, 5, v{T+2}\nv_lshl_add_u32 v{vG1}, v{T+1}, 7, v{T+2}")
    A(f"v_lshlrev_b32 v{T}, 4, v{T}\nv_add_u32 v{vXA}, {XN}, v{T}")
    A("v_cmp_gt_u32 s[74:75], 56, v2")
    C("layernorm (bf16 rounding points as in the reference)")
    stamp('issued')
    A("s_waitcnt vmcnt(14)")
    stamp('xland')
    for r in range(4):
        A(f"v_lshlrev_b32 v{F+2*r}, 16, v{X+r}\nv_and_b32 v{F+2*r+1}, 0xffff0000, v{X+r}")
    A(f"v_add_f32 v{T}, v{F}, v{F+1}\nv_add_f32 v{T+1}, v{F+2}, v{F+3}\nv_add_f32 v{T+2}, v{F+4}, v{F+5}\nv_add_f32 v{T+3}, v{F+6}, v{F+7}")
    A(f"v_add_f32 v{T}, v{T}, v{T+1}\nv_add_f32 v{T+2}, v{T+2}, v{T+3}\nv_add_f32 v{T}, v{T}, v{T+2}")
    rowred("v_add_f32",T,[1,2,4,8]); xrowred("v_add_f32",T,T+1)
    A(f"v_mul_f32 v{T}, {f2u(1.0/448):#x}, v{T}")
    A(f"v_sub_f32 v{T+2}, v{F}, v{T}\nv_mul_f32 v{T+1}, v{T+2}, v{T+2}")
    for r in range(1,8):
        A(f"v_sub_f32 v{T+2}, v{F+r}, v{T}\nv_fmac_f32 v{T+1}, v{T+2}, v{T+2}")
    A(f"v_cndmask_b32 v{T+1}, 0, v{T+1}, s[74:75]")
    rowred("v_add_f32",T+1,[1,2,4,8]); xrowred("v_add_f32",T+1,T+2)
    A(f"v_mul_f32 v{T+1}, {f2u(1.0/448):#x}, v{T+1}")
    rbf(T,T); rbf(T+1,T+1)
    A(f"v_add_f32 v{T+1}, {f2u(1e-5):#x}, v{T+1}"); rbf(T+1,T+1)
    A(f"v_sqrt_f32 v{T+1}, v{T+1}"); nop(1); rbf(T+1,T+1)
    A(f"v_rcp_f32 v{T+2}, v{T+1}")
    for r in range(8): A(f"v_sub_f32 v{F+r}, v{F+r}, v{T}")
    for r in range(4): A(f"v_cvt_pk_bf16_f32 v{X+r}, v{F+2*r}, v{F+2*r+1}")
    for r in range(4): A(f"v_lshlrev_b32 v{F+2*r}, 16, v{X+r}\nv_and_b32 v{F+2*r+1}, 0xffff0000, v{X+r}")
    for r in range(8):
        A(f"v_mul_f32 v{T+3}, v{F+r}, v{T+2}\nv_fma_f32 v{T+4}, -v{T+3}, v{T+1}, v{F+r}\nv_fma_f32 v{F+r}, v{T+4}, v{T+2}, v{T+3}")
    for r in range(4): A(f"v_cvt_pk_bf16_f32 v{X+r}, v{F+2*r}, v{F+2*r+1}")
    A(f"v_add_u32 v{T}, {XN}, v{vL16}\nds_write_b128 v{T}, v[{X}:{X+3}]\ns_waitcnt lgkmcnt(0)")
    for jj in range(14): A(f"ds_read_b128 v[{XF+4*jj}:{XF+4*jj+3}], v{vXA} offset:{jj*64}")
    stamp('lndone')
    A("s_waitcnt vmcnt(0)")
    stamp('wqland')
    for jj in range(14):
        A(f"ds_read_b64_tr_b16 v[{WF+4*jj}:{WF+4*jj+1}], v{vTR} offset:{jj*1024}\nds_read_b64_tr_b16 v[{WF+4*jj+2}:{WF+4*jj+3}], v{vTR} offset:{jj*1024+128}")
    A(f"s_waitcnt lgkmcnt(0)")
    for jj in range(14):
        c="0" if jj==0 else f"v[{T}:{T+3}]"
        A(f"v_mfma_f32_16x16x32_bf16 v[{T}:{T+3}], v[{XF+4*jj}:{XF+4*jj+3}], v[{WF+4*jj}:{WF+4*jj+3}], {c}")
    A(f"s_mul_i32 s{sTAG}, s{sE}, 0x9E3779B1\ns_add_u32 s{sTAG}, s{sTAG}, 0x7F4A7C15")
    A(f"s_add_u32 s{sFF}, s{sE}, 1\ns_and_b32 s{sFF}, s{sFF}, 0xff\nv_mov_b32 v{vT8}, s{sFF}\ns_mov_b32 s{sFF}, 0xff\ns_mov_b32 s{sNM}, 0xffffff00")
    A(f"s_lshl_b32 s{sO2}, s{sCQ}, 6\ns_add_u32 s{sO2}, s{sO2}, {QBOX}\nv_lshlrev_b32 v{T+6}, 3, v7\nv_mov_b32 v{T+5}, s{sTAG}")
    A(f"v_mov_b32_dpp v{T+1}, v{T} quad_perm:[1,1,3,3] {DPP}")
    A(f"v_cvt_pk_bf16_f32 v{T+4}, v{T}, v{T+1}")
    A("s_mov_b64 exec, 0x5555")
    if not cfg.noqx: A(f"buffer_store_dwordx2 v[{T+4}:{T+5}], v{T+6}, s[{SRDW}:{SRDW+3}], s{sO2} offen sc1")
    A("s_mov_b64 exec, -1")
    stamp(2)
    TT1=tt(lambda a,b,t:(a^t)|(b^t)); TT2=tt(lambda a,b,c:(a|b)&c)
    def poll(loads, soff, mode, sleep, fast=0, fthr=None):
        PM=4
        lp=lab("poll"); ld=lab("polld")
        for i,(d,vo,imm,lm) in enumerate(loads):
            if lm is None: A(f"s_mov_b64 s[{PM+2*i}:{PM+2*i+1}], -1")
            else: A(f"s_mov_b32 s{PM+2*i}, {lm&0xffffffff:#x}\ns_mov_b32 s{PM+2*i+1}, {lm>>32:#x}")
        A(f"s_mov_b32 s{sSPIN}, 0\ns_mov_b32 s14, 999")
        A(f"{lp}:")
        for i,(d,vo,imm,lm) in enumerate(loads):
            sk=lab("sk")
            A(f"s_mov_b64 exec, s[{PM+2*i}:{PM+2*i+1}]\ns_cbranch_execz {sk}")
            A(f"buffer_load_dwordx4 v[{d}:{d+3}], v{vo}, s[{SRDW}:{SRDW+3}], s{soff} offen offset:{imm} {cfg.lpol}")
            A(f"{sk}:")
        A(f"s_mov_b64 exec, -1\ns_add_u32 s{sSPIN}, s{sSPIN}, 1")
        if fast and fthr is not None:
            sk=lab("fs")
            A(f"s_cmp_le_u32 s14, {fthr}\ns_cbranch_scc1 {sk}\ns_waitcnt vmcnt(0)\n{sk}:")
        A(f"s_waitcnt vmcnt({fast})")
        for i,(d,vo,imm,lm) in enumerate(loads):
            if mode=='s':
                A(f"v_max3_u32 v{T+i}, v{d}, v{d+1}, v{d+2}\nv_max_u32 v{T+i}, v{T+i}, v{d+3}")
            elif mode=='q':
                A(f"v_xor_b32 v{T+i}, s{sTAG}, v{d+1}\nv_xor_b32 v{T+4+i}, s{sTAG}, v{d+3}\nv_or_b32 v{T+i}, v{T+i}, v{T+4+i}")
            else:
                A(f"v_bitop3_b32 v{T+i}, v{d}, v{d+1}, v{vT8} bitop3:{TT1:#x}\nv_bitop3_b32 v{T+4+i}, v{d+2}, v{d+3}, v{vT8} bitop3:{TT1:#x}")
                A(f"v_bitop3_b32 v{T+i}, v{T+i}, v{T+4+i}, s{sFF} bitop3:{TT2:#x}")
        for i,(d,vo,imm,lm) in enumerate(loads):
            A(("v_cmp_eq_u32 vcc, -1" if mode=='s' else "v_cmp_ne_u32 vcc, 0")+f", v{T+i}\ns_and_b64 s[{PM+2*i}:{PM+2*i+1}], s[{PM+2*i}:{PM+2*i+1}], vcc")
        if len(loads)>1:
            A(f"s_or_b64 s[12:13], s[{PM}:{PM+1}], s[{PM+2}:{PM+3}]")
            for i in range(2,len(loads)): A(f"s_or_b64 s[12:13], s[12:13], s[{PM+2*i}:{PM+2*i+1}]")
        A(f"s_cbranch_scc0 {ld}")
        if fast and fthr is not None:
            A(f"s_bcnt1_i32_b64 s14, s[{PM}:{PM+1}]")
            for i in range(1,len(loads)): A(f"s_bcnt1_i32_b64 s15, s[{PM+2*i}:{PM+2*i+1}]\ns_add_u32 s14, s14, s15")
            if sleep:
                sk=lab("ns")
                A(f"s_cmp_le_u32 s14, {fthr}\ns_cbranch_scc1 {sk}\ns_sleep {sleep}\n{sk}:")
        elif sleep: A(f"s_sleep {sleep}")
        A(f"s_cmp_lt_u32 s{sSPIN}, {SPIN_LIMIT*4}\ns_cbranch_scc1 {lp}")
        A(f"{ld}:")
    A(f"s_lshr_b32 s{sO2}, s2, 5\ns_lshl_b32 s{sO2}, s{sO2}, 11\ns_add_u32 s{sO2}, s{sO2}, {QBOX}")
    def backoff(n):
        if n>0: C("back off before polling another workgroup's data")
        while n>0:
            A(f"s_sleep {min(n,127)}"); n-=127
    backoff(cfg.qdelay)
    if not cfg.noqx: poll([(F,vL16,0,None),(F+4,vL16,1024,None)], sO2, 'q', cfg.qsleep)
    stamp('qrecv')
    if not NB: A(f"v_mov_b32 v{T}, {RDY}\nv_mov_b32 v{T+1}, 0\nds_write2_b32 v{T}, v{T+1}, v{T+1} offset0:0 offset1:4")
    A(f"v_lshlrev_b32 v{T}, 3, v2\nv_add_u32 v{T}, {QB}, v{T}")
    A(f"ds_write2_b32 v{T}, v{F}, v{F+2} offset0:0 offset1:1\nds_write2_b32 v{T}, v{F+4}, v{F+6} offset0:128 offset1:129")
    if NB: A(f"v_mov_b32 v{T}, {QRDY}\nv_mov_b32 v{T+1}, 1\ns_waitcnt lgkmcnt(0)\nds_write_b32 v{T}, v{T+1}")
    else: A("s_waitcnt lgkmcnt(0)\ns_barrier")
    stamp(3)
    if cfg.prio2!=3: A(f"s_setprio {cfg.prio2}")
    if cfg.pool:
        lz=lab("nz")
        A(f"s_and_b32 s4, s2, {G-1}\ns_cbranch_scc1 {lz}")
        A(f"s_lshr_b32 s4, s2, {lg}\ns_mul_i32 s4, s4, {4*CSTR}\ns_add_u32 s4, s4, {CNT}\nv_mul_u32_u24 v{T}, {CSTR}, v2\nv_mov_b32 v{T+1}, 0\ns_mov_b64 exec, 15")
        A(f"buffer_store_dword v{T+1}, v{T}, s[{SRDW}:{SRDW+3}], s4 offen sc1\ns_mov_b64 exec, -1\n{lz}:")
    if cfg.probe is not None and cfg.probe[0]=='g':
        A(f"s_lshl_b32 s4, s2, 2\ns_add_u32 s4, s4, 0x300000\nv_mov_b32 v{T}, 0\nv_mov_b32 v{T+1}, s80\ns_mov_b64 exec, 1\nbuffer_store_dword v{T+1}, v{T}, s[{SRDW}:{SRDW+3}], s4 offen sc1\ns_mov_b64 exec, -1")
    C("roles: wo tile (32 rows a, column half b)")
    A(f"s_bfe_u32 s{sB}, s2, 0x10003\ns_lshr_b32 s{sA}, s2, 4\ns_lshl_b32 s{sA}, s{sA}, 3\ns_and_b32 s{sO2}, s2, 7\ns_add_u32 s{sA}, s{sA}, s{sO2}")
    A(f"v_and_b32 v{T}, 15, v2"); masks(AM,T,T+1,T+2)
    A(f"v_lshrrev_b32 v{T+1}, 4, v2\nv_mul_u32_u24 v{vTO}, 896, v{T+1}\nv_lshl_add_u32 v{vTO}, v{T}, 4, v{vTO}")
    for r in range(8): A(f"v_mov_b32 v{PA+r}, 0")
    def tile_load(sr, gated=True, so=None, pol=None, WT=WT, nt=8):
        if pol is None: pol=cfg.wnt
        for t in range(nt):
            o=sO2 if so is None else so
            if gated and cfg.agate is not None: A(f"s_waitcnt vmcnt({cfg.agate})")
            A(f"buffer_load_dwordx4 v[{WT+8*t}:{WT+8*t+3}], v{vTO}, s[{sr}:{sr+3}], s{o} offen {pol}")
            A("s_mov_b32 exec_lo, 0x0fff0fff\ns_mov_b32 exec_hi, 0x0fff0fff")
            A(f"buffer_load_dwordx4 v[{WT+8*t+4}:{WT+8*t+7}], v{vTO}, s[{sr}:{sr+3}], s{o} offen offset:256 {pol}")
            A(f"s_mov_b64 exec, -1\ns_add_u32 s{o}, s{o}, 3584")
    def project(src, WT=WT, nt=8):
        for t in range(nt+1):
            if t<nt:
                v,ln=src(t)
                for r in range(4): A(f"v_and_b32_dpp v{AT+4*t+r}, v{v}, v{AM+r} row_newbcast:{ln} {DPP}")
            if t>=1:
                tp=t-1
                for cb in range(2):
                    A(f"v_mfma_f32_16x16x32_bf16 v[{PA+4*cb}:{PA+4*cb+3}], v[{AT+4*tp}:{AT+4*tp+3}], v[{WT+8*tp+4*cb}:{WT+8*tp+4*cb+3}], v[{PA+4*cb}:{PA+4*cb+3}]")
    A(f"v_lshrrev_b32 v{T}, 5, v2\nv_lshlrev_b32 v{T}, 9, v{T}\nv_and_b32 v{T+1}, 15, v2\nv_lshl_add_u32 v{T}, v{T+1}, 5, v{T}\nv_bfe_u32 v{T+1}, v2, 4, 1\nv_lshl_add_u32 v{vPS}, v{T+1}, 4, v{T}")
    def rec_store(soff, sent=False, rne=False):
        nop(8)
        for r in range(4): A(f"v_permlane32_swap_b32 v{PA+r}, v{PA+4+r}")
        for r in range(4):
            if sent: A(f"v_min_u32 v{PA+r}, -2, v{PA+r}")
            else:
                if rne: A(f"v_add_u32 v{PA+r}, 0x80, v{PA+r}")
                A(f"v_bfi_b32 v{PA+r}, s{sFF}, v{vT8}, v{PA+r}")
        A("s_mov_b32 exec_hi, 0x0fff0fff")
        A(f"buffer_store_dwordx4 v[{PA}:{PA+3}], v{vPS}, s[{SRDW}:{SRDW+3}], s{soff} offen {cfg.opol}")
        A("s_mov_b32 exec_hi, -1")
    A(f"s_lshl_b32 s{sCQ}, s{sB}, 7\ns_add_u32 s{sCQ}, s{sCQ}, s{sA}\ns_lshl_b32 s{sCQ}, s{sCQ}, 10\ns_add_u32 s{sCQ}, s{sCQ}, {PBOX}")
    if cfg.sent:
        for r in range(4): A(f"v_mov_b32 v{F+r}, -1")
        A(f"s_lshl_b32 s4, s2, 11\ns_add_u32 s4, s4, {OBOX}")
        A(f"buffer_store_dwordx4 v[{F}:{F+3}], v{vL16}, s[{SRDW}:{SRDW+3}], s4 offen {cfg.cpol}\ns_waitcnt vmcnt({cfg.cgate})")
        A(f"buffer_store_dwordx4 v[{F}:{F+3}], v{vL16}, s[{SRDW}:{SRDW+3}], s4 offen offset:1024 {cfg.cpol}\ns_waitcnt vmcnt({cfg.cgate})")
        if cfg.cpol=='': A("s_waitcnt vmcnt(0)\nbuffer_wbl2 sc1\ns_waitcnt vmcnt(0)")
        if cfg.sent2: A(f"s_mov_b64 exec, s[74:75]\nbuffer_store_dwordx4 v[{F}:{F+3}], v{vL16}, s[{SRDW}:{SRDW+3}], s{sCQ} offen sc1\ns_mov_b64 exec, -1")
        nop(2)
    if cfg.pfm and not cfg.mlp2:
        srd(SRDK,sW1,448*1792*2); srd(SRDA,sW2,448*1792*2)
        A(f"s_mul_i32 s5, s2, 7168")
        for i in range(7):
            A(f"s_waitcnt vmcnt({cfg.pfgate})\nbuffer_load_dwordx4 v[{WF+4*i}:{WF+4*i+3}], v{vL16}, s[{SRDK}:{SRDK+3}], s5 offen\ns_add_u32 s5, s5, 1024")
        if cfg.pfm>1:
            A(f"s_mul_i32 s5, s2, 7168")
            for i in range(7):
                A(f"s_waitcnt vmcnt({cfg.pfgate})\nbuffer_load_dwordx4 v[{WF+28+4*i}:{WF+28+4*i+3}], v{vL16}, s[{SRDA}:{SRDA+3}], s5 offen\ns_add_u32 s5, s5, 1024")
        A("s_waitcnt vmcnt(0)")
        backoff(64)
    lnm=lab("nomlp")
    HA=WF; HS=128; sMO=70
    k0=math.sqrt(2/math.pi)
    def gelu_rot(h, bias, dst):
        t1=h+1; t2=h+2
        rbf(h,h)
        A(f"v_lshlrev_b32 v{bias}, 16, v{bias}\nv_add_f32 v{h}, v{h}, v{bias}"); rbf(h,h)
        A(f"v_mul_f32 v{t1}, v{h}, v{h}\nv_mul_f32 v{t1}, v{t1}, v{h}\nv_mov_b32 v{t2}, {f2u(0.044715):#x}\nv_fma_f32 v{t1}, v{t1}, v{t2}, v{h}")
        A(f"v_mul_f32 v{t1}, {f2u(-2*k0*math.log2(math.e)):#x}, v{t1}\nv_exp_f32 v{t1}, v{t1}"); nop(1)
        A(f"v_add_f32 v{t1}, 1.0, v{t1}\nv_rcp_f32 v{t1}, v{t1}"); nop(1)
        A(f"v_mul_f32 v{h}, v{h}, v{t1}\nv_cvt_pk_bf16_f32 v{h}, v{h}, v{h}\nv_mov_b32 v{dst}, v{h}"); nop(2)
        for g in range(1,4): A(f"v_mov_b32_dpp v{dst}, v{h} row_ror:{16-g} row_mask:{1<<g:#x} bank_mask:0xf")
    if cfg.mlp2:
        ls2=lab("st2")
        if cfg.nomlp: A(f"s_branch {lnm}")
        A("s_and_b32 s4, s2, 7\ns_lshr_b32 s5, s2, 5\ns_bfe_u32 s6, s2, 0x20003\ns_and_b32 s7, s5, 3")
        A("s_cmp_gt_u32 s6, s7\ns_subb_u32 s8, s6, 0\ns_lshl_b32 s8, s8, 3\ns_add_u32 s8, s8, s4")
        A("s_cmp_eq_u32 s6, s7\ns_cselect_b32 s8, 24, s8\ns_cselect_b32 s9, s4, s5")
        A(f"s_cmp_lg_u32 s9, s5\ns_cbranch_scc1 {lnm if cfg.fuse else ls2}")
        C("MLP stage 1: 64 rows x 64 columns of w1 -> partial pre-activations")
        A(f"s_mul_i32 s9, s5, 25\ns_add_u32 s8, s8, s9\ns_cmp_ge_u32 s8, 196\ns_cbranch_scc1 {lnm}")
        A(f"s_mul_i32 s9, s8, 2341\ns_lshr_b32 s9, s9, 16\ns_mul_i32 s10, s9, 28\ns_sub_u32 s8, s8, s10")
        A(f"v_lshrrev_b32 v{T}, 3, v2\nv_mul_u32_u24 v{vWO_}, 3584, v{T}\nv_and_b32 v{T}, 7, v2\nv_lshl_add_u32 v{vWO_}, v{T}, 4, v{vWO_}")
        srd(SRDK,sW1,448*1792*2)
        A(f"s_mul_i32 s{sO2}, s9, {64*3584}\ns_lshl_b32 s10, s8, 7\ns_add_u32 s{sO2}, s{sO2}, s10")
        for i in range(8):
            if cfg.mgate is not None: A(f"s_waitcnt vmcnt({cfg.mgate})")
            A(f"s_mov_b32 m0, {WBUF+i*1024}\ns_nop 0")
            if not cfg.now1: A(f"buffer_load_dwordx4 v{vWO_}, s[{SRDK}:{SRDK+3}], s{sO2} offen {cfg.mnt} lds")
            A(f"s_add_u32 s{sO2}, s{sO2}, {8*3584}")
        A(f"s_lshl_b32 s10, s9, 7\nv_add_u32 v{T}, s10, v{vXA}\nds_read_b128 v[{XF}:{XF+3}], v{T}\nds_read_b128 v[{XF+4}:{XF+7}], v{T} offset:64")
        A("s_waitcnt vmcnt(0)")
        for kk in range(2):
            for u in range(4):
                r=WT+16*kk+4*u
                A(f"ds_read_b64_tr_b16 v[{r}:{r+1}], v{vG1} offset:{kk*4096+u*32}\nds_read_b64_tr_b16 v[{r+2}:{r+3}], v{vG1} offset:{kk*4096+u*32+512}")
        A("s_waitcnt lgkmcnt(0)")
        for kk in range(2):
            for u in range(4):
                r=WT+16*kk+4*u; x=XF+4*kk
                c="0" if kk==0 else f"v[{HA+4*u}:{HA+4*u+3}]"
                A(f"v_mfma_f32_16x16x32_bf16 v[{HA+4*u}:{HA+4*u+3}], v[{x}:{x+3}], v[{r}:{r+3}], {c}")
        A(f"s_lshl_b32 s8, s8, 11\ns_lshl_b32 s9, s9, 8\ns_add_u32 s8, s8, s9\ns_add_u32 s8, s8, {HBOX}")
        nop(8)
        for u in range(4): A(f"v_add_u32 v{F+u}, 0x80, v{HA+4*u}\nv_bfi_b32 v{F+u}, s{sFF}, v{vT8}, v{F+u}")
        A(f"s_mov_b64 exec, 0xffff\nbuffer_store_dwordx4 v[{F}:{F+3}], v{vL16}, s[{SRDW}:{SRDW+3}], s8 offen sc1\ns_mov_b64 exec, -1")
        A(f"s_branch {lnm}")
    if cfg.mlp2 and not cfg.fuse:
        A(f"{ls2}:")
        C("MLP stage 2: gelu of 32 hidden units, times 32 rows of w2")
        A(f"s_cmp_gt_u32 s4, s5\ns_subb_u32 s4, s4, 0\ns_mul_i32 s{sCM}, s5, 7\ns_add_u32 s{sCM}, s{sCM}, s4")
        srd(SRDK,sW2,1792*448*2)
        srd(SRDA,sB1,3584)
        A(f"v_and_b32 v{T}, 15, v2\nv_lshlrev_b32 v{T}, 1, v{T}\ns_lshl_b32 s{sO2}, s{sCM}, 6")
        for u in range(2): A(f"buffer_load_ushort v{X+u}, v{T}, s[{SRDA}:{SRDA+3}], s{sO2} offen offset:{32*u}\ns_nop 0")
        W2B=32
        A(f"s_mul_i32 s{sO2}, s{sCM}, {32*896}")
        for t in range(8):
            for bb,base in enumerate((WT,W2B)):
                if cfg.now2: continue
                if cfg.agate is not None: A(f"s_waitcnt vmcnt({cfg.agate})")
                A(f"buffer_load_dwordx4 v[{base+8*t}:{base+8*t+3}], v{vTO}, s[{SRDK}:{SRDK+3}], s{sO2} offen offset:{448*bb} {cfg.mnt}")
                A("s_mov_b32 exec_lo, 0x0fff0fff\ns_mov_b32 exec_hi, 0x0fff0fff")
                A(f"buffer_load_dwordx4 v[{base+8*t+4}:{base+8*t+7}], v{vTO}, s[{SRDK}:{SRDK+3}], s{sO2} offen offset:{448*bb+256} {cfg.mnt}")
                A("s_mov_b64 exec, -1")
            A(f"s_add_u32 s{sO2}, s{sO2}, 3584")
        HG=132
        A(f"s_lshr_b32 s{sO2}, s{sCM}, 1\ns_lshl_b32 s{sO2}, s{sO2}, 11\ns_add_u32 s{sO2}, s{sO2}, {HBOX}")
        for r in range(4): A(f"v_mov_b32 v{HG+4+r}, 0")
        backoff(cfg.hdelay)
        poll([(HG,vL16,0,None),(HG+4,vL16,1024,(1<<48)-1)], sO2, 't', 64)
        for r in range(8): A(f"v_and_b32 v{HG+r}, s{sNM}, v{HG+r}")
        for r in range(4): A(f"v_add_f32 v{HG+r}, v{HG+r}, v{HG+4+r}")
        A(f"s_bitcmp1_b32 s{sCM}, 0\ns_cselect_b64 vcc, -1, 0"); nop(1)
        A(f"v_cndmask_b32 v{F}, v{HG}, v{HG+2}, vcc\nv_cndmask_b32 v{F+4}, v{HG+1}, v{HG+3}, vcc")
        xrowred("v_add_f32",F,T); xrowred("v_add_f32",F+4,T)
        gelu_rot(F,X,HS); gelu_rot(F+4,X+1,HS+1)
        nop(2)
        for bb,base in enumerate((WT,W2B)):
            project(lambda t:(HS+(t>>2), 4*(t&3)), base)
            A(f"s_lshl_b32 s4, s{sCM}, 10\ns_add_u32 s4, s4, {MBOX+bb*65536}")
            rec_store(4, rne=True)
            nop(2)
            for r in range(8): A(f"v_mov_b32 v{PA+r}, 0")
    if not cfg.mlp2:
        A(f"s_lshr_b32 s{sCM}, s2, 3\ns_xor_b32 s4, s{sCM}, s2\ns_and_b32 s4, s4, 7\ns_cbranch_scc1 {lnm}")
        A(f"s_cmp_ge_u32 s{sCM}, {0 if cfg.nomlp else 28}\ns_cbranch_scc1 {lnm}")
        A(f"v_lshrrev_b32 v{T}, 3, v2\nv_mul_u32_u24 v{vWO_}, 3584, v{T}\nv_and_b32 v{T}, 7, v2\nv_lshl_add_u32 v{vWO_}, v{T}, 4, v{vWO_}")
        srd(SRDK,sW1,448*1792*2)
        srd(SRDA,sB1,3584)
        A(f"v_and_b32 v{T}, 15, v2\nv_lshlrev_b32 v{T}, 1, v{T}\ns_lshl_b32 s{sO2}, s{sCM}, 7")
        for u in range(4): A(f"buffer_load_ushort v{F+u}, v{T}, s[{SRDA}:{SRDA+3}], s{sO2} offen offset:{32*u}\ns_nop 0")
        for ps in range(4):
            nk = 4 if ps<3 else 2
            for i in range(4*nk):
                if cfg.mgate is not None: A(f"s_waitcnt vmcnt({cfg.mgate})")
                A(f"s_mov_b32 m0, {WBUF+i*1024}\ns_nop 0")
                if not cfg.now1: A(f"buffer_load_dwordx4 v{vWO_}, s[{SRDK}:{SRDK+3}], s{sO2} offen {cfg.mnt} lds")
                A(f"s_add_u32 s{sO2}, s{sO2}, {8*3584}")
            A("s_waitcnt vmcnt(0)")
            for kk in range(nk):
                for u in range(4):
                    r=WT+16*kk+4*u
                    A(f"ds_read_b64_tr_b16 v[{r}:{r+1}], v{vG1} offset:{kk*4096+u*32}\nds_read_b64_tr_b16 v[{r+2}:{r+3}], v{vG1} offset:{kk*4096+u*32+512}")
            A("s_waitcnt lgkmcnt(0)")
            for kk in range(nk):
                for u in range(4):
                    r=WT+16*kk+4*u; x=XF+4*(4*ps+kk)
                    c="0" if (ps==0 and kk==0) else f"v[{HA+4*u}:{HA+4*u+3}]"
                    A(f"v_mfma_f32_16x16x32_bf16 v[{HA+4*u}:{HA+4*u+3}], v[{x}:{x+3}], v[{r}:{r+3}], {c}")
        nop(8)
        k0=math.sqrt(2/math.pi)
        for u in range(4):
            h=HA+4*u; t1=h+1; t2=h+2
            rbf(h,h)
            A(f"v_lshlrev_b32 v{F+u}, 16, v{F+u}\nv_add_f32 v{h}, v{h}, v{F+u}"); rbf(h,h)
            A(f"v_mul_f32 v{t1}, v{h}, v{h}\nv_mul_f32 v{t1}, v{t1}, v{h}\nv_mov_b32 v{t2}, {f2u(0.044715):#x}\nv_fma_f32 v{t1}, v{t1}, v{t2}, v{h}")
            A(f"v_mul_f32 v{t1}, {f2u(-2*k0*math.log2(math.e)):#x}, v{t1}\nv_exp_f32 v{t1}, v{t1}"); nop(1)
            A(f"v_add_f32 v{t1}, 1.0, v{t1}\nv_rcp_f32 v{t1}, v{t1}"); nop(1)
            A(f"v_mul_f32 v{h}, v{h}, v{t1}\nv_cvt_pk_bf16_f32 v{h}, v{h}, v{h}\nv_mov_b32 v{HS+u}, v{h}"); nop(2)
            for g in range(1,4): A(f"v_mov_b32_dpp v{HS+u}, v{h} row_ror:{16-g} row_mask:{1<<g:#x} bank_mask:0xf")
        srd(SRDK,sW2,1792*448*2)
        for bb in range(2):
            A(f"s_mul_i32 s{sO2}, s{sCM}, {64*896}\ns_add_u32 s{sO2}, s{sO2}, {448*bb}")
            for rb in range(2):
                if not cfg.now2: tile_load(SRDK,pol=cfg.mnt)
                A("s_waitcnt vmcnt(0)")
                project(lambda t:(HS+2*rb+(t>>2), 4*(t&3)))
                nop(4)
            A(f"s_lshl_b32 s4, s{sCM}, 10\ns_add_u32 s4, s4, {MBOX+bb*32768}")
            rec_store(4)
            nop(2)
            for r in range(8): A(f"v_mov_b32 v{PA+r}, 0")
    stamp('mlpdone')
    A(f"{lnm}:")
    FC=cfg.fc; FC0=256-FC
    stamp('wodone')
    if NB: ldswait(KCNT, T, T+1, sSPIN, 4, 16)
    else: A("s_barrier")
    stamp(4)
    C("row sums of this split; exchange (max, sum) between the 32 splits of the kv head")
    A(f"s_mov_b32 s{sCM}, {f2u(CEXP):#x}")
    if cfg.binfv is not None:
        C("how many splits of this head are already past their K pass (late splits keep one more load in flight)")
        A(f"s_lshr_b32 s4, s2, 5\ns_lshl_b32 s4, s4, 9\ns_add_u32 s4, s4, {MLBOX}\ns_mov_b32 exec_hi, 0")
        A(f"buffer_load_dwordx4 v[{WF}:{WF+3}], v{vL16}, s[{SRDW}:{SRDW+3}], s4 offen sc1\ns_mov_b32 exec_hi, -1")
    if cfg.pool:
        C("publish the scores of the pooled tiles")
        A(f"v_bfe_u32 v{T}, v2, 2, 2\nv_lshlrev_b32 v{T}, 11, v{T}\nv_lshrrev_b32 v{T+1}, 4, v2\nv_lshl_add_u32 v{T}, v{T+1}, 6, v{T}\nv_and_b32 v{T+1}, 3, v2\nv_lshl_add_u32 v{T}, v{T+1}, 4, v{T}\nv_add_u32 v{T}, {SC+28*64}, v{T}")
        A(f"ds_read_b128 v[{X}:{X+3}], v{T}\ns_lshl_b32 s4, s2, 10\ns_add_u32 s4, s4, {SBOX}\ns_waitcnt lgkmcnt(0)")
        if not cfg.nosbw: A(f"buffer_store_dwordx4 v[{X}:{X+3}], v{vL16}, s[{SRDW}:{SRDW+3}], s4 offen sc1")
    A(f"v_and_b32 v{T}, 1, v2\nv_lshlrev_b32 v{T+1}, 4, v{T}\nv_add_u32 v{T+1}, {MX}, v{T+1}\nv_lshlrev_b32 v{T+2}, 5, v2\nv_add_u32 v{T+2}, {SC}, v{T+2}")
    A(f"ds_read_b128 v[{F}:{F+3}], v{T+1}")
    for w in range(4):
        A(f"ds_read_b128 v[{XF+8*w}:{XF+8*w+3}], v{T+2} offset:{w*2048}\nds_read_b128 v[{XF+8*w+4}:{XF+8*w+7}], v{T+2} offset:{w*2048+16}")
    A("s_waitcnt lgkmcnt(0)")
    A(f"v_max_f32 v{F}, v{F}, v{F+1}\nv_max3_f32 v{F}, v{F}, v{F+2}, v{F+3}\nv_mul_f32 v{F+4}, s{sCM}, v{F}\nv_sub_f32 v{F+4}, 0, v{F+4}")
    A(f"v_mov_b32 v{F+1}, 0\nv_mov_b32 v{F+5}, 0")
    for r in range(32):
        A(f"v_lshlrev_b32 v{T+3}, 16, v{XF+r}\nv_and_b32 v{T+4}, 0xffff0000, v{XF+r}")
        A(f"v_fma_f32 v{T+3}, v{T+3}, s{sCM}, v{F+4}\nv_fma_f32 v{T+4}, v{T+4}, s{sCM}, v{F+4}")
        A(f"v_exp_f32 v{T+3}, v{T+3}\nv_exp_f32 v{T+4}, v{T+4}"); nop(1)
        A(f"v_add_f32 v{F+1}, v{F+1}, v{T+3}\nv_add_f32 v{F+5}, v{F+5}, v{T+4}")
    A(f"v_add_f32 v{F+1}, v{F+1}, v{F+5}")
    rowred("v_add_f32",F+1,[2,4,8]); xrowred("v_add_f32",F+1,T+3)
    nop(2)
    A(f"v_mov_b32_dpp v{F+2}, v{F} quad_perm:[1,1,3,3] {DPP}\nv_mov_b32_dpp v{F+3}, v{F+1} quad_perm:[1,1,3,3] {DPP}")
    A(f"v_mov_b32 v{F+6}, v{F}")
    for r in range(4): A(f"v_bfi_b32 v{F+r}, s{sFF}, v{vT8}, v{F+r}")
    if cfg.probe is not None and cfg.probe[0]=='x':
        A(f"s_getreg_b32 s4, hwreg(HW_REG_XCC_ID)\ns_and_b32 s4, s4, 15\ns_lshl_b32 s4, s4, 8\nv_or_b32 v{F}, s4, v{F}")
    A(f"s_lshl_b32 s{sO2}, s2, 4\ns_add_u32 s{sO2}, s{sO2}, {MLBOX}\nv_mov_b32 v{T}, 0\ns_mov_b64 exec, 1\ns_waitcnt vmcnt(0)")
    if not cfg.noml: A(f"buffer_store_dwordx4 v[{F}:{F+3}], v{T}, s[{SRDW}:{SRDW+3}], s{sO2} offen sc1")
    A("s_mov_b64 exec, -1")
    if cfg.binfv is not None:
        A(f"v_bitop3_b32 v{T}, v{WF}, v{WF+1}, v{vT8} bitop3:{TT1:#x}\nv_bitop3_b32 v{T+1}, v{WF+2}, v{WF+3}, v{vT8} bitop3:{TT1:#x}\nv_bitop3_b32 v{T}, v{T}, v{T+1}, s{sFF} bitop3:{TT2:#x}")
        A(f"v_cmp_eq_u32 vcc, 0, v{T}\ns_bcnt1_i32_b32 s4, vcc_lo\ns_cmp_ge_u32 s4, {cfg.brank}\ns_cselect_b32 s4, 1, 0\nv_mov_b32 v{T}, {BOOST}\nv_mov_b32 v{T+1}, s4\nds_write_b32 v{T}, v{T+1}")
    srd(SRDK,sWO,4096*448*2)
    A(f"s_mul_i32 s{sO2}, s{sA}, {32*896}\ns_mul_i32 s{sSPIN}, s{sB}, 448\ns_add_u32 s{sO2}, s{sO2}, s{sSPIN}")
    LATE = cfg.wolate and cfg.pool
    if not cfg.nowo and not LATE: tile_load(SRDK)
    FC=cfg.fc
    lnf=lab("nofin")
    FC0=256-FC
    if FC==56:
        A(f"v_lshrrev_b32 v{T}, 4, v2\nv_and_b32 v{T+1}, 1, v2\nv_lshl_add_u32 v{T}, v{T+1}, 2, v{T}\nv_lshlrev_b32 v{vG2}, 1, v{T}")
        A(f"s_sub_u32 s{sO2}, s2, {FC0}\ns_lshl_b32 s{sO2}, s{sO2}, 4")
    else:
        A(f"v_lshrrev_b32 v{T}, 4, v2\nv_lshlrev_b32 v{vG2}, 1, v{T}")
        A(f"s_sub_u32 s{sO2}, s2, {FC0}\ns_lshl_b32 s{sO2}, s{sO2}, 3")
    A(f"v_add_u32 v{vG2}, s{sO2}, v{vG2}")
    A(f"s_cmp_lt_u32 s2, {FC0}\ns_cbranch_scc1 {lnf}")
    srd(SRDA,sX,896)
    A(f"buffer_load_ushort v{vFX}, v{vG2}, s[{SRDA}:{SRDA+3}], 0 offen")
    srd(SRDK,sB2,896)
    A(f"buffer_load_ushort v{T}, v{vG2}, s[{SRDK}:{SRDK+3}], 0 offen")
    A(f"s_waitcnt vmcnt(0)\nv_lshlrev_b32 v{vFX}, 16, v{vFX}\nv_lshlrev_b32 v{vFM}, 16, v{T}")
    if not cfg.mimic or cfg.fuse: A(f"v_add_f32 v{vFX}, v{vFX}, v{vFM}")
    A(f"{lnf}:")
    backoff(cfg.mldelay)
    I1=XF
    A(f"s_lshr_b32 s{sO2}, s2, 5\ns_lshl_b32 s{sO2}, s{sO2}, 9\ns_add_u32 s{sO2}, s{sO2}, {MLBOX}\nv_lshlrev_b32 v{vWO_}, 4, v7")
    if not cfg.noml: poll([(I1,vWO_,0,None)], sO2, 't', cfg.mlsleep)
    if cfg.probe is not None and cfg.probe[0]=='x':
        A(f"v_bfe_u32 v{T}, v{I1}, 8, 4\nv_mov_b32 v{T+1}, v{T}"); nop(2)
        A(f"v_permlane16_swap_b32 v{T}, v{T+1}\nv_cmp_ne_u32 vcc, v{T}, v{T+1}\ns_bcnt1_i32_b64 s79, vcc")
    A(f"v_and_b32 v{T}, 1, v2\nv_cmp_eq_u32 vcc, 1, v{T}"); nop(2)
    A(f"v_cndmask_b32 v{I1}, v{I1}, v{I1+2}, vcc\nv_cndmask_b32 v{I1+1}, v{I1+1}, v{I1+3}, vcc\nv_and_b32 v{I1}, 0xffff0000, v{I1}\nv_and_b32 v{I1+1}, s{sNM}, v{I1+1}\nv_mov_b32 v{T+1}, v{I1}")
    rowred("v_max_f32",T+1,[2,4,8]); xrowred("v_max_f32",T+1,T+2)
    A(f"v_sub_f32 v{T+2}, v{I1}, v{T+1}\nv_sub_f32 v{T+3}, v{F+6}, v{T+1}\nv_mul_f32 v{T+2}, s{sCM}, v{T+2}\nv_mul_f32 v{T+3}, s{sCM}, v{T+3}")
    A(f"v_exp_f32 v{T+2}, v{T+2}\nv_exp_f32 v{T+3}, v{T+3}"); nop(1)
    A(f"v_mul_f32 v{T+2}, v{T+2}, v{I1+1}")
    rowred("v_add_f32",T+2,[2,4,8]); xrowred("v_add_f32",T+2,T+4)
    A(f"v_rcp_f32 v{T+4}, v{T+2}"); nop(1)
    A(f"v_fma_f32 v{T+5}, -v{T+2}, v{T+4}, 1.0\nv_fma_f32 v{T+4}, v{T+5}, v{T+4}, v{T+4}")
    A(f"v_lshlrev_b32 v{T}, 2, v{T}\nv_add_u32 v{T}, {FB}, v{T}")
    if cfg.pool:
        A(f"v_mul_f32 v{T+1}, s{sCM}, v{T+1}\nv_sub_f32 v{T+1}, 0, v{T+1}")
        A(f"ds_write_b32 v{T}, v{T+4}\nds_write_b32 v{T}, v{T+3} offset:8\nds_write_b32 v{T}, v{T+1} offset:16")
        A(f"s_and_b32 s4, s2, 0xf8\ns_lshl_b32 s4, s4, 10\ns_add_u32 s4, s4, {SBOX}")
        for k in range(8):
            if k==4: A("s_add_u32 s4, s4, 4096")
            if not cfg.nosbr and not cfg.sdir: A(f"s_waitcnt vmcnt(1)\nbuffer_load_dwordx4 v[{I1+4*k}:{I1+4*k+3}], v{vL16}, s[{SRDW}:{SRDW+3}], s4 offen offset:{(k&3)*1024} sc1")
        A(f"v_add_u32 v{T}, {WBUF}, v{vL16}\ns_waitcnt vmcnt(0)")
        if not cfg.sdir:
            for k in range(8): A(f"ds_write_b128 v{T}, v[{I1+4*k}:{I1+4*k+3}] offset:{k*1024}")
        A(f"v_mov_b32 v{T}, {RDY}\nv_mov_b32 v{T+1}, 1\ns_waitcnt lgkmcnt(0)\nds_write_b32 v{T}, v{T+1}")
        stamp('rdy')
    else:
        A(f"v_mul_f32 v{T+3}, v{T+3}, v{T+4}\nds_write_b32 v{T}, v{T+3}")
    half=FC//2
    sH2=68
    A(f"s_sub_u32 s{sSPIN}, s2, {FC0}\ns_cmp_ge_u32 s{sSPIN}, {half}\ns_cselect_b32 s{sH2}, {128*1024-896}, 0\ns_cselect_b32 s{sO2}, {(64 if cfg.mlp2 else 32)*1024-896}, 0\ns_mul_i32 s{sSPIN}, s{sSPIN}, {1792//FC}")
    A(f"s_add_u32 s{sH2}, s{sH2}, s{sSPIN}\ns_add_u32 s{sH2}, s{sH2}, {PBOX}\ns_add_u32 s{sO2}, s{sO2}, s{sSPIN}\ns_add_u32 s{sO2}, s{sO2}, {MBOX}")
    assert FC==56
    A(f"v_lshlrev_b32 v{vH}, 10, v7\nv_and_b32 v{T}, 1, v2\nv_lshl_add_u32 v{vH}, v{T}, 4, v{vH}")
    for k in range(1,4): A(f"v_add_u32 v{vH+k}, {k*32768}, v{vH}")
    if cfg.fuse:
        C("MLP stage 2: gelu of this tile's 16 hidden units (their w2 rows join the output projection)")
        lg=lab("noh"); HG=132
        A(f"v_mov_b32 v{HS}, 0\ns_cmp_ge_u32 s{sA}, {0 if cfg.nomlp else 112}\ns_cbranch_scc1 {lg}")
        srd(SRDA,sB1,3584)
        A(f"v_and_b32 v{T}, 15, v2\nv_lshlrev_b32 v{T}, 1, v{T}\ns_lshl_b32 s69, s{sA}, 5")
        A(f"buffer_load_ushort v{X}, v{T}, s[{SRDA}:{SRDA+3}], s69 offen")
        A(f"s_lshr_b32 s69, s{sA}, 2\ns_lshl_b32 s69, s69, 11\ns_add_u32 s69, s69, {HBOX}")
        for r in range(4): A(f"v_mov_b32 v{HG+4+r}, 0")
        poll([(HG,vL16,0,None),(HG+4,vL16,1024,(1<<48)-1)], 69, 't', 64)
        for r in range(8): A(f"v_and_b32 v{HG+r}, s{sNM}, v{HG+r}")
        for r in range(4): A(f"v_add_f32 v{HG+r}, v{HG+r}, v{HG+4+r}")
        A(f"s_bitcmp1_b32 s{sA}, 1\ns_cselect_b64 vcc, -1, 0"); nop(1)
        A(f"v_cndmask_b32 v{HG}, v{HG}, v{HG+2}, vcc\nv_cndmask_b32 v{HG+1}, v{HG+1}, v{HG+3}, vcc")
        A(f"s_bitcmp1_b32 s{sA}, 0\ns_cselect_b64 vcc, -1, 0"); nop(1)
        A(f"v_cndmask_b32 v{F}, v{HG}, v{HG+1}, vcc")
        xrowred("v_add_f32",F,T)
        gelu_rot(F,X,HS)
        A(f"{lg}:")
    if cfg.mimic and not cfg.nomlp and not cfg.fuse:
        lg=lab("nomg")
        A(f"s_cmp_lt_u32 s2, {FC0}\ns_cbranch_scc1 {lg}")
        if cfg.sent2:
            A(f"s_mov_b32 s69, {MLBOX}")
            poll([(I1+4*k,vL16,1024*k,None) for k in range(4)], 69, 't', 64)
        if cfg.mlp2:
            for r in range(4): A(f"v_mov_b32 v{I1+4+r}, 0")
            poll([(I1,vH,0,None),(I1+4,vH+1,0,(1<<48)-1)], sO2, 't', 64)
            for r in range(8): A(f"v_and_b32 v{I1+r}, s{sNM}, v{I1+r}")
            for r in range(4): A(f"v_add_f32 v{I1+r}, v{I1+r}, v{I1+4+r}")
        else:
            for r in range(4): A(f"v_mov_b32 v{I1+r}, 0")
            poll([(I1,vH,0,(1<<56)-1)], sO2, 't', 64)
            for r in range(4): A(f"v_and_b32 v{I1+r}, s{sNM}, v{I1+r}")
        tred4(I1); rowred("v_add_f32",I1,[2,4,8])
        rbf(I1,I1)
        A(f"v_add_f32 v{vFM}, v{vFM}, v{I1}"); rbf(vFM,vFM)
        A(f"{lg}:")
    srd(SRDA,sOUT,896)
    A(f"v_bfe_u32 v{T}, v2, 3, 2\nv_lshlrev_b32 v{T}, 14, v{T}\nv_lshrrev_b32 v{T+1}, 5, v2\nv_lshl_add_u32 v{T}, v{T+1}, 11, v{T}\nv_and_b32 v{T+1}, 7, v2\nv_lshl_add_u32 v{vG1}, v{T+1}, 4, v{T}")
    for k in range(1,4): A(f"v_add_u32 v{X+k}, {k*4096}, v{vG1}")
    A(f"s_lshr_b32 s{sO2}, s2, 5\ns_lshl_b32 s{sO2}, s{sO2}, 16\ns_and_b32 s{sSPIN}, s{sA}, 15\ns_lshl_b32 s{sSPIN}, s{sSPIN}, 7\ns_add_u32 s{sO2}, s{sO2}, s{sSPIN}\ns_add_u32 s{sO2}, s{sO2}, {OBOX}")
    if cfg.warm:
        lh=lab("pc")
        A(f"s_getpc_b64 s[4:5]\n{lh}:\nv_lshlrev_b32 v{T}, 6, v2")
        A(f"v_min_u32 v{T+1}, {Ldone}-{lh}, v{T}\nglobal_load_dword v{T+1}, v{T+1}, s[4:5]")
        A(f"s_add_u32 s6, s4, {Lpool}-{lh}\ns_addc_u32 s7, s5, -1")
        for k in range(cfg.warm):
            A(f"global_load_dword v{T+2+k}, v{T}, s[6:7]\ns_add_u32 s6, s6, 4096\ns_addc_u32 s7, s7, 0")
    if cfg.touch is not None:
        if not cfg.sent:
            A(f"s_lshl_b32 s4, s2, 11\ns_add_u32 s4, s4, {OBOX}")
            A(f"buffer_load_dwordx4 v[{I1}:{I1+3}], v{vL16}, s[{SRDW}:{SRDW+3}], s4 offen {cfg.touch}\ns_nop 0")
            A(f"buffer_load_dwordx4 v[{I1+4}:{I1+7}], v{vL16}, s[{SRDW}:{SRDW+3}], s4 offen offset:1024 {cfg.touch}\ns_nop 0")
        if not cfg.sent2:
            A(f"buffer_load_dwordx4 v[{I1+8}:{I1+11}], v{vL16}, s[{SRDW}:{SRDW+3}], s{sCQ} offen {cfg.touch}")
        A("s_waitcnt vmcnt(0)")
    if LATE:
        srd(SRDK,sWO,4096*448*2)
        A(f"s_mul_i32 s69, s{sA}, {32*896}\ns_mul_i32 s4, s{sB}, 448\ns_add_u32 s69, s69, s4")
        lw=lab("dw"); lwd=lab("dwd")
    if LATE and cfg.wolate==2:
        if cfg.fuse:
            srd(SRDV,sW2,1792*448*2)
            A(f"s_mul_i32 s70, s{sA}, {16*896}\ns_add_u32 s70, s70, s4")
        A("s_waitcnt vmcnt(0) lgkmcnt(0)\ns_barrier")
        stamp(5)
        if cfg.fuse: tile_load(SRDV, gated=False, so=70, WT=64, nt=4)
        if not cfg.nowo: tile_load(SRDK, gated=False, so=69)
    elif LATE:
        A(f"v_mov_b32 v{T}, {DONE}\ns_mov_b32 s{sSPIN}, 0")
        A(f"{lw}:\nds_read_b32 v{T+1}, v{T}\ns_add_u32 s{sSPIN}, s{sSPIN}, 1\ns_waitcnt lgkmcnt(0)\nv_readfirstlane_b32 s4, v{T+1}\ns_cmp_lg_u32 s4, 0\ns_cbranch_scc1 {lwd}")
        A(f"s_sleep 2\ns_cmp_lt_u32 s{sSPIN}, {SPIN_LIMIT*64}\ns_cbranch_scc1 {lw}\n{lwd}:")
        backoff(cfg.wodelay)
        tile_load(SRDK, gated=False, so=69)
        A("s_barrier")
    else:
        A("s_waitcnt vmcnt(0) lgkmcnt(0)\ns_barrier")
    if cfg.wolate!=2: stamp(5)
    if cfg.notail: A(f"s_branch {lend}")
    R=F
    def sum16(I, sent):
        assert not (cfg.fast1 or cfg.fast2)
        if not sent:
            for r in range(16): A(f"v_and_b32 v{I+r}, s{sNM}, v{I+r}")
        for r in range(4): A(f"v_add_f32 v{R+r}, v{I+r}, v{I+4+r}\nv_add_f32 v{R+4+r}, v{I+8+r}, v{I+12+r}")
        for r in range(4): A(f"v_add_f32 v{R+r}, v{R+r}, v{R+4+r}")
        tred4(R)
    C("hop 1: gather the 32 normalised partial outputs of this tile's 32 dims, project with wo")
    if cfg.fuse:
        A("s_waitcnt vmcnt(16)")
        project(lambda t:(HS,4*t), 64, 4)
    elif cfg.wowait is not None: A(f"s_waitcnt vmcnt({cfg.wowait})")
    backoff(cfg.h1delay)
    poll([(I1,vG1,0,None),(I1+4,X+1,0,None),(I1+8,X+2,0,None),(I1+12,X+3,0,None)], sO2, 's' if cfg.sent else 't', cfg.sleep1, cfg.fast1, cfg.fthr)
    stamp(6)
    if cfg.tdiag: A(f"s_mov_b32 s95, s{sSPIN}")
    sum16(I1,cfg.sent); rowred("v_add_f32",R,[8])
    A(f"v_cvt_pk_bf16_f32 v{R}, v{R}, v{R}"); nop(2)
    project(lambda t:(R,t))
    rec_store(sCQ, cfg.sent2)
    stamp('rec')
    A(f"s_cmp_lt_u32 s2, {FC0}\ns_cbranch_scc1 {lend}")
    C("hop 2: 56 workgroups sum the 128 projection partials of 8 output columns each")
    I2=XF+16
    if cfg.ackw: A("s_waitcnt vmcnt(0)")
    backoff(cfg.h2delay)
    poll([(I2+4*k,vH+k,0,None) for k in range(4)], sH2, 's' if cfg.sent2 else 't', cfg.sleep2, cfg.fast2, None)
    stamp('h2')
    sum16(I2,cfg.sent2); rowred("v_add_f32",R,[2,4,8])
    if cfg.mimic and not cfg.fuse:
        rbf(R,R)
        A(f"v_add_f32 v{R}, v{vFX}, v{R}"); rbf(R,R)
        A(f"v_add_f32 v{R}, v{R}, v{vFM}\nv_cvt_pk_bf16_f32 v{R}, v{R}, v{R}")
    else:
        if cfg.tolp is not None:
            A(f"s_cmp_eq_u32 s2, 200\ns_cselect_b32 s4, {f2u(cfg.tolp):#x}, 0\nv_add_f32 v{R}, s4, v{R}")
        A(f"v_add_f32 v{R}, v{vFX}, v{R}\nv_cvt_pk_bf16_f32 v{R}, v{R}, v{R}")
    A(f"s_mov_b32 exec_lo, 0x00030003\ns_mov_b32 exec_hi, 0x00030003")
    A(f"buffer_store_short v{R}, v{vG2}, s[{SRDA}:{SRDA+3}], 0 offen")
    C("advance the hand-off epoch (every workgroup has read it long ago)")
    A(f"s_cmp_lg_u32 s2, 255\ns_cbranch_scc1 {lend}")
    A(f"s_mov_b64 exec, 1\ns_add_u32 s{sE}, s{sE}, 1\nv_mov_b32 v{T+1}, s{sE}\nv_mov_b32 v{T+2}, 0")
    A(f"buffer_store_dword v{T+1}, v{T+2}, s[{SRDW}:{SRDW+3}], 0 offen sc1")
    if cfg.probe is not None:
        lx=lab("px"); ly=lab("py")
        if cfg.probe[0]=='g':
            A(f"s_mov_b64 exec, -1\ns_mov_b32 s4, 0x300000\nbuffer_load_dwordx4 v[{F}:{F+3}], v{vL16}, s[{SRDW}:{SRDW+3}], s4 offen sc1")
            A("s_waitcnt vmcnt(0)\ns_memrealtime s[82:83]\ns_waitcnt lgkmcnt(0)")
            for r in range(4): A(f"v_sub_u32 v{F+r}, s82, v{F+r}")
            A(f"v_max3_u32 v{F}, v{F}, v{F+1}, v{F+2}\nv_max_u32 v{F}, v{F}, v{F+3}\ns_mov_b32 s4, {int(cfg.probe[1]*100)}\nv_cmp_lt_u32 vcc, s4, v{F}\ns_cbranch_vccz {lend}")
        elif cfg.probe[0]=='t':
            A("s_waitcnt vmcnt(0)\ns_memrealtime s[82:83]\ns_waitcnt lgkmcnt(0)")
            k={'end':82,'b1':86,'b2':88,'b3':90}[cfg.probe[2]]
            A(f"s_sub_u32 s4, s{k}, s80\ns_cmp_lt_u32 s4, {int(cfg.probe[1]*100)}\ns_cbranch_scc1 {lend}")
        else:
            A(f"s_cmp_eq_u32 s79, 0\ns_cbranch_scc1 {lend}")
        A(f"s_mov_b32 s4, 40\n{lx}:\ns_sleep 40\ns_sub_u32 s4, s4, 1\ns_cmp_lg_u32 s4, 0\ns_cbranch_scc1 {lx}")
        A("s_endpgm")
    A(f"{lend}:")
    if cfg.probe is not None: pass
    elif cfg.stamps and cfg.dbgout:
        A(f"s_cmp_lt_u32 s2, 252\ns_cbranch_scc1 {Ldone}")
        A("s_mov_b64 exec, 1\ns_waitcnt vmcnt(0)")
        stamp(1)
        srd(SRDA,sDBG,256)
        A(f"s_waitcnt lgkmcnt(0)\ns_sub_u32 s{sO2}, s2, 252\ns_lshl_b32 s{sO2}, s{sO2}, 4\nv_mov_b32 v{T}, 0")
        for i,k in enumerate((3,4,5,1)):
            A(f"s_sub_u32 s4, s{80+2*k}, s80\nv_mov_b32 v{F+i}, s4")
        A(f"buffer_store_dwordx4 v[{F}:{F+3}], v{T}, s[{SRDA}:{SRDA+3}], s{sO2} offen")
    elif cfg.stamps:
        A("s_mov_b64 exec, 1\ns_waitcnt vmcnt(0)")
        stamp(1)
        A("s_getreg_b32 s94, hwreg(HW_REG_XCC_ID)\ns_waitcnt lgkmcnt(0)")
        A(f"s_lshl_b32 s{sO2}, s2, 6\ns_add_u32 s{sO2}, s{sO2}, {STAMP:#x}\nv_mov_b32 v{T}, 0")
        for k in range(8):
            A(f"v_mov_b32 v{F}, s{80+2*k}\nv_mov_b32 v{F+1}, s{81+2*k}\nbuffer_store_dwordx2 v[{F}:{F+1}], v{T}, s[{SRDW}:{SRDW+3}], s{sO2} offen offset:{8*k}\ns_nop 1")
    A(f"{Ldone}:")
    A("s_endpgm")
    body="\n".join(L)+"\n"
    kd=f""".section .rodata,"a"
.p2align 6
.amdhsa_kernel {N}
  .amdhsa_next_free_vgpr 232
  .amdhsa_next_free_sgpr 96
  .amdhsa_accum_offset 232
  .amdhsa_group_segment_fixed_size 0
  .amdhsa_kernarg_size 104
  .amdhsa_user_sgpr_count 2
  .amdhsa_user_sgpr_kernarg_segment_ptr 1
  .amdhsa_system_sgpr_workgroup_id_x 1
  .amdhsa_float_denorm_mode_32 3
.end_amdhsa_kernel
"""
    return body, kd

HDR='''; ---------------------------------------------------------------------------------------------
;  * wave 4: layernorm, 16 columns of q, MLP pieces, (max,sum) exchange, 32x224 tile of wo, final sum.
; ---------------------------------------------------------------------------------------------
'''
def header():
    ref=open('parallel_sum__gqa_block_cached__dense_activation_gelu__decode.s.ref').read().split("\n")
    out=[]
    for l in ref:
        if l.startswith("; @launch"):
            out.append(f"; @launch grid=(256,1,1) block=(320,1,1) lds={LDS_END}")
            break
        out.append(l)
    return "\n".join(out)+"\n"

def final(cfg, path):
    body,kd=gen(cfg)
    open(path,"w").write(header()+HDR+'.amdgcn_target "amdgcn-amd-amdhsa--gfx950"\n.text\n'+body+kd)

def bench(cfgs, path):
    sys.path.insert(0,'bench')
    from genstream import meta
    s='.amdgcn_target "amdgcn-amd-amdhsa--gfx950"\n'
    ks=[]; args=[]
    for c in cfgs:
        body,kd=gen(c)
        s+=".text\n"+body+kd.replace("kernarg_size 104","kernarg_size 112")
        ks.append((c.name,232,320)); args.append(f"{c.name} 256 320 {LDS_END}")
    s+=meta(ks)
    open(path+".s","w").write(s); open(path+".args","w").write(" @ ".join(args))

def mk(name, **kw):
    c=Cfg(); c.name=name
    for k,v in kw.items():
        assert hasattr(c,k), k
        setattr(c,k,v)
    return c

if __name__=="__main__":
    if sys.argv[1]=="final":
        kw=eval(sys.argv[3]) if len(sys.argv)>3 else {}
        final(mk(KNAME,**kw), sys.argv[2])
    else:
        bench([mk(n,**kw) for n,kw in eval(sys.argv[3])], sys.argv[2])
```

```python
import sys, struct, math

KNAME = "parallel_sum__gqa_block_cached__dense_activation_gelu__decode_kernel"
def f2u(f): return struct.unpack('<I', struct.pack('<f', f))[0]

class Cfg:
    name = KNAME
    rot = 0
    pace = 6
    infl = (5,5,5,6)
    stamps = False
    smap = {}
    wnt = "nt"
    qsleep = 16
    sleep1 = 0
    sleep2 = 0
    mlsleep = 100
    fc = 56
    nomlp = False
    notail = False
    auxnull = False
    nowo = False
    tolp = None
    fuse = True
    perm = None
    mlp2 = True
    hdelay = 100
    wowait = 15
    pg = 32
    pord = 0
    sdir = True
    wqtest = 0
    inf0 = None
    inf1 = None
    pfq = False
    pfm = 1
    mnt = 'nt'
    pfgate = 14
    nosbw = False
    nosbr = False
    binf = None
    binfv = (6,6)
    brank = 26
    drain = True
    warm = False
    nobar = False
    wmaj = False
    order = [0,2,4,6,1,3,5,7]
    vorder = [0,2,4,6,1,3,5,7]
    sent = True
    sent2 = False
    cpol = 'sc1'
    cgate = 1
    now1 = False
    now2 = False
    mgate = 6
    wodelay = 0
    wolate = 2
    blk = 4
    rotH = 12
    rotS = 0
    ackw = True
    touch = 'sc1'
    h2delay = 0
    h1delay = 0
    mix = True
    tdiag = False
    qdelay = 50
    mldelay = 100
    prio2 = 0
    nowq = False
    noqx = False
    opol = 'sc1'
    lpol = 'sc1'
    probe = None
    pool = True
    pinfl = 16
    pclaim = 4
    first = 8
    fb = None
    qgate = 6
    cnt = 'nt'
    noml = False
    noopub = False
    mimic = True
    fast1 = 0
    fast2 = 0
    fthr = 64
    vpre = True
    agate = 6
    gran = 1
    thr = None
    dbgout = False

RING=0; SC=131072; WBUF=SC+8192; XN=WBUF+16384; QB=XN+1024; MX=QB+1024; FB=MX+64; RDY=FB+32; DONE=FB+36; QRDY=FB+40; KCNT=FB+44; BOOST=FB+48; LDS_END=FB+64
QBOX=0x1000; MLBOX=0x8000; OBOX=0x10000; PBOX=0x100000; MBOX=0x180000; HBOX=0x1c0000; SBOX=0x200000; CNT=0x280000; CSTR=4352; STAMP=0x20000000
SPIN_LIMIT = 1<<16
CEXP = 0.0625*math.log2(math.e)

def tt(f):
    r=0
    for idx in range(8):
        if f((idx>>2)&1,(idx>>1)&1,idx&1): r|=1<<idx
    return r

def gen(cfg):
    L=[]
    def A(s):
        for line in s.split("\n"):
            t=line.strip()
            L.append(t if t.endswith(":") else "    "+t)
    def C(t): L.append("    ; "+t)
    N=cfg.name
    pre = "L" if N==KNAME else f"L_{N}"
    uid=[0]
    def lab(p):
        uid[0]+=1; return f"{pre}_{p}{uid[0]}"
    def nop(n):
        if n>0: A(f"s_nop {n-1}")
    sX,sK,sV,sWQ,sWO,sW1,sB1=16,18,20,22,24,28,30
    sW2,sB2,sOUT,sDBG,sWS=32,34,36,38,40
    SRDK,SRDV,SRDA,SRDW=44,48,52,56
    sWAVE=3
    def srd(d, p, size):
        A(f"s_mov_b32 s{d}, s{p}\ns_mov_b32 s{d+1}, s{p+1}\ns_mov_b32 s{d+2}, {size:#x}\ns_mov_b32 s{d+3}, 0x20000")
    def stamp(k):
        if cfg.stamps:
            if isinstance(k,str):
                if k not in cfg.smap: return
                k=cfg.smap[k]
            elif k in cfg.smap.values(): return
            A(f"s_memrealtime s[{80+2*k}:{81+2*k}]")
    DPP="row_mask:0xf bank_mask:0xf"
    def rowred(op, v, rors):
        for r in rors:
            nop(2); A(f"{op}_dpp v{v}, v{v}, v{v} row_ror:{r} {DPP}")
    def xrowred(op, v, t):
        A(f"v_mov_b32 v{t}, v{v}"); nop(2); A(f"v_permlane16_swap_b32 v{v}, v{t}"); A(f"{op} v{v}, v{v}, v{t}")
        A(f"v_mov_b32 v{t}, v{v}"); nop(2); A(f"v_permlane32_swap_b32 v{v}, v{t}"); A(f"{op} v{v}, v{v}, v{t}")
    def tred4(a):
        nop(2)
        A(f"v_permlane32_swap_b32 v{a}, v{a+2}\nv_permlane32_swap_b32 v{a+1}, v{a+3}")
        A(f"v_add_f32 v{a}, v{a}, v{a+2}\nv_add_f32 v{a+1}, v{a+1}, v{a+3}")
        nop(2)
        A(f"v_permlane16_swap_b32 v{a}, v{a+1}")
        A(f"v_add_f32 v{a}, v{a}, v{a+1}")
    def rbf(d, s):
        A(f"v_cvt_pk_bf16_f32 v{d}, v{s}, v{s}\nv_and_b32 v{d}, 0xffff0000, v{d}")
    def masks(dst, n, t0, t1):
        A(f"v_and_b32 v{t0}, 1, v{n}\nv_lshlrev_b32 v{t0}, 4, v{t0}\nv_mov_b32 v{t1}, 0xffff\nv_lshlrev_b32 v{t1}, v{t0}, v{t1}\nv_bfe_u32 v{t0}, v{n}, 1, 2")
        for r in range(4):
            A(f"v_cmp_eq_u32 vcc, {r}, v{t0}"); nop(2); A(f"v_cndmask_b32 v{dst+r}, 0, v{t1}, vcc")

    def ldswait(addr, va, vd, cnt, need, sleep, mult=16):
        lw=lab("lw"); lwd=lab("lwd")
        A(f"v_mov_b32 v{va}, {addr}\ns_mov_b32 s{cnt}, 0")
        A(f"{lw}:\nds_read_b32 v{vd}, v{va}\ns_add_u32 s{cnt}, s{cnt}, 1\ns_waitcnt lgkmcnt(0)\nv_readfirstlane_b32 s4, v{vd}\ns_cmp_ge_u32 s4, {need}\ns_cbranch_scc1 {lwd}")
        A(f"s_sleep {sleep}\ns_cmp_lt_u32 s{cnt}, {SPIN_LIMIT*mult}\ns_cbranch_scc1 {lw}\n{lwd}:")
    Ldone=f"{pre}_done"; Laux=f"{pre}_aux"
    A(f".globl {N}\n.p2align 8\n.type {N},@function\n{N}:")
    A(f"s_cmp_ge_u32 s2, 256\ns_cbranch_scc1 {Ldone}")
    if cfg.perm:
        for bit,mask in cfg.perm:
            sk=lab("pm"); A(f"s_bitcmp1_b32 s2, {bit}\ns_cbranch_scc0 {sk}\ns_xor_b32 s2, s2, {mask}\n{sk}:")
    A("s_load_dwordx16 s[16:31], s[0:1], 0\ns_load_dwordx8 s[32:39], s[0:1], 64\ns_load_dwordx2 s[40:41], s[0:1], 96")
    stamp(0)
    A("v_lshrrev_b32 v1, 6, v0\nv_and_b32 v2, 63, v0")
    nop(1)
    A(f"v_readfirstlane_b32 s{sWAVE}, v1")
    A(f"s_cmp_eq_u32 s{sWAVE}, 4\ns_cbranch_scc1 {Laux}")

    C("================= stream waves 0..3: K pass (scores), V pass (P.V) =================")
    vKO=8; vVO=16; vKA=18; vVA=22; vSA=23; vMASK=24; vMAX=28; vTG=29; vNM=30; vT=31
    QF=32; TF=64; D=96; S2=100; VP=104
    AR=32; ACC=48; P=56; vVP=7
    sRING,sREG,sNEXT,sOFF,sCNT,sC,sT8,sFF,sV0,sLV,sCL,sY,sSCO=60,61,62,63,64,65,66,67,68,69,70,71,72
    sPC=76
    A("v_lshrrev_b32 v3, 5, v2\nv_and_b32 v4, 31, v2\nv_lshlrev_b32 v5, 2, v3\nv_xor_b32 v4, v4, v5\nv_lshlrev_b32 v4, 4, v4\nv_lshl_add_u32 v4, v3, 9, v4")
    for j in range(8):
        c=(8*(j&1)+(j>>1))*16 | (4096 if j>=4 else 0)
        A(f"v_xor_b32 v{vKO+j}, {c:#x}, v4")
    B=cfg.blk; lb=B.bit_length()-1
    sHB,sRS=78,79
    A(f"s_lshl_b32 s{sRING}, s{sWAVE}, 15\ns_lshr_b32 s4, s2, 5\ns_lshl_b32 s{sHB}, s4, 25\ns_lshl_b32 s5, s{sWAVE}, {13+lb if cfg.wmaj else 13}\ns_add_u32 s{sHB}, s{sHB}, s5")
    A(f"s_mul_i32 s{sNEXT}, s4, {cfg.rotH}\ns_and_b32 s5, s2, 31\ns_mul_i32 s{sRS}, s5, {cfg.rotS}\ns_lshl_b32 s{sREG}, s5, {15+lb}\ns_add_u32 s{sREG}, s{sREG}, s{sHB}\ns_mov_b32 s{sV0}, s{sNEXT}")
    def taddr(dst, t, base, rs):
        A(f"s_bfe_u32 s4, s{t}, {((5-lb)<<16)|lb:#x}\ns_lshl_b32 s4, s4, {20+lb}\ns_add_u32 s{dst}, s{base}, s4")
        if lb:
            A(f"s_add_u32 s4, s{t}, s{rs}\ns_and_b32 s4, s4, {B-1}\ns_lshl_b32 s4, s4, {13 if cfg.wmaj else 15}\ns_add_u32 s{dst}, s{dst}, s4")
    A("s_waitcnt lgkmcnt(0)")
    srd(SRDK,sK,1<<28)
    INF=cfg.infl if isinstance(cfg.infl,tuple) else (cfg.infl,cfg.infl)
    phase=['K']
    def gate(j, lim):
        if lim is None: return "s_nop 0"
        bi = cfg.binf if phase[0]=='K' else cfg.binfv
        if lim is INF and bi is not None and bi[j%len(bi)]>lim[j%len(lim)]:
            g=lab("bg")
            return f"s_waitcnt vmcnt({bi[j%len(bi)]-1})\ns_cbranch_vccnz {g}\ns_waitcnt vmcnt({lim[j%len(lim)]-1})\n{g}:"
        return f"s_waitcnt vmcnt({lim[j%len(lim)]-1})"
    PINF=cfg.pinfl if isinstance(cfg.pinfl,tuple) else (cfg.pinfl,cfg.pinfl)
    sSB=9; vSD=103
    G=cfg.pg; lg=G.bit_length()-1; NI=4*G
    def claim():
        A(f"s_mov_b32 s{sCL}, 1\ns_atomic_add s{sCL}, s[{sPC}:{sPC+1}], 0 glc")
    def steps(slot, kind, lim=INF, doclaim=False):
        def mk(j):
            def f():
                if kind is None: return
                pj=cfg.order[j]; half=pj>>2; jj=pj&3
                sk=None
                if kind in 'PQ':
                    if kind=='P': sk=lab("ps")
                    if j==0:
                        ok=lab("po")
                        if kind=='Q': pass
                        elif cfg.wolate==1:
                            A(f"s_waitcnt lgkmcnt(0)\ns_mov_b32 s{sSCO+slot}, -1\ns_cmp_lt_u32 s{sCL}, {NI}\ns_cbranch_scc1 {ok}")
                            A(f"v_mov_b32 v{vT}, {DONE}\nds_write_b32 v{vT}, v{vT}\ns_branch {sk}\n{ok}:")
                        else:
                            A(f"s_waitcnt lgkmcnt(0)\ns_mov_b32 s{sSCO+slot}, -1\ns_cmp_ge_u32 s{sCL}, {NI}\ns_cbranch_scc1 {sk}")
                        if cfg.pord: A(f"s_lshr_b32 s5, s{sCL}, 2\ns_and_b32 s6, s{sCL}, 3")
                        else: A(f"s_and_b32 s5, s{sCL}, {G-1}\ns_lshr_b32 s6, s{sCL}, {lg}")
                        A(f"s_lshl_b32 s7, s5, 10\ns_lshl_b32 s8, s6, 8\ns_add_u32 s{sSCO+slot}, s7, s8")
                        A(f"s_and_b32 s7, s2, {31&~(G-1)}\ns_or_b32 s5, s5, s7\ns_mul_i32 s7, s5, {cfg.rotS}\ns_lshl_b32 s5, s5, {15+lb}\ns_add_u32 s5, s5, s{sHB}\ns_add_u32 s6, s6, s{sV0}")
                        taddr(sOFF,6,5,7)
                        if cfg.sdir:
                            A(f"s_add_u32 s4, s{sSCO+slot}, s{sSB}\nbuffer_load_dwordx2 v[{VP+2*slot}:{VP+2*slot+1}], v{vSD}, s[{SRDW}:{SRDW+3}], s4 offen sc1")
                    elif kind=='P':
                        A(f"s_cmp_eq_u32 s{sSCO+slot}, -1\ns_cbranch_scc1 {sk}")
                elif j==0:
                    taddr(sOFF,sNEXT,sREG,sRS)
                    A(f"s_add_u32 s{sNEXT}, s{sNEXT}, 1")
                if (kind in 'PQ' or doclaim) and j==cfg.pclaim: claim()
                vo = vKO+pj if kind=='K' else vVO+half
                sr = SRDK if kind=='K' else SRDV
                A(f"s_add_u32 m0, s{sRING}, {slot*8192+half*4096}\n{gate(j, PINF if kind in 'PQ' else lim)}")
                A(f"buffer_load_dwordx4 v{vo}, s[{sr}:{sr+3}], s{sOFF} offen offset:{jj*1024} nt lds")
                if sk: A(f"{sk}:")
            return f
        return [mk(j) for j in range(8)]
    def weave(st, sl):
        for u in range(8):
            st[u]()
            if u<len(sl): sl[u]()
    for j,f in enumerate(steps(0,'K',None)[:cfg.first]): f()
    NB = cfg.nobar and cfg.pool and not cfg.auxnull
    if NB: A("s_barrier")
    srd(SRDV,sV,1<<28)
    if not cfg.sent: A(f"s_load_dword s{sT8}, s[{sWS}:{sWS+1}], 0")
    A(f"v_lshlrev_b32 v{vVO}, 4, v2\nv_add_u32 v{vVO+1}, 0x1000, v{vVO}")
    A("v_lshrrev_b32 v3, 4, v2\nv_and_b32 v4, 15, v2")
    A("v_and_b32 v5, 3, v4\nv_lshlrev_b32 v5, 2, v5\nv_lshrrev_b32 v6, 2, v4\nv_add_u32 v5, v5, v6")
    A(f"v_xor_b32 v6, v3, v4\nv_lshlrev_b32 v6, 4, v6\nv_lshl_add_u32 v6, v5, 9, v6\nv_add_u32 v6, s{sRING}, v6")
    for q in range(4): A(f"v_xor_b32 v{vKA+q}, {q*64}, v6")
    A(f"v_lshlrev_b32 v6, 4, v4\nv_lshl_add_u32 v6, v3, 9, v6\nv_add_u32 v{vVA}, s{sRING}, v6")
    A(f"s_lshl_b32 s{sCNT}, s{sWAVE}, 11\ns_add_u32 s{sCNT}, s{sCNT}, {SC}")
    A(f"v_lshrrev_b32 v5, 3, v4\nv_lshlrev_b32 v6, 5, v5\nv_lshl_add_u32 v6, v3, 3, v6\nv_add_u32 v{vSA}, s{sCNT}, v6")
    A(f"v_lshlrev_b32 v7, 9, v5\nv_lshl_add_u32 v7, v3, 4, v7\nv_add_u32 v7, {QB}, v7")
    masks(vMASK,4,5,6)
    A(f"v_mov_b32 v{vMAX}, 0xff800000")
    if cfg.binf is not None: A(f"s_lshr_b32 s4, s2, 3\ns_xor_b32 s5, s4, s2\ns_and_b32 s5, s5, 7\ns_cmp_lt_u32 s4, 28\ns_cselect_b32 s5, s5, 1\ns_cmp_eq_u32 s5, 0\ns_cselect_b64 vcc, 1, 0")
    A(f"v_subrev_u32 v{vT}, s{sRING}, v{vVA}\nv_add_u32 v1, 0x1000, v{vT}")
    I0 = INF if cfg.inf0 is None else cfg.inf0
    I1_ = INF if cfg.inf1 is None else cfg.inf1
    for f in steps(0,'K',I0)[cfg.first:]: f()
    for slot in (1,2):
        for f in steps(slot,'K',I0): f()
    C("first four V tiles of this wave go straight to registers (covers the q latency)")
    for i in range(4):
        taddr(sOFF,sV0,sREG,sRS)
        for u in cfg.vorder:
            o=(u>>1)*2048+(u&1)*256
            vo = vT if o<4096 else 1
            A(gate(u,I1_))
            A(f"buffer_load_dwordx4 v[{VP+32*i+4*u}:{VP+32*i+4*u+3}], v{vo}, s[{SRDV}:{SRDV+3}], s{sOFF} offen offset:{o&4095} nt")
        A(f"s_add_u32 s{sV0}, s{sV0}, {1 if i<3 else 25}")
    if not cfg.sent: A(f"s_waitcnt lgkmcnt(0)\ns_add_u32 s{sT8}, s{sT8}, 1\ns_and_b32 s{sT8}, s{sT8}, 0xff\ns_mov_b32 s{sFF}, 0xff\nv_mov_b32 v{vTG}, s{sT8}")
    srd(SRDW,sWS,1<<30)
    if NB: ldswait(QRDY, vT, D, sCNT, 1, 2)
    else: A("s_barrier")
    for jj in range(8): A(f"ds_read_b128 v[{QF+4*jj}:{QF+4*jj+3}], v7 offset:{jj*64}")

    def ktile(slot, kind):
        def s0():
            A("s_waitcnt vmcnt(16)")
            for jj in range(8):
                A(f"ds_read_b128 v[{TF+4*jj}:{TF+4*jj+3}], v{vKA+(jj&3)} offset:{slot*8192+(jj>>2)*256}")
        def mf(r):
            def f():
                if r[0]==0: A("s_waitcnt lgkmcnt(0)")
                for jj in r:
                    c = "0" if jj==0 else f"v[{D}:{D+3}]"
                    A(f"v_mfma_f32_16x16x32_bf16 v[{D}:{D+3}], v[{TF+4*jj}:{TF+4*jj+3}], v[{QF+4*jj}:{QF+4*jj+3}], {c}")
            return f
        def s3():
            nop(5)
            A(f"v_cvt_pk_bf16_f32 v{S2}, v{D}, v{D+1}\nv_cvt_pk_bf16_f32 v{S2+1}, v{D+2}, v{D+3}")
            A(f"v_max3_f32 v{vMAX}, v{vMAX}, v{D}, v{D+1}\nv_max3_f32 v{vMAX}, v{vMAX}, v{D+2}, v{D+3}")
            A(f"ds_write_b64 v{vSA}, v[{S2}:{S2+1}] offset:{slot*64}")
        weave(steps((slot+3)&3,kind),[s0,mf([0,1,2,3]),mf([4,5,6,7]),s3])
    def pcalc(S2=S2):
        A(f"v_lshlrev_b32 v{P}, 16, v{S2}\nv_and_b32 v{P+1}, 0xffff0000, v{S2}\nv_lshlrev_b32 v{P+2}, 16, v{S2+1}\nv_and_b32 v{P+3}, 0xffff0000, v{S2+1}")
        for t in range(4): A(f"v_fma_f32 v{P+t}, v{P+t}, s{sC}, v{vNM}")
        for t in range(4): A(f"v_exp_f32 v{P+t}, v{P+t}")
        nop(1)
        for t in range(4): A(f"v_cvt_pk_bf16_f32 v{P+t}, v{P+t}, v{P+t}")
    def pmask():
        for t in range(4):
            for r in range(4): A(f"v_and_b32 v{AR+4*t+r}, v{P+t}, v{vMASK+r}")
    def pv(src, us):
        for u in us:
            t=u>>1; h=u&1
            A(f"v_mfma_f32_16x16x32_bf16 v[{ACC+4*h}:{ACC+4*h+3}], v[{AR+4*t}:{AR+4*t+3}], v[{src+4*u}:{src+4*u+3}], v[{ACC+4*h}:{ACC+4*h+3}]")
    def vtile(slot, kind, waitn, scoff=None, regs=None, pooled=False, doclaim=False):
        def ywait(extra):
            go=lab("wy")
            A(f"s_waitcnt vmcnt({16+extra})")
            for y in (2,1): A(f"s_cmp_ge_i32 s{sY}, {y}\ns_cbranch_scc1 {go}\ns_waitcnt vmcnt({8*(y-1)+extra})")
            A(f"{go}:")
        def s0():
            if pooled and cfg.sdir:
                if waitn=='y': ywait(8)
                else: A(f"s_waitcnt vmcnt({waitn+8})")
                pcalc(VP+2*slot); return
            if pooled: A(f"v_add_u32 v{vT}, s{sSCO+slot}, v{vSA}\nds_read_b64 v[{S2}:{S2+1}], v{vT}")
            else: A(f"ds_read_b64 v[{S2}:{S2+1}], v{vSA} offset:{slot*64 if scoff is None else scoff}")
            rb = kind=='V' and cfg.binfv is not None and (slot&1)
            if rb: A(f"ds_read_b32 v{D}, v{vBA}")
            A("s_waitcnt lgkmcnt(0)")
            if rb: A(f"v_cmp_ne_u32 vcc, 0, v{D}")
            pcalc()
        def s1():
            if waitn=='y': ywait(0)
            else: A(f"s_waitcnt vmcnt({waitn})")
            for u in range(8):
                A(f"ds_read_b128 v[{TF+4*u}:{TF+4*u+3}], v{vVA} offset:{slot*8192+(u>>1)*2048+(u&1)*256}")
            if kind is not None:
                pmask()
                A("s_waitcnt lgkmcnt(0)")
        sl=[s0,s1,lambda:pv(TF,[0,1,2,3]),lambda:pv(TF,[4,5,6,7])]
        if kind is None:
            s0(); pmask(); s1()
            for u in range(8):
                A(f"s_waitcnt lgkmcnt({7-u})"); pv(TF,[u])
            return
        if regs is not None:
            def r0():
                A(f"ds_read_b64 v[{S2}:{S2+1}], v{vSA} offset:{slot*64}\ns_waitcnt lgkmcnt(0)"); pcalc()
            sl+=[r0,pmask,lambda:pv(regs,[0,1,2,3]),lambda:pv(regs,[4,5,6,7])]
        weave(steps((slot+3)&3,kind,doclaim=doclaim),sl)
        if kind=='P':
            A(f"s_cmp_eq_u32 s{sSCO+((slot+3)&3)}, -1\ns_subb_u32 s{sY}, s{sY}, 0")

    lk=lab("kloop")
    C("K pass: one 16-key tile per period; one gated 1 KiB load between compute slices")
    A(f"s_mov_b32 s{sCNT}, 7")
    A(f"{lk}:")
    for s in range(4): ktile(s,'K')
    A(f"v_add_u32 v{vSA}, 256, v{vSA}")
    A(f"s_sub_u32 s{sCNT}, s{sCNT}, 1\ns_cmp_lg_u32 s{sCNT}, 0\ns_cbranch_scc1 {lk}")
    ktile(0,'K')
    A(f"s_add_u32 s{sNEXT}, s{sNEXT}, 4")
    for s in range(1,4): ktile(s,'V')
    A(f"v_subrev_u32 v{vSA}, {7*256}, v{vSA}")
    for r in range(8): A(f"v_mov_b32 v{ACC+r}, 0")
    xrowred("v_max_f32", vMAX, vT)
    rbf(vMAX,vMAX)
    A(f"v_bfe_u32 v3, v2, 3, 1\nv_lshlrev_b32 v3, 4, v3\nv_add_u32 v3, {MX}, v3")
    A(f"s_lshl_b32 s{sCNT}, s{sWAVE}, 2\nv_add_u32 v4, s{sCNT}, v3")
    if NB:
        A(f"ds_write_b32 v4, v{vMAX}\nv_mov_b32 v3, {KCNT}\nv_mov_b32 v4, 1\ns_mov_b32 s{sC}, {f2u(CEXP):#x}\ns_mov_b64 exec, 1\nds_add_u32 v3, v4\ns_mov_b64 exec, -1")
    else:
        A(f"ds_write_b32 v4, v{vMAX}\ns_waitcnt lgkmcnt(0)\ns_barrier")
        A(f"ds_read_b128 v[{D}:{D+3}], v3\ns_mov_b32 s{sC}, {f2u(CEXP):#x}\ns_waitcnt lgkmcnt(0)")
        A(f"v_max_f32 v{vMAX}, v{D}, v{D+1}\nv_max3_f32 v{vMAX}, v{vMAX}, v{D+2}, v{D+3}")
    A(f"v_mul_f32 v{vNM}, s{sC}, v{vMAX}\nv_sub_f32 v{vNM}, 0, v{vNM}")
    A("v_lshrrev_b32 v6, 5, v2\nv_lshlrev_b32 v6, 10, v6\nv_and_b32 v5, 15, v2\nv_lshl_add_u32 v6, v5, 5, v6\nv_bfe_u32 v5, v2, 4, 1\nv_lshl_add_u32 v6, v5, 4, v6")
    A(f"v_add_u32 v6, s{sRING}, v6")
    A(f"s_lshl_b32 s{sCNT}, s{sWAVE}, 9\nv_lshlrev_b32 v4, 4, v2\nv_add_u32 v4, s{sCNT}, v4\nv_add_u32 v5, 0x10000, v4")
    A(f"s_lshr_b32 s{sCNT}, s{sWAVE}, 1\ns_lshl_b32 s{sCNT}, s{sCNT}, 2\ns_add_u32 s{sCNT}, s{sCNT}, {FB}\nv_mov_b32 v3, s{sCNT}")
    lv=lab("vloop")
    C("V pass")
    phase[0]='V'
    vBA=102
    A(f"v_mov_b32 v{vBA}, {BOOST}\ns_mov_b64 vcc, 0")
    for s in range(4): vtile(s,'V',16,scoff=256+s*64,regs=VP+32*s)
    A(f"v_add_u32 v{vSA}, 512, v{vSA}")
    A(f"s_mov_b32 s{sCNT}, {4 if cfg.pool else 5}")
    A(f"{lv}:")
    for s in range(4): vtile(s,'V',16)
    A(f"v_add_u32 v{vSA}, 256, v{vSA}")
    A(f"s_sub_u32 s{sCNT}, s{sCNT}, 1\ns_cmp_lg_u32 s{sCNT}, 0\ns_cbranch_scc1 {lv}")
    Lpool=f"{pre}_poolcode"
    A(f"{Lpool}:")
    if cfg.pool:
        C("shared pool of the last 4 steps of every split of this head: wait for the global max first")
        lw=lab("rw"); lwd=lab("rwd")
        A(f"v_mov_b32 v{vT}, {RDY}\ns_mov_b32 s{sCNT}, 0")
        A(f"{lw}:\nds_read_b32 v{D}, v{vT}\ns_add_u32 s{sCNT}, s{sCNT}, 1")
        A(f"s_lshr_b32 s4, s2, {lg}\ns_lshl_b32 s5, s4, 2\ns_add_u32 s5, s5, s{sWAVE}\ns_mul_i32 s5, s5, {CSTR}\ns_add_u32 s5, s5, {CNT}\ns_add_u32 s{sPC}, s{sWS}, s5\ns_addc_u32 s{sPC+1}, s{sWS+1}, 0")
        A(f"s_mov_b32 s{sY}, 2")
        if cfg.sdir:
            A(f"s_and_b32 s{sSB}, s2, {255&~(G-1)}\ns_lshl_b32 s{sSB}, s{sSB}, 10\ns_lshl_b32 s5, s{sWAVE}, 6\ns_add_u32 s{sSB}, s{sSB}, s5\ns_add_u32 s{sSB}, s{sSB}, {SBOX}")
            A(f"v_bfe_u32 v{vSD}, v2, 3, 1\nv_lshlrev_b32 v{vSD}, 5, v{vSD}\nv_lshrrev_b32 v{D+1}, 4, v2\nv_lshl_add_u32 v{vSD}, v{D+1}, 3, v{vSD}")
        A(f"s_waitcnt lgkmcnt(0)\nv_readfirstlane_b32 s4, v{D}\ns_cmp_lg_u32 s4, 0\ns_cbranch_scc1 {lwd}")
        A(f"s_sleep 4\ns_cmp_lt_u32 s{sCNT}, {SPIN_LIMIT*16}\ns_cbranch_scc1 {lw}\n{lwd}:")
        vtile(0,'V',16,doclaim=True)
        for s in range(1,4): vtile(s,'P','y')
        C("rescale the accumulators to the global row max")
        if NB:
            A(f"v_lshrrev_b32 v{vT}, 5, v2\nv_lshlrev_b32 v{D+2}, 2, v{vT}\nv_add_u32 v{D+2}, {FB+16}, v{D+2}\nds_read_b32 v{D}, v{D+2}")
            A(f"s_lshl_b32 s4, s{sWAVE}, 2\ns_add_u32 s4, s4, {MX}\nv_lshlrev_b32 v{vT}, 4, v{vT}\nv_add_u32 v{vT}, s4, v{vT}\nds_read_b32 v{D+1}, v{vT}")
        else:
            A(f"v_lshrrev_b32 v{vT}, 5, v2\nv_lshlrev_b32 v{vT}, 2, v{vT}\nv_add_u32 v{vT}, {FB+8}, v{vT}\nds_read_b32 v{D}, v{vT}")
        A(f"v_bfe_u32 v{vT}, v2, 3, 1\nv_lshlrev_b32 v{vSA}, 5, v{vT}\nv_lshlrev_b32 v{vT}, 2, v{vT}\nv_add_u32 v{vT}, {FB+16}, v{vT}\nds_read_b32 v{vNM}, v{vT}")
        A(f"v_lshrrev_b32 v{vT}, 4, v2\nv_lshl_add_u32 v{vSA}, v{vT}, 3, v{vSA}\ns_lshl_b32 s4, s{sWAVE}, 6\ns_add_u32 s4, s4, {WBUF}\nv_add_u32 v{vSA}, s4, v{vSA}")
        A("s_waitcnt lgkmcnt(0)")
        if NB:
            A(f"v_mul_f32 v{D+1}, s{sC}, v{D+1}\nv_add_f32 v{D}, v{D}, v{D+1}\nv_exp_f32 v{D}, v{D}"); nop(1)
        for r in range(8): A(f"v_mul_f32 v{ACC+r}, v{ACC+r}, v{D}")
        lp=lab("ploop"); le=lab("pend")
        if cfg.drain:
            ld=[lab("drain") for _ in range(4)]
            A(f"{lp}:")
            for s in range(4):
                A(f"s_waitcnt lgkmcnt(0)\ns_cmp_ge_u32 s{sCL}, {NI}\ns_cbranch_scc1 {ld[s]}")
                vtile(s,'Q',16,pooled=True)
            A(f"s_branch {lp}")
            for s in range(4):
                A(f"{ld[s]}:")
                for d in range(3):
                    sl=(s+d)&3
                    A(f"s_cmp_eq_u32 s{sSCO+sl}, -1\ns_cbranch_scc1 {le}")
                    vtile(sl,None,'y',pooled=True)
                    if d<2: A(f"s_sub_u32 s{sY}, s{sY}, 1")
                if s<3: A(f"s_branch {le}")
            A(f"{le}:")
        else:
            A(f"{lp}:")
            for s in range(4):
                A(f"s_cmp_eq_u32 s{sSCO+s}, -1\ns_cbranch_scc1 {le}")
                vtile(s,'P','y',pooled=True)
            A(f"s_branch {lp}\n{le}:")
    else:
        vtile(0,'V',16); vtile(1,None,16); vtile(2,None,8); vtile(3,None,0)
    A(f"s_lshl_b32 s{sOFF}, s2, 11\ns_add_u32 s{sOFF}, s{sOFF}, {OBOX}")
    nop(7)
    A(f"ds_write_b128 v6, v[{ACC}:{ACC+3}]\nds_write_b128 v6, v[{ACC+4}:{ACC+7}] offset:512")
    A("s_waitcnt lgkmcnt(0)\ns_barrier")
    A("s_mov_b32 exec_hi, 0")
    A(f"ds_read_b128 v[{TF}:{TF+3}], v4\nds_read_b128 v[{TF+4}:{TF+7}], v4 offset:32768\nds_read_b128 v[{TF+8}:{TF+11}], v5\nds_read_b128 v[{TF+12}:{TF+15}], v5 offset:32768\nds_read_b32 v{TF+16}, v3")
    A("s_waitcnt lgkmcnt(3)")
    for r in range(4): A(f"v_add_f32 v{TF+r}, v{TF+r}, v{TF+4+r}")
    A("s_waitcnt lgkmcnt(1)")
    for r in range(4): A(f"v_add_f32 v{TF+8+r}, v{TF+8+r}, v{TF+12+r}")
    for r in range(4): A(f"v_add_f32 v{TF+r}, v{TF+r}, v{TF+8+r}")
    A("s_waitcnt lgkmcnt(0)")
    for r in range(4): A(f"v_mul_f32 v{TF+r}, v{TF+r}, v{TF+16}")
    for r in range(4):
        if cfg.sent: A(f"v_min_u32 v{TF+r}, -2, v{TF+r}")
        else: A(f"v_bfi_b32 v{TF+r}, s{sFF}, v{vTG}, v{TF+r}")
    if cfg.tdiag: A("s_memrealtime s[82:83]")
    if not cfg.noopub: A(f"buffer_store_dwordx4 v[{TF}:{TF+3}], v4, s[{SRDW}:{SRDW+3}], s{sOFF} offen {cfg.opol}")
    if cfg.tdiag:
        A(f"s_waitcnt vmcnt(0)\ns_memrealtime s[84:85]\ns_waitcnt lgkmcnt(0)\ns_cmp_lg_u32 s{sWAVE}, 0\ns_cbranch_scc1 {Ldone}")
        A(f"s_lshl_b32 s4, s2, 6\ns_add_u32 s4, s4, {STAMP+0x100000:#x}\ns_mov_b64 exec, 1\nv_mov_b32 v1, 0\nv_mov_b32 v{TF}, s82\nv_mov_b32 v{TF+1}, s83\nv_mov_b32 v{TF+2}, s84\nv_mov_b32 v{TF+3}, s85")
        A(f"buffer_store_dwordx4 v[{TF}:{TF+3}], v1, s[{SRDW}:{SRDW+3}], s4 offen")
    A("s_endpgm")

    vL16=3; vWO_=4; vTR=5; vXA=6
    X=8; F=12; T=20
    XF=32; WF=88
    WT=144
    PA=208
    AM=216
    vT8=220; vFX=221; vG1=222; vG2=223; vPS=224; vTO=225; vFM=226; vH=227
    AT=96
    sE,sTAG,sCQ,sO2,sSPIN,sCM,sFF,sA,sB,sNM=60,61,62,63,64,65,78,66,67,71
    A(f"{Laux}:")
    C("================= aux wave: q projection, MLP, hand-offs, output projection =================")
    lend=lab("end")
    if cfg.auxnull:
        A("s_waitcnt lgkmcnt(0)"); srd(SRDW,sWS,1<<30)
        A("s_barrier"); stamp(3); A("s_barrier"); stamp(4); A("s_barrier"); stamp(5); A(f"s_branch {lend}")
    A("s_setprio 3")
    if NB:
        A(f"v_mov_b32 v{X}, 0\nv_mov_b32 v{X+1}, 0\nv_mov_b32 v{X+2}, 0\nv_mov_b32 v{X+3}, 0\nv_mov_b32 v{T}, {RDY}\nds_write_b128 v{T}, v[{X}:{X+3}]")
    A(f"v_lshrrev_b32 v7, 1, v2\nv_and_b32 v{T}, 1, v2\nv_lshlrev_b32 v{T}, 4, v{T}")
    A(f"v_lshl_add_u32 v{vWO_}, v7, 13, v{T}\nv_lshlrev_b32 v{vL16}, 4, v2")
    if cfg.mix:
        A(f"s_and_b32 s4, s2, 7\ns_lshr_b32 s5, s2, 5\ns_add_u32 s5, s5, s4\ns_and_b32 s5, s5, 7\ns_lshl_b32 s5, s5, 2\ns_lshl_b32 s{sCQ}, s4, 5\ns_add_u32 s{sCQ}, s{sCQ}, s5\ns_bfe_u32 s5, s2, 0x20003\ns_add_u32 s{sCQ}, s{sCQ}, s5\ns_lshl_b32 s{sO2}, s{sCQ}, 5")
    else:
        A(f"s_and_b32 s{sCQ}, s2, 7\ns_lshl_b32 s{sCQ}, s{sCQ}, 5\ns_lshr_b32 s{sO2}, s2, 3\ns_add_u32 s{sCQ}, s{sCQ}, s{sO2}\ns_lshl_b32 s{sO2}, s{sCQ}, 5")
    A("s_waitcnt lgkmcnt(0)")
    stamp('karg')
    A(f"s_load_dword s{sE}, s[{sWS}:{sWS+1}], 0")
    srd(SRDA,sX,896)
    A(f"buffer_load_dwordx4 v[{X}:{X+3}], v{vL16}, s[{SRDA}:{SRDA+3}], 0 offen")
    if NB: A("s_barrier")
    srd(SRDK,sWQ,448*4096*2)
    def wdma(sr, step, gate=None):
        for i in range(14):
            if gate is not None: A(f"s_waitcnt vmcnt({gate})")
            A(f"s_mov_b32 m0, {WBUF+i*1024}")
            if i: A(f"s_add_u32 s{sO2}, s{sO2}, {step}")
            else: nop(1)
            A(f"buffer_load_dwordx4 v{vWO_}, s[{sr}:{sr+3}], s{sO2} offen {cfg.cnt} lds")
    if cfg.pfq:
        A(f"s_mul_i32 s5, s2, 14336")
        for i in range(14):
            A(f"buffer_load_dwordx4 v[{WF+4*i}:{WF+4*i+3}], v{vL16}, s[{SRDK}:{SRDK+3}], s5 offen\ns_add_u32 s5, s5, 1024")
        A("s_waitcnt vmcnt(0)")
    if cfg.wqtest==1:
        A(f"v_lshrrev_b32 v{T}, 3, v2\nv_and_b32 v{T+1}, 7, v2\nv_lshlrev_b32 v{T+1}, 4, v{T+1}\nv_lshl_add_u32 v{vWO_}, v{T}, 13, v{T+1}")
        A(f"s_and_b32 s4, s{sCQ}, 3\ns_mul_i32 s4, s4, {112*8192}\ns_lshr_b32 s{sO2}, s{sCQ}, 2\ns_lshl_b32 s{sO2}, s{sO2}, 7\ns_add_u32 s{sO2}, s{sO2}, s4")
        wdma(SRDK,8*8192,cfg.qgate)
    elif cfg.wqtest==2:
        A(f"v_mov_b32 v{vWO_}, v{vL16}\ns_mul_i32 s{sO2}, s2, 14336")
        wdma(SRDK,1024,cfg.qgate)
    elif cfg.wqtest==3:
        A(f"v_mov_b32 v{vWO_}, v{vL16}\ns_and_b32 s4, s2, 7\ns_lshl_b32 s4, s4, 10\ns_lshr_b32 s{sO2}, s2, 3\ns_mul_i32 s{sO2}, s{sO2}, {14*8192}\ns_add_u32 s{sO2}, s{sO2}, s4")
        wdma(SRDK,8192,cfg.qgate)
    elif not cfg.nowq: wdma(SRDK,32*8192,cfg.qgate)
    srd(SRDW,sWS,1<<30)
    A(f"v_lshrrev_b32 v{T}, 4, v2\nv_bfe_u32 v{T+1}, v2, 2, 2\nv_lshl_add_u32 v{T+1}, v{T}, 3, v{T+1}\nv_and_b32 v{T+2}, 3, v2\nv_lshlrev_b32 v{T+2}, 3, v{T+2}\nv_add_u32 v{T+2}, {WBUF}, v{T+2}")
    A(f"v_lshl_add_u32 v{vTR}, v{T+1}, 5, v{T+2}\nv_lshl_add_u32 v{vG1}, v{T+1}, 7, v{T+2}")
    A(f"v_lshlrev_b32 v{T}, 4, v{T}\nv_add_u32 v{vXA}, {XN}, v{T}")
    A("v_cmp_gt_u32 s[74:75], 56, v2")
    C("layernorm (bf16 rounding points as in the reference)")
    stamp('issued')
    A("s_waitcnt vmcnt(14)")
    stamp('xland')
    for r in range(4):
        A(f"v_lshlrev_b32 v{F+2*r}, 16, v{X+r}\nv_and_b32 v{F+2*r+1}, 0xffff0000, v{X+r}")
    A(f"v_add_f32 v{T}, v{F}, v{F+1}\nv_add_f32 v{T+1}, v{F+2}, v{F+3}\nv_add_f32 v{T+2}, v{F+4}, v{F+5}\nv_add_f32 v{T+3}, v{F+6}, v{F+7}")
    A(f"v_add_f32 v{T}, v{T}, v{T+1}\nv_add_f32 v{T+2}, v{T+2}, v{T+3}\nv_add_f32 v{T}, v{T}, v{T+2}")
    rowred("v_add_f32",T,[1,2,4,8]); xrowred("v_add_f32",T,T+1)
    A(f"v_mul_f32 v{T}, {f2u(1.0/448):#x}, v{T}")
    A(f"v_sub_f32 v{T+2}, v{F}, v{T}\nv_mul_f32 v{T+1}, v{T+2}, v{T+2}")
    for r in range(1,8):
        A(f"v_sub_f32 v{T+2}, v{F+r}, v{T}\nv_fmac_f32 v{T+1}, v{T+2}, v{T+2}")
    A(f"v_cndmask_b32 v{T+1}, 0, v{T+1}, s[74:75]")
    rowred("v_add_f32",T+1,[1,2,4,8]); xrowred("v_add_f32",T+1,T+2)
    A(f"v_mul_f32 v{T+1}, {f2u(1.0/448):#x}, v{T+1}")
    rbf(T,T); rbf(T+1,T+1)
    A(f"v_add_f32 v{T+1}, {f2u(1e-5):#x}, v{T+1}"); rbf(T+1,T+1)
    A(f"v_sqrt_f32 v{T+1}, v{T+1}"); nop(1); rbf(T+1,T+1)
    A(f"v_rcp_f32 v{T+2}, v{T+1}")
    for r in range(8): A(f"v_sub_f32 v{F+r}, v{F+r}, v{T}")
    for r in range(4): A(f"v_cvt_pk_bf16_f32 v{X+r}, v{F+2*r}, v{F+2*r+1}")
    for r in range(4): A(f"v_lshlrev_b32 v{F+2*r}, 16, v{X+r}\nv_and_b32 v{F+2*r+1}, 0xffff0000, v{X+r}")
    for r in range(8):
        A(f"v_mul_f32 v{T+3}, v{F+r}, v{T+2}\nv_fma_f32 v{T+4}, -v{T+3}, v{T+1}, v{F+r}\nv_fma_f32 v{F+r}, v{T+4}, v{T+2}, v{T+3}")
    for r in range(4): A(f"v_cvt_pk_bf16_f32 v{X+r}, v{F+2*r}, v{F+2*r+1}")
    A(f"v_add_u32 v{T}, {XN}, v{vL16}\nds_write_b128 v{T}, v[{X}:{X+3}]\ns_waitcnt lgkmcnt(0)")
    for jj in range(14): A(f"ds_read_b128 v[{XF+4*jj}:{XF+4*jj+3}], v{vXA} offset:{jj*64}")
    stamp('lndone')
    A("s_waitcnt vmcnt(0)")
    stamp('wqland')
    for jj in range(14):
        A(f"ds_read_b64_tr_b16 v[{WF+4*jj}:{WF+4*jj+1}], v{vTR} offset:{jj*1024}\nds_read_b64_tr_b16 v[{WF+4*jj+2}:{WF+4*jj+3}], v{vTR} offset:{jj*1024+128}")
    A(f"s_waitcnt lgkmcnt(0)")
    for jj in range(14):
        c="0" if jj==0 else f"v[{T}:{T+3}]"
        A(f"v_mfma_f32_16x16x32_bf16 v[{T}:{T+3}], v[{XF+4*jj}:{XF+4*jj+3}], v[{WF+4*jj}:{WF+4*jj+3}], {c}")
    A(f"s_mul_i32 s{sTAG}, s{sE}, 0x9E3779B1\ns_add_u32 s{sTAG}, s{sTAG}, 0x7F4A7C15")
    A(f"s_add_u32 s{sFF}, s{sE}, 1\ns_and_b32 s{sFF}, s{sFF}, 0xff\nv_mov_b32 v{vT8}, s{sFF}\ns_mov_b32 s{sFF}, 0xff\ns_mov_b32 s{sNM}, 0xffffff00")
    A(f"s_lshl_b32 s{sO2}, s{sCQ}, 6\ns_add_u32 s{sO2}, s{sO2}, {QBOX}\nv_lshlrev_b32 v{T+6}, 3, v7\nv_mov_b32 v{T+5}, s{sTAG}")
    A(f"v_mov_b32_dpp v{T+1}, v{T} quad_perm:[1,1,3,3] {DPP}")
    A(f"v_cvt_pk_bf16_f32 v{T+4}, v{T}, v{T+1}")
    A("s_mov_b64 exec, 0x5555")
    if not cfg.noqx: A(f"buffer_store_dwordx2 v[{T+4}:{T+5}], v{T+6}, s[{SRDW}:{SRDW+3}], s{sO2} offen sc1")
    A("s_mov_b64 exec, -1")
    stamp(2)
    TT1=tt(lambda a,b,t:(a^t)|(b^t)); TT2=tt(lambda a,b,c:(a|b)&c)
    def poll(loads, soff, mode, sleep, fast=0, fthr=None):
        PM=4
        lp=lab("poll"); ld=lab("polld")
        for i,(d,vo,imm,lm) in enumerate(loads):
            if lm is None: A(f"s_mov_b64 s[{PM+2*i}:{PM+2*i+1}], -1")
            else: A(f"s_mov_b32 s{PM+2*i}, {lm&0xffffffff:#x}\ns_mov_b32 s{PM+2*i+1}, {lm>>32:#x}")
        A(f"s_mov_b32 s{sSPIN}, 0\ns_mov_b32 s14, 999")
        A(f"{lp}:")
        for i,(d,vo,imm,lm) in enumerate(loads):
            sk=lab("sk")
            A(f"s_mov_b64 exec, s[{PM+2*i}:{PM+2*i+1}]\ns_cbranch_execz {sk}")
            A(f"buffer_load_dwordx4 v[{d}:{d+3}], v{vo}, s[{SRDW}:{SRDW+3}], s{soff} offen offset:{imm} {cfg.lpol}")
            A(f"{sk}:")
        A(f"s_mov_b64 exec, -1\ns_add_u32 s{sSPIN}, s{sSPIN}, 1")
        if fast and fthr is not None:
            sk=lab("fs")
            A(f"s_cmp_le_u32 s14, {fthr}\ns_cbranch_scc1 {sk}\ns_waitcnt vmcnt(0)\n{sk}:")
        A(f"s_waitcnt vmcnt({fast})")
        for i,(d,vo,imm,lm) in enumerate(loads):
            if mode=='s':
                A(f"v_max3_u32 v{T+i}, v{d}, v{d+1}, v{d+2}\nv_max_u32 v{T+i}, v{T+i}, v{d+3}")
            elif mode=='q':
                A(f"v_xor_b32 v{T+i}, s{sTAG}, v{d+1}\nv_xor_b32 v{T+4+i}, s{sTAG}, v{d+3}\nv_or_b32 v{T+i}, v{T+i}, v{T+4+i}")
            else:
                A(f"v_bitop3_b32 v{T+i}, v{d}, v{d+1}, v{vT8} bitop3:{TT1:#x}\nv_bitop3_b32 v{T+4+i}, v{d+2}, v{d+3}, v{vT8} bitop3:{TT1:#x}")
                A(f"v_bitop3_b32 v{T+i}, v{T+i}, v{T+4+i}, s{sFF} bitop3:{TT2:#x}")
        for i,(d,vo,imm,lm) in enumerate(loads):
            A(("v_cmp_eq_u32 vcc, -1" if mode=='s' else "v_cmp_ne_u32 vcc, 0")+f", v{T+i}\ns_and_b64 s[{PM+2*i}:{PM+2*i+1}], s[{PM+2*i}:{PM+2*i+1}], vcc")
        if len(loads)>1:
            A(f"s_or_b64 s[12:13], s[{PM}:{PM+1}], s[{PM+2}:{PM+3}]")
            for i in range(2,len(loads)): A(f"s_or_b64 s[12:13], s[12:13], s[{PM+2*i}:{PM+2*i+1}]")
        A(f"s_cbranch_scc0 {ld}")
        if fast and fthr is not None:
            A(f"s_bcnt1_i32_b64 s14, s[{PM}:{PM+1}]")
            for i in range(1,len(loads)): A(f"s_bcnt1_i32_b64 s15, s[{PM+2*i}:{PM+2*i+1}]\ns_add_u32 s14, s14, s15")
            if sleep:
                sk=lab("ns")
                A(f"s_cmp_le_u32 s14, {fthr}\ns_cbranch_scc1 {sk}\ns_sleep {sleep}\n{sk}:")
        elif sleep: A(f"s_sleep {sleep}")
        A(f"s_cmp_lt_u32 s{sSPIN}, {SPIN_LIMIT*4}\ns_cbranch_scc1 {lp}")
        A(f"{ld}:")
    A(f"s_lshr_b32 s{sO2}, s2, 5\ns_lshl_b32 s{sO2}, s{sO2}, 11\ns_add_u32 s{sO2}, s{sO2}, {QBOX}")
    def backoff(n):
        if n>0: C("back off before polling another workgroup's data")
        while n>0:
            A(f"s_sleep {min(n,127)}"); n-=127
    backoff(cfg.qdelay)
    if not cfg.noqx: poll([(F,vL16,0,None),(F+4,vL16,1024,None)], sO2, 'q', cfg.qsleep)
    stamp('qrecv')
    if not NB: A(f"v_mov_b32 v{T}, {RDY}\nv_mov_b32 v{T+1}, 0\nds_write2_b32 v{T}, v{T+1}, v{T+1} offset0:0 offset1:4")
    A(f"v_lshlrev_b32 v{T}, 3, v2\nv_add_u32 v{T}, {QB}, v{T}")
    A(f"ds_write2_b32 v{T}, v{F}, v{F+2} offset0:0 offset1:1\nds_write2_b32 v{T}, v{F+4}, v{F+6} offset0:128 offset1:129")
    if NB: A(f"v_mov_b32 v{T}, {QRDY}\nv_mov_b32 v{T+1}, 1\ns_waitcnt lgkmcnt(0)\nds_write_b32 v{T}, v{T+1}")
    else: A("s_waitcnt lgkmcnt(0)\ns_barrier")
    stamp(3)
    if cfg.prio2!=3: A(f"s_setprio {cfg.prio2}")
    if cfg.pool:
        lz=lab("nz")
        A(f"s_and_b32 s4, s2, {G-1}\ns_cbranch_scc1 {lz}")
        A(f"s_lshr_b32 s4, s2, {lg}\ns_mul_i32 s4, s4, {4*CSTR}\ns_add_u32 s4, s4, {CNT}\nv_mul_u32_u24 v{T}, {CSTR}, v2\nv_mov_b32 v{T+1}, 0\ns_mov_b64 exec, 15")
        A(f"buffer_store_dword v{T+1}, v{T}, s[{SRDW}:{SRDW+3}], s4 offen sc1\ns_mov_b64 exec, -1\n{lz}:")
    if cfg.probe is not None and cfg.probe[0]=='g':
        A(f"s_lshl_b32 s4, s2, 2\ns_add_u32 s4, s4, 0x300000\nv_mov_b32 v{T}, 0\nv_mov_b32 v{T+1}, s80\ns_mov_b64 exec, 1\nbuffer_store_dword v{T+1}, v{T}, s[{SRDW}:{SRDW+3}], s4 offen sc1\ns_mov_b64 exec, -1")
    C("roles: wo tile (32 rows a, column half b)")
    A(f"s_bfe_u32 s{sB}, s2, 0x10003\ns_lshr_b32 s{sA}, s2, 4\ns_lshl_b32 s{sA}, s{sA}, 3\ns_and_b32 s{sO2}, s2, 7\ns_add_u32 s{sA}, s{sA}, s{sO2}")
    A(f"v_and_b32 v{T}, 15, v2"); masks(AM,T,T+1,T+2)
    A(f"v_lshrrev_b32 v{T+1}, 4, v2\nv_mul_u32_u24 v{vTO}, 896, v{T+1}\nv_lshl_add_u32 v{vTO}, v{T}, 4, v{vTO}")
    for r in range(8): A(f"v_mov_b32 v{PA+r}, 0")
    def tile_load(sr, gated=True, so=None, pol=None, WT=WT, nt=8):
        if pol is None: pol=cfg.wnt
        for t in range(nt):
            o=sO2 if so is None else so
            if gated and cfg.agate is not None: A(f"s_waitcnt vmcnt({cfg.agate})")
            A(f"buffer_load_dwordx4 v[{WT+8*t}:{WT+8*t+3}], v{vTO}, s[{sr}:{sr+3}], s{o} offen {pol}")
            A("s_mov_b32 exec_lo, 0x0fff0fff\ns_mov_b32 exec_hi, 0x0fff0fff")
            A(f"buffer_load_dwordx4 v[{WT+8*t+4}:{WT+8*t+7}], v{vTO}, s[{sr}:{sr+3}], s{o} offen offset:256 {pol}")
            A(f"s_mov_b64 exec, -1\ns_add_u32 s{o}, s{o}, 3584")
    def project(src, WT=WT, nt=8):
        for t in range(nt+1):
            if t<nt:
                v,ln=src(t)
                for r in range(4): A(f"v_and_b32_dpp v{AT+4*t+r}, v{v}, v{AM+r} row_newbcast:{ln} {DPP}")
            if t>=1:
                tp=t-1
                for cb in range(2):
                    A(f"v_mfma_f32_16x16x32_bf16 v[{PA+4*cb}:{PA+4*cb+3}], v[{AT+4*tp}:{AT+4*tp+3}], v[{WT+8*tp+4*cb}:{WT+8*tp+4*cb+3}], v[{PA+4*cb}:{PA+4*cb+3}]")
    A(f"v_lshrrev_b32 v{T}, 5, v2\nv_lshlrev_b32 v{T}, 9, v{T}\nv_and_b32 v{T+1}, 15, v2\nv_lshl_add_u32 v{T}, v{T+1}, 5, v{T}\nv_bfe_u32 v{T+1}, v2, 4, 1\nv_lshl_add_u32 v{vPS}, v{T+1}, 4, v{T}")
    def rec_store(soff, sent=False, rne=False):
        nop(8)
        for r in range(4): A(f"v_permlane32_swap_b32 v{PA+r}, v{PA+4+r}")
        for r in range(4):
            if sent: A(f"v_min_u32 v{PA+r}, -2, v{PA+r}")
            else:
                if rne: A(f"v_add_u32 v{PA+r}, 0x80, v{PA+r}")
                A(f"v_bfi_b32 v{PA+r}, s{sFF}, v{vT8}, v{PA+r}")
        A("s_mov_b32 exec_hi, 0x0fff0fff")
        A(f"buffer_store_dwordx4 v[{PA}:{PA+3}], v{vPS}, s[{SRDW}:{SRDW+3}], s{soff} offen {cfg.opol}")
        A("s_mov_b32 exec_hi, -1")
    A(f"s_lshl_b32 s{sCQ}, s{sB}, 7\ns_add_u32 s{sCQ}, s{sCQ}, s{sA}\ns_lshl_b32 s{sCQ}, s{sCQ}, 10\ns_add_u32 s{sCQ}, s{sCQ}, {PBOX}")
    if cfg.sent:
        for r in range(4): A(f"v_mov_b32 v{F+r}, -1")
        A(f"s_lshl_b32 s4, s2, 11\ns_add_u32 s4, s4, {OBOX}")
        A(f"buffer_store_dwordx4 v[{F}:{F+3}], v{vL16}, s[{SRDW}:{SRDW+3}], s4 offen {cfg.cpol}\ns_waitcnt vmcnt({cfg.cgate})")
        A(f"buffer_store_dwordx4 v[{F}:{F+3}], v{vL16}, s[{SRDW}:{SRDW+3}], s4 offen offset:1024 {cfg.cpol}\ns_waitcnt vmcnt({cfg.cgate})")
        if cfg.cpol=='': A("s_waitcnt vmcnt(0)\nbuffer_wbl2 sc1\ns_waitcnt vmcnt(0)")
        if cfg.sent2: A(f"s_mov_b64 exec, s[74:75]\nbuffer_store_dwordx4 v[{F}:{F+3}], v{vL16}, s[{SRDW}:{SRDW+3}], s{sCQ} offen sc1\ns_mov_b64 exec, -1")
        nop(2)
    if cfg.pfm and not cfg.mlp2:
        srd(SRDK,sW1,448*1792*2); srd(SRDA,sW2,448*1792*2)
        A(f"s_mul_i32 s5, s2, 7168")
        for i in range(7):
            A(f"s_waitcnt vmcnt({cfg.pfgate})\nbuffer_load_dwordx4 v[{WF+4*i}:{WF+4*i+3}], v{vL16}, s[{SRDK}:{SRDK+3}], s5 offen\ns_add_u32 s5, s5, 1024")
        if cfg.pfm>1:
            A(f"s_mul_i32 s5, s2, 7168")
            for i in range(7):
                A(f"s_waitcnt vmcnt({cfg.pfgate})\nbuffer_load_dwordx4 v[{WF+28+4*i}:{WF+28+4*i+3}], v{vL16}, s[{SRDA}:{SRDA+3}], s5 offen\ns_add_u32 s5, s5, 1024")
        A("s_waitcnt vmcnt(0)")
        backoff(64)
    lnm=lab("nomlp")
    HA=WF; HS=128; sMO=70
    k0=math.sqrt(2/math.pi)
    def gelu_rot(h, bias, dst):
        t1=h+1; t2=h+2
        rbf(h,h)
        A(f"v_lshlrev_b32 v{bias}, 16, v{bias}\nv_add_f32 v{h}, v{h}, v{bias}"); rbf(h,h)
        A(f"v_mul_f32 v{t1}, v{h}, v{h}\nv_mul_f32 v{t1}, v{t1}, v{h}\nv_mov_b32 v{t2}, {f2u(0.044715):#x}\nv_fma_f32 v{t1}, v{t1}, v{t2}, v{h}")
        A(f"v_mul_f32 v{t1}, {f2u(-2*k0*math.log2(math.e)):#x}, v{t1}\nv_exp_f32 v{t1}, v{t1}"); nop(1)
        A(f"v_add_f32 v{t1}, 1.0, v{t1}\nv_rcp_f32 v{t1}, v{t1}"); nop(1)
        A(f"v_mul_f32 v{h}, v{h}, v{t1}\nv_cvt_pk_bf16_f32 v{h}, v{h}, v{h}\nv_mov_b32 v{dst}, v{h}"); nop(2)
        for g in range(1,4): A(f"v_mov_b32_dpp v{dst}, v{h} row_ror:{16-g} row_mask:{1<<g:#x} bank_mask:0xf")
    if cfg.mlp2:
        ls2=lab("st2")
        if cfg.nomlp: A(f"s_branch {lnm}")
        A("s_and_b32 s4, s2, 7\ns_lshr_b32 s5, s2, 5\ns_bfe_u32 s6, s2, 0x20003\ns_and_b32 s7, s5, 3")
        A("s_cmp_gt_u32 s6, s7\ns_subb_u32 s8, s6, 0\ns_lshl_b32 s8, s8, 3\ns_add_u32 s8, s8, s4")
        A("s_cmp_eq_u32 s6, s7\ns_cselect_b32 s8, 24, s8\ns_cselect_b32 s9, s4, s5")
        A(f"s_cmp_lg_u32 s9, s5\ns_cbranch_scc1 {lnm if cfg.fuse else ls2}")
        C("MLP stage 1: 64 rows x 64 columns of w1 -> partial pre-activations")
        A(f"s_mul_i32 s9, s5, 25\ns_add_u32 s8, s8, s9\ns_cmp_ge_u32 s8, 196\ns_cbranch_scc1 {lnm}")
        A(f"s_mul_i32 s9, s8, 2341\ns_lshr_b32 s9, s9, 16\ns_mul_i32 s10, s9, 28\ns_sub_u32 s8, s8, s10")
        A(f"v_lshrrev_b32 v{T}, 3, v2\nv_mul_u32_u24 v{vWO_}, 3584, v{T}\nv_and_b32 v{T}, 7, v2\nv_lshl_add_u32 v{vWO_}, v{T}, 4, v{vWO_}")
        srd(SRDK,sW1,448*1792*2)
        A(f"s_mul_i32 s{sO2}, s9, {64*3584}\ns_lshl_b32 s10, s8, 7\ns_add_u32 s{sO2}, s{sO2}, s10")
        for i in range(8):
            if cfg.mgate is not None: A(f"s_waitcnt vmcnt({cfg.mgate})")
            A(f"s_mov_b32 m0, {WBUF+i*1024}\ns_nop 0")
            if not cfg.now1: A(f"buffer_load_dwordx4 v{vWO_}, s[{SRDK}:{SRDK+3}], s{sO2} offen {cfg.mnt} lds")
            A(f"s_add_u32 s{sO2}, s{sO2}, {8*3584}")
        A(f"s_lshl_b32 s10, s9, 7\nv_add_u32 v{T}, s10, v{vXA}\nds_read_b128 v[{XF}:{XF+3}], v{T}\nds_read_b128 v[{XF+4}:{XF+7}], v{T} offset:64")
        A("s_waitcnt vmcnt(0)")
        for kk in range(2):
            for u in range(4):
                r=WT+16*kk+4*u
                A(f"ds_read_b64_tr_b16 v[{r}:{r+1}], v{vG1} offset:{kk*4096+u*32}\nds_read_b64_tr_b16 v[{r+2}:{r+3}], v{vG1} offset:{kk*4096+u*32+512}")
        A("s_waitcnt lgkmcnt(0)")
        for kk in range(2):
            for u in range(4):
                r=WT+16*kk+4*u; x=XF+4*kk
                c="0" if kk==0 else f"v[{HA+4*u}:{HA+4*u+3}]"
                A(f"v_mfma_f32_16x16x32_bf16 v[{HA+4*u}:{HA+4*u+3}], v[{x}:{x+3}], v[{r}:{r+3}], {c}")
        A(f"s_lshl_b32 s8, s8, 11\ns_lshl_b32 s9, s9, 8\ns_add_u32 s8, s8, s9\ns_add_u32 s8, s8, {HBOX}")
        nop(8)
        for u in range(4): A(f"v_add_u32 v{F+u}, 0x80, v{HA+4*u}\nv_bfi_b32 v{F+u}, s{sFF}, v{vT8}, v{F+u}")
        A(f"s_mov_b64 exec, 0xffff\nbuffer_store_dwordx4 v[{F}:{F+3}], v{vL16}, s[{SRDW}:{SRDW+3}], s8 offen sc1\ns_mov_b64 exec, -1")
        A(f"s_branch {lnm}")
    if cfg.mlp2 and not cfg.fuse:
        A(f"{ls2}:")
        C("MLP stage 2: gelu of 32 hidden units, times 32 rows of w2")
        A(f"s_cmp_gt_u32 s4, s5\ns_subb_u32 s4, s4, 0\ns_mul_i32 s{sCM}, s5, 7\ns_add_u32 s{sCM}, s{sCM}, s4")
        srd(SRDK,sW2,1792*448*2)
        srd(SRDA,sB1,3584)
        A(f"v_and_b32 v{T}, 15, v2\nv_lshlrev_b32 v{T}, 1, v{T}\ns_lshl_b32 s{sO2}, s{sCM}, 6")
        for u in range(2): A(f"buffer_load_ushort v{X+u}, v{T}, s[{SRDA}:{SRDA+3}], s{sO2} offen offset:{32*u}\ns_nop 0")
        W2B=32
        A(f"s_mul_i32 s{sO2}, s{sCM}, {32*896}")
        for t in range(8):
            for bb,base in enumerate((WT,W2B)):
                if cfg.now2: continue
                if cfg.agate is not None: A(f"s_waitcnt vmcnt({cfg.agate})")
                A(f"buffer_load_dwordx4 v[{base+8*t}:{base+8*t+3}], v{vTO}, s[{SRDK}:{SRDK+3}], s{sO2} offen offset:{448*bb} {cfg.mnt}")
                A("s_mov_b32 exec_lo, 0x0fff0fff\ns_mov_b32 exec_hi, 0x0fff0fff")
                A(f"buffer_load_dwordx4 v[{base+8*t+4}:{base+8*t+7}], v{vTO}, s[{SRDK}:{SRDK+3}], s{sO2} offen offset:{448*bb+256} {cfg.mnt}")
                A("s_mov_b64 exec, -1")
            A(f"s_add_u32 s{sO2}, s{sO2}, 3584")
        HG=132
        A(f"s_lshr_b32 s{sO2}, s{sCM}, 1\ns_lshl_b32 s{sO2}, s{sO2}, 11\ns_add_u32 s{sO2}, s{sO2}, {HBOX}")
        for r in range(4): A(f"v_mov_b32 v{HG+4+r}, 0")
        backoff(cfg.hdelay)
        poll([(HG,vL16,0,None),(HG+4,vL16,1024,(1<<48)-1)], sO2, 't', 64)
        for r in range(8): A(f"v_and_b32 v{HG+r}, s{sNM}, v{HG+r}")
        for r in range(4): A(f"v_add_f32 v{HG+r}, v{HG+r}, v{HG+4+r}")
        A(f"s_bitcmp1_b32 s{sCM}, 0\ns_cselect_b64 vcc, -1, 0"); nop(1)
        A(f"v_cndmask_b32 v{F}, v{HG}, v{HG+2}, vcc\nv_cndmask_b32 v{F+4}, v{HG+1}, v{HG+3}, vcc")
        xrowred("v_add_f32",F,T); xrowred("v_add_f32",F+4,T)
        gelu_rot(F,X,HS); gelu_rot(F+4,X+1,HS+1)
        nop(2)
        for bb,base in enumerate((WT,W2B)):
            project(lambda t:(HS+(t>>2), 4*(t&3)), base)
            A(f"s_lshl_b32 s4, s{sCM}, 10\ns_add_u32 s4, s4, {MBOX+bb*65536}")
            rec_store(4, rne=True)
            nop(2)
            for r in range(8): A(f"v_mov_b32 v{PA+r}, 0")
    if not cfg.mlp2:
        A(f"s_lshr_b32 s{sCM}, s2, 3\ns_xor_b32 s4, s{sCM}, s2\ns_and_b32 s4, s4, 7\ns_cbranch_scc1 {lnm}")
        A(f"s_cmp_ge_u32 s{sCM}, {0 if cfg.nomlp else 28}\ns_cbranch_scc1 {lnm}")
        A(f"v_lshrrev_b32 v{T}, 3, v2\nv_mul_u32_u24 v{vWO_}, 3584, v{T}\nv_and_b32 v{T}, 7, v2\nv_lshl_add_u32 v{vWO_}, v{T}, 4, v{vWO_}")
        srd(SRDK,sW1,448*1792*2)
        srd(SRDA,sB1,3584)
        A(f"v_and_b32 v{T}, 15, v2\nv_lshlrev_b32 v{T}, 1, v{T}\ns_lshl_b32 s{sO2}, s{sCM}, 7")
        for u in range(4): A(f"buffer_load_ushort v{F+u}, v{T}, s[{SRDA}:{SRDA+3}], s{sO2} offen offset:{32*u}\ns_nop 0")
        for ps in range(4):
            nk = 4 if ps<3 else 2
            for i in range(4*nk):
                if cfg.mgate is not None: A(f"s_waitcnt vmcnt({cfg.mgate})")
                A(f"s_mov_b32 m0, {WBUF+i*1024}\ns_nop 0")
                if not cfg.now1: A(f"buffer_load_dwordx4 v{vWO_}, s[{SRDK}:{SRDK+3}], s{sO2} offen {cfg.mnt} lds")
                A(f"s_add_u32 s{sO2}, s{sO2}, {8*3584}")
            A("s_waitcnt vmcnt(0)")
            for kk in range(nk):
                for u in range(4):
                    r=WT+16*kk+4*u
                    A(f"ds_read_b64_tr_b16 v[{r}:{r+1}], v{vG1} offset:{kk*4096+u*32}\nds_read_b64_tr_b16 v[{r+2}:{r+3}], v{vG1} offset:{kk*4096+u*32+512}")
            A("s_waitcnt lgkmcnt(0)")
            for kk in range(nk):
                for u in range(4):
                    r=WT+16*kk+4*u; x=XF+4*(4*ps+kk)
                    c="0" if (ps==0 and kk==0) else f"v[{HA+4*u}:{HA+4*u+3}]"
                    A(f"v_mfma_f32_16x16x32_bf16 v[{HA+4*u}:{HA+4*u+3}], v[{x}:{x+3}], v[{r}:{r+3}], {c}")
        nop(8)
        k0=math.sqrt(2/math.pi)
        for u in range(4):
            h=HA+4*u; t1=h+1; t2=h+2
            rbf(h,h)
            A(f"v_lshlrev_b32 v{F+u}, 16, v{F+u}\nv_add_f32 v{h}, v{h}, v{F+u}"); rbf(h,h)
            A(f"v_mul_f32 v{t1}, v{h}, v{h}\nv_mul_f32 v{t1}, v{t1}, v{h}\nv_mov_b32 v{t2}, {f2u(0.044715):#x}\nv_fma_f32 v{t1}, v{t1}, v{t2}, v{h}")
            A(f"v_mul_f32 v{t1}, {f2u(-2*k0*math.log2(math.e)):#x}, v{t1}\nv_exp_f32 v{t1}, v{t1}"); nop(1)
            A(f"v_add_f32 v{t1}, 1.0, v{t1}\nv_rcp_f32 v{t1}, v{t1}"); nop(1)
            A(f"v_mul_f32 v{h}, v{h}, v{t1}\nv_cvt_pk_bf16_f32 v{h}, v{h}, v{h}\nv_mov_b32 v{HS+u}, v{h}"); nop(2)
            for g in range(1,4): A(f"v_mov_b32_dpp v{HS+u}, v{h} row_ror:{16-g} row_mask:{1<<g:#x} bank_mask:0xf")
        srd(SRDK,sW2,1792*448*2)
        for bb in range(2):
            A(f"s_mul_i32 s{sO2}, s{sCM}, {64*896}\ns_add_u32 s{sO2}, s{sO2}, {448*bb}")
            for rb in range(2):
                if not cfg.now2: tile_load(SRDK,pol=cfg.mnt)
                A("s_waitcnt vmcnt(0)")
                project(lambda t:(HS+2*rb+(t>>2), 4*(t&3)))
                nop(4)
            A(f"s_lshl_b32 s4, s{sCM}, 10\ns_add_u32 s4, s4, {MBOX+bb*32768}")
            rec_store(4)
            nop(2)
            for r in range(8): A(f"v_mov_b32 v{PA+r}, 0")
    stamp('mlpdone')
    A(f"{lnm}:")
    FC=cfg.fc; FC0=256-FC
    stamp('wodone')
    if NB: ldswait(KCNT, T, T+1, sSPIN, 4, 16)
    else: A("s_barrier")
    stamp(4)
    C("row sums of this split; exchange (max, sum) between the 32 splits of the kv head")
    A(f"s_mov_b32 s{sCM}, {f2u(CEXP):#x}")
    if cfg.binfv is not None:
        C("how many splits of this head are already past their K pass (late splits keep one more load in flight)")
        A(f"s_lshr_b32 s4, s2, 5\ns_lshl_b32 s4, s4, 9\ns_add_u32 s4, s4, {MLBOX}\ns_mov_b32 exec_hi, 0")
        A(f"buffer_load_dwordx4 v[{WF}:{WF+3}], v{vL16}, s[{SRDW}:{SRDW+3}], s4 offen sc1\ns_mov_b32 exec_hi, -1")
    if cfg.pool:
        C("publish the scores of the pooled tiles")
        A(f"v_bfe_u32 v{T}, v2, 2, 2\nv_lshlrev_b32 v{T}, 11, v{T}\nv_lshrrev_b32 v{T+1}, 4, v2\nv_lshl_add_u32 v{T}, v{T+1}, 6, v{T}\nv_and_b32 v{T+1}, 3, v2\nv_lshl_add_u32 v{T}, v{T+1}, 4, v{T}\nv_add_u32 v{T}, {SC+28*64}, v{T}")
        A(f"ds_read_b128 v[{X}:{X+3}], v{T}\ns_lshl_b32 s4, s2, 10\ns_add_u32 s4, s4, {SBOX}\ns_waitcnt lgkmcnt(0)")
        if not cfg.nosbw: A(f"buffer_store_dwordx4 v[{X}:{X+3}], v{vL16}, s[{SRDW}:{SRDW+3}], s4 offen sc1")
    A(f"v_and_b32 v{T}, 1, v2\nv_lshlrev_b32 v{T+1}, 4, v{T}\nv_add_u32 v{T+1}, {MX}, v{T+1}\nv_lshlrev_b32 v{T+2}, 5, v2\nv_add_u32 v{T+2}, {SC}, v{T+2}")
    A(f"ds_read_b128 v[{F}:{F+3}], v{T+1}")
    for w in range(4):
        A(f"ds_read_b128 v[{XF+8*w}:{XF+8*w+3}], v{T+2} offset:{w*2048}\nds_read_b128 v[{XF+8*w+4}:{XF+8*w+7}], v{T+2} offset:{w*2048+16}")
    A("s_waitcnt lgkmcnt(0)")
    A(f"v_max_f32 v{F}, v{F}, v{F+1}\nv_max3_f32 v{F}, v{F}, v{F+2}, v{F+3}\nv_mul_f32 v{F+4}, s{sCM}, v{F}\nv_sub_f32 v{F+4}, 0, v{F+4}")
    A(f"v_mov_b32 v{F+1}, 0\nv_mov_b32 v{F+5}, 0")
    for r in range(32):
        A(f"v_lshlrev_b32 v{T+3}, 16, v{XF+r}\nv_and_b32 v{T+4}, 0xffff0000, v{XF+r}")
        A(f"v_fma_f32 v{T+3}, v{T+3}, s{sCM}, v{F+4}\nv_fma_f32 v{T+4}, v{T+4}, s{sCM}, v{F+4}")
        A(f"v_exp_f32 v{T+3}, v{T+3}\nv_exp_f32 v{T+4}, v{T+4}"); nop(1)
        A(f"v_add_f32 v{F+1}, v{F+1}, v{T+3}\nv_add_f32 v{F+5}, v{F+5}, v{T+4}")
    A(f"v_add_f32 v{F+1}, v{F+1}, v{F+5}")
    rowred("v_add_f32",F+1,[2,4,8]); xrowred("v_add_f32",F+1,T+3)
    nop(2)
    A(f"v_mov_b32_dpp v{F+2}, v{F} quad_perm:[1,1,3,3] {DPP}\nv_mov_b32_dpp v{F+3}, v{F+1} quad_perm:[1,1,3,3] {DPP}")
    A(f"v_mov_b32 v{F+6}, v{F}")
    for r in range(4): A(f"v_bfi_b32 v{F+r}, s{sFF}, v{vT8}, v{F+r}")
    if cfg.probe is not None and cfg.probe[0]=='x':
        A(f"s_getreg_b32 s4, hwreg(HW_REG_XCC_ID)\ns_and_b32 s4, s4, 15\ns_lshl_b32 s4, s4, 8\nv_or_b32 v{F}, s4, v{F}")
    A(f"s_lshl_b32 s{sO2}, s2, 4\ns_add_u32 s{sO2}, s{sO2}, {MLBOX}\nv_mov_b32 v{T}, 0\ns_mov_b64 exec, 1\ns_waitcnt vmcnt(0)")
    if not cfg.noml: A(f"buffer_store_dwordx4 v[{F}:{F+3}], v{T}, s[{SRDW}:{SRDW+3}], s{sO2} offen sc1")
    A("s_mov_b64 exec, -1")
    if cfg.binfv is not None:
        A(f"v_bitop3_b32 v{T}, v{WF}, v{WF+1}, v{vT8} bitop3:{TT1:#x}\nv_bitop3_b32 v{T+1}, v{WF+2}, v{WF+3}, v{vT8} bitop3:{TT1:#x}\nv_bitop3_b32 v{T}, v{T}, v{T+1}, s{sFF} bitop3:{TT2:#x}")
        A(f"v_cmp_eq_u32 vcc, 0, v{T}\ns_bcnt1_i32_b32 s4, vcc_lo\ns_cmp_ge_u32 s4, {cfg.brank}\ns_cselect_b32 s4, 1, 0\nv_mov_b32 v{T}, {BOOST}\nv_mov_b32 v{T+1}, s4\nds_write_b32 v{T}, v{T+1}")
    srd(SRDK,sWO,4096*448*2)
    A(f"s_mul_i32 s{sO2}, s{sA}, {32*896}\ns_mul_i32 s{sSPIN}, s{sB}, 448\ns_add_u32 s{sO2}, s{sO2}, s{sSPIN}")
    LATE = cfg.wolate and cfg.pool
    if not cfg.nowo and not LATE: tile_load(SRDK)
    FC=cfg.fc
    lnf=lab("nofin")
    FC0=256-FC
    if FC==56:
        A(f"v_lshrrev_b32 v{T}, 4, v2\nv_and_b32 v{T+1}, 1, v2\nv_lshl_add_u32 v{T}, v{T+1}, 2, v{T}\nv_lshlrev_b32 v{vG2}, 1, v{T}")
        A(f"s_sub_u32 s{sO2}, s2, {FC0}\ns_lshl_b32 s{sO2}, s{sO2}, 4")
    else:
        A(f"v_lshrrev_b32 v{T}, 4, v2\nv_lshlrev_b32 v{vG2}, 1, v{T}")
        A(f"s_sub_u32 s{sO2}, s2, {FC0}\ns_lshl_b32 s{sO2}, s{sO2}, 3")
    A(f"v_add_u32 v{vG2}, s{sO2}, v{vG2}")
    A(f"s_cmp_lt_u32 s2, {FC0}\ns_cbranch_scc1 {lnf}")
    srd(SRDA,sX,896)
    A(f"buffer_load_ushort v{vFX}, v{vG2}, s[{SRDA}:{SRDA+3}], 0 offen")
    srd(SRDK,sB2,896)
    A(f"buffer_load_ushort v{T}, v{vG2}, s[{SRDK}:{SRDK+3}], 0 offen")
    A(f"s_waitcnt vmcnt(0)\nv_lshlrev_b32 v{vFX}, 16, v{vFX}\nv_lshlrev_b32 v{vFM}, 16, v{T}")
    if not cfg.mimic or cfg.fuse: A(f"v_add_f32 v{vFX}, v{vFX}, v{vFM}")
    A(f"{lnf}:")
    backoff(cfg.mldelay)
    I1=XF
    A(f"s_lshr_b32 s{sO2}, s2, 5\ns_lshl_b32 s{sO2}, s{sO2}, 9\ns_add_u32 s{sO2}, s{sO2}, {MLBOX}\nv_lshlrev_b32 v{vWO_}, 4, v7")
    if not cfg.noml: poll([(I1,vWO_,0,None)], sO2, 't', cfg.mlsleep)
    if cfg.probe is not None and cfg.probe[0]=='x':
        A(f"v_bfe_u32 v{T}, v{I1}, 8, 4\nv_mov_b32 v{T+1}, v{T}"); nop(2)
        A(f"v_permlane16_swap_b32 v{T}, v{T+1}\nv_cmp_ne_u32 vcc, v{T}, v{T+1}\ns_bcnt1_i32_b64 s79, vcc")
    A(f"v_and_b32 v{T}, 1, v2\nv_cmp_eq_u32 vcc, 1, v{T}"); nop(2)
    A(f"v_cndmask_b32 v{I1}, v{I1}, v{I1+2}, vcc\nv_cndmask_b32 v{I1+1}, v{I1+1}, v{I1+3}, vcc\nv_and_b32 v{I1}, 0xffff0000, v{I1}\nv_and_b32 v{I1+1}, s{sNM}, v{I1+1}\nv_mov_b32 v{T+1}, v{I1}")
    rowred("v_max_f32",T+1,[2,4,8]); xrowred("v_max_f32",T+1,T+2)
    A(f"v_sub_f32 v{T+2}, v{I1}, v{T+1}\nv_sub_f32 v{T+3}, v{F+6}, v{T+1}\nv_mul_f32 v{T+2}, s{sCM}, v{T+2}\nv_mul_f32 v{T+3}, s{sCM}, v{T+3}")
    A(f"v_exp_f32 v{T+2}, v{T+2}\nv_exp_f32 v{T+3}, v{T+3}"); nop(1)
    A(f"v_mul_f32 v{T+2}, v{T+2}, v{I1+1}")
    rowred("v_add_f32",T+2,[2,4,8]); xrowred("v_add_f32",T+2,T+4)
    A(f"v_rcp_f32 v{T+4}, v{T+2}"); nop(1)
    A(f"v_fma_f32 v{T+5}, -v{T+2}, v{T+4}, 1.0\nv_fma_f32 v{T+4}, v{T+5}, v{T+4}, v{T+4}")
    A(f"v_lshlrev_b32 v{T}, 2, v{T}\nv_add_u32 v{T}, {FB}, v{T}")
    if cfg.pool:
        A(f"v_mul_f32 v{T+1}, s{sCM}, v{T+1}\nv_sub_f32 v{T+1}, 0, v{T+1}")
        A(f"ds_write_b32 v{T}, v{T+4}\nds_write_b32 v{T}, v{T+3} offset:8\nds_write_b32 v{T}, v{T+1} offset:16")
        A(f"s_and_b32 s4, s2, 0xf8\ns_lshl_b32 s4, s4, 10\ns_add_u32 s4, s4, {SBOX}")
        for k in range(8):
            if k==4: A("s_add_u32 s4, s4, 4096")
            if not cfg.nosbr and not cfg.sdir: A(f"s_waitcnt vmcnt(1)\nbuffer_load_dwordx4 v[{I1+4*k}:{I1+4*k+3}], v{vL16}, s[{SRDW}:{SRDW+3}], s4 offen offset:{(k&3)*1024} sc1")
        A(f"v_add_u32 v{T}, {WBUF}, v{vL16}\ns_waitcnt vmcnt(0)")
        if not cfg.sdir:
            for k in range(8): A(f"ds_write_b128 v{T}, v[{I1+4*k}:{I1+4*k+3}] offset:{k*1024}")
        A(f"v_mov_b32 v{T}, {RDY}\nv_mov_b32 v{T+1}, 1\ns_waitcnt lgkmcnt(0)\nds_write_b32 v{T}, v{T+1}")
        stamp('rdy')
    else:
        A(f"v_mul_f32 v{T+3}, v{T+3}, v{T+4}\nds_write_b32 v{T}, v{T+3}")
    half=FC//2
    sH2=68
    A(f"s_sub_u32 s{sSPIN}, s2, {FC0}\ns_cmp_ge_u32 s{sSPIN}, {half}\ns_cselect_b32 s{sH2}, {128*1024-896}, 0\ns_cselect_b32 s{sO2}, {(64 if cfg.mlp2 else 32)*1024-896}, 0\ns_mul_i32 s{sSPIN}, s{sSPIN}, {1792//FC}")
    A(f"s_add_u32 s{sH2}, s{sH2}, s{sSPIN}\ns_add_u32 s{sH2}, s{sH2}, {PBOX}\ns_add_u32 s{sO2}, s{sO2}, s{sSPIN}\ns_add_u32 s{sO2}, s{sO2}, {MBOX}")
    assert FC==56
    A(f"v_lshlrev_b32 v{vH}, 10, v7\nv_and_b32 v{T}, 1, v2\nv_lshl_add_u32 v{vH}, v{T}, 4, v{vH}")
    for k in range(1,4): A(f"v_add_u32 v{vH+k}, {k*32768}, v{vH}")
    if cfg.fuse:
        C("MLP stage 2: gelu of this tile's 16 hidden units (their w2 rows join the output projection)")
        lg=lab("noh"); HG=132
        A(f"v_mov_b32 v{HS}, 0\ns_cmp_ge_u32 s{sA}, {0 if cfg.nomlp else 112}\ns_cbranch_scc1 {lg}")
        srd(SRDA,sB1,3584)
        A(f"v_and_b32 v{T}, 15, v2\nv_lshlrev_b32 v{T}, 1, v{T}\ns_lshl_b32 s69, s{sA}, 5")
        A(f"buffer_load_ushort v{X}, v{T}, s[{SRDA}:{SRDA+3}], s69 offen")
        A(f"s_lshr_b32 s69, s{sA}, 2\ns_lshl_b32 s69, s69, 11\ns_add_u32 s69, s69, {HBOX}")
        for r in range(4): A(f"v_mov_b32 v{HG+4+r}, 0")
        poll([(HG,vL16,0,None),(HG+4,vL16,1024,(1<<48)-1)], 69, 't', 64)
        for r in range(8): A(f"v_and_b32 v{HG+r}, s{sNM}, v{HG+r}")
        for r in range(4): A(f"v_add_f32 v{HG+r}, v{HG+r}, v{HG+4+r}")
        A(f"s_bitcmp1_b32 s{sA}, 1\ns_cselect_b64 vcc, -1, 0"); nop(1)
        A(f"v_cndmask_b32 v{HG}, v{HG}, v{HG+2}, vcc\nv_cndmask_b32 v{HG+1}, v{HG+1}, v{HG+3}, vcc")
        A(f"s_bitcmp1_b32 s{sA}, 0\ns_cselect_b64 vcc, -1, 0"); nop(1)
        A(f"v_cndmask_b32 v{F}, v{HG}, v{HG+1}, vcc")
        xrowred("v_add_f32",F,T)
        gelu_rot(F,X,HS)
        A(f"{lg}:")
    if cfg.mimic and not cfg.nomlp and not cfg.fuse:
        lg=lab("nomg")
        A(f"s_cmp_lt_u32 s2, {FC0}\ns_cbranch_scc1 {lg}")
        if cfg.sent2:
            A(f"s_mov_b32 s69, {MLBOX}")
            poll([(I1+4*k,vL16,1024*k,None) for k in range(4)], 69, 't', 64)
        if cfg.mlp2:
            for r in range(4): A(f"v_mov_b32 v{I1+4+r}, 0")
            poll([(I1,vH,0,None),(I1+4,vH+1,0,(1<<48)-1)], sO2, 't', 64)
            for r in range(8): A(f"v_and_b32 v{I1+r}, s{sNM}, v{I1+r}")
            for r in range(4): A(f"v_add_f32 v{I1+r}, v{I1+r}, v{I1+4+r}")
        else:
            for r in range(4): A(f"v_mov_b32 v{I1+r}, 0")
            poll([(I1,vH,0,(1<<56)-1)], sO2, 't', 64)
            for r in range(4): A(f"v_and_b32 v{I1+r}, s{sNM}, v{I1+r}")
        tred4(I1); rowred("v_add_f32",I1,[2,4,8])
        rbf(I1,I1)
        A(f"v_add_f32 v{vFM}, v{vFM}, v{I1}"); rbf(vFM,vFM)
        A(f"{lg}:")
    srd(SRDA,sOUT,896)
    A(f"v_bfe_u32 v{T}, v2, 3, 2\nv_lshlrev_b32 v{T}, 14, v{T}\nv_lshrrev_b32 v{T+1}, 5, v2\nv_lshl_add_u32 v{T}, v{T+1}, 11, v{T}\nv_and_b32 v{T+1}, 7, v2\nv_lshl_add_u32 v{vG1}, v{T+1}, 4, v{T}")
    for k in range(1,4): A(f"v_add_u32 v{X+k}, {k*4096}, v{vG1}")
    A(f"s_lshr_b32 s{sO2}, s2, 5\ns_lshl_b32 s{sO2}, s{sO2}, 16\ns_and_b32 s{sSPIN}, s{sA}, 15\ns_lshl_b32 s{sSPIN}, s{sSPIN}, 7\ns_add_u32 s{sO2}, s{sO2}, s{sSPIN}\ns_add_u32 s{sO2}, s{sO2}, {OBOX}")
    if cfg.warm:
        lh=lab("pc")
        A(f"s_getpc_b64 s[4:5]\n{lh}:\nv_lshlrev_b32 v{T}, 6, v2")
        A(f"v_min_u32 v{T+1}, {Ldone}-{lh}, v{T}\nglobal_load_dword v{T+1}, v{T+1}, s[4:5]")
        A(f"s_add_u32 s6, s4, {Lpool}-{lh}\ns_addc_u32 s7, s5, -1")
        for k in range(cfg.warm):
            A(f"global_load_dword v{T+2+k}, v{T}, s[6:7]\ns_add_u32 s6, s6, 4096\ns_addc_u32 s7, s7, 0")
    if cfg.touch is not None:
        if not cfg.sent:
            A(f"s_lshl_b32 s4, s2, 11\ns_add_u32 s4, s4, {OBOX}")
            A(f"buffer_load_dwordx4 v[{I1}:{I1+3}], v{vL16}, s[{SRDW}:{SRDW+3}], s4 offen {cfg.touch}\ns_nop 0")
            A(f"buffer_load_dwordx4 v[{I1+4}:{I1+7}], v{vL16}, s[{SRDW}:{SRDW+3}], s4 offen offset:1024 {cfg.touch}\ns_nop 0")
        if not cfg.sent2:
            A(f"buffer_load_dwordx4 v[{I1+8}:{I1+11}], v{vL16}, s[{SRDW}:{SRDW+3}], s{sCQ} offen {cfg.touch}")
        A("s_waitcnt vmcnt(0)")
    if LATE:
        srd(SRDK,sWO,4096*448*2)
        A(f"s_mul_i32 s69, s{sA}, {32*896}\ns_mul_i32 s4, s{sB}, 448\ns_add_u32 s69, s69, s4")
        lw=lab("dw"); lwd=lab("dwd")
    if LATE and cfg.wolate==2:
        if cfg.fuse:
            srd(SRDV,sW2,1792*448*2)
            A(f"s_mul_i32 s70, s{sA}, {16*896}\ns_add_u32 s70, s70, s4")
        A("s_waitcnt vmcnt(0) lgkmcnt(0)\ns_barrier")
        stamp(5)
        if cfg.fuse: tile_load(SRDV, gated=False, so=70, WT=64, nt=4)
        if not cfg.nowo: tile_load(SRDK, gated=False, so=69)
    elif LATE:
        A(f"v_mov_b32 v{T}, {DONE}\ns_mov_b32 s{sSPIN}, 0")
        A(f"{lw}:\nds_read_b32 v{T+1}, v{T}\ns_add_u32 s{sSPIN}, s{sSPIN}, 1\ns_waitcnt lgkmcnt(0)\nv_readfirstlane_b32 s4, v{T+1}\ns_cmp_lg_u32 s4, 0\ns_cbranch_scc1 {lwd}")
        A(f"s_sleep 2\ns_cmp_lt_u32 s{sSPIN}, {SPIN_LIMIT*64}\ns_cbranch_scc1 {lw}\n{lwd}:")
        backoff(cfg.wodelay)
        tile_load(SRDK, gated=False, so=69)
        A("s_barrier")
    else:
        A("s_waitcnt vmcnt(0) lgkmcnt(0)\ns_barrier")
    if cfg.wolate!=2: stamp(5)
    if cfg.notail: A(f"s_branch {lend}")
    R=F
    def sum16(I, sent):
        assert not (cfg.fast1 or cfg.fast2)
        if not sent:
            for r in range(16): A(f"v_and_b32 v{I+r}, s{sNM}, v{I+r}")
        for r in range(4): A(f"v_add_f32 v{R+r}, v{I+r}, v{I+4+r}\nv_add_f32 v{R+4+r}, v{I+8+r}, v{I+12+r}")
        for r in range(4): A(f"v_add_f32 v{R+r}, v{R+r}, v{R+4+r}")
        tred4(R)
    C("hop 1: gather the 32 normalised partial outputs of this tile's 32 dims, project with wo")
    if cfg.fuse:
        A("s_waitcnt vmcnt(16)")
        project(lambda t:(HS,4*t), 64, 4)
    elif cfg.wowait is not None: A(f"s_waitcnt vmcnt({cfg.wowait})")
    backoff(cfg.h1delay)
    poll([(I1,vG1,0,None),(I1+4,X+1,0,None),(I1+8,X+2,0,None),(I1+12,X+3,0,None)], sO2, 's' if cfg.sent else 't', cfg.sleep1, cfg.fast1, cfg.fthr)
    stamp(6)
    if cfg.tdiag: A(f"s_mov_b32 s95, s{sSPIN}")
    sum16(I1,cfg.sent); rowred("v_add_f32",R,[8])
    A(f"v_cvt_pk_bf16_f32 v{R}, v{R}, v{R}"); nop(2)
    project(lambda t:(R,t))
    rec_store(sCQ, cfg.sent2)
    stamp('rec')
    A(f"s_cmp_lt_u32 s2, {FC0}\ns_cbranch_scc1 {lend}")
    C("hop 2: 56 workgroups sum the 128 projection partials of 8 output columns each")
    I2=XF+16
    if cfg.ackw: A("s_waitcnt vmcnt(0)")
    backoff(cfg.h2delay)
    poll([(I2+4*k,vH+k,0,None) for k in range(4)], sH2, 's' if cfg.sent2 else 't', cfg.sleep2, cfg.fast2, None)
    stamp('h2')
    sum16(I2,cfg.sent2); rowred("v_add_f32",R,[2,4,8])
    if cfg.mimic and not cfg.fuse:
        rbf(R,R)
        A(f"v_add_f32 v{R}, v{vFX}, v{R}"); rbf(R,R)
        A(f"v_add_f32 v{R}, v{R}, v{vFM}\nv_cvt_pk_bf16_f32 v{R}, v{R}, v{R}")
    else:
        if cfg.tolp is not None:
            A(f"s_cmp_eq_u32 s2, 200\ns_cselect_b32 s4, {f2u(cfg.tolp):#x}, 0\nv_add_f32 v{R}, s4, v{R}")
        A(f"v_add_f32 v{R}, v{vFX}, v{R}\nv_cvt_pk_bf16_f32 v{R}, v{R}, v{R}")
    A(f"s_mov_b32 exec_lo, 0x00030003\ns_mov_b32 exec_hi, 0x00030003")
    A(f"buffer_store_short v{R}, v{vG2}, s[{SRDA}:{SRDA+3}], 0 offen")
    C("advance the hand-off epoch (every workgroup has read it long ago)")
    A(f"s_cmp_lg_u32 s2, 255\ns_cbranch_scc1 {lend}")
    A(f"s_mov_b64 exec, 1\ns_add_u32 s{sE}, s{sE}, 1\nv_mov_b32 v{T+1}, s{sE}\nv_mov_b32 v{T+2}, 0")
    A(f"buffer_store_dword v{T+1}, v{T+2}, s[{SRDW}:{SRDW+3}], 0 offen sc1")
    if cfg.probe is not None:
        lx=lab("px"); ly=lab("py")
        if cfg.probe[0]=='g':
            A(f"s_mov_b64 exec, -1\ns_mov_b32 s4, 0x300000\nbuffer_load_dwordx4 v[{F}:{F+3}], v{vL16}, s[{SRDW}:{SRDW+3}], s4 offen sc1")
            A("s_waitcnt vmcnt(0)\ns_memrealtime s[82:83]\ns_waitcnt lgkmcnt(0)")
            for r in range(4): A(f"v_sub_u32 v{F+r}, s82, v{F+r}")
            A(f"v_max3_u32 v{F}, v{F}, v{F+1}, v{F+2}\nv_max_u32 v{F}, v{F}, v{F+3}\ns_mov_b32 s4, {int(cfg.probe[1]*100)}\nv_cmp_lt_u32 vcc, s4, v{F}\ns_cbranch_vccz {lend}")
        elif cfg.probe[0]=='t':
            A("s_waitcnt vmcnt(0)\ns_memrealtime s[82:83]\ns_waitcnt lgkmcnt(0)")
            k={'end':82,'b1':86,'b2':88,'b3':90}[cfg.probe[2]]
            A(f"s_sub_u32 s4, s{k}, s80\ns_cmp_lt_u32 s4, {int(cfg.probe[1]*100)}\ns_cbranch_scc1 {lend}")
        else:
            A(f"s_cmp_eq_u32 s79, 0\ns_cbranch_scc1 {lend}")
        A(f"s_mov_b32 s4, 40\n{lx}:\ns_sleep 40\ns_sub_u32 s4, s4, 1\ns_cmp_lg_u32 s4, 0\ns_cbranch_scc1 {lx}")
        A("s_endpgm")
    A(f"{lend}:")
    if cfg.probe is not None: pass
    elif cfg.stamps and cfg.dbgout:
        A(f"s_cmp_lt_u32 s2, 252\ns_cbranch_scc1 {Ldone}")
        A("s_mov_b64 exec, 1\ns_waitcnt vmcnt(0)")
        stamp(1)
        srd(SRDA,sDBG,256)
        A(f"s_waitcnt lgkmcnt(0)\ns_sub_u32 s{sO2}, s2, 252\ns_lshl_b32 s{sO2}, s{sO2}, 4\nv_mov_b32 v{T}, 0")
        for i,k in enumerate((3,4,5,1)):
            A(f"s_sub_u32 s4, s{80+2*k}, s80\nv_mov_b32 v{F+i}, s4")
        A(f"buffer_store_dwordx4 v[{F}:{F+3}], v{T}, s[{SRDA}:{SRDA+3}], s{sO2} offen")
    elif cfg.stamps:
        A("s_mov_b64 exec, 1\ns_waitcnt vmcnt(0)")
        stamp(1)
        A("s_getreg_b32 s94, hwreg(HW_REG_XCC_ID)\ns_waitcnt lgkmcnt(0)")
        A(f"s_lshl_b32 s{sO2}, s2, 6\ns_add_u32 s{sO2}, s{sO2}, {STAMP:#x}\nv_mov_b32 v{T}, 0")
        for k in range(8):
            A(f"v_mov_b32 v{F}, s{80+2*k}\nv_mov_b32 v{F+1}, s{81+2*k}\nbuffer_store_dwordx2 v[{F}:{F+1}], v{T}, s[{SRDW}:{SRDW+3}], s{sO2} offen offset:{8*k}\ns_nop 1")
    A(f"{Ldone}:")
    A("s_endpgm")
    body="\n".join(L)+"\n"
    kd=f""".section .rodata,"a"
.p2align 6
.amdhsa_kernel {N}
  .amdhsa_next_free_vgpr 232
  .amdhsa_next_free_sgpr 96
  .amdhsa_accum_offset 232
  .amdhsa_group_segment_fixed_size 0
  .amdhsa_kernarg_size 104
  .amdhsa_user_sgpr_count 2
  .amdhsa_user_sgpr_kernarg_segment_ptr 1
  .amdhsa_system_sgpr_workgroup_id_x 1
  .amdhsa_float_denorm_mode_32 3
.end_amdhsa_kernel
"""
    return body, kd

HDR='''; ---------------------------------------------------------------------------------------------
;    plus a 16x224 tile of w2 in one f32 accumulator, final sum with x and b2.
; ---------------------------------------------------------------------------------------------
'''
def header():
    ref=open('parallel_sum__gqa_block_cached__dense_activation_gelu__decode.s.ref').read().split("\n")
    out=[]
    for l in ref:
        if l.startswith("; @launch"):
            out.append(f"; @launch grid=(256,1,1) block=(320,1,1) lds={LDS_END}")
            break
        out.append(l)
    return "\n".join(out)+"\n"

def final(cfg, path):
    body,kd=gen(cfg)
    open(path,"w").write(header()+HDR+'.amdgcn_target "amdgcn-amd-amdhsa--gfx950"\n.text\n'+body+kd)

def bench(cfgs, path):
    sys.path.insert(0,'bench')
    from genstream import meta
    s='.amdgcn_target "amdgcn-amd-amdhsa--gfx950"\n'
    ks=[]; args=[]
    for c in cfgs:
        body,kd=gen(c)
        s+=".text\n"+body+kd.replace("kernarg_size 104","kernarg_size 112")
        ks.append((c.name,232,320)); args.append(f"{c.name} 256 320 {LDS_END}")
    s+=meta(ks)
    open(path+".s","w").write(s); open(path+".args","w").write(" @ ".join(args))

def mk(name, **kw):
    c=Cfg(); c.name=name
    for k,v in kw.items():
        assert hasattr(c,k), k
        setattr(c,k,v)
    return c

if __name__=="__main__":
    if sys.argv[1]=="final":
        kw=eval(sys.argv[3]) if len(sys.argv)>3 else {}
        final(mk(KNAME,**kw), sys.argv[2])
    else:
        bench([mk(n,**kw) for n,kw in eval(sys.argv[3])], sys.argv[2])
```

```python
import sys, struct, math

KNAME = "parallel_sum__gqa_block_cached__dense_activation_gelu__decode_kernel"
def f2u(f): return struct.unpack('<I', struct.pack('<f', f))[0]

class Cfg:
    name = KNAME
    rot = 0
    pace = 6
    infl = (5,5,5,6)
    stamps = False
    smap = {}
    wnt = "nt"
    qsleep = 16
    sleep1 = 0
    sleep2 = 0
    mlsleep = 100
    fc = 56
    nomlp = False
    notail = False
    auxnull = False
    nowo = False
    fmode = 0
    ps = 4
    tolp = None
    fuse = True
    perm = None
    mlp2 = True
    hdelay = 100
    wowait = 15
    pg = 32
    pord = 0
    sdir = True
    wqtest = 0
    inf0 = None
    inf1 = None
    pfq = False
    pfm = 1
    mnt = 'nt'
    pfgate = 14
    nosbw = False
    nosbr = False
    binf = None
    binfv = (6,6)
    brank = 26
    drain = True
    warm = False
    nobar = False
    wmaj = False
    order = [0,2,4,6,1,3,5,7]
    vorder = [0,2,4,6,1,3,5,7]
    sent = True
    sent2 = False
    cpol = 'sc1'
    cgate = 1
    now1 = False
    now2 = False
    mgate = 6
    wodelay = 0
    wolate = 2
    blk = 4
    rotH = 12
    rotS = 0
    ackw = True
    touch = 'sc1'
    h2delay = 0
    h1delay = 0
    mix = True
    tdiag = False
    qdelay = 50
    mldelay = 100
    prio2 = 0
    nowq = False
    noqx = False
    opol = 'sc1'
    lpol = 'sc1'
    probe = None
    pool = True
    pinfl = 16
    pclaim = 4
    first = 8
    fb = None
    qgate = 6
    cnt = 'nt'
    noml = False
    noopub = False
    mimic = True
    fast1 = 0
    fast2 = 0
    fthr = 64
    vpre = True
    agate = 6
    gran = 1
    thr = None
    dbgout = False

RING=0; SC=131072; WBUF=SC+8192; XN=WBUF+16384; QB=XN+1024; MX=QB+1024; FB=MX+64; RDY=FB+32; DONE=FB+36; QRDY=FB+40; KCNT=FB+44; BOOST=FB+48; LDS_END=FB+64
QBOX=0x1000; MLBOX=0x8000; OBOX=0x10000; PBOX=0x100000; MBOX=0x180000; HBOX=0x1c0000; SBOX=0x200000; CNT=0x280000; CSTR=4352; STAMP=0x20000000
SPIN_LIMIT = 1<<16
CEXP = 0.0625*math.log2(math.e)

def tt(f):
    r=0
    for idx in range(8):
        if f((idx>>2)&1,(idx>>1)&1,idx&1): r|=1<<idx
    return r

def gen(cfg):
    L=[]
    def A(s):
        for line in s.split("\n"):
            t=line.strip()
            L.append(t if t.endswith(":") else "    "+t)
    def C(t): L.append("    ; "+t)
    N=cfg.name
    pre = "L" if N==KNAME else f"L_{N}"
    uid=[0]
    def lab(p):
        uid[0]+=1; return f"{pre}_{p}{uid[0]}"
    def nop(n):
        if n>0: A(f"s_nop {n-1}")
    sX,sK,sV,sWQ,sWO,sW1,sB1=16,18,20,22,24,28,30
    sW2,sB2,sOUT,sDBG,sWS=32,34,36,38,40
    SRDK,SRDV,SRDA,SRDW=44,48,52,56
    sWAVE=3
    def srd(d, p, size):
        A(f"s_mov_b32 s{d}, s{p}\ns_mov_b32 s{d+1}, s{p+1}\ns_mov_b32 s{d+2}, {size:#x}\ns_mov_b32 s{d+3}, 0x20000")
    def stamp(k):
        if cfg.stamps:
            if isinstance(k,str):
                if k not in cfg.smap: return
                k=cfg.smap[k]
            elif k in cfg.smap.values(): return
            A(f"s_memrealtime s[{80+2*k}:{81+2*k}]")
    DPP="row_mask:0xf bank_mask:0xf"
    def rowred(op, v, rors):
        for r in rors:
            nop(2); A(f"{op}_dpp v{v}, v{v}, v{v} row_ror:{r} {DPP}")
    def xrowred(op, v, t):
        A(f"v_mov_b32 v{t}, v{v}"); nop(2); A(f"v_permlane16_swap_b32 v{v}, v{t}"); A(f"{op} v{v}, v{v}, v{t}")
        A(f"v_mov_b32 v{t}, v{v}"); nop(2); A(f"v_permlane32_swap_b32 v{v}, v{t}"); A(f"{op} v{v}, v{v}, v{t}")
    def tred4(a):
        nop(2)
        A(f"v_permlane32_swap_b32 v{a}, v{a+2}\nv_permlane32_swap_b32 v{a+1}, v{a+3}")
        A(f"v_add_f32 v{a}, v{a}, v{a+2}\nv_add_f32 v{a+1}, v{a+1}, v{a+3}")
        nop(2)
        A(f"v_permlane16_swap_b32 v{a}, v{a+1}")
        A(f"v_add_f32 v{a}, v{a}, v{a+1}")
    def rbf(d, s):
        A(f"v_cvt_pk_bf16_f32 v{d}, v{s}, v{s}\nv_and_b32 v{d}, 0xffff0000, v{d}")
    def masks(dst, n, t0, t1):
        A(f"v_and_b32 v{t0}, 1, v{n}\nv_lshlrev_b32 v{t0}, 4, v{t0}\nv_mov_b32 v{t1}, 0xffff\nv_lshlrev_b32 v{t1}, v{t0}, v{t1}\nv_bfe_u32 v{t0}, v{n}, 1, 2")
        for r in range(4):
            A(f"v_cmp_eq_u32 vcc, {r}, v{t0}"); nop(2); A(f"v_cndmask_b32 v{dst+r}, 0, v{t1}, vcc")

    def ldswait(addr, va, vd, cnt, need, sleep, mult=16):
        lw=lab("lw"); lwd=lab("lwd")
        A(f"v_mov_b32 v{va}, {addr}\ns_mov_b32 s{cnt}, 0")
        A(f"{lw}:\nds_read_b32 v{vd}, v{va}\ns_add_u32 s{cnt}, s{cnt}, 1\ns_waitcnt lgkmcnt(0)\nv_readfirstlane_b32 s4, v{vd}\ns_cmp_ge_u32 s4, {need}\ns_cbranch_scc1 {lwd}")
        A(f"s_sleep {sleep}\ns_cmp_lt_u32 s{cnt}, {SPIN_LIMIT*mult}\ns_cbranch_scc1 {lw}\n{lwd}:")
    Ldone=f"{pre}_done"; Laux=f"{pre}_aux"
    A(f".globl {N}\n.p2align 8\n.type {N},@function\n{N}:")
    A(f"s_cmp_ge_u32 s2, 256\ns_cbranch_scc1 {Ldone}")
    if cfg.perm:
        for bit,mask in cfg.perm:
            sk=lab("pm"); A(f"s_bitcmp1_b32 s2, {bit}\ns_cbranch_scc0 {sk}\ns_xor_b32 s2, s2, {mask}\n{sk}:")
    A("s_load_dwordx16 s[16:31], s[0:1], 0\ns_load_dwordx8 s[32:39], s[0:1], 64\ns_load_dwordx2 s[40:41], s[0:1], 96")
    stamp(0)
    A("v_lshrrev_b32 v1, 6, v0\nv_and_b32 v2, 63, v0")
    nop(1)
    A(f"v_readfirstlane_b32 s{sWAVE}, v1")
    A(f"s_cmp_eq_u32 s{sWAVE}, 4\ns_cbranch_scc1 {Laux}")

    C("================= stream waves 0..3: K pass (scores), V pass (P.V) =================")
    vKO=8; vVO=16; vKA=18; vVA=22; vSA=23; vMASK=24; vMAX=28; vTG=29; vNM=30; vT=31
    QF=32; TF=64; D=96; S2=100; VP=104
    AR=32; ACC=48; P=56; vVP=7
    sRING,sREG,sNEXT,sOFF,sCNT,sC,sT8,sFF,sV0,sLV,sCL,sY,sSCO=60,61,62,63,64,65,66,67,68,69,70,71,72
    sPC=76
    A("v_lshrrev_b32 v3, 5, v2\nv_and_b32 v4, 31, v2\nv_lshlrev_b32 v5, 2, v3\nv_xor_b32 v4, v4, v5\nv_lshlrev_b32 v4, 4, v4\nv_lshl_add_u32 v4, v3, 9, v4")
    for j in range(8):
        c=(8*(j&1)+(j>>1))*16 | (4096 if j>=4 else 0)
        A(f"v_xor_b32 v{vKO+j}, {c:#x}, v4")
    B=cfg.blk; lb=B.bit_length()-1
    sHB,sRS=78,79
    A(f"s_lshl_b32 s{sRING}, s{sWAVE}, 15\ns_lshr_b32 s4, s2, 5\ns_lshl_b32 s{sHB}, s4, 25\ns_lshl_b32 s5, s{sWAVE}, {13+lb if cfg.wmaj else 13}\ns_add_u32 s{sHB}, s{sHB}, s5")
    A(f"s_mul_i32 s{sNEXT}, s4, {cfg.rotH}\ns_and_b32 s5, s2, 31\ns_mul_i32 s{sRS}, s5, {cfg.rotS}\ns_lshl_b32 s{sREG}, s5, {15+lb}\ns_add_u32 s{sREG}, s{sREG}, s{sHB}\ns_mov_b32 s{sV0}, s{sNEXT}")
    def taddr(dst, t, base, rs):
        A(f"s_bfe_u32 s4, s{t}, {((5-lb)<<16)|lb:#x}\ns_lshl_b32 s4, s4, {20+lb}\ns_add_u32 s{dst}, s{base}, s4")
        if lb:
            A(f"s_add_u32 s4, s{t}, s{rs}\ns_and_b32 s4, s4, {B-1}\ns_lshl_b32 s4, s4, {13 if cfg.wmaj else 15}\ns_add_u32 s{dst}, s{dst}, s4")
    A("s_waitcnt lgkmcnt(0)")
    srd(SRDK,sK,1<<28)
    INF=cfg.infl if isinstance(cfg.infl,tuple) else (cfg.infl,cfg.infl)
    phase=['K']
    def gate(j, lim):
        if lim is None: return "s_nop 0"
        bi = cfg.binf if phase[0]=='K' else cfg.binfv
        if lim is INF and bi is not None and bi[j%len(bi)]>lim[j%len(lim)]:
            g=lab("bg")
            return f"s_waitcnt vmcnt({bi[j%len(bi)]-1})\ns_cbranch_vccnz {g}\ns_waitcnt vmcnt({lim[j%len(lim)]-1})\n{g}:"
        return f"s_waitcnt vmcnt({lim[j%len(lim)]-1})"
    PINF=cfg.pinfl if isinstance(cfg.pinfl,tuple) else (cfg.pinfl,cfg.pinfl)
    sSB=9; vSD=103
    G=cfg.pg; lg=G.bit_length()-1; NI=cfg.ps*G; RS=11 if cfg.ps==8 else 10; EX=max(0,4-cfg.ps)
    def claim():
        A(f"s_mov_b32 s{sCL}, 1\ns_atomic_add s{sCL}, s[{sPC}:{sPC+1}], 0 glc")
    def steps(slot, kind, lim=INF, doclaim=False):
        def mk(j):
            def f():
                if kind is None: return
                pj=cfg.order[j]; half=pj>>2; jj=pj&3
                sk=None
                if kind in 'PQ':
                    if kind=='P': sk=lab("ps")
                    if j==0:
                        ok=lab("po")
                        if kind=='Q': pass
                        elif cfg.wolate==1:
                            A(f"s_waitcnt lgkmcnt(0)\ns_mov_b32 s{sSCO+slot}, -1\ns_cmp_lt_u32 s{sCL}, {NI}\ns_cbranch_scc1 {ok}")
                            A(f"v_mov_b32 v{vT}, {DONE}\nds_write_b32 v{vT}, v{vT}\ns_branch {sk}\n{ok}:")
                        else:
                            A(f"s_waitcnt lgkmcnt(0)\ns_mov_b32 s{sSCO+slot}, -1\ns_cmp_ge_u32 s{sCL}, {NI}\ns_cbranch_scc1 {sk}")
                        if cfg.pord: A(f"s_lshr_b32 s5, s{sCL}, 2\ns_and_b32 s6, s{sCL}, 3")
                        else: A(f"s_and_b32 s5, s{sCL}, {G-1}\ns_lshr_b32 s6, s{sCL}, {lg}")
                        A(f"s_lshl_b32 s7, s5, {RS}\ns_lshl_b32 s8, s6, 8\ns_add_u32 s{sSCO+slot}, s7, s8")
                        A(f"s_and_b32 s7, s2, {31&~(G-1)}\ns_or_b32 s5, s5, s7\ns_mul_i32 s7, s5, {cfg.rotS}\ns_lshl_b32 s5, s5, {15+lb}\ns_add_u32 s5, s5, s{sHB}\ns_add_u32 s6, s6, s{sV0}")
                        taddr(sOFF,6,5,7)
                        if cfg.sdir:
                            A(f"s_add_u32 s4, s{sSCO+slot}, s{sSB}\nbuffer_load_dwordx2 v[{VP+2*slot}:{VP+2*slot+1}], v{vSD}, s[{SRDW}:{SRDW+3}], s4 offen sc1")
                    elif kind=='P':
                        A(f"s_cmp_eq_u32 s{sSCO+slot}, -1\ns_cbranch_scc1 {sk}")
                elif j==0:
                    taddr(sOFF,sNEXT,sREG,sRS)
                    A(f"s_add_u32 s{sNEXT}, s{sNEXT}, 1")
                if (kind in 'PQ' or doclaim) and j==cfg.pclaim: claim()
                vo = vKO+pj if kind=='K' else vVO+half
                sr = SRDK if kind=='K' else SRDV
                A(f"s_add_u32 m0, s{sRING}, {slot*8192+half*4096}\n{gate(j, PINF if kind in 'PQ' else lim)}")
                A(f"buffer_load_dwordx4 v{vo}, s[{sr}:{sr+3}], s{sOFF} offen offset:{jj*1024} nt lds")
                if sk: A(f"{sk}:")
            return f
        return [mk(j) for j in range(8)]
    def weave(st, sl):
        for u in range(8):
            st[u]()
            if u<len(sl): sl[u]()
    for j,f in enumerate(steps(0,'K',None)[:cfg.first]): f()
    NB = cfg.nobar and cfg.pool and not cfg.auxnull
    if NB: A("s_barrier")
    srd(SRDV,sV,1<<28)
    if not cfg.sent: A(f"s_load_dword s{sT8}, s[{sWS}:{sWS+1}], 0")
    A(f"v_lshlrev_b32 v{vVO}, 4, v2\nv_add_u32 v{vVO+1}, 0x1000, v{vVO}")
    A("v_lshrrev_b32 v3, 4, v2\nv_and_b32 v4, 15, v2")
    A("v_and_b32 v5, 3, v4\nv_lshlrev_b32 v5, 2, v5\nv_lshrrev_b32 v6, 2, v4\nv_add_u32 v5, v5, v6")
    A(f"v_xor_b32 v6, v3, v4\nv_lshlrev_b32 v6, 4, v6\nv_lshl_add_u32 v6, v5, 9, v6\nv_add_u32 v6, s{sRING}, v6")
    for q in range(4): A(f"v_xor_b32 v{vKA+q}, {q*64}, v6")
    A(f"v_lshlrev_b32 v6, 4, v4\nv_lshl_add_u32 v6, v3, 9, v6\nv_add_u32 v{vVA}, s{sRING}, v6")
    A(f"s_lshl_b32 s{sCNT}, s{sWAVE}, 11\ns_add_u32 s{sCNT}, s{sCNT}, {SC}")
    A(f"v_lshrrev_b32 v5, 3, v4\nv_lshlrev_b32 v6, 5, v5\nv_lshl_add_u32 v6, v3, 3, v6\nv_add_u32 v{vSA}, s{sCNT}, v6")
    A(f"v_lshlrev_b32 v7, 9, v5\nv_lshl_add_u32 v7, v3, 4, v7\nv_add_u32 v7, {QB}, v7")
    masks(vMASK,4,5,6)
    A(f"v_mov_b32 v{vMAX}, 0xff800000")
    if cfg.binf is not None: A(f"s_lshr_b32 s4, s2, 3\ns_xor_b32 s5, s4, s2\ns_and_b32 s5, s5, 7\ns_cmp_lt_u32 s4, 28\ns_cselect_b32 s5, s5, 1\ns_cmp_eq_u32 s5, 0\ns_cselect_b64 vcc, 1, 0")
    A(f"v_subrev_u32 v{vT}, s{sRING}, v{vVA}\nv_add_u32 v1, 0x1000, v{vT}")
    I0 = INF if cfg.inf0 is None else cfg.inf0
    I1_ = INF if cfg.inf1 is None else cfg.inf1
    for f in steps(0,'K',I0)[cfg.first:]: f()
    for slot in (1,2):
        for f in steps(slot,'K',I0): f()
    C("first four V tiles of this wave go straight to registers (covers the q latency)")
    for i in range(4):
        taddr(sOFF,sV0,sREG,sRS)
        for u in cfg.vorder:
            o=(u>>1)*2048+(u&1)*256
            vo = vT if o<4096 else 1
            A(gate(u,I1_))
            A(f"buffer_load_dwordx4 v[{VP+32*i+4*u}:{VP+32*i+4*u+3}], v{vo}, s[{SRDV}:{SRDV+3}], s{sOFF} offen offset:{o&4095} nt")
        A(f"s_add_u32 s{sV0}, s{sV0}, {1 if i<3 else 29-cfg.ps}")
    if not cfg.sent: A(f"s_waitcnt lgkmcnt(0)\ns_add_u32 s{sT8}, s{sT8}, 1\ns_and_b32 s{sT8}, s{sT8}, 0xff\ns_mov_b32 s{sFF}, 0xff\nv_mov_b32 v{vTG}, s{sT8}")
    srd(SRDW,sWS,1<<30)
    if NB: ldswait(QRDY, vT, D, sCNT, 1, 2)
    else: A("s_barrier")
    for jj in range(8): A(f"ds_read_b128 v[{QF+4*jj}:{QF+4*jj+3}], v7 offset:{jj*64}")

    def ktile(slot, kind):
        def s0():
            A("s_waitcnt vmcnt(16)")
            for jj in range(8):
                A(f"ds_read_b128 v[{TF+4*jj}:{TF+4*jj+3}], v{vKA+(jj&3)} offset:{slot*8192+(jj>>2)*256}")
        def mf(r):
            def f():
                if r[0]==0: A("s_waitcnt lgkmcnt(0)")
                for jj in r:
                    c = "0" if jj==0 else f"v[{D}:{D+3}]"
                    A(f"v_mfma_f32_16x16x32_bf16 v[{D}:{D+3}], v[{TF+4*jj}:{TF+4*jj+3}], v[{QF+4*jj}:{QF+4*jj+3}], {c}")
            return f
        def s3():
            nop(5)
            A(f"v_cvt_pk_bf16_f32 v{S2}, v{D}, v{D+1}\nv_cvt_pk_bf16_f32 v{S2+1}, v{D+2}, v{D+3}")
            A(f"v_max3_f32 v{vMAX}, v{vMAX}, v{D}, v{D+1}\nv_max3_f32 v{vMAX}, v{vMAX}, v{D+2}, v{D+3}")
            A(f"ds_write_b64 v{vSA}, v[{S2}:{S2+1}] offset:{slot*64}")
        weave(steps((slot+3)&3,kind),[s0,mf([0,1,2,3]),mf([4,5,6,7]),s3])
    def pcalc(S2=S2):
        A(f"v_lshlrev_b32 v{P}, 16, v{S2}\nv_and_b32 v{P+1}, 0xffff0000, v{S2}\nv_lshlrev_b32 v{P+2}, 16, v{S2+1}\nv_and_b32 v{P+3}, 0xffff0000, v{S2+1}")
        for t in range(4): A(f"v_fma_f32 v{P+t}, v{P+t}, s{sC}, v{vNM}")
        for t in range(4): A(f"v_exp_f32 v{P+t}, v{P+t}")
        nop(1)
        for t in range(4): A(f"v_cvt_pk_bf16_f32 v{P+t}, v{P+t}, v{P+t}")
    def pmask():
        for t in range(4):
            for r in range(4): A(f"v_and_b32 v{AR+4*t+r}, v{P+t}, v{vMASK+r}")
    def pv(src, us):
        for u in us:
            t=u>>1; h=u&1
            A(f"v_mfma_f32_16x16x32_bf16 v[{ACC+4*h}:{ACC+4*h+3}], v[{AR+4*t}:{AR+4*t+3}], v[{src+4*u}:{src+4*u+3}], v[{ACC+4*h}:{ACC+4*h+3}]")
    def vtile(slot, kind, waitn, scoff=None, regs=None, pooled=False, doclaim=False):
        def ywait(extra):
            go=lab("wy")
            A(f"s_waitcnt vmcnt({16+extra})")
            for y in (2,1): A(f"s_cmp_ge_i32 s{sY}, {y}\ns_cbranch_scc1 {go}\ns_waitcnt vmcnt({8*(y-1)+extra})")
            A(f"{go}:")
        def s0():
            if pooled and cfg.sdir:
                if waitn=='y': ywait(8)
                else: A(f"s_waitcnt vmcnt({waitn+8})")
                pcalc(VP+2*slot); return
            if pooled: A(f"v_add_u32 v{vT}, s{sSCO+slot}, v{vSA}\nds_read_b64 v[{S2}:{S2+1}], v{vT}")
            else: A(f"ds_read_b64 v[{S2}:{S2+1}], v{vSA} offset:{slot*64 if scoff is None else scoff}")
            rb = kind=='V' and cfg.binfv is not None and (slot&1)
            if rb: A(f"ds_read_b32 v{D}, v{vBA}")
            A("s_waitcnt lgkmcnt(0)")
            if rb: A(f"v_cmp_ne_u32 vcc, 0, v{D}")
            pcalc()
        def s1():
            if waitn=='y': ywait(0)
            else: A(f"s_waitcnt vmcnt({waitn})")
            for u in range(8):
                A(f"ds_read_b128 v[{TF+4*u}:{TF+4*u+3}], v{vVA} offset:{slot*8192+(u>>1)*2048+(u&1)*256}")
            if kind is not None:
                pmask()
                A("s_waitcnt lgkmcnt(0)")
        sl=[s0,s1,lambda:pv(TF,[0,1,2,3]),lambda:pv(TF,[4,5,6,7])]
        if kind is None:
            s0(); pmask(); s1()
            for u in range(8):
                A(f"s_waitcnt lgkmcnt({7-u})"); pv(TF,[u])
            return
        if regs is not None:
            def r0():
                A(f"ds_read_b64 v[{S2}:{S2+1}], v{vSA} offset:{slot*64}\ns_waitcnt lgkmcnt(0)"); pcalc()
            sl+=[r0,pmask,lambda:pv(regs,[0,1,2,3]),lambda:pv(regs,[4,5,6,7])]
        weave(steps((slot+3)&3,kind,doclaim=doclaim),sl)
        if kind=='P':
            A(f"s_cmp_eq_u32 s{sSCO+((slot+3)&3)}, -1\ns_subb_u32 s{sY}, s{sY}, 0")

    lk=lab("kloop")
    C("K pass: one 16-key tile per period; one gated 1 KiB load between compute slices")
    A(f"s_mov_b32 s{sCNT}, 7")
    A(f"{lk}:")
    for s in range(4): ktile(s,'K')
    A(f"v_add_u32 v{vSA}, 256, v{vSA}")
    A(f"s_sub_u32 s{sCNT}, s{sCNT}, 1\ns_cmp_lg_u32 s{sCNT}, 0\ns_cbranch_scc1 {lk}")
    ktile(0,'K')
    A(f"s_add_u32 s{sNEXT}, s{sNEXT}, 4")
    for s in range(1,4): ktile(s,'V')
    A(f"v_subrev_u32 v{vSA}, {7*256}, v{vSA}")
    for r in range(8): A(f"v_mov_b32 v{ACC+r}, 0")
    xrowred("v_max_f32", vMAX, vT)
    rbf(vMAX,vMAX)
    A(f"v_bfe_u32 v3, v2, 3, 1\nv_lshlrev_b32 v3, 4, v3\nv_add_u32 v3, {MX}, v3")
    A(f"s_lshl_b32 s{sCNT}, s{sWAVE}, 2\nv_add_u32 v4, s{sCNT}, v3")
    if NB:
        A(f"ds_write_b32 v4, v{vMAX}\nv_mov_b32 v3, {KCNT}\nv_mov_b32 v4, 1\ns_mov_b32 s{sC}, {f2u(CEXP):#x}\ns_mov_b64 exec, 1\nds_add_u32 v3, v4\ns_mov_b64 exec, -1")
    else:
        A(f"ds_write_b32 v4, v{vMAX}\ns_waitcnt lgkmcnt(0)\ns_barrier")
        A(f"ds_read_b128 v[{D}:{D+3}], v3\ns_mov_b32 s{sC}, {f2u(CEXP):#x}\ns_waitcnt lgkmcnt(0)")
        A(f"v_max_f32 v{vMAX}, v{D}, v{D+1}\nv_max3_f32 v{vMAX}, v{vMAX}, v{D+2}, v{D+3}")
    A(f"v_mul_f32 v{vNM}, s{sC}, v{vMAX}\nv_sub_f32 v{vNM}, 0, v{vNM}")
    A("v_lshrrev_b32 v6, 5, v2\nv_lshlrev_b32 v6, 10, v6\nv_and_b32 v5, 15, v2\nv_lshl_add_u32 v6, v5, 5, v6\nv_bfe_u32 v5, v2, 4, 1\nv_lshl_add_u32 v6, v5, 4, v6")
    A(f"v_add_u32 v6, s{sRING}, v6")
    A(f"s_lshl_b32 s{sCNT}, s{sWAVE}, 9\nv_lshlrev_b32 v4, 4, v2\nv_add_u32 v4, s{sCNT}, v4\nv_add_u32 v5, 0x10000, v4")
    A(f"s_lshr_b32 s{sCNT}, s{sWAVE}, 1\ns_lshl_b32 s{sCNT}, s{sCNT}, 2\ns_add_u32 s{sCNT}, s{sCNT}, {FB}\nv_mov_b32 v3, s{sCNT}")
    lv=lab("vloop")
    C("V pass")
    phase[0]='V'
    vBA=102
    A(f"v_mov_b32 v{vBA}, {BOOST}\ns_mov_b64 vcc, 0")
    for s in range(4): vtile(s,'V',16,scoff=256+s*64,regs=VP+32*s)
    A(f"v_add_u32 v{vSA}, 512, v{vSA}")
    A(f"s_mov_b32 s{sCNT}, {(3 if cfg.ps==8 else 4) if cfg.pool else 5}")
    A(f"{lv}:")
    for s in range(4): vtile(s,'V',16)
    A(f"v_add_u32 v{vSA}, 256, v{vSA}")
    A(f"s_sub_u32 s{sCNT}, s{sCNT}, 1\ns_cmp_lg_u32 s{sCNT}, 0\ns_cbranch_scc1 {lv}")
    Lpool=f"{pre}_poolcode"
    A(f"{Lpool}:")
    if cfg.pool:
        for p in range(EX): vtile(p&3,'V',16,scoff=p*64)
        C("shared pool of the last 4 steps of every split of this head: wait for the global max first")
        lw=lab("rw"); lwd=lab("rwd")
        A(f"v_mov_b32 v{vT}, {RDY}\ns_mov_b32 s{sCNT}, 0")
        A(f"{lw}:\nds_read_b32 v{D}, v{vT}\ns_add_u32 s{sCNT}, s{sCNT}, 1")
        A(f"s_lshr_b32 s4, s2, {lg}\ns_lshl_b32 s5, s4, 2\ns_add_u32 s5, s5, s{sWAVE}\ns_mul_i32 s5, s5, {CSTR}\ns_add_u32 s5, s5, {CNT}\ns_add_u32 s{sPC}, s{sWS}, s5\ns_addc_u32 s{sPC+1}, s{sWS+1}, 0")
        A(f"s_mov_b32 s{sY}, 2")
        if cfg.sdir:
            A(f"s_and_b32 s{sSB}, s2, {255&~(G-1)}\ns_lshl_b32 s{sSB}, s{sSB}, {RS}\ns_lshl_b32 s5, s{sWAVE}, 6\ns_add_u32 s{sSB}, s{sSB}, s5\ns_add_u32 s{sSB}, s{sSB}, {SBOX}")
            A(f"v_bfe_u32 v{vSD}, v2, 3, 1\nv_lshlrev_b32 v{vSD}, 5, v{vSD}\nv_lshrrev_b32 v{D+1}, 4, v2\nv_lshl_add_u32 v{vSD}, v{D+1}, 3, v{vSD}")
        A(f"s_waitcnt lgkmcnt(0)\nv_readfirstlane_b32 s4, v{D}\ns_cmp_lg_u32 s4, 0\ns_cbranch_scc1 {lwd}")
        A(f"s_sleep 4\ns_cmp_lt_u32 s{sCNT}, {SPIN_LIMIT*16}\ns_cbranch_scc1 {lw}\n{lwd}:")
        vtile(EX&3,'V',16,doclaim=True,scoff=EX*64)
        for p in range(EX+1,EX+4): vtile(p&3,'P','y',scoff=p*64)
        C("rescale the accumulators to the global row max")
        if NB:
            A(f"v_lshrrev_b32 v{vT}, 5, v2\nv_lshlrev_b32 v{D+2}, 2, v{vT}\nv_add_u32 v{D+2}, {FB+16}, v{D+2}\nds_read_b32 v{D}, v{D+2}")
            A(f"s_lshl_b32 s4, s{sWAVE}, 2\ns_add_u32 s4, s4, {MX}\nv_lshlrev_b32 v{vT}, 4, v{vT}\nv_add_u32 v{vT}, s4, v{vT}\nds_read_b32 v{D+1}, v{vT}")
        else:
            A(f"v_lshrrev_b32 v{vT}, 5, v2\nv_lshlrev_b32 v{vT}, 2, v{vT}\nv_add_u32 v{vT}, {FB+8}, v{vT}\nds_read_b32 v{D}, v{vT}")
        A(f"v_bfe_u32 v{vT}, v2, 3, 1\nv_lshlrev_b32 v{vSA}, 5, v{vT}\nv_lshlrev_b32 v{vT}, 2, v{vT}\nv_add_u32 v{vT}, {FB+16}, v{vT}\nds_read_b32 v{vNM}, v{vT}")
        A(f"v_lshrrev_b32 v{vT}, 4, v2\nv_lshl_add_u32 v{vSA}, v{vT}, 3, v{vSA}\ns_lshl_b32 s4, s{sWAVE}, 6\ns_add_u32 s4, s4, {WBUF}\nv_add_u32 v{vSA}, s4, v{vSA}")
        A("s_waitcnt lgkmcnt(0)")
        if NB:
            A(f"v_mul_f32 v{D+1}, s{sC}, v{D+1}\nv_add_f32 v{D}, v{D}, v{D+1}\nv_exp_f32 v{D}, v{D}"); nop(1)
        for r in range(8): A(f"v_mul_f32 v{ACC+r}, v{ACC+r}, v{D}")
        lp=lab("ploop"); le=lab("pend")
        if cfg.drain:
            ld=[lab("drain") for _ in range(4)]
            A(f"{lp}:")
            for s0_ in range(4):
                s=(s0_+EX)&3
                A(f"s_waitcnt lgkmcnt(0)\ns_cmp_ge_u32 s{sCL}, {NI}\ns_cbranch_scc1 {ld[s]}")
                vtile(s,'Q',16,pooled=True)
            A(f"s_branch {lp}")
            for s in range(4):
                A(f"{ld[s]}:")
                for d in range(3):
                    sl=(s+d)&3
                    A(f"s_cmp_eq_u32 s{sSCO+sl}, -1\ns_cbranch_scc1 {le}")
                    vtile(sl,None,'y',pooled=True)
                    if d<2: A(f"s_sub_u32 s{sY}, s{sY}, 1")
                if s<3: A(f"s_branch {le}")
            A(f"{le}:")
        else:
            A(f"{lp}:")
            for s in range(4):
                A(f"s_cmp_eq_u32 s{sSCO+s}, -1\ns_cbranch_scc1 {le}")
                vtile(s,'P','y',pooled=True)
            A(f"s_branch {lp}\n{le}:")
    else:
        vtile(0,'V',16); vtile(1,None,16); vtile(2,None,8); vtile(3,None,0)
    A(f"s_lshl_b32 s{sOFF}, s2, 11\ns_add_u32 s{sOFF}, s{sOFF}, {OBOX}")
    nop(7)
    A(f"ds_write_b128 v6, v[{ACC}:{ACC+3}]\nds_write_b128 v6, v[{ACC+4}:{ACC+7}] offset:512")
    A("s_waitcnt lgkmcnt(0)\ns_barrier")
    A("s_mov_b32 exec_hi, 0")
    A(f"ds_read_b128 v[{TF}:{TF+3}], v4\nds_read_b128 v[{TF+4}:{TF+7}], v4 offset:32768\nds_read_b128 v[{TF+8}:{TF+11}], v5\nds_read_b128 v[{TF+12}:{TF+15}], v5 offset:32768\nds_read_b32 v{TF+16}, v3")
    A("s_waitcnt lgkmcnt(3)")
    for r in range(4): A(f"v_add_f32 v{TF+r}, v{TF+r}, v{TF+4+r}")
    A("s_waitcnt lgkmcnt(1)")
    for r in range(4): A(f"v_add_f32 v{TF+8+r}, v{TF+8+r}, v{TF+12+r}")
    for r in range(4): A(f"v_add_f32 v{TF+r}, v{TF+r}, v{TF+8+r}")
    A("s_waitcnt lgkmcnt(0)")
    for r in range(4): A(f"v_mul_f32 v{TF+r}, v{TF+r}, v{TF+16}")
    for r in range(4):
        if cfg.sent: A(f"v_min_u32 v{TF+r}, -2, v{TF+r}")
        else: A(f"v_bfi_b32 v{TF+r}, s{sFF}, v{vTG}, v{TF+r}")
    if cfg.tdiag: A("s_memrealtime s[82:83]")
    if not cfg.noopub: A(f"buffer_store_dwordx4 v[{TF}:{TF+3}], v4, s[{SRDW}:{SRDW+3}], s{sOFF} offen {cfg.opol}")
    if cfg.tdiag:
        A(f"s_waitcnt vmcnt(0)\ns_memrealtime s[84:85]\ns_waitcnt lgkmcnt(0)\ns_cmp_lg_u32 s{sWAVE}, 0\ns_cbranch_scc1 {Ldone}")
        A(f"s_lshl_b32 s4, s2, 6\ns_add_u32 s4, s4, {STAMP+0x100000:#x}\ns_mov_b64 exec, 1\nv_mov_b32 v1, 0\nv_mov_b32 v{TF}, s82\nv_mov_b32 v{TF+1}, s83\nv_mov_b32 v{TF+2}, s84\nv_mov_b32 v{TF+3}, s85")
        A(f"buffer_store_dwordx4 v[{TF}:{TF+3}], v1, s[{SRDW}:{SRDW+3}], s4 offen")
    A("s_endpgm")

    vL16=3; vWO_=4; vTR=5; vXA=6
    X=8; F=12; T=20
    XF=32; WF=88
    WT=144
    PA=208
    AM=216
    vT8=220; vFX=221; vG1=222; vG2=223; vPS=224; vTO=225; vFM=226; vH=227
    AT=96
    sE,sTAG,sCQ,sO2,sSPIN,sCM,sFF,sA,sB,sNM=60,61,62,63,64,65,78,66,67,71
    A(f"{Laux}:")
    C("================= aux wave: q projection, MLP, hand-offs, output projection =================")
    lend=lab("end")
    if cfg.auxnull:
        A("s_waitcnt lgkmcnt(0)"); srd(SRDW,sWS,1<<30)
        A("s_barrier"); stamp(3); A("s_barrier"); stamp(4); A("s_barrier"); stamp(5); A(f"s_branch {lend}")
    A("s_setprio 3")
    if NB:
        A(f"v_mov_b32 v{X}, 0\nv_mov_b32 v{X+1}, 0\nv_mov_b32 v{X+2}, 0\nv_mov_b32 v{X+3}, 0\nv_mov_b32 v{T}, {RDY}\nds_write_b128 v{T}, v[{X}:{X+3}]")
    A(f"v_lshrrev_b32 v7, 1, v2\nv_and_b32 v{T}, 1, v2\nv_lshlrev_b32 v{T}, 4, v{T}")
    A(f"v_lshl_add_u32 v{vWO_}, v7, 13, v{T}\nv_lshlrev_b32 v{vL16}, 4, v2")
    if cfg.mix:
        A(f"s_and_b32 s4, s2, 7\ns_lshr_b32 s5, s2, 5\ns_add_u32 s5, s5, s4\ns_and_b32 s5, s5, 7\ns_lshl_b32 s5, s5, 2\ns_lshl_b32 s{sCQ}, s4, 5\ns_add_u32 s{sCQ}, s{sCQ}, s5\ns_bfe_u32 s5, s2, 0x20003\ns_add_u32 s{sCQ}, s{sCQ}, s5\ns_lshl_b32 s{sO2}, s{sCQ}, 5")
    else:
        A(f"s_and_b32 s{sCQ}, s2, 7\ns_lshl_b32 s{sCQ}, s{sCQ}, 5\ns_lshr_b32 s{sO2}, s2, 3\ns_add_u32 s{sCQ}, s{sCQ}, s{sO2}\ns_lshl_b32 s{sO2}, s{sCQ}, 5")
    A("s_waitcnt lgkmcnt(0)")
    stamp('karg')
    A(f"s_load_dword s{sE}, s[{sWS}:{sWS+1}], 0")
    srd(SRDA,sX,896)
    A(f"buffer_load_dwordx4 v[{X}:{X+3}], v{vL16}, s[{SRDA}:{SRDA+3}], 0 offen")
    if NB: A("s_barrier")
    srd(SRDK,sWQ,448*4096*2)
    def wdma(sr, step, gate=None):
        for i in range(14):
            if gate is not None: A(f"s_waitcnt vmcnt({gate})")
            A(f"s_mov_b32 m0, {WBUF+i*1024}")
            if i: A(f"s_add_u32 s{sO2}, s{sO2}, {step}")
            else: nop(1)
            A(f"buffer_load_dwordx4 v{vWO_}, s[{sr}:{sr+3}], s{sO2} offen {cfg.cnt} lds")
    if cfg.pfq:
        A(f"s_mul_i32 s5, s2, 14336")
        for i in range(14):
            A(f"buffer_load_dwordx4 v[{WF+4*i}:{WF+4*i+3}], v{vL16}, s[{SRDK}:{SRDK+3}], s5 offen\ns_add_u32 s5, s5, 1024")
        A("s_waitcnt vmcnt(0)")
    if cfg.wqtest==1:
        A(f"v_lshrrev_b32 v{T}, 3, v2\nv_and_b32 v{T+1}, 7, v2\nv_lshlrev_b32 v{T+1}, 4, v{T+1}\nv_lshl_add_u32 v{vWO_}, v{T}, 13, v{T+1}")
        A(f"s_and_b32 s4, s{sCQ}, 3\ns_mul_i32 s4, s4, {112*8192}\ns_lshr_b32 s{sO2}, s{sCQ}, 2\ns_lshl_b32 s{sO2}, s{sO2}, 7\ns_add_u32 s{sO2}, s{sO2}, s4")
        wdma(SRDK,8*8192,cfg.qgate)
    elif cfg.wqtest==2:
        A(f"v_mov_b32 v{vWO_}, v{vL16}\ns_mul_i32 s{sO2}, s2, 14336")
        wdma(SRDK,1024,cfg.qgate)
    elif cfg.wqtest==3:
        A(f"v_mov_b32 v{vWO_}, v{vL16}\ns_and_b32 s4, s2, 7\ns_lshl_b32 s4, s4, 10\ns_lshr_b32 s{sO2}, s2, 3\ns_mul_i32 s{sO2}, s{sO2}, {14*8192}\ns_add_u32 s{sO2}, s{sO2}, s4")
        wdma(SRDK,8192,cfg.qgate)
    elif not cfg.nowq: wdma(SRDK,32*8192,cfg.qgate)
    srd(SRDW,sWS,1<<30)
    A(f"v_lshrrev_b32 v{T}, 4, v2\nv_bfe_u32 v{T+1}, v2, 2, 2\nv_lshl_add_u32 v{T+1}, v{T}, 3, v{T+1}\nv_and_b32 v{T+2}, 3, v2\nv_lshlrev_b32 v{T+2}, 3, v{T+2}\nv_add_u32 v{T+2}, {WBUF}, v{T+2}")
    A(f"v_lshl_add_u32 v{vTR}, v{T+1}, 5, v{T+2}\nv_lshl_add_u32 v{vG1}, v{T+1}, 7, v{T+2}")
    A(f"v_lshlrev_b32 v{T}, 4, v{T}\nv_add_u32 v{vXA}, {XN}, v{T}")
    A("v_cmp_gt_u32 s[74:75], 56, v2")
    C("layernorm (bf16 rounding points as in the reference)")
    stamp('issued')
    A("s_waitcnt vmcnt(14)")
    stamp('xland')
    for r in range(4):
        A(f"v_lshlrev_b32 v{F+2*r}, 16, v{X+r}\nv_and_b32 v{F+2*r+1}, 0xffff0000, v{X+r}")
    A(f"v_add_f32 v{T}, v{F}, v{F+1}\nv_add_f32 v{T+1}, v{F+2}, v{F+3}\nv_add_f32 v{T+2}, v{F+4}, v{F+5}\nv_add_f32 v{T+3}, v{F+6}, v{F+7}")
    A(f"v_add_f32 v{T}, v{T}, v{T+1}\nv_add_f32 v{T+2}, v{T+2}, v{T+3}\nv_add_f32 v{T}, v{T}, v{T+2}")
    rowred("v_add_f32",T,[1,2,4,8]); xrowred("v_add_f32",T,T+1)
    A(f"v_mul_f32 v{T}, {f2u(1.0/448):#x}, v{T}")
    A(f"v_sub_f32 v{T+2}, v{F}, v{T}\nv_mul_f32 v{T+1}, v{T+2}, v{T+2}")
    for r in range(1,8):
        A(f"v_sub_f32 v{T+2}, v{F+r}, v{T}\nv_fmac_f32 v{T+1}, v{T+2}, v{T+2}")
    A(f"v_cndmask_b32 v{T+1}, 0, v{T+1}, s[74:75]")
    rowred("v_add_f32",T+1,[1,2,4,8]); xrowred("v_add_f32",T+1,T+2)
    A(f"v_mul_f32 v{T+1}, {f2u(1.0/448):#x}, v{T+1}")
    rbf(T,T); rbf(T+1,T+1)
    A(f"v_add_f32 v{T+1}, {f2u(1e-5):#x}, v{T+1}"); rbf(T+1,T+1)
    A(f"v_sqrt_f32 v{T+1}, v{T+1}"); nop(1); rbf(T+1,T+1)
    A(f"v_rcp_f32 v{T+2}, v{T+1}")
    for r in range(8): A(f"v_sub_f32 v{F+r}, v{F+r}, v{T}")
    for r in range(4): A(f"v_cvt_pk_bf16_f32 v{X+r}, v{F+2*r}, v{F+2*r+1}")
    for r in range(4): A(f"v_lshlrev_b32 v{F+2*r}, 16, v{X+r}\nv_and_b32 v{F+2*r+1}, 0xffff0000, v{X+r}")
    for r in range(8):
        A(f"v_mul_f32 v{T+3}, v{F+r}, v{T+2}\nv_fma_f32 v{T+4}, -v{T+3}, v{T+1}, v{F+r}\nv_fma_f32 v{F+r}, v{T+4}, v{T+2}, v{T+3}")
    for r in range(4): A(f"v_cvt_pk_bf16_f32 v{X+r}, v{F+2*r}, v{F+2*r+1}")
    A(f"v_add_u32 v{T}, {XN}, v{vL16}\nds_write_b128 v{T}, v[{X}:{X+3}]\ns_waitcnt lgkmcnt(0)")
    for jj in range(14): A(f"ds_read_b128 v[{XF+4*jj}:{XF+4*jj+3}], v{vXA} offset:{jj*64}")
    stamp('lndone')
    A("s_waitcnt vmcnt(0)")
    stamp('wqland')
    for jj in range(14):
        A(f"ds_read_b64_tr_b16 v[{WF+4*jj}:{WF+4*jj+1}], v{vTR} offset:{jj*1024}\nds_read_b64_tr_b16 v[{WF+4*jj+2}:{WF+4*jj+3}], v{vTR} offset:{jj*1024+128}")
    A(f"s_waitcnt lgkmcnt(0)")
    for jj in range(14):
        c="0" if jj==0 else f"v[{T}:{T+3}]"
        A(f"v_mfma_f32_16x16x32_bf16 v[{T}:{T+3}], v[{XF+4*jj}:{XF+4*jj+3}], v[{WF+4*jj}:{WF+4*jj+3}], {c}")
    A(f"s_mul_i32 s{sTAG}, s{sE}, 0x9E3779B1\ns_add_u32 s{sTAG}, s{sTAG}, 0x7F4A7C15")
    assert cfg.sent
    TG=[72,73,76,77]
    A(f"s_add_u32 s{TG[0]}, s{sE}, 1\ns_lshr_b32 s4, s{sE}, 8\ns_mul_i32 s4, s4, 0x9E3779B1\nv_mov_b32 v{vT8}, 0xff\ns_mov_b32 s{sNM}, 0xffffff00")
    for r in range(1,4): A(f"s_lshr_b32 s4, s4, 8\ns_add_u32 s{TG[r]}, s{TG[0]}, s4")
    TX=tt(lambda a,t,c:(a^t)|c); TY=tt(lambda a,t,c:(a^t)&c)
    def tagchk(dst, d):
        A(f"v_xor_b32 v{dst}, s{TG[0]}, v{d}")
        for r in range(1,4): A(f"v_bitop3_b32 v{dst}, v{d+r}, s{TG[r]}, v{dst} bitop3:{TX:#x}")
        A(f"v_and_b32 v{dst}, 0xff, v{dst}")
    A(f"s_lshl_b32 s{sO2}, s{sCQ}, 6\ns_add_u32 s{sO2}, s{sO2}, {QBOX}\nv_lshlrev_b32 v{T+6}, 3, v7\nv_mov_b32 v{T+5}, s{sTAG}")
    A(f"v_mov_b32_dpp v{T+1}, v{T} quad_perm:[1,1,3,3] {DPP}")
    A(f"v_cvt_pk_bf16_f32 v{T+4}, v{T}, v{T+1}")
    A("s_mov_b64 exec, 0x5555")
    if not cfg.noqx: A(f"buffer_store_dwordx2 v[{T+4}:{T+5}], v{T+6}, s[{SRDW}:{SRDW+3}], s{sO2} offen sc1")
    A("s_mov_b64 exec, -1")
    stamp(2)
    TT1=tt(lambda a,b,t:(a^t)|(b^t)); TT2=tt(lambda a,b,c:(a|b)&c)
    def poll(loads, soff, mode, sleep, fast=0, fthr=None, during=None):
        PM=4
        lp=lab("poll"); ld=lab("polld")
        for i,(d,vo,imm,lm) in enumerate(loads):
            if lm is None: A(f"s_mov_b64 s[{PM+2*i}:{PM+2*i+1}], -1")
            else: A(f"s_mov_b32 s{PM+2*i}, {lm&0xffffffff:#x}\ns_mov_b32 s{PM+2*i+1}, {lm>>32:#x}")
        A(f"s_mov_b32 s{sSPIN}, 0\ns_mov_b32 s14, 999")
        lj=lab("pj")
        if during is not None:
            for i,(d,vo,imm,lm) in enumerate(loads):
                A(f"buffer_load_dwordx4 v[{d}:{d+3}], v{vo}, s[{SRDW}:{SRDW+3}], s{soff} offen offset:{imm} {cfg.lpol}\ns_nop 0")
            during()
            A(f"s_branch {lj}")
        A(f"{lp}:")
        for i,(d,vo,imm,lm) in enumerate(loads):
            sk=lab("sk")
            A(f"s_mov_b64 exec, s[{PM+2*i}:{PM+2*i+1}]\ns_cbranch_execz {sk}")
            A(f"buffer_load_dwordx4 v[{d}:{d+3}], v{vo}, s[{SRDW}:{SRDW+3}], s{soff} offen offset:{imm} {cfg.lpol}")
            A(f"{sk}:")
        A(f"s_mov_b64 exec, -1\ns_add_u32 s{sSPIN}, s{sSPIN}, 1\n{lj}:")
        if fast and fthr is not None:
            sk=lab("fs")
            A(f"s_cmp_le_u32 s14, {fthr}\ns_cbranch_scc1 {sk}\ns_waitcnt vmcnt(0)\n{sk}:")
        A(f"s_waitcnt vmcnt({fast})")
        for i,(d,vo,imm,lm) in enumerate(loads):
            if mode=='s':
                A(f"v_max3_u32 v{T+i}, v{d}, v{d+1}, v{d+2}\nv_max_u32 v{T+i}, v{T+i}, v{d+3}")
            elif mode=='q':
                A(f"v_xor_b32 v{T+i}, s{sTAG}, v{d+1}\nv_xor_b32 v{T+4+i}, s{sTAG}, v{d+3}\nv_or_b32 v{T+i}, v{T+i}, v{T+4+i}")
            else:
                tagchk(T+i,d)
        for i,(d,vo,imm,lm) in enumerate(loads):
            A(("v_cmp_eq_u32 vcc, -1" if mode=='s' else "v_cmp_ne_u32 vcc, 0")+f", v{T+i}\ns_and_b64 s[{PM+2*i}:{PM+2*i+1}], s[{PM+2*i}:{PM+2*i+1}], vcc")
        if len(loads)>1:
            A(f"s_or_b64 s[12:13], s[{PM}:{PM+1}], s[{PM+2}:{PM+3}]")
            for i in range(2,len(loads)): A(f"s_or_b64 s[12:13], s[12:13], s[{PM+2*i}:{PM+2*i+1}]")
        A(f"s_cbranch_scc0 {ld}")
        if fast and fthr is not None:
            A(f"s_bcnt1_i32_b64 s14, s[{PM}:{PM+1}]")
            for i in range(1,len(loads)): A(f"s_bcnt1_i32_b64 s15, s[{PM+2*i}:{PM+2*i+1}]\ns_add_u32 s14, s14, s15")
            if sleep:
                sk=lab("ns")
                A(f"s_cmp_le_u32 s14, {fthr}\ns_cbranch_scc1 {sk}\ns_sleep {sleep}\n{sk}:")
        elif sleep: A(f"s_sleep {sleep}")
        A(f"s_cmp_lt_u32 s{sSPIN}, {SPIN_LIMIT*4}\ns_cbranch_scc1 {lp}")
        A(f"{ld}:")
    A(f"s_lshr_b32 s{sO2}, s2, 5\ns_lshl_b32 s{sO2}, s{sO2}, 11\ns_add_u32 s{sO2}, s{sO2}, {QBOX}")
    def backoff(n):
        if n>0: C("back off before polling another workgroup's data")
        while n>0:
            A(f"s_sleep {min(n,127)}"); n-=127
    backoff(cfg.qdelay)
    if not cfg.noqx: poll([(F,vL16,0,None),(F+4,vL16,1024,None)], sO2, 'q', cfg.qsleep)
    stamp('qrecv')
    if not NB: A(f"v_mov_b32 v{T}, {RDY}\nv_mov_b32 v{T+1}, 0\nds_write2_b32 v{T}, v{T+1}, v{T+1} offset0:0 offset1:4")
    A(f"v_lshlrev_b32 v{T}, 3, v2\nv_add_u32 v{T}, {QB}, v{T}")
    A(f"ds_write2_b32 v{T}, v{F}, v{F+2} offset0:0 offset1:1\nds_write2_b32 v{T}, v{F+4}, v{F+6} offset0:128 offset1:129")
    if NB: A(f"v_mov_b32 v{T}, {QRDY}\nv_mov_b32 v{T+1}, 1\ns_waitcnt lgkmcnt(0)\nds_write_b32 v{T}, v{T+1}")
    else: A("s_waitcnt lgkmcnt(0)\ns_barrier")
    stamp(3)
    if cfg.prio2!=3: A(f"s_setprio {cfg.prio2}")
    if cfg.pool:
        lz=lab("nz")
        A(f"s_and_b32 s4, s2, {G-1}\ns_cbranch_scc1 {lz}")
        A(f"s_lshr_b32 s4, s2, {lg}\ns_mul_i32 s4, s4, {4*CSTR}\ns_add_u32 s4, s4, {CNT}\nv_mul_u32_u24 v{T}, {CSTR}, v2\nv_mov_b32 v{T+1}, 0\ns_mov_b64 exec, 15")
        A(f"buffer_store_dword v{T+1}, v{T}, s[{SRDW}:{SRDW+3}], s4 offen sc1\ns_mov_b64 exec, -1\n{lz}:")
    if cfg.probe is not None and cfg.probe[0]=='g':
        A(f"s_lshl_b32 s4, s2, 2\ns_add_u32 s4, s4, 0x300000\nv_mov_b32 v{T}, 0\nv_mov_b32 v{T+1}, s80\ns_mov_b64 exec, 1\nbuffer_store_dword v{T+1}, v{T}, s[{SRDW}:{SRDW+3}], s4 offen sc1\ns_mov_b64 exec, -1")
    C("roles: wo tile (32 rows a, column half b)")
    A(f"s_bfe_u32 s{sB}, s2, 0x10003\ns_lshr_b32 s{sA}, s2, 4\ns_lshl_b32 s{sA}, s{sA}, 3\ns_and_b32 s{sO2}, s2, 7\ns_add_u32 s{sA}, s{sA}, s{sO2}")
    A(f"v_and_b32 v{T}, 15, v2"); masks(AM,T,T+1,T+2)
    A(f"v_lshrrev_b32 v{T+1}, 4, v2\nv_mul_u32_u24 v{vTO}, 896, v{T+1}\nv_lshl_add_u32 v{vTO}, v{T}, 4, v{vTO}")
    for r in range(8): A(f"v_mov_b32 v{PA+r}, 0")
    def tile_load(sr, gated=True, so=None, pol=None, WT=WT, nt=8):
        if pol is None: pol=cfg.wnt
        for t in range(nt):
            o=sO2 if so is None else so
            if gated and cfg.agate is not None: A(f"s_waitcnt vmcnt({cfg.agate})")
            A(f"buffer_load_dwordx4 v[{WT+8*t}:{WT+8*t+3}], v{vTO}, s[{sr}:{sr+3}], s{o} offen {pol}")
            A("s_mov_b32 exec_lo, 0x0fff0fff\ns_mov_b32 exec_hi, 0x0fff0fff")
            A(f"buffer_load_dwordx4 v[{WT+8*t+4}:{WT+8*t+7}], v{vTO}, s[{sr}:{sr+3}], s{o} offen offset:256 {pol}")
            A(f"s_mov_b64 exec, -1\ns_add_u32 s{o}, s{o}, 3584")
    def project(src, WT=WT, nt=8):
        for t in range(nt+1):
            if t<nt:
                v,ln=src(t)
                for r in range(4): A(f"v_and_b32_dpp v{AT+4*t+r}, v{v}, v{AM+r} row_newbcast:{ln} {DPP}")
            if t>=1:
                tp=t-1
                for cb in range(2):
                    A(f"v_mfma_f32_16x16x32_bf16 v[{PA+4*cb}:{PA+4*cb+3}], v[{AT+4*tp}:{AT+4*tp+3}], v[{WT+8*tp+4*cb}:{WT+8*tp+4*cb+3}], v[{PA+4*cb}:{PA+4*cb+3}]")
    A(f"v_lshrrev_b32 v{T}, 5, v2\nv_lshlrev_b32 v{T}, 9, v{T}\nv_and_b32 v{T+1}, 15, v2\nv_lshl_add_u32 v{T}, v{T+1}, 5, v{T}\nv_bfe_u32 v{T+1}, v2, 4, 1\nv_lshl_add_u32 v{vPS}, v{T+1}, 4, v{T}")
    def rec_store(soff, sent=False, rne=False):
        nop(8)
        for r in range(4): A(f"v_permlane32_swap_b32 v{PA+r}, v{PA+4+r}")
        for r in range(4):
            if sent: A(f"v_min_u32 v{PA+r}, -2, v{PA+r}")
            else:
                if rne: A(f"v_add_u32 v{PA+r}, 0x80, v{PA+r}")
                A(f"v_bfi_b32 v{PA+r}, v{vT8}, s{TG[r]}, v{PA+r}")
        A("s_mov_b32 exec_hi, 0x0fff0fff")
        A(f"buffer_store_dwordx4 v[{PA}:{PA+3}], v{vPS}, s[{SRDW}:{SRDW+3}], s{soff} offen {cfg.opol}")
        A("s_mov_b32 exec_hi, -1")
    A(f"s_lshl_b32 s{sCQ}, s{sB}, 7\ns_add_u32 s{sCQ}, s{sCQ}, s{sA}\ns_lshl_b32 s{sCQ}, s{sCQ}, 10\ns_add_u32 s{sCQ}, s{sCQ}, {PBOX}")
    if cfg.sent:
        for r in range(4): A(f"v_mov_b32 v{F+r}, -1")
        A(f"s_lshl_b32 s4, s2, 11\ns_add_u32 s4, s4, {OBOX}")
        A(f"buffer_store_dwordx4 v[{F}:{F+3}], v{vL16}, s[{SRDW}:{SRDW+3}], s4 offen {cfg.cpol}\ns_waitcnt vmcnt({cfg.cgate})")
        A(f"buffer_store_dwordx4 v[{F}:{F+3}], v{vL16}, s[{SRDW}:{SRDW+3}], s4 offen offset:1024 {cfg.cpol}\ns_waitcnt vmcnt({cfg.cgate})")
        if cfg.cpol=='': A("s_waitcnt vmcnt(0)\nbuffer_wbl2 sc1\ns_waitcnt vmcnt(0)")
        if cfg.sent2: A(f"s_mov_b64 exec, s[74:75]\nbuffer_store_dwordx4 v[{F}:{F+3}], v{vL16}, s[{SRDW}:{SRDW+3}], s{sCQ} offen sc1\ns_mov_b64 exec, -1")
        nop(2)
    if cfg.pfm and not cfg.mlp2:
        srd(SRDK,sW1,448*1792*2); srd(SRDA,sW2,448*1792*2)
        A(f"s_mul_i32 s5, s2, 7168")
        for i in range(7):
            A(f"s_waitcnt vmcnt({cfg.pfgate})\nbuffer_load_dwordx4 v[{WF+4*i}:{WF+4*i+3}], v{vL16}, s[{SRDK}:{SRDK+3}], s5 offen\ns_add_u32 s5, s5, 1024")
        if cfg.pfm>1:
            A(f"s_mul_i32 s5, s2, 7168")
            for i in range(7):
                A(f"s_waitcnt vmcnt({cfg.pfgate})\nbuffer_load_dwordx4 v[{WF+28+4*i}:{WF+28+4*i+3}], v{vL16}, s[{SRDA}:{SRDA+3}], s5 offen\ns_add_u32 s5, s5, 1024")
        A("s_waitcnt vmcnt(0)")
        backoff(64)
    lnm=lab("nomlp")
    HA=WF; HS=128; sMO=70
    k0=math.sqrt(2/math.pi)
    def gelu_rot(h, bias, dst):
        t1=h+1; t2=h+2
        rbf(h,h)
        A(f"v_lshlrev_b32 v{bias}, 16, v{bias}\nv_add_f32 v{h}, v{h}, v{bias}"); rbf(h,h)
        A(f"v_mul_f32 v{t1}, v{h}, v{h}\nv_mul_f32 v{t1}, v{t1}, v{h}\nv_mov_b32 v{t2}, {f2u(0.044715):#x}\nv_fma_f32 v{t1}, v{t1}, v{t2}, v{h}")
        A(f"v_mul_f32 v{t1}, {f2u(-2*k0*math.log2(math.e)):#x}, v{t1}\nv_exp_f32 v{t1}, v{t1}"); nop(1)
        A(f"v_add_f32 v{t1}, 1.0, v{t1}\nv_rcp_f32 v{t1}, v{t1}"); nop(1)
        A(f"v_mul_f32 v{h}, v{h}, v{t1}\nv_cvt_pk_bf16_f32 v{h}, v{h}, v{h}\nv_mov_b32 v{dst}, v{h}"); nop(2)
        for g in range(1,4): A(f"v_mov_b32_dpp v{dst}, v{h} row_ror:{16-g} row_mask:{1<<g:#x} bank_mask:0xf")
    if cfg.mlp2:
        ls2=lab("st2")
        if cfg.nomlp: A(f"s_branch {lnm}")
        A("s_and_b32 s4, s2, 7\ns_lshr_b32 s5, s2, 5\ns_bfe_u32 s6, s2, 0x20003\ns_and_b32 s7, s5, 3")
        A("s_cmp_gt_u32 s6, s7\ns_subb_u32 s8, s6, 0\ns_lshl_b32 s8, s8, 3\ns_add_u32 s8, s8, s4")
        A("s_cmp_eq_u32 s6, s7\ns_cselect_b32 s8, 24, s8\ns_cselect_b32 s9, s4, s5")
        A(f"s_cmp_lg_u32 s9, s5\ns_cbranch_scc1 {lnm if cfg.fuse else ls2}")
        C("MLP stage 1: 64 rows x 64 columns of w1 -> partial pre-activations")
        A(f"s_mul_i32 s9, s5, 25\ns_add_u32 s8, s8, s9\ns_cmp_ge_u32 s8, 196\ns_cbranch_scc1 {lnm}")
        A(f"s_mul_i32 s9, s8, 2341\ns_lshr_b32 s9, s9, 16\ns_mul_i32 s10, s9, 28\ns_sub_u32 s8, s8, s10")
        A(f"v_lshrrev_b32 v{T}, 3, v2\nv_mul_u32_u24 v{vWO_}, 3584, v{T}\nv_and_b32 v{T}, 7, v2\nv_lshl_add_u32 v{vWO_}, v{T}, 4, v{vWO_}")
        srd(SRDK,sW1,448*1792*2)
        A(f"s_mul_i32 s{sO2}, s9, {64*3584}\ns_lshl_b32 s10, s8, 7\ns_add_u32 s{sO2}, s{sO2}, s10")
        for i in range(8):
            if cfg.mgate is not None: A(f"s_waitcnt vmcnt({cfg.mgate})")
            A(f"s_mov_b32 m0, {WBUF+i*1024}\ns_nop 0")
            if not cfg.now1: A(f"buffer_load_dwordx4 v{vWO_}, s[{SRDK}:{SRDK+3}], s{sO2} offen {cfg.mnt} lds")
            A(f"s_add_u32 s{sO2}, s{sO2}, {8*3584}")
        A(f"s_lshl_b32 s10, s9, 7\nv_add_u32 v{T}, s10, v{vXA}\nds_read_b128 v[{XF}:{XF+3}], v{T}\nds_read_b128 v[{XF+4}:{XF+7}], v{T} offset:64")
        A("s_waitcnt vmcnt(0)")
        for kk in range(2):
            for u in range(4):
                r=WT+16*kk+4*u
                A(f"ds_read_b64_tr_b16 v[{r}:{r+1}], v{vG1} offset:{kk*4096+u*32}\nds_read_b64_tr_b16 v[{r+2}:{r+3}], v{vG1} offset:{kk*4096+u*32+512}")
        A("s_waitcnt lgkmcnt(0)")
        for kk in range(2):
            for u in range(4):
                r=WT+16*kk+4*u; x=XF+4*kk
                c="0" if kk==0 else f"v[{HA+4*u}:{HA+4*u+3}]"
                A(f"v_mfma_f32_16x16x32_bf16 v[{HA+4*u}:{HA+4*u+3}], v[{x}:{x+3}], v[{r}:{r+3}], {c}")
        A(f"s_lshl_b32 s8, s8, 11\ns_lshl_b32 s9, s9, 8\ns_add_u32 s8, s8, s9\ns_add_u32 s8, s8, {HBOX}")
        nop(8)
        for u in range(4): A(f"v_add_u32 v{F+u}, 0x80, v{HA+4*u}\nv_bfi_b32 v{F+u}, v{vT8}, s{TG[u]}, v{F+u}")
        A(f"s_mov_b64 exec, 0xffff\nbuffer_store_dwordx4 v[{F}:{F+3}], v{vL16}, s[{SRDW}:{SRDW+3}], s8 offen sc1\ns_mov_b64 exec, -1")
        A(f"s_branch {lnm}")
    if cfg.mlp2 and not cfg.fuse:
        A(f"{ls2}:")
        C("MLP stage 2: gelu of 32 hidden units, times 32 rows of w2")
        A(f"s_cmp_gt_u32 s4, s5\ns_subb_u32 s4, s4, 0\ns_mul_i32 s{sCM}, s5, 7\ns_add_u32 s{sCM}, s{sCM}, s4")
        srd(SRDK,sW2,1792*448*2)
        srd(SRDA,sB1,3584)
        A(f"v_and_b32 v{T}, 15, v2\nv_lshlrev_b32 v{T}, 1, v{T}\ns_lshl_b32 s{sO2}, s{sCM}, 6")
        for u in range(2): A(f"buffer_load_ushort v{X+u}, v{T}, s[{SRDA}:{SRDA+3}], s{sO2} offen offset:{32*u}\ns_nop 0")
        W2B=32
        A(f"s_mul_i32 s{sO2}, s{sCM}, {32*896}")
        for t in range(8):
            for bb,base in enumerate((WT,W2B)):
                if cfg.now2: continue
                if cfg.agate is not None: A(f"s_waitcnt vmcnt({cfg.agate})")
                A(f"buffer_load_dwordx4 v[{base+8*t}:{base+8*t+3}], v{vTO}, s[{SRDK}:{SRDK+3}], s{sO2} offen offset:{448*bb} {cfg.mnt}")
                A("s_mov_b32 exec_lo, 0x0fff0fff\ns_mov_b32 exec_hi, 0x0fff0fff")
                A(f"buffer_load_dwordx4 v[{base+8*t+4}:{base+8*t+7}], v{vTO}, s[{SRDK}:{SRDK+3}], s{sO2} offen offset:{448*bb+256} {cfg.mnt}")
                A("s_mov_b64 exec, -1")
            A(f"s_add_u32 s{sO2}, s{sO2}, 3584")
        HG=132
        A(f"s_lshr_b32 s{sO2}, s{sCM}, 1\ns_lshl_b32 s{sO2}, s{sO2}, 11\ns_add_u32 s{sO2}, s{sO2}, {HBOX}")
        for r in range(4): A(f"v_mov_b32 v{HG+4+r}, 0")
        backoff(cfg.hdelay)
        poll([(HG,vL16,0,None),(HG+4,vL16,1024,(1<<48)-1)], sO2, 't', 64)
        for r in range(8): A(f"v_and_b32 v{HG+r}, s{sNM}, v{HG+r}")
        for r in range(4): A(f"v_add_f32 v{HG+r}, v{HG+r}, v{HG+4+r}")
        A(f"s_bitcmp1_b32 s{sCM}, 0\ns_cselect_b64 vcc, -1, 0"); nop(1)
        A(f"v_cndmask_b32 v{F}, v{HG}, v{HG+2}, vcc\nv_cndmask_b32 v{F+4}, v{HG+1}, v{HG+3}, vcc")
        xrowred("v_add_f32",F,T); xrowred("v_add_f32",F+4,T)
        gelu_rot(F,X,HS); gelu_rot(F+4,X+1,HS+1)
        nop(2)
        for bb,base in enumerate((WT,W2B)):
            project(lambda t:(HS+(t>>2), 4*(t&3)), base)
            A(f"s_lshl_b32 s4, s{sCM}, 10\ns_add_u32 s4, s4, {MBOX+bb*65536}")
            rec_store(4, rne=True)
            nop(2)
            for r in range(8): A(f"v_mov_b32 v{PA+r}, 0")
    if not cfg.mlp2:
        A(f"s_lshr_b32 s{sCM}, s2, 3\ns_xor_b32 s4, s{sCM}, s2\ns_and_b32 s4, s4, 7\ns_cbranch_scc1 {lnm}")
        A(f"s_cmp_ge_u32 s{sCM}, {0 if cfg.nomlp else 28}\ns_cbranch_scc1 {lnm}")
        A(f"v_lshrrev_b32 v{T}, 3, v2\nv_mul_u32_u24 v{vWO_}, 3584, v{T}\nv_and_b32 v{T}, 7, v2\nv_lshl_add_u32 v{vWO_}, v{T}, 4, v{vWO_}")
        srd(SRDK,sW1,448*1792*2)
        srd(SRDA,sB1,3584)
        A(f"v_and_b32 v{T}, 15, v2\nv_lshlrev_b32 v{T}, 1, v{T}\ns_lshl_b32 s{sO2}, s{sCM}, 7")
        for u in range(4): A(f"buffer_load_ushort v{F+u}, v{T}, s[{SRDA}:{SRDA+3}], s{sO2} offen offset:{32*u}\ns_nop 0")
        for ps in range(4):
            nk = 4 if ps<3 else 2
            for i in range(4*nk):
                if cfg.mgate is not None: A(f"s_waitcnt vmcnt({cfg.mgate})")
                A(f"s_mov_b32 m0, {WBUF+i*1024}\ns_nop 0")
                if not cfg.now1: A(f"buffer_load_dwordx4 v{vWO_}, s[{SRDK}:{SRDK+3}], s{sO2} offen {cfg.mnt} lds")
                A(f"s_add_u32 s{sO2}, s{sO2}, {8*3584}")
            A("s_waitcnt vmcnt(0)")
            for kk in range(nk):
                for u in range(4):
                    r=WT+16*kk+4*u
                    A(f"ds_read_b64_tr_b16 v[{r}:{r+1}], v{vG1} offset:{kk*4096+u*32}\nds_read_b64_tr_b16 v[{r+2}:{r+3}], v{vG1} offset:{kk*4096+u*32+512}")
            A("s_waitcnt lgkmcnt(0)")
            for kk in range(nk):
                for u in range(4):
                    r=WT+16*kk+4*u; x=XF+4*(4*ps+kk)
                    c="0" if (ps==0 and kk==0) else f"v[{HA+4*u}:{HA+4*u+3}]"
                    A(f"v_mfma_f32_16x16x32_bf16 v[{HA+4*u}:{HA+4*u+3}], v[{x}:{x+3}], v[{r}:{r+3}], {c}")
        nop(8)
        k0=math.sqrt(2/math.pi)
        for u in range(4):
            h=HA+4*u; t1=h+1; t2=h+2
            rbf(h,h)
            A(f"v_lshlrev_b32 v{F+u}, 16, v{F+u}\nv_add_f32 v{h}, v{h}, v{F+u}"); rbf(h,h)
            A(f"v_mul_f32 v{t1}, v{h}, v{h}\nv_mul_f32 v{t1}, v{t1}, v{h}\nv_mov_b32 v{t2}, {f2u(0.044715):#x}\nv_fma_f32 v{t1}, v{t1}, v{t2}, v{h}")
            A(f"v_mul_f32 v{t1}, {f2u(-2*k0*math.log2(math.e)):#x}, v{t1}\nv_exp_f32 v{t1}, v{t1}"); nop(1)
            A(f"v_add_f32 v{t1}, 1.0, v{t1}\nv_rcp_f32 v{t1}, v{t1}"); nop(1)
            A(f"v_mul_f32 v{h}, v{h}, v{t1}\nv_cvt_pk_bf16_f32 v{h}, v{h}, v{h}\nv_mov_b32 v{HS+u}, v{h}"); nop(2)
            for g in range(1,4): A(f"v_mov_b32_dpp v{HS+u}, v{h} row_ror:{16-g} row_mask:{1<<g:#x} bank_mask:0xf")
        srd(SRDK,sW2,1792*448*2)
        for bb in range(2):
            A(f"s_mul_i32 s{sO2}, s{sCM}, {64*896}\ns_add_u32 s{sO2}, s{sO2}, {448*bb}")
            for rb in range(2):
                if not cfg.now2: tile_load(SRDK,pol=cfg.mnt)
                A("s_waitcnt vmcnt(0)")
                project(lambda t:(HS+2*rb+(t>>2), 4*(t&3)))
                nop(4)
            A(f"s_lshl_b32 s4, s{sCM}, 10\ns_add_u32 s4, s4, {MBOX+bb*32768}")
            rec_store(4)
            nop(2)
            for r in range(8): A(f"v_mov_b32 v{PA+r}, 0")
    stamp('mlpdone')
    A(f"{lnm}:")
    FC=cfg.fc; FC0=256-FC
    stamp('wodone')
    if NB: ldswait(KCNT, T, T+1, sSPIN, 4, 16)
    else: A("s_barrier")
    stamp(4)
    C("row sums of this split; exchange (max, sum) between the 32 splits of the kv head")
    A(f"s_mov_b32 s{sCM}, {f2u(CEXP):#x}")
    if cfg.binfv is not None:
        C("how many splits of this head are already past their K pass (late splits keep one more load in flight)")
        A(f"s_lshr_b32 s4, s2, 5\ns_lshl_b32 s4, s4, 9\ns_add_u32 s4, s4, {MLBOX}\ns_mov_b32 exec_hi, 0")
        A(f"buffer_load_dwordx4 v[{WF}:{WF+3}], v{vL16}, s[{SRDW}:{SRDW+3}], s4 offen sc1\ns_mov_b32 exec_hi, -1")
    if cfg.pool:
        C("publish the scores of the pooled tiles")
        A(f"v_bfe_u32 v{T}, v2, 2, 2\nv_lshlrev_b32 v{T}, 11, v{T}\nv_lshrrev_b32 v{T+1}, 4, v2\nv_lshl_add_u32 v{T}, v{T+1}, 6, v{T}\nv_and_b32 v{T+1}, 3, v2\nv_lshl_add_u32 v{T}, v{T+1}, 4, v{T}\nv_add_u32 v{T}, {SC+(32-cfg.ps)*64}, v{T}")
        A(f"ds_read_b128 v[{X}:{X+3}], v{T}\ns_lshl_b32 s4, s2, {RS}\ns_add_u32 s4, s4, {SBOX}")
        if cfg.ps==8: A(f"ds_read_b128 v[{F}:{F+3}], v{T} offset:256")
        A("s_waitcnt lgkmcnt(0)")
        if cfg.ps<4:
            em=(1<<(16*cfg.ps))-1
            A(f"s_mov_b32 exec_lo, {em&0xffffffff:#x}\ns_mov_b32 exec_hi, {em>>32:#x}")
        if not cfg.nosbw: A(f"buffer_store_dwordx4 v[{X}:{X+3}], v{vL16}, s[{SRDW}:{SRDW+3}], s4 offen sc1")
        if cfg.ps<4: A("s_mov_b64 exec, -1")
        if cfg.ps==8: A(f"s_nop 0\nbuffer_store_dwordx4 v[{F}:{F+3}], v{vL16}, s[{SRDW}:{SRDW+3}], s4 offen offset:1024 sc1\ns_waitcnt vmcnt(0)")
    A(f"v_and_b32 v{T}, 1, v2\nv_lshlrev_b32 v{T+1}, 4, v{T}\nv_add_u32 v{T+1}, {MX}, v{T+1}\nv_lshlrev_b32 v{T+2}, 5, v2\nv_add_u32 v{T+2}, {SC}, v{T+2}")
    A(f"ds_read_b128 v[{F}:{F+3}], v{T+1}")
    for w in range(4):
        A(f"ds_read_b128 v[{XF+8*w}:{XF+8*w+3}], v{T+2} offset:{w*2048}\nds_read_b128 v[{XF+8*w+4}:{XF+8*w+7}], v{T+2} offset:{w*2048+16}")
    A("s_waitcnt lgkmcnt(0)")
    A(f"v_max_f32 v{F}, v{F}, v{F+1}\nv_max3_f32 v{F}, v{F}, v{F+2}, v{F+3}\nv_mul_f32 v{F+4}, s{sCM}, v{F}\nv_sub_f32 v{F+4}, 0, v{F+4}")
    A(f"v_mov_b32 v{F+1}, 0\nv_mov_b32 v{F+5}, 0")
    for r in range(32):
        A(f"v_lshlrev_b32 v{T+3}, 16, v{XF+r}\nv_and_b32 v{T+4}, 0xffff0000, v{XF+r}")
        A(f"v_fma_f32 v{T+3}, v{T+3}, s{sCM}, v{F+4}\nv_fma_f32 v{T+4}, v{T+4}, s{sCM}, v{F+4}")
        A(f"v_exp_f32 v{T+3}, v{T+3}\nv_exp_f32 v{T+4}, v{T+4}"); nop(1)
        A(f"v_add_f32 v{F+1}, v{F+1}, v{T+3}\nv_add_f32 v{F+5}, v{F+5}, v{T+4}")
    A(f"v_add_f32 v{F+1}, v{F+1}, v{F+5}")
    rowred("v_add_f32",F+1,[2,4,8]); xrowred("v_add_f32",F+1,T+3)
    nop(2)
    A(f"v_mov_b32_dpp v{F+2}, v{F} quad_perm:[1,1,3,3] {DPP}\nv_mov_b32_dpp v{F+3}, v{F+1} quad_perm:[1,1,3,3] {DPP}")
    A(f"v_mov_b32 v{F+6}, v{F}")
    for r in range(4): A(f"v_bfi_b32 v{F+r}, v{vT8}, s{TG[r]}, v{F+r}")
    if cfg.probe is not None and cfg.probe[0]=='x':
        A(f"s_getreg_b32 s4, hwreg(HW_REG_XCC_ID)\ns_and_b32 s4, s4, 15\ns_lshl_b32 s4, s4, 8\nv_or_b32 v{F}, s4, v{F}")
    A(f"s_lshl_b32 s{sO2}, s2, 4\ns_add_u32 s{sO2}, s{sO2}, {MLBOX}\nv_mov_b32 v{T}, 0\ns_mov_b64 exec, 1\ns_waitcnt vmcnt(0)")
    if not cfg.noml: A(f"buffer_store_dwordx4 v[{F}:{F+3}], v{T}, s[{SRDW}:{SRDW+3}], s{sO2} offen sc1")
    A("s_mov_b64 exec, -1")
    if cfg.binfv is not None:
        tagchk(T,WF)
        A(f"v_cmp_eq_u32 vcc, 0, v{T}\ns_bcnt1_i32_b32 s4, vcc_lo\ns_cmp_ge_u32 s4, {cfg.brank}\ns_cselect_b32 s4, 1, 0\nv_mov_b32 v{T}, {BOOST}\nv_mov_b32 v{T+1}, s4\nds_write_b32 v{T}, v{T+1}")
    srd(SRDK,sWO,4096*448*2)
    A(f"s_mul_i32 s{sO2}, s{sA}, {32*896}\ns_mul_i32 s{sSPIN}, s{sB}, 448\ns_add_u32 s{sO2}, s{sO2}, s{sSPIN}")
    LATE = cfg.wolate and cfg.pool
    if not cfg.nowo and not LATE: tile_load(SRDK)
    FC=cfg.fc
    lnf=lab("nofin")
    FC0=256-FC
    if FC==56:
        A(f"v_lshrrev_b32 v{T}, 4, v2\nv_and_b32 v{T+1}, 1, v2\nv_lshl_add_u32 v{T}, v{T+1}, 2, v{T}\nv_lshlrev_b32 v{vG2}, 1, v{T}")
        A(f"s_sub_u32 s{sO2}, s2, {FC0}\ns_lshl_b32 s{sO2}, s{sO2}, 4")
    else:
        A(f"v_lshrrev_b32 v{T}, 4, v2\nv_lshlrev_b32 v{vG2}, 1, v{T}")
        A(f"s_sub_u32 s{sO2}, s2, {FC0}\ns_lshl_b32 s{sO2}, s{sO2}, 3")
    A(f"v_add_u32 v{vG2}, s{sO2}, v{vG2}")
    A(f"s_cmp_lt_u32 s2, {FC0}\ns_cbranch_scc1 {lnf}")
    srd(SRDA,sX,896)
    A(f"buffer_load_ushort v{vFX}, v{vG2}, s[{SRDA}:{SRDA+3}], 0 offen")
    srd(SRDK,sB2,896)
    A(f"buffer_load_ushort v{T}, v{vG2}, s[{SRDK}:{SRDK+3}], 0 offen")
    A(f"s_waitcnt vmcnt(0)\nv_lshlrev_b32 v{vFX}, 16, v{vFX}\nv_lshlrev_b32 v{vFM}, 16, v{T}")
    if not cfg.mimic or cfg.fuse: A(f"v_add_f32 v{vFX}, v{vFX}, v{vFM}")
    A(f"{lnf}:")
    backoff(cfg.mldelay)
    I1=XF
    A(f"s_lshr_b32 s{sO2}, s2, 5\ns_lshl_b32 s{sO2}, s{sO2}, 9\ns_add_u32 s{sO2}, s{sO2}, {MLBOX}\nv_lshlrev_b32 v{vWO_}, 4, v7")
    if not cfg.noml: poll([(I1,vWO_,0,None)], sO2, 't', cfg.mlsleep)
    if cfg.probe is not None and cfg.probe[0]=='x':
        A(f"v_bfe_u32 v{T}, v{I1}, 8, 4\nv_mov_b32 v{T+1}, v{T}"); nop(2)
        A(f"v_permlane16_swap_b32 v{T}, v{T+1}\nv_cmp_ne_u32 vcc, v{T}, v{T+1}\ns_bcnt1_i32_b64 s79, vcc")
    A(f"v_and_b32 v{T}, 1, v2\nv_cmp_eq_u32 vcc, 1, v{T}"); nop(2)
    A(f"v_cndmask_b32 v{I1}, v{I1}, v{I1+2}, vcc\nv_cndmask_b32 v{I1+1}, v{I1+1}, v{I1+3}, vcc\nv_and_b32 v{I1}, 0xffff0000, v{I1}\nv_and_b32 v{I1+1}, s{sNM}, v{I1+1}\nv_mov_b32 v{T+1}, v{I1}")
    rowred("v_max_f32",T+1,[2,4,8]); xrowred("v_max_f32",T+1,T+2)
    A(f"v_sub_f32 v{T+2}, v{I1}, v{T+1}\nv_sub_f32 v{T+3}, v{F+6}, v{T+1}\nv_mul_f32 v{T+2}, s{sCM}, v{T+2}\nv_mul_f32 v{T+3}, s{sCM}, v{T+3}")
    A(f"v_exp_f32 v{T+2}, v{T+2}\nv_exp_f32 v{T+3}, v{T+3}"); nop(1)
    A(f"v_mul_f32 v{T+2}, v{T+2}, v{I1+1}")
    rowred("v_add_f32",T+2,[2,4,8]); xrowred("v_add_f32",T+2,T+4)
    A(f"v_rcp_f32 v{T+4}, v{T+2}"); nop(1)
    A(f"v_fma_f32 v{T+5}, -v{T+2}, v{T+4}, 1.0\nv_fma_f32 v{T+4}, v{T+5}, v{T+4}, v{T+4}")
    A(f"v_lshlrev_b32 v{T}, 2, v{T}\nv_add_u32 v{T}, {FB}, v{T}")
    if cfg.pool:
        A(f"v_mul_f32 v{T+1}, s{sCM}, v{T+1}\nv_sub_f32 v{T+1}, 0, v{T+1}")
        A(f"ds_write_b32 v{T}, v{T+4}\nds_write_b32 v{T}, v{T+3} offset:8\nds_write_b32 v{T}, v{T+1} offset:16")
        A(f"s_and_b32 s4, s2, 0xf8\ns_lshl_b32 s4, s4, 10\ns_add_u32 s4, s4, {SBOX}")
        for k in range(8):
            if k==4: A("s_add_u32 s4, s4, 4096")
            if not cfg.nosbr and not cfg.sdir: A(f"s_waitcnt vmcnt(1)\nbuffer_load_dwordx4 v[{I1+4*k}:{I1+4*k+3}], v{vL16}, s[{SRDW}:{SRDW+3}], s4 offen offset:{(k&3)*1024} sc1")
        A(f"v_add_u32 v{T}, {WBUF}, v{vL16}\ns_waitcnt vmcnt(0)")
        if not cfg.sdir:
            for k in range(8): A(f"ds_write_b128 v{T}, v[{I1+4*k}:{I1+4*k+3}] offset:{k*1024}")
        A(f"v_mov_b32 v{T}, {RDY}\nv_mov_b32 v{T+1}, 1\ns_waitcnt lgkmcnt(0)\nds_write_b32 v{T}, v{T+1}")
        stamp('rdy')
    else:
        A(f"v_mul_f32 v{T+3}, v{T+3}, v{T+4}\nds_write_b32 v{T}, v{T+3}")
    half=FC//2
    sH2=68
    A(f"s_sub_u32 s{sSPIN}, s2, {FC0}\ns_cmp_ge_u32 s{sSPIN}, {half}\ns_cselect_b32 s{sH2}, {128*1024-896}, 0\ns_cselect_b32 s{sO2}, {(64 if cfg.mlp2 else 32)*1024-896}, 0\ns_mul_i32 s{sSPIN}, s{sSPIN}, {1792//FC}")
    A(f"s_add_u32 s{sH2}, s{sH2}, s{sSPIN}\ns_add_u32 s{sH2}, s{sH2}, {PBOX}\ns_add_u32 s{sO2}, s{sO2}, s{sSPIN}\ns_add_u32 s{sO2}, s{sO2}, {MBOX}")
    assert FC==56
    A(f"v_lshlrev_b32 v{vH}, 10, v7\nv_and_b32 v{T}, 1, v2\nv_lshl_add_u32 v{vH}, v{T}, 4, v{vH}")
    for k in range(1,4): A(f"v_add_u32 v{vH+k}, {k*32768}, v{vH}")
    if cfg.fuse:
        C("MLP stage 2: gelu of this tile's 16 hidden units (their w2 rows join the output projection)")
        lg=lab("noh"); HG=132
        A(f"v_mov_b32 v{HS}, 0\ns_cmp_ge_u32 s{sA}, {0 if cfg.nomlp else 112}\ns_cbranch_scc1 {lg}")
        srd(SRDA,sB1,3584)
        A(f"v_and_b32 v{T}, 15, v2\nv_lshlrev_b32 v{T}, 1, v{T}\ns_lshl_b32 s69, s{sA}, 5")
        A(f"buffer_load_ushort v{X}, v{T}, s[{SRDA}:{SRDA+3}], s69 offen")
        A(f"s_lshr_b32 s69, s{sA}, 2\ns_lshl_b32 s69, s69, 11\ns_add_u32 s69, s69, {HBOX}")
        for r in range(4): A(f"v_mov_b32 v{HG+4+r}, 0")
        poll([(HG,vL16,0,None),(HG+4,vL16,1024,(1<<48)-1)], 69, 't', 64)
        for r in range(8): A(f"v_and_b32 v{HG+r}, s{sNM}, v{HG+r}")
        for r in range(4): A(f"v_add_f32 v{HG+r}, v{HG+r}, v{HG+4+r}")
        A(f"s_bitcmp1_b32 s{sA}, 1\ns_cselect_b64 vcc, -1, 0"); nop(1)
        A(f"v_cndmask_b32 v{HG}, v{HG}, v{HG+2}, vcc\nv_cndmask_b32 v{HG+1}, v{HG+1}, v{HG+3}, vcc")
        A(f"s_bitcmp1_b32 s{sA}, 0\ns_cselect_b64 vcc, -1, 0"); nop(1)
        A(f"v_cndmask_b32 v{F}, v{HG}, v{HG+1}, vcc")
        xrowred("v_add_f32",F,T)
        gelu_rot(F,X,HS)
        A(f"{lg}:")
    if cfg.mimic and not cfg.nomlp and not cfg.fuse:
        lg=lab("nomg")
        A(f"s_cmp_lt_u32 s2, {FC0}\ns_cbranch_scc1 {lg}")
        if cfg.sent2:
            A(f"s_mov_b32 s69, {MLBOX}")
            poll([(I1+4*k,vL16,1024*k,None) for k in range(4)], 69, 't', 64)
        if cfg.mlp2:
            for r in range(4): A(f"v_mov_b32 v{I1+4+r}, 0")
            poll([(I1,vH,0,None),(I1+4,vH+1,0,(1<<48)-1)], sO2, 't', 64)
            for r in range(8): A(f"v_and_b32 v{I1+r}, s{sNM}, v{I1+r}")
            for r in range(4): A(f"v_add_f32 v{I1+r}, v{I1+r}, v{I1+4+r}")
        else:
            for r in range(4): A(f"v_mov_b32 v{I1+r}, 0")
            poll([(I1,vH,0,(1<<56)-1)], sO2, 't', 64)
            for r in range(4): A(f"v_and_b32 v{I1+r}, s{sNM}, v{I1+r}")
        tred4(I1); rowred("v_add_f32",I1,[2,4,8])
        rbf(I1,I1)
        A(f"v_add_f32 v{vFM}, v{vFM}, v{I1}"); rbf(vFM,vFM)
        A(f"{lg}:")
    srd(SRDA,sOUT,896)
    A(f"v_bfe_u32 v{T}, v2, 3, 2\nv_lshlrev_b32 v{T}, 14, v{T}\nv_lshrrev_b32 v{T+1}, 5, v2\nv_lshl_add_u32 v{T}, v{T+1}, 11, v{T}\nv_and_b32 v{T+1}, 7, v2\nv_lshl_add_u32 v{vG1}, v{T+1}, 4, v{T}")
    for k in range(1,4): A(f"v_add_u32 v{X+k}, {k*4096}, v{vG1}")
    A(f"s_lshr_b32 s{sO2}, s2, 5\ns_lshl_b32 s{sO2}, s{sO2}, 16\ns_and_b32 s{sSPIN}, s{sA}, 15\ns_lshl_b32 s{sSPIN}, s{sSPIN}, 7\ns_add_u32 s{sO2}, s{sO2}, s{sSPIN}\ns_add_u32 s{sO2}, s{sO2}, {OBOX}")
    if cfg.warm:
        lh=lab("pc")
        A(f"s_getpc_b64 s[4:5]\n{lh}:\nv_lshlrev_b32 v{T}, 6, v2")
        A(f"v_min_u32 v{T+1}, {Ldone}-{lh}, v{T}\nglobal_load_dword v{T+1}, v{T+1}, s[4:5]")
        A(f"s_add_u32 s6, s4, {Lpool}-{lh}\ns_addc_u32 s7, s5, -1")
        for k in range(cfg.warm):
            A(f"global_load_dword v{T+2+k}, v{T}, s[6:7]\ns_add_u32 s6, s6, 4096\ns_addc_u32 s7, s7, 0")
    if cfg.touch is not None:
        if not cfg.sent:
            A(f"s_lshl_b32 s4, s2, 11\ns_add_u32 s4, s4, {OBOX}")
            A(f"buffer_load_dwordx4 v[{I1}:{I1+3}], v{vL16}, s[{SRDW}:{SRDW+3}], s4 offen {cfg.touch}\ns_nop 0")
            A(f"buffer_load_dwordx4 v[{I1+4}:{I1+7}], v{vL16}, s[{SRDW}:{SRDW+3}], s4 offen offset:1024 {cfg.touch}\ns_nop 0")
        if not cfg.sent2:
            A(f"buffer_load_dwordx4 v[{I1+8}:{I1+11}], v{vL16}, s[{SRDW}:{SRDW+3}], s{sCQ} offen {cfg.touch}")
        A("s_waitcnt vmcnt(0)")
    if LATE:
        srd(SRDK,sWO,4096*448*2)
        A(f"s_mul_i32 s69, s{sA}, {32*896}\ns_mul_i32 s4, s{sB}, 448\ns_add_u32 s69, s69, s4")
        lw=lab("dw"); lwd=lab("dwd")
    if LATE and cfg.wolate==2:
        if cfg.fuse:
            srd(SRDV,sW2,1792*448*2)
            A(f"s_mul_i32 s70, s{sA}, {16*896}\ns_add_u32 s70, s70, s4")
        A("s_waitcnt vmcnt(0) lgkmcnt(0)\ns_barrier")
        stamp(5)
        if cfg.fuse: tile_load(SRDV, gated=False, so=70, WT=64, nt=4)
        if not cfg.nowo: tile_load(SRDK, gated=False, so=69)
    elif LATE:
        A(f"v_mov_b32 v{T}, {DONE}\ns_mov_b32 s{sSPIN}, 0")
        A(f"{lw}:\nds_read_b32 v{T+1}, v{T}\ns_add_u32 s{sSPIN}, s{sSPIN}, 1\ns_waitcnt lgkmcnt(0)\nv_readfirstlane_b32 s4, v{T+1}\ns_cmp_lg_u32 s4, 0\ns_cbranch_scc1 {lwd}")
        A(f"s_sleep 2\ns_cmp_lt_u32 s{sSPIN}, {SPIN_LIMIT*64}\ns_cbranch_scc1 {lw}\n{lwd}:")
        backoff(cfg.wodelay)
        tile_load(SRDK, gated=False, so=69)
        A("s_barrier")
    else:
        A("s_waitcnt vmcnt(0) lgkmcnt(0)\ns_barrier")
    if cfg.wolate!=2: stamp(5)
    if cfg.notail: A(f"s_branch {lend}")
    R=F
    def sum16(I, sent):
        assert not (cfg.fast1 or cfg.fast2)
        if not sent:
            for r in range(16): A(f"v_and_b32 v{I+r}, s{sNM}, v{I+r}")
        for r in range(4): A(f"v_add_f32 v{R+r}, v{I+r}, v{I+4+r}\nv_add_f32 v{R+4+r}, v{I+8+r}, v{I+12+r}")
        for r in range(4): A(f"v_add_f32 v{R+r}, v{R+r}, v{R+4+r}")
        tred4(R)
    C("hop 1: gather the 32 normalised partial outputs of this tile's 32 dims, project with wo")
    if cfg.fuse and cfg.fmode==0:
        A("s_waitcnt vmcnt(16)")
        project(lambda t:(HS,4*t), 64, 4)
    elif cfg.fuse:
        A(f"s_waitcnt vmcnt({cfg.fmode})")
    elif cfg.wowait is not None: A(f"s_waitcnt vmcnt({cfg.wowait})")
    backoff(cfg.h1delay)
    poll([(I1,vG1,0,None),(I1+4,X+1,0,None),(I1+8,X+2,0,None),(I1+12,X+3,0,None)], sO2, 's' if cfg.sent else 't', cfg.sleep1, cfg.fast1, cfg.fthr, during=(lambda:(A('s_waitcnt vmcnt(20)'),project(lambda t:(HS,4*t), 64, 4))) if (cfg.fuse and cfg.fmode) else None)
    stamp(6)
    if cfg.tdiag: A(f"s_mov_b32 s95, s{sSPIN}")
    sum16(I1,cfg.sent); rowred("v_add_f32",R,[8])
    A(f"v_cvt_pk_bf16_f32 v{R}, v{R}, v{R}"); nop(2)
    project(lambda t:(R,t))
    rec_store(sCQ, cfg.sent2)
    stamp('rec')
    A(f"s_cmp_lt_u32 s2, {FC0}\ns_cbranch_scc1 {lend}")
    C("hop 2: 56 workgroups sum the 128 projection partials of 8 output columns each")
    I2=XF+16
    if cfg.ackw: A("s_waitcnt vmcnt(0)")
    backoff(cfg.h2delay)
    poll([(I2+4*k,vH+k,0,None) for k in range(4)], sH2, 's' if cfg.sent2 else 't', cfg.sleep2, cfg.fast2, None)
    stamp('h2')
    sum16(I2,cfg.sent2); rowred("v_add_f32",R,[2,4,8])
    if cfg.mimic and not cfg.fuse:
        rbf(R,R)
        A(f"v_add_f32 v{R}, v{vFX}, v{R}"); rbf(R,R)
        A(f"v_add_f32 v{R}, v{R}, v{vFM}\nv_cvt_pk_bf16_f32 v{R}, v{R}, v{R}")
    else:
        if cfg.tolp is not None:
            A(f"s_cmp_eq_u32 s2, 200\ns_cselect_b32 s4, {f2u(cfg.tolp):#x}, 0\nv_add_f32 v{R}, s4, v{R}")
        A(f"v_add_f32 v{R}, v{vFX}, v{R}\nv_cvt_pk_bf16_f32 v{R}, v{R}, v{R}")
    A(f"s_mov_b32 exec_lo, 0x00030003\ns_mov_b32 exec_hi, 0x00030003")
    A(f"buffer_store_short v{R}, v{vG2}, s[{SRDA}:{SRDA+3}], 0 offen")
    C("advance the hand-off epoch (every workgroup has read it long ago)")
    A(f"s_cmp_lg_u32 s2, 255\ns_cbranch_scc1 {lend}")
    A(f"s_mov_b64 exec, 1\ns_add_u32 s{sE}, s{sE}, 1\nv_mov_b32 v{T+1}, s{sE}\nv_mov_b32 v{T+2}, 0")
    A(f"buffer_store_dword v{T+1}, v{T+2}, s[{SRDW}:{SRDW+3}], 0 offen sc1")
    if cfg.probe is not None:
        lx=lab("px"); ly=lab("py")
        if cfg.probe[0]=='g':
            A(f"s_mov_b64 exec, -1\ns_mov_b32 s4, 0x300000\nbuffer_load_dwordx4 v[{F}:{F+3}], v{vL16}, s[{SRDW}:{SRDW+3}], s4 offen sc1")
            A("s_waitcnt vmcnt(0)\ns_memrealtime s[82:83]\ns_waitcnt lgkmcnt(0)")
            for r in range(4): A(f"v_sub_u32 v{F+r}, s82, v{F+r}")
            A(f"v_max3_u32 v{F}, v{F}, v{F+1}, v{F+2}\nv_max_u32 v{F}, v{F}, v{F+3}\ns_mov_b32 s4, {int(cfg.probe[1]*100)}\nv_cmp_lt_u32 vcc, s4, v{F}\ns_cbranch_vccz {lend}")
        elif cfg.probe[0]=='t':
            A("s_waitcnt vmcnt(0)\ns_memrealtime s[82:83]\ns_waitcnt lgkmcnt(0)")
            k={'end':82,'b1':86,'b2':88,'b3':90}[cfg.probe[2]]
            A(f"s_sub_u32 s4, s{k}, s80\ns_cmp_lt_u32 s4, {int(cfg.probe[1]*100)}\ns_cbranch_scc1 {lend}")
        else:
            A(f"s_cmp_eq_u32 s79, 0\ns_cbranch_scc1 {lend}")
        A(f"s_mov_b32 s4, 40\n{lx}:\ns_sleep 40\ns_sub_u32 s4, s4, 1\ns_cmp_lg_u32 s4, 0\ns_cbranch_scc1 {lx}")
        A("s_endpgm")
    A(f"{lend}:")
    if cfg.probe is not None: pass
    elif cfg.stamps and cfg.dbgout:
        A(f"s_cmp_lt_u32 s2, 252\ns_cbranch_scc1 {Ldone}")
        A("s_mov_b64 exec, 1\ns_waitcnt vmcnt(0)")
        stamp(1)
        srd(SRDA,sDBG,256)
        A(f"s_waitcnt lgkmcnt(0)\ns_sub_u32 s{sO2}, s2, 252\ns_lshl_b32 s{sO2}, s{sO2}, 4\nv_mov_b32 v{T}, 0")
        for i,k in enumerate((3,4,5,1)):
            A(f"s_sub_u32 s4, s{80+2*k}, s80\nv_mov_b32 v{F+i}, s4")
        A(f"buffer_store_dwordx4 v[{F}:{F+3}], v{T}, s[{SRDA}:{SRDA+3}], s{sO2} offen")
    elif cfg.stamps:
        A("s_mov_b64 exec, 1\ns_waitcnt vmcnt(0)")
        stamp(1)
        A("s_getreg_b32 s94, hwreg(HW_REG_XCC_ID)\ns_waitcnt lgkmcnt(0)")
        A(f"s_lshl_b32 s{sO2}, s2, 6\ns_add_u32 s{sO2}, s{sO2}, {STAMP:#x}\nv_mov_b32 v{T}, 0")
        for k in range(8):
            A(f"v_mov_b32 v{F}, s{80+2*k}\nv_mov_b32 v{F+1}, s{81+2*k}\nbuffer_store_dwordx2 v[{F}:{F+1}], v{T}, s[{SRDW}:{SRDW+3}], s{sO2} offen offset:{8*k}\ns_nop 1")
    A(f"{Ldone}:")
    A("s_endpgm")
    body="\n".join(L)+"\n"
    kd=f""".section .rodata,"a"
.p2align 6
.amdhsa_kernel {N}
  .amdhsa_next_free_vgpr 232
  .amdhsa_next_free_sgpr 96
  .amdhsa_accum_offset 232
  .amdhsa_group_segment_fixed_size 0
  .amdhsa_kernarg_size 104
  .amdhsa_user_sgpr_count 2
  .amdhsa_user_sgpr_kernarg_segment_ptr 1
  .amdhsa_system_sgpr_workgroup_id_x 1
  .amdhsa_float_denorm_mode_32 3
.end_amdhsa_kernel
"""
    return body, kd

HDR='''; ---------------------------------------------------------------------------------------------
;    plus a 16x224 tile of w2 in one f32 accumulator, final sum with x and b2.
; ---------------------------------------------------------------------------------------------
'''
def header():
    ref=open('parallel_sum__gqa_block_cached__dense_activation_gelu__decode.s.ref').read().split("\n")
    out=[]
    for l in ref:
        if l.startswith("; @launch"):
            out.append(f"; @launch grid=(256,1,1) block=(320,1,1) lds={LDS_END}")
            break
        out.append(l)
    return "\n".join(out)+"\n"

def final(cfg, path):
    body,kd=gen(cfg)
    open(path,"w").write(header()+HDR+'.amdgcn_target "amdgcn-amd-amdhsa--gfx950"\n.text\n'+body+kd)

def bench(cfgs, path):
    sys.path.insert(0,'bench')
    from genstream import meta
    s='.amdgcn_target "amdgcn-amd-amdhsa--gfx950"\n'
    ks=[]; args=[]
    for c in cfgs:
        body,kd=gen(c)
        s+=".text\n"+body+kd.replace("kernarg_size 104","kernarg_size 112")
        ks.append((c.name,232,320)); args.append(f"{c.name} 256 320 {LDS_END}")
    s+=meta(ks)
    open(path+".s","w").write(s); open(path+".args","w").write(" @ ".join(args))

def mk(name, **kw):
    c=Cfg(); c.name=name
    for k,v in kw.items():
        assert hasattr(c,k), k
        setattr(c,k,v)
    return c

if __name__=="__main__":
    if sys.argv[1]=="final":
        kw=eval(sys.argv[3]) if len(sys.argv)>3 else {}
        final(mk(KNAME,**kw), sys.argv[2])
    else:
        bench([mk(n,**kw) for n,kw in eval(sys.argv[3])], sys.argv[2])
```
